```python
import torch

def _softmax(x, axis=-1):
    return torch.softmax(x, dim=axis)
def _gelu(x):
    return torch.nn.functional.gelu(x, approximate="tanh")
def _silu(x):
    return torch.nn.functional.silu(x)
def _sigmoid(x):
    return torch.sigmoid(x)
def _layernorm(x, axis=-1, eps=1e-5):
    m = x.mean(dim=axis, keepdim=True)
    v = x.var(dim=axis, keepdim=True, unbiased=False)
    return (x - m) / torch.sqrt(v + eps)
def _scatter_add(tgt, idx, src, axis=0):
    return tgt.clone().index_add_(axis, idx, src)
def _segment_sum(src, seg, n):
    out = torch.zeros((n,) + src.shape[1:], dtype=src.dtype)
    return out.index_add_(0, seg, src)
def _pad(x, pw):
    flat = tuple(v for pair in reversed(pw) for v in pair)
    return torch.nn.functional.pad(x, flat)

kernel_name = 'interleave_layers__grouped_kv_mqa__moe_arch_mod__prompt'

def setup_inputs():

    _w = (lambda a: (lambda t: t.to(torch.bfloat16) if t.is_floating_point() else t)(torch.as_tensor(a)))
    def _A_setup():
        B, S, D, H = 1, 2048, 512, 32
        Dh = D // H
        return {
            "x": _w((lambda *s: torch.randn(*s, dtype=torch.bfloat16) * 0.05)(B, S, D)),
            "wq": _w((lambda *s: torch.randn(*s, dtype=torch.bfloat16) * 0.05)(D, H * Dh)),
            "wk": _w((lambda *s: torch.randn(*s, dtype=torch.bfloat16) * 0.05)(D, Dh)),
            "wv": _w((lambda *s: torch.randn(*s, dtype=torch.bfloat16) * 0.05)(D, Dh)),
            "wo": _w((lambda *s: torch.randn(*s, dtype=torch.bfloat16) * 0.05)(H * Dh, D)),
        }
    _A_in = _A_setup()

    def _B_setup():
        B, S, D, F, C = 1, 2048, 512, 1792, 1
        return {
            "x": _w((lambda *s: torch.randn(*s, dtype=torch.bfloat16) * 0.05)(B, S, D)),
            "w_r": _w((lambda *s: torch.randn(*s, dtype=torch.bfloat16) * 0.05)(D)),
            "w_gate": _w((lambda *s: torch.randn(*s, dtype=torch.bfloat16) * 0.05)(D, F)),
            "w_up": _w((lambda *s: torch.randn(*s, dtype=torch.bfloat16) * 0.05)(D, F)),
            "w_down": _w((lambda *s: torch.randn(*s, dtype=torch.bfloat16) * 0.05)(F, D)),
        }
    _B_in = _B_setup()

    return {
        "A_x": _A_in["x"],
        "A_wq": _A_in["wq"],
        "A_wk": _A_in["wk"],
        "A_wv": _A_in["wv"],
        "A_wo": _A_in["wo"],
        "B_x": _B_in["x"],
        "B_w_r": _B_in["w_r"],
        "B_w_gate": _B_in["w_gate"],
        "B_w_up": _B_in["w_up"],
        "B_w_down": _B_in["w_down"],
    }

def reference(A_x, A_wq, A_wk, A_wv, A_wo, B_x, B_w_r, B_w_gate, B_w_up, B_w_down):
    def _A_ref(x, wq, wk, wv, wo):
        B, S, D = x.shape
        H = 32
        Dh = D // H
        q = (lambda x, *d: x.permute(*d))((x @ wq).reshape(B, S, H, Dh), 0, 2, 1, 3)
        k = x @ wk
        v = x @ wv
        scores = torch.einsum("bhqd,bkd->bhqk", q, k) * (Dh ** -0.5)
        p = _softmax(scores, axis=-1)
        o = torch.einsum("bhqk,bkd->bhqd", p, v)
        return (lambda x, *d: x.permute(*d))(o, 0, 2, 1, 3).reshape(B, S, H * Dh) @ wo

    def _B_ref(x, w_r, w_gate, w_up, w_down):
        B, S, D = x.shape
        C = 1
        r = x @ w_r
        idx = torch.argsort(-r, axis=-1)[:, :C]
        idx_e = (lambda x, n, axis: torch.repeat_interleave(x, n, dim=axis))(idx.reshape(B, C, 1), D, axis=2)
        x_sel = (lambda x, i, axis: torch.take_along_dim(x, i, dim=axis))(x, idx_e, axis=1)
        g = _silu(x_sel @ w_gate)
        u = x_sel @ w_up
        y = (g * u) @ w_down
        r_sel = _sigmoid((lambda x, i, axis: torch.take_along_dim(x, i, dim=axis))(r, idx, axis=1))
        y = y * r_sel.reshape(B, C, 1)
        b_off = (torch.arange(B) * S).reshape(B, 1)
        flat_idx = (idx + b_off).reshape(B * C)
        zero = (x * 0.0).reshape(B * S, D)
        upd = _scatter_add(zero, flat_idx, y.reshape(B * C, D), axis=0)
        return x + upd.reshape(B, S, D)

    x = A_x
    x = x + _A_ref(_layernorm(x, axis=-1), A_wq, A_wk, A_wv, A_wo)
    x = x + _B_ref(_layernorm(x, axis=-1), B_w_r, B_w_gate, B_w_up, B_w_down)
    x = x + _A_ref(_layernorm(x, axis=-1), A_wq, A_wk, A_wv, A_wo)
    x = x + _B_ref(_layernorm(x, axis=-1), B_w_r, B_w_gate, B_w_up, B_w_down)
    return x
```

```python
import re

class Ins:
    __slots__ = ("text", "op", "args", "label", "vw", "vr", "sw", "sr", "cls", "passes", "mods", "srcC", "ab", "data")
    def __init__(self, text=None, label=None):
        self.text = text; self.label = label
        self.vw = set(); self.vr = set(); self.sw = set(); self.sr = set()
        self.cls = None; self.passes = 0; self.mods = ""; self.srcC = set(); self.ab = set(); self.data = set()

_reg = re.compile(r"^(-|\|)?(abs\()?([vsa])(\d+)\)?\|?$")
_rng = re.compile(r"^(-)?([vsa])\[(\d+):(\d+)\]$")

def regs_of(tok):
    tok = tok.strip()
    m = _rng.match(tok)
    if m:
        return m.group(2), set(range(int(m.group(3)), int(m.group(4)) + 1))
    m = _reg.match(tok)
    if m:
        return m.group(3), {int(m.group(4))}
    if tok == "vcc": return "s", {"vcc"}
    if tok in ("vcc_lo", "vcc_hi"): return "s", {"vcc"}
    if tok in ("exec", "exec_lo", "exec_hi"): return "s", {"exec"}
    if tok == "m0": return "s", {"m0"}
    return None, set()

TRANS = ("v_exp_f32", "v_log_f32", "v_rcp_f32", "v_rsq_f32", "v_sqrt_f32", "v_sin_f32", "v_cos_f32", "v_rcp_iflag_f32")

def split_args(s):
    out = []; depth = 0; cur = ""
    for ch in s:
        if ch in "[(": depth += 1
        if ch in "])": depth -= 1
        if ch == "," and depth == 0:
            out.append(cur.strip()); cur = ""
        else:
            cur += ch
    if cur.strip(): out.append(cur.strip())
    return out

def analyse(ins):
    t = ins.text.split(";")[0].strip()
    parts = t.split(None, 1)
    op = parts[0]; rest = parts[1] if len(parts) > 1 else ""
    args = split_args(rest)
    mods = ""
    if args:
        last = args[-1]
        m = re.match(r"^(\S+)\s+(.*)$", last)
        if m and not last.startswith("hwreg") and not last.startswith("gpr_idx") and not op.startswith("s_waitcnt"):
            args[-1] = m.group(1); mods = m.group(2)
    ins.op = op; ins.args = args; ins.mods = mods
    def rd(a):
        k, r = regs_of(a)
        if k == "v": ins.vr |= r
        elif k == "s": ins.sr |= r
        elif k == "a": raise Exception("agpr unused")
        return r if k == "v" else set()
    def wr(a):
        k, r = regs_of(a)
        if k == "v": ins.vw |= r
        elif k == "s": ins.sw |= r
    if op.startswith("v_mfma") or op.startswith("v_smfmac"):
        ins.cls = "mfma"
        ins.passes = 8 if "32x32" in op else 4
        wr(args[0])
        ins.ab = rd(args[1]) | rd(args[2])
        if op.startswith("v_smfmac"):
            ins.ab |= rd(args[3]); ins.srcC = rd(args[0])
        else:
            ins.srcC = rd(args[3])
    elif op.startswith("v_"):
        ins.cls = "valu"
        base = op.replace("_e32", "").replace("_e64", "").replace("_dpp", "").replace("_sdwa", "")
        if base.startswith("v_cmp"):
            wr(args[0]); [rd(a) for a in args[1:]]
            assert not base.startswith("v_cmpx")
        elif base in ("v_readfirstlane_b32", "v_readlane_b32"):
            wr(args[0]); [rd(a) for a in args[1:]]
        elif base.startswith("v_permlane") and "swap" in base:
            wr(args[0]); wr(args[1]); rd(args[0]); rd(args[1])
        elif base in ("v_add_co_u32", "v_sub_co_u32", "v_addc_co_u32", "v_subb_co_u32"):
            wr(args[0]); wr(args[1]); [rd(a) for a in args[2:]]
        elif base == "v_nop":
            pass
        else:
            wr(args[0]); [rd(a) for a in args[1:]]
            if base in ("v_fmac_f32", "v_dot2c_f32_bf16", "v_writelane_b32", "v_pk_fmac_f16") or "_dpp" in op or "UNUSED_PRESERVE" in mods:
                rd(args[0])
            if base == "v_cndmask_b32" and len(args) == 3: ins.sr.add("vcc")
    elif op.startswith("ds_"):
        ins.cls = "ds"
        if op.startswith("ds_read") or "_rtn" in op or op.startswith("ds_bpermute") or op.startswith("ds_swizzle") or op.startswith("ds_permute"):
            wr(args[0]); [rd(a) for a in args[1:]]
            if "d16" in op: rd(args[0])
        else:
            [rd(a) for a in args]
            if "addtid" in op: ins.sr.add("m0")
    elif op.startswith("global_") or op.startswith("buffer_"):
        ins.cls = "vmem"
        if op.startswith("buffer_inv") or op.startswith("buffer_wbl2"):
            pass
        elif "_load" in op:
            if "lds" in op:
                [rd(a) for a in args]; ins.sr.add("m0")
            else:
                wr(args[0]); [rd(a) for a in args[1:]]
                if "d16" in op: rd(args[0])
        elif "_store" in op:
            [rd(a) for a in args]
            if "x3" in op or "x4" in op:
                ins.data = regs_of(args[1] if op.startswith("global_") else args[0])[1]
        else:
            if "sc0" in mods:
                wr(args[0]); [rd(a) for a in args[1:]]
            else:
                [rd(a) for a in args]
    elif op.startswith("s_"):
        ins.cls = "salu"
        if op in ("s_nop", "s_waitcnt", "s_barrier", "s_endpgm", "s_sleep", "s_setprio", "s_branch", "s_set_gpr_idx_off", "s_wakeup") or op.startswith("s_cbranch"):
            pass
        elif op.startswith("s_cmp") or op.startswith("s_bitcmp"):
            [rd(a) for a in args]
        elif op == "s_set_gpr_idx_on":
            rd(args[0]); ins.sw.add("m0")
        else:
            wr(args[0]); [rd(a) for a in args[1:]]
            if "saveexec" in op: ins.sw.add("exec")
    else:
        raise Exception("unknown op " + op)

def is_trans(i): return i.cls == "valu" and i.op.replace("_e32", "").replace("_e64", "") in TRANS
def is_dot(i): return i.cls == "valu" and i.op.startswith("v_dot")
def is_dpp(i): return i.cls == "valu" and "_dpp" in i.op
def is_lane_rd(i): return i.op.startswith("v_readfirstlane") or i.op.startswith("v_readlane")
def is_perml(i): return i.op.startswith("v_permlane")

def need(p, c):
    n = 0
    if p.cls == "valu":
        if c.cls == "mfma" and p.vw & c.vr: n = max(n, 3 if is_dot(p) else 2)
        if c.cls == "valu":
            if p.vw & c.vr:
                if is_dpp(c) or is_perml(c): n = max(n, 2)
                if is_lane_rd(c): n = max(n, 1)
                if is_trans(p) and not is_trans(c): n = max(n, 1)
                if "_sdwa" in p.op or ("op_sel" in p.mods and not p.op.startswith("v_pk_")): n = max(n, 1)
            if is_dot(p) and (p.vw & (c.vr | c.vw)):
                chain = (c.op == p.op and len(c.args) == 4 and regs_of(c.args[3])[1] == p.vw and not (p.vw & (regs_of(c.args[1])[1] | regs_of(c.args[2])[1])))
                chain = chain or (c.op == p.op and "dot2c" in c.op and not (p.vw & (regs_of(c.args[1])[1] | regs_of(c.args[2])[1])))
                if not chain: n = max(n, 3)
            if p.sw & c.sr:
                n = max(n, 4 if (c.op.startswith("v_readlane") or c.op.startswith("v_writelane")) else 2)
        if c.cls in ("vmem", "ds"):
            if p.sw & c.sr: n = max(n, 5)
            if p.vw & c.vr:
                if is_trans(p): n = max(n, 1)
                if is_dot(p): n = max(n, 3)
    if p.cls == "mfma":
        big = {4: 8, 8: 12}[p.passes]
        if c.cls == "valu":
            if p.vw & (c.vr | c.vw): n = max(n, big)
            if p.srcC & c.vw: n = max(n, {4: 3, 8: 7}[p.passes])
        elif c.cls in ("vmem", "ds"):
            if p.vw & (c.vr | c.vw): n = max(n, big)
            if p.srcC & c.vw: n = max(n, {4: 3, 8: 7}[p.passes])
        elif c.cls == "mfma":
            if p.vw & c.ab: n = max(n, big)
            if p.vw & c.srcC:
                if not (p.vw == c.srcC and p.passes == c.passes): n = max(n, {4: 6, 8: 10}[p.passes])
            elif p.vw & c.vw and p.passes != c.passes:
                n = max(n, big)
    if p.cls == "vmem" and p.data:
        if c.cls == "valu" and p.data & c.vw: n = max(n, 2)
        elif p.data & c.vw: n = max(n, 1)
    if p.cls == "salu" and "m0" in p.sw and ("m0" in c.sr) and c.cls != "salu": n = max(n, 1)
    return n

def states(i):
    if i.op == "s_nop": return int(i.args[0], 0) + 1
    return 1

class Asm:
    def __init__(self):
        self.items = []
        self.nlab = 0
    def __call__(self, text):
        for line in text.split("\n"):
            line = line.strip()
            if not line or line.startswith(";"):
                continue
            if line.endswith(":") and " " not in line:
                self.items.append(Ins(label=line[:-1])); continue
            if line.startswith("."):
                self.items.append(line); continue
            i = Ins(text=line); analyse(i); self.items.append(i)
    def label(self, name): self.items.append(Ins(label=name))
    def newlabel(self, stem="L"):
        self.nlab += 1
        return f"{stem}_{self.nlab}"
    def hazard_pass(self, verbose=False):
        MAXW = 12
        changed = True; total = 0
        while changed:
            changed = False
            items = self.items
            labpos = {it.label: k for k, it in enumerate(items) if isinstance(it, Ins) and it.label}
            jumps = {}
            for k, it in enumerate(items):
                if isinstance(it, Ins) and it.text and (it.op == "s_branch" or it.op.startswith("s_cbranch")):
                    jumps.setdefault(labpos[it.args[0]], []).append(k)
            def preds(k):
                out = []
                j = k - 1
                while j >= 0:
                    it = items[j]
                    if isinstance(it, str): j -= 1; continue
                    if it.label:
                        out += jumps.get(j, [])
                        j -= 1; continue
                    if it.op in ("s_branch", "s_endpgm"): return out
                    out.append(j); return out
                return out
            out = []
            for k, it in enumerate(items):
                if isinstance(it, Ins) and it.text and it.cls in ("valu", "mfma", "vmem", "ds"):
                    deficit = 0
                    stack = [(p, 0) for p in preds(k)]
                    seen = {}
                    while stack:
                        p, dist = stack.pop()
                        if dist >= MAXW: continue
                        if seen.get(p, 99) <= dist: continue
                        seen[p] = dist
                        pi = items[p]
                        n = need(pi, it)
                        if n > dist: deficit = max(deficit, n - dist)
                        for q in preds(p): stack.append((q, dist + states(pi)))
                    if deficit:
                        nop = Ins(text=f"s_nop {deficit-1}"); analyse(nop)
                        out.append(nop); changed = True; total += 1
                        if verbose: print("nop", deficit, "before", it.text)
                        out += items[k:]
                        break
                out.append(it)
            self.items = out
        return total
    def text(self):
        s = []
        for it in self.items:
            if isinstance(it, str): s.append(it)
            elif it.label: s.append(it.label + ":")
            else: s.append("    " + it.text)
        return "\n".join(s) + "\n"
```

```python
import sys, os
from asmlib import Asm
NAME = "interleave_layers__grouped_kv_mqa__moe_arch_mod__prompt"
TSON = bool(int(os.environ.get("TS", "0")))
a = Asm()

WS_FLAG = 0x1000; WS_KEY = 0x10000; WS_HY = 0x20000; WS_KV = 0x40000; WS_CAND = 0x80000
WS_XN = 0x200000; WS_OP = 0x400000; WS_TS = 0x1800000; WS_PRIV = 0x2000000
L_SLOT = 65536; L_XN = 114688; L_O = 131072; L_Q = 147456; L_L = 156160; L_SC = 160768
L_ROW = L_SLOT; L_PS = L_SLOT + 16384; L_KVS = L_Q
L_XS = 139776; L_X2S = L_XS + 1024; L_KVP = L_XS + 2048; L_VS = L_XS + 2560; L_M = L_XS + 3072
QSTR = 272
SC_KVCNT = 0; SC_KEYS = 16; SC_OCNT = 64; SC_FACC = 128; SC_FCNT = 384; SC_DACC = 400; SC_DCNT = 464; SC_GK = 480
SC_XSF = 512; SC_QFIX = 516; SC_BAD = 520
POLLMAX = 40000
CODECH = int(os.environ.get('CODECH', '5'))
QSCALE = 0x3eb8aa3b

sX, sWQ, sWK, sWV, sWO, sWR, sWG, sWU, sWD, sOUT, sDBG, sWS = 8, 10, 12, 14, 16, 20, 22, 24, 26, 28, 30, 32
sE, sW, sL, sC, sTAG, sLO, sHI = 34, 35, 36, 37, 38, 39, 40
sCNT, sJ, sKEY, sTOK, sMASK, sH, sSEL, sOTAG, sF, sCAND, sMYK, sWT = 46, 47, 48, 49, 50, 51, 52, 53, 54, 55, 56, 57
sORD = 58
sKS = 0
sB = 18
sKSL = [0, 1, 2, 3, 4, 5, 6, 7]
def P(n): return f"s[{n}:{n+1}]"
def V(n, k=1): return f"v{n}" if k == 1 else f"v[{n}:{n+k-1}]"

def TS(i):
    if not TSON: return
    a(f"""s_memrealtime s[92:93]
    s_waitcnt lgkmcnt(0)
    s_cmp_eq_u32 s{sL}, 0
    s_cselect_b32 s{60+i}, s92, s{60+i}
    s_cselect_b32 s{76+i}, s{76+i}, s92""")
def TSA(slot):
    if not TSON: return
    a(f"""s_memrealtime s[92:93]
    s_waitcnt lgkmcnt(0)
    s_mov_b32 s{60+slot}, s92""")
def TSF(i):
    if not TSON: return
    a(f"""s_memrealtime s[92:93]
    s_waitcnt lgkmcnt(0)
    s_cmp_eq_u32 s{sF}, 0
    s_cselect_b32 s{60+i}, s92, s{60+i}
    s_cselect_b32 s{76+i}, s{76+i}, s92""")
def TC(i):
    if not TSON: return
    a(f"""s_memtime s[92:93]
    s_waitcnt lgkmcnt(0)
    s_mov_b32 s{94+i}, s92""")

def poll_guard(lbl_retry, cond_branch, lbl_stem, mult=1):
    done = a.newlabel(lbl_stem)
    a(f"""{cond_branch} {done}
    s_add_u32 s{sCNT}, s{sCNT}, 1
    s_cmp_lt_u32 s{sCNT}, {POLLMAX*mult}
    s_cbranch_scc1 {lbl_retry}
    {done}:""")
def lds_wait(vaddr, off, vt, target, sleep=1):
    lb = a.newlabel("W")
    a(f"s_mov_b32 s{sCNT}, 0\n{lb}:")
    if sleep: a(f"s_sleep {sleep}")
    a(f"""ds_read_b32 v{vt}, v{vaddr} offset:{off}
    s_waitcnt lgkmcnt(0)
    v_cmp_ne_u32 vcc, {target}, v{vt}""")
    poll_guard(lb, "s_cbranch_vccz", "Wd", 8)
def lds_inc(vaddr, off, vt):
    a(f"""v_mov_b32 v{vt}, 1
    s_mov_b64 exec, 1
    ds_add_u32 v{vaddr}, v{vt} offset:{off}
    s_mov_b64 exec, -1""")

def dpp_reduce(regs, op="v_add_f32"):
    for m in ("row_ror:8", "row_ror:4", "row_ror:2", "row_ror:1"):
        for r in regs: a(f"{op}_dpp v{r}, v{r}, v{r} {m} row_mask:0xf bank_mask:0xf")
    for r in regs: a(f"{op}_dpp v{r}, v{r}, v{r} row_bcast:15 row_mask:0xa bank_mask:0xf")
    for r in regs: a(f"{op}_dpp v{r}, v{r}, v{r} row_bcast:31 row_mask:0xc bank_mask:0xf")
def unpack(dst, src, n=4):
    for i in range(n):
        a(f"v_lshlrev_b32 v{dst+2*i}, 16, v{src+i}")
        a(f"v_and_b32 v{dst+2*i+1}, 0xffff0000, v{src+i}")
def pack(dst, src, n=4):
    for i in range(n): a(f"v_cvt_pk_bf16_f32 v{dst+i}, v{src+2*i}, v{src+2*i+1}")
def pkadd(d, x, y, n):
    for i in range(0, n, 2): a(f"v_pk_add_f32 {V(d+i,2)}, {V(x+i,2)}, {V(y+i,2)}")
def tr_pair(e, o, t):
    a(f"""v_perm_b32 v{t}, v{o}, v{e}, s{sLO}
    v_perm_b32 v{o}, v{o}, v{e}, s{sHI}
    v_mov_b32 v{e}, v{t}""")
def ln(X, D, T, out):
    a(f"v_readfirstlane_b32 s41, v{X}")
    for i in range(8): a(f"v_subrev_f32 v{D+i}, s41, v{X+i}")
    a(f"v_add_f32 v{T}, v{D}, v{D+1}")
    a(f"v_mul_f32 v{T+1}, v{D}, v{D}")
    a(f"v_add_f32 v{T+2}, v{D+2}, v{D+3}")
    a(f"v_mul_f32 v{T+3}, v{D+1}, v{D+1}")
    for i in (4, 6):
        a(f"v_add_f32 v{T}, v{T}, v{D+i}")
        a(f"v_add_f32 v{T+2}, v{T+2}, v{D+i+1}")
    for i in (2, 4, 6):
        a(f"v_fmac_f32 v{T+1}, v{D+i}, v{D+i}")
        a(f"v_fmac_f32 v{T+3}, v{D+i+1}, v{D+i+1}")
    a(f"v_add_f32 v{T}, v{T}, v{T+2}")
    a(f"v_add_f32 v{T+1}, v{T+1}, v{T+3}")
    dpp_reduce([T, T+1])
    a(f"""v_mul_f32 v{T}, 0x3b000000, v{T}
    v_mul_f32 v{T+1}, 0x3b000000, v{T+1}
    v_fma_f32 v{T+1}, -v{T}, v{T}, v{T+1}
    v_add_f32 v{T}, s41, v{T}
    v_max_f32 v{T+1}, 0, v{T+1}
    v_cvt_pk_bf16_f32 v{T}, v{T}, v{T+1}
    v_and_b32 v{T+1}, 0xffff0000, v{T}
    v_lshlrev_b32 v{T}, 16, v{T}
    v_add_f32 v{T+1}, 0x3727c5ac, v{T+1}
    v_readlane_b32 s42, v{T}, 63
    v_cvt_pk_bf16_f32 v{T+1}, v{T+1}, v{T+1}
    v_lshlrev_b32 v{T+1}, 16, v{T+1}
    v_sqrt_f32 v{T+1}, v{T+1}""")
    for i in range(4): a(f"v_subrev_f32 v{D+i}, s42, v{X+i}")
    a(f"""v_cvt_pk_bf16_f32 v{T+1}, v{T+1}, v{T+1}
    v_lshlrev_b32 v{T+1}, 16, v{T+1}
    v_rcp_f32 v{T+1}, v{T+1}""")
    for i in range(4, 8): a(f"v_subrev_f32 v{D+i}, s42, v{X+i}")
    a(f"v_readlane_b32 s43, v{T+1}, 63")
    pack(out, D)
    unpack(D, out)
    for i in range(8): a(f"v_mul_f32 v{D+i}, s43, v{D+i}")
    pack(out, D)

XR = 4
X_, D_, T_, XN, X1, WR = 8, 16, 24, 28, 32, 36
XO = 36
vQA, vOA, vIDX = 1, 2, 3
Q, ZZ, ACC, S0, S1, KK, VV = 8, 12, 16, 32, 48, 64, 128
WKV = 64
WQR, WO = 64, 128
FOR = 96
GU, WDn = 40, 56

def priv_addr(vr, off):
    a(f"""s_lshl_b32 s41, s{sB}, 16
    s_lshl_b32 s42, s{sH}, 13
    s_add_u32 s41, s41, s42
    s_add_u32 s41, s41, {WS_PRIV + off + 4096}
    v_lshl_add_u32 v{vr}, v0, 4, s41""")
def pos2tok(dst, src):
    a(f"""s_lshl_b32 s{dst}, s{sC}, 3
    s_add_u32 s{dst}, s{dst}, s{src}
    s_add_u32 s{dst}, s{dst}, 8
    s_and_b32 s{dst}, s{dst}, 31
    s_andn2_b32 s43, s{sTOK}, 31
    s_add_u32 s{dst}, s{dst}, s43""")

a(f"""
s_cmp_ge_u32 s2, 256
s_cbranch_scc1 L_exit
s_load_dwordx16 s[8:23], s[0:1], 0
s_load_dwordx8 s[24:31], s[0:1], 64
s_load_dwordx2 s[32:33], s[0:1], 96
v_lshrrev_b32 v1, 6, v0
v_and_b32 v0, 63, v0
s_mov_b32 s{sL}, 0
v_readfirstlane_b32 s{sW}, v1
s_and_b32 s{sC}, s2, 3
s_mov_b32 s{sLO}, 0x05040100
s_mov_b32 s{sHI}, 0x07060302
s_mov_b32 s{sMASK}, 0xffffff00
s_mov_b32 s{sF}, 0
s_mov_b32 s{sSEL}, -1
s_and_b32 s{sJ}, s2, 7
s_lshl_b32 s{sJ}, s{sJ}, 5
s_lshr_b32 s41, s2, 3
s_add_u32 s{sJ}, s{sJ}, s41
s_and_b32 s{sH}, s{sW}, 3
s_lshl_b32 s{sTOK}, s2, 3
s_add_u32 s{sTOK}, s{sTOK}, s{sW}
s_lshl_b32 s41, s{sTOK}, 10
v_lshl_add_u32 v1, v0, 4, s41
s_lshl_b32 s44, s{sH}, 2
s_lshl_b32 s41, s{sH}, 1
s_add_u32 s41, s41, 16
s_cmp_ge_u32 s{sW}, 4
s_cselect_b32 s44, s41, s44
s_cselect_b32 s45, 2, 4
s_add_u32 s45, s45, s44
""")
pos2tok(41, 44)
a(f"""s_lshl_b32 s41, s41, 10
v_lshl_add_u32 v2, v0, 4, s41""")
if TSON:
    for i in range(32): a(f"s_mov_b32 s{60+i}, 0")
TS(0)
a(f"""
s_waitcnt lgkmcnt(0)
s_mov_b32 s{sB}, s2
global_load_dwordx4 {V(XR,4)}, v1, {P(sX)}
s_load_dword s{sE}, {P(sWS)}, 0
s_cmp_ge_u32 s{sW}, 4
s_cbranch_scc1 S_noA
v_and_b32 v8, 7, v0
v_lshrrev_b32 v9, 4, v0
v_lshlrev_b32 v8, 2, v8
v_lshl_add_u32 v8, v9, 8, v8
s_lshl_b32 s41, s{sH}, 12
v_add_u32 v8, s41, v8
v_and_b32 v9, 8, v0
v_cmp_eq_u32 vcc, 0, v9
v_mov_b32 v10, s{sWV}
v_mov_b32 v11, s{sWK}
v_cndmask_b32 v10, v10, v11, vcc
v_mov_b32 v9, s{sWV+1}
v_mov_b32 v11, s{sWK+1}
v_cndmask_b32 v11, v9, v11, vcc
v_add_co_u32 v10, vcc, v10, v8
v_addc_co_u32 v11, vcc, 0, v11, vcc""")
for s in range(4):
    for j in range(8):
        a(f"global_load_dword v{WKV + 8*s + 4*(j&1) + (j>>1)}, v[10:11], off offset:{1024*s + 32*j}")
for g in range(4): a(f"global_load_dwordx4 {V(FOR+4*g,4)}, v2, {P(sX)} offset:{1024*g}")
a(f"""v_and_b32 v8, 27, v0
v_cmp_eq_u32 vcc, 16, v8
v_mov_b32 v9, 0x3f803f80
v_cndmask_b32 v8, 0, v9, vcc
v_cndmask_b32 v9, 0, v9, vcc""")
for i in range(0, 128, 2): a(f"v_mov_b64 {V(VV+i,2)}, v[8:9]")
a(f"""s_waitcnt vmcnt(36)
s_branch R_P1
S_noA:
s_setprio 2
s_lshr_b32 s43, s2, 3
s_cmp_lg_u32 s{sW}, 7
s_cbranch_scc1 S_no7
v_mov_b32 v8, -1
v_mov_b32 v9, -1
v_mov_b32 v10, -1
v_mov_b32 v11, -1
v_lshrrev_b32 v1, 5, v0
v_and_b32 v3, 31, v0
v_lshlrev_b32 v3, 4, v3
v_lshl_add_u32 v1, v1, 17, v3
s_lshl_b32 s41, s2, 9
s_add_u32 s41, s41, {WS_KV}
v_add_u32 v1, s41, v1
global_store_dwordx4 v1, v[8:11], {P(sWS)} sc1
s_lshl_b32 s41, s2, 7
s_add_u32 s41, s41, {WS_KEY}
v_lshl_add_u32 v1, v0, 4, s41
s_lshl_b32 s41, s{sJ}, 7
s_add_u32 s41, s41, {WS_HY}
v_lshl_add_u32 v3, v0, 4, s41
s_mov_b64 exec, 0xff
global_store_dwordx4 v1, v[8:11], {P(sWS)} sc1
global_store_dwordx4 v3, v[8:11], {P(sWS)} sc1
s_mov_b64 exec, -1
global_load_dwordx4 {V(FOR,4)}, v2, {P(sX)}
global_load_dwordx4 {V(FOR+4,4)}, v2, {P(sX)} offset:1024
v_lshlrev_b32 v1, 4, v0
v_add_u32 v1, {L_L}, v1
ds_write_b128 v1, v[8:11]
ds_write_b128 v1, v[8:11] offset:1024
ds_write_b128 v1, v[8:11] offset:2048
ds_write_b128 v1, v[8:11] offset:3072
v_mov_b32 v12, 0
v_mov_b32 v13, 0
v_mov_b32 v14, 0
v_mov_b32 v15, 0
ds_write_b128 v1, v[12:15] offset:{L_SC - L_L}
s_waitcnt lgkmcnt(0)
s_mul_i32 s{sTAG}, s{sE}, 0x9e3779b1
s_add_u32 s{sTAG}, s{sTAG}, 0x7f4a7c15
s_lshl_b32 s41, s2, 7
s_add_u32 s41, s41, {WS_FLAG}
v_mov_b32 v1, s41
v_mov_b32 v2, s{sTAG}
s_waitcnt vmcnt(0)
s_mov_b64 exec, 1
global_store_dword v1, v2, {P(sWS)} sc1
s_mov_b64 exec, -1
s_branch R_P1
S_no7:
s_cmp_lg_u32 s{sW}, 4
s_cbranch_scc1 S_no4
v_lshrrev_b32 v1, 2, v0
v_and_b32 v3, 3, v0
v_lshlrev_b32 v3, 6, v3
v_lshl_add_u32 v1, v1, 10, v3
s_lshl_b32 s41, s43, 14
s_lshl_b32 s42, s{sC}, 8
s_add_u32 s41, s41, s42
v_add_u32 v1, s41, v1
global_load_dword v40, v1, {P(sWQ)}
s_lshl_b32 s41, s43, 12
s_lshl_b32 s42, s{sC}, 17
s_add_u32 s41, s41, s42
v_lshl_add_u32 v1, v0, 6, s41
global_load_dword v41, v1, {P(sWO)}
s_branch S_pf
S_no4:
s_cmp_lg_u32 s{sW}, 5
s_cbranch_scc1 S_no5
s_and_b32 s41, s43, 3
s_lshl_b32 s41, s41, 12
v_lshl_add_u32 v1, v0, 6, s41
global_load_dword v40, v1, {P(sWK)}
global_load_dword v41, v1, {P(sWV)}
s_branch S_pf
S_no5:
s_getpc_b64 s[42:43]
s_lshr_b32 s41, s2, 3
s_and_b32 s41, s41, 7
s_min_u32 s41, s41, {CODECH-1}
s_lshl_b32 s41, s41, 12
v_lshl_add_u32 v1, v0, 6, s41
global_load_dword v40, v1, s[42:43]
global_load_dword v41, v1, s[42:43]
S_pf:
global_load_dwordx4 {V(FOR,4)}, v2, {P(sX)}
global_load_dwordx4 {V(FOR+4,4)}, v2, {P(sX)} offset:1024
s_waitcnt vmcnt(4)
""")
a("R_P1:")
TS(1)
unpack(X_, XR)
ln(X_, D_, T_, XO)
a(f"""s_add_u32 s41, s{sW}, 8
v_xor_b32 v1, s41, v0
s_add_u32 s41, s{sW}, 24
s_lshl_b32 s41, s41, 10
s_add_u32 s41, s41, {L_XN}
v_lshl_add_u32 v1, v1, 4, s41
ds_write_b128 v1, {V(XO,4)}
s_cmp_eq_u32 s{sL}, 0
s_cbranch_scc1 R_nopub
s_lshl_b32 s41, s{sTOK}, 10
s_add_u32 s41, s41, {WS_XN}
v_lshl_add_u32 v1, v0, 4, s41
s_waitcnt vmcnt(0)
global_store_dwordx4 v1, {V(XO,4)}, {P(sWS)} sc1
R_nopub:
v_mov_b32 v3, {L_SC}
s_cmp_ge_u32 s{sW}, 4
s_cbranch_scc1 H_B1
s_cmp_lg_u32 s{sL}, 0
s_cbranch_scc1 A_kvp
s_waitcnt vmcnt(0)""")
for s in range(4):
    for i in range(4): tr_pair(WKV+8*s+i, WKV+8*s+4+i, 8)
a(f"""A_kvp:
v_and_b32 v8, 7, v0
v_add_u32 v8, 8, v8
v_lshrrev_b32 v9, 4, v0
v_xor_b32 v9, v9, v8
v_lshlrev_b32 v8, 10, v8
s_lshl_b32 s41, s{sH}, 8
s_add_u32 s41, s41, {L_XN + 16*1024}
v_add_u32 v8, s41, v8
v_xor_b32 v10, 4, v9
v_xor_b32 v11, 8, v9
v_xor_b32 v12, 12, v9
v_lshl_add_u32 v9, v9, 4, v8
v_lshl_add_u32 v10, v10, 4, v8
v_lshl_add_u32 v11, v11, 4, v8
v_lshl_add_u32 v12, v12, 4, v8
s_waitcnt lgkmcnt(0)
s_barrier
ds_read_b128 v[40:43], v9
ds_read_b128 v[44:47], v10
ds_read_b128 v[48:51], v11
ds_read_b128 v[52:55], v12
s_lshl_b32 s41, s{sH}, 11
s_add_u32 s41, s41, {L_KVS}
v_lshl_add_u32 v8, v0, 4, s41
s_lshl_b32 s42, s{sL}, 2
v_add_u32 v9, s42, v3
v_mov_b32 v10, 1""")
for s in range(4):
    a(f"s_waitcnt lgkmcnt({3-s})")
    a(f"v_mfma_f32_16x16x32_bf16 v[56:59], {V(WKV+8*s,4)}, {V(40+4*s,4)}, {'0' if s==0 else 'v[56:59]'}")
    a(f"v_mfma_f32_16x16x32_bf16 v[60:63], {V(WKV+8*s+4,4)}, {V(40+4*s,4)}, {'0' if s==0 else 'v[60:63]'}")
a(f"""v_and_b32 v12, 1, v0
v_lshrrev_b32 v13, 3, v0
v_lshlrev_b32 v13, 4, v13
v_lshl_add_u32 v12, v12, 10, v13
v_bfe_u32 v13, v0, 1, 2
v_lshl_add_u32 v12, v13, 2, v12
v_add_u32 v12, {L_KVS}, v12
v_bfe_u32 v13, v0, 2, 1
ds_write_b128 v8, v[56:59]
ds_write_b128 v8, v[60:63] offset:1024
s_mov_b64 exec, 1
ds_add_rtn_u32 v11, v9, v10 offset:{SC_KVCNT}
s_mov_b64 exec, -1
v_lshrrev_b32 v14, 5, v0
v_lshlrev_b32 v14, 8, v14
v_lshl_add_u32 v13, v13, 10, v14
v_and_b32 v14, 3, v0
v_lshl_add_u32 v13, v14, 5, v13
v_bfe_u32 v14, v0, 3, 2
v_lshl_add_u32 v13, v14, 2, v13
v_add_u32 v13, {L_KVS + 512}, v13
v_add_u32 v14, 16, v13
s_waitcnt lgkmcnt(0)
v_readfirstlane_b32 s42, v11
s_cmp_lg_u32 s42, 3
s_cbranch_scc1 A_nokv""")
for w in range(4): a(f"ds_read2st64_b32 {V(40+2*w,2)}, v12 offset0:{8*w} offset1:{8*w+1}")
a(f"""ds_read2st64_b32 v[48:49], v13 offset0:0 offset1:8
ds_read2st64_b32 v[50:51], v13 offset0:16 offset1:24
ds_read2st64_b32 v[52:53], v14 offset0:0 offset1:8
ds_read2st64_b32 v[54:55], v14 offset0:16 offset1:24
s_lshl_b32 s41, s{sL}, 17
s_lshl_b32 s42, s{sB}, 9
s_add_u32 s41, s41, s42
s_add_u32 s41, s41, {WS_KV}
v_lshl_add_u32 v8, v0, 2, s41
s_waitcnt lgkmcnt(4)
v_pk_add_f32 v[40:41], v[40:41], v[42:43]
v_pk_add_f32 v[44:45], v[44:45], v[46:47]
v_pk_add_f32 v[40:41], v[40:41], v[44:45]
v_cvt_pk_bf16_f32 v40, v40, v41
global_store_dword v8, v40, {P(sWS)} sc1
s_waitcnt lgkmcnt(0)
v_pk_add_f32 v[48:49], v[48:49], v[50:51]
v_pk_add_f32 v[52:53], v[52:53], v[54:55]
v_add_f32 v48, v48, v49
v_add_f32 v52, v52, v53
v_cvt_pk_bf16_f32 v48, v48, v52
global_store_dword v8, v48, {P(sWS)} offset:256 sc1
A_nokv:""")
TS(2)
a(f"""s_cmp_lg_u32 s{sL}, 0
s_cbranch_scc1 R_cand
s_branch S_fl
H_B1:
s_waitcnt lgkmcnt(0)
s_barrier
s_cmp_lg_u32 s{sL}, 0
s_cbranch_scc1 R_cand
s_waitcnt vmcnt(0)
S_fl:""")
unpack(X_, FOR)
ln(X_, D_, T_, XO)
a(f"""s_and_b32 s42, s44, 15
v_xor_b32 v1, s42, v0
s_lshl_b32 s41, s44, 10
s_add_u32 s41, s41, {L_XN}
v_lshl_add_u32 v1, v1, 4, s41
ds_write_b128 v1, {V(XO,4)}""")
for i in range(0, 12, 2): a(f"v_mov_b64 {V(FOR+i,2)}, {V(FOR+4+i,2)}")
a(f"""s_add_u32 s44, s44, 1
s_cmp_lt_u32 s44, s45
s_cbranch_scc1 S_fl""")
TSA(27)
a(f"""s_cmp_ge_u32 s{sW}, 4
s_cbranch_scc1 H_stage
s_mul_i32 s{sTAG}, s{sE}, 0x9e3779b1
s_add_u32 s{sTAG}, s{sTAG}, 0x7f4a7c15
s_lshl_b32 s41, s{sH}, 13
s_add_u32 s41, s41, {WS_FLAG}
v_lshl_add_u32 v1, v0, 7, s41
s_mov_b32 s{sCNT}, 0
A_flg:
global_load_dword v8, v1, {P(sWS)} sc1
s_waitcnt vmcnt(0)
v_cmp_ne_u32 vcc, s{sTAG}, v8""")
poll_guard("A_flg", "s_cbranch_vccz", "A_flgd")
priv_addr(1, 0)
for i in range(8): a(f"global_store_dwordx4 v1, {V(WKV+4*i,4)}, {P(sWS)} offset:{1024*i-4096}")
a("s_branch A_P2")
a(f"""R_cand:
ds_read_b128 v[8:11], v3 offset:{SC_KEYS}
ds_read_b128 v[12:15], v3 offset:{SC_KEYS+16}
s_lshl_b32 s41, s{sF}, 19
s_lshl_b32 s42, s{sB}, 11
s_add_u32 s41, s41, s42
s_add_u32 s41, s41, {WS_CAND}
v_lshl_add_u32 v2, v0, 4, s41
s_lshl_b32 s41, s{sB}, 7
s_lshl_b32 s42, s{sF}, 2
s_add_u32 s41, s41, s42
s_add_u32 s41, s41, {WS_KEY}
v_mov_b32 v16, s41
s_waitcnt lgkmcnt(0)
v_max3_u32 v8, v8, v9, v10
v_max3_u32 v12, v12, v13, v14
v_max3_u32 v8, v8, v11, v15
v_max_u32 v8, v8, v12
v_readfirstlane_b32 s41, v8
s_mov_b32 s{sCAND}, 0
s_cmp_lg_u32 s41, s{sMYK}
s_cbranch_scc1 R_nocand
s_mov_b32 s{sCAND}, 1
s_mov_b64 exec, 1
global_store_dword v16, v8, {P(sWS)} sc1
s_mov_b64 exec, -1
global_store_dwordx4 v2, {V(XN,4)}, {P(sWS)} sc1
global_store_dwordx4 v2, {V(X1,4)}, {P(sWS)} offset:1024 sc1
R_nocand:""")
TSF(8)
a(f"""s_cmp_lg_u32 s{sF}, 0
s_cbranch_scc1 R_tail
s_cmp_ge_u32 s{sW}, 4
s_cbranch_scc1 H_P2""")
for g in range(3):
    a(f"s_add_u32 s44, s{sH}, {8*g}")
    pos2tok(41, 44)
    a(f"""s_lshl_b32 s41, s41, 10
    s_add_u32 s41, s41, {WS_XN + 2048}
    v_lshl_add_u32 v{8+g}, v0, 4, s41""")
a(f"""v_xor_b32 v12, s{sH}, v0
v_xor_b32 v13, 4, v12
v_xor_b32 v14, 8, v12
v_xor_b32 v15, 12, v12
s_lshl_b32 s41, s{sH}, 10
s_add_u32 s41, s41, {L_XN}
v_lshl_add_u32 v12, v12, 4, s41
v_lshl_add_u32 v13, v13, 4, s41
v_lshl_add_u32 v14, v14, 4, s41
v_lshl_add_u32 v15, v15, 4, s41
s_mov_b32 s{sCNT}, 0
A_xg:""")
for i in range(6): a(f"global_load_dwordx4 {V(24+4*i,4)}, v{8+(i>>1)}, {P(sWS)} offset:{4096*(i&1)-2048} sc1")
a(f"""s_waitcnt vmcnt(0)
v_max3_u32 v16, v24, v28, v32
v_max3_u32 v17, v36, v40, v44
v_max_u32 v16, v16, v17
v_cmp_eq_u32 vcc, -1, v16""")
poll_guard("A_xg", "s_cbranch_vccz", "A_xgd")
for i in range(6): a(f"ds_write_b128 v{12+(i&3)}, {V(24+4*i,4)} offset:{4096*i}")
def key_poll():
    l1 = a.newlabel("K_p")
    a(f"""s_lshl_b32 s42, s{sF}, 2
    s_lshl_b32 s41, s{sH}, 13
    s_add_u32 s42, s42, s41
    s_add_u32 s42, s42, {WS_KEY}
    v_lshl_add_u32 v9, v0, 7, s42
    s_mov_b32 s{sCNT}, 0
    {l1}:
    global_load_dword v8, v9, {P(sWS)} sc1
    s_waitcnt vmcnt(0)
    v_cmp_eq_u32 vcc, -1, v8""")
    poll_guard(l1, "s_cbranch_vccz", "K_pd")
    dpp_reduce([8], "v_max_u32")
    a(f"""s_lshl_b32 s41, s{sF}, 4
    s_lshl_b32 s42, s{sH}, 2
    s_add_u32 s41, s41, s42
    v_add_u32 v9, s41, v3
    v_add_u32 v8, 1, v8
    s_mov_b32 exec_lo, 0
    s_mov_b32 exec_hi, 0x80000000
    ds_write_b32 v9, v8 offset:{SC_GK}
    s_mov_b64 exec, -1""")
def key_get(sleep):
    l2 = a.newlabel("K_g")
    a(f"""s_lshl_b32 s41, s{sF}, 4
    v_add_u32 v10, s41, v3
    s_mov_b32 s{sCNT}, 0
    {l2}:""")
    if sleep: a(f"s_sleep {sleep}")
    a(f"""ds_read_b128 v[12:15], v10 offset:{SC_GK}
    s_waitcnt lgkmcnt(0)
    v_min3_u32 v8, v12, v13, v14
    v_min_u32 v8, v8, v15
    v_cmp_eq_u32 vcc, 0, v8""")
    poll_guard(l2, "s_cbranch_vccz", "K_gd", 8)
    a(f"""v_max3_u32 v8, v12, v13, v14
    v_max_u32 v8, v8, v15
    v_readfirstlane_b32 s{sKEY}, v8
    s_sub_u32 s{sKEY}, s{sKEY}, 1
    s_and_b32 s41, s{sKEY}, 0x7ff
    s_sub_u32 s{sSEL}, 2047, s41""")
a(f"""A_P2:
s_lshl_b32 s41, s{sL}, 17
s_lshl_b32 s42, s{sH}, 15
s_add_u32 s41, s41, s42
s_add_u32 s41, s41, {WS_KV + 4096}
v_bfe_u32 v48, v0, 3, 2
v_and_b32 v49, 7, v0
v_lshlrev_b32 v49, 5, v49
v_lshl_add_u32 v48, v48, 9, v49
v_lshrrev_b32 v52, 5, v0
v_lshl_add_u32 v48, v52, 4, v48
v_add_u32 v48, s41, v48
v_add_u32 v49, 0x2000, v48
v_add_u32 v50, 0x4000, v48
v_add_u32 v51, 0x6000, v48
v_and_b32 v53, 15, v0
v_lshlrev_b32 v53, 4, v53
v_lshl_add_u32 v52, v52, 9, v53
s_add_u32 s41, s41, 256
v_add_u32 v52, s41, v52
v_add_u32 v53, 0x2000, v52
v_add_u32 v54, 0x4000, v52
v_add_u32 v55, 0x6000, v52
s_waitcnt lgkmcnt(0)
s_barrier""")
TS(3)
a(f"""s_mov_b32 s{sORD}, 0x65432108
s_mov_b32 s{sORD+1}, 0x7
s_mov_b32 s{sWT}, 15
s_cmp_eq_u32 s{sL}, 0
s_cbranch_scc1 A_nk""")
key_poll()
a("A_nk:")
def kv_loads():
    for kt in range(16):
        a(f"global_load_dwordx4 {V(KK+4*kt,4)}, v{48+(kt>>2)}, {P(sWS)} offset:{2048*(kt&3)-4096} sc1")
    a("s_mov_b32 exec_lo, 0xffff\ns_mov_b32 exec_hi, 0xffff")
    for i in range(32):
        a(f"global_load_dwordx4 {V(VV+4*i,4)}, v{52+(i>>3)}, {P(sWS)} offset:{1024*(i&7)-4096} sc1")
    a("s_mov_b64 exec, -1")
a(f"""s_mov_b32 s{sCNT}, 0
A_kvl:""")
kv_loads()
a("s_waitcnt vmcnt(0)")
fr = [KK+4*i for i in range(16)] + [VV+4*i for i in range(32)]
a(f"v_max3_u32 v16, v{fr[0]}, v{fr[1]}, v{fr[2]}")
for i in range(3, 47, 2): a(f"v_max3_u32 v16, v16, v{fr[i]}, v{fr[i+1]}")
a(f"""v_max_u32 v16, v16, v{fr[47]}
v_cmp_eq_u32 vcc, -1, v16""")
poll_guard("A_kvl", "s_cbranch_vccz", "A_kvd")
TS(4)
a(f"""s_cmp_eq_u32 s{sL}, 0
s_cbranch_scc1 A_go""")
key_get(0)
a(f"""s_lshr_b32 s41, s{sSEL}, 9
s_cmp_lg_u32 s41, s{sH}
s_cbranch_scc1 A_nomask
s_bfe_u32 s41, s{sSEL}, 0x50004
s_lshl_b32 s41, s41, 2
s_bfe_u32 s42, s{sSEL}, 0x20001
s_add_u32 s41, s41, s42
s_bitcmp1_b32 s{sSEL}, 0
s_mov_b32 s42, 0xffff0000
s_cselect_b32 s42, 0xffff, s42
v_mov_b32 v8, s42
s_bitcmp1_b32 s{sSEL}, 3
s_cselect_b32 exec_lo, 0, -1
s_cselect_b32 exec_hi, -1, 0
s_set_gpr_idx_on s41, gpr_idx(SRC0,DST)
s_nop 1
v_and_b32 v{VV}, v{VV}, v8
s_nop 1
s_set_gpr_idx_off
s_mov_b64 exec, -1
A_nomask:
s_xor_b32 s41, s{sSEL}, s{sTOK}
s_lshr_b32 s41, s41, 5
s_cbranch_scc1 A_go
s_lshl_b32 s41, s{sC}, 3
s_sub_u32 s41, s{sSEL}, s41
s_sub_u32 s41, s41, 8
s_bfe_u32 s{sWT}, s41, 0x30002
s_cmp_lt_u32 s{sWT}, 6
s_cselect_b32 s41, 5, 7
s_xor_b32 s42, s41, s{sWT}
s_mov_b32 s43, 0
s_lshl_b32 s41, s41, 2
s_add_u32 s41, s41, 4
s_lshl_b64 s[44:45], s[42:43], s41
s_xor_b64 {P(sORD)}, {P(sORD)}, s[44:45]
s_lshl_b32 s41, s{sWT}, 2
s_add_u32 s41, s41, 4
s_lshl_b64 s[44:45], s[42:43], s41
s_xor_b64 {P(sORD)}, {P(sORD)}, s[44:45]
A_go:
v_bfe_u32 v1, v0, 3, 2
v_mul_u32_u24 v1, {QSTR}, v1
v_and_b32 v2, 7, v0
v_lshl_add_u32 v1, v2, 5, v1
v_lshrrev_b32 v2, 5, v0
v_lshl_add_u32 v1, v2, 4, v1
v_add_u32 v{vQA}, {L_Q}, v1
s_lshl_b32 s41, s{sH}, 11
s_add_u32 s41, s41, {L_SLOT}
v_lshl_add_u32 v{vOA}, v0, 4, s41
v_mov_b32 v{vIDX}, 0xdddddddd
v_mov_b64 {V(ZZ,2)}, 0
v_and_b32 v0, 31, v0
s_lshl_b32 s41, s{sH}, 7
s_add_u32 s41, s41, {L_L}
v_lshl_add_u32 v0, v0, 2, s41
s_bfe_u32 s41, s{sORD}, 0x40004
s_mul_i32 s41, s41, {4*QSTR}
v_add_u32 v{Q}, s41, v{vQA}
s_barrier
ds_read_b128 {V(Q,4)}, v{Q}""")
TS(5)
TC(0)
def smf(vfrag, pb): a(f"v_smfmac_f32_32x32x32_bf16 {V(ACC,16)}, {V(VV+4*vfrag,4)}, {V(pb,8)}, v{vIDX}")
def ex(base, lo, hi):
    for i in range(lo, hi): a(f"v_exp_f32 v{base+i}, v{base+i}")
def flush_addr():
    a(f"""s_and_b32 s41, s{sORD}, 15
    v_lshl_add_u32 v14, s41, 13, v{vOA}
    v_lshl_add_u32 v15, s41, 9, v0""")
def flush():
    a(f"""ds_write_b128 v14, {V(ACC,4)}
    ds_write_b128 v14, {V(ACC+4,4)} offset:1024
    ds_write_b32 v15, v{ACC+8}""")
a(f"""s_waitcnt lgkmcnt(0)
v_mfma_f32_32x32x16_bf16 {V(S0,16)}, {V(KK,4)}, {V(Q,4)}, 0
s_nop 11
.p2align 4
A_pass:
""")
NT = 16
for kt in range(NT):
    cur, oth = (S0, S1) if kt % 2 == 0 else (S1, S0)
    ex(cur, 0, 2)
    smf((2*kt - 1) % (2*NT), oth + 8)
    ex(cur, 2, 5)
    if kt == NT-1: a("s_waitcnt lgkmcnt(0)")
    a(f"v_mfma_f32_32x32x16_bf16 {V(oth,16)}, {V(KK+4*((kt+1)%NT),4)}, {V(Q,4)}, 0")
    if kt == NT-2:
        a(f"""s_bfe_u32 s41, s{sORD}, 0x40008
        s_cmp_eq_u32 s41, s{sWT}
        s_cbranch_scc1 A_qwait
        A_qback:
        s_mul_i32 s41, s41, {4*QSTR}
        v_add_u32 v{Q}, s41, v{vQA}
        ds_read_b128 {V(Q,4)}, v{Q}""")
    if kt == 0:
        flush_addr()
        ex(cur, 5, 10)
        flush()
        a(f"v_mfma_f32_32x32x8_f16 {V(ACC,16)}, {V(ZZ,2)}, {V(ZZ,2)}, 0")
        ex(cur, 10, 13)
        smf(0, cur)
        ex(cur, 13, 16)
    else:
        ex(cur, 5, 10)
        smf(2*kt, cur)
        ex(cur, 10, 16)
a(f"""s_lshr_b64 {P(sORD)}, {P(sORD)}, 4
s_cmp_gt_u32 s{sORD}, 15
s_cbranch_scc1 A_pass""")
smf(2*NT-1, S1 + 8)
flush_addr()
flush()
TC(1)
TS(9)
a(f"""v_mbcnt_lo_u32_b32 v0, -1, 0
v_mbcnt_hi_u32_b32 v0, -1, v0
s_waitcnt lgkmcnt(0)
s_barrier""")
TS(6)
a(f"""v_lshlrev_b32 v1, 4, v0
global_load_dwordx4 {V(WR,4)}, v1, {P(sWR)}
s_barrier""")
priv_addr(1, 0)
for i in range(8): a(f"global_load_dwordx4 {V(WKV+4*i,4)}, v1, {P(sWS)} offset:{1024*i-4096}")
a(f"""R_P4:
v_lshrrev_b32 v1, 4, v0
v_and_b32 v2, 15, v0
v_lshlrev_b32 v2, 4, v2
v_lshl_add_u32 v1, v1, 9, v2
s_lshl_b32 s41, s{sW}, 11
s_add_u32 s41, s41, {L_ROW}
v_add_u32 v1, s41, v1
s_mov_b32 s{sF}, s{sL}
s_cmp_lg_u32 s{sSEL}, s{sTOK}
s_cbranch_scc1 R_nx
v_lshlrev_b32 v2, 4, v0
v_add_u32 v2, {L_X2S}, v2
ds_read_b128 {V(XR,4)}, v2
s_waitcnt lgkmcnt(0)
R_nx:""")
unpack(24, XR)
a(f"""s_barrier
ds_read_b128 v[8:11], v1
ds_read_b128 v[12:15], v1 offset:256
ds_read_b128 v[16:19], v1 offset:16384
ds_read_b128 v[20:23], v1 offset:16640
s_waitcnt lgkmcnt(0)""")
TS(7)
pkadd(8, 8, 16, 8)
pack(16, 8); unpack(8, 16)
pkadd(8, 8, 24, 8)
pack(X1, 8)
unpack(X_, X1)
ln(X_, D_, T_, XN)
a(f"""s_waitcnt vmcnt(6)
v_dot2_f32_bf16 v1, v{XN}, v{WR}, 0
v_dot2_f32_bf16 v1, v{XN+1}, v{WR+1}, v1
v_dot2_f32_bf16 v1, v{XN+2}, v{WR+2}, v1
v_dot2_f32_bf16 v1, v{XN+3}, v{WR+3}, v1""")
unpack(D_, XN)
dpp_reduce([1])
pkadd(D_, D_, X_, 8)
pack(XR, D_)
a(f"""v_cvt_pk_bf16_f32 v1, v1, v1
v_lshlrev_b32 v1, 16, v1
v_ashrrev_i32 v2, 31, v1
v_or_b32 v2, 0x80000000, v2
v_xor_b32 v1, v1, v2
v_and_b32 v1, 0xffff0000, v1
s_sub_u32 s41, 2047, s{sTOK}
v_or_b32 v1, s41, v1
s_lshl_b32 s41, s{sW}, 2
s_add_u32 s41, s41, {L_SC + SC_KEYS}
v_readlane_b32 s{sMYK}, v1, 63
v_mov_b32 v2, s41
v_mov_b32 v3, {L_SC}
s_mov_b32 exec_lo, 0
s_mov_b32 exec_hi, 0x80000000
ds_write_b32 v2, v1
s_mov_b64 exec, -1
s_cmp_eq_u32 s{sL}, 0
s_mov_b32 s{sL}, 1
s_cbranch_scc1 R_P1
s_waitcnt lgkmcnt(0)
s_barrier
s_branch R_cand
R_tail:
s_lshl_b32 s41, s{sTOK}, 10
v_lshl_add_u32 v1, v0, 4, s41
s_cmp_lg_u32 s{sCAND}, 0
s_cbranch_scc1 R_noout
global_store_dwordx4 v1, {V(XR,4)}, {P(sOUT)}
R_noout:
s_cmp_ge_u32 s{sW}, 4
s_cbranch_scc1 H_FFN""")
key_poll()
a(f"""s_cmp_eq_u32 s{sCAND}, 0
s_cbranch_scc1 L_end""")
key_get(1)
a(f"""R_last:
s_cmp_eq_u32 s{sCAND}, 0
s_cbranch_scc1 L_end
s_cmp_eq_u32 s{sSEL}, s{sTOK}
s_cbranch_scc1 L_end
s_lshl_b32 s41, s{sTOK}, 10
v_lshl_add_u32 v1, v0, 4, s41
global_store_dwordx4 v1, {V(XR,4)}, {P(sOUT)}
s_branch L_end
A_qwait:
v_mov_b32 v14, {L_SC}""")
lds_wait(14, SC_QFIX, 15, 4, 1)
a(f"""s_mov_b32 s{sWT}, 15
s_branch A_qback""")

a(f"""H_stage:
v_and_b32 v1, 15, v0
v_lshrrev_b32 v2, 4, v0
v_lshlrev_b32 v1, 4, v1
v_lshl_add_u32 v1, v2, 13, v1
s_lshl_b32 s41, s{sH}, 17
s_lshl_b32 s42, s{sC}, 8
s_add_u32 s41, s41, s42
s_add_u32 s41, s41, 4096
v_add_u32 v2, s41, v1""")
for s in range(4):
    if s == 2: a(f"s_cmp_eq_u32 s{sH}, 3\ns_cbranch_scc1 H_st1")
    for j in range(8):
        a(f"global_load_dwordx4 {V(128+32*s+4*j,4)}, v2, {P(sWQ)} offset:{1024*j-4096}")
    if s < 3: a("v_add_u32 v2, 0x8000, v2")
a(f"""H_st1:
s_lshl_b32 s41, s{sH}, 2
s_add_u32 s41, s41, s42
s_add_u32 s41, s41, {448*1024+4096}
v_add_u32 v2, s41, v1
v_add_u32 v3, 0x8000, v2""")
for s in range(2):
    for j in range(8):
        a(f"global_load_dword v{WQR+48+8*s+4*(j&1)+(j>>1)}, v{2+s}, {P(sWQ)} offset:{1024*j-4096}")
a(f"""s_lshl_b32 s41, s{sH}, 15
v_lshl_add_u32 v1, v0, 4, s41
s_cmp_lg_u32 s{sH}, 3
s_cbranch_scc1 H_st2
s_waitcnt vmcnt(16)
H_st2:""")
for s in range(4):
    if s == 2: a(f"s_cmp_eq_u32 s{sH}, 3\ns_cbranch_scc1 H_st3")
    a(f"s_waitcnt vmcnt({40-8*s})")
    for f in range(8):
        t = 8 + 4*f
        for i in range(4):
            a(f"v_perm_b32 v{t+i}, v{128+32*s+4*(2*i+1)+(f>>1)}, v{128+32*s+4*(2*i)+(f>>1)}, s{sHI if f&1 else sLO}")
        a(f"ds_write_b128 v1, {V(t,4)} offset:{8192*s+1024*f}")
a("H_st3:\ns_waitcnt vmcnt(0)")
for s in range(2):
    for i in range(4): tr_pair(WQR+48+8*s+i, WQR+48+8*s+4+i, 40)
a(f"""H_P2:
v_and_b32 v1, 15, v0
v_lshrrev_b32 v2, 4, v0
v_xor_b32 v8, v2, v1
v_lshlrev_b32 v1, 10, v1
v_add_u32 v1, {L_XN}, v1
v_xor_b32 v9, 4, v8
v_xor_b32 v10, 8, v8
v_xor_b32 v11, 12, v8
v_lshl_add_u32 v8, v8, 4, v1
v_lshl_add_u32 v9, v9, 4, v1
v_lshl_add_u32 v10, v10, 4, v1
v_lshl_add_u32 v11, v11, 4, v1
s_lshl_b32 s41, s{sH}, 11
v_lshl_add_u32 v1, v0, 4, s41
v_add_u32 v2, 0x10000, v1
s_waitcnt lgkmcnt(0)
s_barrier""")
TS(3)
a(f"""s_cmp_lg_u32 s{sL}, 0
s_cbranch_scc1 H_qp""")
for s in range(6):
    for f in range(2): a(f"ds_read_b128 {V(WQR+8*s+4*f,4)}, v2 offset:{8192*s+1024*f}")
a("s_waitcnt lgkmcnt(0)\nH_qp:")
order = [14, 0, 15, 1, 8, 2, 9, 3, 10, 4, 11, 5, 12, 6, 13, 7]
def qread(idx):
    s = order[idx]; b = 28 + 16*(idx % 2)
    a(f"ds_read_b128 {V(b,4)}, v{8+(s&3)} offset:{256*(s>>2)}")
    a(f"ds_read_b128 {V(b+4,4)}, v{8+(s&3)} offset:{256*(s>>2)+16384}")
    if s < 8:
        a(f"ds_read_b128 {V(b+8,4)}, v1 offset:{8192*s}")
        a(f"ds_read_b128 {V(b+12,4)}, v1 offset:{8192*s+1024}")
    return 4 if s < 8 else 2
qread(0)
for idx in range(16):
    n = qread(idx+1) if idx + 1 < 16 else 0
    a(f"s_waitcnt lgkmcnt({n})")
    s = order[idx]; b = 28 + 16*(idx % 2)
    for f in range(2):
        A_ = V(b+8+4*f,4) if s < 8 else V(WQR+8*(s-8)+4*f,4)
        for nt in range(2):
            d = V(12+8*f+4*nt,4)
            a(f"v_mfma_f32_16x16x32_bf16 {d}, {A_}, {V(b+4*nt,4)}, {'0' if idx==0 else d}")
a(f"""v_and_b32 v1, 15, v0
v_mul_u32_u24 v1, {QSTR}, v1
v_lshrrev_b32 v2, 4, v0
v_lshl_add_u32 v1, v2, 6, v1
s_lshl_b32 s41, s{sH}, 3
s_add_u32 s41, s41, {L_Q}
v_add_u32 v1, s41, v1
s_mov_b32 s41, {QSCALE}""")
for i in range(16): a(f"v_mul_f32 v{12+i}, s41, v{12+i}")
for nt in range(2):
    for hh in range(2):
        for f in range(2):
            a(f"v_cvt_pk_bf16_f32 v{28+4*nt+2*hh+f}, v{12+8*f+4*nt+2*hh}, v{12+8*f+4*nt+2*hh+1}")
a(f"""ds_write_b64 v1, v[28:29]
ds_write_b64 v1, v[30:31] offset:32
ds_write_b64 v1, v[32:33] offset:{16*QSTR}
ds_write_b64 v1, v[34:35] offset:{16*QSTR+32}
s_waitcnt lgkmcnt(0)""")
TS(2)
a("s_barrier")
TS(4)
a(f"""s_cmp_eq_u32 s{sL}, 0
s_cbranch_scc1 H_prep""")
priv_addr(1, 32768)
for i in range(6): a(f"global_load_dwordx4 {V(GU+4*i,4)}, v1, {P(sWS)} offset:{1024*i-4096}")
a(f"""v_mov_b32 v3, {L_SC}
s_branch H_FFN
H_prep:
v_and_b32 v1, 15, v0
v_lshrrev_b32 v2, 4, v0
v_lshlrev_b32 v1, 4, v1
v_lshl_add_u32 v1, v2, 13, v1
s_lshl_b32 s41, s{sC}, 17
s_lshl_b32 s42, s{sH}, 8
s_add_u32 s41, s41, s42
s_add_u32 s41, s41, 4096
v_add_u32 v1, s41, v1""")
def wosrc(s): return 8 if s == 0 else WO + 32*(s-1)
for s in range(4):
    for j in range(8):
        a(f"global_load_dwordx4 {V(wosrc(s)+4*j,4)}, v1, {P(sWO)} offset:{1024*j-4096}")
    if s < 3: a("v_add_u32 v1, 0x8000, v1")
a(f"""s_min_u32 s43, s{sJ}, 223
s_lshl_b32 s41, s{sH}, 6
v_add_u32 v1, s41, v0
v_mul_u32_u24 v2, 7168, v1
s_lshl_b32 s42, s43, 4
v_add_u32 v2, s42, v2
global_load_dwordx4 {V(GU,4)}, v2, {P(sWG)}
global_load_dwordx4 {V(GU+4,4)}, v2, {P(sWG)} offset:3584
global_load_dwordx4 {V(GU+8,4)}, v2, {P(sWU)}
global_load_dwordx4 {V(GU+12,4)}, v2, {P(sWU)} offset:3584
v_min_u32 v1, 223, v1
s_lshl_b32 s42, s{sJ}, 2
s_add_u32 s42, s42, 4096
v_lshl_add_u32 v2, v1, 13, s42""")
for r in range(8): a(f"global_load_dword v{WDn + 4*(r&1) + (r>>1)}, v2, {P(sWD)} offset:{1024*r-4096}")
a("s_waitcnt vmcnt(12)")
for s in (3, 2, 1, 0):
    src = wosrc(s); dst = WO + 32*s
    for f in range(8):
        for i in range(4):
            a(f"v_perm_b32 v{dst+4*f+i}, v{src+4*(2*i+1)+(f>>1)}, v{src+4*(2*i)+(f>>1)}, s{sHI if f&1 else sLO}")
a(f"""v_mov_b32 v8, -1
v_mov_b32 v9, -1
v_mov_b32 v10, -1
v_mov_b32 v11, -1
s_lshl_b32 s41, s{sB}, 13
s_lshl_b32 s42, s{sH}, 11
s_add_u32 s41, s41, s42
s_add_u32 s41, s41, {WS_XN}
v_lshl_add_u32 v1, v0, 4, s41
global_store_dwordx4 v1, v[8:11], {P(sWS)} sc1
global_store_dwordx4 v1, v[8:11], {P(sWS)} offset:1024 sc1
s_lshr_b32 s41, s{sH}, 1
s_lshl_b32 s41, s41, 19
s_and_b32 s42, s{sH}, 1
s_lshl_b32 s42, s42, 10
s_add_u32 s41, s41, s42
s_lshl_b32 s42, s{sB}, 11
s_add_u32 s41, s41, s42
s_add_u32 s41, s41, {WS_CAND}
v_lshl_add_u32 v1, v0, 4, s41
global_store_dwordx4 v1, v[8:11], {P(sWS)} sc1
s_waitcnt vmcnt(0)""")
for base in (GU, GU+8, WDn):
    for i in range(4): tr_pair(base+i, base+4+i, 8)
priv_addr(1, 32768)
for i in range(6): a(f"global_store_dwordx4 v1, {V(GU+4*i,4)}, {P(sWS)} offset:{1024*i-4096}")
a("H_bursts:")
TS(5)
OF, AC, TM, PSUM = 8, 24, 40, 48
a(f"""s_lshr_b32 s41, s{sH}, 1
s_and_b32 s42, s{sH}, 1
s_lshl_b32 s43, s41, 13
s_lshl_b32 s44, s42, 10
s_add_u32 s43, s43, s44
s_add_u32 s43, s43, {L_SLOT}
v_lshl_add_u32 v1, v0, 4, s43
v_and_b32 v3, 31, v0
s_lshl_b32 s43, s41, 9
s_add_u32 s43, s43, {L_L}
v_lshl_add_u32 v2, v3, 2, s43
v_bfe_u32 v3, v0, 3, 2
v_mul_u32_u24 v3, {QSTR}, v3
v_and_b32 v8, 7, v0
v_lshl_add_u32 v3, v8, 5, v3
s_mul_i32 s43, s41, {4*QSTR}
s_add_u32 s43, s43, {L_O}
v_add_u32 v47, s43, v3
v_lshrrev_b32 v8, 5, v0
v_lshl_add_u32 v3, v8, 3, v47
s_lshl_b32 s44, s42, 4
v_add_u32 v3, s44, v3
s_add_u32 s{sOTAG}, s{sE}, s{sL}
s_add_u32 s{sOTAG}, s{sOTAG}, 1
s_and_b32 s{sOTAG}, s{sOTAG}, 0xff""")
def normalize(g, poll):
    if poll:
        lb = a.newlabel("H_lw")
        a(f"""s_lshr_b32 s41, s{sH}, 1
        s_lshl_b32 s41, s41, 9
        s_add_u32 s41, s41, {L_L + 1024*g}
        v_lshl_add_u32 v13, v0, 3, s41
        s_mov_b32 s{sCNT}, 0
        {lb}:
        s_sleep 4
        ds_read_b32 v8, v13
        s_waitcnt lgkmcnt(0)
        v_cmp_eq_u32 vcc, -1, v8""")
        poll_guard(lb, "s_cbranch_vccz", "H_lwd", 8)
    a(f"""v_add_u32 v12, {1024*g}, v2
    ds_read2_b32 v[8:9], v12 offset0:0 offset1:32
    ds_read2_b32 v[10:11], v12 offset0:64 offset1:96""")
    for w in range(4): a(f"ds_read_b128 {V(16+4*w,4)}, v1 offset:{16384*g + 2048*w}")
    a(f"""s_waitcnt lgkmcnt(4)
    v_pk_add_f32 v[8:9], v[8:9], v[10:11]
    v_add_f32 v8, v8, v9
    v_add_f32 v8, v8, v40
    v_rcp_f32 v9, v8
    s_waitcnt lgkmcnt(2)""")
    pkadd(16, 16, 20, 4)
    pkadd(16, 16, 36, 4)
    a("s_waitcnt lgkmcnt(0)")
    pkadd(24, 24, 28, 4)
    pkadd(16, 16, 24, 4)
    for i in range(4): a(f"v_mul_f32 v{16+i}, v9, v{16+i}")
    pack(16, 16, 2)
    a(f"ds_write_b64 v3, v[16:17] offset:{8*QSTR*g}")
def corr(g):
    l0 = a.newlabel("H_c0"); l1 = a.newlabel("H_c1")
    a(f"""s_cmp_eq_u32 s{sL}, 0
    s_cbranch_scc1 {l0}
    v_lshrrev_b32 v41, 5, v0
    s_lshl_b32 s41, s{sH}, 5
    s_add_u32 s41, s41, {L_VS}
    v_lshl_add_u32 v41, v41, 4, s41
    ds_read_b128 v[28:31], v47 offset:{L_Q - L_O + 8*QSTR*g}
    ds_read_b128 v[32:35], v47 offset:{L_Q - L_O + 8*QSTR*g + 16}
    ds_read_b128 v[36:39], v41
    s_waitcnt lgkmcnt(1)
    v_dot2_f32_bf16 v40, v28, s{sKSL[0]}, 0""")
    for i in range(1, 8): a(f"v_dot2_f32_bf16 v40, v{28+i}, s{sKSL[i]}, v40")
    a(f"""v_exp_f32 v40, v40
    s_waitcnt lgkmcnt(0)
    v_and_b32 v40, 0xffff0000, v40""")
    for i in range(4): a(f"v_mul_f32 v{36+i}, v40, v{36+i}")
    a(f"""s_branch {l1}
    {l0}:
    v_mov_b32 v40, 0
    v_mov_b64 v[36:37], 0
    v_mov_b64 v[38:39], 0
    {l1}:""")
def hsync(idx):
    a(f"""s_lshl_b32 s41, s{sL}, 4
    s_add_u32 s41, s41, {L_SC}
    v_mov_b32 v8, s41""")
    lds_inc(8, SC_OCNT + 4*idx, 9)
    lds_wait(8, SC_OCNT + 4*idx, 9, 4, 2)
def ofrags(first, mask):
    a(f"""v_and_b32 v44, {mask}, v0
    v_mul_u32_u24 v44, {QSTR}, v44
    v_lshrrev_b32 v45, 4, v0
    v_lshl_add_u32 v44, v45, 4, v44
    v_add_u32 v44, {L_O + first*QSTR}, v44""")
def ofrags_rd():
    for s in range(4): a(f"ds_read_b128 {V(OF+4*s,4)}, v44 offset:{64*s}")
def oproj(half):
    for s in range(4):
        if half == 0: a(f"s_waitcnt lgkmcnt({3-s})")
        for f in range(4):
            a(f"v_mfma_f32_16x16x32_bf16 {V(AC+4*f,4)}, {V(OF+4*s,4)}, {V(WO+32*s+4*(4*half+f),4)}, {'0' if s==0 else V(AC+4*f,4)}")
def op_gather(k0, nk):
    lp = a.newlabel("H_opp"); ll = a.newlabel("H_opl")
    a(f"""s_mul_i32 s41, s{sB}, 49152
    s_lshl_b32 s42, s{sH}, 11
    s_add_u32 s41, s41, s42
    s_add_u32 s41, s41, {WS_OP + 8192*k0}
    v_lshrrev_b32 v45, 4, v0
    v_and_b32 v46, 15, v0
    v_lshlrev_b32 v46, 4, v46
    v_lshl_add_u32 v46, v45, 9, v46
    v_add_u32 v40, s41, v46""")
    for k in range(1, nk): a(f"v_add_u32 v{40+k}, {8192*k}, v40")
    a(f"""s_mov_b32 s{sCNT}, 0
    {lp}:
    s_sleep 4
    global_load_dword v8, v{40+nk-1}, {P(sWS)} offset:268 sc1
    s_waitcnt vmcnt(0)
    v_xor_b32 v8, s{sOTAG}, v8
    v_and_b32 v8, 0xff, v8
    v_cmp_ne_u32 vcc, 0, v8""")
    poll_guard(lp, "s_cbranch_vccz", "H_oppd")
    a(f"s_mov_b32 s{sCNT}, 0\n{ll}:")
    for k in range(nk):
        a(f"global_load_dwordx4 {V(8+8*k,4)}, v{40+k}, {P(sWS)} sc1")
        a(f"global_load_dwordx4 {V(12+8*k,4)}, v{40+k}, {P(sWS)} offset:256 sc1")
    a("s_waitcnt vmcnt(0)")
    n = 8*nk
    for i in range(n): a(f"v_xor_b32 v{8+i}, s{sOTAG}, v{8+i}")
    a("v_or3_b32 v45, v8, v9, v10")
    for i in range(3, n-1, 2): a(f"v_or3_b32 v45, v45, v{8+i}, v{9+i}")
    a(f"""v_or_b32 v45, v45, v{8+n-1}
    v_and_b32 v45, 0xff, v45
    v_cmp_ne_u32 vcc, 0, v45""")
    poll_guard(ll, "s_cbranch_vccz", "H_opd")
for bi in range(2):
    if bi == 0:
        corr(0); normalize(0, True); corr(1); normalize(1, True)
    else:
        corr(2); normalize(2, True)
    hsync(bi)
    ofrags(16*bi, 15 if bi == 0 else 7)
    ofrags_rd()
    a(f"""v_lshrrev_b32 v46, 5, v0
    v_add_u32 v46, {2*bi}, v46
    s_add_u32 s41, s{sC}, 1
    v_add_u32 v45, s41, v46
    v_and_b32 v45, 3, v45
    v_mul_u32_u24 v45, 49152, v45
    v_lshl_add_u32 v45, v46, 14, v45
    v_bfe_u32 v46, v0, 4, 1
    v_lshl_add_u32 v45, v46, 13, v45
    v_and_b32 v46, 15, v0
    v_lshl_add_u32 v45, v46, 4, v45
    s_andn2_b32 s41, s{sB}, 3
    s_mul_i32 s41, s41, 49152
    s_lshl_b32 s42, s{sH}, 9
    s_add_u32 s41, s41, s42
    s_add_u32 s41, s41, {WS_OP + 4096}
    v_add_u32 v45, s41, v45
    v_mov_b32 v46, s{sOTAG}""")
    for half in range(2):
        oproj(half)
        if bi == 1: a("s_mov_b32 exec_hi, 0")
        for i in range(4):
            for f in range(4): a(f"v_and_or_b32 v{TM+f}, v{AC+4*f+i}, s{sMASK}, v46")
            a(f"global_store_dwordx4 v45, {V(TM,4)}, {P(sWS)} offset:{2048*i + 256*half - 4096} sc1")
        if bi == 1: a("s_mov_b32 exec_hi, -1")
    TS(6 if bi == 0 else 9)
    if bi == 0:
        a(f"""s_cmp_lg_u32 s{sL}, 0
        s_cbranch_scc1 H_skipg""")
        op_gather(0, 4)
        pkadd(PSUM, 8, 24, 16)
        a("H_skipg:")
a(f"""s_cmp_eq_u32 s{sL}, 0
s_cbranch_scc1 H_g2""")
op_gather(0, 4)
pkadd(PSUM, 8, 24, 16)
a("H_g2:")
op_gather(4, 2)
pkadd(8, 8, PSUM, 16)
a(f"""s_add_u32 s42, s42, {L_PS}
v_add_u32 v45, s42, v46
ds_write_b128 v45, v[8:11]
ds_write_b128 v45, v[12:15] offset:256
ds_write_b128 v45, v[16:19] offset:8192
ds_write_b128 v45, v[20:23] offset:8448""")
TS(10)
ofrags(24, 7)
a(f"""v_bfe_u32 v46, v0, 4, 1
v_and_b32 v45, 15, v0
v_lshlrev_b32 v45, 4, v45
v_lshl_add_u32 v45, v46, 13, v45
s_lshl_b32 s41, s{sH}, 9
s_add_u32 s41, s41, {L_ROW}
v_add_u32 v45, s41, v45""")
corr(3)
a("s_barrier")
normalize(3, False)
a("s_waitcnt lgkmcnt(0)\ns_barrier")
ofrags_rd()
for half in range(2):
    oproj(half)
    a("s_mov_b32 exec_hi, 0")
    for i in range(4):
        t = TM if i % 2 == 0 else 48
        for f in range(4): a(f"v_mov_b32 v{t+f}, v{AC+4*f+i}")
        a(f"ds_write_b128 v45, {V(t,4)} offset:{2048*i + 256*half}")
    a("s_mov_b32 exec_hi, -1")
a(f"""v_mov_b32 v8, -1
v_mov_b32 v9, -1
v_mov_b32 v10, -1
v_mov_b32 v11, -1
s_lshl_b32 s41, s{sH}, 10
s_add_u32 s41, s41, {L_L}
v_lshl_add_u32 v1, v0, 4, s41
ds_write_b128 v1, v[8:11]
v_lshlrev_b32 v1, 4, v0
global_load_dwordx4 {V(WR,4)}, v1, {P(sWR)}""")
priv_addr(1, 32768)
a("s_waitcnt lgkmcnt(0)")
for i in range(6): a(f"global_load_dwordx4 {V(GU+4*i,4)}, v1, {P(sWS)} offset:{1024*i-4096}")
a("s_branch R_P4")
a("H_FFN:")
key_get(1)
a(f"""s_lshr_b32 s41, s{sSEL}, 3
s_lshl_b32 s41, s41, 11
s_lshl_b32 s42, s{sF}, 19
s_add_u32 s41, s41, s42
s_add_u32 s41, s41, {WS_CAND}
s_lshl_b32 s42, s{sH}, 8
s_add_u32 s42, s42, s41
v_lshl_add_u32 v2, v0, 2, s42
s_lshl_b32 s42, s{sJ}, 2
s_add_u32 s42, s42, s41
v_mov_b32 v9, s42
s_lshl_b32 s42, s{sF}, 2
v_add_u32 v37, s42, v3
s_mov_b32 s{sCNT}, 0""")
TSF(11)
a(f"""H_xs:
global_load_dword v8, v2, {P(sWS)} sc1
global_load_dword v38, v9, {P(sWS)} sc1
global_load_dword v39, v9, {P(sWS)} offset:1024 sc1
s_waitcnt vmcnt(0)
v_max3_u32 v10, v8, v38, v39
v_cmp_eq_u32 vcc, -1, v10""")
poll_guard("H_xs", "s_cbranch_vccz", "H_xsd")
a(f"""s_cmp_ge_u32 s{sJ}, 224
s_cbranch_scc1 H_down""")
for i in range(16): a(f"v_dot2_f32_bf16 v{GU+i}, v{GU+i}, v8, 0")
for c in range(8): a(f"v_permlane32_swap_b32 v{GU+c}, v{GU+8+c}")
pkadd(GU, GU, GU+8, 8)
for c in range(4): a(f"v_permlane16_swap_b32 v{GU+c}, v{GU+4+c}")
pkadd(GU, GU, GU+4, 4)
for m in ("row_ror:8", "row_ror:4", "row_ror:2", "row_ror:1"):
    for c in range(4): a(f"v_add_f32_dpp v{GU+c}, v{GU+c}, v{GU+c} {m} row_mask:0xf bank_mask:0xf")
a(f"""v_lshrrev_b32 v2, 4, v0
s_lshl_b32 s41, s{sH}, 6
s_add_u32 s41, s41, {L_SC + SC_FACC}
v_lshl_add_u32 v2, v2, 4, s41
v_mov_b32 v9, 1
s_mov_b32 exec_lo, 0x00010001
s_mov_b32 exec_hi, 0x00010001
ds_write_b128 v2, {V(GU,4)}
s_mov_b64 exec, 1
ds_add_rtn_u32 v10, v37, v9 offset:{SC_FCNT}
s_mov_b64 exec, -1
v_and_b32 v2, 1, v0
v_bfe_u32 v9, v0, 1, 2
v_lshlrev_b32 v9, 2, v9
v_lshl_add_u32 v9, v2, 4, v9
v_add_u32 v9, {L_SC + SC_FACC}, v9
s_waitcnt lgkmcnt(0)
v_readfirstlane_b32 s42, v10
s_cmp_lg_u32 s42, 3
s_cbranch_scc1 H_down""")
for w in range(4): a(f"ds_read2_b32 {V(12+2*w,2)}, v9 offset0:{16*w} offset1:{16*w+8}")
a(f"""s_lshl_b32 s41, s{sJ}, 7
s_lshl_b32 s42, s{sF}, 4
s_add_u32 s41, s41, s42
s_add_u32 s41, s41, {WS_HY}
v_lshl_add_u32 v2, v0, 1, s41
s_waitcnt lgkmcnt(0)
v_pk_add_f32 v[12:13], v[12:13], v[14:15]
v_pk_add_f32 v[16:17], v[16:17], v[18:19]
v_pk_add_f32 v[12:13], v[12:13], v[16:17]
v_cvt_pk_bf16_f32 v12, v12, v13
v_and_b32 v13, 0xffff0000, v12
v_lshlrev_b32 v12, 16, v12
v_mul_f32 v14, 0xbfb8aa3b, v12
v_exp_f32 v14, v14
v_add_f32 v14, 1.0, v14
v_rcp_f32 v14, v14
v_mul_f32 v12, v12, v14
v_cvt_pk_bf16_f32 v12, v12, v12
v_lshlrev_b32 v12, 16, v12
v_mul_f32 v12, v12, v13
v_cvt_pk_bf16_f32 v12, v12, v12
s_mov_b64 exec, 0xff
global_store_short v2, v12, {P(sWS)} sc1
s_mov_b64 exec, -1
H_down:
s_lshl_b32 s41, s{sH}, 6
v_add_u32 v1, s41, v0
v_min_u32 v2, 223, v1
s_lshl_b32 s42, s{sF}, 4
s_add_u32 s42, s42, {WS_HY}
v_lshl_add_u32 v2, v2, 7, s42
s_mov_b32 s{sCNT}, 0""")
TSF(12)
a(f"""H_hp:
s_sleep 2
global_load_dwordx4 v[12:15], v2, {P(sWS)} sc1
s_waitcnt vmcnt(0)
v_max3_u32 v9, v12, v13, v14
v_max_u32 v9, v9, v15
v_cmp_eq_u32 vcc, -1, v9""")
poll_guard("H_hp", "s_cbranch_vccz", "H_hpd")
TSF(13)
a(f"""v_dot2_f32_bf16 v8, v{WDn}, v12, 0
v_dot2_f32_bf16 v9, v{WDn+4}, v12, 0""")
for i in range(1, 4):
    a(f"v_dot2_f32_bf16 v8, v{WDn+i}, v{12+i}, v8")
    a(f"v_dot2_f32_bf16 v9, v{WDn+4+i}, v{12+i}, v9")
a(f"""v_cmp_gt_u32 vcc, 224, v1
v_cndmask_b32 v8, 0, v8, vcc
v_cndmask_b32 v9, 0, v9, vcc
v_permlane32_swap_b32 v8, v9
v_add_f32 v8, v8, v9""")
for m in ("row_ror:8", "row_ror:4", "row_ror:2", "row_ror:1"):
    a(f"v_add_f32_dpp v8, v8, v8 {m} row_mask:0xf bank_mask:0xf")
a(f"""v_add_f32_dpp v8, v8, v8 row_bcast:15 row_mask:0xa bank_mask:0xf
v_lshrrev_b32 v2, 5, v0
s_lshl_b32 s41, s{sH}, 3
s_add_u32 s41, s41, {L_SC + SC_DACC}
v_lshl_add_u32 v2, v2, 2, s41
v_mov_b32 v9, 1
s_mov_b32 exec_lo, 0x80000000
s_mov_b32 exec_hi, 0x80000000
ds_write_b32 v2, v8
s_mov_b64 exec, 1
ds_add_rtn_u32 v12, v37, v9 offset:{SC_DCNT}
s_mov_b64 exec, -1
s_lshr_b32 s41, s{sKEY}, 16
s_and_b32 s42, s41, 0x7fff
s_xor_b32 s43, s41, 0xffff
s_bitcmp1_b32 s41, 15
s_cselect_b32 s41, s42, s43
s_lshl_b32 s41, s41, 16
v_mov_b32 v11, s41
v_mul_f32 v11, 0xbfb8aa3b, v11
v_exp_f32 v11, v11
v_add_f32 v11, 1.0, v11
v_rcp_f32 v11, v11
v_cvt_pk_bf16_f32 v11, v11, v11
v_lshlrev_b32 v11, 16, v11
s_waitcnt lgkmcnt(0)
v_readfirstlane_b32 s42, v12
s_cmp_lg_u32 s42, 3
s_cbranch_scc1 H_ffd
ds_read_b128 v[12:15], v3 offset:{SC_DACC}
ds_read_b128 v[16:19], v3 offset:{SC_DACC+16}
s_waitcnt lgkmcnt(0)
v_pk_add_f32 v[12:13], v[12:13], v[14:15]
v_pk_add_f32 v[16:17], v[16:17], v[18:19]
v_pk_add_f32 v[8:9], v[12:13], v[16:17]""")
pack(12, 8, 1); unpack(8, 12, 1)
a("v_mul_f32 v8, v8, v11\nv_mul_f32 v9, v9, v11")
pack(12, 8, 1); unpack(8, 12, 1); unpack(14, 38, 1)
a("v_add_f32 v8, v8, v14\nv_add_f32 v9, v9, v15")
pack(12, 8, 1); unpack(8, 12, 1); unpack(14, 39, 1)
a("v_add_f32 v8, v8, v14\nv_add_f32 v9, v9, v15")
pack(12, 8, 1)
a(f"""s_mov_b64 exec, 1
s_cmp_lg_u32 s{sF}, 0
s_cbranch_scc1 H_fo
s_lshl_b32 s41, s{sJ}, 7
s_add_u32 s41, s41, {WS_HY + 32}
v_mov_b32 v2, s41
global_store_dword v2, v12, {P(sWS)} sc1
s_branch H_fo2
H_fo:
s_lshl_b32 s41, s{sSEL}, 10
s_lshl_b32 s42, s{sJ}, 2
s_add_u32 s41, s41, s42
v_mov_b32 v2, s41
global_store_dword v2, v12, {P(sOUT)}
H_fo2:
s_mov_b64 exec, -1
H_ffd:
s_cmp_lg_u32 s{sF}, 0
s_cbranch_scc1 R_last""")
a(f"""s_cmp_lg_u32 s{sH}, 0
s_cbranch_scc1 H_fx1
v_lshlrev_b32 v1, 9, v0
v_add_u32 v1, {WS_HY + 32}, v1
s_mov_b32 s{sCNT}, 0
H_yw:
s_sleep 2
global_load_dword v40, v1, {P(sWS)} sc1
global_load_dword v41, v1, {P(sWS)} offset:128 sc1
global_load_dword v42, v1, {P(sWS)} offset:256 sc1
global_load_dword v43, v1, {P(sWS)} offset:384 sc1
s_waitcnt vmcnt(0)
v_max3_u32 v2, v40, v41, v42
v_max_u32 v2, v2, v43
v_cmp_eq_u32 vcc, -1, v2""")
poll_guard("H_yw", "s_cbranch_vccz", "H_yd")
unpack(X_, 40)
ln(X_, D_, T_, XN)
a(f"""v_lshlrev_b32 v1, 4, v0
v_add_u32 v1, {L_XS}, v1
ds_write_b128 v1, {V(XN,4)}
ds_write_b128 v1, v[40:43] offset:1024""")
lds_inc(3, SC_XSF, 2)
a("H_fx1:")
priv_addr(1, 0)
for i in range(8): a(f"global_load_dwordx4 {V(8+4*i,4)}, v1, {P(sWS)} offset:{1024*i-4096}")
lds_wait(3, SC_XSF, 2, 1, 2)
TSA(14)
a(f"""v_lshrrev_b32 v1, 4, v0
v_lshlrev_b32 v1, 4, v1
v_add_u32 v1, {L_XS}, v1
s_xor_b32 s41, s{sSEL}, s{sTOK}
s_lshr_b32 s41, s41, 5
s_cbranch_scc1 H_fx2
s_lshl_b32 s41, s{sH}, 11
v_lshl_add_u32 v2, v0, 4, s41""")
for s in range(16):
    a(f"ds_read_b128 v[48:51], v1 offset:{64*s}")
    if s < 8:
        a(f"ds_read_b128 v[52:55], v2 offset:{8192*s}")
        a(f"ds_read_b128 v[56:59], v2 offset:{8192*s+1024}")
    a("s_waitcnt lgkmcnt(0)")
    for f in range(2):
        A_ = V(52+4*f,4) if s < 8 else V(WQR+8*(s-8)+4*f,4)
        a(f"v_mfma_f32_16x16x32_bf16 {V(40+4*f,4)}, {A_}, v[48:51], {'0' if s==0 else V(40+4*f,4)}")
a(f"""s_lshl_b32 s41, s{sC}, 3
s_sub_u32 s41, s{sSEL}, s41
s_sub_u32 s41, s41, 8
s_and_b32 s41, s41, 31
s_mul_i32 s41, s41, {QSTR}
s_lshl_b32 s42, s{sH}, 3
s_add_u32 s41, s41, s42
s_add_u32 s41, s41, {L_Q}
v_lshrrev_b32 v2, 4, v0
v_lshl_add_u32 v2, v2, 6, s41
s_mov_b32 s41, {QSCALE}""")
for i in range(8): a(f"v_mul_f32 v{40+i}, s41, v{40+i}")
for hh in range(2):
    for f in range(2):
        a(f"v_cvt_pk_bf16_f32 v{48+2*hh+f}, v{40+4*f+2*hh}, v{40+4*f+2*hh+1}")
a(f"""s_mov_b32 exec_lo, 0x00010001
s_mov_b32 exec_hi, 0x00010001
ds_write_b64 v2, v[48:49]
ds_write_b64 v2, v[50:51] offset:32
s_mov_b64 exec, -1""")
lds_inc(3, SC_QFIX, 2)
a(f"""H_fx2:
s_lshl_b32 s41, s{sH}, 8
v_add_u32 v1, s41, v1""")
for s in range(4): a(f"ds_read_b128 {V(40+4*s,4)}, v1 offset:{64*s}")
a(f"""v_lshrrev_b32 v2, 4, v0
s_lshl_b32 s41, s{sH}, 7
s_add_u32 s41, s41, {L_KVP}
v_lshl_add_u32 v2, v2, 5, s41
s_waitcnt vmcnt(0) lgkmcnt(0)""")
for s in range(4):
    a(f"v_mfma_f32_16x16x32_bf16 v[56:59], {V(8+8*s,4)}, {V(40+4*s,4)}, {'0' if s==0 else 'v[56:59]'}")
    a(f"v_mfma_f32_16x16x32_bf16 v[60:63], {V(8+8*s+4,4)}, {V(40+4*s,4)}, {'0' if s==0 else 'v[60:63]'}")
a("s_mov_b32 exec_lo, 0x00010001\ns_mov_b32 exec_hi, 0x00010001")
for i in range(4): a(f"ds_write2_b32 v2, v{56+i}, v{60+i} offset0:{2*i} offset1:{2*i+1}")
a("s_mov_b64 exec, -1")
hsync(2)
a(f"""v_and_b32 v1, 7, v0
v_lshlrev_b32 v1, 2, v1
v_add_u32 v1, {L_KVP}, v1
v_lshrrev_b32 v2, 5, v0
s_and_b32 s41, s{sH}, 1
s_lshl_b32 s41, s41, 5
s_add_u32 s41, s41, {L_KVP + 64}
v_lshl_add_u32 v40, v2, 4, s41
s_lshl_b32 s41, s{sH}, 5
s_add_u32 s41, s41, {L_VS}
v_lshl_add_u32 v41, v2, 4, s41""")
for w in range(4): a(f"ds_read2_b32 {V(8+2*w,2)}, v1 offset0:{32*w} offset1:{32*w+8}")
for w in range(4): a(f"ds_read_b128 {V(16+4*w,4)}, v40 offset:{128*w}")
a(f"""s_waitcnt lgkmcnt(4)
v_pk_add_f32 v[8:9], v[8:9], v[10:11]
v_pk_add_f32 v[12:13], v[12:13], v[14:15]
v_pk_add_f32 v[8:9], v[8:9], v[12:13]
v_cvt_pk_bf16_f32 v8, v8, v9
s_waitcnt lgkmcnt(0)""")
pkadd(16, 16, 20, 4); pkadd(24, 24, 28, 4); pkadd(16, 16, 24, 4)
for i in range(8): a(f"v_readlane_b32 s{sKSL[i]}, v8, {i}")
pack(20, 16, 2); unpack(16, 20, 2)
a(f"""ds_write_b128 v41, v[16:19]
s_branch H_bursts
L_end:
s_cmp_lg_u32 s{sTOK}, 7
s_cbranch_scc1 L_end2
s_add_u32 s41, s{sE}, 2
v_mov_b32 v1, 0
v_mov_b32 v2, s41
s_mov_b64 exec, 1
global_store_dword v1, v2, {P(sWS)}
s_mov_b64 exec, -1
L_end2:
""")
if TSON:
    TS(15)
    a(f"""s_getreg_b32 s75, hwreg(HW_REG_HW_ID)
    s_sub_u32 s76, s95, s94
    s_mul_i32 s41, s{sB}, 12
    s_add_u32 s41, s41, s{sW}
    s_lshl_b32 s41, s41, 7
    s_add_u32 s41, s41, {WS_TS}
    v_mov_b32 v1, s41
    s_mov_b64 exec, 1""")
    for i in range(32):
        a(f"v_mov_b32 v2, s{60+i}\nglobal_store_dword v1, v2, {P(sWS)} offset:{4*i}")
a("L_exit:\ns_endpgm")

n = a.hazard_pass()
hdr = open(f"cdna_kernels/{NAME}.s.ref").read().split("; Override launch")[0]
out = hdr + f"""; @launch grid=(256,1,1) block=(512,1,1) lds=163840
.amdgcn_target "amdgcn-amd-amdhsa--gfx950"
.text
.globl {NAME}_kernel
.p2align 8
.type {NAME}_kernel,@function
{NAME}_kernel:
""" + a.text() + f""".section .rodata,"a"
.p2align 6
.amdhsa_kernel {NAME}_kernel
  .amdhsa_next_free_vgpr 256
  .amdhsa_next_free_sgpr 102
  .amdhsa_accum_offset 256
  .amdhsa_group_segment_fixed_size 0
  .amdhsa_kernarg_size 104
  .amdhsa_user_sgpr_count 2
  .amdhsa_user_sgpr_kernarg_segment_ptr 1
  .amdhsa_system_sgpr_workgroup_id_x 1
  .amdhsa_float_denorm_mode_32 3
.end_amdhsa_kernel
"""
open(sys.argv[1], "w").write(out)
print("nops inserted", n, "instructions", sum(1 for i in a.items if not isinstance(i, str) and i.text))
```

```python
import sys, os
from asmlib import Asm
NAME = "interleave_layers__grouped_kv_mqa__moe_arch_mod__prompt"
TSON = bool(int(os.environ.get("TS", "0")))
a = Asm()

WS_FLAG = 0x1000; WS_KEY = 0x10000; WS_HY = 0x20000; WS_KV = 0x40000; WS_CAND = 0x80000
WS_OPF = 0x180000
WS_XN = 0x200000; WS_OP = 0x600000; OPL = 0xc00000; WS_TS = 0x3000000; WS_FS = 0x2000000; WS_WKV = 0x2800000
L_SLOT = 65536; L_XN = 114688; L_O = 131072; L_Q = 147456; L_L = 156160; L_SC = 160768
L_ROW = L_SLOT; L_PS = L_SLOT + 16384; L_KVS = L_Q
L_XS = 139776; L_X2S = L_XS + 1024; L_KVP = L_XS + 2048; L_VS = L_XS + 2560; L_KS = L_XS + 2816; L_M = L_XS + 3072
QSTR = 272
SC_KVCNT = 0; SC_KEYS = 16; SC_OCNT = 64; SC_FACC = 128; SC_FCNT = 384; SC_DACC = 400; SC_DCNT = 464; SC_GK = 480
SC_XSF = 512; SC_QFIX = 516; SC_BAD = 96; SC_XNC = 528; SC_QC = 536; SC_B1 = 552; SC_KVD = 544; SC_YC = 548; SC_ZERO = 768; SC_WR = 1024
FORCE = int(os.environ.get('FORCE', '0'))
POLLMAX = 40000
NPRE = int(os.environ.get('NPRE', '2'))
CODECH = int(os.environ.get('CODECH', '6'))
QSCALE = 0x3eb8aa3b

sX, sWQ, sWK, sWV, sWO, sWR, sWG, sWU, sWD, sOUT, sDBG, sWS = 8, 10, 12, 14, 16, 20, 22, 24, 26, 28, 30, 32
sE, sW, sL, sC, sTAG, sLO, sHI = 34, 35, 36, 37, 38, 39, 40
sCNT, sJ, sKEY, sTOK, sMASK, sH, sSEL, sOTAG, sF, sCAND, sMYK, sWT = 46, 47, 48, 49, 50, 51, 52, 53, 54, 55, 56, 57
sORD = 58
sKS = 0
sSLOW = 19
sOPB = 50
sB = 18
sKSL = [0, 1, 2, 3, 4, 5, 6, 7]
def P(n): return f"s[{n}:{n+1}]"
def V(n, k=1): return f"v{n}" if k == 1 else f"v[{n}:{n+k-1}]"

def TS(i):
    if not TSON: return
    a(f"""s_memrealtime s[92:93]
    s_waitcnt lgkmcnt(0)
    s_cmp_eq_u32 s{sL}, 0
    s_cselect_b32 s{60+i}, s92, s{60+i}
    s_cselect_b32 s{76+i}, s{76+i}, s92""")
def TSA(slot):
    if not TSON: return
    a(f"""s_memrealtime s[92:93]
    s_waitcnt lgkmcnt(0)
    s_mov_b32 s{60+slot}, s92""")
def TSF(i):
    if not TSON: return
    a(f"""s_memrealtime s[92:93]
    s_waitcnt lgkmcnt(0)
    s_cmp_eq_u32 s{sF}, 0
    s_cselect_b32 s{60+i}, s92, s{60+i}
    s_cselect_b32 s{76+i}, s{76+i}, s92""")
def TC(i):
    if not TSON: return
    a(f"""s_memtime s[92:93]
    s_waitcnt lgkmcnt(0)
    s_mov_b32 s{94+i}, s92""")

def poll_guard(lbl_retry, cond_branch, lbl_stem, mult=1, sleep=0):
    done = a.newlabel(lbl_stem)
    a(f"{cond_branch} {done}")
    if sleep: a(f"s_sleep {sleep}")
    a(f"""s_add_u32 s{sCNT}, s{sCNT}, 1
    s_cmp_lt_u32 s{sCNT}, {POLLMAX*mult}
    s_cbranch_scc1 {lbl_retry}
    {done}:""")
def lds_wait(vaddr, off, vt, target, sleep=1):
    lb = a.newlabel("W")
    a(f"s_mov_b32 s{sCNT}, 0\n{lb}:")
    a(f"""ds_read_b32 v{vt}, v{vaddr} offset:{off}
    s_waitcnt lgkmcnt(0)
    v_cmp_ne_u32 vcc, {target}, v{vt}""")
    poll_guard(lb, "s_cbranch_vccz", "Wd", 8, sleep)
def lds_inc(vaddr, off, vt):
    a(f"""v_mov_b32 v{vt}, 1
    s_mov_b64 exec, 1
    ds_add_u32 v{vaddr}, v{vt} offset:{off}
    s_mov_b64 exec, -1""")

def dpp_reduce(regs, op="v_add_f32"):
    for m in ("row_ror:8", "row_ror:4", "row_ror:2", "row_ror:1"):
        for r in regs: a(f"{op}_dpp v{r}, v{r}, v{r} {m} row_mask:0xf bank_mask:0xf")
    for r in regs: a(f"{op}_dpp v{r}, v{r}, v{r} row_bcast:15 row_mask:0xa bank_mask:0xf")
    for r in regs: a(f"{op}_dpp v{r}, v{r}, v{r} row_bcast:31 row_mask:0xc bank_mask:0xf")
def unpack(dst, src, n=4):
    for i in range(n):
        a(f"v_lshlrev_b32 v{dst+2*i}, 16, v{src+i}")
        a(f"v_and_b32 v{dst+2*i+1}, 0xffff0000, v{src+i}")
def pack(dst, src, n=4):
    for i in range(n): a(f"v_cvt_pk_bf16_f32 v{dst+i}, v{src+2*i}, v{src+2*i+1}")
def pkadd(d, x, y, n):
    for i in range(0, n, 2): a(f"v_pk_add_f32 {V(d+i,2)}, {V(x+i,2)}, {V(y+i,2)}")
def tr_pair(e, o, t):
    a(f"""v_perm_b32 v{t}, v{o}, v{e}, s{sLO}
    v_perm_b32 v{o}, v{o}, v{e}, s{sHI}
    v_mov_b32 v{e}, v{t}""")
def ln(X, D, T, out, extra=[]):
    a(f"v_readfirstlane_b32 s42, v{X}")
    for i in range(0, 8, 2): a(f"v_pk_add_f32 {V(D+i,2)}, {V(X+i,2)}, s[42:43] op_sel_hi:[1,0] neg_lo:[0,1] neg_hi:[0,1]")
    a(f"""v_pk_add_f32 {V(T,2)}, {V(D,2)}, {V(D+2,2)}
    v_pk_mul_f32 {V(T+2,2)}, {V(D,2)}, {V(D,2)}
    v_pk_add_f32 {V(T,2)}, {V(T,2)}, {V(D+4,2)}
    v_pk_fma_f32 {V(T+2,2)}, {V(D+2,2)}, {V(D+2,2)}, {V(T+2,2)}
    v_pk_add_f32 {V(T,2)}, {V(T,2)}, {V(D+6,2)}
    v_pk_fma_f32 {V(T+2,2)}, {V(D+4,2)}, {V(D+4,2)}, {V(T+2,2)}
    v_add_f32 v{T}, v{T}, v{T+1}
    v_pk_fma_f32 {V(T+2,2)}, {V(D+6,2)}, {V(D+6,2)}, {V(T+2,2)}
    v_mul_f32 v{T}, 0x3b000000, v{T}
    v_add_f32 v{T+1}, v{T+2}, v{T+3}""")
    dpp_reduce([T, T+1] + extra)
    a(f"""v_mul_f32 v{T+1}, 0x3b000000, v{T+1}
    v_fma_f32 v{T+1}, -v{T}, v{T}, v{T+1}
    v_add_f32 v{T}, s42, v{T}
    v_max_f32 v{T+1}, 0, v{T+1}
    v_cvt_pk_bf16_f32 v{T}, v{T}, v{T+1}
    v_and_b32 v{T+1}, 0xffff0000, v{T}
    v_lshlrev_b32 v{T}, 16, v{T}
    v_add_f32 v{T+1}, 0x3727c5ac, v{T+1}
    v_readlane_b32 s42, v{T}, 63
    v_cvt_pk_bf16_f32 v{T+1}, 0, v{T+1}
    v_sqrt_f32 v{T+1}, v{T+1}""")
    for i in range(0, 4, 2): a(f"v_pk_add_f32 {V(D+i,2)}, {V(X+i,2)}, s[42:43] op_sel_hi:[1,0] neg_lo:[0,1] neg_hi:[0,1]")
    a(f"""v_cvt_pk_bf16_f32 v{T+1}, 0, v{T+1}
    v_rcp_f32 v{T+1}, v{T+1}""")
    for i in range(4, 8, 2): a(f"v_pk_add_f32 {V(D+i,2)}, {V(X+i,2)}, s[42:43] op_sel_hi:[1,0] neg_lo:[0,1] neg_hi:[0,1]")
    pack(out, D)
    a(f"v_readlane_b32 s42, v{T+1}, 63")
    unpack(D, out)
    for i in range(0, 8, 2): a(f"v_pk_mul_f32 {V(D+i,2)}, {V(D+i,2)}, s[42:43] op_sel_hi:[1,0]")
    pack(out, D)

XR = 4
X_, D_, T_, XN, X1, WR = 8, 16, 24, 28, 32, 36
XO = 36
vQA, vOA, vIDX = 1, 2, 3
Q, ZZ, ACC, S0, S1, KK, VV = 8, 12, 16, 32, 48, 64, 128
WKV = 64
WQR, WO = 64, 128
FOR = 96
GU, WDn = 40, 56

def wkv_addr(vr):
    a(f"""s_andn2_b32 s41, s{sB}, 3
    s_add_u32 s41, s41, s{sH}
    s_lshl_b32 s41, s41, 13
    s_add_u32 s41, s41, {WS_WKV + 4096}
    v_lshl_add_u32 v{vr}, v0, 4, s41""")
def ffn_loads():
    a(f"""s_lshl_b32 s41, s{sJ}, 15
    s_lshl_b32 s42, s{sH}, 13
    s_add_u32 s41, s41, s42
    s_add_u32 s41, s41, {WS_FS + 4096}
    v_lshl_add_u32 v1, v0, 4, s41""")
    for i in range(6): a(f"global_load_dwordx4 {V(GU+4*i,4)}, v1, {P(sWS)} offset:{1024*i-4096} sc1")
def pos2tok(dst, src):
    a(f"""s_lshl_b32 s{dst}, s{sC}, 3
    s_add_u32 s{dst}, s{dst}, s{src}
    s_add_u32 s{dst}, s{dst}, 8
    s_and_b32 s{dst}, s{dst}, 31
    s_andn2_b32 s43, s{sTOK}, 31
    s_add_u32 s{dst}, s{dst}, s43""")

a(f"""
s_cmp_ge_u32 s2, 256
s_cbranch_scc1 L_exit
s_load_dwordx16 s[8:23], s[0:1], 0
s_load_dwordx8 s[24:31], s[0:1], 64
s_load_dwordx2 s[32:33], s[0:1], 96
v_lshrrev_b32 v1, 6, v0
v_and_b32 v0, 63, v0
s_mov_b32 s{sL}, 0
v_readfirstlane_b32 s{sW}, v1
s_and_b32 s{sC}, s2, 3
s_mov_b32 s{sLO}, 0x05040100
s_mov_b32 s{sHI}, 0x07060302
s_mov_b32 s{sF}, 0
s_mov_b32 s{sSEL}, -1
s_and_b32 s{sJ}, s2, 7
s_lshl_b32 s{sJ}, s{sJ}, 5
s_lshr_b32 s41, s2, 3
s_add_u32 s{sJ}, s{sJ}, s41
s_and_b32 s{sH}, s{sW}, 3
s_lshl_b32 s{sTOK}, s2, 3
s_add_u32 s{sTOK}, s{sTOK}, s{sW}
s_lshl_b32 s41, s{sTOK}, 10
v_lshl_add_u32 v1, v0, 4, s41
v_mov_b64 v[12:13], -1
v_mov_b64 v[14:15], -1
v_and_b32 v49, 15, v0
v_lshrrev_b32 v48, 4, v0
v_lshlrev_b32 v49, 4, v49
v_lshl_add_u32 v49, v48, 13, v49
s_cmp_lg_u32 s{sW}, 7
s_cbranch_scc1 S_z
v_lshlrev_b32 v2, 4, v0
v_add_u32 v2, {L_L}, v2
ds_write_b128 v2, v[12:15]
ds_write_b128 v2, v[12:15] offset:1024
ds_write_b128 v2, v[12:15] offset:2048
ds_write_b128 v2, v[12:15] offset:3072
v_mov_b64 v[8:9], 0
v_mov_b64 v[10:11], 0
ds_write_b128 v2, v[8:11] offset:{L_SC - L_L}
S_z:
""")
if TSON:
    for i in range(32): a(f"s_mov_b32 s{60+i}, 0")
TS(0)
a(f"""
s_waitcnt lgkmcnt(0)
s_mov_b32 s{sB}, s2
s_mov_b32 s{sSLOW}, 0
global_load_dwordx4 {V(XR,4)}, v1, {P(sX)}
s_load_dword s{sE}, {P(sWS)}, 0
s_barrier
s_cmp_ge_u32 s{sW}, 4
s_cbranch_scc1 S_noA
s_setprio 3""")
for g in range(3):
    a(f"s_add_u32 s44, s{sH}, {8*g}")
    pos2tok(41, 44)
    a(f"""s_lshl_b32 s41, s41, 10
    s_add_u32 s41, s41, 2048
    v_lshl_add_u32 v{16+g}, v0, 4, s41""")
for i in range(2): a(f"global_load_dwordx4 {V(FOR+4*i,4)}, v16, {P(sX)} offset:{4096*i-2048}")
a(f"""v_and_b32 v8, 7, v0
v_lshrrev_b32 v9, 4, v0
v_lshlrev_b32 v8, 2, v8
v_lshl_add_u32 v8, v9, 8, v8
s_lshl_b32 s41, s{sH}, 12
v_add_u32 v8, s41, v8
v_and_b32 v9, 8, v0
v_cmp_eq_u32 vcc, 0, v9
v_mov_b32 v10, s{sWV}
v_mov_b32 v11, s{sWK}
v_cndmask_b32 v10, v10, v11, vcc
v_mov_b32 v9, s{sWV+1}
v_mov_b32 v11, s{sWK+1}
v_cndmask_b32 v11, v9, v11, vcc
v_add_co_u32 v10, vcc, v10, v8
v_addc_co_u32 v11, vcc, 0, v11, vcc""")
for s in range(4):
    for j in range(8):
        a(f"global_load_dword v{WKV + 8*s + 4*(j&1) + (j>>1)}, v[10:11], off offset:{1024*s + 32*j}")
for i in range(2, 6): a(f"global_load_dwordx4 {V(FOR+4*i,4)}, v{16+(i>>1)}, {P(sX)} offset:{4096*(i&1)-2048}")
a(f"""v_and_b32 v8, 27, v0
v_cmp_eq_u32 vcc, 16, v8
v_mov_b32 v9, 0x3f803f80
v_cndmask_b32 v8, 0, v9, vcc
v_cndmask_b32 v9, 0, v9, vcc""")
for i in range(0, 128, 2): a(f"v_mov_b64 {V(VV+i,2)}, v[8:9]")
a(f"""s_waitcnt vmcnt(38)
s_branch R_P1
S_noA:
s_lshl_b32 s41, s{sH}, 17
s_lshl_b32 s42, s{sC}, 8
s_add_u32 s41, s41, s42
s_add_u32 s41, s41, 4096
v_add_u32 v48, s41, v49
s_lshr_b32 s43, s2, 3
s_cmp_lg_u32 s{sW}, 7
s_cbranch_scc1 S_no7
v_lshrrev_b32 v1, 5, v0
v_and_b32 v3, 31, v0
v_lshlrev_b32 v3, 4, v3
v_lshl_add_u32 v1, v1, 17, v3
s_lshl_b32 s41, s2, 9
s_add_u32 s41, s41, {WS_KV}
v_add_u32 v1, s41, v1
global_store_dwordx4 v1, v[12:15], {P(sWS)} sc1
s_lshl_b32 s41, s2, 7
s_add_u32 s41, s41, {WS_KEY}
s_lshl_b32 s42, s{sJ}, 7
s_add_u32 s42, s42, {WS_HY - 128}
v_mov_b32 v1, s41
v_mov_b32 v3, s42
v_cmp_gt_u32 vcc, 8, v0
v_cndmask_b32 v1, v3, v1, vcc
v_lshl_add_u32 v1, v0, 4, v1
s_mov_b64 exec, 0xffff
global_store_dwordx4 v1, v[12:15], {P(sWS)} sc1
s_mov_b64 exec, -1
s_waitcnt vmcnt(2)
s_branch R_P1
S_no7:
s_cmp_lg_u32 s{sW}, 4
s_cbranch_scc1 S_no4
v_lshrrev_b32 v1, 2, v0
v_and_b32 v3, 3, v0
v_lshlrev_b32 v3, 6, v3
v_lshl_add_u32 v1, v1, 10, v3
s_lshl_b32 s41, s43, 14
s_lshl_b32 s42, s{sC}, 8
s_add_u32 s41, s41, s42
v_add_u32 v1, s41, v1
global_load_dword v40, v1, {P(sWQ)}
s_lshl_b32 s41, s43, 12
s_lshl_b32 s42, s{sC}, 17
s_add_u32 s41, s41, s42
v_lshl_add_u32 v1, v0, 6, s41
global_load_dword v41, v1, {P(sWO)}
s_branch S_pf
S_no4:
s_cmp_lg_u32 s{sW}, 5
s_cbranch_scc1 S_no5
s_and_b32 s41, s43, 3
s_lshl_b32 s41, s41, 12
v_lshl_add_u32 v1, v0, 6, s41
global_load_dword v40, v1, {P(sWK)}
global_load_dword v41, v1, {P(sWV)}
s_branch S_pf
S_no5:
s_getpc_b64 s[42:43]
s_lshr_b32 s41, s2, 3
s_and_b32 s41, s41, 7
s_min_u32 s41, s41, {CODECH-1}
s_lshl_b32 s41, s41, 12
v_lshl_add_u32 v1, v0, 6, s41
global_load_dword v40, v1, s[42:43]
v_lshlrev_b32 v1, 4, v0
global_load_dwordx4 v[44:47], v1, {P(sWR)}
S_pf:""")
for j in range(8): a(f"global_load_dwordx4 {V(128+4*j,4)}, v48, {P(sWQ)} offset:{1024*j-4096}")
a("s_waitcnt vmcnt(10)")
def key_make():
    a(f"""v_cvt_pk_bf16_f32 v1, 0, v1
    v_ashrrev_i32 v2, 31, v1
    v_or_b32 v2, 0x80000000, v2
    v_xor_b32 v1, v1, v2
    v_and_b32 v1, 0xffff0000, v1
    s_sub_u32 s41, 2047, s{sTOK}
    v_or_b32 v1, s41, v1
    s_lshl_b32 s41, s{sW}, 2
    s_add_u32 s41, s41, {L_SC + SC_KEYS}
    v_mov_b32 v2, s41
    v_readlane_b32 s{sMYK}, v1, 63
    v_mov_b32 v3, {L_SC}
    s_mov_b32 exec_lo, 0
    s_mov_b32 exec_hi, 0x80000000
    ds_write_b32 v2, v1
    s_mov_b64 exec, -1""")
a("R_P1:")
TS(1)
unpack(X_, XR)
ln(X_, D_, T_, XO, [1])
a(f"""s_add_u32 s41, s{sW}, 8
v_xor_b32 v2, s41, v0
s_add_u32 s41, s{sW}, 24
s_lshl_b32 s41, s41, 10
s_add_u32 s41, s41, {L_XN}
v_lshl_add_u32 v2, v2, 4, s41
ds_write_b128 v2, {V(XO,4)}
s_cmp_eq_u32 s{sL}, 0
s_cbranch_scc1 S_l0
s_lshl_b32 s41, s{sTOK}, 10
s_add_u32 s41, s41, {WS_XN}
v_lshl_add_u32 v2, v0, 4, s41
s_waitcnt vmcnt(0)
global_store_dwordx4 v2, {V(XO,4)}, {P(sWS)} sc1""")
key_make()
a(f"""s_cmp_ge_u32 s{sW}, 4
s_cbranch_scc1 H_B1
s_setprio 3""")
a(f"""A_kvp:
v_and_b32 v8, 7, v0
v_add_u32 v8, 8, v8
v_lshrrev_b32 v9, 4, v0
v_xor_b32 v9, v9, v8
v_lshlrev_b32 v8, 10, v8
s_lshl_b32 s41, s{sH}, 8
s_add_u32 s41, s41, {L_XN + 16*1024}
v_add_u32 v8, s41, v8
v_xor_b32 v10, 4, v9
v_xor_b32 v11, 8, v9
v_xor_b32 v12, 12, v9
v_lshl_add_u32 v9, v9, 4, v8
v_lshl_add_u32 v10, v10, 4, v8
v_lshl_add_u32 v11, v11, 4, v8
v_lshl_add_u32 v12, v12, 4, v8
s_cmp_eq_u32 s{sL}, 0
s_cbranch_scc1 A_kv2
s_waitcnt lgkmcnt(0)
s_barrier
A_kv2:
ds_read_b128 v[40:43], v9
ds_read_b128 v[44:47], v10
ds_read_b128 v[48:51], v11
ds_read_b128 v[52:55], v12
s_lshl_b32 s41, s{sH}, 11
s_add_u32 s41, s41, {L_KVS}
v_lshl_add_u32 v8, v0, 4, s41
s_lshl_b32 s42, s{sL}, 2
v_add_u32 v9, s42, v3
v_mov_b32 v10, 1""")
for s in range(4):
    a(f"s_waitcnt lgkmcnt({3-s})")
    a(f"v_mfma_f32_16x16x32_bf16 v[56:59], {V(WKV+8*s,4)}, {V(40+4*s,4)}, {'0' if s==0 else 'v[56:59]'}")
    a(f"v_mfma_f32_16x16x32_bf16 v[60:63], {V(WKV+8*s+4,4)}, {V(40+4*s,4)}, {'0' if s==0 else 'v[60:63]'}")
a(f"""v_and_b32 v12, 1, v0
v_lshrrev_b32 v13, 3, v0
v_lshlrev_b32 v13, 4, v13
v_lshl_add_u32 v12, v12, 10, v13
v_bfe_u32 v13, v0, 1, 2
v_lshl_add_u32 v12, v13, 2, v12
v_add_u32 v12, {L_KVS}, v12
v_bfe_u32 v13, v0, 2, 1
ds_write_b128 v8, v[56:59]
ds_write_b128 v8, v[60:63] offset:1024
s_mov_b64 exec, 1
ds_add_rtn_u32 v11, v9, v10 offset:{SC_KVCNT}
s_mov_b64 exec, -1
v_lshrrev_b32 v14, 5, v0
v_lshlrev_b32 v14, 8, v14
v_lshl_add_u32 v13, v13, 10, v14
v_and_b32 v14, 3, v0
v_lshl_add_u32 v13, v14, 5, v13
v_bfe_u32 v14, v0, 3, 2
v_lshl_add_u32 v13, v14, 2, v13
v_add_u32 v13, {L_KVS + 512}, v13
v_add_u32 v14, 16, v13
s_waitcnt lgkmcnt(0)
v_readfirstlane_b32 s42, v11
s_cmp_lg_u32 s42, 3
s_cbranch_scc1 A_nokv""")
for w in range(4): a(f"ds_read2st64_b32 {V(40+2*w,2)}, v12 offset0:{8*w} offset1:{8*w+1}")
a(f"""ds_read2st64_b32 v[48:49], v13 offset0:0 offset1:8
ds_read2st64_b32 v[50:51], v13 offset0:16 offset1:24
ds_read2st64_b32 v[52:53], v14 offset0:0 offset1:8
ds_read2st64_b32 v[54:55], v14 offset0:16 offset1:24
s_lshl_b32 s41, s{sL}, 17
s_lshl_b32 s42, s{sB}, 9
s_add_u32 s41, s41, s42
s_add_u32 s41, s41, {WS_KV}
v_lshl_add_u32 v8, v0, 2, s41
s_waitcnt lgkmcnt(4)
v_pk_add_f32 v[40:41], v[40:41], v[42:43]
v_pk_add_f32 v[44:45], v[44:45], v[46:47]
v_pk_add_f32 v[40:41], v[40:41], v[44:45]
v_cvt_pk_bf16_f32 v40, v40, v41
global_store_dword v8, v40, {P(sWS)} sc1
s_waitcnt lgkmcnt(0)
v_pk_add_f32 v[48:49], v[48:49], v[50:51]
v_pk_add_f32 v[52:53], v[52:53], v[54:55]
v_add_f32 v48, v48, v49
v_add_f32 v52, v52, v53
v_cvt_pk_bf16_f32 v48, v48, v52
global_store_dword v8, v48, {P(sWS)} offset:256 sc1
A_nokv:
s_setprio 0""")
if not os.environ.get("PP"): TS(2)
def stage(src, off, temps):
    for f in range(8):
        t = temps[f % len(temps)]
        for i in range(4):
            a(f"v_perm_b32 v{t+i}, v{src+4*(2*i+1)+(f>>1)}, v{src+4*(2*i)+(f>>1)}, s{sHI if f&1 else sLO}")
        a(f"ds_write_b128 v1, {V(t,4)} offset:{off+1024*f}")
a(f"""s_cmp_lg_u32 s{sL}, 0
s_cbranch_scc1 R_cand
s_mov_b32 s45, 6
s_branch S_fl
S_l0:
v_mov_b32 v3, {L_SC}
s_waitcnt lgkmcnt(0)
s_mul_i32 s{sTAG}, s{sE}, 0x9e3779b1
s_add_u32 s{sTAG}, s{sTAG}, 0x7f4a7c15
s_cmp_ge_u32 s{sW}, 4
s_cbranch_scc1 H_stage""")
lds_inc(3, SC_B1, 8)
a(f"""s_mov_b32 s44, 0
s_mov_b32 s45, {NPRE}
s_waitcnt vmcnt(36)
S_fl:""")
unpack(X_, FOR)
ln(X_, D_, T_, XO)
a(f"""s_lshl_b32 s41, s44, 2
s_add_u32 s41, s41, s{sH}
s_and_b32 s42, s41, 15
v_xor_b32 v1, s42, v0
s_lshl_b32 s41, s41, 10
s_add_u32 s41, s41, {L_XN}
v_lshl_add_u32 v1, v1, 4, s41
ds_write_b128 v1, {V(XO,4)}
s_add_u32 s44, s44, 1
s_cmp_lt_u32 s44, {NPRE}
s_cbranch_scc1 S_f1
s_waitcnt vmcnt(2)
s_cmp_lg_u32 s44, {NPRE}
s_cbranch_scc1 S_f2
s_waitcnt vmcnt(0)
S_f2:
s_lshl_b32 s41, s44, 2
s_set_gpr_idx_on s41, gpr_idx(SRC0)
s_nop 1
v_mov_b32 v{FOR}, v{FOR}
v_mov_b32 v{FOR+1}, v{FOR+1}
v_mov_b32 v{FOR+2}, v{FOR+2}
v_mov_b32 v{FOR+3}, v{FOR+3}
s_nop 1
s_set_gpr_idx_off
s_branch S_f3
S_f1:
v_mov_b64 {V(FOR,2)}, {V(FOR+4,2)}
v_mov_b64 {V(FOR+2,2)}, {V(FOR+6,2)}
S_f3:
s_cmp_lt_u32 s44, s45
s_cbranch_scc1 S_fl
s_cmp_eq_u32 s45, 6
s_cbranch_scc1 A_nst""")
for s in range(4):
    for i in range(4): tr_pair(WKV+8*s+i, WKV+8*s+4+i, 8)
lds_wait(3, SC_B1, 8, 8, 0)
a(f"""s_branch A_kvp
A_nst:""")
TSA(27)
a(f"""s_cmp_lg_u32 s{sH}, s{sC}
s_cbranch_scc1 A_P2x""")
wkv_addr(1)
for i in range(8): a(f"global_store_dwordx4 v1, {V(WKV+4*i,4)}, {P(sWS)} offset:{1024*i-4096} sc1")
a(f"""A_P2x:
s_branch A_P2
H_B1:
s_waitcnt lgkmcnt(0)
s_barrier
s_setprio 2""")
a(f"""R_cand:
ds_read_b128 v[8:11], v3 offset:{SC_KEYS}
ds_read_b128 v[12:15], v3 offset:{SC_KEYS+16}
s_lshl_b32 s41, s{sF}, 19
s_lshl_b32 s42, s{sB}, 11
s_add_u32 s41, s41, s42
s_add_u32 s41, s41, {WS_CAND}
v_lshl_add_u32 v2, v0, 4, s41
s_lshl_b32 s41, s{sB}, 7
s_lshl_b32 s42, s{sF}, 2
s_add_u32 s41, s41, s42
s_add_u32 s41, s41, {WS_KEY}
v_mov_b32 v16, s41
s_waitcnt lgkmcnt(0)
v_max3_u32 v8, v8, v9, v10
v_max3_u32 v12, v12, v13, v14
v_max3_u32 v8, v8, v11, v15
v_max_u32 v8, v8, v12
v_readfirstlane_b32 s41, v8
s_mov_b32 s{sCAND}, 0
s_cmp_lg_u32 s41, s{sMYK}
s_cbranch_scc1 R_nocand
s_mov_b32 s{sCAND}, 1
s_mov_b64 exec, 1
global_store_dword v16, v8, {P(sWS)} sc1
s_mov_b64 exec, -1
global_store_dwordx4 v2, {V(XN,4)}, {P(sWS)} sc1
global_store_dwordx4 v2, {V(X1,4)}, {P(sWS)} offset:1024 sc1
R_nocand:""")
TSF(8)
a(f"""s_cmp_lg_u32 s{sF}, 0
s_cbranch_scc1 R_tail
s_cmp_ge_u32 s{sW}, 4
s_cbranch_scc1 H_gather""")
def key_reduce():
    dpp_reduce([8], "v_max_u32")
    a(f"""s_lshl_b32 s41, s{sF}, 4
    s_lshl_b32 s42, s{sH}, 2
    s_add_u32 s41, s41, s42
    v_add_u32 v9, s41, v3
    v_add_u32 v8, 1, v8
    s_mov_b32 exec_lo, 0
    s_mov_b32 exec_hi, 0x80000000
    ds_write_b32 v9, v8 offset:{SC_GK}
    s_mov_b64 exec, -1""")
def key_poll():
    l1 = a.newlabel("K_p")
    a(f"""s_lshl_b32 s42, s{sF}, 2
    s_lshl_b32 s41, s{sH}, 13
    s_add_u32 s42, s42, s41
    s_add_u32 s42, s42, {WS_KEY}
    v_lshl_add_u32 v9, v0, 7, s42
    s_mov_b32 s{sCNT}, 0
    {l1}:
    global_load_dword v8, v9, {P(sWS)} sc1
    s_waitcnt vmcnt(0)
    v_cmp_eq_u32 vcc, -1, v8""")
    poll_guard(l1, "s_cbranch_vccz", "K_pd")
    key_reduce()
def key_get(sleep):
    l2 = a.newlabel("K_g")
    a(f"""s_lshl_b32 s41, s{sF}, 4
    v_add_u32 v10, s41, v3
    s_mov_b32 s{sCNT}, 0
    {l2}:""")
    a(f"""ds_read_b128 v[16:19], v10 offset:{SC_GK}
    s_waitcnt lgkmcnt(0)
    v_min3_u32 v8, v16, v17, v18
    v_min_u32 v8, v8, v19
    v_cmp_eq_u32 vcc, 0, v8""")
    poll_guard(l2, "s_cbranch_vccz", "K_gd", 8, sleep)
    a(f"""v_max3_u32 v8, v16, v17, v18
    v_max_u32 v8, v8, v19
    v_readfirstlane_b32 s{sKEY}, v8
    s_sub_u32 s{sKEY}, s{sKEY}, 1
    s_and_b32 s41, s{sKEY}, 0x7ff
    s_sub_u32 s{sSEL}, 2047, s41""")
a(f"""A_P2:
s_lshl_b32 s42, s{sL}, 2
v_add_u32 v9, s42, v3""")
lds_inc(9, SC_XNC, 8)
a(f"""s_lshl_b32 s41, s{sL}, 17
s_lshl_b32 s42, s{sH}, 15
s_add_u32 s41, s41, s42
s_add_u32 s41, s41, {WS_KV}
s_add_u32 s41, s41, 2048
v_bfe_u32 v14, v0, 3, 2
v_and_b32 v15, 7, v0
v_lshlrev_b32 v15, 5, v15
v_lshl_add_u32 v14, v14, 9, v15
v_lshrrev_b32 v11, 5, v0
v_lshl_add_u32 v14, v11, 4, v14
v_add_u32 v14, s41, v14
v_and_b32 v15, 15, v0
v_lshlrev_b32 v15, 4, v15
v_lshl_add_u32 v15, v11, 9, v15
s_add_u32 s41, s41, 256
v_add_u32 v15, s41, v15
s_mov_b32 s{sORD}, 0x65432108
s_mov_b32 s{sORD+1}, 0x7
s_mov_b32 s{sWT}, 15
s_lshl_b32 s41, s{sH}, 13
s_cmp_eq_u32 s{sL}, 0
s_cselect_b32 s42, {WS_FLAG}, 0
s_cselect_b32 s43, 0, {WS_KEY}
s_add_u32 s41, s41, s42
s_add_u32 s41, s41, s43
v_lshl_add_u32 v10, v0, 7, s41
s_cmp_lg_u32 s{sL}, 0
s_cbranch_scc1 A_nfl
s_mov_b32 s{sCNT}, 0
A_flg:
global_load_dword v8, v10, {P(sWS)} sc1
s_waitcnt vmcnt(0)
v_cmp_ne_u32 vcc, s{sTAG}, v8""")
poll_guard("A_flg", "s_cbranch_vccz", "A_flgd", 1, 2)
a("A_nfl:")
lds_wait(9, SC_XNC, 8, 8, 1)
TS(3)
def kv_pair(p):
    a(f"""s_add_u32 s0, s{sWS}, {0x1000*p}
    s_addc_u32 s1, s{sWS+1}, 0""")
    for k in range(2):
        a(f"global_load_dwordx4 {V(KK+8*p+4*k,4)}, v14, s[0:1] offset:{2048*k-2048} sc1")
    a("s_mov_b64 exec, s[98:99]")
    for i in range(4):
        a(f"global_load_dwordx4 {V(VV+16*p+4*i,4)}, v15, s[0:1] offset:{1024*i-2048} sc1")
    a("s_mov_b64 exec, -1")
def kv_check(p, younger):
    fr = [KK+8*p, KK+8*p+4] + [VV+16*p+4*i for i in range(4)]
    a(f"""s_waitcnt vmcnt({younger})
    C_r{p}:
    v_max3_u32 v12, v{fr[0]}, v{fr[1]}, v{fr[2]}
    v_max3_u32 v13, v{fr[3]}, v{fr[4]}, v{fr[5]}
    v_max_u32 v12, v12, v13
    v_cmp_eq_u32 vcc, -1, v12
    s_cbranch_vccnz C_x{p}
    C_o{p}:
    s_cmp_eq_u32 s3, {p}
    s_cbranch_scc1 C_m{p}
    C_b{p}:""")
def kv_tail(p):
    a(f"""C_x{p}:
    s_add_u32 s{sCNT}, s{sCNT}, 1
    s_cmp_ge_u32 s{sCNT}, {POLLMAX}
    s_cbranch_scc1 C_o{p}""")
    kv_pair(p)
    a(f"""s_waitcnt vmcnt(0)
    s_branch C_r{p}
    C_m{p}:
    v_mov_b32 v12, s5
    s_mov_b64 exec, s[6:7]
    s_set_gpr_idx_on s4, gpr_idx(SRC0,DST)
    s_nop 1
    v_and_b32 v{VV}, v{VV}, v12
    s_nop 1
    s_set_gpr_idx_off
    s_mov_b64 exec, -1
    s_nop 1
    s_branch C_b{p}""")
DEP = 3
a("s_mov_b32 s98, 0xffff\ns_mov_b32 s99, 0xffff")
for p in range(DEP): kv_pair(p)
a(f"""s_mov_b32 s3, 15
s_cmp_eq_u32 s{sL}, 0
s_cbranch_scc1 A_go
s_mov_b32 s{sCNT}, 0
A_kp:
global_load_dword v8, v10, {P(sWS)} sc1
s_waitcnt vmcnt(0)
v_cmp_eq_u32 vcc, -1, v8""")
poll_guard("A_kp", "s_cbranch_vccz", "A_kpd", 1, 1)
key_reduce()
key_get(0)
a(f"""s_bfe_u32 s4, s{sSEL}, 0x50004
s_lshl_b32 s4, s4, 2
s_bfe_u32 s42, s{sSEL}, 0x20001
s_add_u32 s4, s4, s42
s_bitcmp1_b32 s{sSEL}, 0
s_mov_b32 s5, 0xffff0000
s_cselect_b32 s5, 0xffff, s5
s_bitcmp1_b32 s{sSEL}, 3
s_cselect_b32 s6, 0, -1
s_cselect_b32 s7, -1, 0
s_lshr_b32 s41, s{sSEL}, 9
s_bfe_u32 s42, s{sSEL}, 0x30006
s_cmp_eq_u32 s41, s{sH}
s_cselect_b32 s3, s42, 15
s_xor_b32 s41, s{sSEL}, s{sTOK}
s_lshr_b32 s41, s41, 5
s_cbranch_scc1 A_go
s_lshl_b32 s41, s{sC}, 3
s_sub_u32 s41, s{sSEL}, s41
s_sub_u32 s41, s41, 8
s_bfe_u32 s{sWT}, s41, 0x30002
s_or_b32 s41, s{sWT}, 1
s_max_u32 s41, s41, 4
s_xor_b32 s42, s41, s{sWT}
s_mov_b32 s43, 0
s_lshl_b32 s41, s41, 2
s_add_u32 s41, s41, 4
s_lshl_b64 s[44:45], s[42:43], s41
s_xor_b64 {P(sORD)}, {P(sORD)}, s[44:45]
s_lshl_b32 s41, s{sWT}, 2
s_add_u32 s41, s41, 4
s_lshl_b64 s[44:45], s[42:43], s41
s_xor_b64 {P(sORD)}, {P(sORD)}, s[44:45]
A_go:
s_lshl_b32 s42, s{sL}, 2
v_add_u32 v9, s42, v3""")
def att_addr():
    a(f"""v_bfe_u32 v1, v0, 3, 2
    v_mul_u32_u24 v1, {QSTR}, v1
    v_and_b32 v2, 7, v0
    v_lshl_add_u32 v1, v2, 5, v1
    v_lshrrev_b32 v2, 5, v0
    v_lshl_add_u32 v1, v2, 4, v1
    v_add_u32 v{vQA}, {L_Q}, v1
    s_lshl_b32 s41, s{sH}, 11
    s_add_u32 s41, s41, {L_SLOT}
    v_lshl_add_u32 v{vOA}, v0, 4, s41
    v_mov_b32 v{vIDX}, 0xdddddddd
    v_and_b32 v0, 31, v0
    s_lshl_b32 s41, s{sH}, 7
    s_add_u32 s41, s41, {L_L}
    v_lshl_add_u32 v0, v0, 2, s41""")
att_addr()
a(f"s_mov_b32 s{sCNT}, 0")
kv_check(0, 6*(DEP-1))
TS(4)
lds_wait(9, SC_QC, 10, 4, 0)
a(f"""s_bfe_u32 s41, s{sORD}, 0x40004
s_mul_i32 s41, s41, {4*QSTR}
v_add_u32 v{Q}, s41, v{vQA}
ds_read_b128 {V(Q,4)}, v{Q}
s_mov_b32 s{sCNT}, 0""")
for i in range(0, 10, 2): a(f"v_mov_b64 {V(ACC+i,2)}, 0")
TS(5)
TC(0)
def smf(vfrag, pb): a(f"v_smfmac_f32_32x32x32_bf16 {V(ACC,16)}, {V(VV+4*vfrag,4)}, {V(pb,8)}, v{vIDX}")
def ex(base, lo, hi):
    for i in range(lo, hi): a(f"v_exp_f32 v{base+i}, v{base+i}")
def flush():
    a(f"""v_lshl_add_u32 v{ACC+10}, s41, 13, v{vOA}
    v_lshl_add_u32 v{ACC+11}, s41, 9, v0
    ds_write_b128 v{ACC+10}, {V(ACC,4)}
    ds_write_b128 v{ACC+10}, {V(ACC+4,4)} offset:1024
    ds_write_b32 v{ACC+11}, v{ACC+8}""")
a(f"""s_waitcnt lgkmcnt(0)
v_mfma_f32_32x32x16_bf16 {V(S0,16)}, {V(KK,4)}, {V(Q,4)}, 0""")
NT = 16
def att_pass(first):
    for kt in range(NT):
        cur, oth = (S0, S1) if kt % 2 == 0 else (S1, S0)
        if first and kt % 2 == 0 and kt//2 + DEP < 8:
            kv_pair(kt//2 + DEP)
            if kt//2 + DEP == 7:
                a(f"v_mov_b32 v12, {L_SC}")
                lds_inc(12, SC_KVD, 13)
        ex(cur, 0, 2)
        if not (first and kt == 0): smf((2*kt - 1) % (2*NT), oth + 8)
        ex(cur, 2, 5)
        if kt == NT-1: a("s_waitcnt lgkmcnt(0)")
        if first and kt % 2 == 1 and kt < NT-1:
            p = (kt+1)//2
            kv_check(p, 6*(min(kt//2 + DEP, 7) - p))
        a(f"v_mfma_f32_32x32x16_bf16 {V(oth,16)}, {V(KK+4*((kt+1)%NT),4)}, {V(Q,4)}, 0")
        if kt == NT-2:
            a(f"s_bfe_u32 s41, s{sORD}, 0x40008")
            if not first:
                a(f"""s_cmp_eq_u32 s41, s{sWT}
                s_cbranch_scc1 A_qwait
                A_qback:""")
            a(f"""s_mul_i32 s41, s41, {4*QSTR}
            v_add_u32 v{Q}, s41, v{vQA}
            ds_read_b128 {V(Q,4)}, v{Q}""")
        if kt == 0 and not first:
            a(f"s_and_b32 s41, s{sORD}, 15")
            ex(cur, 5, 12)
            flush()
            a(f"v_mfma_f32_32x32x8_f16 {V(ACC,16)}, {V(ZZ,2)}, {V(ZZ,2)}, 0")
            ex(cur, 12, 15)
            smf(0, cur)
            ex(cur, 15, 16)
        else:
            ex(cur, 5, 10)
            smf(2*kt, cur)
            ex(cur, 10, 16)
att_pass(True)
a(f"""v_mov_b64 {V(ZZ,2)}, 0
s_lshr_b64 {P(sORD)}, {P(sORD)}, 4""")
if not os.environ.get('PP'): TS(12)
if TSON:
    a(f"""s_cmp_eq_u32 s{sL}, 0
    s_cselect_b32 s73, s{sCNT}, s73
    s_cselect_b32 s89, s89, s{sCNT}""")
a("A_pass:")
if os.environ.get("PP"): a("s_memtime s[96:97]")
att_pass(False)
if os.environ.get("PP"):
    a(f"""s_cmp_lg_u32 s{sL}, {os.environ.get("PP")}
    s_cbranch_scc1 A_ppx""")
    for d, q in ((86, 87), (87, 88), (88, 74), (74, 70), (70, 71), (71, 62), (62, 96)): a(f"s_mov_b32 s{d}, s{q}")
    a("A_ppx:")
a(f"""s_lshr_b64 {P(sORD)}, {P(sORD)}, 4
s_cmp_gt_u32 s{sORD}, 15
s_cbranch_scc1 A_pass""")
smf(2*NT-1, S1 + 8)
a(f"s_and_b32 s41, s{sORD}, 15")
flush()
TC(1)
TS(9)
a(f"""A_X:
v_mbcnt_lo_u32_b32 v0, -1, 0
v_mbcnt_hi_u32_b32 v0, -1, v0
s_waitcnt lgkmcnt(0)
s_barrier""")
TS(6)
a(f"""v_mov_b32 v9, {L_SC}
s_barrier
ds_read_b32 v9, v9 offset:{SC_BAD}""")
wkv_addr(1)
a(f"""s_waitcnt lgkmcnt(0)
v_cmp_ne_u32 vcc, 0, v9
s_cbranch_vccnz A_slow
s_cmp_lg_u32 s{sL}, 0
s_cbranch_scc1 R_P4""")
for i in range(8): a(f"global_load_dwordx4 {V(WKV+4*i,4)}, v1, {P(sWS)} offset:{1024*i-4096} sc1")
a(f"""R_P4:
v_lshrrev_b32 v1, 4, v0
v_and_b32 v2, 15, v0
v_lshlrev_b32 v2, 4, v2
v_lshl_add_u32 v1, v1, 9, v2
s_lshl_b32 s41, s{sW}, 11
s_add_u32 s41, s41, {L_ROW}
v_add_u32 v1, s41, v1
s_mov_b32 s{sF}, s{sL}
s_mov_b32 s{sSLOW}, 0
v_lshlrev_b32 v2, 4, v0
v_add_u32 v2, {L_X2S}, v2
ds_read_b128 {V(WR,4)}, v2 offset:{L_SC + SC_WR - L_X2S}
s_cmp_lg_u32 s{sSEL}, s{sTOK}
s_cbranch_scc1 R_nx
ds_read_b128 {V(XR,4)}, v2
s_waitcnt lgkmcnt(0)
R_nx:""")
unpack(24, XR)
a(f"""s_barrier
ds_read_b128 v[8:11], v1
ds_read_b128 v[12:15], v1 offset:256
ds_read_b128 v[16:19], v1 offset:16384
ds_read_b128 v[20:23], v1 offset:16640
s_waitcnt lgkmcnt(0)""")
TS(7)
pkadd(8, 8, 16, 8)
pack(16, 8); unpack(8, 16)
pkadd(8, 8, 24, 8)
pack(X1, 8)
unpack(X_, X1)
ln(X_, D_, T_, XN)
a(f"""v_dot2_f32_bf16 v1, v{XN}, v{WR}, 0
v_dot2_f32_bf16 v1, v{XN+1}, v{WR+1}, v1
v_dot2_f32_bf16 v1, v{XN+2}, v{WR+2}, v1
v_dot2_f32_bf16 v1, v{XN+3}, v{WR+3}, v1""")
unpack(D_, XN)
pkadd(D_, D_, X_, 8)
pack(XR, D_)
a(f"""s_cmp_eq_u32 s{sL}, 0
s_mov_b32 s{sL}, 1
s_cbranch_scc1 R_P1""")
dpp_reduce([1])
key_make()
a(f"""s_waitcnt lgkmcnt(0)
s_barrier
s_branch R_cand
R_tail:
s_lshl_b32 s41, s{sTOK}, 10
v_lshl_add_u32 v1, v0, 4, s41
s_cmp_lg_u32 s{sCAND}, 0
s_cbranch_scc1 R_noout
global_store_dwordx4 v1, {V(XR,4)}, {P(sOUT)}
R_noout:
s_cmp_ge_u32 s{sW}, 4
s_cbranch_scc1 H_FFN""")
key_poll()
a(f"""s_cmp_eq_u32 s{sCAND}, 0
s_cbranch_scc1 L_end""")
key_get(1)
a(f"""R_last:
s_cmp_eq_u32 s{sCAND}, 0
s_cbranch_scc1 L_end
s_cmp_eq_u32 s{sSEL}, s{sTOK}
s_cbranch_scc1 L_end
s_lshl_b32 s41, s{sTOK}, 10
v_lshl_add_u32 v1, v0, 4, s41
global_store_dwordx4 v1, {V(XR,4)}, {P(sOUT)}
s_branch L_end
A_qwait:
v_mov_b32 v14, {L_SC}""")
lds_wait(14, SC_QFIX, 15, 4, 1)
a(f"""s_mov_b32 s{sWT}, 15
s_branch A_qback""")
for p in range(8): kv_tail(p)

a(f"""H_stage:
s_cmp_lg_u32 s{sW}, 7
s_cbranch_scc1 H_st7
s_lshl_b32 s41, s{sB}, 7
s_add_u32 s41, s41, {WS_FLAG}
v_mov_b32 v1, s41
v_mov_b32 v2, s{sTAG}
s_waitcnt vmcnt(0)
s_mov_b64 exec, 1
global_store_dword v1, v2, {P(sWS)} sc1
s_mov_b64 exec, -1""")
lds_inc(3, SC_B1, 8)
for j in range(8): a(f"global_load_dwordx4 {V(128+4*j,4)}, v48, {P(sWQ)} offset:{1024*j-4096}")
a("v_add_u32 v48, 0x8000, v48")
for j in range(8): a(f"global_load_dwordx4 {V(160+4*j,4)}, v48, {P(sWQ)} offset:{1024*j-4096}")
a("s_branch H_st1\nH_st7:")
lds_inc(3, SC_B1, 8)
for s in (1, 2, 3):
    a("v_add_u32 v48, 0x8000, v48")
    for j in range(8): a(f"global_load_dwordx4 {V(128+32*s+4*j,4)}, v48, {P(sWQ)} offset:{1024*j-4096}")
a(f"""H_st1:
s_lshl_b32 s41, s{sH}, 2
s_lshl_b32 s42, s{sC}, 8
s_add_u32 s41, s41, s42
s_add_u32 s41, s41, {448*1024+4096}
v_add_u32 v2, s41, v49
v_add_u32 v3, 0x8000, v2""")
for s in range(2):
    for j in range(8):
        a(f"global_load_dword v{WQR+48+8*s+4*(j&1)+(j>>1)}, v{2+s}, {P(sWQ)} offset:{1024*j-4096}")
a(f"""s_setprio 2
s_lshl_b32 s41, s{sH}, 15
v_lshl_add_u32 v1, v0, 4, s41
s_cmp_lg_u32 s{sH}, 3
s_cbranch_scc1 H_st2
s_waitcnt vmcnt(16)
H_st2:""")
TSA(26)
for s in range(4):
    if s == 2: a(f"s_cmp_eq_u32 s{sH}, 3\ns_cbranch_scc1 H_st3")
    a(f"s_waitcnt vmcnt({40-8*s})")
    stage(128+32*s, 8192*s, [8, 12, 16, 20, 24, 28, 32, 36])
a(f"""H_st3:
s_cmp_lg_u32 s{sW}, 6
s_cbranch_scc1 H_st0
v_lshlrev_b32 v1, 4, v0
v_add_u32 v1, {L_SC + SC_WR}, v1
ds_write_b128 v1, v[44:47]
H_st0:
s_waitcnt vmcnt(0)""")
for s in range(2):
    for i in range(4): tr_pair(WQR+48+8*s+i, WQR+48+8*s+4+i, 40)
TSA(4)
a("s_branch H_P2")
a("H_gather:")

for g in range(3):
    a(f"s_add_u32 s44, s{sH}, {8*g}")
    pos2tok(41, 44)
    a(f"""s_lshl_b32 s41, s41, 10
    s_add_u32 s41, s41, {WS_XN + 2048}
    v_lshl_add_u32 v{8+g}, v0, 4, s41""")
a(f"""v_xor_b32 v12, s{sH}, v0
v_xor_b32 v13, 4, v12
v_xor_b32 v14, 8, v12
v_xor_b32 v15, 12, v12
s_lshl_b32 s41, s{sH}, 10
s_add_u32 s41, s41, {L_XN}
v_lshl_add_u32 v12, v12, 4, s41
v_lshl_add_u32 v13, v13, 4, s41
v_lshl_add_u32 v14, v14, 4, s41
v_lshl_add_u32 v15, v15, 4, s41
s_mov_b32 s{sCNT}, 0
H_xg:""")
for i in range(6): a(f"global_load_dwordx4 {V(40+4*i,4)}, v{8+(i>>1)}, {P(sWS)} offset:{4096*(i&1)-2048} sc1")
a(f"""s_waitcnt vmcnt(0)
v_max3_u32 v16, v40, v44, v48
v_max3_u32 v17, v52, v56, v60
v_max_u32 v16, v16, v17
v_cmp_eq_u32 vcc, -1, v16""")
poll_guard("H_xg", "s_cbranch_vccz", "H_xgd")
for i in range(6): a(f"ds_write_b128 v{12+(i&3)}, {V(40+4*i,4)} offset:{4096*i}")
a(f"""H_P2:
s_lshl_b32 s42, s{sL}, 2
s_add_u32 s42, s42, {L_SC}
v_mov_b32 v3, s42""")
lds_inc(3, SC_XNC, 12)
a(f"""v_and_b32 v1, 15, v0
v_lshrrev_b32 v2, 4, v0
v_xor_b32 v8, v2, v1
v_lshlrev_b32 v1, 10, v1
v_add_u32 v1, {L_XN}, v1
v_xor_b32 v9, 4, v8
v_xor_b32 v10, 8, v8
v_xor_b32 v11, 12, v8
v_lshl_add_u32 v8, v8, 4, v1
v_lshl_add_u32 v9, v9, 4, v1
v_lshl_add_u32 v10, v10, 4, v1
v_lshl_add_u32 v11, v11, 4, v1
s_lshl_b32 s41, s{sH}, 11
v_lshl_add_u32 v1, v0, 4, s41
v_add_u32 v2, 0x10000, v1""")
lds_wait(3, SC_XNC, 12, 8, 0)
TS(3)
a(f"""s_cmp_lg_u32 s{sL}, 0
s_cbranch_scc1 H_qp""")
for s in range(6):
    for f in range(2): a(f"ds_read_b128 {V(WQR+8*s+4*f,4)}, v2 offset:{8192*s+1024*f}")
a("s_waitcnt lgkmcnt(0)\nH_qp:")
order = [14, 0, 15, 1, 8, 2, 9, 3, 10, 4, 11, 5, 12, 6, 13, 7]
def qread(idx):
    s = order[idx]; b = 28 + 16*(idx % 2)
    a(f"ds_read_b128 {V(b,4)}, v{8+(s&3)} offset:{256*(s>>2)}")
    a(f"ds_read_b128 {V(b+4,4)}, v{8+(s&3)} offset:{256*(s>>2)+16384}")
    if s < 8:
        a(f"ds_read_b128 {V(b+8,4)}, v1 offset:{8192*s}")
        a(f"ds_read_b128 {V(b+12,4)}, v1 offset:{8192*s+1024}")
    return 4 if s < 8 else 2
qread(0)
for idx in range(16):
    n = qread(idx+1) if idx + 1 < 16 else 0
    a(f"s_waitcnt lgkmcnt({n})")
    s = order[idx]; b = 28 + 16*(idx % 2)
    for f in range(2):
        A_ = V(b+8+4*f,4) if s < 8 else V(WQR+8*(s-8)+4*f,4)
        for nt in range(2):
            d = V(12+8*f+4*nt,4)
            a(f"v_mfma_f32_16x16x32_bf16 {d}, {A_}, {V(b+4*nt,4)}, {'0' if idx==0 else d}")
a(f"""v_and_b32 v1, 15, v0
v_mul_u32_u24 v1, {QSTR}, v1
v_lshrrev_b32 v2, 4, v0
v_lshl_add_u32 v1, v2, 6, v1
s_lshl_b32 s41, s{sH}, 3
s_add_u32 s41, s41, {L_Q}
v_add_u32 v1, s41, v1
s_mov_b32 s41, {QSCALE}""")
for i in range(16): a(f"v_mul_f32 v{12+i}, s41, v{12+i}")
for nt in range(2):
    for hh in range(2):
        for f in range(2):
            a(f"v_cvt_pk_bf16_f32 v{28+4*nt+2*hh+f}, v{12+8*f+4*nt+2*hh}, v{12+8*f+4*nt+2*hh+1}")
a(f"""ds_write_b64 v1, v[28:29]
ds_write_b64 v1, v[30:31] offset:32
ds_write_b64 v1, v[32:33] offset:{16*QSTR}
ds_write_b64 v1, v[34:35] offset:{16*QSTR+32}""")
lds_inc(3, SC_QC, 12)
TS(2)
a(f"""s_cmp_eq_u32 s{sL}, 0
s_cbranch_scc1 H_prep
v_mov_b32 v3, {L_SC}
s_branch H_FFN
H_prep:""")
lds_wait(3, SC_KVD, 12, 4, 4)
a(f"""v_and_b32 v1, 15, v0
v_lshrrev_b32 v2, 4, v0
v_lshlrev_b32 v1, 4, v1
v_lshl_add_u32 v1, v2, 13, v1
s_lshl_b32 s41, s{sC}, 17
s_lshl_b32 s42, s{sH}, 8
s_add_u32 s41, s41, s42
s_add_u32 s41, s41, 4096
v_add_u32 v1, s41, v1""")
def wosrc(s): return 8 if s == 0 else WO + 32*(s-1)
for s in range(4):
    for j in range(8):
        a(f"global_load_dwordx4 {V(wosrc(s)+4*j,4)}, v1, {P(sWO)} offset:{1024*j-4096}")
    if s < 3: a("v_add_u32 v1, 0x8000, v1")
a(f"""s_min_u32 s43, s{sB}, 223
s_lshl_b32 s43, s43, 2
s_add_u32 s43, s43, s{sH}
s_and_b32 s44, s43, 31
s_lshr_b32 s45, s43, 5
v_lshrrev_b32 v2, 3, v0
v_and_b32 v3, 7, v0
s_mul_i32 s41, s44, {8*7168}
s_lshl_b32 s42, s45, 7
s_add_u32 s41, s41, s42
v_mul_u32_u24 v1, 7168, v2
v_lshl_add_u32 v1, v3, 4, v1
v_add_u32 v1, s41, v1
global_load_dwordx4 {V(GU,4)}, v1, {P(sWG)}
global_load_dwordx4 {V(GU+4,4)}, v1, {P(sWG)} offset:3584
global_load_dwordx4 {V(GU+8,4)}, v1, {P(sWU)}
global_load_dwordx4 {V(GU+12,4)}, v1, {P(sWU)} offset:3584
s_lshl_b32 s41, s45, 16
s_lshl_b32 s42, s44, 5
s_add_u32 s41, s41, s42
s_add_u32 s41, s41, 4096
v_lshlrev_b32 v1, 13, v2
v_lshl_add_u32 v1, v3, 2, v1
v_add_u32 v1, s41, v1""")
for r in range(8): a(f"global_load_dword v{WDn + 4*(r&1) + (r>>1)}, v1, {P(sWD)} offset:{1024*r-4096}")
a("s_waitcnt vmcnt(12)")
for s in (3, 2, 1, 0):
    src = wosrc(s); dst = WO + 32*s
    for f in range(8):
        for i in range(4):
            a(f"v_perm_b32 v{dst+4*f+i}, v{src+4*(2*i+1)+(f>>1)}, v{src+4*(2*i)+(f>>1)}, s{sHI if f&1 else sLO}")
a(f"""v_mov_b32 v8, -1
v_mov_b32 v9, -1
v_mov_b32 v10, -1
v_mov_b32 v11, -1
s_lshl_b32 s41, s{sB}, 13
s_lshl_b32 s42, s{sH}, 11
s_add_u32 s41, s41, s42
s_add_u32 s41, s41, {WS_XN}
v_lshl_add_u32 v1, v0, 4, s41
global_store_dwordx4 v1, v[8:11], {P(sWS)} sc1
global_store_dwordx4 v1, v[8:11], {P(sWS)} offset:1024 sc1
s_lshr_b32 s41, s{sH}, 1
s_lshl_b32 s41, s41, 19
s_and_b32 s42, s{sH}, 1
s_lshl_b32 s42, s42, 10
s_add_u32 s41, s41, s42
s_lshl_b32 s42, s{sB}, 11
s_add_u32 s41, s41, s42
s_add_u32 s41, s41, {WS_CAND}
v_lshl_add_u32 v1, v0, 4, s41
global_store_dwordx4 v1, v[8:11], {P(sWS)} sc1
s_cmp_ge_u32 s{sB}, 224
s_cbranch_scc1 H_bursts
s_waitcnt vmcnt(3)""")
for base in (GU, GU+8, WDn):
    for i in range(4): tr_pair(base+i, base+4+i, 12)
a(f"""v_lshlrev_b32 v2, 4, v2
v_lshl_add_u32 v2, v3, 15, v2
s_lshl_b32 s41, s45, 18
s_lshr_b32 s42, s44, 3
s_lshl_b32 s42, s42, 13
s_add_u32 s41, s41, s42
s_and_b32 s42, s44, 7
s_lshl_b32 s42, s42, 7
s_add_u32 s41, s41, s42
s_add_u32 s41, s41, {WS_FS}
v_add_u32 v1, s41, v2""")
for i in range(4): a(f"global_store_dwordx4 v1, {V(GU+4*i,4)}, {P(sWS)} offset:{1024*i} sc1")
a(f"""s_lshl_b32 s41, s44, 18
s_lshr_b32 s42, s45, 3
s_lshl_b32 s42, s42, 13
s_add_u32 s41, s41, s42
s_and_b32 s42, s45, 7
s_lshl_b32 s42, s42, 7
s_add_u32 s41, s41, s42
s_add_u32 s41, s41, {WS_FS + 4096}
v_add_u32 v1, s41, v2""")
for i in range(2): a(f"global_store_dwordx4 v1, {V(WDn+4*i,4)}, {P(sWS)} offset:{1024*i} sc1")
a("H_bursts:")
TS(5)
OF, AC = 8, 32
sSB, sLB = 44, 45
a(f"""s_lshr_b32 s41, s{sH}, 1
s_and_b32 s42, s{sH}, 1
s_lshl_b32 s{sSB}, s41, 13
s_lshl_b32 s43, s42, 10
s_add_u32 s{sSB}, s{sSB}, s43
s_add_u32 s{sSB}, s{sSB}, {L_SLOT}
s_lshl_b32 s{sLB}, s41, 9
s_add_u32 s{sLB}, s{sLB}, {L_L}
v_bfe_u32 v3, v0, 3, 2
v_mul_u32_u24 v3, {QSTR}, v3
v_and_b32 v8, 7, v0
v_lshl_add_u32 v3, v8, 5, v3
s_mul_i32 s43, s41, {4*QSTR}
s_add_u32 s43, s43, {L_O}
v_add_u32 v3, s43, v3
v_and_b32 v2, 15, v0
v_mul_u32_u24 v2, {QSTR}, v2
v_lshrrev_b32 v8, 4, v0
v_lshl_add_u32 v2, v8, 4, v2
v_add_u32 v2, {L_O}, v2
s_mul_i32 s{sOPB}, s{sL}, {OPL}
s_lshl_b32 s41, s{sH}, 12
s_add_u32 s{sOPB}, s{sOPB}, s41
s_add_u32 s{sOPB}, s{sOPB}, {WS_OP}
s_add_u32 s{sOTAG}, s{sTAG}, s{sL}
s_add_u32 s{sOTAG}, s{sOTAG}, 1""")
def corr(g):
    l0 = a.newlabel("H_c0"); l1 = a.newlabel("H_c1")
    a(f"""s_andn2_b32 s41, s{sL}, s{sSLOW}
    s_cbranch_scc0 {l0}
    v_lshrrev_b32 v28, 5, v0
    s_lshl_b32 s41, s{sH}, 5
    s_add_u32 s41, s41, {L_VS}
    v_lshl_add_u32 v28, v28, 4, s41
    ds_read_b128 v[8:11], v3 offset:{L_Q - L_O + 8*QSTR*g}
    ds_read_b128 v[12:15], v3 offset:{L_Q - L_O + 8*QSTR*g + 16}
    ds_read_b128 v[28:31], v28
    s_waitcnt lgkmcnt(1)
    v_dot2_f32_bf16 v1, v8, s{sKSL[0]}, 0""")
    for i in range(1, 8): a(f"v_dot2_f32_bf16 v1, v{8+i}, s{sKSL[i]}, v1")
    a(f"""v_exp_f32 v1, v1
    s_waitcnt lgkmcnt(0)
    v_and_b32 v1, 0xffff0000, v1
    v_pk_mul_f32 v[28:29], v[28:29], v[0:1] op_sel:[0,1] op_sel_hi:[1,1]
    v_pk_mul_f32 v[30:31], v[30:31], v[0:1] op_sel:[0,1] op_sel_hi:[1,1]
    s_branch {l1}
    {l0}:
    v_mov_b32 v1, 0
    v_mov_b64 v[28:29], 0
    v_mov_b64 v[30:31], 0
    {l1}:""")
def norm_pre(g):
    a(f"""v_and_b32 v10, 31, v0
    s_add_u32 s41, s{sLB}, {1024*g}
    v_lshl_add_u32 v10, v10, 2, s41
    v_lshl_add_u32 v24, v0, 4, s{sSB}""")
def normalize(g, sleep):
    if sleep:
        lb = a.newlabel("H_lw")
        a(f"""v_lshl_add_u32 v13, v0, 3, s{sLB}
        s_mov_b32 s{sCNT}, 0
        {lb}:
        ds_read_b32 v8, v13 offset:{1024*g}
        s_waitcnt lgkmcnt(0)
        v_cmp_eq_u32 vcc, -1, v8""")
        poll_guard(lb, "s_cbranch_vccz", "H_lwd", 4, sleep)
    a(f"""ds_read2_b32 v[8:9], v10 offset0:0 offset1:32
    ds_read2_b32 v[10:11], v10 offset0:64 offset1:96""")
    for w in range(4): a(f"ds_read_b128 {V(12+4*w,4)}, v24 offset:{16384*g + 2048*w}")
    a(f"""s_waitcnt lgkmcnt(4)
    v_pk_add_f32 v[8:9], v[8:9], v[10:11]
    v_add_f32 v8, v8, v9
    v_add_f32 v8, v8, v1
    v_rcp_f32 v9, v8
    s_waitcnt lgkmcnt(2)""")
    pkadd(12, 12, 16, 4)
    pkadd(12, 12, 28, 4)
    a(f"""v_lshrrev_b32 v11, 5, v0
    s_and_b32 s41, s{sH}, 1
    s_lshl_b32 s41, s41, 4
    v_lshl_add_u32 v11, v11, 3, v3
    s_waitcnt lgkmcnt(0)""")
    pkadd(20, 20, 24, 4)
    a("v_add_u32 v11, s41, v11")
    pkadd(12, 12, 20, 4)
    lb = a.newlabel("H_nb")
    a(f"""v_pk_mul_f32 v[12:13], v[12:13], v[8:9] op_sel:[0,1] op_sel_hi:[1,1]
    v_pk_mul_f32 v[14:15], v[14:15], v[8:9] op_sel:[0,1] op_sel_hi:[1,1]
    v_cvt_pk_bf16_f32 v16, v12, v13
    v_cvt_pk_bf16_f32 v17, v14, v15
    ds_write_b64 v11, v[16:17] offset:{8*QSTR*g}
    v_pk_add_f32 v[12:13], v[12:13], v[14:15]
    v_add_f32 v12, v12, v13
    v_fma_f32 v8, v12, 0, v8
    v_subrev_u32 v8, {(127-80)<<23}, v8
    v_cmp_lt_u32 vcc, {(0 if (FORCE>>g)&1 else (180<<23))}, v8
    s_cbranch_vccz {lb}
    s_cmp_lg_u32 s{sSLOW}, 0
    s_cbranch_scc1 {lb}
    v_mov_b32 v8, {L_SC}
    v_mov_b32 v9, 1
    ds_write_b32 v8, v9 offset:{SC_BAD}
    {lb}:""")
def hsync(idx, bad=True):
    lb = a.newlabel("H_hs")
    a(f"""s_lshl_b32 s41, s{sL}, 4
    s_add_u32 s41, s41, {L_SC}
    v_mov_b32 v8, s41
    v_mov_b32 v11, {L_SC}""")
    lds_inc(8, SC_OCNT + 4*idx, 9)
    lds_wait(8, SC_OCNT + 4*idx, 9, 4, 3)
    if bad:
        a(f"""ds_read_b32 v9, v11 offset:{SC_BAD}
        s_waitcnt lgkmcnt(0)
        v_cmp_ne_u32 vcc, 0, v9
        s_cbranch_vccnz H_toX""")
def oproj(first):
    if first: a("s_setprio 0")
    for s in range(4):
        a(f"s_waitcnt lgkmcnt({3-s})")
        for f in range(8):
            a(f"v_mfma_f32_16x16x32_bf16 {V(AC+4*f,4)}, {V(OF+4*s,4)}, {V(WO+32*s+4*f,4)}, {'0' if (s==0 and first) else V(AC+4*f,4)}")
def osend(bi):
    if bi == 0: a("s_setprio 0")
    a("s_waitcnt lgkmcnt(0)")
    def st(f):
        if bi == 1: a("s_mov_b32 exec_hi, 0")
        a(f"global_store_dwordx4 v24, {V(AC+4*f,4)}, {P(sWS)} offset:{512*f} sc1")
        if bi == 1: a("s_mov_b32 exec_hi, -1")
    for f in range(8):
        for s in range(4):
            a(f"v_mfma_f32_16x16x32_bf16 {V(AC+4*f,4)}, {V(OF+4*s,4)}, {V(WO+32*s+4*f,4)}, {'0' if s==0 else V(AC+4*f,4)}")
        if f >= 2: st(f-2)
    st(6); st(7)
    if bi == 0: a("s_setprio 2")
def flag_poll(vaddr, sleep):
    lp = a.newlabel("H_fp")
    a(f"""s_mov_b32 s{sCNT}, 0
    {lp}:""")
    a(f"""global_load_dword v8, v{vaddr}, {P(sWS)} sc1
    s_waitcnt vmcnt(0)
    v_cmp_ne_u32 vcc, s{sOTAG}, v8""")
    poll_guard(lp, "s_cbranch_vccz", "H_fpd", 1, sleep)
def send_addr(bi):
    a(f"""v_lshrrev_b32 v26, 5, v0
    s_add_u32 s41, s{sC}, {1 + 2*bi}
    v_add_u32 v25, s41, v26
    v_and_b32 v25, 3, v25
    v_mul_u32_u24 v24, 49152, v25
    v_lshl_add_u32 v24, v26, 14, v24
    v_and_b32 v26, 31, v0
    v_lshl_add_u32 v24, v26, 4, v24
    s_andn2_b32 s43, s{sB}, 3
    s_mul_i32 s41, s43, 49152
    s_add_u32 s41, s41, s{sOPB}
    s_add_u32 s41, s41, {32768*bi}
    v_add_u32 v24, s41, v24""")
a(f"""s_add_u32 s41, s{sC}, 3
s_and_b32 s41, s41, 3
s_andn2_b32 s43, s{sB}, 3
s_add_u32 s41, s41, s43
s_mul_i32 s41, s41, 49152
s_add_u32 s41, s41, s{sOPB}
s_add_u32 s41, s41, 32768
v_lshl_add_u32 v24, v0, 4, s41
v_mov_b64 v[8:9], -1
v_mov_b64 v[10:11], -1""")
for f in range(4): a(f"global_store_dwordx4 v24, v[8:11], {P(sWS)} offset:{1024*f} sc1")
corr(0); norm_pre(0); normalize(0, 16); corr(1); norm_pre(1); normalize(1, 8)
hsync(0)
for s_ in range(4): a(f"ds_read_b128 {V(OF+4*s_,4)}, v2 offset:{64*s_}")
send_addr(0)
a(f"""s_add_u32 s41, s{sC}, 1
v_add_u32 v25, s41, v0
v_and_b32 v25, 3, v25
v_lshlrev_b32 v25, 11, v25
v_lshl_add_u32 v25, v0, 9, v25
s_lshl_b32 s41, s43, 11
s_lshl_b32 s42, s{sH}, 7
s_add_u32 s41, s41, s42
s_add_u32 s41, s41, {WS_OPF}
v_add_u32 v25, s41, v25
v_mov_b32 v27, s{sOTAG}""")
osend(0)
a(f"""s_waitcnt vmcnt(0)
s_mov_b64 exec, 7
global_store_dword v25, v27, {P(sWS)} sc1
s_mov_b64 exec, -1""")
TS(6)
def recv01(nonblock=False):
    a(f"""v_lshrrev_b32 v27, 5, v0
    v_and_b32 v26, 31, v0
    s_mul_i32 s41, s{sB}, 49152
    s_add_u32 s41, s41, s{sOPB}
    v_lshl_add_u32 v26, v26, 4, s41
    v_lshl_add_u32 v24, v27, 14, v26
    s_lshl_b32 s41, s{sB}, 11
    s_lshl_b32 s42, s{sH}, 7
    s_add_u32 s41, s41, s42
    s_add_u32 s41, s41, {WS_OPF}
    v_min_u32 v25, 2, v0
    v_lshl_add_u32 v25, v25, 9, s41""")
    if nonblock:
        a(f"""v_lshlrev_b32 v13, 4, v0
        v_add_u32 v13, {L_L + 2048}, v13
        s_mov_b32 s{sCNT}, 0
        H_nbp:
        ds_read_b32 v8, v13
        s_waitcnt lgkmcnt(0)
        v_cmp_eq_u32 vcc, -1, v8
        s_cbranch_vccz H_b1
        s_add_u32 s{sCNT}, s{sCNT}, 1
        s_cmp_ge_u32 s{sCNT}, {POLLMAX}
        s_cbranch_scc1 H_b1
        s_sleep 4
        global_load_dword v8, v25, {P(sWS)} sc1
        s_waitcnt vmcnt(0)
        v_cmp_ne_u32 vcc, s{sOTAG}, v8
        s_cbranch_vccnz H_nbp""")
    else:
        flag_poll(25, 2)
    if nonblock:
        a(f"""s_lshl_b32 s41, s{sH}, 13
        s_add_u32 s41, s41, {L_SLOT}""")
        for f in range(8):
            a(f"""s_add_u32 m0, s41, {512*f}
            global_load_lds_dwordx4 v24, {P(sWS)} offset:{512*f} sc1""")
    else:
        for f in range(8): a(f"global_load_dwordx4 {V(AC+4*f,4)}, v24, {P(sWS)} offset:{512*f} sc1")
a(f"s_mov_b32 s{sCAND}, 0")
recv01(True)
a(f"s_mov_b32 s{sCAND}, 1\nH_b1:")
corr(2); norm_pre(2); normalize(2, 4)
hsync(1)
for s_ in range(4): a(f"ds_read_b128 {V(OF+4*s_,4)}, v2 offset:{64*s_ + 16*QSTR}")
send_addr(1)
osend(1)
TS(9)
a(f"""s_cmp_lg_u32 s{sCAND}, 0
s_cbranch_scc1 H_r2""")
recv01()
a(f"""H_r2:
v_lshrrev_b32 v27, 5, v0
v_and_b32 v26, 31, v0
s_mul_i32 s41, s{sB}, 49152
s_add_u32 s41, s41, s{sOPB}
s_add_u32 s41, s41, 32768
v_lshl_add_u32 v26, v26, 4, s41
v_lshl_add_u32 v26, v27, 11, v26
s_mov_b32 s{sCNT}, 0
H_p2:""")
for f in range(4): a(f"global_load_dwordx4 {V(8+4*f,4)}, v26, {P(sWS)} offset:{512*f} sc1")
a(f"""s_waitcnt vmcnt(0)
v_max3_u32 v24, v8, v12, v16
v_max_u32 v24, v24, v20
v_cmp_eq_u32 vcc, -1, v24""")
poll_guard("H_p2", "s_cbranch_vccz", "H_p2d", 1, 4)
a(f"""s_cmp_eq_u32 s{sCAND}, 0
s_cbranch_scc1 H_r3
s_lshl_b32 s41, s{sH}, 13
s_add_u32 s41, s41, {L_SLOT}
v_lshl_add_u32 v24, v0, 4, s41""")
for f in range(8): a(f"ds_read_b128 {V(AC+4*f,4)}, v24 offset:{1024*f}")
a("s_waitcnt lgkmcnt(0)\nH_r3:\ns_mov_b32 exec_hi, 0")
pkadd(AC, AC, 8, 16)
a("s_mov_b32 exec_lo, 0\ns_mov_b32 exec_hi, -1")
pkadd(AC+16, AC+16, 8, 16)
a("s_mov_b64 exec, -1")
TS(10)
a(f"""v_and_b32 v8, 8, v0
v_cmp_eq_u32 vcc, 0, v8
v_lshrrev_b32 v8, 4, v0
v_lshlrev_b32 v8, 4, v8
v_add_u32 v8, {L_SC + SC_ZERO - 24*QSTR}, v8
v_cndmask_b32 v2, v8, v2, vcc""")
corr(3)
norm_pre(3)
a("s_barrier")
normalize(3, 0)
a(f"""v_mov_b32 v24, {L_SC}
s_waitcnt lgkmcnt(0)
s_barrier
ds_read_b32 v24, v24 offset:{SC_BAD}""")
for s_ in range(4): a(f"ds_read_b128 {V(OF+4*s_,4)}, v2 offset:{64*s_ + 24*QSTR}")
a(f"""v_lshrrev_b32 v26, 4, v0
v_and_b32 v25, 15, v0
v_lshlrev_b32 v25, 4, v25
v_lshl_add_u32 v25, v26, 13, v25
s_lshl_b32 s41, s{sH}, 9
s_add_u32 s41, s41, {L_ROW}
v_add_u32 v25, s41, v25
s_waitcnt lgkmcnt(4)
v_cmp_ne_u32 vcc, 0, v24
s_cbranch_vccnz H_slow""")
oproj(False)
k = 0
for half in range(2):
    for i in range(4):
        t = 8 + 4*(k % 4); k += 1
        for f in (0, 2):
            r0 = AC + 4*(4*half+f) + (i & 2); r1 = r0 + 4
            a(f"v_pk_mov_b32 {V(t+f,2)}, {V(r0,2)}, {V(r1,2)} op_sel:[{i&1},{i&1}]")
        a(f"ds_write_b128 v25, {V(t,4)} offset:{2048*i + 256*half}")
a(f"""v_mov_b64 v[28:29], -1
v_mov_b64 v[30:31], -1
s_lshl_b32 s41, s{sH}, 10
s_add_u32 s41, s41, {L_L}
v_lshl_add_u32 v1, v0, 4, s41
ds_write_b128 v1, v[28:31]
s_setprio 0
s_waitcnt lgkmcnt(0)
s_cmp_eq_u32 s{sL}, 0
s_cbranch_scc1 R_P4""")
ffn_loads()
a("s_branch R_P4")
a("H_FFN:")
key_get(1)
a(f"""s_cmp_lg_u32 s{sF}, 0
s_cbranch_scc1 H_nl""")
ffn_loads()
a("H_nl:")
a(f"""s_lshr_b32 s41, s{sSEL}, 3
s_lshl_b32 s41, s41, 11
s_lshl_b32 s42, s{sF}, 19
s_add_u32 s41, s41, s42
s_add_u32 s41, s41, {WS_CAND}
s_lshl_b32 s42, s{sH}, 8
s_add_u32 s42, s42, s41
v_lshl_add_u32 v2, v0, 2, s42
s_lshl_b32 s42, s{sJ}, 2
s_add_u32 s42, s42, s41
v_mov_b32 v9, s42
s_lshl_b32 s42, s{sF}, 2
v_add_u32 v37, s42, v3
s_mov_b32 s{sCNT}, 0""")
TSF(11)
a(f"""H_xs:
global_load_dword v8, v2, {P(sWS)} sc1
global_load_dword v38, v9, {P(sWS)} sc1
global_load_dword v39, v9, {P(sWS)} offset:1024 sc1
s_waitcnt vmcnt(0)
v_max3_u32 v10, v8, v38, v39
v_cmp_eq_u32 vcc, -1, v10""")
poll_guard("H_xs", "s_cbranch_vccz", "H_xsd")
a(f"""s_cmp_ge_u32 s{sJ}, 224
s_cbranch_scc1 H_down""")
for i in range(16): a(f"v_dot2_f32_bf16 v{GU+i}, v{GU+i}, v8, 0")
for c in range(8): a(f"v_permlane32_swap_b32 v{GU+c}, v{GU+8+c}")
pkadd(GU, GU, GU+8, 8)
for c in range(4): a(f"v_permlane16_swap_b32 v{GU+c}, v{GU+4+c}")
pkadd(GU, GU, GU+4, 4)
for m in ("row_ror:8", "row_ror:4", "row_ror:2", "row_ror:1"):
    for c in range(4): a(f"v_add_f32_dpp v{GU+c}, v{GU+c}, v{GU+c} {m} row_mask:0xf bank_mask:0xf")
a(f"""v_lshrrev_b32 v2, 4, v0
s_lshl_b32 s41, s{sH}, 6
s_add_u32 s41, s41, {L_SC + SC_FACC}
v_lshl_add_u32 v2, v2, 4, s41
v_mov_b32 v9, 1
s_mov_b32 exec_lo, 0x00010001
s_mov_b32 exec_hi, 0x00010001
ds_write_b128 v2, {V(GU,4)}
s_mov_b64 exec, 1
ds_add_rtn_u32 v10, v37, v9 offset:{SC_FCNT}
s_mov_b64 exec, -1
v_and_b32 v2, 1, v0
v_bfe_u32 v9, v0, 1, 2
v_lshlrev_b32 v9, 2, v9
v_lshl_add_u32 v9, v2, 4, v9
v_add_u32 v9, {L_SC + SC_FACC}, v9
s_waitcnt lgkmcnt(0)
v_readfirstlane_b32 s42, v10
s_cmp_lg_u32 s42, 3
s_cbranch_scc1 H_down""")
for w in range(4): a(f"ds_read2_b32 {V(12+2*w,2)}, v9 offset0:{16*w} offset1:{16*w+8}")
a(f"""s_lshl_b32 s41, s{sJ}, 7
s_lshl_b32 s42, s{sF}, 4
s_add_u32 s41, s41, s42
s_add_u32 s41, s41, {WS_HY}
v_lshl_add_u32 v2, v0, 1, s41
s_waitcnt lgkmcnt(0)
v_pk_add_f32 v[12:13], v[12:13], v[14:15]
v_pk_add_f32 v[16:17], v[16:17], v[18:19]
v_pk_add_f32 v[12:13], v[12:13], v[16:17]
v_cvt_pk_bf16_f32 v12, v12, v13
v_and_b32 v13, 0xffff0000, v12
v_lshlrev_b32 v12, 16, v12
v_mul_f32 v14, 0xbfb8aa3b, v12
v_exp_f32 v14, v14
v_add_f32 v14, 1.0, v14
v_rcp_f32 v14, v14
v_mul_f32 v12, v12, v14
v_cvt_pk_bf16_f32 v12, v12, v12
v_lshlrev_b32 v12, 16, v12
v_mul_f32 v12, v12, v13
v_cvt_pk_bf16_f32 v12, v12, v12
s_mov_b64 exec, 0xff
global_store_short v2, v12, {P(sWS)} sc1
s_mov_b64 exec, -1
H_down:
s_lshl_b32 s41, s{sH}, 6
v_add_u32 v1, s41, v0
v_min_u32 v2, 223, v1
s_lshl_b32 s42, s{sF}, 4
s_add_u32 s42, s42, {WS_HY}
v_lshl_add_u32 v2, v2, 7, s42
s_mov_b32 s{sCNT}, 0""")
TSF(12)
a(f"""s_cmp_lg_u32 s{sF}, 0
s_cbranch_scc1 H_nkw""")
a("s_sleep 24\nH_nkw:")
a(f"""s_mov_b32 s{sCNT}, 0
H_hp:
global_load_dwordx4 v[12:15], v2, {P(sWS)} sc1
s_waitcnt vmcnt(0)
v_max3_u32 v9, v12, v13, v14
v_max_u32 v9, v9, v15
v_cmp_eq_u32 vcc, -1, v9""")
poll_guard("H_hp", "s_cbranch_vccz", "H_hpd", 1, 3)
TSF(13)
a(f"""v_dot2_f32_bf16 v8, v{WDn}, v12, 0
v_dot2_f32_bf16 v9, v{WDn+4}, v12, 0""")
for i in range(1, 4):
    a(f"v_dot2_f32_bf16 v8, v{WDn+i}, v{12+i}, v8")
    a(f"v_dot2_f32_bf16 v9, v{WDn+4+i}, v{12+i}, v9")
a(f"""v_cmp_gt_u32 vcc, 224, v1
v_cndmask_b32 v8, 0, v8, vcc
v_cndmask_b32 v9, 0, v9, vcc
v_permlane32_swap_b32 v8, v9
v_add_f32 v8, v8, v9""")
for m in ("row_ror:8", "row_ror:4", "row_ror:2", "row_ror:1"):
    a(f"v_add_f32_dpp v8, v8, v8 {m} row_mask:0xf bank_mask:0xf")
a(f"""v_add_f32_dpp v8, v8, v8 row_bcast:15 row_mask:0xa bank_mask:0xf
v_lshrrev_b32 v2, 5, v0
s_lshl_b32 s41, s{sH}, 3
s_add_u32 s41, s41, {L_SC + SC_DACC}
v_lshl_add_u32 v2, v2, 2, s41
v_mov_b32 v9, 1
s_mov_b32 exec_lo, 0x80000000
s_mov_b32 exec_hi, 0x80000000
ds_write_b32 v2, v8
s_mov_b64 exec, 1
ds_add_rtn_u32 v12, v37, v9 offset:{SC_DCNT}
s_mov_b64 exec, -1
s_lshr_b32 s41, s{sKEY}, 16
s_and_b32 s42, s41, 0x7fff
s_xor_b32 s43, s41, 0xffff
s_bitcmp1_b32 s41, 15
s_cselect_b32 s41, s42, s43
s_lshl_b32 s41, s41, 16
v_mov_b32 v11, s41
v_mul_f32 v11, 0xbfb8aa3b, v11
v_exp_f32 v11, v11
v_add_f32 v11, 1.0, v11
v_rcp_f32 v11, v11
v_cvt_pk_bf16_f32 v11, v11, v11
v_lshlrev_b32 v11, 16, v11
s_waitcnt lgkmcnt(0)
v_readfirstlane_b32 s42, v12
s_cmp_lg_u32 s42, 3
s_cbranch_scc1 H_ffd
ds_read_b128 v[12:15], v3 offset:{SC_DACC}
ds_read_b128 v[16:19], v3 offset:{SC_DACC+16}
s_waitcnt lgkmcnt(0)
v_pk_add_f32 v[12:13], v[12:13], v[14:15]
v_pk_add_f32 v[16:17], v[16:17], v[18:19]
v_pk_add_f32 v[8:9], v[12:13], v[16:17]""")
pack(12, 8, 1); unpack(8, 12, 1)
a("v_mul_f32 v8, v8, v11\nv_mul_f32 v9, v9, v11")
pack(12, 8, 1); unpack(8, 12, 1); unpack(14, 38, 1)
a("v_add_f32 v8, v8, v14\nv_add_f32 v9, v9, v15")
pack(12, 8, 1); unpack(8, 12, 1); unpack(14, 39, 1)
a("v_add_f32 v8, v8, v14\nv_add_f32 v9, v9, v15")
pack(12, 8, 1)
a(f"""s_mov_b64 exec, 1
s_cmp_lg_u32 s{sF}, 0
s_cbranch_scc1 H_fo
s_lshl_b32 s41, s{sJ}, 7
s_add_u32 s41, s41, {WS_HY + 32}
v_mov_b32 v2, s41
global_store_dword v2, v12, {P(sWS)} sc1
s_branch H_fo2
H_fo:
s_lshl_b32 s41, s{sSEL}, 10
s_lshl_b32 s42, s{sJ}, 2
s_add_u32 s41, s41, s42
v_mov_b32 v2, s41
global_store_dword v2, v12, {P(sOUT)}
H_fo2:
s_mov_b64 exec, -1
H_ffd:
s_cmp_lg_u32 s{sF}, 0
s_cbranch_scc1 R_last""")
a(f"""s_lshl_b32 s41, s{sH}, 13
s_add_u32 s41, s41, {WS_HY + 32}
v_lshl_add_u32 v1, v0, 7, s41
s_lshl_b32 s41, s{sH}, 8
s_add_u32 s41, s41, {L_X2S}
v_lshl_add_u32 v2, v0, 2, s41
s_mov_b32 s{sCNT}, 0
s_sleep 8
H_yw:
global_load_dword v40, v1, {P(sWS)} sc1
s_waitcnt vmcnt(0)
v_cmp_eq_u32 vcc, -1, v40""")
poll_guard("H_yw", "s_cbranch_vccz", "H_yd", 1, 3)
a(f"""ds_write_b32 v2, v40
v_mov_b32 v2, 1
s_mov_b64 exec, 1
ds_add_rtn_u32 v41, v3, v2 offset:{SC_YC}
s_mov_b64 exec, -1
v_lshlrev_b32 v1, 4, v0
v_add_u32 v1, {L_XS}, v1
s_waitcnt lgkmcnt(0)
v_readfirstlane_b32 s41, v41
s_cmp_lg_u32 s41, 3
s_cbranch_scc1 H_fx1
ds_read_b128 v[40:43], v1 offset:1024
s_waitcnt lgkmcnt(0)""")
unpack(X_, 40)
ln(X_, D_, T_, XN)
a(f"ds_write_b128 v1, {V(XN,4)}")
lds_inc(3, SC_XSF, 2)
a("H_fx1:")
wkv_addr(1)
for i in range(8): a(f"global_load_dwordx4 {V(8+4*i,4)}, v1, {P(sWS)} offset:{1024*i-4096} sc1")
lds_wait(3, SC_XSF, 2, 1, 2)
TSA(14)
a(f"""v_lshrrev_b32 v1, 4, v0
v_lshlrev_b32 v1, 4, v1
v_add_u32 v1, {L_XS}, v1
s_xor_b32 s41, s{sSEL}, s{sTOK}
s_lshr_b32 s41, s41, 5
s_cbranch_scc1 H_fx2
s_lshl_b32 s41, s{sH}, 11
v_lshl_add_u32 v2, v0, 4, s41""")
for s in range(16):
    a(f"ds_read_b128 v[48:51], v1 offset:{64*s}")
    if s < 8:
        a(f"ds_read_b128 v[52:55], v2 offset:{8192*s}")
        a(f"ds_read_b128 v[56:59], v2 offset:{8192*s+1024}")
    a("s_waitcnt lgkmcnt(0)")
    for f in range(2):
        A_ = V(52+4*f,4) if s < 8 else V(WQR+8*(s-8)+4*f,4)
        a(f"v_mfma_f32_16x16x32_bf16 {V(40+4*f,4)}, {A_}, v[48:51], {'0' if s==0 else V(40+4*f,4)}")
a(f"""s_lshl_b32 s41, s{sC}, 3
s_sub_u32 s41, s{sSEL}, s41
s_sub_u32 s41, s41, 8
s_and_b32 s41, s41, 31
s_mul_i32 s41, s41, {QSTR}
s_lshl_b32 s42, s{sH}, 3
s_add_u32 s41, s41, s42
s_add_u32 s41, s41, {L_Q}
v_lshrrev_b32 v2, 4, v0
v_lshl_add_u32 v2, v2, 6, s41
s_mov_b32 s41, {QSCALE}""")
for i in range(8): a(f"v_mul_f32 v{40+i}, s41, v{40+i}")
for hh in range(2):
    for f in range(2):
        a(f"v_cvt_pk_bf16_f32 v{48+2*hh+f}, v{40+4*f+2*hh}, v{40+4*f+2*hh+1}")
a(f"""s_mov_b32 exec_lo, 0x00010001
s_mov_b32 exec_hi, 0x00010001
ds_write_b64 v2, v[48:49]
ds_write_b64 v2, v[50:51] offset:32
s_mov_b64 exec, -1""")
lds_inc(3, SC_QFIX, 2)
a(f"""H_fx2:
s_lshl_b32 s41, s{sH}, 8
v_add_u32 v1, s41, v1""")
for s in range(4): a(f"ds_read_b128 {V(40+4*s,4)}, v1 offset:{64*s}")
a(f"""v_lshrrev_b32 v2, 4, v0
s_lshl_b32 s41, s{sH}, 7
s_add_u32 s41, s41, {L_KVP}
v_lshl_add_u32 v2, v2, 5, s41
s_waitcnt vmcnt(0) lgkmcnt(0)""")
for s in range(4):
    a(f"v_mfma_f32_16x16x32_bf16 v[56:59], {V(8+8*s,4)}, {V(40+4*s,4)}, {'0' if s==0 else 'v[56:59]'}")
    a(f"v_mfma_f32_16x16x32_bf16 v[60:63], {V(8+8*s+4,4)}, {V(40+4*s,4)}, {'0' if s==0 else 'v[60:63]'}")
a("s_mov_b32 exec_lo, 0x00010001\ns_mov_b32 exec_hi, 0x00010001")
for i in range(4): a(f"ds_write2_b32 v2, v{56+i}, v{60+i} offset0:{2*i} offset1:{2*i+1}")
a("s_mov_b64 exec, -1")
hsync(2, False)
a(f"""v_and_b32 v1, 7, v0
v_lshlrev_b32 v1, 2, v1
v_add_u32 v1, {L_KVP}, v1
v_lshrrev_b32 v2, 5, v0
s_and_b32 s41, s{sH}, 1
s_lshl_b32 s41, s41, 5
s_add_u32 s41, s41, {L_KVP + 64}
v_lshl_add_u32 v40, v2, 4, s41
s_lshl_b32 s41, s{sH}, 5
s_add_u32 s41, s41, {L_VS}
v_lshl_add_u32 v41, v2, 4, s41""")
for w in range(4): a(f"ds_read2_b32 {V(8+2*w,2)}, v1 offset0:{32*w} offset1:{32*w+8}")
for w in range(4): a(f"ds_read_b128 {V(16+4*w,4)}, v40 offset:{128*w}")
a(f"""s_waitcnt lgkmcnt(4)
v_pk_add_f32 v[8:9], v[8:9], v[10:11]
v_pk_add_f32 v[12:13], v[12:13], v[14:15]
v_pk_add_f32 v[8:9], v[8:9], v[12:13]
v_cvt_pk_bf16_f32 v8, v8, v9
s_waitcnt lgkmcnt(0)""")
pkadd(16, 16, 20, 4); pkadd(24, 24, 28, 4); pkadd(16, 16, 24, 4)
for i in range(8): a(f"v_readlane_b32 s{sKSL[i]}, v8, {i}")
pack(20, 16, 2); unpack(16, 20, 2)
a(f"""ds_write_b128 v41, v[16:19]
ds_write_b32 v1, v8 offset:{L_KS - L_KVP}
s_branch H_bursts
H_toX:
s_barrier
s_barrier
H_slow:
s_waitcnt vmcnt(0) lgkmcnt(0)
s_barrier
v_mov_b64 v[28:29], -1
v_mov_b64 v[30:31], -1
s_lshl_b32 s41, s{sH}, 10
s_add_u32 s41, s41, {L_L}
v_lshl_add_u32 v1, v0, 4, s41
ds_write_b128 v1, v[28:31]
s_lshl_b32 s41, s{sH}, 8
s_add_u32 s41, s41, {L_M}
v_lshl_add_u32 v1, v0, 2, s41
v_mov_b32 v8, 0xff800000
ds_write_b32 v1, v8
s_lshl_b32 s41, s{sL}, 4
s_add_u32 s41, s41, {L_SC}
v_mov_b32 v1, s41
v_mov_b32 v2, {L_SC}
v_mov_b64 v[8:9], 0
ds_write_b64 v1, v[8:9] offset:{SC_OCNT}
ds_write_b32 v2, v8 offset:{SC_BAD}
s_mov_b32 s{sSLOW}, 1
s_waitcnt lgkmcnt(0)
s_barrier
s_barrier
s_branch H_bursts
A_slow:
s_waitcnt vmcnt(0)
s_barrier
s_cmp_eq_u32 s3, 15
s_cbranch_scc1 A_sl1
v_lshrrev_b32 v8, 5, v0
v_lshlrev_b32 v8, 4, v8
v_add_u32 v8, {L_KS}, v8
ds_read_b128 v[32:35], v8
v_and_b32 v9, 15, v0
v_lshlrev_b32 v9, 2, v9
v_add_u32 v9, {L_VS}, v9
ds_read_b32 v36, v9
v_and_b32 v9, 27, v0
v_cmp_eq_u32 vcc, 16, v9
v_mov_b32 v10, 0x3f800000
v_cndmask_b32 v10, 0, v10, vcc
v_and_b32 v9, 16, v0
v_cmp_eq_u32 vcc, 0, v9
s_waitcnt lgkmcnt(0)
v_cndmask_b32 v36, v10, v36, vcc
s_bitcmp1_b32 s{sSEL}, 0
s_cselect_b32 s41, 0, 16
v_lshrrev_b32 v36, s41, v36
s_mov_b64 exec, s[6:7]
s_set_gpr_idx_on s4, gpr_idx(SRC0,DST)
s_nop 1
v_or_b32 v{VV}, v{VV}, v36
s_nop 1
s_set_gpr_idx_off
s_and_b32 s41, s{sSEL}, 31
s_lshl_b32 s42, 1, s41
s_mov_b32 exec_lo, s42
s_mov_b32 exec_hi, s42
s_bfe_u32 s41, s{sSEL}, 0x40005
s_lshl_b32 s41, s41, 2
s_set_gpr_idx_on s41, gpr_idx(DST)
s_nop 1
v_mov_b32 v{KK}, v32
v_mov_b32 v{KK+1}, v33
v_mov_b32 v{KK+2}, v34
v_mov_b32 v{KK+3}, v35
s_nop 1
s_set_gpr_idx_off
s_mov_b64 exec, -1
A_sl1:
v_and_b32 v14, 31, v0
v_lshlrev_b32 v14, 2, v14
v_add_u32 v14, {L_M}, v14""")
att_addr()
a(f"""s_barrier
s_mov_b32 s44, 0
A_sm:
s_mul_i32 s41, s44, {4*QSTR}
v_add_u32 v{Q}, s41, v{vQA}
ds_read_b128 {V(Q,4)}, v{Q}
v_mov_b32 v15, 0xff800000
s_waitcnt lgkmcnt(0)""")
for kt in range(NT):
    a(f"v_mfma_f32_32x32x16_bf16 {V(S0,16)}, {V(KK+4*kt,4)}, {V(Q,4)}, 0")
    for i in range(0, 16, 2): a(f"v_max3_f32 v15, v15, v{S0+i}, v{S0+i+1}")
a(f"""v_lshl_add_u32 v13, s44, 7, v14
ds_max_f32 v13, v15
s_add_u32 s44, s44, 1
s_cmp_lt_u32 s44, 8
s_cbranch_scc1 A_sm
s_waitcnt lgkmcnt(0)
s_barrier
s_mov_b32 s44, 0
A_se:
s_mul_i32 s41, s44, {4*QSTR}
v_add_u32 v{Q}, s41, v{vQA}
ds_read_b128 {V(Q,4)}, v{Q}
v_lshl_add_u32 v13, s44, 7, v14
ds_read_b32 v15, v13
s_waitcnt lgkmcnt(0)""")
for i in range(16): a(f"v_sub_f32 v{S1+i}, 0, v15")
for i in range(0, 16, 2): a(f"v_mov_b64 {V(ACC+i,2)}, 0")
for kt in range(NT):
    a(f"v_mfma_f32_32x32x16_bf16 {V(S0,16)}, {V(KK+4*kt,4)}, {V(Q,4)}, {V(S1,16)}")
    ex(S0, 0, 16)
    smf(2*kt, S0); smf(2*kt+1, S0+8)
a("s_mov_b32 s41, s44")
flush()
a(f"""s_add_u32 s44, s44, 1
s_cmp_lt_u32 s44, 8
s_cbranch_scc1 A_se
s_branch A_X
L_end:
s_cmp_lg_u32 s{sTOK}, 7
s_cbranch_scc1 L_end2
s_add_u32 s41, s{sE}, 2
v_mov_b32 v1, 0
v_mov_b32 v2, s41
s_mov_b64 exec, 1
global_store_dword v1, v2, {P(sWS)}
s_mov_b64 exec, -1
L_end2:
""")
if TSON:
    TS(15)
    a(f"""s_getreg_b32 s75, hwreg(HW_REG_HW_ID)
    s_sub_u32 s76, s95, s94
    s_mul_i32 s41, s{sB}, 12
    s_add_u32 s41, s41, s{sW}
    s_lshl_b32 s41, s41, 7
    s_add_u32 s41, s41, {WS_TS}
    v_mov_b32 v1, s41
    s_mov_b64 exec, 1""")
    for i in range(32):
        a(f"v_mov_b32 v2, s{60+i}\nglobal_store_dword v1, v2, {P(sWS)} offset:{4*i}")
if os.environ.get("DBGT"):
    a(f"""s_mov_b64 exec, 1
    v_mov_b32 v1, 0
    s_not_b32 s41, s60
    v_mov_b32 v2, s41
    global_atomic_umax v1, v2, {P(sDBG)}""")
    for k, slot in enumerate((31, 1, 2, 3, 5, 9, 7, 21, 25, 23, 24, 27, 29, 16, 0)):
        a(f"v_mov_b32 v2, s{60+slot}\nglobal_atomic_umax v1, v2, {P(sDBG)} offset:{4+4*k}")
a("L_exit:\ns_endpgm")

n = a.hazard_pass()
hdr = open(f"cdna_kernels/{NAME}.s.ref").read().split("; Override launch")[0]
out = hdr + f"""; @launch grid=(256,1,1) block=(512,1,1) lds=163840
.amdgcn_target "amdgcn-amd-amdhsa--gfx950"
.text
.globl {NAME}_kernel
.p2align 8
.type {NAME}_kernel,@function
{NAME}_kernel:
""" + a.text() + f""".section .rodata,"a"
.p2align 6
.amdhsa_kernel {NAME}_kernel
  .amdhsa_next_free_vgpr 256
  .amdhsa_next_free_sgpr 102
  .amdhsa_accum_offset 256
  .amdhsa_group_segment_fixed_size 0
  .amdhsa_kernarg_size 104
  .amdhsa_user_sgpr_count 2
  .amdhsa_user_sgpr_kernarg_segment_ptr 1
  .amdhsa_system_sgpr_workgroup_id_x 1
  .amdhsa_float_denorm_mode_32 3
.end_amdhsa_kernel
"""
open(sys.argv[1], "w").write(out)
print("nops inserted", n, "instructions", sum(1 for i in a.items if not isinstance(i, str) and i.text))
```

```python
import sys, os
from asmlib import Asm
NAME = "interleave_layers__grouped_kv_mqa__moe_arch_mod__prompt"
TSON = bool(int(os.environ.get("TS", "0")))
a = Asm()

WS_FLAG = 0x1000; WS_KEY = 0x10000; WS_HY = 0x20000; WS_KV = 0x40000; WS_CAND = 0x80000
WS_OPF = 0x180000
WS_XN = 0x200000; WS_OP = 0x600000; OPL = 0xc00000; WS_TS = 0x3000000; WS_FS = 0x2000000; WS_WKV = 0x2800000
L_SLOT = 65536; L_XN = 114688; L_O = 131072; L_Q = 147456; L_L = 156160; L_SC = 160768
L_ROW = L_SLOT; L_PS = L_SLOT + 16384; L_KVS = L_Q
L_XS = 139776; L_X2S = L_XS + 1024; L_KVP = L_XS + 2048; L_VS = L_XS + 2560; L_KS = L_XS + 2816; L_M = L_XS + 3072
QSTR = 272
SC_KVCNT = 0; SC_KEYS = 16; SC_OCNT = 64; SC_FACC = 128; SC_FCNT = 384; SC_DACC = 400; SC_DCNT = 464; SC_GK = 480
SC_XSF = 512; SC_QFIX = 516; SC_BAD = 96; SC_XNC = 528; SC_QC = 536; SC_B1 = 552; SC_KVD = 544; SC_YC = 548; SC_ZERO = 768; SC_WR = 1024
FORCE = int(os.environ.get('FORCE', '0'))
POLLMAX = 40000
OUTF = ' sc1' if os.environ.get('OUTSC1') else ''
NPRE = int(os.environ.get('NPRE', '2'))
CODECH = int(os.environ.get('CODECH', '6'))
QSCALE = 0x3eb8aa3b

sX, sWQ, sWK, sWV, sWO, sWR, sWG, sWU, sWD, sOUT, sDBG, sWS = 8, 10, 12, 14, 16, 20, 22, 24, 26, 28, 30, 32
sE, sW, sL, sC, sTAG, sLO, sHI = 34, 35, 36, 37, 38, 39, 40
sCNT, sJ, sKEY, sTOK, sMASK, sH, sSEL, sOTAG, sF, sCAND, sMYK, sWT = 46, 47, 48, 49, 50, 51, 52, 53, 54, 55, 56, 57
sORD = 58
sKS = 0
sSLOW = 19
sOPB = 50
sB = 18
sKSL = [0, 1, 2, 3, 4, 5, 6, 7]
def P(n): return f"s[{n}:{n+1}]"
def V(n, k=1): return f"v{n}" if k == 1 else f"v[{n}:{n+k-1}]"

def TS(i):
    if not TSON: return
    a(f"""s_memrealtime s[92:93]
    s_waitcnt lgkmcnt(0)
    s_cmp_eq_u32 s{sL}, 0
    s_cselect_b32 s{60+i}, s92, s{60+i}
    s_cselect_b32 s{76+i}, s{76+i}, s92""")
def TSA(slot):
    if not TSON: return
    a(f"""s_memrealtime s[92:93]
    s_waitcnt lgkmcnt(0)
    s_mov_b32 s{60+slot}, s92""")
def TSF(i):
    if not TSON: return
    a(f"""s_memrealtime s[92:93]
    s_waitcnt lgkmcnt(0)
    s_cmp_eq_u32 s{sF}, 0
    s_cselect_b32 s{60+i}, s92, s{60+i}
    s_cselect_b32 s{76+i}, s{76+i}, s92""")
def TC(i):
    if not TSON: return
    a(f"""s_memtime s[92:93]
    s_waitcnt lgkmcnt(0)
    s_mov_b32 s{94+i}, s92""")

def poll_guard(lbl_retry, cond_branch, lbl_stem, mult=1, sleep=0):
    done = a.newlabel(lbl_stem)
    a(f"{cond_branch} {done}")
    if sleep: a(f"s_sleep {sleep}")
    a(f"""s_add_u32 s{sCNT}, s{sCNT}, 1
    s_cmp_lt_u32 s{sCNT}, {POLLMAX*mult}
    s_cbranch_scc1 {lbl_retry}
    {done}:""")
def lds_wait(vaddr, off, vt, target, sleep=1):
    lb = a.newlabel("W")
    a(f"s_mov_b32 s{sCNT}, 0\n{lb}:")
    a(f"""ds_read_b32 v{vt}, v{vaddr} offset:{off}
    s_waitcnt lgkmcnt(0)
    v_cmp_ne_u32 vcc, {target}, v{vt}""")
    poll_guard(lb, "s_cbranch_vccz", "Wd", 8, sleep)
def lds_inc(vaddr, off, vt):
    a(f"""v_mov_b32 v{vt}, 1
    s_mov_b64 exec, 1
    ds_add_u32 v{vaddr}, v{vt} offset:{off}
    s_mov_b64 exec, -1""")

def dpp_reduce(regs, op="v_add_f32"):
    for m in ("row_ror:8", "row_ror:4", "row_ror:2", "row_ror:1"):
        for r in regs: a(f"{op}_dpp v{r}, v{r}, v{r} {m} row_mask:0xf bank_mask:0xf")
    for r in regs: a(f"{op}_dpp v{r}, v{r}, v{r} row_bcast:15 row_mask:0xa bank_mask:0xf")
    for r in regs: a(f"{op}_dpp v{r}, v{r}, v{r} row_bcast:31 row_mask:0xc bank_mask:0xf")
def unpack(dst, src, n=4):
    for i in range(n):
        a(f"v_lshlrev_b32 v{dst+2*i}, 16, v{src+i}")
        a(f"v_and_b32 v{dst+2*i+1}, 0xffff0000, v{src+i}")
def pack(dst, src, n=4):
    for i in range(n): a(f"v_cvt_pk_bf16_f32 v{dst+i}, v{src+2*i}, v{src+2*i+1}")
def pkadd(d, x, y, n):
    for i in range(0, n, 2): a(f"v_pk_add_f32 {V(d+i,2)}, {V(x+i,2)}, {V(y+i,2)}")
def tr_pair(e, o, t):
    a(f"""v_perm_b32 v{t}, v{o}, v{e}, s{sLO}
    v_perm_b32 v{o}, v{o}, v{e}, s{sHI}
    v_mov_b32 v{e}, v{t}""")
def ln(X, D, T, out, extra=[]):
    a(f"v_readfirstlane_b32 s42, v{X}")
    for i in range(0, 8, 2): a(f"v_pk_add_f32 {V(D+i,2)}, {V(X+i,2)}, s[42:43] op_sel_hi:[1,0] neg_lo:[0,1] neg_hi:[0,1]")
    a(f"""v_pk_add_f32 {V(T,2)}, {V(D,2)}, {V(D+2,2)}
    v_pk_mul_f32 {V(T+2,2)}, {V(D,2)}, {V(D,2)}
    v_pk_add_f32 {V(T,2)}, {V(T,2)}, {V(D+4,2)}
    v_pk_fma_f32 {V(T+2,2)}, {V(D+2,2)}, {V(D+2,2)}, {V(T+2,2)}
    v_pk_add_f32 {V(T,2)}, {V(T,2)}, {V(D+6,2)}
    v_pk_fma_f32 {V(T+2,2)}, {V(D+4,2)}, {V(D+4,2)}, {V(T+2,2)}
    v_add_f32 v{T}, v{T}, v{T+1}
    v_pk_fma_f32 {V(T+2,2)}, {V(D+6,2)}, {V(D+6,2)}, {V(T+2,2)}
    v_mul_f32 v{T}, 0x3b000000, v{T}
    v_add_f32 v{T+1}, v{T+2}, v{T+3}""")
    dpp_reduce([T, T+1] + extra)
    a(f"""v_mul_f32 v{T+1}, 0x3b000000, v{T+1}
    v_fma_f32 v{T+1}, -v{T}, v{T}, v{T+1}
    v_add_f32 v{T}, s42, v{T}
    v_max_f32 v{T+1}, 0, v{T+1}
    v_cvt_pk_bf16_f32 v{T}, v{T}, v{T+1}
    v_and_b32 v{T+1}, 0xffff0000, v{T}
    v_lshlrev_b32 v{T}, 16, v{T}
    v_add_f32 v{T+1}, 0x3727c5ac, v{T+1}
    v_readlane_b32 s42, v{T}, 63
    v_cvt_pk_bf16_f32 v{T+1}, 0, v{T+1}
    v_sqrt_f32 v{T+1}, v{T+1}""")
    for i in range(0, 4, 2): a(f"v_pk_add_f32 {V(D+i,2)}, {V(X+i,2)}, s[42:43] op_sel_hi:[1,0] neg_lo:[0,1] neg_hi:[0,1]")
    a(f"""v_cvt_pk_bf16_f32 v{T+1}, 0, v{T+1}
    v_rcp_f32 v{T+1}, v{T+1}""")
    for i in range(4, 8, 2): a(f"v_pk_add_f32 {V(D+i,2)}, {V(X+i,2)}, s[42:43] op_sel_hi:[1,0] neg_lo:[0,1] neg_hi:[0,1]")
    pack(out, D)
    a(f"v_readlane_b32 s42, v{T+1}, 63")
    unpack(D, out)
    for i in range(0, 8, 2): a(f"v_pk_mul_f32 {V(D+i,2)}, {V(D+i,2)}, s[42:43] op_sel_hi:[1,0]")
    pack(out, D)

XR = 4
X_, D_, T_, XN, X1, WR = 8, 16, 24, 28, 32, 36
XO = 36
vQA, vOA, vIDX = 1, 2, 3
Q, ZZ, ACC, S0, S1, KK, VV = 8, 12, 16, 32, 48, 64, 128
WKV = 64
WQR, WO = 64, 128
FOR = 96
GU, WDn = 40, 56

def wkv_addr(vr):
    a(f"""s_andn2_b32 s41, s{sB}, 3
    s_add_u32 s41, s41, s{sH}
    s_lshl_b32 s41, s41, 13
    s_add_u32 s41, s41, {WS_WKV + 4096}
    v_lshl_add_u32 v{vr}, v0, 4, s41""")
def ffn_loads():
    a(f"""s_lshl_b32 s41, s{sJ}, 15
    s_lshl_b32 s42, s{sH}, 13
    s_add_u32 s41, s41, s42
    s_add_u32 s41, s41, {WS_FS + 4096}
    v_lshl_add_u32 v1, v0, 4, s41""")
    for i in range(6): a(f"global_load_dwordx4 {V(GU+4*i,4)}, v1, {P(sWS)} offset:{1024*i-4096} sc1")
def pos2tok(dst, src):
    a(f"""s_lshl_b32 s{dst}, s{sC}, 3
    s_add_u32 s{dst}, s{dst}, s{src}
    s_add_u32 s{dst}, s{dst}, 8
    s_and_b32 s{dst}, s{dst}, 31
    s_andn2_b32 s43, s{sTOK}, 31
    s_add_u32 s{dst}, s{dst}, s43""")

a(f"""
s_cmp_ge_u32 s2, 256
s_cbranch_scc1 L_exit
s_load_dwordx16 s[8:23], s[0:1], 0
s_load_dwordx8 s[24:31], s[0:1], 64
s_load_dwordx2 s[32:33], s[0:1], 96
v_lshrrev_b32 v1, 6, v0
v_and_b32 v0, 63, v0
s_mov_b32 s{sL}, 0
v_readfirstlane_b32 s{sW}, v1
s_and_b32 s{sC}, s2, 3
s_mov_b32 s{sLO}, 0x05040100
s_mov_b32 s{sHI}, 0x07060302
s_mov_b32 s{sF}, 0
s_mov_b32 s{sSEL}, -1
s_and_b32 s{sJ}, s2, 7
s_lshl_b32 s{sJ}, s{sJ}, 5
s_lshr_b32 s41, s2, 3
s_add_u32 s{sJ}, s{sJ}, s41
s_and_b32 s{sH}, s{sW}, 3
s_lshl_b32 s{sTOK}, s2, 3
s_add_u32 s{sTOK}, s{sTOK}, s{sW}
s_lshl_b32 s41, s{sTOK}, 10
v_lshl_add_u32 v1, v0, 4, s41
v_mov_b64 v[12:13], -1
v_mov_b64 v[14:15], -1
v_and_b32 v49, 15, v0
v_lshrrev_b32 v48, 4, v0
v_lshlrev_b32 v49, 4, v49
v_lshl_add_u32 v49, v48, 13, v49
s_cmp_lg_u32 s{sW}, 7
s_cbranch_scc1 S_z
v_lshlrev_b32 v2, 4, v0
v_add_u32 v2, {L_L}, v2
ds_write_b128 v2, v[12:15]
ds_write_b128 v2, v[12:15] offset:1024
ds_write_b128 v2, v[12:15] offset:2048
ds_write_b128 v2, v[12:15] offset:3072
v_mov_b64 v[8:9], 0
v_mov_b64 v[10:11], 0
ds_write_b128 v2, v[8:11] offset:{L_SC - L_L}
S_z:
""")
if TSON:
    for i in range(32): a(f"s_mov_b32 s{60+i}, 0")
TS(0)
a(f"""
s_waitcnt lgkmcnt(0)
s_mov_b32 s{sB}, s2
s_mov_b32 s{sSLOW}, 0
global_load_dwordx4 {V(XR,4)}, v1, {P(sX)}
s_load_dword s{sE}, {P(sWS)}, 0
s_barrier
s_cmp_ge_u32 s{sW}, 4
s_cbranch_scc1 S_noA
s_setprio 3""")
for g in range(3):
    a(f"s_add_u32 s44, s{sH}, {8*g}")
    pos2tok(41, 44)
    a(f"""s_lshl_b32 s41, s41, 10
    s_add_u32 s41, s41, 2048
    v_lshl_add_u32 v{16+g}, v0, 4, s41""")
for i in range(2): a(f"global_load_dwordx4 {V(FOR+4*i,4)}, v16, {P(sX)} offset:{4096*i-2048}")
a(f"""v_and_b32 v8, 7, v0
v_lshrrev_b32 v9, 4, v0
v_lshlrev_b32 v8, 2, v8
v_lshl_add_u32 v8, v9, 8, v8
s_lshl_b32 s41, s{sH}, 12
v_add_u32 v8, s41, v8
v_and_b32 v9, 8, v0
v_cmp_eq_u32 vcc, 0, v9
v_mov_b32 v10, s{sWV}
v_mov_b32 v11, s{sWK}
v_cndmask_b32 v10, v10, v11, vcc
v_mov_b32 v9, s{sWV+1}
v_mov_b32 v11, s{sWK+1}
v_cndmask_b32 v11, v9, v11, vcc
v_add_co_u32 v10, vcc, v10, v8
v_addc_co_u32 v11, vcc, 0, v11, vcc""")
for s in range(4):
    for j in range(8):
        a(f"global_load_dword v{WKV + 8*s + 4*(j&1) + (j>>1)}, v[10:11], off offset:{1024*s + 32*j}")
for i in range(2, 6): a(f"global_load_dwordx4 {V(FOR+4*i,4)}, v{16+(i>>1)}, {P(sX)} offset:{4096*(i&1)-2048}")
a(f"""v_and_b32 v8, 27, v0
v_cmp_eq_u32 vcc, 16, v8
v_mov_b32 v9, 0x3f803f80
v_cndmask_b32 v8, 0, v9, vcc
v_cndmask_b32 v9, 0, v9, vcc""")
for i in range(0, 128, 2): a(f"v_mov_b64 {V(VV+i,2)}, v[8:9]")
a(f"""s_waitcnt vmcnt(38)
s_branch R_P1
S_noA:
s_lshl_b32 s41, s{sH}, 17
s_lshl_b32 s42, s{sC}, 8
s_add_u32 s41, s41, s42
s_add_u32 s41, s41, 4096
v_add_u32 v48, s41, v49
s_lshr_b32 s43, s2, 3
s_cmp_lg_u32 s{sW}, 7
s_cbranch_scc1 S_no7
v_lshrrev_b32 v1, 5, v0
v_and_b32 v3, 31, v0
v_lshlrev_b32 v3, 4, v3
v_lshl_add_u32 v1, v1, 17, v3
s_lshl_b32 s41, s2, 9
s_add_u32 s41, s41, {WS_KV}
v_add_u32 v1, s41, v1
global_store_dwordx4 v1, v[12:15], {P(sWS)} sc1
s_lshl_b32 s41, s2, 7
s_add_u32 s41, s41, {WS_KEY}
s_lshl_b32 s42, s{sJ}, 7
s_add_u32 s42, s42, {WS_HY - 128}
v_mov_b32 v1, s41
v_mov_b32 v3, s42
v_cmp_gt_u32 vcc, 8, v0
v_cndmask_b32 v1, v3, v1, vcc
v_lshl_add_u32 v1, v0, 4, v1
s_mov_b64 exec, 0xffff
global_store_dwordx4 v1, v[12:15], {P(sWS)} sc1
s_mov_b64 exec, -1
s_waitcnt vmcnt(2)
s_branch R_P1
S_no7:
s_cmp_lg_u32 s{sW}, 4
s_cbranch_scc1 S_no4
v_lshrrev_b32 v1, 2, v0
v_and_b32 v3, 3, v0
v_lshlrev_b32 v3, 6, v3
v_lshl_add_u32 v1, v1, 10, v3
s_lshl_b32 s41, s43, 14
s_lshl_b32 s42, s{sC}, 8
s_add_u32 s41, s41, s42
v_add_u32 v1, s41, v1
global_load_dword v40, v1, {P(sWQ)}
s_lshl_b32 s41, s43, 12
s_lshl_b32 s42, s{sC}, 17
s_add_u32 s41, s41, s42
v_lshl_add_u32 v1, v0, 6, s41
global_load_dword v41, v1, {P(sWO)}
s_branch S_pf
S_no4:
s_cmp_lg_u32 s{sW}, 5
s_cbranch_scc1 S_no5
s_and_b32 s41, s43, 3
s_lshl_b32 s41, s41, 12
v_lshl_add_u32 v1, v0, 6, s41
global_load_dword v40, v1, {P(sWK)}
global_load_dword v41, v1, {P(sWV)}
s_branch S_pf
S_no5:
s_getpc_b64 s[42:43]
s_lshr_b32 s41, s2, 3
s_and_b32 s41, s41, 7
s_min_u32 s41, s41, {CODECH-1}
s_lshl_b32 s41, s41, 12
v_lshl_add_u32 v1, v0, 6, s41
global_load_dword v40, v1, s[42:43]
v_lshlrev_b32 v1, 4, v0
global_load_dwordx4 v[44:47], v1, {P(sWR)}
S_pf:""")
for j in range(8): a(f"global_load_dwordx4 {V(128+4*j,4)}, v48, {P(sWQ)} offset:{1024*j-4096}")
if os.environ.get("TLBW"):
    a(f"""s_cmp_lg_u32 s{sW}, 5
    s_cbranch_scc1 S_nt
    v_min_u32 v1, 43, v0
    v_lshlrev_b32 v1, 20, v1
    s_lshl_b32 s41, s2, 12
    v_add_u32 v1, s41, v1
    global_load_dword v42, v1, {P(sWS)} sc1
    v_mov_b32 v1, s41
    global_load_dword v43, v1, {P(sOUT)} sc1
    global_load_dword v50, v1, {P(sWG)}
    global_load_dword v51, v1, {P(sWU)}
    global_load_dword v52, v1, {P(sWD)}
    s_waitcnt vmcnt(15)
    s_branch R_P1
    S_nt:""")
a("s_waitcnt vmcnt(10)")
def key_make():
    a(f"""v_cvt_pk_bf16_f32 v1, 0, v1
    v_ashrrev_i32 v2, 31, v1
    v_or_b32 v2, 0x80000000, v2
    v_xor_b32 v1, v1, v2
    v_and_b32 v1, 0xffff0000, v1
    s_sub_u32 s41, 2047, s{sTOK}
    v_or_b32 v1, s41, v1
    s_lshl_b32 s41, s{sW}, 2
    s_add_u32 s41, s41, {L_SC + SC_KEYS}
    v_mov_b32 v2, s41
    v_readlane_b32 s{sMYK}, v1, 63
    v_mov_b32 v3, {L_SC}
    s_mov_b32 exec_lo, 0
    s_mov_b32 exec_hi, 0x80000000
    ds_write_b32 v2, v1
    s_mov_b64 exec, -1""")
a("R_P1:")
TS(1)
unpack(X_, XR)
ln(X_, D_, T_, XO, [1])
a(f"""s_add_u32 s41, s{sW}, 8
v_xor_b32 v2, s41, v0
s_add_u32 s41, s{sW}, 24
s_lshl_b32 s41, s41, 10
s_add_u32 s41, s41, {L_XN}
v_lshl_add_u32 v2, v2, 4, s41
ds_write_b128 v2, {V(XO,4)}
s_cmp_eq_u32 s{sL}, 0
s_cbranch_scc1 S_l0
s_lshl_b32 s41, s{sTOK}, 10
s_add_u32 s41, s41, {WS_XN}
v_lshl_add_u32 v2, v0, 4, s41
s_waitcnt vmcnt(0)
global_store_dwordx4 v2, {V(XO,4)}, {P(sWS)} sc1""")
key_make()
a(f"""s_cmp_ge_u32 s{sW}, 4
s_cbranch_scc1 H_B1
s_setprio 3""")
a(f"""A_kvp:
v_and_b32 v8, 7, v0
v_add_u32 v8, 8, v8
v_lshrrev_b32 v9, 4, v0
v_xor_b32 v9, v9, v8
v_lshlrev_b32 v8, 10, v8
s_lshl_b32 s41, s{sH}, 8
s_add_u32 s41, s41, {L_XN + 16*1024}
v_add_u32 v8, s41, v8
v_xor_b32 v10, 4, v9
v_xor_b32 v11, 8, v9
v_xor_b32 v12, 12, v9
v_lshl_add_u32 v9, v9, 4, v8
v_lshl_add_u32 v10, v10, 4, v8
v_lshl_add_u32 v11, v11, 4, v8
v_lshl_add_u32 v12, v12, 4, v8
s_cmp_eq_u32 s{sL}, 0
s_cbranch_scc1 A_kv2
s_waitcnt lgkmcnt(0)
s_barrier
A_kv2:
ds_read_b128 v[40:43], v9
ds_read_b128 v[44:47], v10
ds_read_b128 v[48:51], v11
ds_read_b128 v[52:55], v12
s_lshl_b32 s41, s{sH}, 11
s_add_u32 s41, s41, {L_KVS}
v_lshl_add_u32 v8, v0, 4, s41
s_lshl_b32 s42, s{sL}, 2
v_add_u32 v9, s42, v3
v_mov_b32 v10, 1""")
for s in range(4):
    a(f"s_waitcnt lgkmcnt({3-s})")
    a(f"v_mfma_f32_16x16x32_bf16 v[56:59], {V(WKV+8*s,4)}, {V(40+4*s,4)}, {'0' if s==0 else 'v[56:59]'}")
    a(f"v_mfma_f32_16x16x32_bf16 v[60:63], {V(WKV+8*s+4,4)}, {V(40+4*s,4)}, {'0' if s==0 else 'v[60:63]'}")
a(f"""v_and_b32 v12, 1, v0
v_lshrrev_b32 v13, 3, v0
v_lshlrev_b32 v13, 4, v13
v_lshl_add_u32 v12, v12, 10, v13
v_bfe_u32 v13, v0, 1, 2
v_lshl_add_u32 v12, v13, 2, v12
v_add_u32 v12, {L_KVS}, v12
v_bfe_u32 v13, v0, 2, 1
ds_write_b128 v8, v[56:59]
ds_write_b128 v8, v[60:63] offset:1024
s_mov_b64 exec, 1
ds_add_rtn_u32 v11, v9, v10 offset:{SC_KVCNT}
s_mov_b64 exec, -1
v_lshrrev_b32 v14, 5, v0
v_lshlrev_b32 v14, 8, v14
v_lshl_add_u32 v13, v13, 10, v14
v_and_b32 v14, 3, v0
v_lshl_add_u32 v13, v14, 5, v13
v_bfe_u32 v14, v0, 3, 2
v_lshl_add_u32 v13, v14, 2, v13
v_add_u32 v13, {L_KVS + 512}, v13
v_add_u32 v14, 16, v13
s_waitcnt lgkmcnt(0)
v_readfirstlane_b32 s42, v11
s_cmp_lg_u32 s42, 3
s_cbranch_scc1 A_nokv""")
for w in range(4): a(f"ds_read2st64_b32 {V(40+2*w,2)}, v12 offset0:{8*w} offset1:{8*w+1}")
a(f"""ds_read2st64_b32 v[48:49], v13 offset0:0 offset1:8
ds_read2st64_b32 v[50:51], v13 offset0:16 offset1:24
ds_read2st64_b32 v[52:53], v14 offset0:0 offset1:8
ds_read2st64_b32 v[54:55], v14 offset0:16 offset1:24
s_lshl_b32 s41, s{sL}, 17
s_lshl_b32 s42, s{sB}, 9
s_add_u32 s41, s41, s42
s_add_u32 s41, s41, {WS_KV}
v_lshl_add_u32 v8, v0, 2, s41
s_waitcnt lgkmcnt(4)
v_pk_add_f32 v[40:41], v[40:41], v[42:43]
v_pk_add_f32 v[44:45], v[44:45], v[46:47]
v_pk_add_f32 v[40:41], v[40:41], v[44:45]
v_cvt_pk_bf16_f32 v40, v40, v41
global_store_dword v8, v40, {P(sWS)} sc1
s_waitcnt lgkmcnt(0)
v_pk_add_f32 v[48:49], v[48:49], v[50:51]
v_pk_add_f32 v[52:53], v[52:53], v[54:55]
v_add_f32 v48, v48, v49
v_add_f32 v52, v52, v53
v_cvt_pk_bf16_f32 v48, v48, v52
global_store_dword v8, v48, {P(sWS)} offset:256 sc1
A_nokv:
s_setprio 0""")
if not os.environ.get("PP"): TS(2)
def stage(src, off, temps):
    for f in range(8):
        t = temps[f % len(temps)]
        for i in range(4):
            a(f"v_perm_b32 v{t+i}, v{src+4*(2*i+1)+(f>>1)}, v{src+4*(2*i)+(f>>1)}, s{sHI if f&1 else sLO}")
        a(f"ds_write_b128 v1, {V(t,4)} offset:{off+1024*f}")
a(f"""s_cmp_lg_u32 s{sL}, 0
s_cbranch_scc1 R_cand
s_mov_b32 s45, 6
s_branch S_fl
S_l0:
v_mov_b32 v3, {L_SC}
s_waitcnt lgkmcnt(0)
s_mul_i32 s{sTAG}, s{sE}, 0x9e3779b1
s_add_u32 s{sTAG}, s{sTAG}, 0x7f4a7c15
s_cmp_ge_u32 s{sW}, 4
s_cbranch_scc1 H_stage""")
lds_inc(3, SC_B1, 8)
a(f"""s_mov_b32 s44, 0
s_mov_b32 s45, {NPRE}
s_waitcnt vmcnt(36)
S_fl:""")
unpack(X_, FOR)
ln(X_, D_, T_, XO)
a(f"""s_lshl_b32 s41, s44, 2
s_add_u32 s41, s41, s{sH}
s_and_b32 s42, s41, 15
v_xor_b32 v1, s42, v0
s_lshl_b32 s41, s41, 10
s_add_u32 s41, s41, {L_XN}
v_lshl_add_u32 v1, v1, 4, s41
ds_write_b128 v1, {V(XO,4)}
s_add_u32 s44, s44, 1
s_cmp_lt_u32 s44, {NPRE}
s_cbranch_scc1 S_f1
s_waitcnt vmcnt(2)
s_cmp_lg_u32 s44, {NPRE}
s_cbranch_scc1 S_f2
s_waitcnt vmcnt(0)
S_f2:
s_lshl_b32 s41, s44, 2
s_set_gpr_idx_on s41, gpr_idx(SRC0)
s_nop 1
v_mov_b32 v{FOR}, v{FOR}
v_mov_b32 v{FOR+1}, v{FOR+1}
v_mov_b32 v{FOR+2}, v{FOR+2}
v_mov_b32 v{FOR+3}, v{FOR+3}
s_nop 1
s_set_gpr_idx_off
s_branch S_f3
S_f1:
v_mov_b64 {V(FOR,2)}, {V(FOR+4,2)}
v_mov_b64 {V(FOR+2,2)}, {V(FOR+6,2)}
S_f3:
s_cmp_lt_u32 s44, s45
s_cbranch_scc1 S_fl
s_cmp_eq_u32 s45, 6
s_cbranch_scc1 A_nst""")
for s in range(4):
    for i in range(4): tr_pair(WKV+8*s+i, WKV+8*s+4+i, 8)
lds_wait(3, SC_B1, 8, 8, 0)
a(f"""s_branch A_kvp
A_nst:""")
TSA(27)
a(f"""s_cmp_lg_u32 s{sH}, s{sC}
s_cbranch_scc1 A_P2x""")
wkv_addr(1)
for i in range(8): a(f"global_store_dwordx4 v1, {V(WKV+4*i,4)}, {P(sWS)} offset:{1024*i-4096} sc1")
a(f"""A_P2x:
s_branch A_P2
H_B1:
s_waitcnt lgkmcnt(0)
s_barrier
s_setprio 2""")
a(f"""R_cand:
ds_read_b128 v[8:11], v3 offset:{SC_KEYS}
ds_read_b128 v[12:15], v3 offset:{SC_KEYS+16}
s_lshl_b32 s41, s{sF}, 19
s_lshl_b32 s42, s{sB}, 11
s_add_u32 s41, s41, s42
s_add_u32 s41, s41, {WS_CAND}
v_lshl_add_u32 v2, v0, 4, s41
s_lshl_b32 s41, s{sB}, 7
s_lshl_b32 s42, s{sF}, 2
s_add_u32 s41, s41, s42
s_add_u32 s41, s41, {WS_KEY}
v_mov_b32 v16, s41
s_waitcnt lgkmcnt(0)
v_max3_u32 v8, v8, v9, v10
v_max3_u32 v12, v12, v13, v14
v_max3_u32 v8, v8, v11, v15
v_max_u32 v8, v8, v12
v_readfirstlane_b32 s41, v8
s_mov_b32 s{sCAND}, 0
s_cmp_lg_u32 s41, s{sMYK}
s_cbranch_scc1 R_nocand
s_mov_b32 s{sCAND}, 1
s_mov_b64 exec, 1
global_store_dword v16, v8, {P(sWS)} sc1
s_mov_b64 exec, -1
global_store_dwordx4 v2, {V(XN,4)}, {P(sWS)} sc1
global_store_dwordx4 v2, {V(X1,4)}, {P(sWS)} offset:1024 sc1
R_nocand:""")
TSF(8)
a(f"""s_cmp_lg_u32 s{sF}, 0
s_cbranch_scc1 R_tail
s_cmp_ge_u32 s{sW}, 4
s_cbranch_scc1 H_gather""")
def key_reduce():
    dpp_reduce([8], "v_max_u32")
    a(f"""s_lshl_b32 s41, s{sF}, 4
    s_lshl_b32 s42, s{sH}, 2
    s_add_u32 s41, s41, s42
    v_add_u32 v9, s41, v3
    v_add_u32 v8, 1, v8
    s_mov_b32 exec_lo, 0
    s_mov_b32 exec_hi, 0x80000000
    ds_write_b32 v9, v8 offset:{SC_GK}
    s_mov_b64 exec, -1""")
def key_poll():
    l1 = a.newlabel("K_p")
    a(f"""s_lshl_b32 s42, s{sF}, 2
    s_lshl_b32 s41, s{sH}, 13
    s_add_u32 s42, s42, s41
    s_add_u32 s42, s42, {WS_KEY}
    v_lshl_add_u32 v9, v0, 7, s42
    s_mov_b32 s{sCNT}, 0
    {l1}:
    global_load_dword v8, v9, {P(sWS)} sc1
    s_waitcnt vmcnt(0)
    v_cmp_eq_u32 vcc, -1, v8""")
    poll_guard(l1, "s_cbranch_vccz", "K_pd")
    key_reduce()
def key_get(sleep):
    l2 = a.newlabel("K_g")
    a(f"""s_lshl_b32 s41, s{sF}, 4
    v_add_u32 v10, s41, v3
    s_mov_b32 s{sCNT}, 0
    {l2}:""")
    a(f"""ds_read_b128 v[16:19], v10 offset:{SC_GK}
    s_waitcnt lgkmcnt(0)
    v_min3_u32 v8, v16, v17, v18
    v_min_u32 v8, v8, v19
    v_cmp_eq_u32 vcc, 0, v8""")
    poll_guard(l2, "s_cbranch_vccz", "K_gd", 8, sleep)
    a(f"""v_max3_u32 v8, v16, v17, v18
    v_max_u32 v8, v8, v19
    v_readfirstlane_b32 s{sKEY}, v8
    s_sub_u32 s{sKEY}, s{sKEY}, 1
    s_and_b32 s41, s{sKEY}, 0x7ff
    s_sub_u32 s{sSEL}, 2047, s41""")
a(f"""A_P2:
s_lshl_b32 s42, s{sL}, 2
v_add_u32 v9, s42, v3""")
lds_inc(9, SC_XNC, 8)
a(f"""s_lshl_b32 s41, s{sL}, 17
s_lshl_b32 s42, s{sH}, 15
s_add_u32 s41, s41, s42
s_add_u32 s41, s41, {WS_KV}
s_add_u32 s41, s41, 2048
v_bfe_u32 v14, v0, 3, 2
v_and_b32 v15, 7, v0
v_lshlrev_b32 v15, 5, v15
v_lshl_add_u32 v14, v14, 9, v15
v_lshrrev_b32 v11, 5, v0
v_lshl_add_u32 v14, v11, 4, v14
v_add_u32 v14, s41, v14
v_and_b32 v15, 15, v0
v_lshlrev_b32 v15, 4, v15
v_lshl_add_u32 v15, v11, 9, v15
s_add_u32 s41, s41, 256
v_add_u32 v15, s41, v15
s_mov_b32 s{sORD}, 0x65432108
s_mov_b32 s{sORD+1}, 0x7
s_mov_b32 s{sWT}, 15
s_lshl_b32 s41, s{sH}, 13
s_cmp_eq_u32 s{sL}, 0
s_cselect_b32 s42, {WS_FLAG}, 0
s_cselect_b32 s43, 0, {WS_KEY}
s_add_u32 s41, s41, s42
s_add_u32 s41, s41, s43
v_lshl_add_u32 v10, v0, 7, s41
s_cmp_lg_u32 s{sL}, 0
s_cbranch_scc1 A_nfl
s_mov_b32 s{sCNT}, 0
A_flg:
global_load_dword v8, v10, {P(sWS)} sc1
s_waitcnt vmcnt(0)
v_cmp_ne_u32 vcc, s{sTAG}, v8""")
poll_guard("A_flg", "s_cbranch_vccz", "A_flgd", 1, 2)
a("A_nfl:")
lds_wait(9, SC_XNC, 8, 8, 1)
TS(3)
def kv_pair(p):
    a(f"""s_add_u32 s0, s{sWS}, {0x1000*p}
    s_addc_u32 s1, s{sWS+1}, 0""")
    for k in range(2):
        a(f"global_load_dwordx4 {V(KK+8*p+4*k,4)}, v14, s[0:1] offset:{2048*k-2048} sc1")
    a("s_mov_b64 exec, s[98:99]")
    for i in range(4):
        a(f"global_load_dwordx4 {V(VV+16*p+4*i,4)}, v15, s[0:1] offset:{1024*i-2048} sc1")
    a("s_mov_b64 exec, -1")
def kv_check(p, younger):
    fr = [KK+8*p, KK+8*p+4] + [VV+16*p+4*i for i in range(4)]
    a(f"""s_waitcnt vmcnt({younger})
    C_r{p}:
    v_max3_u32 v12, v{fr[0]}, v{fr[1]}, v{fr[2]}
    v_max3_u32 v13, v{fr[3]}, v{fr[4]}, v{fr[5]}
    v_max_u32 v12, v12, v13
    v_cmp_eq_u32 vcc, -1, v12
    s_cbranch_vccnz C_x{p}
    C_o{p}:
    s_cmp_eq_u32 s3, {p}
    s_cbranch_scc1 C_m{p}
    C_b{p}:""")
def kv_tail(p):
    a(f"""C_x{p}:
    s_add_u32 s{sCNT}, s{sCNT}, 1
    s_cmp_ge_u32 s{sCNT}, {POLLMAX}
    s_cbranch_scc1 C_o{p}""")
    kv_pair(p)
    a(f"""s_waitcnt vmcnt(0)
    s_branch C_r{p}
    C_m{p}:
    v_mov_b32 v12, s5
    s_mov_b64 exec, s[6:7]
    s_set_gpr_idx_on s4, gpr_idx(SRC0,DST)
    s_nop 1
    v_and_b32 v{VV}, v{VV}, v12
    s_nop 1
    s_set_gpr_idx_off
    s_mov_b64 exec, -1
    s_nop 1
    s_branch C_b{p}""")
DEP = 3
a("s_mov_b32 s98, 0xffff\ns_mov_b32 s99, 0xffff")
for p in range(DEP): kv_pair(p)
a(f"""s_mov_b32 s3, 15
s_cmp_eq_u32 s{sL}, 0
s_cbranch_scc1 A_go
s_mov_b32 s{sCNT}, 0
A_kp:
global_load_dword v8, v10, {P(sWS)} sc1
s_waitcnt vmcnt(0)
v_cmp_eq_u32 vcc, -1, v8""")
poll_guard("A_kp", "s_cbranch_vccz", "A_kpd", 1, 1)
key_reduce()
key_get(0)
a(f"""s_bfe_u32 s4, s{sSEL}, 0x50004
s_lshl_b32 s4, s4, 2
s_bfe_u32 s42, s{sSEL}, 0x20001
s_add_u32 s4, s4, s42
s_bitcmp1_b32 s{sSEL}, 0
s_mov_b32 s5, 0xffff0000
s_cselect_b32 s5, 0xffff, s5
s_bitcmp1_b32 s{sSEL}, 3
s_cselect_b32 s6, 0, -1
s_cselect_b32 s7, -1, 0
s_lshr_b32 s41, s{sSEL}, 9
s_bfe_u32 s42, s{sSEL}, 0x30006
s_cmp_eq_u32 s41, s{sH}
s_cselect_b32 s3, s42, 15
s_xor_b32 s41, s{sSEL}, s{sTOK}
s_lshr_b32 s41, s41, 5
s_cbranch_scc1 A_go
s_lshl_b32 s41, s{sC}, 3
s_sub_u32 s41, s{sSEL}, s41
s_sub_u32 s41, s41, 8
s_bfe_u32 s{sWT}, s41, 0x30002
s_or_b32 s41, s{sWT}, 1
s_max_u32 s41, s41, 4
s_xor_b32 s42, s41, s{sWT}
s_mov_b32 s43, 0
s_lshl_b32 s41, s41, 2
s_add_u32 s41, s41, 4
s_lshl_b64 s[44:45], s[42:43], s41
s_xor_b64 {P(sORD)}, {P(sORD)}, s[44:45]
s_lshl_b32 s41, s{sWT}, 2
s_add_u32 s41, s41, 4
s_lshl_b64 s[44:45], s[42:43], s41
s_xor_b64 {P(sORD)}, {P(sORD)}, s[44:45]
A_go:
s_lshl_b32 s42, s{sL}, 2
v_add_u32 v9, s42, v3""")
def att_addr():
    a(f"""v_bfe_u32 v1, v0, 3, 2
    v_mul_u32_u24 v1, {QSTR}, v1
    v_and_b32 v2, 7, v0
    v_lshl_add_u32 v1, v2, 5, v1
    v_lshrrev_b32 v2, 5, v0
    v_lshl_add_u32 v1, v2, 4, v1
    v_add_u32 v{vQA}, {L_Q}, v1
    s_lshl_b32 s41, s{sH}, 11
    s_add_u32 s41, s41, {L_SLOT}
    v_lshl_add_u32 v{vOA}, v0, 4, s41
    v_mov_b32 v{vIDX}, 0xdddddddd
    v_and_b32 v0, 31, v0
    s_lshl_b32 s41, s{sH}, 7
    s_add_u32 s41, s41, {L_L}
    v_lshl_add_u32 v0, v0, 2, s41""")
att_addr()
a(f"s_mov_b32 s{sCNT}, 0")
kv_check(0, 6*(DEP-1))
TS(4)
lds_wait(9, SC_QC, 10, 4, 0)
a(f"""s_bfe_u32 s41, s{sORD}, 0x40004
s_mul_i32 s41, s41, {4*QSTR}
v_add_u32 v{Q}, s41, v{vQA}
ds_read_b128 {V(Q,4)}, v{Q}
s_mov_b32 s{sCNT}, 0""")
for i in range(0, 10, 2): a(f"v_mov_b64 {V(ACC+i,2)}, 0")
TS(5)
TC(0)
def smf(vfrag, pb): a(f"v_smfmac_f32_32x32x32_bf16 {V(ACC,16)}, {V(VV+4*vfrag,4)}, {V(pb,8)}, v{vIDX}")
def ex(base, lo, hi):
    for i in range(lo, hi): a(f"v_exp_f32 v{base+i}, v{base+i}")
def flush():
    a(f"""v_lshl_add_u32 v{ACC+10}, s41, 13, v{vOA}
    v_lshl_add_u32 v{ACC+11}, s41, 9, v0
    ds_write_b128 v{ACC+10}, {V(ACC,4)}
    ds_write_b128 v{ACC+10}, {V(ACC+4,4)} offset:1024
    ds_write_b32 v{ACC+11}, v{ACC+8}""")
a(f"""s_waitcnt lgkmcnt(0)
v_mfma_f32_32x32x16_bf16 {V(S0,16)}, {V(KK,4)}, {V(Q,4)}, 0""")
NT = 16
def att_pass(first):
    for kt in range(NT):
        cur, oth = (S0, S1) if kt % 2 == 0 else (S1, S0)
        if first and kt % 2 == 0 and kt//2 + DEP < 8:
            kv_pair(kt//2 + DEP)
            if kt//2 + DEP == 7:
                a(f"v_mov_b32 v12, {L_SC}")
                lds_inc(12, SC_KVD, 13)
        ex(cur, 0, 2)
        if not (first and kt == 0): smf((2*kt - 1) % (2*NT), oth + 8)
        ex(cur, 2, 5)
        if kt == NT-1: a("s_waitcnt lgkmcnt(0)")
        if first and kt % 2 == 1 and kt < NT-1:
            p = (kt+1)//2
            kv_check(p, 6*(min(kt//2 + DEP, 7) - p))
        a(f"v_mfma_f32_32x32x16_bf16 {V(oth,16)}, {V(KK+4*((kt+1)%NT),4)}, {V(Q,4)}, 0")
        if kt == NT-2:
            a(f"s_bfe_u32 s41, s{sORD}, 0x40008")
            if not first:
                a(f"""s_cmp_eq_u32 s41, s{sWT}
                s_cbranch_scc1 A_qwait
                A_qback:""")
            a(f"""s_mul_i32 s41, s41, {4*QSTR}
            v_add_u32 v{Q}, s41, v{vQA}
            ds_read_b128 {V(Q,4)}, v{Q}""")
        if kt == 0 and not first:
            a(f"s_and_b32 s41, s{sORD}, 15")
            ex(cur, 5, 12)
            flush()
            a(f"v_mfma_f32_32x32x8_f16 {V(ACC,16)}, {V(ZZ,2)}, {V(ZZ,2)}, 0")
            ex(cur, 12, 15)
            smf(0, cur)
            ex(cur, 15, 16)
        else:
            ex(cur, 5, 10)
            smf(2*kt, cur)
            ex(cur, 10, 16)
att_pass(True)
a(f"""v_mov_b64 {V(ZZ,2)}, 0
s_lshr_b64 {P(sORD)}, {P(sORD)}, 4""")
if not os.environ.get('PP'): TS(12)
if TSON:
    a(f"""s_cmp_eq_u32 s{sL}, 0
    s_cselect_b32 s73, s{sCNT}, s73
    s_cselect_b32 s89, s89, s{sCNT}""")
a("A_pass:")
if os.environ.get("PP"): a("s_memtime s[96:97]")
att_pass(False)
if os.environ.get("PP"):
    a(f"""s_cmp_lg_u32 s{sL}, {os.environ.get("PP")}
    s_cbranch_scc1 A_ppx""")
    for d, q in ((86, 87), (87, 88), (88, 74), (74, 70), (70, 71), (71, 62), (62, 96)): a(f"s_mov_b32 s{d}, s{q}")
    a("A_ppx:")
a(f"""s_lshr_b64 {P(sORD)}, {P(sORD)}, 4
s_cmp_gt_u32 s{sORD}, 15
s_cbranch_scc1 A_pass""")
smf(2*NT-1, S1 + 8)
a(f"s_and_b32 s41, s{sORD}, 15")
flush()
TC(1)
TS(9)
a(f"""A_X:
v_mbcnt_lo_u32_b32 v0, -1, 0
v_mbcnt_hi_u32_b32 v0, -1, v0
s_waitcnt lgkmcnt(0)
s_barrier""")
TS(6)
a(f"""v_mov_b32 v9, {L_SC}
s_barrier
ds_read_b32 v9, v9 offset:{SC_BAD}""")
wkv_addr(1)
a(f"""s_waitcnt lgkmcnt(0)
v_cmp_ne_u32 vcc, 0, v9
s_cbranch_vccnz A_slow
s_cmp_lg_u32 s{sL}, 0
s_cbranch_scc1 R_P4""")
for i in range(8): a(f"global_load_dwordx4 {V(WKV+4*i,4)}, v1, {P(sWS)} offset:{1024*i-4096} sc1")
a(f"""R_P4:
v_lshrrev_b32 v1, 4, v0
v_and_b32 v2, 15, v0
v_lshlrev_b32 v2, 4, v2
v_lshl_add_u32 v1, v1, 9, v2
s_lshl_b32 s41, s{sW}, 11
s_add_u32 s41, s41, {L_ROW}
v_add_u32 v1, s41, v1
s_mov_b32 s{sF}, s{sL}
s_mov_b32 s{sSLOW}, 0
v_lshlrev_b32 v2, 4, v0
v_add_u32 v2, {L_X2S}, v2
ds_read_b128 {V(WR,4)}, v2 offset:{L_SC + SC_WR - L_X2S}
s_cmp_lg_u32 s{sSEL}, s{sTOK}
s_cbranch_scc1 R_nx
ds_read_b128 {V(XR,4)}, v2
s_waitcnt lgkmcnt(0)
R_nx:""")
unpack(24, XR)
a(f"""s_barrier
ds_read_b128 v[8:11], v1
ds_read_b128 v[12:15], v1 offset:256
ds_read_b128 v[16:19], v1 offset:16384
ds_read_b128 v[20:23], v1 offset:16640
s_waitcnt lgkmcnt(0)""")
TS(7)
pkadd(8, 8, 16, 8)
pack(16, 8); unpack(8, 16)
pkadd(8, 8, 24, 8)
pack(X1, 8)
unpack(X_, X1)
ln(X_, D_, T_, XN)
a(f"""v_dot2_f32_bf16 v1, v{XN}, v{WR}, 0
v_dot2_f32_bf16 v1, v{XN+1}, v{WR+1}, v1
v_dot2_f32_bf16 v1, v{XN+2}, v{WR+2}, v1
v_dot2_f32_bf16 v1, v{XN+3}, v{WR+3}, v1""")
unpack(D_, XN)
pkadd(D_, D_, X_, 8)
pack(XR, D_)
a(f"""s_cmp_eq_u32 s{sL}, 0
s_mov_b32 s{sL}, 1
s_cbranch_scc1 R_P1""")
dpp_reduce([1])
key_make()
a(f"""s_waitcnt lgkmcnt(0)
s_barrier
s_branch R_cand
R_tail:
s_lshl_b32 s41, s{sTOK}, 10
v_lshl_add_u32 v1, v0, 4, s41
s_cmp_lg_u32 s{sCAND}, 0
s_cbranch_scc1 R_noout
global_store_dwordx4 v1, {V(XR,4)}, {P(sOUT)}{OUTF}
R_noout:
s_cmp_ge_u32 s{sW}, 4
s_cbranch_scc1 H_FFN""")
key_poll()
a(f"""s_cmp_eq_u32 s{sCAND}, 0
s_cbranch_scc1 L_end""")
key_get(1)
a(f"""R_last:
s_cmp_eq_u32 s{sCAND}, 0
s_cbranch_scc1 L_end
s_cmp_eq_u32 s{sSEL}, s{sTOK}
s_cbranch_scc1 L_end
s_lshl_b32 s41, s{sTOK}, 10
v_lshl_add_u32 v1, v0, 4, s41
global_store_dwordx4 v1, {V(XR,4)}, {P(sOUT)}{OUTF}
s_branch L_end
A_qwait:
v_mov_b32 v14, {L_SC}""")
lds_wait(14, SC_QFIX, 15, 4, 1)
a(f"""s_mov_b32 s{sWT}, 15
s_branch A_qback""")
for p in range(8): kv_tail(p)

a(f"""H_stage:
s_cmp_lg_u32 s{sW}, 7
s_cbranch_scc1 H_st7
s_lshl_b32 s41, s{sB}, 7
s_add_u32 s41, s41, {WS_FLAG}
v_mov_b32 v1, s41
v_mov_b32 v2, s{sTAG}
s_waitcnt vmcnt(0)
s_mov_b64 exec, 1
global_store_dword v1, v2, {P(sWS)} sc1
s_mov_b64 exec, -1""")
lds_inc(3, SC_B1, 8)
for j in range(8): a(f"global_load_dwordx4 {V(128+4*j,4)}, v48, {P(sWQ)} offset:{1024*j-4096}")
a("v_add_u32 v48, 0x8000, v48")
for j in range(8): a(f"global_load_dwordx4 {V(160+4*j,4)}, v48, {P(sWQ)} offset:{1024*j-4096}")
a("s_branch H_st1\nH_st7:")
lds_inc(3, SC_B1, 8)
for s in (1, 2, 3):
    a("v_add_u32 v48, 0x8000, v48")
    for j in range(8): a(f"global_load_dwordx4 {V(128+32*s+4*j,4)}, v48, {P(sWQ)} offset:{1024*j-4096}")
a(f"""H_st1:
s_lshl_b32 s41, s{sH}, 2
s_lshl_b32 s42, s{sC}, 8
s_add_u32 s41, s41, s42
s_add_u32 s41, s41, {448*1024+4096}
v_add_u32 v2, s41, v49
v_add_u32 v3, 0x8000, v2""")
for s in range(2):
    for j in range(8):
        a(f"global_load_dword v{WQR+48+8*s+4*(j&1)+(j>>1)}, v{2+s}, {P(sWQ)} offset:{1024*j-4096}")
a(f"""s_setprio 2
s_lshl_b32 s41, s{sH}, 15
v_lshl_add_u32 v1, v0, 4, s41
s_cmp_lg_u32 s{sH}, 3
s_cbranch_scc1 H_st2
s_waitcnt vmcnt(16)
H_st2:""")
TSA(26)
for s in range(4):
    if s == 2: a(f"s_cmp_eq_u32 s{sH}, 3\ns_cbranch_scc1 H_st3")
    a(f"s_waitcnt vmcnt({40-8*s})")
    stage(128+32*s, 8192*s, [8, 12, 16, 20, 24, 28, 32, 36])
a(f"""H_st3:
s_cmp_lg_u32 s{sW}, 6
s_cbranch_scc1 H_st0
v_lshlrev_b32 v1, 4, v0
v_add_u32 v1, {L_SC + SC_WR}, v1
ds_write_b128 v1, v[44:47]
H_st0:
s_waitcnt vmcnt(0)""")
for s in range(2):
    for i in range(4): tr_pair(WQR+48+8*s+i, WQR+48+8*s+4+i, 40)
TSA(4)
a("s_branch H_P2")
a("H_gather:")

for g in range(3):
    a(f"s_add_u32 s44, s{sH}, {8*g}")
    pos2tok(41, 44)
    a(f"""s_lshl_b32 s41, s41, 10
    s_add_u32 s41, s41, {WS_XN + 2048}
    v_lshl_add_u32 v{8+g}, v0, 4, s41""")
a(f"""v_xor_b32 v12, s{sH}, v0
v_xor_b32 v13, 4, v12
v_xor_b32 v14, 8, v12
v_xor_b32 v15, 12, v12
s_lshl_b32 s41, s{sH}, 10
s_add_u32 s41, s41, {L_XN}
v_lshl_add_u32 v12, v12, 4, s41
v_lshl_add_u32 v13, v13, 4, s41
v_lshl_add_u32 v14, v14, 4, s41
v_lshl_add_u32 v15, v15, 4, s41
s_mov_b32 s{sCNT}, 0
H_xg:""")
for i in range(6): a(f"global_load_dwordx4 {V(40+4*i,4)}, v{8+(i>>1)}, {P(sWS)} offset:{4096*(i&1)-2048} sc1")
a(f"""s_waitcnt vmcnt(0)
v_max3_u32 v16, v40, v44, v48
v_max3_u32 v17, v52, v56, v60
v_max_u32 v16, v16, v17
v_cmp_eq_u32 vcc, -1, v16""")
poll_guard("H_xg", "s_cbranch_vccz", "H_xgd")
for i in range(6): a(f"ds_write_b128 v{12+(i&3)}, {V(40+4*i,4)} offset:{4096*i}")
a(f"""H_P2:
s_lshl_b32 s42, s{sL}, 2
s_add_u32 s42, s42, {L_SC}
v_mov_b32 v3, s42""")
lds_inc(3, SC_XNC, 12)
a(f"""v_and_b32 v1, 15, v0
v_lshrrev_b32 v2, 4, v0
v_xor_b32 v8, v2, v1
v_lshlrev_b32 v1, 10, v1
v_add_u32 v1, {L_XN}, v1
v_xor_b32 v9, 4, v8
v_xor_b32 v10, 8, v8
v_xor_b32 v11, 12, v8
v_lshl_add_u32 v8, v8, 4, v1
v_lshl_add_u32 v9, v9, 4, v1
v_lshl_add_u32 v10, v10, 4, v1
v_lshl_add_u32 v11, v11, 4, v1
s_lshl_b32 s41, s{sH}, 11
v_lshl_add_u32 v1, v0, 4, s41
v_add_u32 v2, 0x10000, v1""")
lds_wait(3, SC_XNC, 12, 8, 0)
TS(3)
a(f"""s_cmp_lg_u32 s{sL}, 0
s_cbranch_scc1 H_qp""")
for s in range(6):
    for f in range(2): a(f"ds_read_b128 {V(WQR+8*s+4*f,4)}, v2 offset:{8192*s+1024*f}")
a("s_waitcnt lgkmcnt(0)\nH_qp:")
order = [14, 0, 15, 1, 8, 2, 9, 3, 10, 4, 11, 5, 12, 6, 13, 7]
def qread(idx):
    s = order[idx]; b = 28 + 16*(idx % 2)
    a(f"ds_read_b128 {V(b,4)}, v{8+(s&3)} offset:{256*(s>>2)}")
    a(f"ds_read_b128 {V(b+4,4)}, v{8+(s&3)} offset:{256*(s>>2)+16384}")
    if s < 8:
        a(f"ds_read_b128 {V(b+8,4)}, v1 offset:{8192*s}")
        a(f"ds_read_b128 {V(b+12,4)}, v1 offset:{8192*s+1024}")
    return 4 if s < 8 else 2
qread(0)
for idx in range(16):
    n = qread(idx+1) if idx + 1 < 16 else 0
    a(f"s_waitcnt lgkmcnt({n})")
    s = order[idx]; b = 28 + 16*(idx % 2)
    for f in range(2):
        A_ = V(b+8+4*f,4) if s < 8 else V(WQR+8*(s-8)+4*f,4)
        for nt in range(2):
            d = V(12+8*f+4*nt,4)
            a(f"v_mfma_f32_16x16x32_bf16 {d}, {A_}, {V(b+4*nt,4)}, {'0' if idx==0 else d}")
a(f"""v_and_b32 v1, 15, v0
v_mul_u32_u24 v1, {QSTR}, v1
v_lshrrev_b32 v2, 4, v0
v_lshl_add_u32 v1, v2, 6, v1
s_lshl_b32 s41, s{sH}, 3
s_add_u32 s41, s41, {L_Q}
v_add_u32 v1, s41, v1
s_mov_b32 s41, {QSCALE}""")
for i in range(16): a(f"v_mul_f32 v{12+i}, s41, v{12+i}")
for nt in range(2):
    for hh in range(2):
        for f in range(2):
            a(f"v_cvt_pk_bf16_f32 v{28+4*nt+2*hh+f}, v{12+8*f+4*nt+2*hh}, v{12+8*f+4*nt+2*hh+1}")
a(f"""ds_write_b64 v1, v[28:29]
ds_write_b64 v1, v[30:31] offset:32
ds_write_b64 v1, v[32:33] offset:{16*QSTR}
ds_write_b64 v1, v[34:35] offset:{16*QSTR+32}""")
lds_inc(3, SC_QC, 12)
TS(2)
a(f"""s_cmp_eq_u32 s{sL}, 0
s_cbranch_scc1 H_prep
v_mov_b32 v3, {L_SC}
s_branch H_FFN
H_prep:""")
lds_wait(3, SC_KVD, 12, 4, 4)
a(f"""v_and_b32 v1, 15, v0
v_lshrrev_b32 v2, 4, v0
v_lshlrev_b32 v1, 4, v1
v_lshl_add_u32 v1, v2, 13, v1
s_lshl_b32 s41, s{sC}, 17
s_lshl_b32 s42, s{sH}, 8
s_add_u32 s41, s41, s42
s_add_u32 s41, s41, 4096
v_add_u32 v1, s41, v1""")
def wosrc(s): return 8 if s == 0 else WO + 32*(s-1)
for s in range(4):
    for j in range(8):
        a(f"global_load_dwordx4 {V(wosrc(s)+4*j,4)}, v1, {P(sWO)} offset:{1024*j-4096}")
    if s < 3: a("v_add_u32 v1, 0x8000, v1")
a(f"""s_min_u32 s43, s{sB}, 223
s_lshl_b32 s43, s43, 2
s_add_u32 s43, s43, s{sH}
s_and_b32 s44, s43, 31
s_lshr_b32 s45, s43, 5
v_lshrrev_b32 v2, 3, v0
v_and_b32 v3, 7, v0
s_mul_i32 s41, s44, {8*7168}
s_lshl_b32 s42, s45, 7
s_add_u32 s41, s41, s42
v_mul_u32_u24 v1, 7168, v2
v_lshl_add_u32 v1, v3, 4, v1
v_add_u32 v1, s41, v1
global_load_dwordx4 {V(GU,4)}, v1, {P(sWG)}
global_load_dwordx4 {V(GU+4,4)}, v1, {P(sWG)} offset:3584
global_load_dwordx4 {V(GU+8,4)}, v1, {P(sWU)}
global_load_dwordx4 {V(GU+12,4)}, v1, {P(sWU)} offset:3584
s_lshl_b32 s41, s45, 16
s_lshl_b32 s42, s44, 5
s_add_u32 s41, s41, s42
s_add_u32 s41, s41, 4096
v_lshlrev_b32 v1, 13, v2
v_lshl_add_u32 v1, v3, 2, v1
v_add_u32 v1, s41, v1""")
for r in range(8): a(f"global_load_dword v{WDn + 4*(r&1) + (r>>1)}, v1, {P(sWD)} offset:{1024*r-4096}")
a("s_waitcnt vmcnt(12)")
for s in (3, 2, 1, 0):
    src = wosrc(s); dst = WO + 32*s
    for f in range(8):
        for i in range(4):
            a(f"v_perm_b32 v{dst+4*f+i}, v{src+4*(2*i+1)+(f>>1)}, v{src+4*(2*i)+(f>>1)}, s{sHI if f&1 else sLO}")
a(f"""v_mov_b32 v8, -1
v_mov_b32 v9, -1
v_mov_b32 v10, -1
v_mov_b32 v11, -1
s_lshl_b32 s41, s{sB}, 13
s_lshl_b32 s42, s{sH}, 11
s_add_u32 s41, s41, s42
s_add_u32 s41, s41, {WS_XN}
v_lshl_add_u32 v1, v0, 4, s41
global_store_dwordx4 v1, v[8:11], {P(sWS)} sc1
global_store_dwordx4 v1, v[8:11], {P(sWS)} offset:1024 sc1
s_lshr_b32 s41, s{sH}, 1
s_lshl_b32 s41, s41, 19
s_and_b32 s42, s{sH}, 1
s_lshl_b32 s42, s42, 10
s_add_u32 s41, s41, s42
s_lshl_b32 s42, s{sB}, 11
s_add_u32 s41, s41, s42
s_add_u32 s41, s41, {WS_CAND}
v_lshl_add_u32 v1, v0, 4, s41
global_store_dwordx4 v1, v[8:11], {P(sWS)} sc1
s_cmp_ge_u32 s{sB}, 224
s_cbranch_scc1 H_bursts
s_waitcnt vmcnt(3)""")
for base in (GU, GU+8, WDn):
    for i in range(4): tr_pair(base+i, base+4+i, 12)
a(f"""v_lshlrev_b32 v2, 4, v2
v_lshl_add_u32 v2, v3, 15, v2
s_lshl_b32 s41, s45, 18
s_lshr_b32 s42, s44, 3
s_lshl_b32 s42, s42, 13
s_add_u32 s41, s41, s42
s_and_b32 s42, s44, 7
s_lshl_b32 s42, s42, 7
s_add_u32 s41, s41, s42
s_add_u32 s41, s41, {WS_FS}
v_add_u32 v1, s41, v2""")
for i in range(4): a(f"global_store_dwordx4 v1, {V(GU+4*i,4)}, {P(sWS)} offset:{1024*i} sc1")
a(f"""s_lshl_b32 s41, s44, 18
s_lshr_b32 s42, s45, 3
s_lshl_b32 s42, s42, 13
s_add_u32 s41, s41, s42
s_and_b32 s42, s45, 7
s_lshl_b32 s42, s42, 7
s_add_u32 s41, s41, s42
s_add_u32 s41, s41, {WS_FS + 4096}
v_add_u32 v1, s41, v2""")
for i in range(2): a(f"global_store_dwordx4 v1, {V(WDn+4*i,4)}, {P(sWS)} offset:{1024*i} sc1")
a("H_bursts:")
TS(5)
OF, AC = 8, 32
sSB, sLB = 44, 45
a(f"""s_lshr_b32 s41, s{sH}, 1
s_and_b32 s42, s{sH}, 1
s_lshl_b32 s{sSB}, s41, 13
s_lshl_b32 s43, s42, 10
s_add_u32 s{sSB}, s{sSB}, s43
s_add_u32 s{sSB}, s{sSB}, {L_SLOT}
s_lshl_b32 s{sLB}, s41, 9
s_add_u32 s{sLB}, s{sLB}, {L_L}
v_bfe_u32 v3, v0, 3, 2
v_mul_u32_u24 v3, {QSTR}, v3
v_and_b32 v8, 7, v0
v_lshl_add_u32 v3, v8, 5, v3
s_mul_i32 s43, s41, {4*QSTR}
s_add_u32 s43, s43, {L_O}
v_add_u32 v3, s43, v3
v_and_b32 v2, 15, v0
v_mul_u32_u24 v2, {QSTR}, v2
v_lshrrev_b32 v8, 4, v0
v_lshl_add_u32 v2, v8, 4, v2
v_add_u32 v2, {L_O}, v2
s_mul_i32 s{sOPB}, s{sL}, {OPL}
s_lshl_b32 s41, s{sH}, 12
s_add_u32 s{sOPB}, s{sOPB}, s41
s_add_u32 s{sOPB}, s{sOPB}, {WS_OP}
s_add_u32 s{sOTAG}, s{sTAG}, s{sL}
s_add_u32 s{sOTAG}, s{sOTAG}, 1""")
def corr(g):
    l0 = a.newlabel("H_c0"); l1 = a.newlabel("H_c1")
    a(f"""s_andn2_b32 s41, s{sL}, s{sSLOW}
    s_cbranch_scc0 {l0}
    v_lshrrev_b32 v28, 5, v0
    s_lshl_b32 s41, s{sH}, 5
    s_add_u32 s41, s41, {L_VS}
    v_lshl_add_u32 v28, v28, 4, s41
    ds_read_b128 v[8:11], v3 offset:{L_Q - L_O + 8*QSTR*g}
    ds_read_b128 v[12:15], v3 offset:{L_Q - L_O + 8*QSTR*g + 16}
    ds_read_b128 v[28:31], v28
    s_waitcnt lgkmcnt(1)
    v_dot2_f32_bf16 v1, v8, s{sKSL[0]}, 0""")
    for i in range(1, 8): a(f"v_dot2_f32_bf16 v1, v{8+i}, s{sKSL[i]}, v1")
    a(f"""v_exp_f32 v1, v1
    s_waitcnt lgkmcnt(0)
    v_and_b32 v1, 0xffff0000, v1
    v_pk_mul_f32 v[28:29], v[28:29], v[0:1] op_sel:[0,1] op_sel_hi:[1,1]
    v_pk_mul_f32 v[30:31], v[30:31], v[0:1] op_sel:[0,1] op_sel_hi:[1,1]
    s_branch {l1}
    {l0}:
    v_mov_b32 v1, 0
    v_mov_b64 v[28:29], 0
    v_mov_b64 v[30:31], 0
    {l1}:""")
def norm_pre(g):
    a(f"""v_and_b32 v10, 31, v0
    s_add_u32 s41, s{sLB}, {1024*g}
    v_lshl_add_u32 v10, v10, 2, s41
    v_lshl_add_u32 v24, v0, 4, s{sSB}""")
def normalize(g, sleep):
    if sleep:
        lb = a.newlabel("H_lw")
        a(f"""v_lshl_add_u32 v13, v0, 3, s{sLB}
        s_mov_b32 s{sCNT}, 0
        {lb}:
        ds_read_b32 v8, v13 offset:{1024*g}
        s_waitcnt lgkmcnt(0)
        v_cmp_eq_u32 vcc, -1, v8""")
        poll_guard(lb, "s_cbranch_vccz", "H_lwd", 4, sleep)
    a(f"""ds_read2_b32 v[8:9], v10 offset0:0 offset1:32
    ds_read2_b32 v[10:11], v10 offset0:64 offset1:96""")
    for w in range(4): a(f"ds_read_b128 {V(12+4*w,4)}, v24 offset:{16384*g + 2048*w}")
    a(f"""s_waitcnt lgkmcnt(4)
    v_pk_add_f32 v[8:9], v[8:9], v[10:11]
    v_add_f32 v8, v8, v9
    v_add_f32 v8, v8, v1
    v_rcp_f32 v9, v8
    s_waitcnt lgkmcnt(2)""")
    pkadd(12, 12, 16, 4)
    pkadd(12, 12, 28, 4)
    a(f"""v_lshrrev_b32 v11, 5, v0
    s_and_b32 s41, s{sH}, 1
    s_lshl_b32 s41, s41, 4
    v_lshl_add_u32 v11, v11, 3, v3
    s_waitcnt lgkmcnt(0)""")
    pkadd(20, 20, 24, 4)
    a("v_add_u32 v11, s41, v11")
    pkadd(12, 12, 20, 4)
    lb = a.newlabel("H_nb")
    a(f"""v_pk_mul_f32 v[12:13], v[12:13], v[8:9] op_sel:[0,1] op_sel_hi:[1,1]
    v_pk_mul_f32 v[14:15], v[14:15], v[8:9] op_sel:[0,1] op_sel_hi:[1,1]
    v_cvt_pk_bf16_f32 v16, v12, v13
    v_cvt_pk_bf16_f32 v17, v14, v15
    ds_write_b64 v11, v[16:17] offset:{8*QSTR*g}
    v_pk_add_f32 v[12:13], v[12:13], v[14:15]
    v_add_f32 v12, v12, v13
    v_fma_f32 v8, v12, 0, v8
    v_subrev_u32 v8, {(127-80)<<23}, v8
    v_cmp_lt_u32 vcc, {(0 if (FORCE>>g)&1 else (180<<23))}, v8
    s_cbranch_vccz {lb}
    s_cmp_lg_u32 s{sSLOW}, 0
    s_cbranch_scc1 {lb}
    v_mov_b32 v8, {L_SC}
    v_mov_b32 v9, 1
    ds_write_b32 v8, v9 offset:{SC_BAD}
    {lb}:""")
def hsync(idx, bad=True):
    lb = a.newlabel("H_hs")
    a(f"""s_lshl_b32 s41, s{sL}, 4
    s_add_u32 s41, s41, {L_SC}
    v_mov_b32 v8, s41
    v_mov_b32 v11, {L_SC}""")
    lds_inc(8, SC_OCNT + 4*idx, 9)
    lds_wait(8, SC_OCNT + 4*idx, 9, 4, 3)
    if bad:
        a(f"""ds_read_b32 v9, v11 offset:{SC_BAD}
        s_waitcnt lgkmcnt(0)
        v_cmp_ne_u32 vcc, 0, v9
        s_cbranch_vccnz H_toX""")
def oproj(first):
    if first: a("s_setprio 0")
    for s in range(4):
        a(f"s_waitcnt lgkmcnt({3-s})")
        for f in range(8):
            a(f"v_mfma_f32_16x16x32_bf16 {V(AC+4*f,4)}, {V(OF+4*s,4)}, {V(WO+32*s+4*f,4)}, {'0' if (s==0 and first) else V(AC+4*f,4)}")
def osend(bi):
    if bi == 0: a("s_setprio 0")
    a("s_waitcnt lgkmcnt(0)")
    def st(f):
        if bi == 1: a("s_mov_b32 exec_hi, 0")
        a(f"global_store_dwordx4 v24, {V(AC+4*f,4)}, {P(sWS)} offset:{512*f} sc1")
        if bi == 1: a("s_mov_b32 exec_hi, -1")
    for f in range(8):
        for s in range(4):
            a(f"v_mfma_f32_16x16x32_bf16 {V(AC+4*f,4)}, {V(OF+4*s,4)}, {V(WO+32*s+4*f,4)}, {'0' if s==0 else V(AC+4*f,4)}")
        if f >= 2: st(f-2)
    st(6); st(7)
    if bi == 0: a("s_setprio 2")
def flag_poll(vaddr, sleep):
    lp = a.newlabel("H_fp")
    a(f"""s_mov_b32 s{sCNT}, 0
    {lp}:""")
    a(f"""global_load_dword v8, v{vaddr}, {P(sWS)} sc1
    s_waitcnt vmcnt(0)
    v_cmp_ne_u32 vcc, s{sOTAG}, v8""")
    poll_guard(lp, "s_cbranch_vccz", "H_fpd", 1, sleep)
def send_addr(bi):
    a(f"""v_lshrrev_b32 v26, 5, v0
    s_add_u32 s41, s{sC}, {1 + 2*bi}
    v_add_u32 v25, s41, v26
    v_and_b32 v25, 3, v25
    v_mul_u32_u24 v24, 49152, v25
    v_lshl_add_u32 v24, v26, 14, v24
    v_and_b32 v26, 31, v0
    v_lshl_add_u32 v24, v26, 4, v24
    s_andn2_b32 s43, s{sB}, 3
    s_mul_i32 s41, s43, 49152
    s_add_u32 s41, s41, s{sOPB}
    s_add_u32 s41, s41, {32768*bi}
    v_add_u32 v24, s41, v24""")
a(f"""s_add_u32 s41, s{sC}, 3
s_and_b32 s41, s41, 3
s_andn2_b32 s43, s{sB}, 3
s_add_u32 s41, s41, s43
s_mul_i32 s41, s41, 49152
s_add_u32 s41, s41, s{sOPB}
s_add_u32 s41, s41, 32768
v_lshl_add_u32 v24, v0, 4, s41
v_mov_b64 v[8:9], -1
v_mov_b64 v[10:11], -1""")
for f in range(4): a(f"global_store_dwordx4 v24, v[8:11], {P(sWS)} offset:{1024*f} sc1")
corr(0); norm_pre(0); normalize(0, 16); corr(1); norm_pre(1); normalize(1, 8)
hsync(0)
for s_ in range(4): a(f"ds_read_b128 {V(OF+4*s_,4)}, v2 offset:{64*s_}")
send_addr(0)
a(f"""s_add_u32 s41, s{sC}, 1
v_add_u32 v25, s41, v0
v_and_b32 v25, 3, v25
v_lshlrev_b32 v25, 11, v25
v_lshl_add_u32 v25, v0, 9, v25
s_lshl_b32 s41, s43, 11
s_lshl_b32 s42, s{sH}, 7
s_add_u32 s41, s41, s42
s_add_u32 s41, s41, {WS_OPF}
v_add_u32 v25, s41, v25
v_mov_b32 v27, s{sOTAG}""")
osend(0)
a(f"""s_waitcnt vmcnt(0)
s_mov_b64 exec, 7
global_store_dword v25, v27, {P(sWS)} sc1
s_mov_b64 exec, -1""")
TS(6)
def recv01(nonblock=False):
    a(f"""v_lshrrev_b32 v27, 5, v0
    v_and_b32 v26, 31, v0
    s_mul_i32 s41, s{sB}, 49152
    s_add_u32 s41, s41, s{sOPB}
    v_lshl_add_u32 v26, v26, 4, s41
    v_lshl_add_u32 v24, v27, 14, v26
    s_lshl_b32 s41, s{sB}, 11
    s_lshl_b32 s42, s{sH}, 7
    s_add_u32 s41, s41, s42
    s_add_u32 s41, s41, {WS_OPF}
    v_min_u32 v25, 2, v0
    v_lshl_add_u32 v25, v25, 9, s41""")
    if nonblock:
        a(f"""v_lshlrev_b32 v13, 4, v0
        v_add_u32 v13, {L_L + 2048}, v13
        s_mov_b32 s{sCNT}, 0
        H_nbp:
        ds_read_b32 v8, v13
        s_waitcnt lgkmcnt(0)
        v_cmp_eq_u32 vcc, -1, v8
        s_cbranch_vccz H_b1
        s_add_u32 s{sCNT}, s{sCNT}, 1
        s_cmp_ge_u32 s{sCNT}, {POLLMAX}
        s_cbranch_scc1 H_b1
        s_sleep 4
        global_load_dword v8, v25, {P(sWS)} sc1
        s_waitcnt vmcnt(0)
        v_cmp_ne_u32 vcc, s{sOTAG}, v8
        s_cbranch_vccnz H_nbp""")
    else:
        flag_poll(25, 2)
    if nonblock:
        a(f"""s_lshl_b32 s41, s{sH}, 13
        s_add_u32 s41, s41, {L_SLOT}""")
        for f in range(8):
            a(f"""s_add_u32 m0, s41, {512*f}
            global_load_lds_dwordx4 v24, {P(sWS)} offset:{512*f} sc1""")
    else:
        for f in range(8): a(f"global_load_dwordx4 {V(AC+4*f,4)}, v24, {P(sWS)} offset:{512*f} sc1")
a(f"s_mov_b32 s{sCAND}, 0")
recv01(True)
a(f"s_mov_b32 s{sCAND}, 1\nH_b1:")
corr(2); norm_pre(2); normalize(2, 4)
hsync(1)
for s_ in range(4): a(f"ds_read_b128 {V(OF+4*s_,4)}, v2 offset:{64*s_ + 16*QSTR}")
send_addr(1)
osend(1)
TS(9)
a(f"""s_cmp_lg_u32 s{sCAND}, 0
s_cbranch_scc1 H_r2""")
recv01()
a(f"""H_r2:
v_lshrrev_b32 v27, 5, v0
v_and_b32 v26, 31, v0
s_mul_i32 s41, s{sB}, 49152
s_add_u32 s41, s41, s{sOPB}
s_add_u32 s41, s41, 32768
v_lshl_add_u32 v26, v26, 4, s41
v_lshl_add_u32 v26, v27, 11, v26
s_mov_b32 s{sCNT}, 0
H_p2:""")
for f in range(4): a(f"global_load_dwordx4 {V(8+4*f,4)}, v26, {P(sWS)} offset:{512*f} sc1")
a(f"""s_waitcnt vmcnt(0)
v_max3_u32 v24, v8, v12, v16
v_max_u32 v24, v24, v20
v_cmp_eq_u32 vcc, -1, v24""")
poll_guard("H_p2", "s_cbranch_vccz", "H_p2d", 1, 4)
a(f"""s_cmp_eq_u32 s{sCAND}, 0
s_cbranch_scc1 H_r3
s_lshl_b32 s41, s{sH}, 13
s_add_u32 s41, s41, {L_SLOT}
v_lshl_add_u32 v24, v0, 4, s41""")
for f in range(8): a(f"ds_read_b128 {V(AC+4*f,4)}, v24 offset:{1024*f}")
a("s_waitcnt lgkmcnt(0)\nH_r3:\ns_mov_b32 exec_hi, 0")
pkadd(AC, AC, 8, 16)
a("s_mov_b32 exec_lo, 0\ns_mov_b32 exec_hi, -1")
pkadd(AC+16, AC+16, 8, 16)
a("s_mov_b64 exec, -1")
TS(10)
a(f"""v_and_b32 v8, 8, v0
v_cmp_eq_u32 vcc, 0, v8
v_lshrrev_b32 v8, 4, v0
v_lshlrev_b32 v8, 4, v8
v_add_u32 v8, {L_SC + SC_ZERO - 24*QSTR}, v8
v_cndmask_b32 v2, v8, v2, vcc""")
corr(3)
norm_pre(3)
a("s_barrier")
normalize(3, 0)
a(f"""v_mov_b32 v24, {L_SC}
s_waitcnt lgkmcnt(0)
s_barrier
ds_read_b32 v24, v24 offset:{SC_BAD}""")
for s_ in range(4): a(f"ds_read_b128 {V(OF+4*s_,4)}, v2 offset:{64*s_ + 24*QSTR}")
a(f"""v_lshrrev_b32 v26, 4, v0
v_and_b32 v25, 15, v0
v_lshlrev_b32 v25, 4, v25
v_lshl_add_u32 v25, v26, 13, v25
s_lshl_b32 s41, s{sH}, 9
s_add_u32 s41, s41, {L_ROW}
v_add_u32 v25, s41, v25
s_waitcnt lgkmcnt(4)
v_cmp_ne_u32 vcc, 0, v24
s_cbranch_vccnz H_slow""")
oproj(False)
k = 0
for half in range(2):
    for i in range(4):
        t = 8 + 4*(k % 4); k += 1
        for f in (0, 2):
            r0 = AC + 4*(4*half+f) + (i & 2); r1 = r0 + 4
            a(f"v_pk_mov_b32 {V(t+f,2)}, {V(r0,2)}, {V(r1,2)} op_sel:[{i&1},{i&1}]")
        a(f"ds_write_b128 v25, {V(t,4)} offset:{2048*i + 256*half}")
a(f"""v_mov_b64 v[28:29], -1
v_mov_b64 v[30:31], -1
s_lshl_b32 s41, s{sH}, 10
s_add_u32 s41, s41, {L_L}
v_lshl_add_u32 v1, v0, 4, s41
ds_write_b128 v1, v[28:31]
s_setprio 0
s_waitcnt lgkmcnt(0)
s_cmp_eq_u32 s{sL}, 0
s_cbranch_scc1 R_P4""")
ffn_loads()
a("s_branch R_P4")
a("H_FFN:")
key_get(1)
a(f"""s_cmp_lg_u32 s{sF}, 0
s_cbranch_scc1 H_nl""")
ffn_loads()
a("H_nl:")
a(f"""s_lshr_b32 s41, s{sSEL}, 3
s_lshl_b32 s41, s41, 11
s_lshl_b32 s42, s{sF}, 19
s_add_u32 s41, s41, s42
s_add_u32 s41, s41, {WS_CAND}
s_lshl_b32 s42, s{sH}, 8
s_add_u32 s42, s42, s41
v_lshl_add_u32 v2, v0, 2, s42
s_lshl_b32 s42, s{sJ}, 2
s_add_u32 s42, s42, s41
v_mov_b32 v9, s42
s_lshl_b32 s42, s{sF}, 2
v_add_u32 v37, s42, v3
s_mov_b32 s{sCNT}, 0""")
TSF(11)
a(f"""H_xs:
global_load_dword v8, v2, {P(sWS)} sc1
global_load_dword v38, v9, {P(sWS)} sc1
global_load_dword v39, v9, {P(sWS)} offset:1024 sc1
s_waitcnt vmcnt(0)
v_max3_u32 v10, v8, v38, v39
v_cmp_eq_u32 vcc, -1, v10""")
poll_guard("H_xs", "s_cbranch_vccz", "H_xsd")
a(f"""s_cmp_ge_u32 s{sJ}, 224
s_cbranch_scc1 H_down""")
for i in range(16): a(f"v_dot2_f32_bf16 v{GU+i}, v{GU+i}, v8, 0")
for c in range(8): a(f"v_permlane32_swap_b32 v{GU+c}, v{GU+8+c}")
pkadd(GU, GU, GU+8, 8)
for c in range(4): a(f"v_permlane16_swap_b32 v{GU+c}, v{GU+4+c}")
pkadd(GU, GU, GU+4, 4)
for m in ("row_ror:8", "row_ror:4", "row_ror:2", "row_ror:1"):
    for c in range(4): a(f"v_add_f32_dpp v{GU+c}, v{GU+c}, v{GU+c} {m} row_mask:0xf bank_mask:0xf")
a(f"""v_lshrrev_b32 v2, 4, v0
s_lshl_b32 s41, s{sH}, 6
s_add_u32 s41, s41, {L_SC + SC_FACC}
v_lshl_add_u32 v2, v2, 4, s41
v_mov_b32 v9, 1
s_mov_b32 exec_lo, 0x00010001
s_mov_b32 exec_hi, 0x00010001
ds_write_b128 v2, {V(GU,4)}
s_mov_b64 exec, 1
ds_add_rtn_u32 v10, v37, v9 offset:{SC_FCNT}
s_mov_b64 exec, -1
v_and_b32 v2, 1, v0
v_bfe_u32 v9, v0, 1, 2
v_lshlrev_b32 v9, 2, v9
v_lshl_add_u32 v9, v2, 4, v9
v_add_u32 v9, {L_SC + SC_FACC}, v9
s_waitcnt lgkmcnt(0)
v_readfirstlane_b32 s42, v10
s_cmp_lg_u32 s42, 3
s_cbranch_scc1 H_down""")
for w in range(4): a(f"ds_read2_b32 {V(12+2*w,2)}, v9 offset0:{16*w} offset1:{16*w+8}")
a(f"""s_lshl_b32 s41, s{sJ}, 7
s_lshl_b32 s42, s{sF}, 4
s_add_u32 s41, s41, s42
s_add_u32 s41, s41, {WS_HY}
v_lshl_add_u32 v2, v0, 1, s41
s_waitcnt lgkmcnt(0)
v_pk_add_f32 v[12:13], v[12:13], v[14:15]
v_pk_add_f32 v[16:17], v[16:17], v[18:19]
v_pk_add_f32 v[12:13], v[12:13], v[16:17]
v_cvt_pk_bf16_f32 v12, v12, v13
v_and_b32 v13, 0xffff0000, v12
v_lshlrev_b32 v12, 16, v12
v_mul_f32 v14, 0xbfb8aa3b, v12
v_exp_f32 v14, v14
v_add_f32 v14, 1.0, v14
v_rcp_f32 v14, v14
v_mul_f32 v12, v12, v14
v_cvt_pk_bf16_f32 v12, v12, v12
v_lshlrev_b32 v12, 16, v12
v_mul_f32 v12, v12, v13
v_cvt_pk_bf16_f32 v12, v12, v12
s_mov_b64 exec, 0xff
global_store_short v2, v12, {P(sWS)} sc1
s_mov_b64 exec, -1
H_down:
s_lshl_b32 s41, s{sH}, 6
v_add_u32 v1, s41, v0
v_min_u32 v2, 223, v1
s_lshl_b32 s42, s{sF}, 4
s_add_u32 s42, s42, {WS_HY}
v_lshl_add_u32 v2, v2, 7, s42
s_mov_b32 s{sCNT}, 0""")
TSF(12)
a(f"""s_cmp_lg_u32 s{sF}, 0
s_cbranch_scc1 H_nkw""")
a("s_sleep 24\nH_nkw:")
a(f"""s_mov_b32 s{sCNT}, 0
H_hp:
global_load_dwordx4 v[12:15], v2, {P(sWS)} sc1
s_waitcnt vmcnt(0)
v_max3_u32 v9, v12, v13, v14
v_max_u32 v9, v9, v15
v_cmp_eq_u32 vcc, -1, v9""")
poll_guard("H_hp", "s_cbranch_vccz", "H_hpd", 1, 3)
TSF(13)
a(f"""v_dot2_f32_bf16 v8, v{WDn}, v12, 0
v_dot2_f32_bf16 v9, v{WDn+4}, v12, 0""")
for i in range(1, 4):
    a(f"v_dot2_f32_bf16 v8, v{WDn+i}, v{12+i}, v8")
    a(f"v_dot2_f32_bf16 v9, v{WDn+4+i}, v{12+i}, v9")
a(f"""v_cmp_gt_u32 vcc, 224, v1
v_cndmask_b32 v8, 0, v8, vcc
v_cndmask_b32 v9, 0, v9, vcc
v_permlane32_swap_b32 v8, v9
v_add_f32 v8, v8, v9""")
for m in ("row_ror:8", "row_ror:4", "row_ror:2", "row_ror:1"):
    a(f"v_add_f32_dpp v8, v8, v8 {m} row_mask:0xf bank_mask:0xf")
a(f"""v_add_f32_dpp v8, v8, v8 row_bcast:15 row_mask:0xa bank_mask:0xf
v_lshrrev_b32 v2, 5, v0
s_lshl_b32 s41, s{sH}, 3
s_add_u32 s41, s41, {L_SC + SC_DACC}
v_lshl_add_u32 v2, v2, 2, s41
v_mov_b32 v9, 1
s_mov_b32 exec_lo, 0x80000000
s_mov_b32 exec_hi, 0x80000000
ds_write_b32 v2, v8
s_mov_b64 exec, 1
ds_add_rtn_u32 v12, v37, v9 offset:{SC_DCNT}
s_mov_b64 exec, -1
s_lshr_b32 s41, s{sKEY}, 16
s_and_b32 s42, s41, 0x7fff
s_xor_b32 s43, s41, 0xffff
s_bitcmp1_b32 s41, 15
s_cselect_b32 s41, s42, s43
s_lshl_b32 s41, s41, 16
v_mov_b32 v11, s41
v_mul_f32 v11, 0xbfb8aa3b, v11
v_exp_f32 v11, v11
v_add_f32 v11, 1.0, v11
v_rcp_f32 v11, v11
v_cvt_pk_bf16_f32 v11, v11, v11
v_lshlrev_b32 v11, 16, v11
s_waitcnt lgkmcnt(0)
v_readfirstlane_b32 s42, v12
s_cmp_lg_u32 s42, 3
s_cbranch_scc1 H_ffd
ds_read_b128 v[12:15], v3 offset:{SC_DACC}
ds_read_b128 v[16:19], v3 offset:{SC_DACC+16}
s_waitcnt lgkmcnt(0)
v_pk_add_f32 v[12:13], v[12:13], v[14:15]
v_pk_add_f32 v[16:17], v[16:17], v[18:19]
v_pk_add_f32 v[8:9], v[12:13], v[16:17]""")
pack(12, 8, 1); unpack(8, 12, 1)
a("v_mul_f32 v8, v8, v11\nv_mul_f32 v9, v9, v11")
pack(12, 8, 1); unpack(8, 12, 1); unpack(14, 38, 1)
a("v_add_f32 v8, v8, v14\nv_add_f32 v9, v9, v15")
pack(12, 8, 1); unpack(8, 12, 1); unpack(14, 39, 1)
a("v_add_f32 v8, v8, v14\nv_add_f32 v9, v9, v15")
pack(12, 8, 1)
a(f"""s_mov_b64 exec, 1
s_cmp_lg_u32 s{sF}, 0
s_cbranch_scc1 H_fo
s_lshl_b32 s41, s{sJ}, 7
s_add_u32 s41, s41, {WS_HY + 32}
v_mov_b32 v2, s41
global_store_dword v2, v12, {P(sWS)} sc1
s_branch H_fo2
H_fo:
s_lshl_b32 s41, s{sSEL}, 10
s_lshl_b32 s42, s{sJ}, 2
s_add_u32 s41, s41, s42
v_mov_b32 v2, s41
global_store_dword v2, v12, {P(sOUT)}{OUTF}
H_fo2:
s_mov_b64 exec, -1
H_ffd:
s_cmp_lg_u32 s{sF}, 0
s_cbranch_scc1 R_last""")
a(f"""s_lshl_b32 s41, s{sH}, 13
s_add_u32 s41, s41, {WS_HY + 32}
v_lshl_add_u32 v1, v0, 7, s41
s_lshl_b32 s41, s{sH}, 8
s_add_u32 s41, s41, {L_X2S}
v_lshl_add_u32 v2, v0, 2, s41
s_mov_b32 s{sCNT}, 0
s_sleep 8
H_yw:
global_load_dword v40, v1, {P(sWS)} sc1
s_waitcnt vmcnt(0)
v_cmp_eq_u32 vcc, -1, v40""")
poll_guard("H_yw", "s_cbranch_vccz", "H_yd", 1, 3)
a(f"""ds_write_b32 v2, v40
v_mov_b32 v2, 1
s_mov_b64 exec, 1
ds_add_rtn_u32 v41, v3, v2 offset:{SC_YC}
s_mov_b64 exec, -1
v_lshlrev_b32 v1, 4, v0
v_add_u32 v1, {L_XS}, v1
s_waitcnt lgkmcnt(0)
v_readfirstlane_b32 s41, v41
s_cmp_lg_u32 s41, 3
s_cbranch_scc1 H_fx1
ds_read_b128 v[40:43], v1 offset:1024
s_waitcnt lgkmcnt(0)""")
unpack(X_, 40)
ln(X_, D_, T_, XN)
a(f"ds_write_b128 v1, {V(XN,4)}")
lds_inc(3, SC_XSF, 2)
a("H_fx1:")
wkv_addr(1)
for i in range(8): a(f"global_load_dwordx4 {V(8+4*i,4)}, v1, {P(sWS)} offset:{1024*i-4096} sc1")
lds_wait(3, SC_XSF, 2, 1, 2)
TSA(14)
a(f"""v_lshrrev_b32 v1, 4, v0
v_lshlrev_b32 v1, 4, v1
v_add_u32 v1, {L_XS}, v1
s_xor_b32 s41, s{sSEL}, s{sTOK}
s_lshr_b32 s41, s41, 5
s_cbranch_scc1 H_fx2
s_lshl_b32 s41, s{sH}, 11
v_lshl_add_u32 v2, v0, 4, s41""")
for s in range(16):
    a(f"ds_read_b128 v[48:51], v1 offset:{64*s}")
    if s < 8:
        a(f"ds_read_b128 v[52:55], v2 offset:{8192*s}")
        a(f"ds_read_b128 v[56:59], v2 offset:{8192*s+1024}")
    a("s_waitcnt lgkmcnt(0)")
    for f in range(2):
        A_ = V(52+4*f,4) if s < 8 else V(WQR+8*(s-8)+4*f,4)
        a(f"v_mfma_f32_16x16x32_bf16 {V(40+4*f,4)}, {A_}, v[48:51], {'0' if s==0 else V(40+4*f,4)}")
a(f"""s_lshl_b32 s41, s{sC}, 3
s_sub_u32 s41, s{sSEL}, s41
s_sub_u32 s41, s41, 8
s_and_b32 s41, s41, 31
s_mul_i32 s41, s41, {QSTR}
s_lshl_b32 s42, s{sH}, 3
s_add_u32 s41, s41, s42
s_add_u32 s41, s41, {L_Q}
v_lshrrev_b32 v2, 4, v0
v_lshl_add_u32 v2, v2, 6, s41
s_mov_b32 s41, {QSCALE}""")
for i in range(8): a(f"v_mul_f32 v{40+i}, s41, v{40+i}")
for hh in range(2):
    for f in range(2):
        a(f"v_cvt_pk_bf16_f32 v{48+2*hh+f}, v{40+4*f+2*hh}, v{40+4*f+2*hh+1}")
a(f"""s_mov_b32 exec_lo, 0x00010001
s_mov_b32 exec_hi, 0x00010001
ds_write_b64 v2, v[48:49]
ds_write_b64 v2, v[50:51] offset:32
s_mov_b64 exec, -1""")
lds_inc(3, SC_QFIX, 2)
a(f"""H_fx2:
s_lshl_b32 s41, s{sH}, 8
v_add_u32 v1, s41, v1""")
for s in range(4): a(f"ds_read_b128 {V(40+4*s,4)}, v1 offset:{64*s}")
a(f"""v_lshrrev_b32 v2, 4, v0
s_lshl_b32 s41, s{sH}, 7
s_add_u32 s41, s41, {L_KVP}
v_lshl_add_u32 v2, v2, 5, s41
s_waitcnt vmcnt(0) lgkmcnt(0)""")
for s in range(4):
    a(f"v_mfma_f32_16x16x32_bf16 v[56:59], {V(8+8*s,4)}, {V(40+4*s,4)}, {'0' if s==0 else 'v[56:59]'}")
    a(f"v_mfma_f32_16x16x32_bf16 v[60:63], {V(8+8*s+4,4)}, {V(40+4*s,4)}, {'0' if s==0 else 'v[60:63]'}")
a("s_mov_b32 exec_lo, 0x00010001\ns_mov_b32 exec_hi, 0x00010001")
for i in range(4): a(f"ds_write2_b32 v2, v{56+i}, v{60+i} offset0:{2*i} offset1:{2*i+1}")
a("s_mov_b64 exec, -1")
hsync(2, False)
a(f"""v_and_b32 v1, 7, v0
v_lshlrev_b32 v1, 2, v1
v_add_u32 v1, {L_KVP}, v1
v_lshrrev_b32 v2, 5, v0
s_and_b32 s41, s{sH}, 1
s_lshl_b32 s41, s41, 5
s_add_u32 s41, s41, {L_KVP + 64}
v_lshl_add_u32 v40, v2, 4, s41
s_lshl_b32 s41, s{sH}, 5
s_add_u32 s41, s41, {L_VS}
v_lshl_add_u32 v41, v2, 4, s41""")
for w in range(4): a(f"ds_read2_b32 {V(8+2*w,2)}, v1 offset0:{32*w} offset1:{32*w+8}")
for w in range(4): a(f"ds_read_b128 {V(16+4*w,4)}, v40 offset:{128*w}")
a(f"""s_waitcnt lgkmcnt(4)
v_pk_add_f32 v[8:9], v[8:9], v[10:11]
v_pk_add_f32 v[12:13], v[12:13], v[14:15]
v_pk_add_f32 v[8:9], v[8:9], v[12:13]
v_cvt_pk_bf16_f32 v8, v8, v9
s_waitcnt lgkmcnt(0)""")
pkadd(16, 16, 20, 4); pkadd(24, 24, 28, 4); pkadd(16, 16, 24, 4)
for i in range(8): a(f"v_readlane_b32 s{sKSL[i]}, v8, {i}")
pack(20, 16, 2); unpack(16, 20, 2)
a(f"""ds_write_b128 v41, v[16:19]
ds_write_b32 v1, v8 offset:{L_KS - L_KVP}
s_branch H_bursts
H_toX:
s_barrier
s_barrier
H_slow:
s_waitcnt vmcnt(0) lgkmcnt(0)
s_barrier
v_mov_b64 v[28:29], -1
v_mov_b64 v[30:31], -1
s_lshl_b32 s41, s{sH}, 10
s_add_u32 s41, s41, {L_L}
v_lshl_add_u32 v1, v0, 4, s41
ds_write_b128 v1, v[28:31]
s_lshl_b32 s41, s{sH}, 8
s_add_u32 s41, s41, {L_M}
v_lshl_add_u32 v1, v0, 2, s41
v_mov_b32 v8, 0xff800000
ds_write_b32 v1, v8
s_lshl_b32 s41, s{sL}, 4
s_add_u32 s41, s41, {L_SC}
v_mov_b32 v1, s41
v_mov_b32 v2, {L_SC}
v_mov_b64 v[8:9], 0
ds_write_b64 v1, v[8:9] offset:{SC_OCNT}
ds_write_b32 v2, v8 offset:{SC_BAD}
s_mov_b32 s{sSLOW}, 1
s_waitcnt lgkmcnt(0)
s_barrier
s_barrier
s_branch H_bursts
A_slow:
s_waitcnt vmcnt(0)
s_barrier
s_cmp_eq_u32 s3, 15
s_cbranch_scc1 A_sl1
v_lshrrev_b32 v8, 5, v0
v_lshlrev_b32 v8, 4, v8
v_add_u32 v8, {L_KS}, v8
ds_read_b128 v[32:35], v8
v_and_b32 v9, 15, v0
v_lshlrev_b32 v9, 2, v9
v_add_u32 v9, {L_VS}, v9
ds_read_b32 v36, v9
v_and_b32 v9, 27, v0
v_cmp_eq_u32 vcc, 16, v9
v_mov_b32 v10, 0x3f800000
v_cndmask_b32 v10, 0, v10, vcc
v_and_b32 v9, 16, v0
v_cmp_eq_u32 vcc, 0, v9
s_waitcnt lgkmcnt(0)
v_cndmask_b32 v36, v10, v36, vcc
s_bitcmp1_b32 s{sSEL}, 0
s_cselect_b32 s41, 0, 16
v_lshrrev_b32 v36, s41, v36
s_mov_b64 exec, s[6:7]
s_set_gpr_idx_on s4, gpr_idx(SRC0,DST)
s_nop 1
v_or_b32 v{VV}, v{VV}, v36
s_nop 1
s_set_gpr_idx_off
s_and_b32 s41, s{sSEL}, 31
s_lshl_b32 s42, 1, s41
s_mov_b32 exec_lo, s42
s_mov_b32 exec_hi, s42
s_bfe_u32 s41, s{sSEL}, 0x40005
s_lshl_b32 s41, s41, 2
s_set_gpr_idx_on s41, gpr_idx(DST)
s_nop 1
v_mov_b32 v{KK}, v32
v_mov_b32 v{KK+1}, v33
v_mov_b32 v{KK+2}, v34
v_mov_b32 v{KK+3}, v35
s_nop 1
s_set_gpr_idx_off
s_mov_b64 exec, -1
A_sl1:
v_and_b32 v14, 31, v0
v_lshlrev_b32 v14, 2, v14
v_add_u32 v14, {L_M}, v14""")
att_addr()
a(f"""s_barrier
s_mov_b32 s44, 0
A_sm:
s_mul_i32 s41, s44, {4*QSTR}
v_add_u32 v{Q}, s41, v{vQA}
ds_read_b128 {V(Q,4)}, v{Q}
v_mov_b32 v15, 0xff800000
s_waitcnt lgkmcnt(0)""")
for kt in range(NT):
    a(f"v_mfma_f32_32x32x16_bf16 {V(S0,16)}, {V(KK+4*kt,4)}, {V(Q,4)}, 0")
    for i in range(0, 16, 2): a(f"v_max3_f32 v15, v15, v{S0+i}, v{S0+i+1}")
a(f"""v_lshl_add_u32 v13, s44, 7, v14
ds_max_f32 v13, v15
s_add_u32 s44, s44, 1
s_cmp_lt_u32 s44, 8
s_cbranch_scc1 A_sm
s_waitcnt lgkmcnt(0)
s_barrier
s_mov_b32 s44, 0
A_se:
s_mul_i32 s41, s44, {4*QSTR}
v_add_u32 v{Q}, s41, v{vQA}
ds_read_b128 {V(Q,4)}, v{Q}
v_lshl_add_u32 v13, s44, 7, v14
ds_read_b32 v15, v13
s_waitcnt lgkmcnt(0)""")
for i in range(16): a(f"v_sub_f32 v{S1+i}, 0, v15")
for i in range(0, 16, 2): a(f"v_mov_b64 {V(ACC+i,2)}, 0")
for kt in range(NT):
    a(f"v_mfma_f32_32x32x16_bf16 {V(S0,16)}, {V(KK+4*kt,4)}, {V(Q,4)}, {V(S1,16)}")
    ex(S0, 0, 16)
    smf(2*kt, S0); smf(2*kt+1, S0+8)
a("s_mov_b32 s41, s44")
flush()
a(f"""s_add_u32 s44, s44, 1
s_cmp_lt_u32 s44, 8
s_cbranch_scc1 A_se
s_branch A_X
L_end:
s_cmp_lg_u32 s{sTOK}, 7
s_cbranch_scc1 L_end2
s_add_u32 s41, s{sE}, 2
v_mov_b32 v1, 0
v_mov_b32 v2, s41
s_mov_b64 exec, 1
global_store_dword v1, v2, {P(sWS)}
s_mov_b64 exec, -1
L_end2:
""")
if TSON:
    TS(15)
    a(f"""s_getreg_b32 s75, hwreg(HW_REG_HW_ID)
    s_sub_u32 s76, s95, s94
    s_mul_i32 s41, s{sB}, 12
    s_add_u32 s41, s41, s{sW}
    s_lshl_b32 s41, s41, 7
    s_add_u32 s41, s41, {WS_TS}
    v_mov_b32 v1, s41
    s_mov_b64 exec, 1""")
    for i in range(32):
        a(f"v_mov_b32 v2, s{60+i}\nglobal_store_dword v1, v2, {P(sWS)} offset:{4*i}")
if os.environ.get("DBGT"):
    a(f"""s_mov_b64 exec, 1
    v_mov_b32 v1, 0
    s_not_b32 s41, s60
    v_mov_b32 v2, s41
    global_atomic_umax v1, v2, {P(sDBG)}""")
    for k, slot in enumerate((31, 1, 2, 3, 5, 9, 7, 21, 25, 23, 24, 27, 29, 16, 0)):
        a(f"v_mov_b32 v2, s{60+slot}\nglobal_atomic_umax v1, v2, {P(sDBG)} offset:{4+4*k}")
a("L_exit:\ns_endpgm")

n = a.hazard_pass()
hdr = open(f"cdna_kernels/{NAME}.s.ref").read().split("; Override launch")[0]
out = hdr + f"""; @launch grid=(256,1,1) block=(512,1,1) lds=163840
.amdgcn_target "amdgcn-amd-amdhsa--gfx950"
.text
.globl {NAME}_kernel
.p2align 8
.type {NAME}_kernel,@function
{NAME}_kernel:
""" + a.text() + f""".section .rodata,"a"
.p2align 6
.amdhsa_kernel {NAME}_kernel
  .amdhsa_next_free_vgpr 256
  .amdhsa_next_free_sgpr 102
  .amdhsa_accum_offset 256
  .amdhsa_group_segment_fixed_size 0
  .amdhsa_kernarg_size 104
  .amdhsa_user_sgpr_count 2
  .amdhsa_user_sgpr_kernarg_segment_ptr 1
  .amdhsa_system_sgpr_workgroup_id_x 1
  .amdhsa_float_denorm_mode_32 3
.end_amdhsa_kernel
"""
open(sys.argv[1], "w").write(out)
print("nops inserted", n, "instructions", sum(1 for i in a.items if not isinstance(i, str) and i.text))
```

```python
import sys, os
from asmlib import Asm
NAME = "interleave_layers__grouped_kv_mqa__moe_arch_mod__prompt"
TSON = bool(int(os.environ.get("TS", "0")))
a = Asm()

WS_FLAG = 0x1000; WS_KEY = 0x10000; WS_HY = 0x20000; WS_KV = 0x40000; WS_CAND = 0x80000
WS_OPF = 0x180000
WS_XN = 0x200000; WS_OP = 0x600000; OPL = 0xc00000; WS_TS = 0x3000000; WS_FS = 0x2000000; WS_WKV = 0x2800000
L_SLOT = 65536; L_XN = 114688; L_O = 131072; L_Q = 147456; L_L = 156160; L_SC = 160768
L_ROW = L_SLOT; L_PS = L_SLOT + 16384; L_KVS = L_Q
L_XS = 139776; L_X2S = L_XS + 1024; L_KVP = L_XS + 2048; L_VS = L_XS + 2560; L_KS = L_XS + 2816; L_M = L_XS + 3072
QSTR = 272
SC_KVCNT = 0; SC_KEYS = 16; SC_OCNT = 64; SC_FACC = 128; SC_FCNT = 384; SC_DACC = 400; SC_DCNT = 464; SC_GK = 480
SC_XSF = 512; SC_QFIX = 516; SC_BAD = 96; SC_XNC = 528; SC_QC = 536; SC_B1 = 552; SC_KVD = 544; SC_YC = 548; SC_ZERO = 768; SC_WR = 1024
FORCE = int(os.environ.get('FORCE', '0'))
POLLMAX = 40000
OUTF = ' sc1' if os.environ.get('OUTSC1') else ''
NPRE = int(os.environ.get('NPRE', '2'))
CODECH = int(os.environ.get('CODECH', '6'))
QSCALE = 0x3eb8aa3b

sX, sWQ, sWK, sWV, sWO, sWR, sWG, sWU, sWD, sOUT, sDBG, sWS = 8, 10, 12, 14, 16, 20, 22, 24, 26, 28, 30, 32
sE, sW, sL, sC, sTAG, sLO, sHI = 34, 35, 36, 37, 38, 39, 40
sCNT, sJ, sKEY, sTOK, sMASK, sH, sSEL, sOTAG, sF, sCAND, sMYK, sWT = 46, 47, 48, 49, 50, 51, 52, 53, 54, 55, 56, 57
sORD = 58
sKS = 0
sSLOW = 19
sOPB = 50
sB = 18
sKSL = [0, 1, 2, 3, 4, 5, 6, 7]
def P(n): return f"s[{n}:{n+1}]"
def V(n, k=1): return f"v{n}" if k == 1 else f"v[{n}:{n+k-1}]"

def TS(i):
    if not TSON: return
    a(f"""s_memrealtime s[92:93]
    s_waitcnt lgkmcnt(0)
    s_cmp_eq_u32 s{sL}, 0
    s_cselect_b32 s{60+i}, s92, s{60+i}
    s_cselect_b32 s{76+i}, s{76+i}, s92""")
def TSA(slot):
    if not TSON: return
    a(f"""s_memrealtime s[92:93]
    s_waitcnt lgkmcnt(0)
    s_mov_b32 s{60+slot}, s92""")
def TSF(i):
    if not TSON: return
    a(f"""s_memrealtime s[92:93]
    s_waitcnt lgkmcnt(0)
    s_cmp_eq_u32 s{sF}, 0
    s_cselect_b32 s{60+i}, s92, s{60+i}
    s_cselect_b32 s{76+i}, s{76+i}, s92""")
def TC(i):
    if not TSON: return
    a(f"""s_memtime s[92:93]
    s_waitcnt lgkmcnt(0)
    s_mov_b32 s{94+i}, s92""")

def poll_guard(lbl_retry, cond_branch, lbl_stem, mult=1, sleep=0):
    done = a.newlabel(lbl_stem)
    a(f"{cond_branch} {done}")
    if sleep: a(f"s_sleep {sleep}")
    a(f"""s_add_u32 s{sCNT}, s{sCNT}, 1
    s_cmp_lt_u32 s{sCNT}, {POLLMAX*mult}
    s_cbranch_scc1 {lbl_retry}
    {done}:""")
def lds_wait(vaddr, off, vt, target, sleep=1):
    lb = a.newlabel("W")
    a(f"s_mov_b32 s{sCNT}, 0\n{lb}:")
    a(f"""ds_read_b32 v{vt}, v{vaddr} offset:{off}
    s_waitcnt lgkmcnt(0)
    v_cmp_ne_u32 vcc, {target}, v{vt}""")
    poll_guard(lb, "s_cbranch_vccz", "Wd", 8, sleep)
def lds_inc(vaddr, off, vt):
    a(f"""v_mov_b32 v{vt}, 1
    s_mov_b64 exec, 1
    ds_add_u32 v{vaddr}, v{vt} offset:{off}
    s_mov_b64 exec, -1""")

def dpp_reduce(regs, op="v_add_f32"):
    for m in ("row_ror:8", "row_ror:4", "row_ror:2", "row_ror:1"):
        for r in regs: a(f"{op}_dpp v{r}, v{r}, v{r} {m} row_mask:0xf bank_mask:0xf")
    for r in regs: a(f"{op}_dpp v{r}, v{r}, v{r} row_bcast:15 row_mask:0xa bank_mask:0xf")
    for r in regs: a(f"{op}_dpp v{r}, v{r}, v{r} row_bcast:31 row_mask:0xc bank_mask:0xf")
def unpack(dst, src, n=4):
    for i in range(n):
        a(f"v_lshlrev_b32 v{dst+2*i}, 16, v{src+i}")
        a(f"v_and_b32 v{dst+2*i+1}, 0xffff0000, v{src+i}")
def pack(dst, src, n=4):
    for i in range(n): a(f"v_cvt_pk_bf16_f32 v{dst+i}, v{src+2*i}, v{src+2*i+1}")
def pkadd(d, x, y, n):
    for i in range(0, n, 2): a(f"v_pk_add_f32 {V(d+i,2)}, {V(x+i,2)}, {V(y+i,2)}")
def tr_pair(e, o, t):
    a(f"""v_perm_b32 v{t}, v{o}, v{e}, s{sLO}
    v_perm_b32 v{o}, v{o}, v{e}, s{sHI}
    v_mov_b32 v{e}, v{t}""")
def ln(X, D, T, out, extra=[]):
    a(f"v_readfirstlane_b32 s42, v{X}")
    for i in range(0, 8, 2): a(f"v_pk_add_f32 {V(D+i,2)}, {V(X+i,2)}, s[42:43] op_sel_hi:[1,0] neg_lo:[0,1] neg_hi:[0,1]")
    a(f"""v_pk_add_f32 {V(T,2)}, {V(D,2)}, {V(D+2,2)}
    v_pk_mul_f32 {V(T+2,2)}, {V(D,2)}, {V(D,2)}
    v_pk_add_f32 {V(T,2)}, {V(T,2)}, {V(D+4,2)}
    v_pk_fma_f32 {V(T+2,2)}, {V(D+2,2)}, {V(D+2,2)}, {V(T+2,2)}
    v_pk_add_f32 {V(T,2)}, {V(T,2)}, {V(D+6,2)}
    v_pk_fma_f32 {V(T+2,2)}, {V(D+4,2)}, {V(D+4,2)}, {V(T+2,2)}
    v_add_f32 v{T}, v{T}, v{T+1}
    v_pk_fma_f32 {V(T+2,2)}, {V(D+6,2)}, {V(D+6,2)}, {V(T+2,2)}
    v_mul_f32 v{T}, 0x3b000000, v{T}
    v_add_f32 v{T+1}, v{T+2}, v{T+3}""")
    dpp_reduce([T, T+1] + extra)
    a(f"""v_mul_f32 v{T+1}, 0x3b000000, v{T+1}
    v_fma_f32 v{T+1}, -v{T}, v{T}, v{T+1}
    v_add_f32 v{T}, s42, v{T}
    v_max_f32 v{T+1}, 0, v{T+1}
    v_cvt_pk_bf16_f32 v{T}, v{T}, v{T+1}
    v_and_b32 v{T+1}, 0xffff0000, v{T}
    v_lshlrev_b32 v{T}, 16, v{T}
    v_add_f32 v{T+1}, 0x3727c5ac, v{T+1}
    v_readlane_b32 s42, v{T}, 63
    v_cvt_pk_bf16_f32 v{T+1}, 0, v{T+1}
    v_sqrt_f32 v{T+1}, v{T+1}""")
    for i in range(0, 4, 2): a(f"v_pk_add_f32 {V(D+i,2)}, {V(X+i,2)}, s[42:43] op_sel_hi:[1,0] neg_lo:[0,1] neg_hi:[0,1]")
    a(f"""v_cvt_pk_bf16_f32 v{T+1}, 0, v{T+1}
    v_rcp_f32 v{T+1}, v{T+1}""")
    for i in range(4, 8, 2): a(f"v_pk_add_f32 {V(D+i,2)}, {V(X+i,2)}, s[42:43] op_sel_hi:[1,0] neg_lo:[0,1] neg_hi:[0,1]")
    pack(out, D)
    a(f"v_readlane_b32 s42, v{T+1}, 63")
    unpack(D, out)
    for i in range(0, 8, 2): a(f"v_pk_mul_f32 {V(D+i,2)}, {V(D+i,2)}, s[42:43] op_sel_hi:[1,0]")
    pack(out, D)

XR = 4
X_, D_, T_, XN, X1, WR = 8, 16, 24, 28, 32, 36
XO = 36
vQA, vOA, vIDX = 1, 2, 3
Q, ZZ, ACC, S0, S1, KK, VV = 8, 12, 16, 32, 48, 64, 128
WKV = 64
WQR, WO = 64, 128
FOR = 96
GU, WDn = 40, 56

def wkv_addr(vr):
    a(f"""s_andn2_b32 s41, s{sB}, 3
    s_add_u32 s41, s41, s{sH}
    s_lshl_b32 s41, s41, 13
    s_add_u32 s41, s41, {WS_WKV + 4096}
    v_lshl_add_u32 v{vr}, v0, 4, s41""")
def ffn_loads():
    a(f"""s_lshl_b32 s41, s{sJ}, 15
    s_lshl_b32 s42, s{sH}, 13
    s_add_u32 s41, s41, s42
    s_add_u32 s41, s41, {WS_FS + 4096}
    v_lshl_add_u32 v1, v0, 4, s41""")
    for i in range(6): a(f"global_load_dwordx4 {V(GU+4*i,4)}, v1, {P(sWS)} offset:{1024*i-4096} sc1")
def pos2tok(dst, src):
    a(f"""s_lshl_b32 s{dst}, s{sC}, 3
    s_add_u32 s{dst}, s{dst}, s{src}
    s_add_u32 s{dst}, s{dst}, 8
    s_and_b32 s{dst}, s{dst}, 31
    s_andn2_b32 s43, s{sTOK}, 31
    s_add_u32 s{dst}, s{dst}, s43""")

a(f"""
s_cmp_ge_u32 s2, 256
s_cbranch_scc1 L_exit
s_load_dwordx16 s[8:23], s[0:1], 0
s_load_dwordx8 s[24:31], s[0:1], 64
s_load_dwordx2 s[32:33], s[0:1], 96
v_lshrrev_b32 v1, 6, v0
v_and_b32 v0, 63, v0
s_mov_b32 s{sL}, 0
v_readfirstlane_b32 s{sW}, v1
s_and_b32 s{sC}, s2, 3
s_mov_b32 s{sLO}, 0x05040100
s_mov_b32 s{sHI}, 0x07060302
s_mov_b32 s{sF}, 0
s_mov_b32 s{sSEL}, -1
s_and_b32 s{sJ}, s2, 7
s_lshl_b32 s{sJ}, s{sJ}, 5
s_lshr_b32 s41, s2, 3
s_add_u32 s{sJ}, s{sJ}, s41
s_and_b32 s{sH}, s{sW}, 3
s_lshl_b32 s{sTOK}, s2, 3
s_add_u32 s{sTOK}, s{sTOK}, s{sW}
s_lshl_b32 s41, s{sTOK}, 10
v_lshl_add_u32 v1, v0, 4, s41
v_mov_b64 v[12:13], -1
v_mov_b64 v[14:15], -1
v_and_b32 v49, 15, v0
v_lshrrev_b32 v48, 4, v0
v_lshlrev_b32 v49, 4, v49
v_lshl_add_u32 v49, v48, 13, v49
s_cmp_lg_u32 s{sW}, 7
s_cbranch_scc1 S_z
v_lshlrev_b32 v2, 4, v0
v_add_u32 v2, {L_L}, v2
ds_write_b128 v2, v[12:15]
ds_write_b128 v2, v[12:15] offset:1024
ds_write_b128 v2, v[12:15] offset:2048
ds_write_b128 v2, v[12:15] offset:3072
v_mov_b64 v[8:9], 0
v_mov_b64 v[10:11], 0
ds_write_b128 v2, v[8:11] offset:{L_SC - L_L}
S_z:
""")
if TSON:
    for i in range(32): a(f"s_mov_b32 s{60+i}, 0")
TS(0)
a(f"""
s_waitcnt lgkmcnt(0)
s_mov_b32 s{sB}, s2
s_mov_b32 s{sSLOW}, 0
global_load_dwordx4 {V(XR,4)}, v1, {P(sX)}
s_load_dword s{sE}, {P(sWS)}, 0
s_barrier
s_cmp_ge_u32 s{sW}, 4
s_cbranch_scc1 S_noA
s_setprio 3""")
for g in range(3):
    a(f"s_add_u32 s44, s{sH}, {8*g}")
    pos2tok(41, 44)
    a(f"""s_lshl_b32 s41, s41, 10
    s_add_u32 s41, s41, 2048
    v_lshl_add_u32 v{16+g}, v0, 4, s41""")
for i in range(2): a(f"global_load_dwordx4 {V(FOR+4*i,4)}, v16, {P(sX)} offset:{4096*i-2048}")
a(f"""v_and_b32 v8, 7, v0
v_lshrrev_b32 v9, 4, v0
v_lshlrev_b32 v8, 2, v8
v_lshl_add_u32 v8, v9, 8, v8
s_lshl_b32 s41, s{sH}, 12
v_add_u32 v8, s41, v8
v_and_b32 v9, 8, v0
v_cmp_eq_u32 vcc, 0, v9
v_mov_b32 v10, s{sWV}
v_mov_b32 v11, s{sWK}
v_cndmask_b32 v10, v10, v11, vcc
v_mov_b32 v9, s{sWV+1}
v_mov_b32 v11, s{sWK+1}
v_cndmask_b32 v11, v9, v11, vcc
v_add_co_u32 v10, vcc, v10, v8
v_addc_co_u32 v11, vcc, 0, v11, vcc""")
for s in range(4):
    for j in range(8):
        a(f"global_load_dword v{WKV + 8*s + 4*(j&1) + (j>>1)}, v[10:11], off offset:{1024*s + 32*j}")
for i in range(2, 6): a(f"global_load_dwordx4 {V(FOR+4*i,4)}, v{16+(i>>1)}, {P(sX)} offset:{4096*(i&1)-2048}")
a(f"""v_and_b32 v8, 27, v0
v_cmp_eq_u32 vcc, 16, v8
v_mov_b32 v9, 0x3f803f80
v_cndmask_b32 v8, 0, v9, vcc
v_cndmask_b32 v9, 0, v9, vcc""")
for i in range(0, 128, 2): a(f"v_mov_b64 {V(VV+i,2)}, v[8:9]")
a(f"""s_waitcnt vmcnt(38)
s_branch R_P1
S_noA:
s_lshl_b32 s41, s{sH}, 17
s_lshl_b32 s42, s{sC}, 8
s_add_u32 s41, s41, s42
s_add_u32 s41, s41, 4096
v_add_u32 v48, s41, v49
s_lshr_b32 s43, s2, 3
s_cmp_lg_u32 s{sW}, 7
s_cbranch_scc1 S_no7
v_lshrrev_b32 v1, 5, v0
v_and_b32 v3, 31, v0
v_lshlrev_b32 v3, 4, v3
v_lshl_add_u32 v1, v1, 17, v3
s_lshl_b32 s41, s2, 9
s_add_u32 s41, s41, {WS_KV}
v_add_u32 v1, s41, v1
global_store_dwordx4 v1, v[12:15], {P(sWS)} sc1
s_lshl_b32 s41, s2, 7
s_add_u32 s41, s41, {WS_KEY}
s_lshl_b32 s42, s{sJ}, 7
s_add_u32 s42, s42, {WS_HY - 128}
v_mov_b32 v1, s41
v_mov_b32 v3, s42
v_cmp_gt_u32 vcc, 8, v0
v_cndmask_b32 v1, v3, v1, vcc
v_lshl_add_u32 v1, v0, 4, v1
s_mov_b64 exec, 0xffff
global_store_dwordx4 v1, v[12:15], {P(sWS)} sc1
s_mov_b64 exec, -1
s_waitcnt vmcnt(2)
s_branch R_P1
S_no7:
s_cmp_lg_u32 s{sW}, 4
s_cbranch_scc1 S_no4
v_lshrrev_b32 v1, 2, v0
v_and_b32 v3, 3, v0
v_lshlrev_b32 v3, 6, v3
v_lshl_add_u32 v1, v1, 10, v3
s_lshl_b32 s41, s43, 14
s_lshl_b32 s42, s{sC}, 8
s_add_u32 s41, s41, s42
v_add_u32 v1, s41, v1
global_load_dword v40, v1, {P(sWQ)}
s_lshl_b32 s41, s43, 12
s_lshl_b32 s42, s{sC}, 17
s_add_u32 s41, s41, s42
v_lshl_add_u32 v1, v0, 6, s41
global_load_dword v41, v1, {P(sWO)}
s_branch S_pf
S_no4:
s_cmp_lg_u32 s{sW}, 5
s_cbranch_scc1 S_no5
s_and_b32 s41, s43, 3
s_lshl_b32 s41, s41, 12
v_lshl_add_u32 v1, v0, 6, s41
global_load_dword v40, v1, {P(sWK)}
global_load_dword v41, v1, {P(sWV)}
s_branch S_pf
S_no5:
s_getpc_b64 s[42:43]
s_lshr_b32 s41, s2, 3
s_and_b32 s41, s41, 7
s_min_u32 s41, s41, {CODECH-1}
s_lshl_b32 s41, s41, 12
v_lshl_add_u32 v1, v0, 6, s41
global_load_dword v40, v1, s[42:43]
v_lshlrev_b32 v1, 4, v0
global_load_dwordx4 v[44:47], v1, {P(sWR)}
S_pf:""")
for j in range(8): a(f"global_load_dwordx4 {V(128+4*j,4)}, v48, {P(sWQ)} offset:{1024*j-4096}")
if os.environ.get("TLBW"):
    a(f"""s_cmp_lg_u32 s{sW}, 5
    s_cbranch_scc1 S_nt
    v_min_u32 v1, 43, v0
    v_lshlrev_b32 v1, 20, v1
    s_lshl_b32 s41, s2, 12
    v_add_u32 v1, s41, v1
    global_load_dword v42, v1, {P(sWS)} sc1
    v_mov_b32 v1, s41
    global_load_dword v43, v1, {P(sOUT)} sc1
    global_load_dword v50, v1, {P(sWG)}
    global_load_dword v51, v1, {P(sWU)}
    global_load_dword v52, v1, {P(sWD)}
    s_waitcnt vmcnt(15)
    s_branch R_P1
    S_nt:""")
a("s_waitcnt vmcnt(10)")
def key_make():
    a(f"""v_cvt_pk_bf16_f32 v1, 0, v1
    v_ashrrev_i32 v2, 31, v1
    v_or_b32 v2, 0x80000000, v2
    v_xor_b32 v1, v1, v2
    v_and_b32 v1, 0xffff0000, v1
    s_sub_u32 s41, 2047, s{sTOK}
    v_or_b32 v1, s41, v1
    s_lshl_b32 s41, s{sW}, 2
    s_add_u32 s41, s41, {L_SC + SC_KEYS}
    v_mov_b32 v2, s41
    v_readlane_b32 s{sMYK}, v1, 63
    v_mov_b32 v3, {L_SC}
    s_mov_b32 exec_lo, 0
    s_mov_b32 exec_hi, 0x80000000
    ds_write_b32 v2, v1
    s_mov_b64 exec, -1""")
a("R_P1:")
TS(1)
unpack(X_, XR)
ln(X_, D_, T_, XO, [1])
a(f"""s_add_u32 s41, s{sW}, 8
v_xor_b32 v2, s41, v0
s_add_u32 s41, s{sW}, 24
s_lshl_b32 s41, s41, 10
s_add_u32 s41, s41, {L_XN}
v_lshl_add_u32 v2, v2, 4, s41
ds_write_b128 v2, {V(XO,4)}
s_cmp_eq_u32 s{sL}, 0
s_cbranch_scc1 S_l0
s_lshl_b32 s41, s{sTOK}, 10
s_add_u32 s41, s41, {WS_XN}
v_lshl_add_u32 v2, v0, 4, s41
s_waitcnt vmcnt(0)
global_store_dwordx4 v2, {V(XO,4)}, {P(sWS)} sc1""")
key_make()
a(f"""s_cmp_ge_u32 s{sW}, 4
s_cbranch_scc1 H_B1
s_setprio 3""")
a(f"""A_kvp:
v_and_b32 v8, 7, v0
v_add_u32 v8, 8, v8
v_lshrrev_b32 v9, 4, v0
v_xor_b32 v9, v9, v8
v_lshlrev_b32 v8, 10, v8
s_lshl_b32 s41, s{sH}, 8
s_add_u32 s41, s41, {L_XN + 16*1024}
v_add_u32 v8, s41, v8
v_xor_b32 v10, 4, v9
v_xor_b32 v11, 8, v9
v_xor_b32 v12, 12, v9
v_lshl_add_u32 v9, v9, 4, v8
v_lshl_add_u32 v10, v10, 4, v8
v_lshl_add_u32 v11, v11, 4, v8
v_lshl_add_u32 v12, v12, 4, v8
s_cmp_eq_u32 s{sL}, 0
s_cbranch_scc1 A_kv2
s_waitcnt lgkmcnt(0)
s_barrier
A_kv2:
ds_read_b128 v[40:43], v9
ds_read_b128 v[44:47], v10
ds_read_b128 v[48:51], v11
ds_read_b128 v[52:55], v12
s_lshl_b32 s41, s{sH}, 11
s_add_u32 s41, s41, {L_KVS}
v_lshl_add_u32 v8, v0, 4, s41
s_lshl_b32 s42, s{sL}, 2
v_add_u32 v9, s42, v3
v_mov_b32 v10, 1""")
for s in range(4):
    a(f"s_waitcnt lgkmcnt({3-s})")
    a(f"v_mfma_f32_16x16x32_bf16 v[56:59], {V(WKV+8*s,4)}, {V(40+4*s,4)}, {'0' if s==0 else 'v[56:59]'}")
    a(f"v_mfma_f32_16x16x32_bf16 v[60:63], {V(WKV+8*s+4,4)}, {V(40+4*s,4)}, {'0' if s==0 else 'v[60:63]'}")
a(f"""v_and_b32 v12, 1, v0
v_lshrrev_b32 v13, 3, v0
v_lshlrev_b32 v13, 4, v13
v_lshl_add_u32 v12, v12, 10, v13
v_bfe_u32 v13, v0, 1, 2
v_lshl_add_u32 v12, v13, 2, v12
v_add_u32 v12, {L_KVS}, v12
v_bfe_u32 v13, v0, 2, 1
ds_write_b128 v8, v[56:59]
ds_write_b128 v8, v[60:63] offset:1024
s_mov_b64 exec, 1
ds_add_rtn_u32 v11, v9, v10 offset:{SC_KVCNT}
s_mov_b64 exec, -1
v_lshrrev_b32 v14, 5, v0
v_lshlrev_b32 v14, 8, v14
v_lshl_add_u32 v13, v13, 10, v14
v_and_b32 v14, 3, v0
v_lshl_add_u32 v13, v14, 5, v13
v_bfe_u32 v14, v0, 3, 2
v_lshl_add_u32 v13, v14, 2, v13
v_add_u32 v13, {L_KVS + 512}, v13
v_add_u32 v14, 16, v13
s_waitcnt lgkmcnt(0)
v_readfirstlane_b32 s42, v11
s_cmp_lg_u32 s42, 3
s_cbranch_scc1 A_nokv""")
for w in range(4): a(f"ds_read2st64_b32 {V(40+2*w,2)}, v12 offset0:{8*w} offset1:{8*w+1}")
a(f"""ds_read2st64_b32 v[48:49], v13 offset0:0 offset1:8
ds_read2st64_b32 v[50:51], v13 offset0:16 offset1:24
ds_read2st64_b32 v[52:53], v14 offset0:0 offset1:8
ds_read2st64_b32 v[54:55], v14 offset0:16 offset1:24
s_lshl_b32 s41, s{sL}, 17
s_lshl_b32 s42, s{sB}, 9
s_add_u32 s41, s41, s42
s_add_u32 s41, s41, {WS_KV}
v_lshl_add_u32 v8, v0, 2, s41
s_waitcnt lgkmcnt(4)
v_pk_add_f32 v[40:41], v[40:41], v[42:43]
v_pk_add_f32 v[44:45], v[44:45], v[46:47]
v_pk_add_f32 v[40:41], v[40:41], v[44:45]
v_cvt_pk_bf16_f32 v40, v40, v41
global_store_dword v8, v40, {P(sWS)} sc1
s_waitcnt lgkmcnt(0)
v_pk_add_f32 v[48:49], v[48:49], v[50:51]
v_pk_add_f32 v[52:53], v[52:53], v[54:55]
v_add_f32 v48, v48, v49
v_add_f32 v52, v52, v53
v_cvt_pk_bf16_f32 v48, v48, v52
global_store_dword v8, v48, {P(sWS)} offset:256 sc1
A_nokv:
s_setprio 0""")
if not os.environ.get("PP"): TS(2)
def stage(src, off, temps):
    for f in range(8):
        t = temps[f % len(temps)]
        for i in range(4):
            a(f"v_perm_b32 v{t+i}, v{src+4*(2*i+1)+(f>>1)}, v{src+4*(2*i)+(f>>1)}, s{sHI if f&1 else sLO}")
        a(f"ds_write_b128 v1, {V(t,4)} offset:{off+1024*f}")
a(f"""s_cmp_lg_u32 s{sL}, 0
s_cbranch_scc1 R_cand
s_mov_b32 s45, 6
s_branch S_fl
S_l0:
v_mov_b32 v3, {L_SC}
s_waitcnt lgkmcnt(0)
s_mul_i32 s{sTAG}, s{sE}, 0x9e3779b1
s_add_u32 s{sTAG}, s{sTAG}, 0x7f4a7c15
s_cmp_ge_u32 s{sW}, 4
s_cbranch_scc1 H_stage""")
lds_inc(3, SC_B1, 8)
a(f"""s_mov_b32 s44, 0
s_mov_b32 s45, {NPRE}
s_waitcnt vmcnt(36)
S_fl:""")
unpack(X_, FOR)
ln(X_, D_, T_, XO)
a(f"""s_lshl_b32 s41, s44, 2
s_add_u32 s41, s41, s{sH}
s_and_b32 s42, s41, 15
v_xor_b32 v1, s42, v0
s_lshl_b32 s41, s41, 10
s_add_u32 s41, s41, {L_XN}
v_lshl_add_u32 v1, v1, 4, s41
ds_write_b128 v1, {V(XO,4)}
s_add_u32 s44, s44, 1
s_cmp_lt_u32 s44, {NPRE}
s_cbranch_scc1 S_f1
s_waitcnt vmcnt(2)
s_cmp_lg_u32 s44, {NPRE}
s_cbranch_scc1 S_f2
s_waitcnt vmcnt(0)
S_f2:
s_lshl_b32 s41, s44, 2
s_set_gpr_idx_on s41, gpr_idx(SRC0)
s_nop 1
v_mov_b32 v{FOR}, v{FOR}
v_mov_b32 v{FOR+1}, v{FOR+1}
v_mov_b32 v{FOR+2}, v{FOR+2}
v_mov_b32 v{FOR+3}, v{FOR+3}
s_nop 1
s_set_gpr_idx_off
s_branch S_f3
S_f1:
v_mov_b64 {V(FOR,2)}, {V(FOR+4,2)}
v_mov_b64 {V(FOR+2,2)}, {V(FOR+6,2)}
S_f3:
s_cmp_lt_u32 s44, s45
s_cbranch_scc1 S_fl
s_cmp_eq_u32 s45, 6
s_cbranch_scc1 A_nst""")
for s in range(4):
    for i in range(4): tr_pair(WKV+8*s+i, WKV+8*s+4+i, 8)
lds_wait(3, SC_B1, 8, 8, 0)
a(f"""s_branch A_kvp
A_nst:""")
TSA(27)
a(f"""s_cmp_lg_u32 s{sH}, s{sC}
s_cbranch_scc1 A_P2x""")
wkv_addr(1)
for i in range(8): a(f"global_store_dwordx4 v1, {V(WKV+4*i,4)}, {P(sWS)} offset:{1024*i-4096} sc1")
a(f"""A_P2x:
s_branch A_P2
H_B1:
s_waitcnt lgkmcnt(0)
s_barrier
s_setprio 2""")
a(f"""R_cand:
ds_read_b128 v[8:11], v3 offset:{SC_KEYS}
ds_read_b128 v[12:15], v3 offset:{SC_KEYS+16}
s_lshl_b32 s41, s{sF}, 19
s_lshl_b32 s42, s{sB}, 11
s_add_u32 s41, s41, s42
s_add_u32 s41, s41, {WS_CAND}
v_lshl_add_u32 v2, v0, 4, s41
s_lshl_b32 s41, s{sB}, 7
s_lshl_b32 s42, s{sF}, 2
s_add_u32 s41, s41, s42
s_add_u32 s41, s41, {WS_KEY}
v_mov_b32 v16, s41
s_waitcnt lgkmcnt(0)
v_max3_u32 v8, v8, v9, v10
v_max3_u32 v12, v12, v13, v14
v_max3_u32 v8, v8, v11, v15
v_max_u32 v8, v8, v12
v_readfirstlane_b32 s41, v8
s_mov_b32 s{sCAND}, 0
s_cmp_lg_u32 s41, s{sMYK}
s_cbranch_scc1 R_nocand
s_mov_b32 s{sCAND}, 1
s_mov_b64 exec, 1
global_store_dword v16, v8, {P(sWS)} sc1
s_mov_b64 exec, -1
global_store_dwordx4 v2, {V(XN,4)}, {P(sWS)} sc1
global_store_dwordx4 v2, {V(X1,4)}, {P(sWS)} offset:1024 sc1
R_nocand:""")
TSF(8)
a(f"""s_cmp_lg_u32 s{sF}, 0
s_cbranch_scc1 R_tail
s_cmp_ge_u32 s{sW}, 4
s_cbranch_scc1 H_gather""")
def key_reduce():
    dpp_reduce([8], "v_max_u32")
    a(f"""s_lshl_b32 s41, s{sF}, 4
    s_lshl_b32 s42, s{sH}, 2
    s_add_u32 s41, s41, s42
    v_add_u32 v9, s41, v3
    v_add_u32 v8, 1, v8
    s_mov_b32 exec_lo, 0
    s_mov_b32 exec_hi, 0x80000000
    ds_write_b32 v9, v8 offset:{SC_GK}
    s_mov_b64 exec, -1""")
def key_poll():
    l1 = a.newlabel("K_p")
    a(f"""s_lshl_b32 s42, s{sF}, 2
    s_lshl_b32 s41, s{sH}, 13
    s_add_u32 s42, s42, s41
    s_add_u32 s42, s42, {WS_KEY}
    v_lshl_add_u32 v9, v0, 7, s42
    s_mov_b32 s{sCNT}, 0
    {l1}:
    global_load_dword v8, v9, {P(sWS)} sc1
    s_waitcnt vmcnt(0)
    v_cmp_eq_u32 vcc, -1, v8""")
    poll_guard(l1, "s_cbranch_vccz", "K_pd")
    key_reduce()
def key_get(sleep):
    l2 = a.newlabel("K_g")
    a(f"""s_lshl_b32 s41, s{sF}, 4
    v_add_u32 v10, s41, v3
    s_mov_b32 s{sCNT}, 0
    {l2}:""")
    a(f"""ds_read_b128 v[16:19], v10 offset:{SC_GK}
    s_waitcnt lgkmcnt(0)
    v_min3_u32 v8, v16, v17, v18
    v_min_u32 v8, v8, v19
    v_cmp_eq_u32 vcc, 0, v8""")
    poll_guard(l2, "s_cbranch_vccz", "K_gd", 8, sleep)
    a(f"""v_max3_u32 v8, v16, v17, v18
    v_max_u32 v8, v8, v19
    v_readfirstlane_b32 s{sKEY}, v8
    s_sub_u32 s{sKEY}, s{sKEY}, 1
    s_and_b32 s41, s{sKEY}, 0x7ff
    s_sub_u32 s{sSEL}, 2047, s41""")
a(f"""A_P2:
s_lshl_b32 s42, s{sL}, 2
v_add_u32 v9, s42, v3""")
lds_inc(9, SC_XNC, 8)
a(f"""s_lshl_b32 s41, s{sL}, 17
s_lshl_b32 s42, s{sH}, 15
s_add_u32 s41, s41, s42
s_add_u32 s41, s41, {WS_KV}
s_add_u32 s41, s41, 2048
v_bfe_u32 v14, v0, 3, 2
v_and_b32 v15, 7, v0
v_lshlrev_b32 v15, 5, v15
v_lshl_add_u32 v14, v14, 9, v15
v_lshrrev_b32 v11, 5, v0
v_lshl_add_u32 v14, v11, 4, v14
v_add_u32 v14, s41, v14
v_and_b32 v15, 15, v0
v_lshlrev_b32 v15, 4, v15
v_lshl_add_u32 v15, v11, 9, v15
s_add_u32 s41, s41, 256
v_add_u32 v15, s41, v15
s_mov_b32 s{sORD}, 0x65432108
s_mov_b32 s{sORD+1}, 0x7
s_mov_b32 s{sWT}, 15
s_lshl_b32 s41, s{sH}, 13
s_cmp_eq_u32 s{sL}, 0
s_cselect_b32 s42, {WS_FLAG}, 0
s_cselect_b32 s43, 0, {WS_KEY}
s_add_u32 s41, s41, s42
s_add_u32 s41, s41, s43
v_lshl_add_u32 v10, v0, 7, s41
s_cmp_lg_u32 s{sL}, 0
s_cbranch_scc1 A_nfl
s_mov_b32 s{sCNT}, 0
A_flg:
global_load_dword v8, v10, {P(sWS)} sc1
s_waitcnt vmcnt(0)
v_cmp_ne_u32 vcc, s{sTAG}, v8""")
poll_guard("A_flg", "s_cbranch_vccz", "A_flgd", 1, 2)
a("A_nfl:")
lds_wait(9, SC_XNC, 8, 8, 1)
TS(3)
def kv_pair(p):
    a(f"""s_add_u32 s0, s{sWS}, {0x1000*p}
    s_addc_u32 s1, s{sWS+1}, 0""")
    for k in range(2):
        a(f"global_load_dwordx4 {V(KK+8*p+4*k,4)}, v14, s[0:1] offset:{2048*k-2048} sc1")
    a("s_mov_b64 exec, s[98:99]")
    for i in range(4):
        a(f"global_load_dwordx4 {V(VV+16*p+4*i,4)}, v15, s[0:1] offset:{1024*i-2048} sc1")
    a("s_mov_b64 exec, -1")
def kv_check(p, younger):
    fr = [KK+8*p, KK+8*p+4] + [VV+16*p+4*i for i in range(4)]
    a(f"""s_waitcnt vmcnt({younger})
    C_r{p}:
    v_max3_u32 v12, v{fr[0]}, v{fr[1]}, v{fr[2]}
    v_max3_u32 v13, v{fr[3]}, v{fr[4]}, v{fr[5]}
    v_max_u32 v12, v12, v13
    v_cmp_eq_u32 vcc, -1, v12
    s_cbranch_vccnz C_x{p}
    C_o{p}:
    s_cmp_eq_u32 s3, {p}
    s_cbranch_scc1 C_m{p}
    C_b{p}:""")
def kv_tail(p):
    a(f"""C_x{p}:
    s_add_u32 s{sCNT}, s{sCNT}, 1
    s_cmp_ge_u32 s{sCNT}, {POLLMAX}
    s_cbranch_scc1 C_o{p}""")
    kv_pair(p)
    a(f"""s_waitcnt vmcnt(0)
    s_branch C_r{p}
    C_m{p}:
    v_mov_b32 v12, s5
    s_mov_b64 exec, s[6:7]
    s_set_gpr_idx_on s4, gpr_idx(SRC0,DST)
    s_nop 1
    v_and_b32 v{VV}, v{VV}, v12
    s_nop 1
    s_set_gpr_idx_off
    s_mov_b64 exec, -1
    s_nop 1
    s_branch C_b{p}""")
DEP = 3
a("s_mov_b32 s98, 0xffff\ns_mov_b32 s99, 0xffff")
for p in range(DEP): kv_pair(p)
a(f"""s_mov_b32 s3, 15
s_cmp_eq_u32 s{sL}, 0
s_cbranch_scc1 A_go
s_mov_b32 s{sCNT}, 0
A_kp:
global_load_dword v8, v10, {P(sWS)} sc1
s_waitcnt vmcnt(0)
v_cmp_eq_u32 vcc, -1, v8""")
poll_guard("A_kp", "s_cbranch_vccz", "A_kpd", 1, 1)
key_reduce()
key_get(0)
a(f"""s_bfe_u32 s4, s{sSEL}, 0x50004
s_lshl_b32 s4, s4, 2
s_bfe_u32 s42, s{sSEL}, 0x20001
s_add_u32 s4, s4, s42
s_bitcmp1_b32 s{sSEL}, 0
s_mov_b32 s5, 0xffff0000
s_cselect_b32 s5, 0xffff, s5
s_bitcmp1_b32 s{sSEL}, 3
s_cselect_b32 s6, 0, -1
s_cselect_b32 s7, -1, 0
s_lshr_b32 s41, s{sSEL}, 9
s_bfe_u32 s42, s{sSEL}, 0x30006
s_cmp_eq_u32 s41, s{sH}
s_cselect_b32 s3, s42, 15
s_xor_b32 s41, s{sSEL}, s{sTOK}
s_lshr_b32 s41, s41, 5
s_cbranch_scc1 A_go
s_lshl_b32 s41, s{sC}, 3
s_sub_u32 s41, s{sSEL}, s41
s_sub_u32 s41, s41, 8
s_bfe_u32 s{sWT}, s41, 0x30002
s_or_b32 s41, s{sWT}, 1
s_max_u32 s41, s41, 4
s_xor_b32 s42, s41, s{sWT}
s_mov_b32 s43, 0
s_lshl_b32 s41, s41, 2
s_add_u32 s41, s41, 4
s_lshl_b64 s[44:45], s[42:43], s41
s_xor_b64 {P(sORD)}, {P(sORD)}, s[44:45]
s_lshl_b32 s41, s{sWT}, 2
s_add_u32 s41, s41, 4
s_lshl_b64 s[44:45], s[42:43], s41
s_xor_b64 {P(sORD)}, {P(sORD)}, s[44:45]
A_go:
s_lshl_b32 s42, s{sL}, 2
v_add_u32 v9, s42, v3""")
def att_addr():
    a(f"""v_bfe_u32 v1, v0, 3, 2
    v_mul_u32_u24 v1, {QSTR}, v1
    v_and_b32 v2, 7, v0
    v_lshl_add_u32 v1, v2, 5, v1
    v_lshrrev_b32 v2, 5, v0
    v_lshl_add_u32 v1, v2, 4, v1
    v_add_u32 v{vQA}, {L_Q}, v1
    s_lshl_b32 s41, s{sH}, 11
    s_add_u32 s41, s41, {L_SLOT}
    v_lshl_add_u32 v{vOA}, v0, 4, s41
    v_mov_b32 v{vIDX}, 0xdddddddd
    v_and_b32 v0, 31, v0
    s_lshl_b32 s41, s{sH}, 7
    s_add_u32 s41, s41, {L_L}
    v_lshl_add_u32 v0, v0, 2, s41""")
att_addr()
a(f"s_mov_b32 s{sCNT}, 0")
kv_check(0, 6*(DEP-1))
TS(4)
lds_wait(9, SC_QC, 10, 4, 0)
a(f"""s_bfe_u32 s41, s{sORD}, 0x40004
s_mul_i32 s41, s41, {4*QSTR}
v_add_u32 v{Q}, s41, v{vQA}
ds_read_b128 {V(Q,4)}, v{Q}
s_mov_b32 s{sCNT}, 0""")
for i in range(0, 10, 2): a(f"v_mov_b64 {V(ACC+i,2)}, 0")
TS(5)
TC(0)
def smf(vfrag, pb): a(f"v_smfmac_f32_32x32x32_bf16 {V(ACC,16)}, {V(VV+4*vfrag,4)}, {V(pb,8)}, v{vIDX}")
def ex(base, lo, hi):
    for i in range(lo, hi): a(f"v_exp_f32 v{base+i}, v{base+i}")
def flush():
    a(f"""v_lshl_add_u32 v{ACC+10}, s41, 13, v{vOA}
    v_lshl_add_u32 v{ACC+11}, s41, 9, v0
    ds_write_b128 v{ACC+10}, {V(ACC,4)}
    ds_write_b128 v{ACC+10}, {V(ACC+4,4)} offset:1024
    ds_write_b32 v{ACC+11}, v{ACC+8}""")
a(f"""s_waitcnt lgkmcnt(0)
v_mfma_f32_32x32x16_bf16 {V(S0,16)}, {V(KK,4)}, {V(Q,4)}, 0""")
NT = 16
def att_pass(first):
    for kt in range(NT):
        cur, oth = (S0, S1) if kt % 2 == 0 else (S1, S0)
        if first and kt % 2 == 0 and kt//2 + DEP < 8:
            kv_pair(kt//2 + DEP)
            if kt//2 + DEP == 7:
                a(f"v_mov_b32 v12, {L_SC}")
                lds_inc(12, SC_KVD, 13)
        ex(cur, 0, 2)
        if not (first and kt == 0): smf((2*kt - 1) % (2*NT), oth + 8)
        ex(cur, 2, 5)
        if kt == NT-1: a("s_waitcnt lgkmcnt(0)")
        if first and kt % 2 == 1 and kt < NT-1:
            p = (kt+1)//2
            kv_check(p, 6*(min(kt//2 + DEP, 7) - p))
        a(f"v_mfma_f32_32x32x16_bf16 {V(oth,16)}, {V(KK+4*((kt+1)%NT),4)}, {V(Q,4)}, 0")
        if kt == NT-2:
            a(f"s_bfe_u32 s41, s{sORD}, 0x40008")
            if not first:
                a(f"""s_cmp_eq_u32 s41, s{sWT}
                s_cbranch_scc1 A_qwait
                A_qback:""")
            a(f"""s_mul_i32 s41, s41, {4*QSTR}
            v_add_u32 v{Q}, s41, v{vQA}
            ds_read_b128 {V(Q,4)}, v{Q}""")
        if kt == 0 and not first:
            a(f"s_and_b32 s41, s{sORD}, 15")
            ex(cur, 5, 12)
            flush()
            a(f"v_mfma_f32_32x32x8_f16 {V(ACC,16)}, {V(ZZ,2)}, {V(ZZ,2)}, 0")
            ex(cur, 12, 15)
            smf(0, cur)
            ex(cur, 15, 16)
        else:
            ex(cur, 5, 10)
            smf(2*kt, cur)
            ex(cur, 10, 16)
att_pass(True)
a(f"""v_mov_b64 {V(ZZ,2)}, 0
s_lshr_b64 {P(sORD)}, {P(sORD)}, 4""")
if not os.environ.get('PP'): TS(12)
if TSON:
    a(f"""s_cmp_eq_u32 s{sL}, 0
    s_cselect_b32 s73, s{sCNT}, s73
    s_cselect_b32 s89, s89, s{sCNT}""")
if os.environ.get("AL"):
    a(".p2align 6")
    for _ in range(int(os.environ["AL"])): a("s_nop 0")
a("A_pass:")
if os.environ.get("PP"): a("s_memtime s[96:97]")
att_pass(False)
if os.environ.get("PP"):
    a(f"""s_cmp_lg_u32 s{sL}, {os.environ.get("PP")}
    s_cbranch_scc1 A_ppx""")
    for d, q in ((86, 87), (87, 88), (88, 74), (74, 70), (70, 71), (71, 62), (62, 96)): a(f"s_mov_b32 s{d}, s{q}")
    a("A_ppx:")
a(f"""s_lshr_b64 {P(sORD)}, {P(sORD)}, 4
s_cmp_gt_u32 s{sORD}, 15
s_cbranch_scc1 A_pass""")
smf(2*NT-1, S1 + 8)
a(f"s_and_b32 s41, s{sORD}, 15")
flush()
TC(1)
TS(9)
a(f"""A_X:
v_mbcnt_lo_u32_b32 v0, -1, 0
v_mbcnt_hi_u32_b32 v0, -1, v0
s_waitcnt lgkmcnt(0)
s_barrier""")
TS(6)
a(f"""v_mov_b32 v9, {L_SC}
s_barrier
ds_read_b32 v9, v9 offset:{SC_BAD}""")
wkv_addr(1)
a(f"""s_waitcnt lgkmcnt(0)
v_cmp_ne_u32 vcc, 0, v9
s_cbranch_vccnz A_slow
s_cmp_lg_u32 s{sL}, 0
s_cbranch_scc1 R_P4""")
for i in range(8): a(f"global_load_dwordx4 {V(WKV+4*i,4)}, v1, {P(sWS)} offset:{1024*i-4096} sc1")
a(f"""R_P4:
v_lshrrev_b32 v1, 4, v0
v_and_b32 v2, 15, v0
v_lshlrev_b32 v2, 4, v2
v_lshl_add_u32 v1, v1, 9, v2
s_lshl_b32 s41, s{sW}, 11
s_add_u32 s41, s41, {L_ROW}
v_add_u32 v1, s41, v1
s_mov_b32 s{sF}, s{sL}
s_mov_b32 s{sSLOW}, 0
v_lshlrev_b32 v2, 4, v0
v_add_u32 v2, {L_X2S}, v2
ds_read_b128 {V(WR,4)}, v2 offset:{L_SC + SC_WR - L_X2S}
s_cmp_lg_u32 s{sSEL}, s{sTOK}
s_cbranch_scc1 R_nx
ds_read_b128 {V(XR,4)}, v2
s_waitcnt lgkmcnt(0)
R_nx:""")
unpack(24, XR)
a(f"""s_barrier
ds_read_b128 v[8:11], v1
ds_read_b128 v[12:15], v1 offset:256
ds_read_b128 v[16:19], v1 offset:16384
ds_read_b128 v[20:23], v1 offset:16640
s_waitcnt lgkmcnt(0)""")
TS(7)
pkadd(8, 8, 16, 8)
pack(16, 8); unpack(8, 16)
pkadd(8, 8, 24, 8)
pack(X1, 8)
unpack(X_, X1)
ln(X_, D_, T_, XN)
a(f"""v_dot2_f32_bf16 v1, v{XN}, v{WR}, 0
v_dot2_f32_bf16 v1, v{XN+1}, v{WR+1}, v1
v_dot2_f32_bf16 v1, v{XN+2}, v{WR+2}, v1
v_dot2_f32_bf16 v1, v{XN+3}, v{WR+3}, v1""")
unpack(D_, XN)
pkadd(D_, D_, X_, 8)
pack(XR, D_)
a(f"""s_cmp_eq_u32 s{sL}, 0
s_mov_b32 s{sL}, 1
s_cbranch_scc1 R_P1""")
dpp_reduce([1])
key_make()
a(f"""s_waitcnt lgkmcnt(0)
s_barrier
s_branch R_cand
R_tail:
s_lshl_b32 s41, s{sTOK}, 10
v_lshl_add_u32 v1, v0, 4, s41
s_cmp_lg_u32 s{sCAND}, 0
s_cbranch_scc1 R_noout
global_store_dwordx4 v1, {V(XR,4)}, {P(sOUT)}{OUTF}
R_noout:
s_cmp_ge_u32 s{sW}, 4
s_cbranch_scc1 H_FFN""")
key_poll()
a(f"""s_cmp_eq_u32 s{sCAND}, 0
s_cbranch_scc1 L_end""")
key_get(1)
a(f"""R_last:
s_cmp_eq_u32 s{sCAND}, 0
s_cbranch_scc1 L_end
s_cmp_eq_u32 s{sSEL}, s{sTOK}
s_cbranch_scc1 L_end
s_lshl_b32 s41, s{sTOK}, 10
v_lshl_add_u32 v1, v0, 4, s41
global_store_dwordx4 v1, {V(XR,4)}, {P(sOUT)}{OUTF}
s_branch L_end
A_qwait:
v_mov_b32 v14, {L_SC}""")
lds_wait(14, SC_QFIX, 15, 4, 1)
a(f"""s_mov_b32 s{sWT}, 15
s_branch A_qback""")
for p in range(8): kv_tail(p)

a(f"""H_stage:
s_cmp_lg_u32 s{sW}, 7
s_cbranch_scc1 H_st7
s_lshl_b32 s41, s{sB}, 7
s_add_u32 s41, s41, {WS_FLAG}
v_mov_b32 v1, s41
v_mov_b32 v2, s{sTAG}
s_waitcnt vmcnt(0)
s_mov_b64 exec, 1
global_store_dword v1, v2, {P(sWS)} sc1
s_mov_b64 exec, -1""")
lds_inc(3, SC_B1, 8)
for j in range(8): a(f"global_load_dwordx4 {V(128+4*j,4)}, v48, {P(sWQ)} offset:{1024*j-4096}")
a("v_add_u32 v48, 0x8000, v48")
for j in range(8): a(f"global_load_dwordx4 {V(160+4*j,4)}, v48, {P(sWQ)} offset:{1024*j-4096}")
a("s_branch H_st1\nH_st7:")
lds_inc(3, SC_B1, 8)
for s in (1, 2, 3):
    a("v_add_u32 v48, 0x8000, v48")
    for j in range(8): a(f"global_load_dwordx4 {V(128+32*s+4*j,4)}, v48, {P(sWQ)} offset:{1024*j-4096}")
a(f"""H_st1:
s_lshl_b32 s41, s{sH}, 2
s_lshl_b32 s42, s{sC}, 8
s_add_u32 s41, s41, s42
s_add_u32 s41, s41, {448*1024+4096}
v_add_u32 v2, s41, v49
v_add_u32 v3, 0x8000, v2""")
for s in range(2):
    for j in range(8):
        a(f"global_load_dword v{WQR+48+8*s+4*(j&1)+(j>>1)}, v{2+s}, {P(sWQ)} offset:{1024*j-4096}")
a(f"""s_setprio 2
s_lshl_b32 s41, s{sH}, 15
v_lshl_add_u32 v1, v0, 4, s41
s_cmp_lg_u32 s{sH}, 3
s_cbranch_scc1 H_st2
s_waitcnt vmcnt(16)
H_st2:""")
TSA(26)
for s in range(4):
    if s == 2: a(f"s_cmp_eq_u32 s{sH}, 3\ns_cbranch_scc1 H_st3")
    a(f"s_waitcnt vmcnt({40-8*s})")
    stage(128+32*s, 8192*s, [8, 12, 16, 20, 24, 28, 32, 36])
a(f"""H_st3:
s_cmp_lg_u32 s{sW}, 6
s_cbranch_scc1 H_st0
v_lshlrev_b32 v1, 4, v0
v_add_u32 v1, {L_SC + SC_WR}, v1
ds_write_b128 v1, v[44:47]
H_st0:
s_waitcnt vmcnt(0)""")
for s in range(2):
    for i in range(4): tr_pair(WQR+48+8*s+i, WQR+48+8*s+4+i, 40)
TSA(4)
a("s_branch H_P2")
a("H_gather:")

for g in range(3):
    a(f"s_add_u32 s44, s{sH}, {8*g}")
    pos2tok(41, 44)
    a(f"""s_lshl_b32 s41, s41, 10
    s_add_u32 s41, s41, {WS_XN + 2048}
    v_lshl_add_u32 v{8+g}, v0, 4, s41""")
a(f"""v_xor_b32 v12, s{sH}, v0
v_xor_b32 v13, 4, v12
v_xor_b32 v14, 8, v12
v_xor_b32 v15, 12, v12
s_lshl_b32 s41, s{sH}, 10
s_add_u32 s41, s41, {L_XN}
v_lshl_add_u32 v12, v12, 4, s41
v_lshl_add_u32 v13, v13, 4, s41
v_lshl_add_u32 v14, v14, 4, s41
v_lshl_add_u32 v15, v15, 4, s41
s_mov_b32 s{sCNT}, 0
H_xg:""")
for i in range(6): a(f"global_load_dwordx4 {V(40+4*i,4)}, v{8+(i>>1)}, {P(sWS)} offset:{4096*(i&1)-2048} sc1")
a(f"""s_waitcnt vmcnt(0)
v_max3_u32 v16, v40, v44, v48
v_max3_u32 v17, v52, v56, v60
v_max_u32 v16, v16, v17
v_cmp_eq_u32 vcc, -1, v16""")
poll_guard("H_xg", "s_cbranch_vccz", "H_xgd")
for i in range(6): a(f"ds_write_b128 v{12+(i&3)}, {V(40+4*i,4)} offset:{4096*i}")
a(f"""H_P2:
s_lshl_b32 s42, s{sL}, 2
s_add_u32 s42, s42, {L_SC}
v_mov_b32 v3, s42""")
lds_inc(3, SC_XNC, 12)
a(f"""v_and_b32 v1, 15, v0
v_lshrrev_b32 v2, 4, v0
v_xor_b32 v8, v2, v1
v_lshlrev_b32 v1, 10, v1
v_add_u32 v1, {L_XN}, v1
v_xor_b32 v9, 4, v8
v_xor_b32 v10, 8, v8
v_xor_b32 v11, 12, v8
v_lshl_add_u32 v8, v8, 4, v1
v_lshl_add_u32 v9, v9, 4, v1
v_lshl_add_u32 v10, v10, 4, v1
v_lshl_add_u32 v11, v11, 4, v1
s_lshl_b32 s41, s{sH}, 11
v_lshl_add_u32 v1, v0, 4, s41
v_add_u32 v2, 0x10000, v1""")
lds_wait(3, SC_XNC, 12, 8, 0)
TS(3)
a(f"""s_cmp_lg_u32 s{sL}, 0
s_cbranch_scc1 H_qp""")
for s in range(6):
    for f in range(2): a(f"ds_read_b128 {V(WQR+8*s+4*f,4)}, v2 offset:{8192*s+1024*f}")
a("s_waitcnt lgkmcnt(0)\nH_qp:")
order = [14, 0, 15, 1, 8, 2, 9, 3, 10, 4, 11, 5, 12, 6, 13, 7]
def qread(idx):
    s = order[idx]; b = 28 + 16*(idx % 2)
    a(f"ds_read_b128 {V(b,4)}, v{8+(s&3)} offset:{256*(s>>2)}")
    a(f"ds_read_b128 {V(b+4,4)}, v{8+(s&3)} offset:{256*(s>>2)+16384}")
    if s < 8:
        a(f"ds_read_b128 {V(b+8,4)}, v1 offset:{8192*s}")
        a(f"ds_read_b128 {V(b+12,4)}, v1 offset:{8192*s+1024}")
    return 4 if s < 8 else 2
qread(0)
for idx in range(16):
    n = qread(idx+1) if idx + 1 < 16 else 0
    a(f"s_waitcnt lgkmcnt({n})")
    s = order[idx]; b = 28 + 16*(idx % 2)
    for f in range(2):
        A_ = V(b+8+4*f,4) if s < 8 else V(WQR+8*(s-8)+4*f,4)
        for nt in range(2):
            d = V(12+8*f+4*nt,4)
            a(f"v_mfma_f32_16x16x32_bf16 {d}, {A_}, {V(b+4*nt,4)}, {'0' if idx==0 else d}")
a(f"""v_and_b32 v1, 15, v0
v_mul_u32_u24 v1, {QSTR}, v1
v_lshrrev_b32 v2, 4, v0
v_lshl_add_u32 v1, v2, 6, v1
s_lshl_b32 s41, s{sH}, 3
s_add_u32 s41, s41, {L_Q}
v_add_u32 v1, s41, v1
s_mov_b32 s41, {QSCALE}""")
for i in range(16): a(f"v_mul_f32 v{12+i}, s41, v{12+i}")
for nt in range(2):
    for hh in range(2):
        for f in range(2):
            a(f"v_cvt_pk_bf16_f32 v{28+4*nt+2*hh+f}, v{12+8*f+4*nt+2*hh}, v{12+8*f+4*nt+2*hh+1}")
a(f"""ds_write_b64 v1, v[28:29]
ds_write_b64 v1, v[30:31] offset:32
ds_write_b64 v1, v[32:33] offset:{16*QSTR}
ds_write_b64 v1, v[34:35] offset:{16*QSTR+32}""")
lds_inc(3, SC_QC, 12)
TS(2)
a(f"""s_cmp_eq_u32 s{sL}, 0
s_cbranch_scc1 H_prep
v_mov_b32 v3, {L_SC}
s_branch H_FFN
H_prep:""")
lds_wait(3, SC_KVD, 12, 4, 4)
a(f"""v_and_b32 v1, 15, v0
v_lshrrev_b32 v2, 4, v0
v_lshlrev_b32 v1, 4, v1
v_lshl_add_u32 v1, v2, 13, v1
s_lshl_b32 s41, s{sC}, 17
s_lshl_b32 s42, s{sH}, 8
s_add_u32 s41, s41, s42
s_add_u32 s41, s41, 4096
v_add_u32 v1, s41, v1""")
def wosrc(s): return 8 if s == 0 else WO + 32*(s-1)
for s in range(4):
    for j in range(8):
        a(f"global_load_dwordx4 {V(wosrc(s)+4*j,4)}, v1, {P(sWO)} offset:{1024*j-4096}")
    if s < 3: a("v_add_u32 v1, 0x8000, v1")
a(f"""s_min_u32 s43, s{sB}, 223
s_lshl_b32 s43, s43, 2
s_add_u32 s43, s43, s{sH}
s_and_b32 s44, s43, 31
s_lshr_b32 s45, s43, 5
v_lshrrev_b32 v2, 3, v0
v_and_b32 v3, 7, v0
s_mul_i32 s41, s44, {8*7168}
s_lshl_b32 s42, s45, 7
s_add_u32 s41, s41, s42
v_mul_u32_u24 v1, 7168, v2
v_lshl_add_u32 v1, v3, 4, v1
v_add_u32 v1, s41, v1
global_load_dwordx4 {V(GU,4)}, v1, {P(sWG)}
global_load_dwordx4 {V(GU+4,4)}, v1, {P(sWG)} offset:3584
global_load_dwordx4 {V(GU+8,4)}, v1, {P(sWU)}
global_load_dwordx4 {V(GU+12,4)}, v1, {P(sWU)} offset:3584
s_lshl_b32 s41, s45, 16
s_lshl_b32 s42, s44, 5
s_add_u32 s41, s41, s42
s_add_u32 s41, s41, 4096
v_lshlrev_b32 v1, 13, v2
v_lshl_add_u32 v1, v3, 2, v1
v_add_u32 v1, s41, v1""")
for r in range(8): a(f"global_load_dword v{WDn + 4*(r&1) + (r>>1)}, v1, {P(sWD)} offset:{1024*r-4096}")
a("s_waitcnt vmcnt(12)")
for s in (3, 2, 1, 0):
    src = wosrc(s); dst = WO + 32*s
    for f in range(8):
        for i in range(4):
            a(f"v_perm_b32 v{dst+4*f+i}, v{src+4*(2*i+1)+(f>>1)}, v{src+4*(2*i)+(f>>1)}, s{sHI if f&1 else sLO}")
a(f"""v_mov_b32 v8, -1
v_mov_b32 v9, -1
v_mov_b32 v10, -1
v_mov_b32 v11, -1
s_lshl_b32 s41, s{sB}, 13
s_lshl_b32 s42, s{sH}, 11
s_add_u32 s41, s41, s42
s_add_u32 s41, s41, {WS_XN}
v_lshl_add_u32 v1, v0, 4, s41
global_store_dwordx4 v1, v[8:11], {P(sWS)} sc1
global_store_dwordx4 v1, v[8:11], {P(sWS)} offset:1024 sc1
s_lshr_b32 s41, s{sH}, 1
s_lshl_b32 s41, s41, 19
s_and_b32 s42, s{sH}, 1
s_lshl_b32 s42, s42, 10
s_add_u32 s41, s41, s42
s_lshl_b32 s42, s{sB}, 11
s_add_u32 s41, s41, s42
s_add_u32 s41, s41, {WS_CAND}
v_lshl_add_u32 v1, v0, 4, s41
global_store_dwordx4 v1, v[8:11], {P(sWS)} sc1
s_cmp_ge_u32 s{sB}, 224
s_cbranch_scc1 H_bursts
s_waitcnt vmcnt(3)""")
for base in (GU, GU+8, WDn):
    for i in range(4): tr_pair(base+i, base+4+i, 12)
a(f"""v_lshlrev_b32 v2, 4, v2
v_lshl_add_u32 v2, v3, 15, v2
s_lshl_b32 s41, s45, 18
s_lshr_b32 s42, s44, 3
s_lshl_b32 s42, s42, 13
s_add_u32 s41, s41, s42
s_and_b32 s42, s44, 7
s_lshl_b32 s42, s42, 7
s_add_u32 s41, s41, s42
s_add_u32 s41, s41, {WS_FS}
v_add_u32 v1, s41, v2""")
for i in range(4): a(f"global_store_dwordx4 v1, {V(GU+4*i,4)}, {P(sWS)} offset:{1024*i} sc1")
a(f"""s_lshl_b32 s41, s44, 18
s_lshr_b32 s42, s45, 3
s_lshl_b32 s42, s42, 13
s_add_u32 s41, s41, s42
s_and_b32 s42, s45, 7
s_lshl_b32 s42, s42, 7
s_add_u32 s41, s41, s42
s_add_u32 s41, s41, {WS_FS + 4096}
v_add_u32 v1, s41, v2""")
for i in range(2): a(f"global_store_dwordx4 v1, {V(WDn+4*i,4)}, {P(sWS)} offset:{1024*i} sc1")
a("H_bursts:")
TS(5)
OF, AC = 8, 32
sSB, sLB = 44, 45
a(f"""s_lshr_b32 s41, s{sH}, 1
s_and_b32 s42, s{sH}, 1
s_lshl_b32 s{sSB}, s41, 13
s_lshl_b32 s43, s42, 10
s_add_u32 s{sSB}, s{sSB}, s43
s_add_u32 s{sSB}, s{sSB}, {L_SLOT}
s_lshl_b32 s{sLB}, s41, 9
s_add_u32 s{sLB}, s{sLB}, {L_L}
v_bfe_u32 v3, v0, 3, 2
v_mul_u32_u24 v3, {QSTR}, v3
v_and_b32 v8, 7, v0
v_lshl_add_u32 v3, v8, 5, v3
s_mul_i32 s43, s41, {4*QSTR}
s_add_u32 s43, s43, {L_O}
v_add_u32 v3, s43, v3
v_and_b32 v2, 15, v0
v_mul_u32_u24 v2, {QSTR}, v2
v_lshrrev_b32 v8, 4, v0
v_lshl_add_u32 v2, v8, 4, v2
v_add_u32 v2, {L_O}, v2
s_mul_i32 s{sOPB}, s{sL}, {OPL}
s_lshl_b32 s41, s{sH}, 12
s_add_u32 s{sOPB}, s{sOPB}, s41
s_add_u32 s{sOPB}, s{sOPB}, {WS_OP}
s_add_u32 s{sOTAG}, s{sTAG}, s{sL}
s_add_u32 s{sOTAG}, s{sOTAG}, 1""")
def corr(g):
    l0 = a.newlabel("H_c0"); l1 = a.newlabel("H_c1")
    a(f"""s_andn2_b32 s41, s{sL}, s{sSLOW}
    s_cbranch_scc0 {l0}
    v_lshrrev_b32 v28, 5, v0
    s_lshl_b32 s41, s{sH}, 5
    s_add_u32 s41, s41, {L_VS}
    v_lshl_add_u32 v28, v28, 4, s41
    ds_read_b128 v[8:11], v3 offset:{L_Q - L_O + 8*QSTR*g}
    ds_read_b128 v[12:15], v3 offset:{L_Q - L_O + 8*QSTR*g + 16}
    ds_read_b128 v[28:31], v28
    s_waitcnt lgkmcnt(1)
    v_dot2_f32_bf16 v1, v8, s{sKSL[0]}, 0""")
    for i in range(1, 8): a(f"v_dot2_f32_bf16 v1, v{8+i}, s{sKSL[i]}, v1")
    a(f"""v_exp_f32 v1, v1
    s_waitcnt lgkmcnt(0)
    v_and_b32 v1, 0xffff0000, v1
    v_pk_mul_f32 v[28:29], v[28:29], v[0:1] op_sel:[0,1] op_sel_hi:[1,1]
    v_pk_mul_f32 v[30:31], v[30:31], v[0:1] op_sel:[0,1] op_sel_hi:[1,1]
    s_branch {l1}
    {l0}:
    v_mov_b32 v1, 0
    v_mov_b64 v[28:29], 0
    v_mov_b64 v[30:31], 0
    {l1}:""")
def norm_pre(g):
    a(f"""v_and_b32 v10, 31, v0
    s_add_u32 s41, s{sLB}, {1024*g}
    v_lshl_add_u32 v10, v10, 2, s41
    v_lshl_add_u32 v24, v0, 4, s{sSB}""")
def normalize(g, sleep):
    if sleep:
        lb = a.newlabel("H_lw")
        a(f"""v_lshl_add_u32 v13, v0, 3, s{sLB}
        s_mov_b32 s{sCNT}, 0
        {lb}:
        ds_read_b32 v8, v13 offset:{1024*g}
        s_waitcnt lgkmcnt(0)
        v_cmp_eq_u32 vcc, -1, v8""")
        poll_guard(lb, "s_cbranch_vccz", "H_lwd", 4, sleep)
    a(f"""ds_read2_b32 v[8:9], v10 offset0:0 offset1:32
    ds_read2_b32 v[10:11], v10 offset0:64 offset1:96""")
    for w in range(4): a(f"ds_read_b128 {V(12+4*w,4)}, v24 offset:{16384*g + 2048*w}")
    a(f"""s_waitcnt lgkmcnt(4)
    v_pk_add_f32 v[8:9], v[8:9], v[10:11]
    v_add_f32 v8, v8, v9
    v_add_f32 v8, v8, v1
    v_rcp_f32 v9, v8
    s_waitcnt lgkmcnt(2)""")
    pkadd(12, 12, 16, 4)
    pkadd(12, 12, 28, 4)
    a(f"""v_lshrrev_b32 v11, 5, v0
    s_and_b32 s41, s{sH}, 1
    s_lshl_b32 s41, s41, 4
    v_lshl_add_u32 v11, v11, 3, v3
    s_waitcnt lgkmcnt(0)""")
    pkadd(20, 20, 24, 4)
    a("v_add_u32 v11, s41, v11")
    pkadd(12, 12, 20, 4)
    lb = a.newlabel("H_nb")
    a(f"""v_pk_mul_f32 v[12:13], v[12:13], v[8:9] op_sel:[0,1] op_sel_hi:[1,1]
    v_pk_mul_f32 v[14:15], v[14:15], v[8:9] op_sel:[0,1] op_sel_hi:[1,1]
    v_cvt_pk_bf16_f32 v16, v12, v13
    v_cvt_pk_bf16_f32 v17, v14, v15
    ds_write_b64 v11, v[16:17] offset:{8*QSTR*g}
    v_pk_add_f32 v[12:13], v[12:13], v[14:15]
    v_add_f32 v12, v12, v13
    v_fma_f32 v8, v12, 0, v8
    v_subrev_u32 v8, {(127-80)<<23}, v8
    v_cmp_lt_u32 vcc, {(0 if (FORCE>>g)&1 else (180<<23))}, v8
    s_cbranch_vccz {lb}
    s_cmp_lg_u32 s{sSLOW}, 0
    s_cbranch_scc1 {lb}
    v_mov_b32 v8, {L_SC}
    v_mov_b32 v9, 1
    ds_write_b32 v8, v9 offset:{SC_BAD}
    {lb}:""")
def hsync(idx, bad=True):
    lb = a.newlabel("H_hs")
    a(f"""s_lshl_b32 s41, s{sL}, 4
    s_add_u32 s41, s41, {L_SC}
    v_mov_b32 v8, s41
    v_mov_b32 v11, {L_SC}""")
    lds_inc(8, SC_OCNT + 4*idx, 9)
    lds_wait(8, SC_OCNT + 4*idx, 9, 4, 3)
    if bad:
        a(f"""ds_read_b32 v9, v11 offset:{SC_BAD}
        s_waitcnt lgkmcnt(0)
        v_cmp_ne_u32 vcc, 0, v9
        s_cbranch_vccnz H_toX""")
def oproj(first):
    if first: a("s_setprio 0")
    for s in range(4):
        a(f"s_waitcnt lgkmcnt({3-s})")
        for f in range(8):
            a(f"v_mfma_f32_16x16x32_bf16 {V(AC+4*f,4)}, {V(OF+4*s,4)}, {V(WO+32*s+4*f,4)}, {'0' if (s==0 and first) else V(AC+4*f,4)}")
def osend(bi):
    if bi == 0: a("s_setprio 0")
    a("s_waitcnt lgkmcnt(0)")
    def st(f):
        if bi == 1: a("s_mov_b32 exec_hi, 0")
        a(f"global_store_dwordx4 v24, {V(AC+4*f,4)}, {P(sWS)} offset:{512*f} sc1")
        if bi == 1: a("s_mov_b32 exec_hi, -1")
    for f in range(8):
        for s in range(4):
            a(f"v_mfma_f32_16x16x32_bf16 {V(AC+4*f,4)}, {V(OF+4*s,4)}, {V(WO+32*s+4*f,4)}, {'0' if s==0 else V(AC+4*f,4)}")
        if f >= 2: st(f-2)
    st(6); st(7)
    if bi == 0: a("s_setprio 2")
def flag_poll(vaddr, sleep):
    lp = a.newlabel("H_fp")
    a(f"""s_mov_b32 s{sCNT}, 0
    {lp}:""")
    a(f"""global_load_dword v8, v{vaddr}, {P(sWS)} sc1
    s_waitcnt vmcnt(0)
    v_cmp_ne_u32 vcc, s{sOTAG}, v8""")
    poll_guard(lp, "s_cbranch_vccz", "H_fpd", 1, sleep)
def send_addr(bi):
    a(f"""v_lshrrev_b32 v26, 5, v0
    s_add_u32 s41, s{sC}, {1 + 2*bi}
    v_add_u32 v25, s41, v26
    v_and_b32 v25, 3, v25
    v_mul_u32_u24 v24, 49152, v25
    v_lshl_add_u32 v24, v26, 14, v24
    v_and_b32 v26, 31, v0
    v_lshl_add_u32 v24, v26, 4, v24
    s_andn2_b32 s43, s{sB}, 3
    s_mul_i32 s41, s43, 49152
    s_add_u32 s41, s41, s{sOPB}
    s_add_u32 s41, s41, {32768*bi}
    v_add_u32 v24, s41, v24""")
a(f"""s_add_u32 s41, s{sC}, 3
s_and_b32 s41, s41, 3
s_andn2_b32 s43, s{sB}, 3
s_add_u32 s41, s41, s43
s_mul_i32 s41, s41, 49152
s_add_u32 s41, s41, s{sOPB}
s_add_u32 s41, s41, 32768
v_lshl_add_u32 v24, v0, 4, s41
v_mov_b64 v[8:9], -1
v_mov_b64 v[10:11], -1""")
for f in range(4): a(f"global_store_dwordx4 v24, v[8:11], {P(sWS)} offset:{1024*f} sc1")
corr(0); norm_pre(0); normalize(0, 16); corr(1); norm_pre(1); normalize(1, 8)
hsync(0)
for s_ in range(4): a(f"ds_read_b128 {V(OF+4*s_,4)}, v2 offset:{64*s_}")
send_addr(0)
a(f"""s_add_u32 s41, s{sC}, 1
v_add_u32 v25, s41, v0
v_and_b32 v25, 3, v25
v_lshlrev_b32 v25, 11, v25
v_lshl_add_u32 v25, v0, 9, v25
s_lshl_b32 s41, s43, 11
s_lshl_b32 s42, s{sH}, 7
s_add_u32 s41, s41, s42
s_add_u32 s41, s41, {WS_OPF}
v_add_u32 v25, s41, v25
v_mov_b32 v27, s{sOTAG}""")
osend(0)
a(f"""s_waitcnt vmcnt(0)
s_mov_b64 exec, 7
global_store_dword v25, v27, {P(sWS)} sc1
s_mov_b64 exec, -1""")
TS(6)
def recv01(nonblock=False):
    a(f"""v_lshrrev_b32 v27, 5, v0
    v_and_b32 v26, 31, v0
    s_mul_i32 s41, s{sB}, 49152
    s_add_u32 s41, s41, s{sOPB}
    v_lshl_add_u32 v26, v26, 4, s41
    v_lshl_add_u32 v24, v27, 14, v26
    s_lshl_b32 s41, s{sB}, 11
    s_lshl_b32 s42, s{sH}, 7
    s_add_u32 s41, s41, s42
    s_add_u32 s41, s41, {WS_OPF}
    v_min_u32 v25, 2, v0
    v_lshl_add_u32 v25, v25, 9, s41""")
    if nonblock:
        a(f"""v_lshlrev_b32 v13, 4, v0
        v_add_u32 v13, {L_L + 2048}, v13
        s_mov_b32 s{sCNT}, 0
        H_nbp:
        ds_read_b32 v8, v13
        s_waitcnt lgkmcnt(0)
        v_cmp_eq_u32 vcc, -1, v8
        s_cbranch_vccz H_b1
        s_add_u32 s{sCNT}, s{sCNT}, 1
        s_cmp_ge_u32 s{sCNT}, {POLLMAX}
        s_cbranch_scc1 H_b1
        s_sleep 4
        global_load_dword v8, v25, {P(sWS)} sc1
        s_waitcnt vmcnt(0)
        v_cmp_ne_u32 vcc, s{sOTAG}, v8
        s_cbranch_vccnz H_nbp""")
    else:
        flag_poll(25, 2)
    if nonblock:
        a(f"""s_lshl_b32 s41, s{sH}, 13
        s_add_u32 s41, s41, {L_SLOT}""")
        for f in range(8):
            a(f"""s_add_u32 m0, s41, {512*f}
            global_load_lds_dwordx4 v24, {P(sWS)} offset:{512*f} sc1""")
    else:
        for f in range(8): a(f"global_load_dwordx4 {V(AC+4*f,4)}, v24, {P(sWS)} offset:{512*f} sc1")
a(f"s_mov_b32 s{sCAND}, 0")
recv01(True)
a(f"s_mov_b32 s{sCAND}, 1\nH_b1:")
corr(2); norm_pre(2); normalize(2, 4)
hsync(1)
for s_ in range(4): a(f"ds_read_b128 {V(OF+4*s_,4)}, v2 offset:{64*s_ + 16*QSTR}")
send_addr(1)
osend(1)
TS(9)
a(f"""s_cmp_lg_u32 s{sCAND}, 0
s_cbranch_scc1 H_r2""")
recv01()
a(f"""H_r2:
v_lshrrev_b32 v27, 5, v0
v_and_b32 v26, 31, v0
s_mul_i32 s41, s{sB}, 49152
s_add_u32 s41, s41, s{sOPB}
s_add_u32 s41, s41, 32768
v_lshl_add_u32 v26, v26, 4, s41
v_lshl_add_u32 v26, v27, 11, v26
s_mov_b32 s{sCNT}, 0
H_p2:""")
for f in range(4): a(f"global_load_dwordx4 {V(8+4*f,4)}, v26, {P(sWS)} offset:{512*f} sc1")
a(f"""s_waitcnt vmcnt(0)
v_max3_u32 v24, v8, v12, v16
v_max_u32 v24, v24, v20
v_cmp_eq_u32 vcc, -1, v24""")
poll_guard("H_p2", "s_cbranch_vccz", "H_p2d", 1, 4)
a(f"""s_cmp_eq_u32 s{sCAND}, 0
s_cbranch_scc1 H_r3
s_lshl_b32 s41, s{sH}, 13
s_add_u32 s41, s41, {L_SLOT}
v_lshl_add_u32 v24, v0, 4, s41""")
for f in range(8): a(f"ds_read_b128 {V(AC+4*f,4)}, v24 offset:{1024*f}")
a("s_waitcnt lgkmcnt(0)\nH_r3:\ns_mov_b32 exec_hi, 0")
pkadd(AC, AC, 8, 16)
a("s_mov_b32 exec_lo, 0\ns_mov_b32 exec_hi, -1")
pkadd(AC+16, AC+16, 8, 16)
a("s_mov_b64 exec, -1")
TS(10)
a(f"""v_and_b32 v8, 8, v0
v_cmp_eq_u32 vcc, 0, v8
v_lshrrev_b32 v8, 4, v0
v_lshlrev_b32 v8, 4, v8
v_add_u32 v8, {L_SC + SC_ZERO - 24*QSTR}, v8
v_cndmask_b32 v2, v8, v2, vcc""")
corr(3)
norm_pre(3)
a("s_barrier")
normalize(3, 0)
a(f"""v_mov_b32 v24, {L_SC}
s_waitcnt lgkmcnt(0)
s_barrier
ds_read_b32 v24, v24 offset:{SC_BAD}""")
for s_ in range(4): a(f"ds_read_b128 {V(OF+4*s_,4)}, v2 offset:{64*s_ + 24*QSTR}")
a(f"""v_lshrrev_b32 v26, 4, v0
v_and_b32 v25, 15, v0
v_lshlrev_b32 v25, 4, v25
v_lshl_add_u32 v25, v26, 13, v25
s_lshl_b32 s41, s{sH}, 9
s_add_u32 s41, s41, {L_ROW}
v_add_u32 v25, s41, v25
s_waitcnt lgkmcnt(4)
v_cmp_ne_u32 vcc, 0, v24
s_cbranch_vccnz H_slow""")
oproj(False)
k = 0
for half in range(2):
    for i in range(4):
        t = 8 + 4*(k % 4); k += 1
        for f in (0, 2):
            r0 = AC + 4*(4*half+f) + (i & 2); r1 = r0 + 4
            a(f"v_pk_mov_b32 {V(t+f,2)}, {V(r0,2)}, {V(r1,2)} op_sel:[{i&1},{i&1}]")
        a(f"ds_write_b128 v25, {V(t,4)} offset:{2048*i + 256*half}")
a(f"""v_mov_b64 v[28:29], -1
v_mov_b64 v[30:31], -1
s_lshl_b32 s41, s{sH}, 10
s_add_u32 s41, s41, {L_L}
v_lshl_add_u32 v1, v0, 4, s41
ds_write_b128 v1, v[28:31]
s_setprio 0
s_waitcnt lgkmcnt(0)
s_cmp_eq_u32 s{sL}, 0
s_cbranch_scc1 R_P4""")
ffn_loads()
a("s_branch R_P4")
a("H_FFN:")
key_get(1)
a(f"""s_cmp_lg_u32 s{sF}, 0
s_cbranch_scc1 H_nl""")
ffn_loads()
a("H_nl:")
a(f"""s_lshr_b32 s41, s{sSEL}, 3
s_lshl_b32 s41, s41, 11
s_lshl_b32 s42, s{sF}, 19
s_add_u32 s41, s41, s42
s_add_u32 s41, s41, {WS_CAND}
s_lshl_b32 s42, s{sH}, 8
s_add_u32 s42, s42, s41
v_lshl_add_u32 v2, v0, 2, s42
s_lshl_b32 s42, s{sJ}, 2
s_add_u32 s42, s42, s41
v_mov_b32 v9, s42
s_lshl_b32 s42, s{sF}, 2
v_add_u32 v37, s42, v3
s_mov_b32 s{sCNT}, 0""")
TSF(11)
a(f"""H_xs:
global_load_dword v8, v2, {P(sWS)} sc1
global_load_dword v38, v9, {P(sWS)} sc1
global_load_dword v39, v9, {P(sWS)} offset:1024 sc1
s_waitcnt vmcnt(0)
v_max3_u32 v10, v8, v38, v39
v_cmp_eq_u32 vcc, -1, v10""")
poll_guard("H_xs", "s_cbranch_vccz", "H_xsd")
a(f"""s_cmp_ge_u32 s{sJ}, 224
s_cbranch_scc1 H_down""")
for i in range(16): a(f"v_dot2_f32_bf16 v{GU+i}, v{GU+i}, v8, 0")
for c in range(8): a(f"v_permlane32_swap_b32 v{GU+c}, v{GU+8+c}")
pkadd(GU, GU, GU+8, 8)
for c in range(4): a(f"v_permlane16_swap_b32 v{GU+c}, v{GU+4+c}")
pkadd(GU, GU, GU+4, 4)
for m in ("row_ror:8", "row_ror:4", "row_ror:2", "row_ror:1"):
    for c in range(4): a(f"v_add_f32_dpp v{GU+c}, v{GU+c}, v{GU+c} {m} row_mask:0xf bank_mask:0xf")
a(f"""v_lshrrev_b32 v2, 4, v0
s_lshl_b32 s41, s{sH}, 6
s_add_u32 s41, s41, {L_SC + SC_FACC}
v_lshl_add_u32 v2, v2, 4, s41
v_mov_b32 v9, 1
s_mov_b32 exec_lo, 0x00010001
s_mov_b32 exec_hi, 0x00010001
ds_write_b128 v2, {V(GU,4)}
s_mov_b64 exec, 1
ds_add_rtn_u32 v10, v37, v9 offset:{SC_FCNT}
s_mov_b64 exec, -1
v_and_b32 v2, 1, v0
v_bfe_u32 v9, v0, 1, 2
v_lshlrev_b32 v9, 2, v9
v_lshl_add_u32 v9, v2, 4, v9
v_add_u32 v9, {L_SC + SC_FACC}, v9
s_waitcnt lgkmcnt(0)
v_readfirstlane_b32 s42, v10
s_cmp_lg_u32 s42, 3
s_cbranch_scc1 H_down""")
for w in range(4): a(f"ds_read2_b32 {V(12+2*w,2)}, v9 offset0:{16*w} offset1:{16*w+8}")
a(f"""s_lshl_b32 s41, s{sJ}, 7
s_lshl_b32 s42, s{sF}, 4
s_add_u32 s41, s41, s42
s_add_u32 s41, s41, {WS_HY}
v_lshl_add_u32 v2, v0, 1, s41
s_waitcnt lgkmcnt(0)
v_pk_add_f32 v[12:13], v[12:13], v[14:15]
v_pk_add_f32 v[16:17], v[16:17], v[18:19]
v_pk_add_f32 v[12:13], v[12:13], v[16:17]
v_cvt_pk_bf16_f32 v12, v12, v13
v_and_b32 v13, 0xffff0000, v12
v_lshlrev_b32 v12, 16, v12
v_mul_f32 v14, 0xbfb8aa3b, v12
v_exp_f32 v14, v14
v_add_f32 v14, 1.0, v14
v_rcp_f32 v14, v14
v_mul_f32 v12, v12, v14
v_cvt_pk_bf16_f32 v12, v12, v12
v_lshlrev_b32 v12, 16, v12
v_mul_f32 v12, v12, v13
v_cvt_pk_bf16_f32 v12, v12, v12
s_mov_b64 exec, 0xff
global_store_short v2, v12, {P(sWS)} sc1
s_mov_b64 exec, -1
H_down:
s_lshl_b32 s41, s{sH}, 6
v_add_u32 v1, s41, v0
v_min_u32 v2, 223, v1
s_lshl_b32 s42, s{sF}, 4
s_add_u32 s42, s42, {WS_HY}
v_lshl_add_u32 v2, v2, 7, s42
s_mov_b32 s{sCNT}, 0""")
TSF(12)
a(f"""s_cmp_lg_u32 s{sF}, 0
s_cbranch_scc1 H_nkw""")
a("s_sleep 24\nH_nkw:")
a(f"""s_mov_b32 s{sCNT}, 0
H_hp:
global_load_dwordx4 v[12:15], v2, {P(sWS)} sc1
s_waitcnt vmcnt(0)
v_max3_u32 v9, v12, v13, v14
v_max_u32 v9, v9, v15
v_cmp_eq_u32 vcc, -1, v9""")
poll_guard("H_hp", "s_cbranch_vccz", "H_hpd", 1, 3)
TSF(13)
a(f"""v_dot2_f32_bf16 v8, v{WDn}, v12, 0
v_dot2_f32_bf16 v9, v{WDn+4}, v12, 0""")
for i in range(1, 4):
    a(f"v_dot2_f32_bf16 v8, v{WDn+i}, v{12+i}, v8")
    a(f"v_dot2_f32_bf16 v9, v{WDn+4+i}, v{12+i}, v9")
a(f"""v_cmp_gt_u32 vcc, 224, v1
v_cndmask_b32 v8, 0, v8, vcc
v_cndmask_b32 v9, 0, v9, vcc
v_permlane32_swap_b32 v8, v9
v_add_f32 v8, v8, v9""")
for m in ("row_ror:8", "row_ror:4", "row_ror:2", "row_ror:1"):
    a(f"v_add_f32_dpp v8, v8, v8 {m} row_mask:0xf bank_mask:0xf")
a(f"""v_add_f32_dpp v8, v8, v8 row_bcast:15 row_mask:0xa bank_mask:0xf
v_lshrrev_b32 v2, 5, v0
s_lshl_b32 s41, s{sH}, 3
s_add_u32 s41, s41, {L_SC + SC_DACC}
v_lshl_add_u32 v2, v2, 2, s41
v_mov_b32 v9, 1
s_mov_b32 exec_lo, 0x80000000
s_mov_b32 exec_hi, 0x80000000
ds_write_b32 v2, v8
s_mov_b64 exec, 1
ds_add_rtn_u32 v12, v37, v9 offset:{SC_DCNT}
s_mov_b64 exec, -1
s_lshr_b32 s41, s{sKEY}, 16
s_and_b32 s42, s41, 0x7fff
s_xor_b32 s43, s41, 0xffff
s_bitcmp1_b32 s41, 15
s_cselect_b32 s41, s42, s43
s_lshl_b32 s41, s41, 16
v_mov_b32 v11, s41
v_mul_f32 v11, 0xbfb8aa3b, v11
v_exp_f32 v11, v11
v_add_f32 v11, 1.0, v11
v_rcp_f32 v11, v11
v_cvt_pk_bf16_f32 v11, v11, v11
v_lshlrev_b32 v11, 16, v11
s_waitcnt lgkmcnt(0)
v_readfirstlane_b32 s42, v12
s_cmp_lg_u32 s42, 3
s_cbranch_scc1 H_ffd
ds_read_b128 v[12:15], v3 offset:{SC_DACC}
ds_read_b128 v[16:19], v3 offset:{SC_DACC+16}
s_waitcnt lgkmcnt(0)
v_pk_add_f32 v[12:13], v[12:13], v[14:15]
v_pk_add_f32 v[16:17], v[16:17], v[18:19]
v_pk_add_f32 v[8:9], v[12:13], v[16:17]""")
pack(12, 8, 1); unpack(8, 12, 1)
a("v_mul_f32 v8, v8, v11\nv_mul_f32 v9, v9, v11")
pack(12, 8, 1); unpack(8, 12, 1); unpack(14, 38, 1)
a("v_add_f32 v8, v8, v14\nv_add_f32 v9, v9, v15")
pack(12, 8, 1); unpack(8, 12, 1); unpack(14, 39, 1)
a("v_add_f32 v8, v8, v14\nv_add_f32 v9, v9, v15")
pack(12, 8, 1)
a(f"""s_mov_b64 exec, 1
s_cmp_lg_u32 s{sF}, 0
s_cbranch_scc1 H_fo
s_lshl_b32 s41, s{sJ}, 7
s_add_u32 s41, s41, {WS_HY + 32}
v_mov_b32 v2, s41
global_store_dword v2, v12, {P(sWS)} sc1
s_branch H_fo2
H_fo:
s_lshl_b32 s41, s{sSEL}, 10
s_lshl_b32 s42, s{sJ}, 2
s_add_u32 s41, s41, s42
v_mov_b32 v2, s41
global_store_dword v2, v12, {P(sOUT)}{OUTF}
H_fo2:
s_mov_b64 exec, -1
H_ffd:
s_cmp_lg_u32 s{sF}, 0
s_cbranch_scc1 R_last""")
a(f"""s_lshl_b32 s41, s{sH}, 13
s_add_u32 s41, s41, {WS_HY + 32}
v_lshl_add_u32 v1, v0, 7, s41
s_lshl_b32 s41, s{sH}, 8
s_add_u32 s41, s41, {L_X2S}
v_lshl_add_u32 v2, v0, 2, s41
s_mov_b32 s{sCNT}, 0
s_sleep 8
H_yw:
global_load_dword v40, v1, {P(sWS)} sc1
s_waitcnt vmcnt(0)
v_cmp_eq_u32 vcc, -1, v40""")
poll_guard("H_yw", "s_cbranch_vccz", "H_yd", 1, 3)
a(f"""ds_write_b32 v2, v40
v_mov_b32 v2, 1
s_mov_b64 exec, 1
ds_add_rtn_u32 v41, v3, v2 offset:{SC_YC}
s_mov_b64 exec, -1
v_lshlrev_b32 v1, 4, v0
v_add_u32 v1, {L_XS}, v1
s_waitcnt lgkmcnt(0)
v_readfirstlane_b32 s41, v41
s_cmp_lg_u32 s41, 3
s_cbranch_scc1 H_fx1
ds_read_b128 v[40:43], v1 offset:1024
s_waitcnt lgkmcnt(0)""")
unpack(X_, 40)
ln(X_, D_, T_, XN)
a(f"ds_write_b128 v1, {V(XN,4)}")
lds_inc(3, SC_XSF, 2)
a("H_fx1:")
wkv_addr(1)
for i in range(8): a(f"global_load_dwordx4 {V(8+4*i,4)}, v1, {P(sWS)} offset:{1024*i-4096} sc1")
lds_wait(3, SC_XSF, 2, 1, 2)
TSA(14)
a(f"""v_lshrrev_b32 v1, 4, v0
v_lshlrev_b32 v1, 4, v1
v_add_u32 v1, {L_XS}, v1
s_xor_b32 s41, s{sSEL}, s{sTOK}
s_lshr_b32 s41, s41, 5
s_cbranch_scc1 H_fx2
s_lshl_b32 s41, s{sH}, 11
v_lshl_add_u32 v2, v0, 4, s41""")
for s in range(16):
    a(f"ds_read_b128 v[48:51], v1 offset:{64*s}")
    if s < 8:
        a(f"ds_read_b128 v[52:55], v2 offset:{8192*s}")
        a(f"ds_read_b128 v[56:59], v2 offset:{8192*s+1024}")
    a("s_waitcnt lgkmcnt(0)")
    for f in range(2):
        A_ = V(52+4*f,4) if s < 8 else V(WQR+8*(s-8)+4*f,4)
        a(f"v_mfma_f32_16x16x32_bf16 {V(40+4*f,4)}, {A_}, v[48:51], {'0' if s==0 else V(40+4*f,4)}")
a(f"""s_lshl_b32 s41, s{sC}, 3
s_sub_u32 s41, s{sSEL}, s41
s_sub_u32 s41, s41, 8
s_and_b32 s41, s41, 31
s_mul_i32 s41, s41, {QSTR}
s_lshl_b32 s42, s{sH}, 3
s_add_u32 s41, s41, s42
s_add_u32 s41, s41, {L_Q}
v_lshrrev_b32 v2, 4, v0
v_lshl_add_u32 v2, v2, 6, s41
s_mov_b32 s41, {QSCALE}""")
for i in range(8): a(f"v_mul_f32 v{40+i}, s41, v{40+i}")
for hh in range(2):
    for f in range(2):
        a(f"v_cvt_pk_bf16_f32 v{48+2*hh+f}, v{40+4*f+2*hh}, v{40+4*f+2*hh+1}")
a(f"""s_mov_b32 exec_lo, 0x00010001
s_mov_b32 exec_hi, 0x00010001
ds_write_b64 v2, v[48:49]
ds_write_b64 v2, v[50:51] offset:32
s_mov_b64 exec, -1""")
lds_inc(3, SC_QFIX, 2)
a(f"""H_fx2:
s_lshl_b32 s41, s{sH}, 8
v_add_u32 v1, s41, v1""")
for s in range(4): a(f"ds_read_b128 {V(40+4*s,4)}, v1 offset:{64*s}")
a(f"""v_lshrrev_b32 v2, 4, v0
s_lshl_b32 s41, s{sH}, 7
s_add_u32 s41, s41, {L_KVP}
v_lshl_add_u32 v2, v2, 5, s41
s_waitcnt vmcnt(0) lgkmcnt(0)""")
for s in range(4):
    a(f"v_mfma_f32_16x16x32_bf16 v[56:59], {V(8+8*s,4)}, {V(40+4*s,4)}, {'0' if s==0 else 'v[56:59]'}")
    a(f"v_mfma_f32_16x16x32_bf16 v[60:63], {V(8+8*s+4,4)}, {V(40+4*s,4)}, {'0' if s==0 else 'v[60:63]'}")
a("s_mov_b32 exec_lo, 0x00010001\ns_mov_b32 exec_hi, 0x00010001")
for i in range(4): a(f"ds_write2_b32 v2, v{56+i}, v{60+i} offset0:{2*i} offset1:{2*i+1}")
a("s_mov_b64 exec, -1")
hsync(2, False)
a(f"""v_and_b32 v1, 7, v0
v_lshlrev_b32 v1, 2, v1
v_add_u32 v1, {L_KVP}, v1
v_lshrrev_b32 v2, 5, v0
s_and_b32 s41, s{sH}, 1
s_lshl_b32 s41, s41, 5
s_add_u32 s41, s41, {L_KVP + 64}
v_lshl_add_u32 v40, v2, 4, s41
s_lshl_b32 s41, s{sH}, 5
s_add_u32 s41, s41, {L_VS}
v_lshl_add_u32 v41, v2, 4, s41""")
for w in range(4): a(f"ds_read2_b32 {V(8+2*w,2)}, v1 offset0:{32*w} offset1:{32*w+8}")
for w in range(4): a(f"ds_read_b128 {V(16+4*w,4)}, v40 offset:{128*w}")
a(f"""s_waitcnt lgkmcnt(4)
v_pk_add_f32 v[8:9], v[8:9], v[10:11]
v_pk_add_f32 v[12:13], v[12:13], v[14:15]
v_pk_add_f32 v[8:9], v[8:9], v[12:13]
v_cvt_pk_bf16_f32 v8, v8, v9
s_waitcnt lgkmcnt(0)""")
pkadd(16, 16, 20, 4); pkadd(24, 24, 28, 4); pkadd(16, 16, 24, 4)
for i in range(8): a(f"v_readlane_b32 s{sKSL[i]}, v8, {i}")
pack(20, 16, 2); unpack(16, 20, 2)
a(f"""ds_write_b128 v41, v[16:19]
ds_write_b32 v1, v8 offset:{L_KS - L_KVP}
s_branch H_bursts
H_toX:
s_barrier
s_barrier
H_slow:
s_waitcnt vmcnt(0) lgkmcnt(0)
s_barrier
v_mov_b64 v[28:29], -1
v_mov_b64 v[30:31], -1
s_lshl_b32 s41, s{sH}, 10
s_add_u32 s41, s41, {L_L}
v_lshl_add_u32 v1, v0, 4, s41
ds_write_b128 v1, v[28:31]
s_lshl_b32 s41, s{sH}, 8
s_add_u32 s41, s41, {L_M}
v_lshl_add_u32 v1, v0, 2, s41
v_mov_b32 v8, 0xff800000
ds_write_b32 v1, v8
s_lshl_b32 s41, s{sL}, 4
s_add_u32 s41, s41, {L_SC}
v_mov_b32 v1, s41
v_mov_b32 v2, {L_SC}
v_mov_b64 v[8:9], 0
ds_write_b64 v1, v[8:9] offset:{SC_OCNT}
ds_write_b32 v2, v8 offset:{SC_BAD}
s_mov_b32 s{sSLOW}, 1
s_waitcnt lgkmcnt(0)
s_barrier
s_barrier
s_branch H_bursts
A_slow:
s_waitcnt vmcnt(0)
s_barrier
s_cmp_eq_u32 s3, 15
s_cbranch_scc1 A_sl1
v_lshrrev_b32 v8, 5, v0
v_lshlrev_b32 v8, 4, v8
v_add_u32 v8, {L_KS}, v8
ds_read_b128 v[32:35], v8
v_and_b32 v9, 15, v0
v_lshlrev_b32 v9, 2, v9
v_add_u32 v9, {L_VS}, v9
ds_read_b32 v36, v9
v_and_b32 v9, 27, v0
v_cmp_eq_u32 vcc, 16, v9
v_mov_b32 v10, 0x3f800000
v_cndmask_b32 v10, 0, v10, vcc
v_and_b32 v9, 16, v0
v_cmp_eq_u32 vcc, 0, v9
s_waitcnt lgkmcnt(0)
v_cndmask_b32 v36, v10, v36, vcc
s_bitcmp1_b32 s{sSEL}, 0
s_cselect_b32 s41, 0, 16
v_lshrrev_b32 v36, s41, v36
s_mov_b64 exec, s[6:7]
s_set_gpr_idx_on s4, gpr_idx(SRC0,DST)
s_nop 1
v_or_b32 v{VV}, v{VV}, v36
s_nop 1
s_set_gpr_idx_off
s_and_b32 s41, s{sSEL}, 31
s_lshl_b32 s42, 1, s41
s_mov_b32 exec_lo, s42
s_mov_b32 exec_hi, s42
s_bfe_u32 s41, s{sSEL}, 0x40005
s_lshl_b32 s41, s41, 2
s_set_gpr_idx_on s41, gpr_idx(DST)
s_nop 1
v_mov_b32 v{KK}, v32
v_mov_b32 v{KK+1}, v33
v_mov_b32 v{KK+2}, v34
v_mov_b32 v{KK+3}, v35
s_nop 1
s_set_gpr_idx_off
s_mov_b64 exec, -1
A_sl1:
v_and_b32 v14, 31, v0
v_lshlrev_b32 v14, 2, v14
v_add_u32 v14, {L_M}, v14""")
att_addr()
a(f"""s_barrier
s_mov_b32 s44, 0
A_sm:
s_mul_i32 s41, s44, {4*QSTR}
v_add_u32 v{Q}, s41, v{vQA}
ds_read_b128 {V(Q,4)}, v{Q}
v_mov_b32 v15, 0xff800000
s_waitcnt lgkmcnt(0)""")
for kt in range(NT):
    a(f"v_mfma_f32_32x32x16_bf16 {V(S0,16)}, {V(KK+4*kt,4)}, {V(Q,4)}, 0")
    for i in range(0, 16, 2): a(f"v_max3_f32 v15, v15, v{S0+i}, v{S0+i+1}")
a(f"""v_lshl_add_u32 v13, s44, 7, v14
ds_max_f32 v13, v15
s_add_u32 s44, s44, 1
s_cmp_lt_u32 s44, 8
s_cbranch_scc1 A_sm
s_waitcnt lgkmcnt(0)
s_barrier
s_mov_b32 s44, 0
A_se:
s_mul_i32 s41, s44, {4*QSTR}
v_add_u32 v{Q}, s41, v{vQA}
ds_read_b128 {V(Q,4)}, v{Q}
v_lshl_add_u32 v13, s44, 7, v14
ds_read_b32 v15, v13
s_waitcnt lgkmcnt(0)""")
for i in range(16): a(f"v_sub_f32 v{S1+i}, 0, v15")
for i in range(0, 16, 2): a(f"v_mov_b64 {V(ACC+i,2)}, 0")
for kt in range(NT):
    a(f"v_mfma_f32_32x32x16_bf16 {V(S0,16)}, {V(KK+4*kt,4)}, {V(Q,4)}, {V(S1,16)}")
    ex(S0, 0, 16)
    smf(2*kt, S0); smf(2*kt+1, S0+8)
a("s_mov_b32 s41, s44")
flush()
a(f"""s_add_u32 s44, s44, 1
s_cmp_lt_u32 s44, 8
s_cbranch_scc1 A_se
s_branch A_X
L_end:
s_cmp_lg_u32 s{sTOK}, 7
s_cbranch_scc1 L_end2
s_add_u32 s41, s{sE}, 2
v_mov_b32 v1, 0
v_mov_b32 v2, s41
s_mov_b64 exec, 1
global_store_dword v1, v2, {P(sWS)}
s_mov_b64 exec, -1
L_end2:
""")
if TSON:
    TS(15)
    a(f"""s_getreg_b32 s75, hwreg(HW_REG_HW_ID)
    s_sub_u32 s76, s95, s94
    s_mul_i32 s41, s{sB}, 12
    s_add_u32 s41, s41, s{sW}
    s_lshl_b32 s41, s41, 7
    s_add_u32 s41, s41, {WS_TS}
    v_mov_b32 v1, s41
    s_mov_b64 exec, 1""")
    for i in range(32):
        a(f"v_mov_b32 v2, s{60+i}\nglobal_store_dword v1, v2, {P(sWS)} offset:{4*i}")
if os.environ.get("DLY"):
    i_, j_ = [int(x) for x in os.environ["DLY"].split(",")]
    a(f"""s_cmp_lg_u32 s{sTOK}, {int(os.environ.get("DLYW", "4"))}
    s_cbranch_scc1 L_exit
    s_sub_u32 s41, s{60+j_}, s{60+i_}
    s_mul_i32 s41, s41, 4
    s_min_u32 s41, s41, 40000
    s_add_u32 s41, s41, s91
    L_dly:
    s_memrealtime s[92:93]
    s_waitcnt lgkmcnt(0)
    s_sub_u32 s42, s92, s41
    s_cmp_lt_i32 s42, 0
    s_cbranch_scc1 L_dly""")
if os.environ.get("DBGT"):
    a(f"""s_mov_b64 exec, 1
    v_mov_b32 v1, 0
    s_not_b32 s41, s60
    v_mov_b32 v2, s41
    global_atomic_umax v1, v2, {P(sDBG)}""")
    for k, slot in enumerate((31, 1, 2, 3, 5, 9, 7, 21, 25, 23, 24, 27, 29, 16, 0)):
        a(f"v_mov_b32 v2, s{60+slot}\nglobal_atomic_umax v1, v2, {P(sDBG)} offset:{4+4*k}")
a("L_exit:\ns_endpgm")

n = a.hazard_pass()
hdr = open(f"cdna_kernels/{NAME}.s.ref").read().split("; Override launch")[0]
out = hdr + f"""; @launch grid=(256,1,1) block=(512,1,1) lds=163840
.amdgcn_target "amdgcn-amd-amdhsa--gfx950"
.text
.globl {NAME}_kernel
.p2align 8
.type {NAME}_kernel,@function
{NAME}_kernel:
""" + a.text() + f""".section .rodata,"a"
.p2align 6
.amdhsa_kernel {NAME}_kernel
  .amdhsa_next_free_vgpr 256
  .amdhsa_next_free_sgpr 102
  .amdhsa_accum_offset 256
  .amdhsa_group_segment_fixed_size 0
  .amdhsa_kernarg_size 104
  .amdhsa_user_sgpr_count 2
  .amdhsa_user_sgpr_kernarg_segment_ptr 1
  .amdhsa_system_sgpr_workgroup_id_x 1
  .amdhsa_float_denorm_mode_32 3
.end_amdhsa_kernel
"""
open(sys.argv[1], "w").write(out)
print("nops inserted", n, "instructions", sum(1 for i in a.items if not isinstance(i, str) and i.text))
```

```python
import sys, os
from asmlib import Asm
NAME = "interleave_layers__grouped_kv_mqa__moe_arch_mod__prompt"
TSON = bool(int(os.environ.get("TS", "0")))
a = Asm()
region = ['']
def E(n, d): return int(os.environ.get(n, str(d)))

WS_FLAG = 0x1000; WS_KEY = 0x10000; WS_HY = 0x20000; WS_KV = 0x30000; WS_CAND = 0x80000; KVS = 640; KVL = 256*640
WS_OPF = 0x180000
WS_XN = 0x200000; WS_OP = 0x600000; OPL = 0xc00000; WS_TS = 0x3000000; WS_FS = 0x2000000; WS_WKV = 0x2800000
L_SLOT = 65536; L_XN = 114688; L_O = 131072; L_Q = 147456; L_L = 156160; L_SC = 160768
L_ROW = L_SLOT; L_PS = L_SLOT + 16384; L_KVS = L_Q
L_XS = 139776; L_X2S = L_XS + 1024; L_KVP = L_XS + 2048; L_VS = L_XS + 2560; L_KS = L_XS + 2816; L_M = L_XS + 3072
QSTR = 272
SC_KVCNT = 0; SC_KEYS = 16; SC_OCNT = 64; SC_FACC = 128; SC_FCNT = 384; SC_DACC = 400; SC_DCNT = 464; SC_GK = 480
SC_XSF = 512; SC_QFIX = 516; SC_BAD = 96; SC_XNC = 528; SC_QC = 536; SC_XN2 = 556; SC_B1 = 552; SC_KVD = 544; SC_YC = 548; SC_ZERO = 768; SC_WR = 1024
FORCE = int(os.environ.get('FORCE', '0'))
POLLMAX = 40000
B1P0 = bool(os.environ.get('B1P0'))
HS1 = int(os.environ.get('HS1', '14'))
KS1 = int(os.environ.get('KS1', '0'))
HLNP = int(os.environ.get('HLNP', '2'))
OUTF = ' sc1' if os.environ.get('OUTSC1') else ''
NPRE = int(os.environ.get('NPRE', '2'))
CODECH = int(os.environ.get('CODECH', '6'))
QSCALE = 0x3eb8aa3b

sX, sWQ, sWK, sWV, sWO, sWR, sWG, sWU, sWD, sOUT, sDBG, sWS = 8, 10, 12, 14, 16, 20, 22, 24, 26, 28, 30, 32
sE, sW, sL, sC, sTAG, sLO, sHI = 34, 35, 36, 37, 38, 39, 40
sCNT, sJ, sKEY, sTOK, sMASK, sH, sSEL, sOTAG, sF, sCAND, sMYK, sWT = 46, 47, 48, 49, 50, 51, 52, 53, 54, 55, 56, 57
sORD = 58
sKS = 0
sSLOW = 19
sSLOT = 96; sQM = 97; sX4 = 97
sOPB = 50
sB = 18
sKSL = [0, 1, 2, 3, 4, 5, 6, 7]
def P(n): return f"s[{n}:{n+1}]"
def V(n, k=1): return f"v{n}" if k == 1 else f"v[{n}:{n+k-1}]"

def TS(i):
    if not TSON: return
    a(f"""s_memrealtime s[92:93]
    s_waitcnt lgkmcnt(0)
    s_cmp_eq_u32 s{sL}, 0
    s_cselect_b32 s{60+i}, s92, s{60+i}""")
    if not os.environ.get("SO"): a(f"s_cselect_b32 s{76+i}, s{76+i}, s92")
SO = bool(os.environ.get("SO"))
def TSS(slot):
    if not (TSON and SO) or os.environ.get("P0"): return
    a(f"""s_memrealtime s[92:93]
    s_waitcnt lgkmcnt(0)
    s_cmp_eq_u32 s{60+slot}, 0
    s_cselect_b32 s{60+slot}, s92, s{60+slot}""")
def TSA(slot):
    if not TSON or (SO and slot >= 16): return
    a(f"""s_memrealtime s[92:93]
    s_waitcnt lgkmcnt(0)
    s_mov_b32 s{60+slot}, s92""")
def TSF(i):
    if not TSON or SO: return
    a(f"""s_memrealtime s[92:93]
    s_waitcnt lgkmcnt(0)
    s_cmp_eq_u32 s{sF}, 0
    s_cselect_b32 s{60+i}, s92, s{60+i}
    s_cselect_b32 s{76+i}, s{76+i}, s92""")
def TC(i):
    return
    a(f"""s_memtime s[92:93]
    s_waitcnt lgkmcnt(0)
    s_mov_b32 s{94+i}, s92""")

def poll_guard(lbl_retry, cond_branch, lbl_stem, mult=1, sleep=0):
    done = a.newlabel(lbl_stem)
    a(f"{cond_branch} {done}")
    if sleep: a(f"s_sleep {sleep}")
    a(f"""s_add_u32 s{sCNT}, s{sCNT}, 1
    s_cmp_lt_u32 s{sCNT}, {POLLMAX*mult}
    s_cbranch_scc1 {lbl_retry}
    {done}:""")
def lds_wait(vaddr, off, vt, target, sleep=1):
    lb = a.newlabel("W")
    a(f"s_mov_b32 s{sCNT}, 0\n{lb}:")
    a(f"""ds_read_b32 v{vt}, v{vaddr} offset:{off}
    s_waitcnt lgkmcnt(0)
    v_cmp_gt_u32 vcc, {target}, v{vt}""")
    poll_guard(lb, "s_cbranch_vccz", "Wd", 8, sleep)
def lds_inc(vaddr, off, vt):
    a(f"""v_mov_b32 v{vt}, 1
    s_mov_b64 exec, 1
    ds_add_u32 v{vaddr}, v{vt} offset:{off}
    s_mov_b64 exec, -1""")

def dpp_reduce(regs, op="v_add_f32"):
    for m in ("row_ror:8", "row_ror:4", "row_ror:2", "row_ror:1"):
        for r in regs: a(f"{op}_dpp v{r}, v{r}, v{r} {m} row_mask:0xf bank_mask:0xf")
    for r in regs: a(f"{op}_dpp v{r}, v{r}, v{r} row_bcast:15 row_mask:0xa bank_mask:0xf")
    for r in regs: a(f"{op}_dpp v{r}, v{r}, v{r} row_bcast:31 row_mask:0xc bank_mask:0xf")
def unpack(dst, src, n=4):
    for i in range(n):
        a(f"v_lshlrev_b32 v{dst+2*i}, 16, v{src+i}")
        a(f"v_and_b32 v{dst+2*i+1}, 0xffff0000, v{src+i}")
def pack(dst, src, n=4):
    for i in range(n): a(f"v_cvt_pk_bf16_f32 v{dst+i}, v{src+2*i}, v{src+2*i+1}")
def pkadd(d, x, y, n):
    for i in range(0, n, 2): a(f"v_pk_add_f32 {V(d+i,2)}, {V(x+i,2)}, {V(y+i,2)}")
def tr_pair(e, o, t):
    a(f"""v_perm_b32 v{t}, v{o}, v{e}, s{sLO}
    v_perm_b32 v{o}, v{o}, v{e}, s{sHI}
    v_mov_b32 v{e}, v{t}""")
def ln(X, D, T, out, extra=[]):
    a(f"v_readfirstlane_b32 s42, v{X}")
    for i in range(0, 8, 2): a(f"v_pk_add_f32 {V(D+i,2)}, {V(X+i,2)}, s[42:43] op_sel_hi:[1,0] neg_lo:[0,1] neg_hi:[0,1]")
    a(f"""v_pk_add_f32 {V(T,2)}, {V(D,2)}, {V(D+2,2)}
    v_pk_mul_f32 {V(T+2,2)}, {V(D,2)}, {V(D,2)}
    v_pk_add_f32 {V(T,2)}, {V(T,2)}, {V(D+4,2)}
    v_pk_fma_f32 {V(T+2,2)}, {V(D+2,2)}, {V(D+2,2)}, {V(T+2,2)}
    v_pk_add_f32 {V(T,2)}, {V(T,2)}, {V(D+6,2)}
    v_pk_fma_f32 {V(T+2,2)}, {V(D+4,2)}, {V(D+4,2)}, {V(T+2,2)}
    v_add_f32 v{T}, v{T}, v{T+1}
    v_pk_fma_f32 {V(T+2,2)}, {V(D+6,2)}, {V(D+6,2)}, {V(T+2,2)}
    v_mul_f32 v{T}, 0x3b000000, v{T}
    v_add_f32 v{T+1}, v{T+2}, v{T+3}""")
    dpp_reduce([T, T+1] + extra)
    a(f"""v_mul_f32 v{T+1}, 0x3b000000, v{T+1}
    v_fma_f32 v{T+1}, -v{T}, v{T}, v{T+1}
    v_add_f32 v{T}, s42, v{T}
    v_max_f32 v{T+1}, 0, v{T+1}
    v_cvt_pk_bf16_f32 v{T}, v{T}, v{T+1}
    v_and_b32 v{T+1}, 0xffff0000, v{T}
    v_lshlrev_b32 v{T}, 16, v{T}
    v_add_f32 v{T+1}, 0x3727c5ac, v{T+1}
    v_readlane_b32 s42, v{T}, 63
    v_cvt_pk_bf16_f32 v{T+1}, 0, v{T+1}
    v_sqrt_f32 v{T+1}, v{T+1}""")
    for i in range(0, 4, 2): a(f"v_pk_add_f32 {V(D+i,2)}, {V(X+i,2)}, s[42:43] op_sel_hi:[1,0] neg_lo:[0,1] neg_hi:[0,1]")
    a(f"""v_cvt_pk_bf16_f32 v{T+1}, 0, v{T+1}
    v_rcp_f32 v{T+1}, v{T+1}""")
    for i in range(4, 8, 2): a(f"v_pk_add_f32 {V(D+i,2)}, {V(X+i,2)}, s[42:43] op_sel_hi:[1,0] neg_lo:[0,1] neg_hi:[0,1]")
    for i in range(4): a(f"v_cvt_pk_bf16_f32 v{D+i}, 0, v{D+i}")
    a(f"v_readlane_b32 s42, v{T+1}, 63")
    for i in range(4, 8): a(f"v_cvt_pk_bf16_f32 v{D+i}, 0, v{D+i}")
    for i in range(0, 8, 2): a(f"v_pk_mul_f32 {V(D+i,2)}, {V(D+i,2)}, s[42:43] op_sel_hi:[1,0]")
    pack(out, D)

XR = 4
X_, D_, T_, XN, X1, WR = 8, 16, 24, 28, 32, 36
XO = 36
vQA, vOA, vIDX = 1, 2, 3
Q, ZZ, ACC, S0, S1, KK, VV = 8, 12, 16, 32, 48, 64, 128
WKV = 64
WQR, WO = 64, 128
FOR = 224
GU, WDn = 40, 56

def wkv_addr(vr):
    a(f"""s_lshl_b32 s41, s{sH}, 13
    s_add_u32 s41, s41, {WS_WKV + 4096}
    v_lshl_add_u32 v{vr}, v0, 4, s41""")
def ffn_loads(GU=40):
    a(f"""s_lshl_b32 s41, s{sJ}, 15
    s_lshl_b32 s42, s{sH}, 13
    s_add_u32 s41, s41, s42
    s_add_u32 s41, s41, {WS_FS + 4096}
    v_lshl_add_u32 v2, v0, 4, s41""")
    for i in range(6): a(f"global_load_dwordx4 {V(GU+4*i,4)}, v2, {P(sWS)} offset:{1024*i-4096} sc1")
def gloads(v):
    for g in range(3): a(f"v_lshl_add_u32 v{v+g}, v0, 4, s{3+g}")
    for i in range(6): a(f"global_load_dwordx4 {V(40+4*i,4)}, v{v+(i>>1)}, {P(sWS)} offset:{4096*(i&1)-2048} sc1")
def pos2tok(dst, src):
    a(f"""s_lshl_b32 s{dst}, s{sC}, 3
    s_add_u32 s{dst}, s{dst}, s{src}
    s_add_u32 s{dst}, s{dst}, 8
    s_and_b32 s{dst}, s{dst}, 31
    s_andn2_b32 s43, s{sTOK}, 31
    s_add_u32 s{dst}, s{dst}, s43""")

a(f"""
s_cmp_ge_u32 s2, 256
s_cbranch_scc1 L_exit
s_load_dwordx16 s[8:23], s[0:1], 0
s_load_dwordx8 s[24:31], s[0:1], 64
s_load_dwordx2 s[32:33], s[0:1], 96
v_lshrrev_b32 v1, 6, v0
v_and_b32 v0, 63, v0
s_mov_b32 s{sL}, 0
v_readfirstlane_b32 s{sW}, v1
s_and_b32 s{sC}, s2, 3
s_mov_b32 s{sLO}, 0x05040100
s_mov_b32 s{sHI}, 0x07060302
s_mov_b32 s{sF}, 0
s_and_b32 s41, s2, 7
s_lshl_b32 s41, s41, 3
s_bfe_u32 s42, s2, 0x30003
s_or_b32 s41, s41, s42
s_andn2_b32 s42, s2, 63
s_or_b32 s{sSLOT}, s41, s42
s_mov_b32 s{sSEL}, -1
s_and_b32 s{sJ}, s2, 7
s_lshl_b32 s{sJ}, s{sJ}, 5
s_lshr_b32 s41, s2, 3
s_add_u32 s{sJ}, s{sJ}, s41
s_and_b32 s{sH}, s{sW}, 3
s_lshl_b32 s{sTOK}, s2, 3
s_add_u32 s{sTOK}, s{sTOK}, s{sW}
s_lshl_b32 s41, s{sTOK}, 10
v_lshl_add_u32 v1, v0, 4, s41
v_mov_b64 v[12:13], -1
v_mov_b64 v[14:15], -1
v_and_b32 v49, 15, v0
v_lshrrev_b32 v48, 4, v0
v_lshlrev_b32 v49, 4, v49
v_lshl_add_u32 v49, v48, 13, v49
s_cmp_lg_u32 s{sW}, 7
s_cbranch_scc1 S_z
v_lshlrev_b32 v2, 4, v0
v_add_u32 v2, {L_L}, v2
ds_write_b128 v2, v[12:15]
ds_write_b128 v2, v[12:15] offset:1024
ds_write_b128 v2, v[12:15] offset:2048
ds_write_b128 v2, v[12:15] offset:3072
v_mov_b64 v[8:9], 0
v_mov_b64 v[10:11], 0
ds_write_b128 v2, v[8:11] offset:{L_SC - L_L}
S_z:
""")
if TSON:
    for i in range(32): a(f"s_mov_b32 s{60+i}, 0")
TS(0)
a(f"""
s_waitcnt lgkmcnt(0)
s_mov_b32 s{sB}, s2
s_mov_b32 s{sSLOW}, 0
global_load_dwordx4 {V(XR,4)}, v1, {P(sX)}
s_load_dword s{sE}, {P(sWS)}, 0
s_barrier
s_cmp_ge_u32 s{sW}, 4
s_cbranch_scc1 S_noA
s_setprio 2
v_add_u32 v16, 4096, v1
global_load_dwordx4 {V(FOR,4)}, v16, {P(sX)}""")
for g in range(2):
    a(f"s_add_u32 s44, s{sH}, {8*g}")
    pos2tok(41, 44)
    a(f"""s_lshl_b32 s41, s41, 10
    s_add_u32 s41, s41, 2048
    v_lshl_add_u32 v{16+g}, v0, 4, s41""")
a(f"""v_and_b32 v8, 7, v0
v_lshrrev_b32 v9, 4, v0
v_lshlrev_b32 v8, 2, v8
v_lshl_add_u32 v8, v9, 8, v8
s_lshl_b32 s41, s{sH}, 12
v_add_u32 v8, s41, v8
v_and_b32 v9, 8, v0
v_cmp_eq_u32 vcc, 0, v9
v_mov_b32 v10, s{sWV}
v_mov_b32 v11, s{sWK}
v_cndmask_b32 v10, v10, v11, vcc
v_mov_b32 v9, s{sWV+1}
v_mov_b32 v11, s{sWK+1}
v_cndmask_b32 v11, v9, v11, vcc
v_add_co_u32 v10, vcc, v10, v8
v_addc_co_u32 v11, vcc, 0, v11, vcc""")
for s in range(4):
    for j in range(8):
        a(f"global_load_dword v{WKV + 8*s + 4*(j&1) + (j>>1)}, v[10:11], off offset:{1024*s + 32*j}")
for i in range(4): a(f"global_load_dwordx4 {V(FOR+4+4*i,4)}, v{16+(i>>1)}, {P(sX)} offset:{4096*(i&1)-2048}")
TSS(16)
a(f"""s_waitcnt vmcnt(37)
s_branch R_P1
S_noA:
s_lshl_b32 s41, s{sH}, 17
s_lshl_b32 s42, s{sC}, 8
s_add_u32 s41, s41, s42
s_add_u32 s41, s41, 4096
v_add_u32 v48, s41, v49
s_lshr_b32 s43, s2, 3
s_cmp_lg_u32 s{sW}, 7
s_cbranch_scc1 S_no7
s_setprio 3
s_mul_i32 s41, s{sSLOT}, {KVS}
s_add_u32 s41, s41, {WS_KV}
v_lshl_add_u32 v1, v0, 4, s41
v_add_u32 v3, {KVL}, v1
v_mov_b32 v16, 0x3f803f80
v_cmp_eq_u32 vcc, 32, v0
v_cndmask_b32 v16, 0, v16, vcc
v_cmp_gt_u32 vcc, 32, v0
v_cndmask_b32 v16, v16, v12, vcc
v_mov_b32 v17, v16
v_mov_b64 v[18:19], v[16:17]
s_mov_b32 exec_hi, 0xff
global_store_dwordx4 v1, v[16:19], {P(sWS)} sc1
global_store_dwordx4 v3, v[16:19], {P(sWS)} sc1
s_mov_b32 exec_hi, -1
s_lshl_b32 s41, s2, 7
s_add_u32 s41, s41, {WS_KEY}
s_lshl_b32 s42, s{sJ}, 7
s_add_u32 s42, s42, {WS_HY - 128}
v_mov_b32 v1, s41
v_mov_b32 v3, s42
v_cmp_gt_u32 vcc, 8, v0
v_cndmask_b32 v1, v3, v1, vcc
v_lshl_add_u32 v1, v0, 4, v1
s_mov_b64 exec, 0xffff
global_store_dwordx4 v1, v[12:15], {P(sWS)} sc1
s_mov_b64 exec, -1
s_lshl_b32 s41, s2, 7
s_add_u32 s41, s41, {WS_FLAG}
v_mov_b32 v1, s41
v_mov_b32 v3, {L_SC}
s_waitcnt lgkmcnt(0)
s_mul_i32 s{sTAG}, s{sE}, 0x9e3779b1
s_add_u32 s{sTAG}, s{sTAG}, 0x7f4a7c15
v_mov_b32 v2, s{sTAG}
s_waitcnt vmcnt(0)
s_mov_b64 exec, 1
global_store_dword v1, v2, {P(sWS)} sc1
s_mov_b64 exec, -1""")
lds_inc(3, SC_B1, 8)
a(f"""s_setprio 0
s_branch H_stage
S_no7:
s_cmp_lg_u32 s{sW}, 4
s_cbranch_scc1 S_no4
v_lshrrev_b32 v1, 2, v0
v_and_b32 v3, 3, v0
v_lshlrev_b32 v3, 6, v3
v_lshl_add_u32 v1, v1, 10, v3
s_lshl_b32 s41, s43, 14
s_lshl_b32 s42, s{sC}, 8
s_add_u32 s41, s41, s42
v_add_u32 v1, s41, v1
global_load_dword v40, v1, {P(sWQ)}
s_lshl_b32 s41, s43, 12
s_lshl_b32 s42, s{sC}, 17
s_add_u32 s41, s41, s42
v_lshl_add_u32 v1, v0, 6, s41
global_load_dword v41, v1, {P(sWO)}
s_branch S_pf
S_no4:
s_cmp_lg_u32 s{sW}, 5
s_cbranch_scc1 S_no5
s_and_b32 s41, s43, 3
s_lshl_b32 s41, s41, 12
v_lshl_add_u32 v1, v0, 6, s41
global_load_dword v40, v1, {P(sWK)}
global_load_dword v41, v1, {P(sWV)}
s_branch S_pf
S_no5:
s_getpc_b64 s[42:43]
s_lshr_b32 s41, s2, 3
s_and_b32 s41, s41, 7
s_min_u32 s41, s41, {CODECH-1}
s_lshl_b32 s41, s41, 12
v_lshl_add_u32 v1, v0, 6, s41
global_load_dword v40, v1, s[42:43]
v_lshlrev_b32 v1, 4, v0
global_load_dwordx4 v[44:47], v1, {P(sWR)}
S_pf:
s_cmp_lg_u32 s{sW}, {5 if not os.environ.get("NOTLBW") else 55}
s_cbranch_scc1 H_stage
v_min_u32 v1, 43, v0
v_lshlrev_b32 v1, 20, v1
s_lshl_b32 s41, s2, 12
v_add_u32 v1, s41, v1
global_load_dword v42, v1, {P(sWS)} sc1
v_mov_b32 v1, s41
global_load_dword v43, v1, {P(sOUT)} sc1
global_load_dword v50, v1, {P(sWG)}
global_load_dword v51, v1, {P(sWU)}
global_load_dword v52, v1, {P(sWD)}
s_branch H_stage""")
def key_make():
    a(f"""v_cvt_pk_bf16_f32 v1, 0, v1
    v_ashrrev_i32 v2, 31, v1
    v_or_b32 v2, 0x80000000, v2
    v_xor_b32 v1, v1, v2
    v_and_b32 v1, 0xffff0000, v1
    s_sub_u32 s41, 2047, s{sTOK}
    v_or_b32 v1, s41, v1
    s_lshl_b32 s41, s{sF}, 3
    s_add_u32 s41, s41, {L_SC + SC_KEYS}
    v_mov_b32 v3, s41
    v_readlane_b32 s{sMYK}, v1, 63
    v_mov_b32 v2, 1
    s_mov_b32 exec_lo, 0
    s_mov_b32 exec_hi, 0x80000000
    ds_max_u32 v3, v1
    ds_add_rtn_u32 v2, v3, v2 offset:4
    ds_read_b32 v1, v3
    s_mov_b64 exec, -1""")
def key_pub():
    lb = a.newlabel("K_np")
    a(f"""s_lshl_b32 s41, s{sB}, 7
    s_lshl_b32 s42, s{sF}, 2
    s_add_u32 s41, s41, s42
    s_add_u32 s41, s41, {WS_KEY}
    v_mov_b32 v3, s41
    s_waitcnt lgkmcnt(0)
    v_readlane_b32 s42, v2, 63
    s_cmp_lg_u32 s42, 7
    s_cbranch_scc1 {lb}
    s_mov_b32 exec_lo, 0
    s_mov_b32 exec_hi, 0x80000000
    global_store_dword v3, v1, {P(sWS)} sc1
    s_mov_b64 exec, -1
    {lb}:
    v_mov_b32 v3, {L_SC}""")
a("R_P1:")
TS(1)
unpack(X_, XR)
ln(X_, D_, T_, XO)
a(f"""s_add_u32 s41, s{sW}, 8
v_xor_b32 v2, s41, v0
s_add_u32 s41, s{sW}, 24
s_lshl_b32 s41, s41, 10
s_add_u32 s41, s41, {L_XN}
v_lshl_add_u32 v2, v2, 4, s41
ds_write_b128 v2, {V(XO,4)}
s_cmp_eq_u32 s{sL}, 0
s_cbranch_scc1 S_l0
s_lshl_b32 s41, s{sTOK}, 10
s_add_u32 s41, s41, {WS_XN}
v_lshl_add_u32 v2, v0, 4, s41
global_store_dwordx4 v2, {V(XO,4)}, {P(sWS)} sc1
s_cmp_ge_u32 s{sW}, 4
s_cbranch_scc1 H_B1
s_setprio 3""")
a(f"""A_kvp:
v_and_b32 v8, 7, v0
v_add_u32 v8, 8, v8
v_lshrrev_b32 v9, 4, v0
v_xor_b32 v9, v9, v8
v_lshlrev_b32 v8, 10, v8
s_lshl_b32 s41, s{sH}, 8
s_add_u32 s41, s41, {L_XN + 16*1024}
v_add_u32 v8, s41, v8
v_xor_b32 v10, 4, v9
v_xor_b32 v11, 8, v9
v_xor_b32 v12, 12, v9
v_lshl_add_u32 v9, v9, 4, v8
v_lshl_add_u32 v10, v10, 4, v8
v_lshl_add_u32 v11, v11, 4, v8
v_lshl_add_u32 v12, v12, 4, v8
s_cmp_eq_u32 s{sL}, 0
s_cbranch_scc1 A_kv2
s_waitcnt lgkmcnt(0)
s_barrier
A_kv2:
ds_read_b128 v[40:43], v9
ds_read_b128 v[44:47], v10
ds_read_b128 v[48:51], v11
ds_read_b128 v[52:55], v12
s_lshl_b32 s41, s{sH}, 11
s_add_u32 s41, s41, {L_KVS}
v_lshl_add_u32 v8, v0, 4, s41
s_lshl_b32 s42, s{sL}, 2
v_add_u32 v9, s42, v3
v_mov_b32 v10, 1""")
for s in range(4):
    a(f"s_waitcnt lgkmcnt({3-s})")
    a(f"v_mfma_f32_16x16x32_bf16 v[56:59], {V(WKV+8*s,4)}, {V(40+4*s,4)}, {'0' if s==0 else 'v[56:59]'}")
    a(f"v_mfma_f32_16x16x32_bf16 v[60:63], {V(WKV+8*s+4,4)}, {V(40+4*s,4)}, {'0' if s==0 else 'v[60:63]'}")
a(f"""v_and_b32 v12, 1, v0
v_lshrrev_b32 v13, 3, v0
v_lshlrev_b32 v13, 4, v13
v_lshl_add_u32 v12, v12, 10, v13
v_bfe_u32 v13, v0, 1, 2
v_lshl_add_u32 v12, v13, 2, v12
v_add_u32 v12, {L_KVS}, v12
v_bfe_u32 v13, v0, 2, 1
ds_write_b128 v8, v[56:59]
ds_write_b128 v8, v[60:63] offset:1024
s_mov_b64 exec, 1
ds_add_rtn_u32 v11, v9, v10 offset:{SC_KVCNT}
s_mov_b64 exec, -1
v_lshrrev_b32 v14, 5, v0
v_lshlrev_b32 v14, 8, v14
v_lshl_add_u32 v13, v13, 10, v14
v_and_b32 v14, 3, v0
v_lshl_add_u32 v13, v14, 5, v13
v_bfe_u32 v14, v0, 3, 2
v_lshl_add_u32 v13, v14, 2, v13
v_add_u32 v13, {L_KVS + 512}, v13
v_add_u32 v14, 16, v13
s_waitcnt lgkmcnt(0)
v_readfirstlane_b32 s42, v11
s_cmp_lg_u32 s42, 3
s_cbranch_scc1 A_nokv""")
for w in range(4): a(f"ds_read2st64_b32 {V(40+2*w,2)}, v12 offset0:{8*w} offset1:{8*w+1}")
a(f"""ds_read2st64_b32 v[48:49], v13 offset0:0 offset1:8
ds_read2st64_b32 v[50:51], v13 offset0:16 offset1:24
ds_read2st64_b32 v[52:53], v14 offset0:0 offset1:8
ds_read2st64_b32 v[54:55], v14 offset0:16 offset1:24
s_mul_i32 s41, s{sL}, {KVL}
s_mul_i32 s42, s{sSLOT}, {KVS}
s_add_u32 s41, s41, s42
s_add_u32 s41, s41, {WS_KV}
v_lshl_add_u32 v8, v0, 2, s41
s_waitcnt lgkmcnt(4)
v_pk_add_f32 v[40:41], v[40:41], v[42:43]
v_pk_add_f32 v[44:45], v[44:45], v[46:47]
v_pk_add_f32 v[40:41], v[40:41], v[44:45]
v_cvt_pk_bf16_f32 v40, v40, v41
global_store_dword v8, v40, {P(sWS)} sc1
s_waitcnt lgkmcnt(0)
v_pk_add_f32 v[48:49], v[48:49], v[50:51]
v_pk_add_f32 v[52:53], v[52:53], v[54:55]
v_add_f32 v48, v48, v49
v_add_f32 v52, v52, v53
v_cvt_pk_bf16_f32 v48, v48, v52
global_store_dword v8, v48, {P(sWS)} offset:256 sc1
A_nokv:
s_setprio 0""")
if not os.environ.get("PP"): TS(2)
def stage(src, off, temps):
    for f in range(8):
        t = temps[f % len(temps)]
        for i in range(4):
            a(f"v_perm_b32 v{t+i}, v{src+4*(2*i+1)+(f>>1)}, v{src+4*(2*i)+(f>>1)}, s{sHI if f&1 else sLO}")
        a(f"ds_write_b128 v1, {V(t,4)} offset:{off+1024*f}")
a(f"""s_cmp_lg_u32 s{sL}, 0
s_cbranch_scc1 R_cand
s_lshl_b32 s41, s{sH}, 13
s_add_u32 s41, s41, {WS_FLAG}
v_lshl_add_u32 v10, v0, 7, s41
global_load_dword v13, v10, {P(sWS)} sc1
s_mov_b32 s45, 5
s_mov_b32 s3, s{sH}
s_branch S_fl
S_l0:""")
TSS(17)
a(f"""v_mov_b32 v3, {L_SC}
s_waitcnt lgkmcnt(0)
s_mul_i32 s{sTAG}, s{sE}, 0x9e3779b1
s_add_u32 s{sTAG}, s{sTAG}, 0x7f4a7c15
s_mov_b32 s44, 0
s_mov_b32 s45, 1
s_add_u32 s3, s{sH}, 28
s_waitcnt vmcnt(36)
S_fl:
s_lshl_b32 s41, s44, 2
s_set_gpr_idx_on s41, gpr_idx(SRC0)
s_nop 1
v_mov_b32 v28, v{FOR}
v_mov_b32 v29, v{FOR+1}
v_mov_b32 v30, v{FOR+2}
v_mov_b32 v31, v{FOR+3}
s_nop 1
s_set_gpr_idx_off""")
unpack(40, 28)
ln(40, D_, T_, XO)
a(f"""s_and_b32 s42, s3, 15
v_xor_b32 v28, s42, v0
s_lshl_b32 s41, s3, 10
s_add_u32 s41, s41, {L_XN}
v_lshl_add_u32 v28, v28, 4, s41
ds_write_b128 v28, {V(XO,4)}
s_add_u32 s3, s3, 4
s_add_u32 s44, s44, 1
s_cmp_lt_u32 s44, s45
s_cbranch_scc1 S_fl
s_cmp_eq_u32 s45, 5
s_cbranch_scc1 A_P2
s_cmp_eq_u32 s45, 2
s_cbranch_scc1 H_ret""")
lds_inc(3, SC_B1, 8)
TSS(18)
a("s_waitcnt vmcnt(0)")
TSS(19)
for s in range(4):
    for i in range(4): tr_pair(WKV+8*s+i, WKV+8*s+4+i, 8)
TSS(20)
lds_wait(3, SC_B1, 8, 5, 0)
TSS(21)
a(f"""s_setprio 3
s_branch A_kvp
H_B1:
s_waitcnt lgkmcnt(0)
s_barrier
s_setprio 2""")
a(f"""R_cand:
s_lshl_b32 s41, s{sF}, 3
v_add_u32 v8, s41, v3
ds_read_b32 v8, v8 offset:{SC_KEYS}
s_lshl_b32 s41, s{sF}, 19
s_lshl_b32 s42, s{sB}, 11
s_add_u32 s41, s41, s42
s_add_u32 s41, s41, {WS_CAND}
v_lshl_add_u32 v2, v0, 4, s41
s_waitcnt lgkmcnt(0)
v_readfirstlane_b32 s41, v8
s_mov_b32 s{sCAND}, 0
s_cmp_lg_u32 s41, s{sMYK}
s_cbranch_scc1 R_nocand
s_mov_b32 s{sCAND}, 1
global_store_dwordx4 v2, {V(XN,4)}, {P(sWS)} sc1
global_store_dwordx4 v2, {V(X1,4)}, {P(sWS)} offset:1024 sc1
R_nocand:""")
TSF(8)
a(f"""s_cmp_lg_u32 s{sF}, 0
s_cbranch_scc1 R_tail
s_cmp_ge_u32 s{sW}, 4
s_cbranch_scc1 H_gather""")
def key_reduce():
    dpp_reduce([8], "v_max_u32")
    a(f"""s_lshl_b32 s41, s{sF}, 4
    s_lshl_b32 s42, s{sH}, 2
    s_add_u32 s41, s41, s42
    v_add_u32 v9, s41, v3
    v_add_u32 v8, 1, v8
    s_mov_b32 exec_lo, 0
    s_mov_b32 exec_hi, 0x80000000
    ds_write_b32 v9, v8 offset:{SC_GK}
    s_mov_b64 exec, -1""")
def key_poll():
    l1 = a.newlabel("K_p")
    a(f"""s_lshl_b32 s42, s{sF}, 2
    s_lshl_b32 s41, s{sH}, 13
    s_add_u32 s42, s42, s41
    s_add_u32 s42, s42, {WS_KEY}
    v_lshl_add_u32 v9, v0, 7, s42
    s_mov_b32 s{sCNT}, 0
    s_mov_b32 s44, 0
    s_mov_b64 vcc, -1
    {l1}:
    s_mov_b64 exec, {"vcc" if E("MSK", 1) else "-1"}
    global_load_dword v8, v9, {P(sWS)} sc1
    s_mov_b64 exec, -1
    s_waitcnt vmcnt(0)
    v_cmp_eq_u32 vcc, -1, v8""")
    if E("SPEC", 1):
        a(f"""s_cbranch_vccz K_sd
        v_add_u32 v12, 1, v8""")
        dpp_reduce([12], "v_max_u32")
        a(f"""v_readlane_b32 s41, v12, 63
        s_cmp_eq_u32 s41, s44
        s_cbranch_scc1 K_sn
        s_mov_b32 s44, s41
        s_sub_u32 s41, s41, 1
        s_andn2_b32 s41, 0x7f8, s41
        s_lshl_b32 s41, s41, 8
        s_add_u32 s41, s41, {WS_CAND + 0x80000}
        v_lshl_add_u32 v10, v0, 5, s41
        global_load_dword v11, v10, {P(sWS)} sc1
        K_sn:
        s_add_u32 s{sCNT}, s{sCNT}, 1
        s_cmp_lt_u32 s{sCNT}, {POLLMAX}
        s_cbranch_scc1 {l1}
        K_sd:""")
    else:
        poll_guard(l1, "s_cbranch_vccz", "K_pd", 1, E("KR1", 2))
    key_reduce()
def key_get(sleep):
    l2 = a.newlabel("K_g")
    a(f"""s_lshl_b32 s41, s{sF}, 4
    v_add_u32 v10, s41, v3
    s_mov_b32 s{sCNT}, 0
    {l2}:""")
    a(f"""ds_read_b128 v[16:19], v10 offset:{SC_GK}
    s_waitcnt lgkmcnt(0)
    v_min3_u32 v8, v16, v17, v18
    v_min_u32 v8, v8, v19
    v_cmp_eq_u32 vcc, 0, v8""")
    poll_guard(l2, "s_cbranch_vccz", "K_gd", 8, sleep)
    a(f"""v_max3_u32 v8, v16, v17, v18
    v_max_u32 v8, v8, v19
    v_readfirstlane_b32 s{sKEY}, v8
    s_sub_u32 s{sKEY}, s{sKEY}, 1
    s_and_b32 s41, s{sKEY}, 0x7ff
    s_sub_u32 s{sSEL}, 2047, s41""")
a("A_P2:")
TSS(22)
a(f"""s_lshl_b32 s42, s{sL}, 2
v_add_u32 v9, s42, v3""")
lds_inc(9, SC_XNC, 8)
a(f"""s_mul_i32 s41, s{sL}, {KVL}
s_mul_i32 s42, s{sH}, {64*KVS}
s_add_u32 s41, s41, s42
s_add_u32 s41, s41, {WS_KV + 4*KVS}
v_bfe_u32 v14, v0, 3, 2
v_mul_u32_u24 v14, {KVS}, v14
v_and_b32 v15, 7, v0
v_lshl_add_u32 v14, v15, 5, v14
v_lshrrev_b32 v11, 5, v0
v_lshl_add_u32 v14, v11, 4, v14
v_add_u32 v14, s41, v14
v_and_b32 v15, 31, v0
v_min_u32 v12, 17, v15
v_cmp_eq_u32 vcc, 20, v15
v_cndmask_b32 v15, v12, 16, vcc
v_mul_u32_u24 v11, {KVS}, v11
v_lshl_add_u32 v15, v15, 4, v11
s_add_u32 s41, s41, 256
v_add_u32 v15, s41, v15
s_mov_b32 s{sORD}, 0x65432108
s_mov_b32 s{sORD+1}, 0x7
s_mov_b32 s{sWT}, 15
s_lshl_b32 s41, s{sH}, 13
s_cmp_eq_u32 s{sL}, 0
s_cselect_b32 s42, {WS_FLAG}, 0
s_cselect_b32 s43, 0, {WS_KEY}
s_add_u32 s41, s41, s42
s_add_u32 s41, s41, s43
v_lshl_add_u32 v10, v0, 7, s41
""")
def kv_base(p):
    a(f"""s_xor_b32 s41, s{sX4}, {p}
    s_mul_i32 s41, s41, {8*KVS}
    s_add_u32 s0, s{sWS}, s41
    s_addc_u32 s1, s{sWS+1}, 0""")
def kv_one(p, i):
    if i % 3 == 0:
        k = i // 3
        a(f"global_load_dwordx4 {V(KK+8*p+4*k,4)}, v14, s[0:1] offset:{4*KVS*k-4*KVS} sc1")
    else:
        j = i - 1 - i // 3
        a(f"global_load_dwordx4 {V(VV+16*p+4*j,4)}, v15, s[0:1] offset:{2*KVS*j-4*KVS} sc1")
def kv_pair(p):
    kv_base(p)
    for i in range(6): kv_one(p, i)
def kv_check(p, younger):
    fr = [KK+8*p, KK+8*p+4] + [VV+16*p+4*i for i in range(4)]
    if os.environ.get("P0"):
        a(f"""s_cmp_lg_u32 s{sL}, {os.environ["P0"]}
        s_cbranch_scc1 C_d{p}
        s_memtime s[92:93]
        s_waitcnt lgkmcnt(0)
        s_mov_b32 s{76+2*p}, s92
        s_waitcnt vmcnt({younger})
        s_memtime s[92:93]
        s_waitcnt lgkmcnt(0)
        s_mov_b32 s{77+2*p}, s92
        C_d{p}:""")
    a(f"""s_waitcnt vmcnt({younger})
    C_r{p}:
    v_max3_u32 v12, v{fr[0]}, v{fr[1]}, v{fr[2]}
    v_max3_u32 v13, v{fr[3]}, v{fr[4]}, v{fr[5]}
    v_max_u32 v12, v12, v13
    v_cmp_eq_u32 vcc, -1, v12
    s_cbranch_vccnz C_x{p}
    C_o{p}:
    s_cmp_eq_u32 s3, {p}
    s_cbranch_scc1 C_m{p}
    C_b{p}:""")
def kv_tail(p):
    a(f"""C_x{p}:
    s_add_u32 s{sCNT}, s{sCNT}, 1
    s_cmp_ge_u32 s{sCNT}, {POLLMAX}
    s_cbranch_scc1 C_o{p}""")
    a("s_mov_b64 s[98:99], s[0:1]")
    kv_pair(p)
    a(f"""s_mov_b64 s[0:1], s[98:99]
    s_waitcnt vmcnt(0)
    s_branch C_r{p}
    C_m{p}:
    v_mov_b32 v12, s5
    s_mov_b64 exec, s[6:7]
    s_set_gpr_idx_on s4, gpr_idx(SRC0,DST)
    s_nop 1
    v_and_b32 v{VV+16*p}, v{VV+16*p}, v12
    s_nop 1
    s_set_gpr_idx_off
    s_mov_b64 exec, -1
    s_nop 1
    s_branch C_b{p}""")
DEP = int(os.environ.get('DEP', '3'))
a(f"""s_and_b32 s{sX4}, s{sB}, {4 if E("ROT", 3) == 3 else 0}
s_lshr_b32 s41, s{sB}, 3
s_and_b32 s41, s41, {E("ROT", 3)}
s_or_b32 s{sX4}, s{sX4}, s41
{"s_andn2_b32 s%d, 7, s%d" % (sX4, sB) if E("OWNL", 0) else "s_nop 0"}
s_mov_b32 s{sCNT}, 0
s_cmp_lg_u32 s{sL}, 0
s_cbranch_scc1 A_nfl
s_waitcnt vmcnt(0)
v_cmp_ne_u32 vcc, s{sTAG}, v13
s_cbranch_vccz A_nf2
A_flg:
global_load_dword v8, v10, {P(sWS)} sc1
s_waitcnt vmcnt(0)
v_cmp_ne_u32 vcc, s{sTAG}, v8""")
poll_guard("A_flg", "s_cbranch_vccz", "A_flgd", 1, 2)
a("s_branch A_nf2\nA_nfl:")
a(f"""s_mov_b32 s{sCNT}, 0
A_xw:
ds_read_b32 v12, v9 offset:{SC_XNC}
s_waitcnt lgkmcnt(0)
v_cmp_gt_u32 vcc, 8, v12
s_cbranch_vccz A_xwd
s_sleep 1
s_add_u32 s{sCNT}, s{sCNT}, 1
s_cmp_lt_u32 s{sCNT}, {E("XT", 100000)}
s_cbranch_scc1 A_xw
A_xwd:""")
a(f"global_load_dword v8, v10, {P(sWS)} sc1\nA_nf2:")
TS(3)
for p in range(DEP): kv_pair(p)
TSS(23)
a(f"""s_mov_b32 s3, 15
s_cmp_eq_u32 s{sL}, 0
s_cbranch_scc1 A_go
s_mov_b32 s{sCNT}, 0
s_waitcnt vmcnt({6*DEP})
s_branch A_kc
A_kp:
s_mov_b64 exec, {"vcc" if E("MSK", 1) else "-1"}
global_load_dword v8, v10, {P(sWS)} sc1
s_mov_b64 exec, -1
s_waitcnt vmcnt(0)
A_kc:
v_cmp_eq_u32 vcc, -1, v8""")
poll_guard("A_kp", "s_cbranch_vccz", "A_kpd", 1, E("KR0", 1))
key_reduce()
key_get(0)
a(f"""s_bfe_u32 s4, s{sSEL}, 0x20007
s_lshl_b32 s4, s4, 2
s_bfe_u32 s42, s{sSEL}, 0x20001
s_add_u32 s4, s4, s42
s_bitcmp1_b32 s{sSEL}, 0
s_mov_b32 s5, 0xffff0000
s_cselect_b32 s5, 0xffff, s5
s_bitcmp1_b32 s{sSEL}, 6
s_cselect_b32 s6, 0, -1
s_cselect_b32 s7, -1, 0
s_lshr_b32 s41, s{sSEL}, 9
s_bfe_u32 s42, s{sSEL}, 0x30003
s_xor_b32 s42, s42, s{sX4}
s_cmp_eq_u32 s41, s{sH}
s_cselect_b32 s3, s42, 15
s_xor_b32 s41, s{sSEL}, s{sTOK}
s_lshr_b32 s41, s41, 5
s_cbranch_scc1 A_go
s_lshl_b32 s41, s{sC}, 3
s_sub_u32 s41, s{sSEL}, s41
s_sub_u32 s41, s41, 8
s_bfe_u32 s{sWT}, s41, 0x30002
s_or_b32 s41, s{sWT}, 1
s_max_u32 s41, s41, 4
s_xor_b32 s42, s41, s{sWT}
s_mov_b32 s43, 0
s_lshl_b32 s41, s41, 2
s_add_u32 s41, s41, 4
s_lshl_b64 s[44:45], s[42:43], s41
s_xor_b64 {P(sORD)}, {P(sORD)}, s[44:45]
s_lshl_b32 s41, s{sWT}, 2
s_add_u32 s41, s41, 4
s_lshl_b64 s[44:45], s[42:43], s41
s_xor_b64 {P(sORD)}, {P(sORD)}, s[44:45]
A_go:
s_setprio 0
s_lshl_b32 s42, s{sL}, 2
v_add_u32 v9, s42, v3""")
def att_addr():
    a(f"""v_bfe_u32 v1, v0, 3, 2
    v_mul_u32_u24 v1, {QSTR}, v1
    v_and_b32 v2, 7, v0
    v_lshl_add_u32 v1, v2, 5, v1
    v_lshrrev_b32 v2, 5, v0
    v_lshl_add_u32 v1, v2, 4, v1
    v_add_u32 v{vQA}, {L_Q}, v1
    s_lshl_b32 s41, s{sH}, 11
    s_add_u32 s41, s41, {L_SLOT}
    v_lshl_add_u32 v{vOA}, v0, 4, s41
    v_mov_b32 v{vIDX}, 0xdddddddd
    v_and_b32 v0, 31, v0
    s_lshl_b32 s41, s{sH}, 7
    s_add_u32 s41, s41, {L_L}
    v_lshl_add_u32 v0, v0, 2, s41""")
att_addr()
a(f"s_mov_b32 s{sCNT}, 0")
kv_check(0, 6*(DEP-1))
TS(4)
a(f"""s_bfe_u32 s41, s{sORD}, 0x40004
s_and_b32 s43, s41, 4
s_add_u32 s43, s43, 4""")
lds_wait(9, SC_QC, 10, "s43", 0)
a(f"""s_lshl_b32 s2, s{sL}, 2
s_add_u32 s2, s2, {L_SC + SC_QC}
s_mul_i32 s41, s41, {4*QSTR}
v_add_u32 v{Q}, s41, v{vQA}
ds_read_b128 {V(Q,4)}, v{Q}
s_mov_b32 s{sCNT}, 0""")
for i in range(0, 10, 2): a(f"v_mov_b64 {V(ACC+i,2)}, 0")
TS(5)
TC(0)
def smf(vfrag, pb): a(f"v_smfmac_f32_32x32x32_bf16 {V(ACC,16)}, {V(VV+4*vfrag,4)}, {V(pb,8)}, v{vIDX}")
def ex(base, lo, hi):
    for i in range(lo, hi): a(f"v_exp_f32 v{base+i}, v{base+i}")
def flush():
    a(f"""v_lshl_add_u32 v{ACC+10}, s41, 13, v{vOA}
    v_lshl_add_u32 v{ACC+11}, s41, 9, v0
    ds_write_b128 v{ACC+10}, {V(ACC,4)}
    ds_write_b128 v{ACC+10}, {V(ACC+4,4)} offset:1024
    ds_write_b32 v{ACC+11}, v{ACC+8}""")
a(f"""s_waitcnt lgkmcnt(0)
v_mfma_f32_32x32x16_bf16 {V(S0,16)}, {V(KK,4)}, {V(Q,4)}, 0""")
NT = 16
def att_pass(first):
    for kt in range(NT):
        cur, oth = (S0, S1) if kt % 2 == 0 else (S1, S0)
        lp = kt//2 + DEP
        ld = first and lp < 8
        def L(i):
            if ld: kv_one(lp, 3*(kt & 1) + i)
        if ld and kt % 2 == 0: kv_base(lp)
        ex(cur, 0, 2)
        if not (first and kt == 0): smf((2*kt - 1) % (2*NT), oth + 8)
        L(0)
        ex(cur, 2, 5)
        if kt == NT-1: a("s_waitcnt lgkmcnt(0)")
        if first and kt % 2 == 1 and kt < NT-1:
            p = (kt+1)//2
            kv_check(p, (6*(lp - p) - 2) if ld else 6*(7 - p))
        a(f"v_mfma_f32_32x32x16_bf16 {V(oth,16)}, {V(KK+4*((kt+1)%NT),4)}, {V(Q,4)}, 0")
        if first and kt == NT-3:
            a(f"""v_mov_b32 v13, s2
            ds_read_b32 v13, v13""")
        if first and kt == NT-2:
            a(f"""s_waitcnt lgkmcnt(0)
            v_cmp_gt_u32 vcc, 8, v13
            s_cbranch_vccnz A_q8
            A_q8b:""")
        if kt == NT-2:
            a(f"s_bfe_u32 s41, s{sORD}, 0x40008")
            if not first:
                a(f"""s_cmp_eq_u32 s41, s{sWT}
                s_cbranch_scc1 A_qwait
                A_qback:""")
            a(f"""s_mul_i32 s41, s41, {4*QSTR}
            v_add_u32 v{Q}, s41, v{vQA}
            ds_read_b128 {V(Q,4)}, v{Q}""")
        if kt == 0 and not first:
            a(f"s_and_b32 s41, s{sORD}, 15")
            ex(cur, 5, 12)
            flush()
            a(f"v_mfma_f32_32x32x8_f16 {V(ACC,16)}, {V(ZZ,2)}, {V(ZZ,2)}, 0")
            ex(cur, 12, 15)
            smf(0, cur)
            ex(cur, 15, 16)
        else:
            ex(cur, 5, 8)
            L(1)
            ex(cur, 8, 10)
            smf(2*kt, cur)
            ex(cur, 10, 13)
            L(2)
            ex(cur, 13, 16)
        if ld and lp == 7 and kt % 2 == 1:
            a(f"v_mov_b32 v12, {L_SC}")
            lds_inc(12, SC_KVD, 13)
att_pass(True)
a(f"""v_mov_b64 {V(ZZ,2)}, 0
s_lshr_b64 {P(sORD)}, {P(sORD)}, 4""")
if not os.environ.get('PP'): TS(12)
if TSON:
    a(f"""s_cmp_eq_u32 s{sL}, 0
    s_cselect_b32 s73, s{sCNT}, s73
    s_nop 0""")
if os.environ.get("AL"):
    a(".p2align 6")
    for _ in range(int(os.environ["AL"])): a("s_nop 0")
a("A_pass:")
att_pass(False)
if os.environ.get("PP"):
    a(f"""s_cmp_lg_u32 s{sL}, {os.environ.get("PP")}
    s_cbranch_scc1 A_ppx""")
    for d, q in ((86, 87), (87, 88), (88, 74), (74, 70), (70, 71), (71, 62), (62, 96)): a(f"s_mov_b32 s{d}, s{q}")
    a("A_ppx:")
a(f"""s_lshr_b64 {P(sORD)}, {P(sORD)}, 4
s_cmp_gt_u32 s{sORD}, 15
s_cbranch_scc1 A_pass""")
smf(2*NT-1, S1 + 8)
a(f"s_and_b32 s41, s{sORD}, 15")
flush()
TC(1)
TS(9)
a(f"""A_X:
v_mbcnt_lo_u32_b32 v0, -1, 0
v_mbcnt_hi_u32_b32 v0, -1, v0
s_waitcnt lgkmcnt(0)
s_barrier""")
TS(6)
a(f"""v_mov_b32 v9, {L_SC}
s_barrier
ds_read_b32 v9, v9 offset:{SC_BAD}""")
wkv_addr(1)
a(f"""s_waitcnt lgkmcnt(0)
v_cmp_ne_u32 vcc, 0, v9
s_cbranch_vccnz A_slow
s_cmp_lg_u32 s{sL}, 0
s_cbranch_scc1 R_P4
v_mov_b64 v[28:29], -1
v_mov_b64 v[30:31], -1
s_lshl_b32 s41, s{sH}, 10
s_add_u32 s41, s41, {L_L}
v_lshl_add_u32 v2, v0, 4, s41
ds_write_b128 v2, v[28:31]""")
for i in range(8): a(f"global_load_dwordx4 {V(WKV+4*i,4)}, v1, {P(sWS)} offset:{1024*i-4096} sc1")
a(f"""R_P4:
v_lshrrev_b32 v3, 4, v0
v_and_b32 v2, 15, v0
v_lshlrev_b32 v2, 4, v2
v_lshl_add_u32 v3, v3, 9, v2
s_lshl_b32 s41, s{sW}, 11
s_add_u32 s41, s41, {L_ROW}
v_add_u32 v3, s41, v3
s_waitcnt lgkmcnt(0)
s_barrier
ds_read_b128 v[8:11], v3
ds_read_b128 v[16:19], v3 offset:16384
ds_read_b128 v[12:15], v3 offset:256
ds_read_b128 v[20:23], v3 offset:16640
s_mov_b32 s{sF}, s{sL}
s_mov_b32 s{sSLOW}, 0
v_lshlrev_b32 v2, 4, v0
v_add_u32 v2, {L_X2S}, v2
ds_read_b128 {V(WR,4)}, v2 offset:{L_SC + SC_WR - L_X2S}
s_cmp_lg_u32 s{sSEL}, s{sTOK}
s_cbranch_scc1 R_nx
ds_read_b128 {V(XR,4)}, v2
s_waitcnt lgkmcnt(0)
R_nx:""")
unpack(24, XR)
a("s_waitcnt lgkmcnt(0)")
TS(7)
pkadd(8, 8, 16, 8)
for i in range(8): a(f"v_cvt_pk_bf16_f32 v{8+i}, 0, v{8+i}")
pkadd(8, 8, 24, 8)
pack(X1, 8)
unpack(X_, X1)
ln(X_, D_, T_, XN)
a(f"""v_dot2_f32_bf16 v1, v{XN}, v{WR}, 0
v_dot2_f32_bf16 v1, v{XN+1}, v{WR+1}, v1
v_dot2_f32_bf16 v1, v{XN+2}, v{WR+2}, v1
v_dot2_f32_bf16 v1, v{XN+3}, v{WR+3}, v1""")
dpp_reduce([1])
key_make()
a(f"""s_cmp_lg_u32 s{sL}, 0
s_cbranch_scc1 R_lastl""")
unpack(D_, XN)
pkadd(D_, D_, X_, 8)
pack(XR, D_)
a(f"""s_mov_b32 s{sL}, 1
s_waitcnt vmcnt(0)""")
key_pub()
a(f"""s_branch R_P1
R_lastl:""")
key_pub()
a(f"""s_barrier
s_branch R_cand
R_tail:""")
unpack(D_, XN)
unpack(X_, X1)
pkadd(D_, D_, X_, 8)
pack(XR, D_)
a(f"""s_lshl_b32 s41, s{sTOK}, 10
v_lshl_add_u32 v1, v0, 4, s41
s_cmp_lg_u32 s{sCAND}, 0
s_cbranch_scc1 R_noout
global_store_dwordx4 v1, {V(XR,4)}, {P(sOUT)}{OUTF}
R_noout:
s_cmp_ge_u32 s{sW}, 4
s_cbranch_scc1 H_FF2""")
key_poll()
a(f"""s_cmp_eq_u32 s{sCAND}, 0
s_cbranch_scc1 L_end""")
key_get(1)
a(f"""R_last:
s_cmp_eq_u32 s{sCAND}, 0
s_cbranch_scc1 L_end
s_cmp_eq_u32 s{sSEL}, s{sTOK}
s_cbranch_scc1 L_end
s_lshl_b32 s41, s{sTOK}, 10
v_lshl_add_u32 v1, v0, 4, s41
global_store_dwordx4 v1, {V(XR,4)}, {P(sOUT)}{OUTF}
s_branch L_end
A_qwait:
v_mov_b32 v14, {L_SC}""")
lds_wait(14, SC_QFIX, 15, 4, 1)
a(f"""s_mov_b32 s{sWT}, 15
s_branch A_qback""")
for p in range(8): kv_tail(p)
a("A_q8:\nv_mov_b32 v12, s2")
lds_wait(12, 0, 13, 8, 1)
a("s_branch A_q8b")

def kload(s_):
    for j in range(8): a(f"global_load_dwordx4 {V(128+32*s_+4*j,4)}, v48, {P(sWQ)} offset:{1024*j-4096}")
    a("v_add_u32 v48, 0x8000, v48")
a("H_stage:\ns_setprio 1")
UP = int(os.environ.get("UP", "4"))
kload(0); kload(1)
if UP == 4:
    a(f"s_cmp_eq_u32 s{sH}, 3\ns_cbranch_scc1 H_u4")
    kload(2); kload(3)
    a("s_waitcnt vmcnt(24)\ns_branch H_u5\nH_u4:\ns_waitcnt vmcnt(8)\nH_u5:")
a(f"""s_lshl_b32 s41, s{sH}, 2
s_lshl_b32 s42, s{sC}, 8
s_add_u32 s41, s41, s42
s_add_u32 s41, s41, {448*1024+4096}
v_add_u32 v2, s41, v49
v_add_u32 v3, 0x8000, v2
s_lshl_b32 s41, s{sH}, 15
v_lshl_add_u32 v1, v0, 4, s41
s_waitcnt lgkmcnt(0)
s_mul_i32 s{sTAG}, s{sE}, 0x9e3779b1
s_add_u32 s{sTAG}, s{sTAG}, 0x7f4a7c15""")
TSS(18)
T8 = [8, 12, 16, 20, 24, 28, 32, 36]
if UP == 2: a("s_waitcnt vmcnt(8)")
TSS(19)
stage(128, 0, T8)
TSS(20)
for j in range(8): a(f"global_load_dword v{WQR+48+4*(j&1)+(j>>1)}, v2, {P(sWQ)} offset:{1024*j-4096}")
a(f"""s_cmp_eq_u32 s{sH}, 3
s_cbranch_scc1 H_st1""")
if UP == 2: kload(2)
a(f"s_waitcnt vmcnt({16 if UP == 2 else 24})\ns_branch H_st2\nH_st1:\ns_waitcnt vmcnt(8)\nH_st2:")
stage(160, 8192, T8)
TSS(21)
for j in range(8): a(f"global_load_dword v{WQR+56+4*(j&1)+(j>>1)}, v3, {P(sWQ)} offset:{1024*j-4096}")
a(f"""s_cmp_eq_u32 s{sH}, 3
s_cbranch_scc1 H_st3""")
if UP == 2: kload(3)
a(f"s_waitcnt vmcnt({16 if UP == 2 else 24})")
stage(192, 16384, T8)
TSS(22)
a(f"s_waitcnt vmcnt({0 if UP == 2 else 16})")
stage(224, 24576, T8)
a(f"""H_st3:
s_cmp_lg_u32 s{sW}, 6
s_cbranch_scc1 H_st0
v_lshlrev_b32 v1, 4, v0
v_add_u32 v1, {L_SC + SC_WR}, v1
ds_write_b128 v1, v[44:47]
H_st0:
s_waitcnt vmcnt(0)
s_add_u32 s44, s{sH}, 16""")
pos2tok(41, 44)
a(f"""s_lshl_b32 s41, s41, 10
s_add_u32 s41, s41, 2048
v_lshl_add_u32 v1, v0, 4, s41
global_load_dwordx4 {V(FOR,4)}, v1, {P(sX)} offset:-2048
global_load_dwordx4 {V(FOR+4,4)}, v1, {P(sX)} offset:2048""")
for s in range(2):
    for i in range(4): tr_pair(WQR+48+8*s+i, WQR+48+8*s+4+i, 40)
TSA(4)
a("s_setprio 2\ns_branch H_P2")
a(f"""H_gather:
v_xor_b32 v12, s{sH}, v0
v_xor_b32 v13, 4, v12
v_xor_b32 v14, 8, v12
v_xor_b32 v15, 12, v12
s_lshl_b32 s41, s{sH}, 10
s_add_u32 s41, s41, {L_XN}
v_lshl_add_u32 v12, v12, 4, s41
v_lshl_add_u32 v13, v13, 4, s41
v_lshl_add_u32 v14, v14, 4, s41
v_lshl_add_u32 v15, v15, 4, s41
s_mov_b32 s{sCNT}, 0
s_sleep {E('GS', 0)}
H_xg:""")
gloads(8)
a(f"""s_waitcnt vmcnt(0)
v_max3_u32 v16, v40, v44, v48
v_max3_u32 v17, v52, v56, v60
v_max_u32 v16, v16, v17
v_cmp_eq_u32 vcc, -1, v16""")
poll_guard("H_xg", "s_cbranch_vccz", "H_xgd", 1, E("GR", 0))
for i in range(6): a(f"ds_write_b128 v{12+(i&3)}, {V(40+4*i,4)} offset:{4096*i}")
a(f"""H_P2:
s_lshl_b32 s42, s{sL}, 2
s_add_u32 s42, s42, {L_SC}
v_mov_b32 v3, s42""")
lds_inc(3, SC_XNC, 12)
a(f"""v_and_b32 v1, 15, v0
v_lshrrev_b32 v2, 4, v0
v_xor_b32 v8, v2, v1
v_lshlrev_b32 v1, 10, v1
v_add_u32 v1, {L_XN}, v1
v_xor_b32 v9, 4, v8
v_xor_b32 v10, 8, v8
v_xor_b32 v11, 12, v8
v_lshl_add_u32 v8, v8, 4, v1
v_lshl_add_u32 v9, v9, 4, v1
v_lshl_add_u32 v10, v10, 4, v1
v_lshl_add_u32 v11, v11, 4, v1
s_lshl_b32 s41, s{sH}, 11
v_lshl_add_u32 v1, v0, 4, s41
v_add_u32 v13, 0x10000, v1
v_and_b32 v2, 15, v0
v_mul_u32_u24 v2, {QSTR}, v2
v_lshrrev_b32 v12, 4, v0
v_lshl_add_u32 v2, v12, 6, v2
s_lshl_b32 s41, s{sH}, 3
s_add_u32 s41, s41, {L_Q}
v_add_u32 v2, s41, v2
s_mov_b32 s{sQM}, 0""")
lds_wait(3, SC_XNC, 12, 8, 0)
TS(3)
a(f"""s_cmp_lg_u32 s{sL}, 0
s_cbranch_scc1 H_qp""")
for s in range(6):
    for f in range(2): a(f"ds_read_b128 {V(WQR+8*s+4*f,4)}, v13 offset:{8192*s+1024*f}")
a("s_waitcnt lgkmcnt(0)\nH_qp:")
order = [14, 0, 15, 1, 8, 2, 9, 3, 10, 4, 11, 5, 12, 6, 13, 7]
def qbuf(idx): return (20 + 12*((idx//2) % 3)) if order[idx] < 8 else (56 + 4*((idx//2) % 2))
def qread(idx):
    s = order[idx]; b = qbuf(idx)
    a(f"ds_read_b128 {V(b,4)}, v{8+(s&3)} offset:{256*(s>>2)}")
    if s < 8:
        a(f"ds_read_b128 {V(b+4,4)}, v1 offset:{8192*s}")
        a(f"ds_read_b128 {V(b+8,4)}, v1 offset:{8192*s+1024}")
qcnt = lambda i: 3 if order[i] < 8 else 1
AH = 3
for i in range(AH): qread(i)
for idx in range(16):
    if idx + AH < 16: qread(idx+AH)
    a(f"s_waitcnt lgkmcnt({sum(qcnt(j) for j in range(idx+1, min(idx+AH+1, 16)))})")
    s = order[idx]; b = qbuf(idx)
    for f in range(2):
        A_ = V(b+4+4*f,4) if s < 8 else V(WQR+8*(s-8)+4*f,4)
        d = V(12+4*f,4)
        a(f"v_mfma_f32_16x16x32_bf16 {d}, {A_}, {V(b,4)}, {'0' if idx==0 else d}")
a(f"""s_setprio 2
s_mov_b32 s42, {QSCALE}""")
for i in range(4): a(f"v_add_u32 v{8+i}, 0x4000, v{8+i}")
for i in range(0, 8, 2): a(f"v_pk_mul_f32 {V(12+i,2)}, {V(12+i,2)}, s[42:43] op_sel_hi:[1,0]")
for hh in range(2):
    for f in range(2):
        a(f"v_cvt_pk_bf16_f32 v{20+2*hh+f}, v{12+4*f+2*hh}, v{12+4*f+2*hh+1}")
a(f"""ds_write_b64 v2, v[20:21]
ds_write_b64 v2, v[22:23] offset:32""")
lds_inc(3, SC_QC, 12)
a(f"""s_cmp_eq_u32 s{sQM}, 2
s_cbranch_scc1 H_fx2
s_cmp_eq_u32 s{sQM}, 1
s_cbranch_scc1 H_qd""")
TS(2)
a(f"""v_add_u32 v2, {16*QSTR}, v2
s_mov_b32 s{sQM}, 1
s_cmp_lg_u32 s{sL}, 0
s_cbranch_scc1 H_q2
s_setprio {HLNP}
s_mov_b32 s44, 0
s_mov_b32 s45, 2
s_add_u32 s3, s{sH}, 16
s_waitcnt vmcnt(0)
s_branch S_fl
H_ret:""")
lds_inc(3, SC_XN2, 12)
lds_wait(3, SC_XN2, 12, 4, 1)
a(f"""H_q2:
s_setprio 0
s_branch H_qp
H_qd:""")
a(f"""s_cmp_eq_u32 s{sL}, 0
s_cbranch_scc1 H_prep
v_mov_b32 v3, {L_SC}
s_branch H_FFN
H_prep:""")
lds_wait(3, SC_KVD, 12, 4, 4)
a(f"""v_and_b32 v1, 15, v0
v_lshrrev_b32 v2, 4, v0
v_lshlrev_b32 v1, 4, v1
v_lshl_add_u32 v1, v2, 13, v1
s_lshl_b32 s41, s{sC}, 17
s_lshl_b32 s42, s{sH}, 8
s_add_u32 s41, s41, s42
s_add_u32 s41, s41, 4096
v_add_u32 v1, s41, v1""")
def wosrc(s): return 8 if s == 0 else WO + 32*(s-1)
for s in range(4):
    for j in range(8):
        a(f"global_load_dwordx4 {V(wosrc(s)+4*j,4)}, v1, {P(sWO)} offset:{1024*j-4096}")
    if s < 3: a("v_add_u32 v1, 0x8000, v1")
a(f"""s_min_u32 s43, s{sB}, 223
s_lshl_b32 s43, s43, 2
s_add_u32 s43, s43, s{sH}
s_and_b32 s44, s43, 31
s_lshr_b32 s45, s43, 5
v_lshrrev_b32 v2, 3, v0
v_and_b32 v3, 7, v0
s_mul_i32 s41, s44, {8*7168}
s_lshl_b32 s42, s45, 7
s_add_u32 s41, s41, s42
v_mul_u32_u24 v1, 7168, v2
v_lshl_add_u32 v1, v3, 4, v1
v_add_u32 v1, s41, v1
global_load_dwordx4 {V(GU,4)}, v1, {P(sWG)}
global_load_dwordx4 {V(GU+4,4)}, v1, {P(sWG)} offset:3584
global_load_dwordx4 {V(GU+8,4)}, v1, {P(sWU)}
global_load_dwordx4 {V(GU+12,4)}, v1, {P(sWU)} offset:3584
s_lshl_b32 s41, s45, 16
s_lshl_b32 s42, s44, 5
s_add_u32 s41, s41, s42
s_add_u32 s41, s41, 4096
v_lshlrev_b32 v1, 13, v2
v_lshl_add_u32 v1, v3, 2, v1
v_add_u32 v1, s41, v1""")
for r in range(8): a(f"global_load_dword v{WDn + 4*(r&1) + (r>>1)}, v1, {P(sWD)} offset:{1024*r-4096}")
a("s_waitcnt vmcnt(12)")
for s in (3, 2, 1, 0):
    src = wosrc(s); dst = WO + 32*s
    for f in range(8):
        for i in range(4):
            a(f"v_perm_b32 v{dst+4*f+i}, v{src+4*(2*i+1)+(f>>1)}, v{src+4*(2*i)+(f>>1)}, s{sHI if f&1 else sLO}")
a(f"""v_mov_b32 v8, -1
v_mov_b32 v9, -1
v_mov_b32 v10, -1
v_mov_b32 v11, -1
s_lshl_b32 s41, s{sB}, 13
s_lshl_b32 s42, s{sH}, 11
s_add_u32 s41, s41, s42
s_add_u32 s41, s41, {WS_XN}
v_lshl_add_u32 v1, v0, 4, s41
global_store_dwordx4 v1, v[8:11], {P(sWS)} sc1
global_store_dwordx4 v1, v[8:11], {P(sWS)} offset:1024 sc1
s_lshr_b32 s41, s{sH}, 1
s_lshl_b32 s41, s41, 19
s_and_b32 s42, s{sH}, 1
s_lshl_b32 s42, s42, 10
s_add_u32 s41, s41, s42
s_lshl_b32 s42, s{sB}, 11
s_add_u32 s41, s41, s42
s_add_u32 s41, s41, {WS_CAND}
v_lshl_add_u32 v1, v0, 4, s41
global_store_dwordx4 v1, v[8:11], {P(sWS)} sc1
s_cmp_ge_u32 s{sB}, 224
s_cbranch_scc1 H_bursts
s_waitcnt vmcnt(3)""")
for base in (GU, GU+8, WDn):
    for i in range(4): tr_pair(base+i, base+4+i, 12)
a(f"""v_lshlrev_b32 v2, 4, v2
v_lshl_add_u32 v2, v3, 15, v2
s_lshl_b32 s41, s45, 18
s_lshr_b32 s42, s44, 3
s_lshl_b32 s42, s42, 13
s_add_u32 s41, s41, s42
s_and_b32 s42, s44, 7
s_lshl_b32 s42, s42, 7
s_add_u32 s41, s41, s42
s_add_u32 s41, s41, {WS_FS}
v_add_u32 v1, s41, v2""")
for i in range(4): a(f"global_store_dwordx4 v1, {V(GU+4*i,4)}, {P(sWS)} offset:{1024*i} sc1")
a(f"""s_lshl_b32 s41, s44, 18
s_lshr_b32 s42, s45, 3
s_lshl_b32 s42, s42, 13
s_add_u32 s41, s41, s42
s_and_b32 s42, s45, 7
s_lshl_b32 s42, s42, 7
s_add_u32 s41, s41, s42
s_add_u32 s41, s41, {WS_FS + 4096}
v_add_u32 v1, s41, v2""")
for i in range(2): a(f"global_store_dwordx4 v1, {V(WDn+4*i,4)}, {P(sWS)} offset:{1024*i} sc1")
a(f"""s_lshl_b32 s41, s{sH}, 3
s_cmp_lg_u32 s41, s{sB}
s_cbranch_scc1 H_bursts
v_and_b32 v40, 7, v0
v_lshrrev_b32 v41, 4, v0
v_lshlrev_b32 v40, 2, v40
v_lshl_add_u32 v40, v41, 8, v40
s_lshl_b32 s41, s{sH}, 12
v_add_u32 v40, s41, v40
v_and_b32 v41, 8, v0
v_cmp_eq_u32 vcc, 0, v41
v_mov_b32 v42, s{sWV}
v_mov_b32 v43, s{sWK}
v_cndmask_b32 v42, v42, v43, vcc
v_mov_b32 v41, s{sWV+1}
v_mov_b32 v43, s{sWK+1}
v_cndmask_b32 v43, v41, v43, vcc
v_add_co_u32 v42, vcc, v42, v40
v_addc_co_u32 v43, vcc, 0, v43, vcc""")
for s in range(4):
    for j in range(8):
        a(f"global_load_dword v{8 + 8*s + 4*(j&1) + (j>>1)}, v[42:43], off offset:{1024*s + 32*j}")
a("s_waitcnt vmcnt(0)")
for s in range(4):
    for i in range(4): tr_pair(8+8*s+i, 8+8*s+4+i, 40)
wkv_addr(1)
for i in range(8): a(f"global_store_dwordx4 v1, {V(8+4*i,4)}, {P(sWS)} offset:{1024*i-4096} sc1")
a(f"""s_lshl_b32 s41, s{sH}, 7
s_add_u32 s41, s41, {WS_WKV + 0x8000}
v_mov_b32 v1, s41
v_mov_b32 v2, s{sTAG}
s_waitcnt vmcnt(0)
s_mov_b64 exec, 1
global_store_dword v1, v2, {P(sWS)} sc1
s_mov_b64 exec, -1
H_bursts:""")
TS(5)
OF, AC = 8, 32
sSB, sLB = 44, 45
a(f"""s_lshr_b32 s41, s{sH}, 1
s_and_b32 s42, s{sH}, 1
s_lshl_b32 s{sSB}, s41, 13
s_lshl_b32 s43, s42, 10
s_add_u32 s{sSB}, s{sSB}, s43
s_add_u32 s{sSB}, s{sSB}, {L_SLOT}
s_lshl_b32 s{sLB}, s41, 9
s_add_u32 s{sLB}, s{sLB}, {L_L}
v_bfe_u32 v3, v0, 3, 2
v_mul_u32_u24 v3, {QSTR}, v3
v_and_b32 v8, 7, v0
v_lshl_add_u32 v3, v8, 5, v3
s_mul_i32 s43, s41, {4*QSTR}
s_add_u32 s43, s43, {L_O}
v_add_u32 v3, s43, v3
v_and_b32 v2, 15, v0
v_mul_u32_u24 v2, {QSTR}, v2
v_lshrrev_b32 v8, 4, v0
v_lshl_add_u32 v2, v8, 4, v2
v_add_u32 v2, {L_O}, v2
s_mul_i32 s{sOPB}, s{sL}, {OPL}
s_lshl_b32 s41, s{sH}, 12
s_add_u32 s{sOPB}, s{sOPB}, s41
s_add_u32 s{sOPB}, s{sOPB}, {WS_OP}
s_add_u32 s{sOTAG}, s{sTAG}, s{sL}
s_add_u32 s{sOTAG}, s{sOTAG}, 1""")
def corr(g):
    l0 = a.newlabel("H_c0"); l1 = a.newlabel("H_c1")
    a(f"""s_andn2_b32 s41, s{sL}, s{sSLOW}
    s_cbranch_scc0 {l0}
    v_lshrrev_b32 v28, 5, v0
    s_lshl_b32 s41, s{sH}, 5
    s_add_u32 s41, s41, {L_VS}
    v_lshl_add_u32 v28, v28, 4, s41
    ds_read_b128 v[8:11], v3 offset:{L_Q - L_O + 8*QSTR*g}
    ds_read_b128 v[12:15], v3 offset:{L_Q - L_O + 8*QSTR*g + 16}
    ds_read_b128 v[28:31], v28
    s_waitcnt lgkmcnt(1)
    v_dot2_f32_bf16 v1, v8, s{sKSL[0]}, 0""")
    for i in range(1, 8): a(f"v_dot2_f32_bf16 v1, v{8+i}, s{sKSL[i]}, v1")
    a(f"""v_exp_f32 v1, v1
    s_waitcnt lgkmcnt(0)
    v_and_b32 v1, 0xffff0000, v1
    v_pk_mul_f32 v[28:29], v[28:29], v[0:1] op_sel:[0,1] op_sel_hi:[1,1]
    v_pk_mul_f32 v[30:31], v[30:31], v[0:1] op_sel:[0,1] op_sel_hi:[1,1]
    s_branch {l1}
    {l0}:
    v_mov_b32 v1, 0
    v_mov_b64 v[28:29], 0
    v_mov_b64 v[30:31], 0
    {l1}:""")
def norm_pre(g):
    a(f"""v_and_b32 v10, 31, v0
    s_add_u32 s41, s{sLB}, {1024*g}
    v_lshl_add_u32 v10, v10, 2, s41
    v_lshl_add_u32 v24, v0, 4, s{sSB}""")
def normalize(g, sleep):
    if sleep:
        lb = a.newlabel("H_lw")
        a(f"""v_lshl_add_u32 v13, v0, 3, s{sLB}
        s_mov_b32 s{sCNT}, 0
        {lb}:
        ds_read_b32 v8, v13 offset:{1024*g}
        s_waitcnt lgkmcnt(0)
        v_cmp_eq_u32 vcc, -1, v8""")
        poll_guard(lb, "s_cbranch_vccz", "H_lwd", 4, sleep)
    a(f"""ds_read2_b32 v[8:9], v10 offset0:0 offset1:32
    ds_read2_b32 v[10:11], v10 offset0:64 offset1:96""")
    for w in range(4): a(f"ds_read_b128 {V(12+4*w,4)}, v24 offset:{16384*g + 2048*w}")
    a(f"""s_waitcnt lgkmcnt(4)
    v_pk_add_f32 v[8:9], v[8:9], v[10:11]
    v_add_f32 v8, v8, v9
    v_add_f32 v8, v8, v1
    v_rcp_f32 v9, v8
    s_waitcnt lgkmcnt(2)""")
    pkadd(12, 12, 16, 4)
    pkadd(12, 12, 28, 4)
    a(f"""v_lshrrev_b32 v11, 5, v0
    s_and_b32 s41, s{sH}, 1
    s_lshl_b32 s41, s41, 4
    v_lshl_add_u32 v11, v11, 3, v3
    s_waitcnt lgkmcnt(0)""")
    pkadd(20, 20, 24, 4)
    a("v_add_u32 v11, s41, v11")
    pkadd(12, 12, 20, 4)
    lb = a.newlabel("H_nb")
    a(f"""v_pk_mul_f32 v[12:13], v[12:13], v[8:9] op_sel:[0,1] op_sel_hi:[1,1]
    v_pk_mul_f32 v[14:15], v[14:15], v[8:9] op_sel:[0,1] op_sel_hi:[1,1]
    v_cvt_pk_bf16_f32 v16, v12, v13
    v_cvt_pk_bf16_f32 v17, v14, v15
    ds_write_b64 v11, v[16:17] offset:{8*QSTR*g}
    v_pk_add_f32 v[12:13], v[12:13], v[14:15]
    v_add_f32 v12, v12, v13
    v_fma_f32 v8, v12, 0, v8
    v_subrev_u32 v8, {(127-80)<<23}, v8
    v_cmp_lt_u32 vcc, {(0 if (FORCE>>g)&1 else (180<<23))}, v8
    s_cbranch_vccz {lb}
    s_cmp_lg_u32 s{sSLOW}, 0
    s_cbranch_scc1 {lb}
    v_mov_b32 v8, {L_SC}
    v_mov_b32 v9, 1
    ds_write_b32 v8, v9 offset:{SC_BAD}
    {lb}:""")
def hsync(idx, bad=True):
    lb = a.newlabel("H_hs")
    a(f"""s_lshl_b32 s41, s{sL}, 4
    s_add_u32 s41, s41, {L_SC}
    v_mov_b32 v8, s41
    v_mov_b32 v11, {L_SC}""")
    lds_inc(8, SC_OCNT + 4*idx, 9)
    lds_wait(8, SC_OCNT + 4*idx, 9, 4, 3)
    if bad:
        a(f"""ds_read_b32 v9, v11 offset:{SC_BAD}
        s_waitcnt lgkmcnt(0)
        v_cmp_ne_u32 vcc, 0, v9
        s_cbranch_vccnz H_toX""")
def oproj(first):
    if first: a("s_setprio 0")
    for s in range(4):
        a(f"s_waitcnt lgkmcnt({3-s})")
        for f in range(8):
            a(f"v_mfma_f32_16x16x32_bf16 {V(AC+4*f,4)}, {V(OF+4*s,4)}, {V(WO+32*s+4*f,4)}, {'0' if (s==0 and first) else V(AC+4*f,4)}")
def osend(bi):
    if bi == 0 or B1P0: a("s_setprio 0")
    a("s_waitcnt lgkmcnt(0)")
    def st(f):
        if bi == 1: a("s_mov_b32 exec_hi, 0")
        a(f"global_store_dwordx4 v24, {V(AC+4*f,4)}, {P(sWS)} offset:{512*f} sc1")
        if bi == 1: a("s_mov_b32 exec_hi, -1")
    for f in range(8):
        for s in range(4):
            a(f"v_mfma_f32_16x16x32_bf16 {V(AC+4*f,4)}, {V(OF+4*s,4)}, {V(WO+32*s+4*f,4)}, {'0' if s==0 else V(AC+4*f,4)}")
        if f >= 2: st(f-2)
    st(6); st(7)
    if bi == 0 or B1P0: a("s_setprio 2")
def flag_poll(vaddr, sleep):
    lp = a.newlabel("H_fp")
    a(f"""s_mov_b32 s{sCNT}, 0
    {lp}:""")
    a(f"""global_load_dword v8, v{vaddr}, {P(sWS)} sc1
    s_waitcnt vmcnt(0)
    v_cmp_ne_u32 vcc, s{sOTAG}, v8""")
    poll_guard(lp, "s_cbranch_vccz", "H_fpd", 1, sleep)
def send_addr(bi):
    a(f"""v_lshrrev_b32 v26, 5, v0
    s_add_u32 s41, s{sC}, {1 + 2*bi}
    v_add_u32 v25, s41, v26
    v_and_b32 v25, 3, v25
    v_mul_u32_u24 v24, 49152, v25
    v_lshl_add_u32 v24, v26, 14, v24
    v_and_b32 v26, 31, v0
    v_lshl_add_u32 v24, v26, 4, v24
    s_andn2_b32 s43, s{sB}, 3
    s_mul_i32 s41, s43, 49152
    s_add_u32 s41, s41, s{sOPB}
    s_add_u32 s41, s41, {32768*bi}
    v_add_u32 v24, s41, v24""")
a(f"""s_add_u32 s41, s{sC}, 3
s_and_b32 s41, s41, 3
s_andn2_b32 s43, s{sB}, 3
s_add_u32 s41, s41, s43
s_mul_i32 s41, s41, 49152
s_add_u32 s41, s41, s{sOPB}
s_add_u32 s41, s41, 32768
v_lshl_add_u32 v24, v0, 4, s41
v_mov_b64 v[8:9], -1
v_mov_b64 v[10:11], -1""")
for f in range(4): a(f"global_store_dwordx4 v24, v[8:11], {P(sWS)} offset:{1024*f} sc1")
corr(0); norm_pre(0); normalize(0, 16); corr(1); norm_pre(1); normalize(1, 8)
hsync(0)
for s_ in range(4): a(f"ds_read_b128 {V(OF+4*s_,4)}, v2 offset:{64*s_}")
send_addr(0)
a(f"""s_add_u32 s41, s{sC}, 1
v_add_u32 v25, s41, v0
v_and_b32 v25, 3, v25
v_lshlrev_b32 v25, 11, v25
v_lshl_add_u32 v25, v0, 9, v25
s_lshl_b32 s41, s43, 11
s_lshl_b32 s42, s{sH}, 7
s_add_u32 s41, s41, s42
s_add_u32 s41, s41, {WS_OPF}
v_add_u32 v25, s41, v25
v_mov_b32 v27, s{sOTAG}""")
osend(0)
a(f"""s_waitcnt vmcnt(0)
s_mov_b64 exec, 7
global_store_dword v25, v27, {P(sWS)} sc1
s_mov_b64 exec, -1""")
TS(6)
def recv01(nonblock=False):
    a(f"""v_lshrrev_b32 v27, 5, v0
    v_and_b32 v26, 31, v0
    s_mul_i32 s41, s{sB}, 49152
    s_add_u32 s41, s41, s{sOPB}
    v_lshl_add_u32 v26, v26, 4, s41
    v_lshl_add_u32 v24, v27, 14, v26
    s_lshl_b32 s41, s{sB}, 11
    s_lshl_b32 s42, s{sH}, 7
    s_add_u32 s41, s41, s42
    s_add_u32 s41, s41, {WS_OPF}
    v_min_u32 v25, 2, v0
    v_lshl_add_u32 v25, v25, 9, s41""")
    if nonblock:
        a(f"""v_lshlrev_b32 v13, 4, v0
        v_add_u32 v13, {L_L + 2048}, v13
        s_mov_b32 s{sCNT}, 0
        H_nbp:
        ds_read_b32 v8, v13
        s_waitcnt lgkmcnt(0)
        v_cmp_eq_u32 vcc, -1, v8
        s_cbranch_vccz H_b1
        s_add_u32 s{sCNT}, s{sCNT}, 1
        s_cmp_ge_u32 s{sCNT}, {POLLMAX}
        s_cbranch_scc1 H_b1
        s_sleep 4
        global_load_dword v8, v25, {P(sWS)} sc1
        s_waitcnt vmcnt(0)
        v_cmp_ne_u32 vcc, s{sOTAG}, v8
        s_cbranch_vccnz H_nbp""")
    else:
        flag_poll(25, 2)
    if nonblock:
        a(f"""s_lshl_b32 s41, s{sH}, 13
        s_add_u32 s41, s41, {L_SLOT}""")
        for f in range(8):
            a(f"""s_add_u32 m0, s41, {512*f}
            global_load_lds_dwordx4 v24, {P(sWS)} offset:{512*f} sc1""")
    else:
        for f in range(8): a(f"global_load_dwordx4 {V(AC+4*f,4)}, v24, {P(sWS)} offset:{512*f} sc1")
a(f"s_mov_b32 s{sCAND}, 0")
recv01(True)
a(f"s_mov_b32 s{sCAND}, 1\nH_b1:")
corr(2); norm_pre(2); normalize(2, 4)
hsync(1)
for s_ in range(4): a(f"ds_read_b128 {V(OF+4*s_,4)}, v2 offset:{64*s_ + 16*QSTR}")
send_addr(1)
osend(1)
TS(9)
a(f"""s_cmp_lg_u32 s{sCAND}, 0
s_cbranch_scc1 H_r2""")
recv01()
a(f"""H_r2:
v_lshrrev_b32 v27, 5, v0
v_and_b32 v26, 31, v0
s_mul_i32 s41, s{sB}, 49152
s_add_u32 s41, s41, s{sOPB}
s_add_u32 s41, s41, 32768
v_lshl_add_u32 v26, v26, 4, s41
v_lshl_add_u32 v26, v27, 11, v26
s_lshl_b32 s41, s{sH}, 7
s_add_u32 s41, s41, {WS_WKV + 0x8000}
v_mov_b32 v25, s41
global_load_dword v25, v25, {P(sWS)} sc1
s_mov_b32 s{sCNT}, 0
s_sleep {E("PS", 0)}
H_p2:""")
for f in range(4): a(f"global_load_dwordx4 {V(8+4*f,4)}, v26, {P(sWS)} offset:{512*f} sc1")
a(f"""s_waitcnt vmcnt(0)
v_max3_u32 v24, v8, v12, v16
v_max_u32 v24, v24, v20
v_cmp_eq_u32 vcc, -1, v24""")
poll_guard("H_p2", "s_cbranch_vccz", "H_p2d", 1, 4)
a(f"""s_cmp_eq_u32 s{sCAND}, 0
s_cbranch_scc1 H_r3
s_lshl_b32 s41, s{sH}, 13
s_add_u32 s41, s41, {L_SLOT}
v_lshl_add_u32 v24, v0, 4, s41""")
for f in range(8): a(f"ds_read_b128 {V(AC+4*f,4)}, v24 offset:{1024*f}")
a("s_waitcnt lgkmcnt(0)\nH_r3:\ns_mov_b32 exec_hi, 0")
pkadd(AC, AC, 8, 16)
a("s_mov_b32 exec_lo, 0\ns_mov_b32 exec_hi, -1")
pkadd(AC+16, AC+16, 8, 16)
a("s_mov_b64 exec, -1")
a(f"""s_cmp_lg_u32 s{sL}, 0
s_cbranch_scc1 H_nwf
s_lshl_b32 s41, s{sH}, 7
s_add_u32 s41, s41, {WS_WKV + 0x8000}
v_mov_b32 v9, s41
s_mov_b32 s{sCNT}, 0
H_wf:
v_cmp_ne_u32 vcc, s{sTAG}, v25
s_cbranch_vccz H_wfd
global_load_dword v25, v9, {P(sWS)} sc1
s_waitcnt vmcnt(0)
s_add_u32 s{sCNT}, s{sCNT}, 1
s_cmp_lt_u32 s{sCNT}, {POLLMAX}
s_cbranch_scc1 H_wf
H_wfd:""")
for g in range(3):
    a(f"s_add_u32 s6, s{sH}, {8*g}")
    pos2tok(41, 6)
    a(f"""s_lshl_b32 s41, s41, 10
    s_add_u32 s{3+g}, s41, {WS_XN + 2048}""")
a("H_nwf:")
TS(10)
a(f"""v_and_b32 v8, 8, v0
v_cmp_eq_u32 vcc, 0, v8
v_lshrrev_b32 v8, 4, v0
v_lshlrev_b32 v8, 4, v8
v_add_u32 v8, {L_SC + SC_ZERO - 24*QSTR}, v8
v_cndmask_b32 v2, v8, v2, vcc""")
corr(3)
norm_pre(3)
a("s_barrier")
normalize(3, 0)
a(f"""v_mov_b32 v24, {L_SC}
s_waitcnt lgkmcnt(0)
s_barrier
ds_read_b32 v24, v24 offset:{SC_BAD}""")
for s_ in range(4): a(f"ds_read_b128 {V(OF+4*s_,4)}, v2 offset:{64*s_ + 24*QSTR}")
a(f"""v_lshrrev_b32 v26, 4, v0
v_and_b32 v25, 15, v0
v_lshlrev_b32 v25, 4, v25
v_lshl_add_u32 v25, v26, 13, v25
s_lshl_b32 s41, s{sH}, 9
s_add_u32 s41, s41, {L_ROW}
v_add_u32 v1, s41, v25
s_waitcnt lgkmcnt(4)
v_cmp_ne_u32 vcc, 0, v24
s_cbranch_vccnz H_slow""")
def fm(f, s_): a(f"v_mfma_f32_16x16x32_bf16 {V(AC+4*f,4)}, {V(OF+4*s_,4)}, {V(WO+32*s_+4*f,4)}, {V(AC+4*f,4)}")
def rw(half, i, t):
    for f in (0, 2):
        r0 = AC + 4*(4*half+f) + (i & 2); r1 = r0 + 4
        a(f"v_pk_mov_b32 {V(t+f,2)}, {V(r0,2)}, {V(r1,2)} op_sel:[{i&1},{i&1}]")
    a(f"ds_write_b128 v1, {V(t,4)} offset:{2048*i + 256*half}")
for s_ in range(4):
    a(f"s_waitcnt lgkmcnt({3-s_})")
    for f in range(4): fm(f, s_)
seq = [(f, s_) for s_ in range(4) for f in range(4, 8)]
for j, (f, s_) in enumerate(seq):
    fm(f, s_)
    if j in (7, 10, 13, 15): rw(0, (7, 10, 13, 15).index(j), 24 + 4*((7, 10, 13, 15).index(j) & 1))
for i in range(4): rw(1, i, 8 + 4*i)
a("s_setprio 0\ns_branch R_P4")
a("H_FF2:")
for i in range(0, 24, 2): a(f"v_mov_b64 {V(GU+i,2)}, {V(64+i,2)}")
a("H_FFN:")
key_get(1)
a(f"""s_cmp_lg_u32 s{sF}, 0
s_cbranch_scc1 H_nl""")
ffn_loads()
a("H_nl:")
a(f"""s_lshr_b32 s41, s{sSEL}, 3
s_lshl_b32 s41, s41, 11
s_lshl_b32 s42, s{sF}, 19
s_add_u32 s41, s41, s42
s_add_u32 s41, s41, {WS_CAND}
s_lshl_b32 s42, s{sH}, 8
s_add_u32 s42, s42, s41
v_lshl_add_u32 v2, v0, 2, s42
s_lshl_b32 s42, s{sJ}, 2
s_add_u32 s42, s42, s41
v_mov_b32 v9, s42
s_lshl_b32 s42, s{sF}, 2
v_add_u32 v37, s42, v3
s_mov_b32 s{sCNT}, 0""")
TSF(11)
a(f"""H_xs:
global_load_dword v8, v2, {P(sWS)} sc1
global_load_dword v38, v9, {P(sWS)} sc1
global_load_dword v39, v9, {P(sWS)} offset:1024 sc1
s_waitcnt vmcnt(0)
v_max3_u32 v10, v8, v38, v39
v_cmp_eq_u32 vcc, -1, v10""")
poll_guard("H_xs", "s_cbranch_vccz", "H_xsd")
a(f"""s_cmp_ge_u32 s{sJ}, 224
s_cbranch_scc1 H_down""")
for i in range(16): a(f"v_dot2_f32_bf16 v{GU+i}, v{GU+i}, v8, 0")
for c in range(8): a(f"v_permlane32_swap_b32 v{GU+c}, v{GU+8+c}")
pkadd(GU, GU, GU+8, 8)
for c in range(4): a(f"v_permlane16_swap_b32 v{GU+c}, v{GU+4+c}")
pkadd(GU, GU, GU+4, 4)
for m in ("row_ror:8", "row_ror:4", "row_ror:2", "row_ror:1"):
    for c in range(4): a(f"v_add_f32_dpp v{GU+c}, v{GU+c}, v{GU+c} {m} row_mask:0xf bank_mask:0xf")
a(f"""v_lshrrev_b32 v2, 4, v0
s_lshl_b32 s41, s{sH}, 6
s_add_u32 s41, s41, {L_SC + SC_FACC}
v_lshl_add_u32 v2, v2, 4, s41
v_mov_b32 v9, 1
s_mov_b32 exec_lo, 0x00010001
s_mov_b32 exec_hi, 0x00010001
ds_write_b128 v2, {V(GU,4)}
s_mov_b64 exec, 1
ds_add_rtn_u32 v10, v37, v9 offset:{SC_FCNT}
s_mov_b64 exec, -1
v_and_b32 v2, 1, v0
v_bfe_u32 v9, v0, 1, 2
v_lshlrev_b32 v9, 2, v9
v_lshl_add_u32 v9, v2, 4, v9
v_add_u32 v9, {L_SC + SC_FACC}, v9
s_waitcnt lgkmcnt(0)
v_readfirstlane_b32 s42, v10
s_cmp_lg_u32 s42, 3
s_cbranch_scc1 H_down""")
for w in range(4): a(f"ds_read2_b32 {V(12+2*w,2)}, v9 offset0:{16*w} offset1:{16*w+8}")
a(f"""s_lshl_b32 s41, s{sJ}, 7
s_lshl_b32 s42, s{sF}, 4
s_add_u32 s41, s41, s42
s_add_u32 s41, s41, {WS_HY}
v_lshl_add_u32 v2, v0, 1, s41
s_waitcnt lgkmcnt(0)
v_pk_add_f32 v[12:13], v[12:13], v[14:15]
v_pk_add_f32 v[16:17], v[16:17], v[18:19]
v_pk_add_f32 v[12:13], v[12:13], v[16:17]
v_cvt_pk_bf16_f32 v12, v12, v13
v_and_b32 v13, 0xffff0000, v12
v_lshlrev_b32 v12, 16, v12
v_mul_f32 v14, 0xbfb8aa3b, v12
v_exp_f32 v14, v14
v_add_f32 v14, 1.0, v14
v_rcp_f32 v14, v14
v_mul_f32 v12, v12, v14
v_cvt_pk_bf16_f32 v12, v12, v12
v_lshlrev_b32 v12, 16, v12
v_mul_f32 v12, v12, v13
v_cvt_pk_bf16_f32 v12, v12, v12
s_mov_b64 exec, 0xff
global_store_short v2, v12, {P(sWS)} sc1
s_mov_b64 exec, -1
H_down:
s_lshl_b32 s41, s{sH}, 6
v_add_u32 v1, s41, v0
v_min_u32 v2, 223, v1
s_lshl_b32 s42, s{sF}, 4
s_add_u32 s42, s42, {WS_HY}
v_lshl_add_u32 v2, v2, 7, s42
s_mov_b32 s{sCNT}, 0""")
TSF(12)
a(f"""s_cmp_lg_u32 s{sF}, 0
s_cbranch_scc1 H_nkw""")
a(f"s_sleep {24-HS1}\nH_nkw:")
if HS1: a(f"s_sleep {HS1}")
a(f"""s_mov_b32 s{sCNT}, 0
s_mov_b64 vcc, -1
H_hp:
s_mov_b64 exec, {"vcc" if E("MSK", 1) else "-1"}
global_load_dwordx4 v[12:15], v2, {P(sWS)} sc1
s_mov_b64 exec, -1
s_waitcnt vmcnt(0)
v_max3_u32 v9, v12, v13, v14
v_max_u32 v9, v9, v15
v_cmp_eq_u32 vcc, -1, v9""")
poll_guard("H_hp", "s_cbranch_vccz", "H_hpd", 1, E("HR", 3))
TSF(13)
a(f"""v_dot2_f32_bf16 v8, v{WDn}, v12, 0
v_dot2_f32_bf16 v9, v{WDn+4}, v12, 0""")
for i in range(1, 4):
    a(f"v_dot2_f32_bf16 v8, v{WDn+i}, v{12+i}, v8")
    a(f"v_dot2_f32_bf16 v9, v{WDn+4+i}, v{12+i}, v9")
a(f"""v_cmp_gt_u32 vcc, 224, v1
v_cndmask_b32 v8, 0, v8, vcc
v_cndmask_b32 v9, 0, v9, vcc
v_permlane32_swap_b32 v8, v9
v_add_f32 v8, v8, v9""")
for m in ("row_ror:8", "row_ror:4", "row_ror:2", "row_ror:1"):
    a(f"v_add_f32_dpp v8, v8, v8 {m} row_mask:0xf bank_mask:0xf")
a(f"""v_add_f32_dpp v8, v8, v8 row_bcast:15 row_mask:0xa bank_mask:0xf
v_lshrrev_b32 v2, 5, v0
s_lshl_b32 s41, s{sH}, 3
s_add_u32 s41, s41, {L_SC + SC_DACC}
v_lshl_add_u32 v2, v2, 2, s41
v_mov_b32 v9, 1
s_mov_b32 exec_lo, 0x80000000
s_mov_b32 exec_hi, 0x80000000
ds_write_b32 v2, v8
s_mov_b64 exec, 1
ds_add_rtn_u32 v12, v37, v9 offset:{SC_DCNT}
s_mov_b64 exec, -1
s_lshr_b32 s41, s{sKEY}, 16
s_and_b32 s42, s41, 0x7fff
s_xor_b32 s43, s41, 0xffff
s_bitcmp1_b32 s41, 15
s_cselect_b32 s41, s42, s43
s_lshl_b32 s41, s41, 16
v_mov_b32 v11, s41
v_mul_f32 v11, 0xbfb8aa3b, v11
v_exp_f32 v11, v11
v_add_f32 v11, 1.0, v11
v_rcp_f32 v11, v11
v_cvt_pk_bf16_f32 v11, v11, v11
v_lshlrev_b32 v11, 16, v11
s_waitcnt lgkmcnt(0)
v_readfirstlane_b32 s42, v12
s_cmp_lg_u32 s42, 3
s_cbranch_scc1 H_ffd
ds_read_b128 v[12:15], v3 offset:{SC_DACC}
ds_read_b128 v[16:19], v3 offset:{SC_DACC+16}
s_waitcnt lgkmcnt(0)
v_pk_add_f32 v[12:13], v[12:13], v[14:15]
v_pk_add_f32 v[16:17], v[16:17], v[18:19]
v_pk_add_f32 v[8:9], v[12:13], v[16:17]""")
pack(12, 8, 1); unpack(8, 12, 1)
a("v_mul_f32 v8, v8, v11\nv_mul_f32 v9, v9, v11")
pack(12, 8, 1); unpack(8, 12, 1); unpack(14, 38, 1)
a("v_add_f32 v8, v8, v14\nv_add_f32 v9, v9, v15")
pack(12, 8, 1); unpack(8, 12, 1); unpack(14, 39, 1)
a("v_add_f32 v8, v8, v14\nv_add_f32 v9, v9, v15")
pack(12, 8, 1)
a(f"""s_mov_b64 exec, 1
s_cmp_lg_u32 s{sF}, 0
s_cbranch_scc1 H_fo
s_lshl_b32 s41, s{sJ}, 7
s_add_u32 s41, s41, {WS_HY + 32}
v_mov_b32 v2, s41
global_store_dword v2, v12, {P(sWS)} sc1
s_branch H_fo2
H_fo:
s_lshl_b32 s41, s{sSEL}, 10
s_lshl_b32 s42, s{sJ}, 2
s_add_u32 s41, s41, s42
v_mov_b32 v2, s41
global_store_dword v2, v12, {P(sOUT)}{OUTF}
H_fo2:
s_mov_b64 exec, -1
H_ffd:
s_cmp_lg_u32 s{sF}, 0
s_cbranch_scc1 R_last""")
a(f"""s_lshl_b32 s41, s{sH}, 13
s_add_u32 s41, s41, {WS_HY + 32}
v_lshl_add_u32 v1, v0, 7, s41
s_lshl_b32 s41, s{sH}, 8
s_add_u32 s41, s41, {L_X2S}
v_lshl_add_u32 v2, v0, 2, s41
s_mov_b32 s{sCNT}, 0
s_sleep 8
s_mov_b64 vcc, -1
H_yw:
s_mov_b64 exec, {"vcc" if E("MSK", 1) else "-1"}
global_load_dword v40, v1, {P(sWS)} sc1
s_mov_b64 exec, -1
s_waitcnt vmcnt(0)
v_cmp_eq_u32 vcc, -1, v40""")
poll_guard("H_yw", "s_cbranch_vccz", "H_yd", 1, 3)
a(f"""ds_write_b32 v2, v40
v_mov_b32 v2, 1
s_mov_b64 exec, 1
ds_add_rtn_u32 v41, v3, v2 offset:{SC_YC}
s_mov_b64 exec, -1
v_lshlrev_b32 v1, 4, v0
v_add_u32 v1, {L_XS}, v1
s_waitcnt lgkmcnt(0)
v_readfirstlane_b32 s41, v41
s_cmp_lg_u32 s41, 3
s_cbranch_scc1 H_fx1
ds_read_b128 v[40:43], v1 offset:1024
s_waitcnt lgkmcnt(0)""")
unpack(X_, 40)
ln(X_, D_, T_, XN)
a(f"ds_write_b128 v1, {V(XN,4)}")
lds_inc(3, SC_XSF, 2)
a(f"""H_fx1:
s_xor_b32 s41, s{sSEL}, s{sTOK}
s_lshr_b32 s41, s41, 5
s_cbranch_scc1 H_fx2""")
lds_wait(3, SC_XSF, 2, 1, 2)
a(f"""v_lshrrev_b32 v12, 4, v0
v_lshlrev_b32 v8, 4, v12
v_add_u32 v8, {L_XS}, v8
v_add_u32 v9, 64, v8
v_add_u32 v10, 128, v8
v_add_u32 v11, 192, v8
s_lshl_b32 s41, s{sH}, 11
v_lshl_add_u32 v1, v0, 4, s41
s_lshl_b32 s41, s{sC}, 3
s_sub_u32 s41, s{sSEL}, s41
s_sub_u32 s41, s41, 8
s_and_b32 s41, s41, 31
s_mul_i32 s41, s41, {QSTR}
s_lshl_b32 s42, s{sH}, 3
s_add_u32 s41, s41, s42
s_add_u32 s41, s41, {L_Q}
v_lshl_add_u32 v2, v12, 6, s41
v_mov_b32 v3, {L_SC + SC_QFIX - SC_QC}
s_mov_b32 s{sQM}, 2
s_branch H_qp
H_fx2:
v_mov_b32 v3, {L_SC}""")
wkv_addr(1)
for i in range(8): a(f"global_load_dwordx4 {V(8+4*i,4)}, v1, {P(sWS)} offset:{1024*i-4096} sc1")
lds_wait(3, SC_XSF, 2, 1, 2)
TSA(14)
a(f"""v_lshrrev_b32 v1, 4, v0
s_lshl_b32 s41, s{sH}, 8
s_add_u32 s41, s41, {L_XS}
v_lshl_add_u32 v1, v1, 4, s41""")
for s in range(4): a(f"ds_read_b128 {V(40+4*s,4)}, v1 offset:{64*s}")
a(f"""v_lshrrev_b32 v2, 4, v0
s_lshl_b32 s41, s{sH}, 7
s_add_u32 s41, s41, {L_KVP}
v_lshl_add_u32 v2, v2, 5, s41
s_waitcnt vmcnt(0) lgkmcnt(0)""")
for s in range(4):
    a(f"v_mfma_f32_16x16x32_bf16 v[56:59], {V(8+8*s,4)}, {V(40+4*s,4)}, {'0' if s==0 else 'v[56:59]'}")
    a(f"v_mfma_f32_16x16x32_bf16 v[60:63], {V(8+8*s+4,4)}, {V(40+4*s,4)}, {'0' if s==0 else 'v[60:63]'}")
a("s_mov_b32 exec_lo, 0x00010001\ns_mov_b32 exec_hi, 0x00010001")
for i in range(4): a(f"ds_write2_b32 v2, v{56+i}, v{60+i} offset0:{2*i} offset1:{2*i+1}")
a("s_mov_b64 exec, -1")
hsync(2, False)
a(f"""v_and_b32 v1, 7, v0
v_lshlrev_b32 v1, 2, v1
v_add_u32 v1, {L_KVP}, v1
v_lshrrev_b32 v2, 5, v0
s_and_b32 s41, s{sH}, 1
s_lshl_b32 s41, s41, 5
s_add_u32 s41, s41, {L_KVP + 64}
v_lshl_add_u32 v40, v2, 4, s41
s_lshl_b32 s41, s{sH}, 5
s_add_u32 s41, s41, {L_VS}
v_lshl_add_u32 v41, v2, 4, s41""")
for w in range(4): a(f"ds_read2_b32 {V(8+2*w,2)}, v1 offset0:{32*w} offset1:{32*w+8}")
for w in range(4): a(f"ds_read_b128 {V(16+4*w,4)}, v40 offset:{128*w}")
a(f"""s_waitcnt lgkmcnt(4)
v_pk_add_f32 v[8:9], v[8:9], v[10:11]
v_pk_add_f32 v[12:13], v[12:13], v[14:15]
v_pk_add_f32 v[8:9], v[8:9], v[12:13]
v_cvt_pk_bf16_f32 v8, v8, v9
s_waitcnt lgkmcnt(0)""")
pkadd(16, 16, 20, 4); pkadd(24, 24, 28, 4); pkadd(16, 16, 24, 4)
for i in range(8): a(f"v_readlane_b32 s{sKSL[i]}, v8, {i}")
pack(20, 16, 2); unpack(16, 20, 2)
a(f"""ds_write_b128 v41, v[16:19]
ds_write_b32 v1, v8 offset:{L_KS - L_KVP}""")
ffn_loads(64)
a(f"""s_branch H_bursts
H_toX:
s_barrier
s_barrier
H_slow:
s_waitcnt vmcnt(0) lgkmcnt(0)
s_barrier
v_mov_b64 v[28:29], -1
v_mov_b64 v[30:31], -1
s_lshl_b32 s41, s{sH}, 10
s_add_u32 s41, s41, {L_L}
v_lshl_add_u32 v1, v0, 4, s41
ds_write_b128 v1, v[28:31]
s_lshl_b32 s41, s{sH}, 8
s_add_u32 s41, s41, {L_M}
v_lshl_add_u32 v1, v0, 2, s41
v_mov_b32 v8, 0xff800000
ds_write_b32 v1, v8
s_lshl_b32 s41, s{sL}, 4
s_add_u32 s41, s41, {L_SC}
v_mov_b32 v1, s41
v_mov_b32 v2, {L_SC}
v_mov_b64 v[8:9], 0
ds_write_b64 v1, v[8:9] offset:{SC_OCNT}
ds_write_b32 v2, v8 offset:{SC_BAD}
s_mov_b32 s{sSLOW}, 1
s_waitcnt lgkmcnt(0)
s_barrier
s_barrier
s_branch H_bursts
A_slow:
s_waitcnt vmcnt(0)
s_barrier
s_cmp_eq_u32 s3, 15
s_cbranch_scc1 A_sl1
v_lshrrev_b32 v8, 5, v0
v_lshlrev_b32 v8, 4, v8
v_add_u32 v8, {L_KS}, v8
ds_read_b128 v[32:35], v8
v_and_b32 v9, 15, v0
v_lshlrev_b32 v9, 2, v9
v_add_u32 v9, {L_VS}, v9
ds_read_b32 v36, v9
v_and_b32 v9, 27, v0
v_cmp_eq_u32 vcc, 16, v9
v_mov_b32 v10, 0x3f800000
v_cndmask_b32 v10, 0, v10, vcc
v_and_b32 v9, 16, v0
v_cmp_eq_u32 vcc, 0, v9
s_waitcnt lgkmcnt(0)
v_cndmask_b32 v36, v10, v36, vcc
s_bitcmp1_b32 s{sSEL}, 0
s_cselect_b32 s41, 0, 16
v_lshrrev_b32 v36, s41, v36
s_mov_b64 exec, s[6:7]
s_lshl_b32 s41, s3, 4
s_add_u32 s41, s41, s4
s_set_gpr_idx_on s41, gpr_idx(SRC0,DST)
s_nop 1
v_or_b32 v{VV}, v{VV}, v36
s_nop 1
s_set_gpr_idx_off
s_bfe_u32 s41, s{sSEL}, 0x20006
s_lshl_b32 s41, s41, 3
s_and_b32 s42, s{sSEL}, 7
s_add_u32 s41, s41, s42
s_lshl_b32 s42, 1, s41
s_mov_b32 exec_lo, s42
s_mov_b32 exec_hi, s42
s_bfe_u32 s41, s{sSEL}, 0x10008
s_lshl_b32 s42, s3, 1
s_add_u32 s41, s41, s42
s_lshl_b32 s41, s41, 2
s_set_gpr_idx_on s41, gpr_idx(DST)
s_nop 1
v_mov_b32 v{KK}, v32
v_mov_b32 v{KK+1}, v33
v_mov_b32 v{KK+2}, v34
v_mov_b32 v{KK+3}, v35
s_nop 1
s_set_gpr_idx_off
s_mov_b64 exec, -1
A_sl1:
v_and_b32 v14, 31, v0
v_lshlrev_b32 v14, 2, v14
v_add_u32 v14, {L_M}, v14""")
att_addr()
a(f"""s_barrier
s_mov_b32 s44, 0
A_sm:
s_mul_i32 s41, s44, {4*QSTR}
v_add_u32 v{Q}, s41, v{vQA}
ds_read_b128 {V(Q,4)}, v{Q}
v_mov_b32 v15, 0xff800000
s_waitcnt lgkmcnt(0)""")
for kt in range(NT):
    a(f"v_mfma_f32_32x32x16_bf16 {V(S0,16)}, {V(KK+4*kt,4)}, {V(Q,4)}, 0")
    for i in range(0, 16, 2): a(f"v_max3_f32 v15, v15, v{S0+i}, v{S0+i+1}")
a(f"""v_lshl_add_u32 v13, s44, 7, v14
ds_max_f32 v13, v15
s_add_u32 s44, s44, 1
s_cmp_lt_u32 s44, 8
s_cbranch_scc1 A_sm
s_waitcnt lgkmcnt(0)
s_barrier
s_mov_b32 s44, 0
A_se:
s_mul_i32 s41, s44, {4*QSTR}
v_add_u32 v{Q}, s41, v{vQA}
ds_read_b128 {V(Q,4)}, v{Q}
v_lshl_add_u32 v13, s44, 7, v14
ds_read_b32 v15, v13
s_waitcnt lgkmcnt(0)""")
for i in range(16): a(f"v_sub_f32 v{S1+i}, 0, v15")
for i in range(0, 16, 2): a(f"v_mov_b64 {V(ACC+i,2)}, 0")
for kt in range(NT):
    a(f"v_mfma_f32_32x32x16_bf16 {V(S0,16)}, {V(KK+4*kt,4)}, {V(Q,4)}, {V(S1,16)}")
    ex(S0, 0, 16)
    smf(2*kt, S0); smf(2*kt+1, S0+8)
a("s_mov_b32 s41, s44")
flush()
a(f"""s_add_u32 s44, s44, 1
s_cmp_lt_u32 s44, 8
s_cbranch_scc1 A_se
s_branch A_X
L_end:
s_cmp_lg_u32 s{sTOK}, 7
s_cbranch_scc1 L_end2
s_add_u32 s41, s{sE}, 2
v_mov_b32 v1, 0
v_mov_b32 v2, s41
s_mov_b64 exec, 1
global_store_dword v1, v2, {P(sWS)}
s_mov_b64 exec, -1
L_end2:
""")
if TSON:
    TS(15)
    a(f"""s_getreg_b32 s75, hwreg(HW_REG_HW_ID)
    s_mul_i32 s41, s{sB}, 12
    s_add_u32 s41, s41, s{sW}
    s_lshl_b32 s41, s41, 7
    s_add_u32 s41, s41, {WS_TS}
    v_mov_b32 v1, s41
    s_mov_b64 exec, 1""")
    for i in range(32):
        a(f"v_mov_b32 v2, s{60+i}\nglobal_store_dword v1, v2, {P(sWS)} offset:{4*i}")
if os.environ.get("DLY"):
    i_, j_ = [int(x) for x in os.environ["DLY"].split(",")]
    a(f"""s_cmp_lg_u32 s{sTOK}, {int(os.environ.get("DLYW", "4"))}
    s_cbranch_scc1 L_exit
    s_sub_u32 s41, s{60+j_}, s{60+i_}
    s_mul_i32 s41, s41, 4
    s_min_u32 s41, s41, 40000
    s_add_u32 s41, s41, s91
    L_dly:
    s_memrealtime s[92:93]
    s_waitcnt lgkmcnt(0)
    s_sub_u32 s42, s92, s41
    s_cmp_lt_i32 s42, 0
    s_cbranch_scc1 L_dly""")
if os.environ.get("DBGT"):
    a(f"""s_mov_b64 exec, 1
    v_mov_b32 v1, 0
    s_not_b32 s41, s60
    v_mov_b32 v2, s41
    global_atomic_umax v1, v2, {P(sDBG)}""")
    for k, slot in enumerate((31, 1, 2, 3, 5, 9, 7, 21, 25, 23, 24, 27, 29, 16, 0)):
        a(f"v_mov_b32 v2, s{60+slot}\nglobal_atomic_umax v1, v2, {P(sDBG)} offset:{4+4*k}")
a("L_exit:\ns_endpgm")

ABL = os.environ.get("ABL", "")
if ABL:
    from asmlib import Ins
    out_items = []; cur = ""
    for it in a.items:
        if isinstance(it, Ins) and it.label: cur = it.label
        drop = False
        if isinstance(it, Ins) and it.text:
            idx = len(out_items)
            t = it.text
            if "ds_write_b32 v8, v9 offset:96" in t: drop = True
            inH = region[0]
            if "w" in ABL and inH == "prep" and it.op == "v_perm_b32": drop = True
            if "m" in ABL and inH == "burst" and it.op.startswith("v_mfma"): drop = True
            if "v" in ABL and inH == "burst" and it.op in ("v_pk_add_f32", "v_pk_mul_f32", "v_dot2_f32_bf16", "v_cvt_pk_bf16_f32", "v_add_f32", "v_exp_f32", "v_rcp_f32", "v_fma_f32"): drop = True
            if "f" in ABL and inH == "ffn" and (it.op.startswith("v_dot2") or it.op.startswith("v_permlane") or it.op.startswith("v_add_f32_dpp") or it.op.startswith("v_pk_") or it.op.startswith("v_mfma")): drop = True
        if isinstance(it, Ins) and it.label == "H_prep": region[0] = "prep"
        if isinstance(it, Ins) and it.label == "H_bursts": region[0] = "burst"
        if isinstance(it, Ins) and it.label == "H_nwf": region[0] = ""
        if isinstance(it, Ins) and it.label == "H_FFN": region[0] = "ffn"
        if isinstance(it, Ins) and it.label == "H_toX": region[0] = ""
        if not drop: out_items.append(it)
    a.items = out_items
n = a.hazard_pass()
hdr = open(f"cdna_kernels/{NAME}.s.ref").read().split("; Override launch")[0]
out = hdr + f"""; @launch grid=(256,1,1) block=(512,1,1) lds=163840
.amdgcn_target "amdgcn-amd-amdhsa--gfx950"
.text
.globl {NAME}_kernel
.p2align 8
.type {NAME}_kernel,@function
{NAME}_kernel:
""" + a.text() + f""".section .rodata,"a"
.p2align 6
.amdhsa_kernel {NAME}_kernel
  .amdhsa_next_free_vgpr 256
  .amdhsa_next_free_sgpr 102
  .amdhsa_accum_offset 256
  .amdhsa_group_segment_fixed_size 0
  .amdhsa_kernarg_size 104
  .amdhsa_user_sgpr_count 2
  .amdhsa_user_sgpr_kernarg_segment_ptr 1
  .amdhsa_system_sgpr_workgroup_id_x 1
  .amdhsa_float_denorm_mode_32 3
.end_amdhsa_kernel
"""
open(sys.argv[1], "w").write(out)
print("nops inserted", n, "instructions", sum(1 for i in a.items if not isinstance(i, str) and i.text))
```

```python
import sys, os
from asmlib import Asm
NAME = "interleave_layers__grouped_kv_mqa__moe_arch_mod__prompt"
TSON = bool(int(os.environ.get("TS", "0")))
a = Asm()
region = ['']
def E(n, d): return int(os.environ.get(n, str(d)))

WS_FLAG = 0x1000; WS_KEY = 0x10000; WS_HY = 0x20000; WS_KV = 0x30000; WS_CAND = 0x80000; KVS = 640; KVL = 256*640
WS_OPF = 0x180000
WS_XN = 0x200000; WS_OP = 0x600000; OPL = 0xc00000; WS_TS = 0x3000000; WS_FS = 0x2000000; WS_WKV = 0x2800000
L_SLOT = 65536; L_XN = 114688; L_O = 131072; L_Q = 147456; L_L = 156160; L_SC = 160768
L_ROW = L_SLOT; L_PS = L_SLOT + 16384; L_KVS = L_Q
L_WK1 = 98816
L_XS = 139776; L_X2S = L_XS + 1024; L_KVP = L_XS + 2048; L_VS = L_XS + 2560; L_KS = L_XS + 2816; L_M = L_XS + 3072
QSTR = 272
SC_KVCNT = 0; SC_KEYS = 16; SC_OCNT = 64; SC_FACC = 128; SC_FCNT = 384; SC_DACC = 400; SC_DCNT = 464; SC_GK = 480
SC_XSF = 512; SC_QFIX = 516; SC_BAD = 96; SC_XNC = 528; SC_QC = 536; SC_C2 = 560; SC_XN2 = 556; SC_B1 = 552; SC_KVD = 544; SC_YC = 548; SC_ZERO = 768; SC_WR = 1024
FORCE = int(os.environ.get('FORCE', '0'))
POLLMAX = 40000
B1P0 = bool(int(os.environ.get('B1P0', '1')))
HS1 = int(os.environ.get('HS1', '14'))
KS1 = int(os.environ.get('KS1', '0'))
HLNP = int(os.environ.get('HLNP', '2'))
OUTF = ' sc1' if os.environ.get('OUTSC1') else ''
NPRE = int(os.environ.get('NPRE', '2'))
CODECH = int(os.environ.get('CODECH', '6'))
QSCALE = 0x3eb8aa3b

sX, sWQ, sWK, sWV, sWO, sWR, sWG, sWU, sWD, sOUT, sDBG, sWS = 8, 10, 12, 14, 16, 20, 22, 24, 26, 28, 30, 32
sE, sW, sL, sC, sTAG, sLO, sHI = 34, 35, 36, 37, 38, 39, 40
sCNT, sJ, sKEY, sTOK, sMASK, sH, sSEL, sOTAG, sF, sCAND, sMYK, sWT = 46, 47, 48, 49, 50, 51, 52, 53, 54, 55, 56, 57
sORD = 58
sKS = 0
sSLOW = 19
sPB = 100
XL = E('XL', 0)
sSLOT = 96; sQM = 97; sX4 = 97
sOPB = 50
sB = 18
sKSL = [0, 1, 2, 3, 4, 5, 6, 7]
def P(n): return f"s[{n}:{n+1}]"
def V(n, k=1): return f"v{n}" if k == 1 else f"v[{n}:{n+k-1}]"

def TS(i):
    if not TSON: return
    a(f"""s_memrealtime s[92:93]
    s_waitcnt lgkmcnt(0)
    s_cmp_eq_u32 s{sL}, 0
    s_cselect_b32 s{60+i}, s92, s{60+i}""")
    if not os.environ.get("SO"): a(f"s_cselect_b32 s{76+i}, s{76+i}, s92")
SO = bool(os.environ.get("SO"))
def TSS(slot):
    if not (TSON and SO) or os.environ.get("P0"): return
    a(f"""s_memrealtime s[92:93]
    s_waitcnt lgkmcnt(0)
    s_cmp_eq_u32 s{60+slot}, 0
    s_cselect_b32 s{60+slot}, s92, s{60+slot}""")
def TSA(slot):
    if not TSON or (SO and slot >= 16): return
    a(f"""s_memrealtime s[92:93]
    s_waitcnt lgkmcnt(0)
    s_mov_b32 s{60+slot}, s92""")
def TSF(i):
    if not TSON or SO: return
    a(f"""s_memrealtime s[92:93]
    s_waitcnt lgkmcnt(0)
    s_cmp_eq_u32 s{sF}, 0
    s_cselect_b32 s{60+i}, s92, s{60+i}
    s_cselect_b32 s{76+i}, s{76+i}, s92""")
def TC(i):
    return
    a(f"""s_memtime s[92:93]
    s_waitcnt lgkmcnt(0)
    s_mov_b32 s{94+i}, s92""")

def poll_guard(lbl_retry, cond_branch, lbl_stem, mult=1, sleep=0):
    done = a.newlabel(lbl_stem)
    a(f"{cond_branch} {done}")
    if sleep: a(f"s_sleep {sleep}")
    a(f"""s_add_u32 s{sCNT}, s{sCNT}, 1
    s_cmp_lt_u32 s{sCNT}, {POLLMAX*mult}
    s_cbranch_scc1 {lbl_retry}
    {done}:""")
def lds_wait(vaddr, off, vt, target, sleep=1):
    lb = a.newlabel("W")
    a(f"s_mov_b32 s{sCNT}, 0\n{lb}:")
    a(f"""ds_read_b32 v{vt}, v{vaddr} offset:{off}
    s_waitcnt lgkmcnt(0)
    v_cmp_gt_u32 vcc, {target}, v{vt}""")
    poll_guard(lb, "s_cbranch_vccz", "Wd", 8, sleep)
def lds_inc(vaddr, off, vt):
    a(f"""v_mov_b32 v{vt}, 1
    s_mov_b64 exec, 1
    ds_add_u32 v{vaddr}, v{vt} offset:{off}
    s_mov_b64 exec, -1""")

def dpp_reduce(regs, op="v_add_f32"):
    for m in ("row_ror:8", "row_ror:4", "row_ror:2", "row_ror:1"):
        for r in regs: a(f"{op}_dpp v{r}, v{r}, v{r} {m} row_mask:0xf bank_mask:0xf")
    for r in regs: a(f"{op}_dpp v{r}, v{r}, v{r} row_bcast:15 row_mask:0xa bank_mask:0xf")
    for r in regs: a(f"{op}_dpp v{r}, v{r}, v{r} row_bcast:31 row_mask:0xc bank_mask:0xf")
def unpack(dst, src, n=4):
    for i in range(n):
        a(f"v_lshlrev_b32 v{dst+2*i}, 16, v{src+i}")
        a(f"v_and_b32 v{dst+2*i+1}, 0xffff0000, v{src+i}")
def pack(dst, src, n=4):
    for i in range(n): a(f"v_cvt_pk_bf16_f32 v{dst+i}, v{src+2*i}, v{src+2*i+1}")
def pkadd(d, x, y, n):
    for i in range(0, n, 2): a(f"v_pk_add_f32 {V(d+i,2)}, {V(x+i,2)}, {V(y+i,2)}")
def tr_pair(e, o, t):
    a(f"""v_perm_b32 v{t}, v{o}, v{e}, s{sLO}
    v_perm_b32 v{o}, v{o}, v{e}, s{sHI}
    v_mov_b32 v{e}, v{t}""")
def ln(X, D, T, out, extra=[]):
    a(f"v_readfirstlane_b32 s42, v{X}")
    for i in range(0, 8, 2): a(f"v_pk_add_f32 {V(D+i,2)}, {V(X+i,2)}, s[42:43] op_sel_hi:[1,0] neg_lo:[0,1] neg_hi:[0,1]")
    a(f"""v_pk_add_f32 {V(T,2)}, {V(D,2)}, {V(D+2,2)}
    v_pk_mul_f32 {V(T+2,2)}, {V(D,2)}, {V(D,2)}
    v_pk_add_f32 {V(T,2)}, {V(T,2)}, {V(D+4,2)}
    v_pk_fma_f32 {V(T+2,2)}, {V(D+2,2)}, {V(D+2,2)}, {V(T+2,2)}
    v_pk_add_f32 {V(T,2)}, {V(T,2)}, {V(D+6,2)}
    v_pk_fma_f32 {V(T+2,2)}, {V(D+4,2)}, {V(D+4,2)}, {V(T+2,2)}
    v_add_f32 v{T}, v{T}, v{T+1}
    v_pk_fma_f32 {V(T+2,2)}, {V(D+6,2)}, {V(D+6,2)}, {V(T+2,2)}
    v_mul_f32 v{T}, 0x3b000000, v{T}
    v_add_f32 v{T+1}, v{T+2}, v{T+3}""")
    dpp_reduce([T, T+1] + extra)
    a(f"""v_mul_f32 v{T+1}, 0x3b000000, v{T+1}
    v_fma_f32 v{T+1}, -v{T}, v{T}, v{T+1}
    v_add_f32 v{T}, s42, v{T}
    v_max_f32 v{T+1}, 0, v{T+1}
    v_cvt_pk_bf16_f32 v{T}, v{T}, v{T+1}
    v_and_b32 v{T+1}, 0xffff0000, v{T}
    v_lshlrev_b32 v{T}, 16, v{T}
    v_add_f32 v{T+1}, 0x3727c5ac, v{T+1}
    v_readlane_b32 s42, v{T}, 63
    v_cvt_pk_bf16_f32 v{T+1}, 0, v{T+1}
    v_sqrt_f32 v{T+1}, v{T+1}""")
    for i in range(0, 4, 2): a(f"v_pk_add_f32 {V(D+i,2)}, {V(X+i,2)}, s[42:43] op_sel_hi:[1,0] neg_lo:[0,1] neg_hi:[0,1]")
    a(f"""v_cvt_pk_bf16_f32 v{T+1}, 0, v{T+1}
    v_rcp_f32 v{T+1}, v{T+1}""")
    for i in range(4, 8, 2): a(f"v_pk_add_f32 {V(D+i,2)}, {V(X+i,2)}, s[42:43] op_sel_hi:[1,0] neg_lo:[0,1] neg_hi:[0,1]")
    for i in range(4): a(f"v_cvt_pk_bf16_f32 v{D+i}, 0, v{D+i}")
    a(f"v_readlane_b32 s42, v{T+1}, 63")
    for i in range(4, 8): a(f"v_cvt_pk_bf16_f32 v{D+i}, 0, v{D+i}")
    for i in range(0, 8, 2): a(f"v_pk_mul_f32 {V(D+i,2)}, {V(D+i,2)}, s[42:43] op_sel_hi:[1,0]")
    pack(out, D)

XR = 4
X_, D_, T_, XN, X1, WR = 8, 16, 24, 28, 32, 36
XO = 36
vQA, vOA, vIDX = 1, 2, 3
Q, ZZ, ACC, S0, S1, KK, VV = 8, 12, 16, 32, 48, 64, 128
WKV = 64
WQR, WO = 64, 128
FOR = 224
GU, WDn = 40, 56

def wkv_dma(vt, sreg):
    a(f"""s_lshl_b32 s41, s{sH}, 12
    v_lshl_add_u32 v{vt}, v0, 4, s41
    s_mov_b32 m0, s{sreg}""")
    for k in range(4): a(f"global_load_lds_dwordx4 v{vt}, {P(sWK)} offset:{1024*k}")
    a(f"s_add_u32 m0, s{sreg}, 4096")
    for k in range(4): a(f"global_load_lds_dwordx4 v{vt}, {P(sWV)} offset:{1024*k}")
def wkv_tr(dst, vt, vt2, sreg):
    a(f"""v_lshrrev_b32 v{vt}, 4, v0
    v_and_b32 v{vt2}, 15, v0
    v_lshlrev_b32 v{vt2}, 3, v{vt2}
    v_lshl_add_u32 v{vt}, v{vt}, 8, v{vt2}
    v_add_u32 v{vt}, s{sreg}, v{vt}""")
    for k in range(4):
        for m in range(2):
            for hf in range(2):
                a(f"ds_read_b64_tr_b16 {V(dst+8*k+4*m+2*hf,2)}, v{vt} offset:{4096*m + 1024*k + 128*hf}")
        if k == 2: a("s_waitcnt lgkmcnt(4)")
def ffn_loads(GU=40):
    a(f"""s_lshl_b32 s41, s{sJ}, 15
    s_lshl_b32 s42, s{sH}, 13
    s_add_u32 s41, s41, s42
    s_add_u32 s41, s41, {WS_FS + 4096}
    v_lshl_add_u32 v2, v0, 4, s41""")
    for i in range(6): a(f"global_load_dwordx4 {V(GU+4*i,4)}, v2, {P(sWS)} offset:{1024*i-4096} sc1")
def gloads(v):
    for g in range(3): a(f"v_lshl_add_u32 v{v+g}, v0, 4, s{3+g}")
    for i in range(6): a(f"global_load_dwordx4 {V(40+4*i,4)}, v{v+(i>>1)}, {P(sWS)} offset:{4096*(i&1)-2048} sc1")
def pos2tok(dst, src):
    a(f"""s_lshl_b32 s{dst}, s{sC}, 3
    s_add_u32 s{dst}, s{dst}, s{src}
    s_add_u32 s{dst}, s{dst}, 8
    s_and_b32 s{dst}, s{dst}, 31
    s_andn2_b32 s43, s{sTOK}, 31
    s_add_u32 s{dst}, s{dst}, s43""")

a(f"""
s_cmp_ge_u32 s2, 256
s_cbranch_scc1 L_exit
s_load_dwordx16 s[8:23], s[0:1], 0
s_load_dwordx8 s[24:31], s[0:1], 64
s_load_dwordx2 s[32:33], s[0:1], 96
v_lshrrev_b32 v1, 6, v0
v_and_b32 v0, 63, v0
s_mov_b32 s{sL}, 0
v_readfirstlane_b32 s{sW}, v1
s_mov_b32 s{sLO}, 0x05040100
s_mov_b32 s{sHI}, 0x07060302
s_mov_b32 s{sF}, 0
s_and_b32 s41, s2, 7
s_lshl_b32 s41, s41, 3
s_bfe_u32 s42, s2, 0x30003
s_or_b32 s41, s41, s42
s_andn2_b32 s42, s2, 63
s_or_b32 s{sSLOT}, s41, s42
s_mov_b32 s{sSEL}, -1
s_and_b32 s{sJ}, s2, 7
s_lshl_b32 s{sJ}, s{sJ}, 5
s_lshr_b32 s41, s2, 3
s_add_u32 s{sJ}, s{sJ}, s41
s_and_b32 s{sH}, s{sW}, 3
s_mov_b32 s{sPB}, s2
{"s_mov_b32 s2, s%d" % sJ if XL else "s_nop 0"}
s_and_b32 s{sC}, s2, 3
s_lshl_b32 s{sTOK}, s2, 3
s_add_u32 s{sTOK}, s{sTOK}, s{sW}
s_lshl_b32 s41, s{sTOK}, 10
v_lshl_add_u32 v1, v0, 4, s41
v_mov_b64 v[12:13], -1
v_mov_b64 v[14:15], -1
s_cmp_lg_u32 s{sW}, 7
s_cbranch_scc1 S_z
v_lshlrev_b32 v2, 4, v0
v_add_u32 v2, {L_L}, v2
ds_write_b128 v2, v[12:15]
ds_write_b128 v2, v[12:15] offset:1024
ds_write_b128 v2, v[12:15] offset:2048
ds_write_b128 v2, v[12:15] offset:3072
v_mov_b64 v[8:9], 0
v_mov_b64 v[10:11], 0
ds_write_b128 v2, v[8:11] offset:{L_SC - L_L}
S_z:
""")
if TSON:
    for i in range(32): a(f"s_mov_b32 s{60+i}, 0")
TS(0)
a(f"""
s_waitcnt lgkmcnt(0)
s_mov_b32 s{sB}, s2
s_mov_b32 s{sSLOW}, 0
global_load_dwordx4 {V(XR,4)}, v1, {P(sX)}
s_load_dword s{sE}, {P(sWS)}, 0
s_barrier
s_cmp_ge_u32 s{sW}, 4
s_cbranch_scc1 S_noA
s_setprio 2
v_add_u32 v16, 4096, v1
global_load_dwordx4 {V(FOR,4)}, v16, {P(sX)}""")
for g in range(2):
    a(f"s_add_u32 s44, s{sH}, {8*g}")
    pos2tok(41, 44)
    a(f"""s_lshl_b32 s41, s41, 10
    s_add_u32 s41, s41, 2048
    v_lshl_add_u32 v{16+g}, v0, 4, s41""")
a(f"""s_lshl_b32 s98, s{sH}, 13
s_add_u32 s98, s98, {L_XN}
s_cmp_eq_u32 s{sH}, 3
s_cselect_b32 s98, {L_Q}, s98""")
wkv_dma(8, 98)
for i in range(4): a(f"global_load_dwordx4 {V(FOR+4+4*i,4)}, v{16+(i>>1)}, {P(sX)} offset:{4096*(i&1)-2048}")
a(f"""s_cmp_lg_u32 s{sW}, 3
s_cbranch_scc1 S_n3
s_mul_i32 s41, s{sSLOT}, {KVS}
s_add_u32 s41, s41, {WS_KV}
v_lshl_add_u32 v1, v0, 4, s41
v_add_u32 v3, {KVL}, v1
v_mov_b32 v16, 0x3f803f80
v_cmp_eq_u32 vcc, 32, v0
v_cndmask_b32 v16, 0, v16, vcc
v_cmp_gt_u32 vcc, 32, v0
v_cndmask_b32 v16, v16, v12, vcc
v_mov_b32 v17, v16
v_mov_b64 v[18:19], v[16:17]
s_mov_b32 exec_hi, 0xff
global_store_dwordx4 v1, v[16:19], {P(sWS)} sc1
global_store_dwordx4 v3, v[16:19], {P(sWS)} sc1
s_mov_b32 exec_hi, -1
s_lshl_b32 s41, s2, 7
s_add_u32 s41, s41, {WS_KEY}
s_lshl_b32 s42, s{sJ}, 7
s_add_u32 s42, s42, {WS_HY - 128}
v_mov_b32 v1, s41
v_mov_b32 v3, s42
v_cmp_gt_u32 vcc, 8, v0
v_cndmask_b32 v1, v3, v1, vcc
v_lshl_add_u32 v1, v0, 4, v1
s_mov_b64 exec, 0xffff
global_store_dwordx4 v1, v[12:15], {P(sWS)} sc1
s_mov_b64 exec, -1
s_waitcnt vmcnt(15)
s_branch R_P1
S_n3:""")
TSS(16)
a(f"""s_waitcnt vmcnt(12)
s_branch R_P1
S_noA:
s_cmp_lg_u32 s{sW}, 6
s_cbranch_scc1 H_stage
v_lshlrev_b32 v1, 4, v0
global_load_dwordx4 v[44:47], v1, {P(sWR)}
s_branch H_stage""")
def key_make():
    a(f"""v_cvt_pk_bf16_f32 v1, 0, v1
    v_ashrrev_i32 v2, 31, v1
    v_or_b32 v2, 0x80000000, v2
    v_xor_b32 v1, v1, v2
    v_and_b32 v1, 0xffff0000, v1
    s_sub_u32 s41, 2047, s{sTOK}
    v_or_b32 v1, s41, v1
    s_lshl_b32 s41, s{sF}, 3
    s_add_u32 s41, s41, {L_SC + SC_KEYS}
    v_mov_b32 v3, s41
    v_readlane_b32 s{sMYK}, v1, 63
    v_mov_b32 v2, 1
    s_mov_b32 exec_lo, 0
    s_mov_b32 exec_hi, 0x80000000
    ds_max_u32 v3, v1
    ds_add_rtn_u32 v2, v3, v2 offset:4
    ds_read_b32 v1, v3
    s_mov_b64 exec, -1""")
def key_pub():
    lb = a.newlabel("K_np")
    a(f"""s_lshl_b32 s41, s{sB}, 7
    s_lshl_b32 s42, s{sF}, 2
    s_add_u32 s41, s41, s42
    s_add_u32 s41, s41, {WS_KEY}
    v_mov_b32 v3, s41
    s_waitcnt lgkmcnt(0)
    v_readlane_b32 s6, v2, 63
    s_cmp_lg_u32 s6, 7
    s_cbranch_scc1 {lb}
    s_mov_b32 exec_lo, 0
    s_mov_b32 exec_hi, 0x80000000
    global_store_dword v3, v1, {P(sWS)} sc1
    s_mov_b64 exec, -1
    {lb}:
    v_mov_b32 v3, {L_SC}""")
a("R_P1:")
TS(1)
unpack(X_, XR)
ln(X_, D_, T_, XO)
a(f"""s_add_u32 s41, s{sW}, 8
v_xor_b32 v2, s41, v0
s_add_u32 s41, s{sW}, 24
s_lshl_b32 s41, s41, 10
s_add_u32 s41, s41, {L_XN}
v_lshl_add_u32 v2, v2, 4, s41
ds_write_b128 v2, {V(XO,4)}
s_cmp_eq_u32 s{sL}, 0
s_cbranch_scc1 S_l0
s_lshl_b32 s41, s{sTOK}, 10
s_add_u32 s41, s41, {WS_XN}
v_lshl_add_u32 v2, v0, 4, s41
s_cmp_ge_u32 s{sW}, 4
s_cbranch_scc1 R_nw
s_waitcnt vmcnt(1)
s_cmp_eq_u32 s6, 7
s_cbranch_scc1 R_nw
s_waitcnt vmcnt(0)
R_nw:
global_store_dwordx4 v2, {V(XO,4)}, {P(sWS)} sc1
s_cmp_ge_u32 s{sW}, 4
s_cbranch_scc1 H_B1
s_setprio 3""")
wkv_tr(WKV, 8, 9, 98)
a(f"""A_kvp:
v_and_b32 v8, 7, v0
v_add_u32 v8, 8, v8
v_lshrrev_b32 v9, 4, v0
v_xor_b32 v9, v9, v8
v_lshlrev_b32 v8, 10, v8
s_lshl_b32 s41, s{sH}, 8
s_add_u32 s41, s41, {L_XN + 16*1024}
v_add_u32 v8, s41, v8
v_xor_b32 v10, 4, v9
v_xor_b32 v11, 8, v9
v_xor_b32 v12, 12, v9
v_lshl_add_u32 v9, v9, 4, v8
v_lshl_add_u32 v10, v10, 4, v8
v_lshl_add_u32 v11, v11, 4, v8
v_lshl_add_u32 v12, v12, 4, v8
s_cmp_eq_u32 s{sL}, 0
s_cbranch_scc1 A_kv2
s_waitcnt lgkmcnt(0)
s_barrier
A_kv2:
ds_read_b128 v[40:43], v9
ds_read_b128 v[44:47], v10
ds_read_b128 v[48:51], v11
ds_read_b128 v[52:55], v12
s_lshl_b32 s41, s{sH}, 11
s_add_u32 s41, s41, {L_KVS}
v_lshl_add_u32 v8, v0, 4, s41
s_lshl_b32 s42, s{sL}, 2
v_add_u32 v9, s42, v3
v_mov_b32 v10, 1""")
for s in range(4):
    a(f"s_waitcnt lgkmcnt({3-s})")
    a(f"v_mfma_f32_16x16x32_bf16 v[56:59], {V(WKV+8*s,4)}, {V(40+4*s,4)}, {'0' if s==0 else 'v[56:59]'}")
    a(f"v_mfma_f32_16x16x32_bf16 v[60:63], {V(40+4*s,4)}, {V(WKV+8*s+4,4)}, {'0' if s==0 else 'v[60:63]'}")
a(f"""v_and_b32 v12, 3, v0
v_lshrrev_b32 v13, 2, v0
v_lshl_add_u32 v12, v12, 4, v13
v_and_b32 v13, 1, v0
v_lshrrev_b32 v14, 1, v0
v_lshl_add_u32 v13, v13, 4, v14
v_add_u32 v13, 48, v13
v_cmp_gt_u32 vcc, 32, v0
ds_write_b128 v8, v[56:59]
v_cndmask_b32 v12, v13, v12, vcc
ds_write_b128 v8, v[60:63] offset:1024
v_lshlrev_b32 v12, 4, v12
v_add_u32 v12, {L_KVS}, v12
s_mov_b64 exec, 1
ds_add_u32 v9, v10 offset:{SC_KVCNT}
s_mov_b64 exec, -1
s_cmp_lg_u32 s{sW}, 3
s_cbranch_scc1 A_nokv
s_mul_i32 s41, s{sL}, {KVL}
s_mul_i32 s42, s{sSLOT}, {KVS}
s_add_u32 s41, s41, s42
s_add_u32 s41, s41, {WS_KV}
v_lshl_add_u32 v8, v0, 3, s41
s_mov_b32 s{sCNT}, 0
A_fin:
ds_read_b32 v11, v9 offset:{SC_KVCNT}""")
for w in range(4): a(f"ds_read_b128 {V(40+4*w,4)}, v12 offset:{2048*w}")
a(f"""s_waitcnt lgkmcnt(0)
v_cmp_gt_u32 vcc, 4, v11""")
poll_guard("A_fin", "s_cbranch_vccz", "A_find", 8)
pkadd(40, 40, 44, 4); pkadd(48, 48, 52, 4); pkadd(40, 40, 48, 4)
pack(40, 40, 2)
a(f"""global_store_dwordx2 v8, v[40:41], {P(sWS)} sc1
A_nokv:
s_setprio 0""")
if not os.environ.get("PP"): TS(2)
def stage(src, off, temps):
    for f in range(8):
        t = temps[f % len(temps)]
        for i in range(4):
            a(f"v_perm_b32 v{t+i}, v{src+4*(2*i+1)+(f>>1)}, v{src+4*(2*i)+(f>>1)}, s{sHI if f&1 else sLO}")
        a(f"ds_write_b128 v1, {V(t,4)} offset:{off+1024*f}")
a(f"""s_cmp_lg_u32 s{sL}, 0
s_cbranch_scc1 R_cand
s_setprio 2
s_mov_b32 s45, 5
s_mov_b32 s3, s{sH}
s_branch {"S_f0" if E("FLN", 1) == 0 else "S_fl"}
S_l0:""")
TSS(17)
a(f"""v_mov_b32 v3, {L_SC}
s_waitcnt lgkmcnt(0)
s_mul_i32 s{sTAG}, s{sE}, 0x9e3779b1
s_add_u32 s{sTAG}, s{sTAG}, 0x7f4a7c15
s_mov_b32 s44, 0
s_mov_b32 s45, 1
s_add_u32 s3, s{sH}, 28
S_fl:
s_lshl_b32 s41, s44, 2
s_set_gpr_idx_on s41, gpr_idx(SRC0)
s_nop 1
v_mov_b32 v28, v{FOR}
v_mov_b32 v29, v{FOR+1}
v_mov_b32 v30, v{FOR+2}
v_mov_b32 v31, v{FOR+3}
s_nop 1
s_set_gpr_idx_off""")
unpack(40, 28)
ln(40, D_, T_, XO)
a(f"""s_and_b32 s42, s3, 15
v_xor_b32 v28, s42, v0
s_lshl_b32 s41, s3, 10
s_add_u32 s41, s41, {L_XN}
v_lshl_add_u32 v28, v28, 4, s41
ds_write_b128 v28, {V(XO,4)}
s_add_u32 s3, s3, 4
s_add_u32 s44, s44, 1
S_f0:
s_cmp_lg_u32 s3, {3 + 4*E("FLN", 1)}
s_cbranch_scc1 S_nf
s_lshl_b32 s41, s{sPB}, 7
s_add_u32 s41, s41, {WS_FLAG}
v_mov_b32 v28, s41
v_mov_b32 v29, s{sTAG}
s_waitcnt vmcnt(1)
s_mov_b64 exec, 1
global_store_dword v28, v29, {P(sWS)} sc1
s_mov_b64 exec, -1
S_nf:
s_cmp_lt_u32 s44, s45
s_cbranch_scc1 S_fl
s_cmp_eq_u32 s45, 5
s_cbranch_scc1 A_P2
s_cmp_eq_u32 s45, 2
s_cbranch_scc1 H_ret""")
TSS(18)
a(f"""s_waitcnt vmcnt(3)
s_cmp_eq_u32 s{sW}, 3
s_cbranch_scc1 S_w3
s_waitcnt vmcnt(0)
S_w3:""")
TSS(19)
wkv_tr(WKV, 8, 9, 98)
lds_inc(3, SC_B1, 8)
TSS(20)
lds_wait(3, SC_B1, 8, 4, 0)
TSS(21)
a(f"""s_setprio 3
s_branch A_kvp
H_B1:
s_waitcnt lgkmcnt(0)
s_barrier
s_setprio 2""")
a(f"""R_cand:
s_lshl_b32 s41, s{sF}, 3
v_add_u32 v8, s41, v3
ds_read_b32 v8, v8 offset:{SC_KEYS}
s_lshl_b32 s41, s{sF}, 19
s_lshl_b32 s42, s{sB}, 11
s_add_u32 s41, s41, s42
s_add_u32 s41, s41, {WS_CAND}
v_lshl_add_u32 v2, v0, 4, s41
s_waitcnt lgkmcnt(0)
v_readfirstlane_b32 s41, v8
s_mov_b32 s{sCAND}, 0
s_cmp_lg_u32 s41, s{sMYK}
s_cbranch_scc1 R_nocand
s_mov_b32 s{sCAND}, 1
global_store_dwordx4 v2, {V(XN,4)}, {P(sWS)} sc1
global_store_dwordx4 v2, {V(X1,4)}, {P(sWS)} offset:1024 sc1
R_nocand:""")
TSF(8)
a(f"""s_cmp_lg_u32 s{sF}, 0
s_cbranch_scc1 R_tail
s_cmp_ge_u32 s{sW}, 4
s_cbranch_scc1 H_gather""")
def key_reduce():
    dpp_reduce([8], "v_max_u32")
    a(f"""s_lshl_b32 s41, s{sF}, 4
    s_lshl_b32 s42, s{sH}, 2
    s_add_u32 s41, s41, s42
    v_add_u32 v9, s41, v3
    v_add_u32 v8, 1, v8
    s_mov_b32 exec_lo, 0
    s_mov_b32 exec_hi, 0x80000000
    ds_write_b32 v9, v8 offset:{SC_GK}
    s_mov_b64 exec, -1""")
def key_poll():
    l1 = a.newlabel("K_p")
    a(f"""s_lshl_b32 s42, s{sF}, 2
    s_lshl_b32 s41, s{sH}, 13
    s_add_u32 s42, s42, s41
    s_add_u32 s42, s42, {WS_KEY}
    v_lshl_add_u32 v9, v0, 7, s42
    s_mov_b32 s{sCNT}, 0
    s_mov_b32 s44, 0
    s_mov_b64 vcc, -1
    {l1}:
    s_mov_b64 exec, {"vcc" if E("MSK", 1) else "-1"}
    global_load_dword v8, v9, {P(sWS)} sc1
    s_mov_b64 exec, -1
    s_waitcnt vmcnt(0)
    v_cmp_eq_u32 vcc, -1, v8""")
    if E("SPEC", 1):
        a(f"""s_cbranch_vccz K_sd
        v_add_u32 v12, 1, v8""")
        dpp_reduce([12], "v_max_u32")
        a(f"""v_readlane_b32 s41, v12, 63
        s_cmp_eq_u32 s41, s44
        s_cbranch_scc1 K_sn
        s_mov_b32 s44, s41
        s_sub_u32 s41, s41, 1
        s_andn2_b32 s41, 0x7f8, s41
        s_lshl_b32 s41, s41, 8
        s_add_u32 s41, s41, {WS_CAND + 0x80000}
        v_lshl_add_u32 v10, v0, 5, s41
        global_load_dword v11, v10, {P(sWS)} sc1
        K_sn:
        s_add_u32 s{sCNT}, s{sCNT}, 1
        s_cmp_lt_u32 s{sCNT}, {POLLMAX}
        s_cbranch_scc1 {l1}
        K_sd:""")
    else:
        poll_guard(l1, "s_cbranch_vccz", "K_pd", 1, E("KR1", 2))
    key_reduce()
def key_get(sleep):
    l2 = a.newlabel("K_g")
    a(f"""s_lshl_b32 s41, s{sF}, 4
    v_add_u32 v10, s41, v3
    s_mov_b32 s{sCNT}, 0
    {l2}:""")
    a(f"""ds_read_b128 v[16:19], v10 offset:{SC_GK}
    s_waitcnt lgkmcnt(0)
    v_min3_u32 v8, v16, v17, v18
    v_min_u32 v8, v8, v19
    v_cmp_eq_u32 vcc, 0, v8""")
    poll_guard(l2, "s_cbranch_vccz", "K_gd", 8, sleep)
    a(f"""v_max3_u32 v8, v16, v17, v18
    v_max_u32 v8, v8, v19
    v_readfirstlane_b32 s{sKEY}, v8
    s_sub_u32 s{sKEY}, s{sKEY}, 1
    s_and_b32 s41, s{sKEY}, 0x7ff
    s_sub_u32 s{sSEL}, 2047, s41""")
a("A_P2:")
TSS(22)
a(f"""s_lshl_b32 s42, s{sL}, 2
v_add_u32 v9, s42, v3""")
lds_inc(9, SC_XNC, 8)
a(f"""s_mul_i32 s41, s{sL}, {KVL}
s_mul_i32 s42, s{sH}, {64*KVS}
s_add_u32 s41, s41, s42
s_add_u32 s41, s41, {WS_KV + 4*KVS}
v_bfe_u32 v14, v0, 3, 2
v_mul_u32_u24 v14, {KVS}, v14
v_and_b32 v15, 7, v0
v_lshl_add_u32 v14, v15, 5, v14
v_lshrrev_b32 v11, 5, v0
v_lshl_add_u32 v14, v11, 4, v14
v_add_u32 v14, s41, v14
v_and_b32 v15, 31, v0
v_min_u32 v12, 17, v15
v_cmp_eq_u32 vcc, 20, v15
v_cndmask_b32 v15, v12, 16, vcc
v_mul_u32_u24 v11, {KVS}, v11
v_lshl_add_u32 v15, v15, 4, v11
s_add_u32 s41, s41, 256
v_add_u32 v15, s41, v15
s_mov_b32 s{sORD}, 0x65432108
s_mov_b32 s{sORD+1}, 0x7
s_mov_b32 s{sWT}, 15
s_lshl_b32 s41, s{sH}, 13
s_cmp_eq_u32 s{sL}, 0
s_cselect_b32 s42, {WS_FLAG}, 0
s_cselect_b32 s43, 0, {WS_KEY}
s_add_u32 s41, s41, s42
s_add_u32 s41, s41, s43
v_lshl_add_u32 v10, v0, 7, s41
""")
def kv_base(p):
    a(f"""s_xor_b32 s41, s{sX4}, {p}
    s_mul_i32 s41, s41, {8*KVS}
    s_add_u32 s0, s{sWS}, s41
    s_addc_u32 s1, s{sWS+1}, 0""")
def kv_one(p, i):
    if i % 3 == 0:
        k = i // 3
        a(f"global_load_dwordx4 {V(KK+8*p+4*k,4)}, v14, s[0:1] offset:{4*KVS*k-4*KVS} sc1")
    else:
        j = i - 1 - i // 3
        a(f"global_load_dwordx4 {V(VV+16*p+4*j,4)}, v15, s[0:1] offset:{2*KVS*j-4*KVS} sc1")
def kv_pair(p):
    kv_base(p)
    for i in range(6): kv_one(p, i)
def kv_check(p, younger):
    fr = [KK+8*p, KK+8*p+4] + [VV+16*p+4*i for i in range(4)]
    if os.environ.get("P0"):
        a(f"""s_cmp_lg_u32 s{sL}, {os.environ["P0"]}
        s_cbranch_scc1 C_d{p}
        s_memtime s[92:93]
        s_waitcnt lgkmcnt(0)
        s_mov_b32 s{76+2*p}, s92
        s_waitcnt vmcnt({younger})
        s_memtime s[92:93]
        s_waitcnt lgkmcnt(0)
        s_mov_b32 s{77+2*p}, s92
        C_d{p}:""")
    a(f"""s_waitcnt vmcnt({younger})
    C_r{p}:
    v_max3_u32 v12, v{fr[0]}, v{fr[1]}, v{fr[2]}
    v_max3_u32 v13, v{fr[3]}, v{fr[4]}, v{fr[5]}
    v_max_u32 v12, v12, v13
    v_cmp_eq_u32 vcc, -1, v12
    s_cbranch_vccnz C_x{p}
    C_o{p}:
    s_cmp_eq_u32 s3, {p}
    s_cbranch_scc1 C_m{p}
    C_b{p}:""")
def kv_tail(p):
    a(f"""C_x{p}:
    s_add_u32 s{sCNT}, s{sCNT}, 1
    s_cmp_ge_u32 s{sCNT}, {POLLMAX}
    s_cbranch_scc1 C_o{p}""")
    a("s_mov_b64 s[98:99], s[0:1]")
    kv_pair(p)
    a(f"""s_mov_b64 s[0:1], s[98:99]
    s_waitcnt vmcnt(0)
    s_branch C_r{p}
    C_m{p}:
    v_mov_b32 v12, s5
    s_mov_b64 exec, s[6:7]
    s_set_gpr_idx_on s4, gpr_idx(SRC0,DST)
    s_nop 1
    v_and_b32 v{VV+16*p}, v{VV+16*p}, v12
    s_nop 1
    s_set_gpr_idx_off
    s_mov_b64 exec, -1
    s_nop 1
    s_branch C_b{p}""")
DEP = int(os.environ.get('DEP', '3'))
a(f"""s_and_b32 s{sX4}, s{sPB}, {4 if E("ROT", 3) == 3 else 0}
s_lshr_b32 s41, s{sPB}, 3
s_and_b32 s41, s41, {E("ROT", 3)}
s_or_b32 s{sX4}, s{sX4}, s41
{"s_andn2_b32 s%d, 7, s%d" % (sX4, sB) if E("OWNL", 0) else "s_nop 0"}
s_mov_b32 s{sCNT}, 0
s_cmp_lg_u32 s{sL}, 0
s_cbranch_scc1 A_nfl
s_setprio 0
s_sleep {E("FS", 8)}
A_flg:
global_load_dword v8, v10, {P(sWS)} sc1
s_waitcnt vmcnt(0)
v_cmp_ne_u32 vcc, s{sTAG}, v8""")
poll_guard("A_flg", "s_cbranch_vccz", "A_flgd", 1, 2)
a("s_branch A_nf2\nA_nfl:")
a(f"""s_mov_b32 s{sCNT}, 0
A_xw:
ds_read_b32 v12, v9 offset:{SC_XNC}
s_waitcnt lgkmcnt(0)
v_cmp_gt_u32 vcc, 8, v12
s_cbranch_vccz A_xwd
s_sleep 1
s_add_u32 s{sCNT}, s{sCNT}, 1
s_cmp_lt_u32 s{sCNT}, {E("XT", 100000)}
s_cbranch_scc1 A_xw
A_xwd:""")
a(f"global_load_dword v8, v10, {P(sWS)} sc1\nA_nf2:")
TS(3)
for p in range(DEP): kv_pair(p)
TSS(23)
a(f"""s_mov_b32 s3, 15
s_cmp_eq_u32 s{sL}, 0
s_cbranch_scc1 A_go
s_mov_b32 s{sCNT}, 0
s_waitcnt vmcnt({6*DEP})
s_branch A_kc
A_kp:
s_mov_b64 exec, {"vcc" if E("MSK", 1) else "-1"}
global_load_dword v8, v10, {P(sWS)} sc1
s_mov_b64 exec, -1
s_waitcnt vmcnt(0)
A_kc:
v_cmp_eq_u32 vcc, -1, v8""")
poll_guard("A_kp", "s_cbranch_vccz", "A_kpd", 1, E("KR0", 1))
key_reduce()
key_get(0)
if XL:
    a(f"""s_bfe_u32 s41, s{sSEL}, 0x50003
    s_lshl_b32 s41, s41, 6
    s_lshr_b32 s42, s{sSEL}, 8
    s_lshl_b32 s42, s42, 3
    s_or_b32 s41, s41, s42
    s_and_b32 s42, s{sSEL}, 7
    s_or_b32 s101, s41, s42""")
else:
    a(f"s_mov_b32 s101, s{sSEL}")
a(f"""s_bfe_u32 s4, s101, 0x20007
s_lshl_b32 s4, s4, 2
s_bfe_u32 s42, s{sSEL}, 0x20001
s_add_u32 s4, s4, s42
s_bitcmp1_b32 s{sSEL}, 0
s_mov_b32 s5, 0xffff0000
s_cselect_b32 s5, 0xffff, s5
s_bitcmp1_b32 s101, 6
s_cselect_b32 s6, 0, -1
s_cselect_b32 s7, -1, 0
s_lshr_b32 s41, s101, 9
s_bfe_u32 s42, s101, 0x30003
s_xor_b32 s42, s42, s{sX4}
s_cmp_eq_u32 s41, s{sH}
s_cselect_b32 s3, s42, 15
s_xor_b32 s41, s{sSEL}, s{sTOK}
s_lshr_b32 s41, s41, 5
s_cbranch_scc1 A_go
s_lshl_b32 s41, s{sC}, 3
s_sub_u32 s41, s{sSEL}, s41
s_sub_u32 s41, s41, 8
s_bfe_u32 s{sWT}, s41, 0x30002
s_or_b32 s41, s{sWT}, 1
s_max_u32 s41, s41, 4
s_xor_b32 s42, s41, s{sWT}
s_mov_b32 s43, 0
s_lshl_b32 s41, s41, 2
s_add_u32 s41, s41, 4
s_lshl_b64 s[44:45], s[42:43], s41
s_xor_b64 {P(sORD)}, {P(sORD)}, s[44:45]
s_lshl_b32 s41, s{sWT}, 2
s_add_u32 s41, s41, 4
s_lshl_b64 s[44:45], s[42:43], s41
s_xor_b64 {P(sORD)}, {P(sORD)}, s[44:45]
A_go:
s_setprio 0
s_lshl_b32 s42, s{sL}, 2
v_add_u32 v9, s42, v3""")
def att_addr():
    a(f"""v_bfe_u32 v1, v0, 3, 2
    v_mul_u32_u24 v1, {QSTR}, v1
    v_and_b32 v2, 7, v0
    v_lshl_add_u32 v1, v2, 5, v1
    v_lshrrev_b32 v2, 5, v0
    v_lshl_add_u32 v1, v2, 4, v1
    v_add_u32 v{vQA}, {L_Q}, v1
    s_lshl_b32 s41, s{sH}, 11
    s_add_u32 s41, s41, {L_SLOT}
    v_lshl_add_u32 v{vOA}, v0, 4, s41
    v_mov_b32 v{vIDX}, 0xdddddddd
    v_and_b32 v0, 31, v0
    s_lshl_b32 s41, s{sH}, 7
    s_add_u32 s41, s41, {L_L}
    v_lshl_add_u32 v0, v0, 2, s41""")
att_addr()
a(f"s_mov_b32 s{sCNT}, 0")
kv_check(0, 6*(DEP-1))
TS(4)
a(f"""s_bfe_u32 s41, s{sORD}, 0x40004
s_and_b32 s43, s41, 4
s_add_u32 s43, s43, 4""")
lds_wait(9, SC_QC, 10, "s43", 0)
a(f"""s_lshl_b32 s2, s{sL}, 2
s_add_u32 s2, s2, {L_SC + SC_QC}
s_mul_i32 s41, s41, {4*QSTR}
v_add_u32 v{Q}, s41, v{vQA}
ds_read_b128 {V(Q,4)}, v{Q}
s_mov_b32 s{sCNT}, 0""")
for i in range(0, 10, 2): a(f"v_mov_b64 {V(ACC+i,2)}, 0")
TS(5)
TC(0)
def smf(vfrag, pb): a(f"v_smfmac_f32_32x32x32_bf16 {V(ACC,16)}, {V(VV+4*vfrag,4)}, {V(pb,8)}, v{vIDX}")
def ex(base, lo, hi):
    for i in range(lo, hi): a(f"v_exp_f32 v{base+i}, v{base+i}")
def flush():
    a(f"""v_lshl_add_u32 v{ACC+10}, s41, 13, v{vOA}
    v_lshl_add_u32 v{ACC+11}, s41, 9, v0
    ds_write_b128 v{ACC+10}, {V(ACC,4)}
    ds_write_b128 v{ACC+10}, {V(ACC+4,4)} offset:1024
    ds_write_b32 v{ACC+11}, v{ACC+8}""")
a(f"""s_waitcnt lgkmcnt(0)
v_mfma_f32_32x32x16_bf16 {V(S0,16)}, {V(KK,4)}, {V(Q,4)}, 0""")
NT = 16
def att_pass(first):
    for kt in range(NT):
        cur, oth = (S0, S1) if kt % 2 == 0 else (S1, S0)
        lp = kt//2 + DEP
        ld = first and lp < 8
        def L(i):
            if ld: kv_one(lp, 3*(kt & 1) + i)
        if ld and kt % 2 == 0: kv_base(lp)
        ex(cur, 0, 2)
        if not (first and kt == 0): smf((2*kt - 1) % (2*NT), oth + 8)
        L(0)
        ex(cur, 2, 5)
        if kt == NT-1: a("s_waitcnt lgkmcnt(0)")
        if first and kt % 2 == 1 and kt < NT-1:
            p = (kt+1)//2
            kv_check(p, (6*(lp - p) - 2) if ld else 6*(7 - p))
        a(f"v_mfma_f32_32x32x16_bf16 {V(oth,16)}, {V(KK+4*((kt+1)%NT),4)}, {V(Q,4)}, 0")
        if first and kt == NT-3:
            a(f"""v_mov_b32 v13, s2
            ds_read_b32 v13, v13""")
        if first and kt == NT-2:
            a(f"""s_waitcnt lgkmcnt(0)
            v_cmp_gt_u32 vcc, 8, v13
            s_cbranch_vccnz A_q8
            A_q8b:""")
        if kt == NT-2:
            a(f"s_bfe_u32 s41, s{sORD}, 0x40008")
            if not first:
                a(f"""s_cmp_eq_u32 s41, s{sWT}
                s_cbranch_scc1 A_qwait
                A_qback:""")
            a(f"""s_mul_i32 s41, s41, {4*QSTR}
            v_add_u32 v{Q}, s41, v{vQA}
            ds_read_b128 {V(Q,4)}, v{Q}""")
        if kt == 0 and not first:
            a(f"s_and_b32 s41, s{sORD}, 15")
            ex(cur, 5, 12)
            flush()
            a(f"v_mfma_f32_32x32x8_f16 {V(ACC,16)}, {V(ZZ,2)}, {V(ZZ,2)}, 0")
            ex(cur, 12, 15)
            smf(0, cur)
            ex(cur, 15, 16)
        else:
            ex(cur, 5, 8)
            L(1)
            ex(cur, 8, 10)
            smf(2*kt, cur)
            ex(cur, 10, 13)
            L(2)
            ex(cur, 13, 16)
        if ld and lp == 7 and kt % 2 == 1:
            a(f"v_mov_b32 v12, {L_SC}")
            lds_inc(12, SC_KVD, 13)
att_pass(True)
a(f"""v_mov_b64 {V(ZZ,2)}, 0
s_lshr_b64 {P(sORD)}, {P(sORD)}, 4""")
if not os.environ.get('PP'): TS(12)
if TSON:
    a(f"""s_cmp_eq_u32 s{sL}, 0
    s_cselect_b32 s73, s{sCNT}, s73
    s_nop 0""")
if os.environ.get("AL"):
    a(".p2align 6")
    for _ in range(int(os.environ["AL"])): a("s_nop 0")
a("A_pass:")
att_pass(False)
if os.environ.get("PP"):
    a(f"""s_cmp_lg_u32 s{sL}, {os.environ.get("PP")}
    s_cbranch_scc1 A_ppx""")
    for d, q in ((86, 87), (87, 88), (88, 74), (74, 70), (70, 71), (71, 62), (62, 96)): a(f"s_mov_b32 s{d}, s{q}")
    a("A_ppx:")
a(f"""s_lshr_b64 {P(sORD)}, {P(sORD)}, 4
s_cmp_gt_u32 s{sORD}, 15
s_cbranch_scc1 A_pass""")
smf(2*NT-1, S1 + 8)
a(f"s_and_b32 s41, s{sORD}, 15")
flush()
TC(1)
TS(9)
a(f"""A_X:
v_mbcnt_lo_u32_b32 v0, -1, 0
v_mbcnt_hi_u32_b32 v0, -1, v0
s_waitcnt lgkmcnt(0)
s_barrier""")
TS(6)
a(f"""v_mov_b32 v9, {L_SC}
s_barrier
ds_read_b32 v9, v9 offset:{SC_BAD}
s_lshl_b32 s98, s{sH}, 13
s_add_u32 s98, s98, {L_WK1}
s_waitcnt lgkmcnt(0)
v_cmp_ne_u32 vcc, 0, v9
s_cbranch_vccnz A_slow
s_cmp_lg_u32 s{sL}, 0
s_cbranch_scc1 R_P4
v_mov_b64 v[28:29], -1
v_mov_b64 v[30:31], -1
s_lshl_b32 s41, s{sH}, 10
s_add_u32 s41, s41, {L_L}
v_lshl_add_u32 v2, v0, 4, s41
ds_write_b128 v2, v[28:31]""")
a(f"""R_P4:
v_lshrrev_b32 v3, 4, v0
v_and_b32 v2, 15, v0
v_lshlrev_b32 v2, 4, v2
v_lshl_add_u32 v3, v3, 9, v2
s_lshl_b32 s41, s{sW}, 11
s_add_u32 s41, s41, {L_ROW}
v_add_u32 v3, s41, v3
s_waitcnt lgkmcnt(0)
s_barrier
ds_read_b128 v[8:11], v3
ds_read_b128 v[16:19], v3 offset:16384
ds_read_b128 v[12:15], v3 offset:256
ds_read_b128 v[20:23], v3 offset:16640
s_mov_b32 s{sF}, s{sL}
s_mov_b32 s{sSLOW}, 0
v_lshlrev_b32 v2, 4, v0
v_add_u32 v2, {L_X2S}, v2
ds_read_b128 {V(WR,4)}, v2 offset:{L_SC + SC_WR - L_X2S}
s_cmp_lg_u32 s{sSEL}, s{sTOK}
s_cbranch_scc1 R_nx
ds_read_b128 {V(XR,4)}, v2
s_waitcnt lgkmcnt(0)
R_nx:""")
a(f"""s_lshl_b32 s41, s{sL}, 2
s_or_b32 s41, s41, s{sW}
s_cmp_ge_u32 s41, 4
s_cbranch_scc1 R_nd""")
wkv_dma(2, 98)
a("R_nd:")
unpack(24, XR)
a("s_waitcnt lgkmcnt(0)")
TS(7)
pkadd(8, 8, 16, 8)
for i in range(8): a(f"v_cvt_pk_bf16_f32 v{8+i}, 0, v{8+i}")
pkadd(8, 8, 24, 8)
pack(X1, 8)
unpack(X_, X1)
ln(X_, D_, T_, XN)
a(f"""v_dot2_f32_bf16 v1, v{XN}, v{WR}, 0
v_dot2_f32_bf16 v1, v{XN+1}, v{WR+1}, v1
v_dot2_f32_bf16 v1, v{XN+2}, v{WR+2}, v1
v_dot2_f32_bf16 v1, v{XN+3}, v{WR+3}, v1""")
dpp_reduce([1])
key_make()
a(f"""s_cmp_lg_u32 s{sL}, 0
s_cbranch_scc1 R_lastl""")
unpack(D_, XN)
pkadd(D_, D_, X_, 8)
pack(XR, D_)
a(f"""s_mov_b32 s{sL}, 1""")
key_pub()
a(f"""s_branch R_P1
R_lastl:""")
key_pub()
a(f"""s_barrier
s_branch R_cand
R_tail:""")
unpack(D_, XN)
unpack(X_, X1)
pkadd(D_, D_, X_, 8)
pack(XR, D_)
a(f"""s_lshl_b32 s41, s{sTOK}, 10
v_lshl_add_u32 v1, v0, 4, s41
s_cmp_lg_u32 s{sCAND}, 0
s_cbranch_scc1 R_noout
global_store_dwordx4 v1, {V(XR,4)}, {P(sOUT)}{OUTF}
R_noout:
s_cmp_ge_u32 s{sW}, 4
s_cbranch_scc1 H_FF2""")
key_poll()
a(f"""s_cmp_eq_u32 s{sCAND}, 0
s_cbranch_scc1 L_end""")
key_get(1)
a(f"""R_last:
s_cmp_eq_u32 s{sCAND}, 0
s_cbranch_scc1 L_end
s_cmp_eq_u32 s{sSEL}, s{sTOK}
s_cbranch_scc1 L_end
s_lshl_b32 s41, s{sTOK}, 10
v_lshl_add_u32 v1, v0, 4, s41
global_store_dwordx4 v1, {V(XR,4)}, {P(sOUT)}{OUTF}
s_branch L_end
A_qwait:
v_mov_b32 v14, {L_SC}""")
lds_wait(14, SC_QFIX, 15, 4, 1)
a(f"""s_mov_b32 s{sWT}, 15
s_branch A_qback""")
for p in range(8): kv_tail(p)
a("A_q8:\nv_mov_b32 v12, s2")
lds_wait(12, 0, 13, 8, 1)
a("s_branch A_q8b")

def qtr_addr():
    a(f"""v_lshrrev_b32 v12, 4, v0
    v_bfe_u32 v13, v0, 2, 2
    v_lshl_add_u32 v1, v12, 3, v13
    v_and_b32 v12, 1, v12
    v_lshl_add_u32 v12, v12, 2, v13
    s_lshl_b32 s41, s{sH}, 1
    v_xor_b32 v12, s41, v12
    v_and_b32 v13, 3, v0
    v_lshl_add_u32 v13, v12, 2, v13
    v_lshlrev_b32 v13, 3, v13
    v_lshl_add_u32 v1, v1, 8, v13""")
def coop(j):
    a(f"s_add_u32 m0, s4, {1024*j}")
    a(f"global_load_lds_dwordx4 v{50 + ((j>>1)&1)}, s[0:1]")
    a("s_add_u32 s0, s0, 4096\ns_addc_u32 s1, s1, 0")
a(f"""H_stage:
s_setprio 1
v_lshrrev_b32 v48, 2, v0
v_and_b32 v49, 3, v0
v_lshlrev_b32 v49, 4, v49
v_lshl_add_u32 v48, v48, 10, v49
s_lshl_b32 s41, s{sH}, 6
s_lshl_b32 s42, s{sC}, 8
s_add_u32 s41, s41, s42
v_add_u32 v48, s41, v48
s_lshl_b32 s5, s{sH}, 12
s_add_u32 s5, s5, {6*8192}""")
for q in range(4):
    a(f"""s_add_u32 s0, s{sWQ}, {32768*14 + 16384*q}
    s_addc_u32 s1, s{sWQ+1}, 0
    s_add_u32 m0, s5, {1024*q}
    global_load_lds_dwordx4 v48, s[0:1]""")
a(f"""v_lshrrev_b32 v49, 4, v0
v_lshlrev_b32 v50, 1, v49
v_xor_b32 v50, v50, v0
v_and_b32 v50, 15, v50
v_lshlrev_b32 v50, 4, v50
v_lshl_add_u32 v50, v49, 10, v50
v_add_u32 v50, s42, v50
v_xor_b32 v51, 128, v50
s_mul_i32 s41, s{sH}, 3
s_add_u32 s43, s41, 8
s_sub_u32 s41, s41, 6
s_cmp_lt_u32 s{sH}, 2
s_cselect_b32 s41, s43, s41
s_lshl_b32 s4, s41, 13
s_lshl_b32 s41, s41, 15
s_add_u32 s0, s{sWQ}, s41
s_addc_u32 s1, s{sWQ+1}, 0""")
for j in range(12): coop(j)
a(f"""v_lshrrev_b32 v12, 4, v0
v_bfe_u32 v13, v0, 2, 2
v_lshl_add_u32 v1, v12, 3, v13
v_and_b32 v13, 3, v0
v_lshlrev_b32 v13, 3, v13
v_lshl_add_u32 v1, v1, 6, v13
v_add_u32 v1, s5, v1
v_mov_b32 v3, {L_SC}
s_waitcnt lgkmcnt(0)
s_mul_i32 s{sTAG}, s{sE}, 0x9e3779b1
s_add_u32 s{sTAG}, s{sTAG}, 0x7f4a7c15""")
TSS(18)
a("s_waitcnt vmcnt(12)")
for k in range(2):
    for f in range(2):
        for hf in range(2): a(f"ds_read_b64_tr_b16 {V(WQR+48+8*k+4*f+2*hf,2)}, v1 offset:{k*2048 + 256*hf + 32*f}")
lds_inc(3, SC_C2, 8)
for j in range(12, 24): coop(j)
TSS(19)
lds_wait(3, SC_C2, 8, 4, 0)
a(f"""s_lshl_b32 s41, s{sH}, 14
s_add_u32 s41, s41, {6*32768}
s_add_u32 s0, s{sWQ}, s41
s_addc_u32 s1, s{sWQ+1}, 0
s_mov_b32 s4, s5""")
for j in range(4): coop(j)
a(f"s_add_u32 s44, s{sH}, 16")
pos2tok(41, 44)
a(f"""s_lshl_b32 s41, s41, 10
s_add_u32 s41, s41, 2048
v_lshl_add_u32 v1, v0, 4, s41
global_load_dwordx4 {V(FOR,4)}, v1, {P(sX)} offset:-2048
global_load_dwordx4 {V(FOR+4,4)}, v1, {P(sX)} offset:2048
s_cmp_lg_u32 s{sW}, 6
s_cbranch_scc1 H_st0
v_lshlrev_b32 v1, 4, v0
v_add_u32 v1, {L_SC + SC_WR}, v1
ds_write_b128 v1, v[44:47]
H_st0:
s_waitcnt vmcnt(2)""")
TSA(4)
a("s_setprio 2\ns_branch H_P2")
a(f"""H_gather:
v_xor_b32 v12, s{sH}, v0
v_xor_b32 v13, 4, v12
v_xor_b32 v14, 8, v12
v_xor_b32 v15, 12, v12
s_lshl_b32 s41, s{sH}, 10
s_add_u32 s41, s41, {L_XN}
v_lshl_add_u32 v12, v12, 4, s41
v_lshl_add_u32 v13, v13, 4, s41
v_lshl_add_u32 v14, v14, 4, s41
v_lshl_add_u32 v15, v15, 4, s41
s_mov_b32 s{sCNT}, 0
s_sleep {E('GS', 8)}
H_xg:""")
gloads(8)
a(f"""s_waitcnt vmcnt(0)
v_max3_u32 v16, v40, v44, v48
v_max3_u32 v17, v52, v56, v60
v_max_u32 v16, v16, v17
v_cmp_eq_u32 vcc, -1, v16""")
poll_guard("H_xg", "s_cbranch_vccz", "H_xgd", 1, E("GR", 0))
for i in range(6): a(f"ds_write_b128 v{12+(i&3)}, {V(40+4*i,4)} offset:{4096*i}")
a(f"""H_P2:
s_lshl_b32 s42, s{sL}, 2
s_add_u32 s42, s42, {L_SC}
v_mov_b32 v3, s42""")
lds_inc(3, SC_XNC, 12)
a(f"""v_and_b32 v1, 15, v0
v_lshrrev_b32 v2, 4, v0
v_xor_b32 v8, v2, v1
v_lshlrev_b32 v1, 10, v1
v_add_u32 v1, {L_XN}, v1
v_xor_b32 v9, 4, v8
v_xor_b32 v10, 8, v8
v_xor_b32 v11, 12, v8
v_lshl_add_u32 v8, v8, 4, v1
v_lshl_add_u32 v9, v9, 4, v1
v_lshl_add_u32 v10, v10, 4, v1
v_lshl_add_u32 v11, v11, 4, v1
v_and_b32 v2, 15, v0
v_mul_u32_u24 v2, {QSTR}, v2
v_lshrrev_b32 v12, 4, v0
v_lshl_add_u32 v2, v12, 3, v2
s_lshl_b32 s41, s{sH}, 6
s_add_u32 s41, s41, {L_Q}
v_add_u32 v2, s41, v2
s_mov_b32 s{sQM}, 0""")
qtr_addr()
lds_wait(3, SC_XNC, 12, 8, 0)
TS(3)
a(f"""s_cmp_lg_u32 s{sL}, 0
s_cbranch_scc1 H_qp
v_add_u32 v12, 0x10000, v1
v_xor_b32 v13, 32, v12""")
for k in range(6):
    for f in range(2):
        for hf in range(2): a(f"ds_read_b64_tr_b16 {V(WQR+8*k+4*f+2*hf,2)}, v{12+f} offset:{k*8192 + 1024*hf}")
    if k in (2, 4): a("s_waitcnt lgkmcnt(4)")
a("s_waitcnt lgkmcnt(4)\nH_qp:")
order = [14, 0, 15, 1, 8, 2, 9, 3, 10, 4, 11, 5, 12, 6, 13, 7]
def qbuf(idx): return (20 + 12*((idx//2) % 3)) if order[idx] < 8 else (56 + 4*((idx//2) % 2))
def qread(idx):
    s = order[idx]; b = qbuf(idx)
    a(f"ds_read_b128 {V(b,4)}, v{8+(s&3)} offset:{256*(s>>2)}")
    if s < 8:
        for hf in range(2): a(f"ds_read_b64_tr_b16 {V(b+4+2*hf,2)}, v1 offset:{8192*s + 1024*hf}")
        a(f"v_xor_b32 v{b+10}, 32, v1")
        for hf in range(2): a(f"ds_read_b64_tr_b16 {V(b+8+2*hf,2)}, v{b+10} offset:{8192*s + 1024*hf}")
qcnt = lambda i: 5 if order[i] < 8 else 1
AH = 3
for i in range(AH): qread(i)
for idx in range(16):
    if idx + AH < 16: qread(idx+AH)
    a(f"s_waitcnt lgkmcnt({sum(qcnt(j) for j in range(idx+1, min(idx+AH+1, 16)))})")
    s = order[idx]; b = qbuf(idx)
    for f in range(2):
        A_ = V(b+4+4*f,4) if s < 8 else V(WQR+8*(s-8)+4*f,4)
        d = V(12+4*f,4)
        a(f"v_mfma_f32_16x16x32_bf16 {d}, {A_}, {V(b,4)}, {'0' if idx==0 else d}")
a(f"""s_setprio 2
s_mov_b32 s42, {QSCALE}""")
for i in range(4): a(f"v_add_u32 v{8+i}, 0x4000, v{8+i}")
for i in range(0, 8, 2): a(f"v_pk_mul_f32 {V(12+i,2)}, {V(12+i,2)}, s[42:43] op_sel_hi:[1,0]")
pack(20, 12, 4)
a(f"""ds_write_b64 v2, v[20:21]
ds_write_b64 v2, v[22:23] offset:32""")
lds_inc(3, SC_QC, 12)
a(f"""s_cmp_eq_u32 s{sQM}, 2
s_cbranch_scc1 H_fx3
s_cmp_eq_u32 s{sQM}, 1
s_cbranch_scc1 H_qd""")
TS(2)
a(f"""v_add_u32 v2, {16*QSTR}, v2
s_mov_b32 s{sQM}, 1
s_cmp_lg_u32 s{sL}, 0
s_cbranch_scc1 H_q2
s_setprio {HLNP}
s_mov_b32 s44, 0
s_mov_b32 s45, 2
s_add_u32 s3, s{sH}, 16
s_waitcnt vmcnt(0)
s_branch S_fl
H_ret:""")
lds_inc(3, SC_XN2, 12)
lds_wait(3, SC_XN2, 12, 4, 1)
a(f"""H_q2:
s_setprio 0
s_branch H_qp
H_qd:""")
a(f"""s_cmp_eq_u32 s{sL}, 0
s_cbranch_scc1 H_prep
v_mov_b32 v3, {L_SC}
s_branch H_FFN
H_prep:""")
lds_wait(3, SC_KVD, 12, 4, 4)
a(f"""v_and_b32 v1, 15, v0
v_lshrrev_b32 v2, 4, v0
v_lshlrev_b32 v1, 4, v1
v_lshl_add_u32 v1, v2, 13, v1
s_lshl_b32 s41, s{sC}, 17
s_lshl_b32 s42, s{sH}, 8
s_add_u32 s41, s41, s42
s_add_u32 s41, s41, 4096
v_add_u32 v1, s41, v1""")
def wosrc(s): return 8 if s == 0 else WO + 32*(s-1)
for s in range(4):
    for j in range(8):
        a(f"global_load_dwordx4 {V(wosrc(s)+4*j,4)}, v1, {P(sWO)} offset:{1024*j-4096}")
    if s < 3: a("v_add_u32 v1, 0x8000, v1")
a(f"""s_min_u32 s43, s{sB}, 223
s_lshl_b32 s43, s43, 2
s_add_u32 s43, s43, s{sH}
s_and_b32 s44, s43, 31
s_lshr_b32 s45, s43, 5
v_lshrrev_b32 v2, 3, v0
v_and_b32 v3, 7, v0
s_mul_i32 s41, s44, {8*7168}
s_lshl_b32 s42, s45, 7
s_add_u32 s41, s41, s42
v_mul_u32_u24 v1, 7168, v2
v_lshl_add_u32 v1, v3, 4, v1
v_add_u32 v1, s41, v1
global_load_dwordx4 {V(GU,4)}, v1, {P(sWG)}
global_load_dwordx4 {V(GU+4,4)}, v1, {P(sWG)} offset:3584
global_load_dwordx4 {V(GU+8,4)}, v1, {P(sWU)}
global_load_dwordx4 {V(GU+12,4)}, v1, {P(sWU)} offset:3584
s_lshl_b32 s41, s45, 16
s_lshl_b32 s42, s44, 5
s_add_u32 s41, s41, s42
s_add_u32 s41, s41, 4096
v_lshlrev_b32 v1, 13, v2
v_lshl_add_u32 v1, v3, 2, v1
v_add_u32 v1, s41, v1""")
for r in range(8): a(f"global_load_dword v{WDn + 4*(r&1) + (r>>1)}, v1, {P(sWD)} offset:{1024*r-4096}")
a("s_waitcnt vmcnt(12)")
for s in (3, 2, 1, 0):
    if s == 3 and E("WP", 2): a("s_setprio 0")
    if s == 3 - E("WP", 2): a("s_setprio 2")
    src = wosrc(s); dst = WO + 32*s
    for f in range(8):
        for i in range(4):
            a(f"v_perm_b32 v{dst+4*f+i}, v{src+4*(2*i+1)+(f>>1)}, v{src+4*(2*i)+(f>>1)}, s{sHI if f&1 else sLO}")
a(f"""s_setprio 2
v_mov_b64 v[8:9], -1
v_mov_b64 v[10:11], -1
s_lshl_b32 s41, s{sB}, 13
s_lshl_b32 s42, s{sH}, 11
s_add_u32 s41, s41, s42
s_add_u32 s41, s41, {WS_XN}
v_lshl_add_u32 v1, v0, 4, s41
global_store_dwordx4 v1, v[8:11], {P(sWS)} sc1
global_store_dwordx4 v1, v[8:11], {P(sWS)} offset:1024 sc1
s_lshr_b32 s41, s{sH}, 1
s_lshl_b32 s41, s41, 19
s_and_b32 s42, s{sH}, 1
s_lshl_b32 s42, s42, 10
s_add_u32 s41, s41, s42
s_lshl_b32 s42, s{sB}, 11
s_add_u32 s41, s41, s42
s_add_u32 s41, s41, {WS_CAND}
v_lshl_add_u32 v1, v0, 4, s41
global_store_dwordx4 v1, v[8:11], {P(sWS)} sc1
s_cmp_ge_u32 s{sB}, 224
s_cbranch_scc1 H_bursts
s_waitcnt vmcnt(3)""")
for base in (GU, GU+8, WDn):
    for i in range(4): tr_pair(base+i, base+4+i, 12)
a(f"""v_lshlrev_b32 v2, 4, v2
v_lshl_add_u32 v2, v3, 15, v2
s_lshl_b32 s41, s45, 18
s_lshr_b32 s42, s44, 3
s_lshl_b32 s42, s42, 13
s_add_u32 s41, s41, s42
s_and_b32 s42, s44, 7
s_lshl_b32 s42, s42, 7
s_add_u32 s41, s41, s42
s_add_u32 s41, s41, {WS_FS}
v_add_u32 v1, s41, v2""")
for i in range(4): a(f"global_store_dwordx4 v1, {V(GU+4*i,4)}, {P(sWS)} offset:{1024*i} sc1")
a(f"""s_lshl_b32 s41, s44, 18
s_lshr_b32 s42, s45, 3
s_lshl_b32 s42, s42, 13
s_add_u32 s41, s41, s42
s_and_b32 s42, s45, 7
s_lshl_b32 s42, s42, 7
s_add_u32 s41, s41, s42
s_add_u32 s41, s41, {WS_FS + 4096}
v_add_u32 v1, s41, v2""")
for i in range(2): a(f"global_store_dwordx4 v1, {V(WDn+4*i,4)}, {P(sWS)} offset:{1024*i} sc1")
a("H_bursts:")
TS(5)
OF, AC = 8, 32
sSB, sLB = 44, 45
a(f"""s_lshr_b32 s41, s{sH}, 1
s_and_b32 s42, s{sH}, 1
s_lshl_b32 s{sSB}, s41, 13
s_lshl_b32 s43, s42, 10
s_add_u32 s{sSB}, s{sSB}, s43
s_add_u32 s{sSB}, s{sSB}, {L_SLOT}
s_lshl_b32 s{sLB}, s41, 9
s_add_u32 s{sLB}, s{sLB}, {L_L}
v_bfe_u32 v3, v0, 3, 2
v_mul_u32_u24 v3, {QSTR}, v3
v_and_b32 v8, 7, v0
v_lshl_add_u32 v3, v8, 5, v3
s_mul_i32 s43, s41, {4*QSTR}
s_add_u32 s43, s43, {L_O}
v_add_u32 v3, s43, v3
v_and_b32 v2, 15, v0
v_mul_u32_u24 v2, {QSTR}, v2
v_lshrrev_b32 v8, 4, v0
v_lshl_add_u32 v2, v8, 4, v2
v_add_u32 v2, {L_O}, v2
s_mul_i32 s{sOPB}, s{sL}, {OPL}
s_lshl_b32 s41, s{sH}, 12
s_add_u32 s{sOPB}, s{sOPB}, s41
s_add_u32 s{sOPB}, s{sOPB}, {WS_OP}
s_add_u32 s{sOTAG}, s{sTAG}, s{sL}
s_add_u32 s{sOTAG}, s{sOTAG}, 1""")
def corr(g):
    l0 = a.newlabel("H_c0"); l1 = a.newlabel("H_c1")
    a(f"""s_andn2_b32 s41, s{sL}, s{sSLOW}
    s_cbranch_scc0 {l0}
    v_lshrrev_b32 v28, 5, v0
    s_lshl_b32 s41, s{sH}, 5
    s_add_u32 s41, s41, {L_VS}
    v_lshl_add_u32 v28, v28, 4, s41
    ds_read_b128 v[8:11], v3 offset:{L_Q - L_O + 8*QSTR*g}
    ds_read_b128 v[12:15], v3 offset:{L_Q - L_O + 8*QSTR*g + 16}
    ds_read_b128 v[28:31], v28
    s_waitcnt lgkmcnt(1)
    v_dot2_f32_bf16 v1, v8, s{sKSL[0]}, 0""")
    for i in range(1, 8): a(f"v_dot2_f32_bf16 v1, v{8+i}, s{sKSL[i]}, v1")
    a(f"""v_exp_f32 v1, v1
    s_waitcnt lgkmcnt(0)
    v_and_b32 v1, 0xffff0000, v1
    v_pk_mul_f32 v[28:29], v[28:29], v[0:1] op_sel:[0,1] op_sel_hi:[1,1]
    v_pk_mul_f32 v[30:31], v[30:31], v[0:1] op_sel:[0,1] op_sel_hi:[1,1]
    s_branch {l1}
    {l0}:
    v_mov_b32 v1, 0
    v_mov_b64 v[28:29], 0
    v_mov_b64 v[30:31], 0
    {l1}:""")
def norm_pre(g):
    a(f"""v_and_b32 v10, 31, v0
    s_add_u32 s41, s{sLB}, {1024*g}
    v_lshl_add_u32 v10, v10, 2, s41
    v_lshl_add_u32 v24, v0, 4, s{sSB}""")
def normalize(g, sleep):
    if sleep:
        lb = a.newlabel("H_lw")
        a(f"""v_lshl_add_u32 v13, v0, 3, s{sLB}
        s_mov_b32 s{sCNT}, 0
        {lb}:
        ds_read_b32 v8, v13 offset:{1024*g}
        s_waitcnt lgkmcnt(0)
        v_cmp_eq_u32 vcc, -1, v8""")
        poll_guard(lb, "s_cbranch_vccz", "H_lwd", 4, sleep)
    a(f"""ds_read2_b32 v[8:9], v10 offset0:0 offset1:32
    ds_read2_b32 v[10:11], v10 offset0:64 offset1:96""")
    for w in range(4): a(f"ds_read_b128 {V(12+4*w,4)}, v24 offset:{16384*g + 2048*w}")
    a(f"""s_waitcnt lgkmcnt(4)
    v_pk_add_f32 v[8:9], v[8:9], v[10:11]
    v_add_f32 v8, v8, v9
    v_add_f32 v8, v8, v1
    v_rcp_f32 v9, v8
    s_waitcnt lgkmcnt(2)""")
    pkadd(12, 12, 16, 4)
    pkadd(12, 12, 28, 4)
    a(f"""v_lshrrev_b32 v11, 5, v0
    s_and_b32 s41, s{sH}, 1
    s_lshl_b32 s41, s41, 4
    v_lshl_add_u32 v11, v11, 3, v3
    s_waitcnt lgkmcnt(0)""")
    pkadd(20, 20, 24, 4)
    a("v_add_u32 v11, s41, v11")
    pkadd(12, 12, 20, 4)
    lb = a.newlabel("H_nb")
    a(f"""v_pk_mul_f32 v[12:13], v[12:13], v[8:9] op_sel:[0,1] op_sel_hi:[1,1]
    v_pk_mul_f32 v[14:15], v[14:15], v[8:9] op_sel:[0,1] op_sel_hi:[1,1]
    v_cvt_pk_bf16_f32 v16, v12, v13
    v_cvt_pk_bf16_f32 v17, v14, v15
    ds_write_b64 v11, v[16:17] offset:{8*QSTR*g}
    v_pk_add_f32 v[12:13], v[12:13], v[14:15]
    v_add_f32 v12, v12, v13
    v_fma_f32 v8, v12, 0, v8
    v_subrev_u32 v8, {(127-80)<<23}, v8
    v_cmp_lt_u32 vcc, {(0 if (FORCE>>g)&1 else (180<<23))}, v8
    s_cbranch_vccz {lb}
    s_cmp_lg_u32 s{sSLOW}, 0
    s_cbranch_scc1 {lb}
    v_mov_b32 v8, {L_SC}
    v_mov_b32 v9, 1
    ds_write_b32 v8, v9 offset:{SC_BAD}
    {lb}:""")
def hsync(idx, bad=True):
    lb = a.newlabel("H_hs")
    a(f"""s_lshl_b32 s41, s{sL}, 4
    s_add_u32 s41, s41, {L_SC}
    v_mov_b32 v8, s41
    v_mov_b32 v11, {L_SC}""")
    lds_inc(8, SC_OCNT + 4*idx, 9)
    lds_wait(8, SC_OCNT + 4*idx, 9, 4, 3)
    if bad:
        a(f"""ds_read_b32 v9, v11 offset:{SC_BAD}
        s_waitcnt lgkmcnt(0)
        v_cmp_ne_u32 vcc, 0, v9
        s_cbranch_vccnz H_toX""")
def oproj(first):
    if first: a("s_setprio 0")
    for s in range(4):
        a(f"s_waitcnt lgkmcnt({3-s})")
        for f in range(8):
            a(f"v_mfma_f32_16x16x32_bf16 {V(AC+4*f,4)}, {V(OF+4*s,4)}, {V(WO+32*s+4*f,4)}, {'0' if (s==0 and first) else V(AC+4*f,4)}")
def osend(bi):
    if bi == 0 or B1P0: a("s_setprio 0")
    a("s_waitcnt lgkmcnt(0)")
    def st(f):
        if bi == 1: a("s_mov_b32 exec_hi, 0")
        a(f"global_store_dwordx4 v24, {V(AC+4*f,4)}, {P(sWS)} offset:{512*f} sc1")
        if bi == 1: a("s_mov_b32 exec_hi, -1")
    for f in range(8):
        for s in range(4):
            a(f"v_mfma_f32_16x16x32_bf16 {V(AC+4*f,4)}, {V(OF+4*s,4)}, {V(WO+32*s+4*f,4)}, {'0' if s==0 else V(AC+4*f,4)}")
        if f >= 2: st(f-2)
    st(6); st(7)
    if bi == 0 or B1P0: a("s_setprio 2")
def flag_poll(vaddr, sleep):
    lp = a.newlabel("H_fp")
    a(f"""s_mov_b32 s{sCNT}, 0
    {lp}:""")
    a(f"""global_load_dword v8, v{vaddr}, {P(sWS)} sc1
    s_waitcnt vmcnt(0)
    v_cmp_ne_u32 vcc, s{sOTAG}, v8""")
    poll_guard(lp, "s_cbranch_vccz", "H_fpd", 1, sleep)
def send_addr(bi):
    a(f"""v_lshrrev_b32 v26, 5, v0
    s_add_u32 s41, s{sC}, {1 + 2*bi}
    v_add_u32 v25, s41, v26
    v_and_b32 v25, 3, v25
    v_mul_u32_u24 v24, 49152, v25
    v_lshl_add_u32 v24, v26, 14, v24
    v_and_b32 v26, 31, v0
    v_lshl_add_u32 v24, v26, 4, v24
    s_andn2_b32 s43, s{sB}, 3
    s_mul_i32 s41, s43, 49152
    s_add_u32 s41, s41, s{sOPB}
    s_add_u32 s41, s41, {32768*bi}
    v_add_u32 v24, s41, v24""")
a(f"""s_add_u32 s41, s{sC}, 3
s_and_b32 s41, s41, 3
s_andn2_b32 s43, s{sB}, 3
s_add_u32 s41, s41, s43
s_mul_i32 s41, s41, 49152
s_add_u32 s41, s41, s{sOPB}
s_add_u32 s41, s41, 32768
v_lshl_add_u32 v24, v0, 4, s41
v_mov_b64 v[8:9], -1
v_mov_b64 v[10:11], -1""")
for f in range(4): a(f"global_store_dwordx4 v24, v[8:11], {P(sWS)} offset:{1024*f} sc1")
if E("NP", 0): a("s_setprio 0")
corr(0); norm_pre(0); normalize(0, 16); corr(1); norm_pre(1)
if E("NP", 0): a("s_setprio 2")
normalize(1, 8)
hsync(0)
for s_ in range(4): a(f"ds_read_b128 {V(OF+4*s_,4)}, v2 offset:{64*s_}")
send_addr(0)
a(f"""s_add_u32 s41, s{sC}, 1
v_add_u32 v25, s41, v0
v_and_b32 v25, 3, v25
v_lshlrev_b32 v25, 11, v25
v_lshl_add_u32 v25, v0, 9, v25
s_lshl_b32 s41, s43, 11
s_lshl_b32 s42, s{sH}, 7
s_add_u32 s41, s41, s42
s_add_u32 s41, s41, {WS_OPF}
v_add_u32 v25, s41, v25
v_mov_b32 v27, s{sOTAG}""")
osend(0)
a(f"""s_waitcnt vmcnt(0)
s_mov_b64 exec, 7
global_store_dword v25, v27, {P(sWS)} sc1
s_mov_b64 exec, -1""")
TS(6)
def recv01(nonblock=False):
    a(f"""v_lshrrev_b32 v27, 5, v0
    v_and_b32 v26, 31, v0
    s_mul_i32 s41, s{sB}, 49152
    s_add_u32 s41, s41, s{sOPB}
    v_lshl_add_u32 v26, v26, 4, s41
    v_lshl_add_u32 v24, v27, 14, v26
    s_lshl_b32 s41, s{sB}, 11
    s_lshl_b32 s42, s{sH}, 7
    s_add_u32 s41, s41, s42
    s_add_u32 s41, s41, {WS_OPF}
    v_min_u32 v25, 2, v0
    v_lshl_add_u32 v25, v25, 9, s41""")
    if nonblock:
        a(f"""v_lshlrev_b32 v13, 4, v0
        v_add_u32 v13, {L_L + 2048}, v13
        s_mov_b32 s{sCNT}, 0
        H_nbp:
        ds_read_b32 v8, v13
        s_waitcnt lgkmcnt(0)
        v_cmp_eq_u32 vcc, -1, v8
        s_cbranch_vccz H_b1
        s_add_u32 s{sCNT}, s{sCNT}, 1
        s_cmp_ge_u32 s{sCNT}, {POLLMAX}
        s_cbranch_scc1 H_b1
        s_sleep 4
        global_load_dword v8, v25, {P(sWS)} sc1
        s_waitcnt vmcnt(0)
        v_cmp_ne_u32 vcc, s{sOTAG}, v8
        s_cbranch_vccnz H_nbp""")
    else:
        flag_poll(25, 2)
    if nonblock:
        a(f"""s_lshl_b32 s41, s{sH}, 13
        s_add_u32 s41, s41, {L_SLOT}""")
        for f in range(8):
            a(f"""s_add_u32 m0, s41, {512*f}
            global_load_lds_dwordx4 v24, {P(sWS)} offset:{512*f} sc1""")
    else:
        for f in range(8): a(f"global_load_dwordx4 {V(AC+4*f,4)}, v24, {P(sWS)} offset:{512*f} sc1")
a(f"s_mov_b32 s{sCAND}, 0")
recv01(True)
a(f"s_mov_b32 s{sCAND}, 1\nH_b1:")
corr(2); norm_pre(2); normalize(2, 4)
hsync(1)
for s_ in range(4): a(f"ds_read_b128 {V(OF+4*s_,4)}, v2 offset:{64*s_ + 16*QSTR}")
send_addr(1)
osend(1)
TS(9)
a(f"""s_cmp_lg_u32 s{sCAND}, 0
s_cbranch_scc1 H_r2""")
recv01()
a(f"""H_r2:
v_lshrrev_b32 v27, 5, v0
v_and_b32 v26, 31, v0
s_mul_i32 s41, s{sB}, 49152
s_add_u32 s41, s41, s{sOPB}
s_add_u32 s41, s41, 32768
v_lshl_add_u32 v26, v26, 4, s41
v_lshl_add_u32 v26, v27, 11, v26
s_cmp_lg_u32 s{sL}, 0
s_cbranch_scc1 H_npf
s_lshl_b32 s41, s{sH}, 12
v_lshl_add_u32 v8, v0, 6, s41
global_load_dword v28, v8, {P(sWK)}
global_load_dword v29, v8, {P(sWV)}
H_npf:
s_mov_b32 s{sCNT}, 0
s_sleep {E("PS", 24)}
H_p2:""")
for f in range(4): a(f"global_load_dwordx4 {V(8+4*f,4)}, v26, {P(sWS)} offset:{512*f} sc1")
a(f"""s_waitcnt vmcnt(0)
v_max3_u32 v24, v8, v12, v16
v_max_u32 v24, v24, v20
v_cmp_eq_u32 vcc, -1, v24""")
poll_guard("H_p2", "s_cbranch_vccz", "H_p2d", 1, 4)
a(f"""s_cmp_eq_u32 s{sCAND}, 0
s_cbranch_scc1 H_r3
s_lshl_b32 s41, s{sH}, 13
s_add_u32 s41, s41, {L_SLOT}
v_lshl_add_u32 v24, v0, 4, s41""")
for f in range(8): a(f"ds_read_b128 {V(AC+4*f,4)}, v24 offset:{1024*f}")
a("s_waitcnt lgkmcnt(0)\nH_r3:\ns_mov_b32 exec_hi, 0")
pkadd(AC, AC, 8, 16)
a("s_mov_b32 exec_lo, 0\ns_mov_b32 exec_hi, -1")
pkadd(AC+16, AC+16, 8, 16)
a("s_mov_b64 exec, -1")
a(f"""s_cmp_lg_u32 s{sL}, 0
s_cbranch_scc1 H_nwf
""")
for g in range(3):
    a(f"s_add_u32 s6, s{sH}, {8*g}")
    pos2tok(41, 6)
    a(f"""s_lshl_b32 s41, s41, 10
    s_add_u32 s{3+g}, s41, {WS_XN + 2048}""")
a("H_nwf:")
TS(10)
a(f"""v_and_b32 v8, 8, v0
v_cmp_eq_u32 vcc, 0, v8
v_lshrrev_b32 v8, 4, v0
v_lshlrev_b32 v8, 4, v8
v_add_u32 v8, {L_SC + SC_ZERO - 24*QSTR}, v8
v_cndmask_b32 v2, v8, v2, vcc""")
corr(3)
norm_pre(3)
a("s_barrier")
normalize(3, 0)
a(f"""v_mov_b32 v24, {L_SC}
s_waitcnt lgkmcnt(0)
s_barrier
ds_read_b32 v24, v24 offset:{SC_BAD}""")
for s_ in range(4): a(f"ds_read_b128 {V(OF+4*s_,4)}, v2 offset:{64*s_ + 24*QSTR}")
a(f"""v_lshrrev_b32 v26, 4, v0
v_and_b32 v25, 15, v0
v_lshlrev_b32 v25, 4, v25
v_lshl_add_u32 v25, v26, 13, v25
s_lshl_b32 s41, s{sH}, 9
s_add_u32 s41, s41, {L_ROW}
v_add_u32 v1, s41, v25
s_waitcnt lgkmcnt(4)
v_cmp_ne_u32 vcc, 0, v24
s_cbranch_vccnz H_slow""")
def fm(f, s_): a(f"v_mfma_f32_16x16x32_bf16 {V(AC+4*f,4)}, {V(OF+4*s_,4)}, {V(WO+32*s_+4*f,4)}, {V(AC+4*f,4)}")
def rw(half, i, t):
    for f in (0, 2):
        r0 = AC + 4*(4*half+f) + (i & 2); r1 = r0 + 4
        a(f"v_pk_mov_b32 {V(t+f,2)}, {V(r0,2)}, {V(r1,2)} op_sel:[{i&1},{i&1}]")
    a(f"ds_write_b128 v1, {V(t,4)} offset:{2048*i + 256*half}")
for s_ in range(4):
    a(f"s_waitcnt lgkmcnt({3-s_})")
    for f in range(4): fm(f, s_)
seq = [(f, s_) for s_ in range(4) for f in range(4, 8)]
for j, (f, s_) in enumerate(seq):
    fm(f, s_)
    if j in (7, 10, 13, 15): rw(0, (7, 10, 13, 15).index(j), 24 + 4*((7, 10, 13, 15).index(j) & 1))
for i in range(4): rw(1, i, 8 + 4*i)
a("s_setprio 0\ns_branch R_P4")
a("H_FF2:")
for i in range(0, 24, 2): a(f"v_mov_b64 {V(GU+i,2)}, {V(64+i,2)}")
a("H_FFN:")
key_get(1)
a(f"""s_cmp_lg_u32 s{sF}, 0
s_cbranch_scc1 H_nl""")
ffn_loads()
a("H_nl:")
a(f"""s_lshr_b32 s41, s{sSEL}, 3
s_lshl_b32 s41, s41, 11
s_lshl_b32 s42, s{sF}, 19
s_add_u32 s41, s41, s42
s_add_u32 s41, s41, {WS_CAND}
s_lshl_b32 s42, s{sH}, 8
s_add_u32 s42, s42, s41
v_lshl_add_u32 v2, v0, 2, s42
s_lshl_b32 s42, s{sJ}, 2
s_add_u32 s42, s42, s41
v_mov_b32 v9, s42
s_lshl_b32 s42, s{sF}, 2
v_add_u32 v37, s42, v3
s_mov_b32 s{sCNT}, 0""")
TSF(11)
a(f"""H_xs:
global_load_dword v8, v2, {P(sWS)} sc1
global_load_dword v38, v9, {P(sWS)} sc1
global_load_dword v39, v9, {P(sWS)} offset:1024 sc1
s_waitcnt vmcnt(0)
v_max3_u32 v10, v8, v38, v39
v_cmp_eq_u32 vcc, -1, v10""")
poll_guard("H_xs", "s_cbranch_vccz", "H_xsd")
a(f"""s_cmp_ge_u32 s{sJ}, 224
s_cbranch_scc1 H_down""")
for i in range(16): a(f"v_dot2_f32_bf16 v{GU+i}, v{GU+i}, v8, 0")
for c in range(8): a(f"v_permlane32_swap_b32 v{GU+c}, v{GU+8+c}")
pkadd(GU, GU, GU+8, 8)
for c in range(4): a(f"v_permlane16_swap_b32 v{GU+c}, v{GU+4+c}")
pkadd(GU, GU, GU+4, 4)
for m in ("row_ror:8", "row_ror:4", "row_ror:2", "row_ror:1"):
    for c in range(4): a(f"v_add_f32_dpp v{GU+c}, v{GU+c}, v{GU+c} {m} row_mask:0xf bank_mask:0xf")
a(f"""v_lshrrev_b32 v2, 4, v0
s_lshl_b32 s41, s{sH}, 6
s_add_u32 s41, s41, {L_SC + SC_FACC}
v_lshl_add_u32 v2, v2, 4, s41
v_mov_b32 v9, 1
s_mov_b32 exec_lo, 0x00010001
s_mov_b32 exec_hi, 0x00010001
ds_write_b128 v2, {V(GU,4)}
s_mov_b64 exec, 1
ds_add_rtn_u32 v10, v37, v9 offset:{SC_FCNT}
s_mov_b64 exec, -1
v_and_b32 v2, 1, v0
v_bfe_u32 v9, v0, 1, 2
v_lshlrev_b32 v9, 2, v9
v_lshl_add_u32 v9, v2, 4, v9
v_add_u32 v9, {L_SC + SC_FACC}, v9
s_waitcnt lgkmcnt(0)
v_readfirstlane_b32 s42, v10
s_cmp_lg_u32 s42, 3
s_cbranch_scc1 H_down""")
for w in range(4): a(f"ds_read2_b32 {V(12+2*w,2)}, v9 offset0:{16*w} offset1:{16*w+8}")
a(f"""s_lshl_b32 s41, s{sJ}, 7
s_lshl_b32 s42, s{sF}, 4
s_add_u32 s41, s41, s42
s_add_u32 s41, s41, {WS_HY}
v_lshl_add_u32 v2, v0, 1, s41
s_waitcnt lgkmcnt(0)
v_pk_add_f32 v[12:13], v[12:13], v[14:15]
v_pk_add_f32 v[16:17], v[16:17], v[18:19]
v_pk_add_f32 v[12:13], v[12:13], v[16:17]
v_cvt_pk_bf16_f32 v12, v12, v13
v_and_b32 v13, 0xffff0000, v12
v_lshlrev_b32 v12, 16, v12
v_mul_f32 v14, 0xbfb8aa3b, v12
v_exp_f32 v14, v14
v_add_f32 v14, 1.0, v14
v_rcp_f32 v14, v14
v_mul_f32 v12, v12, v14
v_cvt_pk_bf16_f32 v12, v12, v12
v_lshlrev_b32 v12, 16, v12
v_mul_f32 v12, v12, v13
v_cvt_pk_bf16_f32 v12, v12, v12
s_mov_b64 exec, 0xff
global_store_short v2, v12, {P(sWS)} sc1
s_mov_b64 exec, -1
H_down:
s_lshl_b32 s41, s{sH}, 6
v_add_u32 v1, s41, v0
v_min_u32 v2, 223, v1
s_lshl_b32 s42, s{sF}, 4
s_add_u32 s42, s42, {WS_HY}
v_lshl_add_u32 v2, v2, 7, s42
s_mov_b32 s{sCNT}, 0""")
TSF(12)
a(f"""s_cmp_lg_u32 s{sF}, 0
s_cbranch_scc1 H_nkw""")
a(f"s_sleep {24-HS1}\nH_nkw:")
if HS1: a(f"s_sleep {HS1}")
a(f"""s_mov_b32 s{sCNT}, 0
s_mov_b64 vcc, -1
H_hp:
s_mov_b64 exec, {"vcc" if E("MSK", 1) else "-1"}
global_load_dwordx4 v[12:15], v2, {P(sWS)} sc1
s_mov_b64 exec, -1
s_waitcnt vmcnt(0)
v_max3_u32 v9, v12, v13, v14
v_max_u32 v9, v9, v15
v_cmp_eq_u32 vcc, -1, v9""")
poll_guard("H_hp", "s_cbranch_vccz", "H_hpd", 1, E("HR", 3))
TSF(13)
a(f"""v_dot2_f32_bf16 v8, v{WDn}, v12, 0
v_dot2_f32_bf16 v9, v{WDn+4}, v12, 0""")
for i in range(1, 4):
    a(f"v_dot2_f32_bf16 v8, v{WDn+i}, v{12+i}, v8")
    a(f"v_dot2_f32_bf16 v9, v{WDn+4+i}, v{12+i}, v9")
a(f"""v_cmp_gt_u32 vcc, 224, v1
v_cndmask_b32 v8, 0, v8, vcc
v_cndmask_b32 v9, 0, v9, vcc
v_permlane32_swap_b32 v8, v9
v_add_f32 v8, v8, v9""")
for m in ("row_ror:8", "row_ror:4", "row_ror:2", "row_ror:1"):
    a(f"v_add_f32_dpp v8, v8, v8 {m} row_mask:0xf bank_mask:0xf")
a(f"""v_add_f32_dpp v8, v8, v8 row_bcast:15 row_mask:0xa bank_mask:0xf
v_lshrrev_b32 v2, 5, v0
s_lshl_b32 s41, s{sH}, 3
s_add_u32 s41, s41, {L_SC + SC_DACC}
v_lshl_add_u32 v2, v2, 2, s41
v_mov_b32 v9, 1
s_mov_b32 exec_lo, 0x80000000
s_mov_b32 exec_hi, 0x80000000
ds_write_b32 v2, v8
s_mov_b64 exec, 1
ds_add_rtn_u32 v12, v37, v9 offset:{SC_DCNT}
s_mov_b64 exec, -1
s_lshr_b32 s41, s{sKEY}, 16
s_and_b32 s42, s41, 0x7fff
s_xor_b32 s43, s41, 0xffff
s_bitcmp1_b32 s41, 15
s_cselect_b32 s41, s42, s43
s_lshl_b32 s41, s41, 16
v_mov_b32 v11, s41
v_mul_f32 v11, 0xbfb8aa3b, v11
v_exp_f32 v11, v11
v_add_f32 v11, 1.0, v11
v_rcp_f32 v11, v11
v_cvt_pk_bf16_f32 v11, v11, v11
v_lshlrev_b32 v11, 16, v11
s_waitcnt lgkmcnt(0)
v_readfirstlane_b32 s42, v12
s_cmp_lg_u32 s42, 3
s_cbranch_scc1 H_ffd
ds_read_b128 v[12:15], v3 offset:{SC_DACC}
ds_read_b128 v[16:19], v3 offset:{SC_DACC+16}
s_waitcnt lgkmcnt(0)
v_pk_add_f32 v[12:13], v[12:13], v[14:15]
v_pk_add_f32 v[16:17], v[16:17], v[18:19]
v_pk_add_f32 v[8:9], v[12:13], v[16:17]""")
pack(12, 8, 1); unpack(8, 12, 1)
a("v_mul_f32 v8, v8, v11\nv_mul_f32 v9, v9, v11")
pack(12, 8, 1); unpack(8, 12, 1); unpack(14, 38, 1)
a("v_add_f32 v8, v8, v14\nv_add_f32 v9, v9, v15")
pack(12, 8, 1); unpack(8, 12, 1); unpack(14, 39, 1)
a("v_add_f32 v8, v8, v14\nv_add_f32 v9, v9, v15")
pack(12, 8, 1)
a(f"""s_mov_b64 exec, 1
s_cmp_lg_u32 s{sF}, 0
s_cbranch_scc1 H_fo
s_lshl_b32 s41, s{sJ}, 7
s_add_u32 s41, s41, {WS_HY + 32}
v_mov_b32 v2, s41
global_store_dword v2, v12, {P(sWS)} sc1
s_branch H_fo2
H_fo:
s_lshl_b32 s41, s{sSEL}, 10
s_lshl_b32 s42, s{sJ}, 2
s_add_u32 s41, s41, s42
v_mov_b32 v2, s41
global_store_dword v2, v12, {P(sOUT)}{OUTF}
H_fo2:
s_mov_b64 exec, -1
H_ffd:
s_cmp_lg_u32 s{sF}, 0
s_cbranch_scc1 R_last""")
a(f"""s_lshl_b32 s41, s{sH}, 13
s_add_u32 s41, s41, {WS_HY + 32}
v_lshl_add_u32 v1, v0, 7, s41
s_lshl_b32 s41, s{sH}, 8
s_add_u32 s41, s41, {L_X2S}
v_lshl_add_u32 v2, v0, 2, s41
s_mov_b32 s{sCNT}, 0
s_sleep 8
s_mov_b64 vcc, -1
H_yw:
s_mov_b64 exec, {"vcc" if E("MSK", 1) else "-1"}
global_load_dword v40, v1, {P(sWS)} sc1
s_mov_b64 exec, -1
s_waitcnt vmcnt(0)
v_cmp_eq_u32 vcc, -1, v40""")
poll_guard("H_yw", "s_cbranch_vccz", "H_yd", 1, 3)
a(f"""ds_write_b32 v2, v40
v_mov_b32 v2, 1
s_mov_b64 exec, 1
ds_add_rtn_u32 v41, v3, v2 offset:{SC_YC}
s_mov_b64 exec, -1
v_lshlrev_b32 v1, 4, v0
v_add_u32 v1, {L_XS}, v1
s_waitcnt lgkmcnt(0)
v_readfirstlane_b32 s41, v41
s_cmp_lg_u32 s41, 3
s_cbranch_scc1 H_fx1
ds_read_b128 v[40:43], v1 offset:1024
s_waitcnt lgkmcnt(0)""")
unpack(X_, 40)
ln(X_, D_, T_, XN)
a(f"ds_write_b128 v1, {V(XN,4)}")
lds_inc(3, SC_XSF, 2)
a(f"""H_fx1:
s_xor_b32 s41, s{sSEL}, s{sTOK}
s_lshr_b32 s41, s41, 5
s_cbranch_scc1 H_fx2""")
lds_wait(3, SC_XSF, 2, 1, 2)
qtr_addr()
a(f"""v_lshrrev_b32 v12, 4, v0
v_lshlrev_b32 v8, 4, v12
v_add_u32 v8, {L_XS}, v8
v_add_u32 v9, 64, v8
v_add_u32 v10, 128, v8
v_add_u32 v11, 192, v8
s_lshl_b32 s41, s{sC}, 3
s_sub_u32 s41, s{sSEL}, s41
s_sub_u32 s41, s41, 8
s_and_b32 s41, s41, 31
s_mul_i32 s41, s41, {QSTR}
s_lshl_b32 s42, s{sH}, 6
s_add_u32 s41, s41, s42
s_add_u32 s41, s41, {L_Q}
v_lshl_add_u32 v2, v12, 3, s41
v_mov_b32 v3, {L_SC + SC_QFIX - SC_QC}
s_mov_b32 s{sQM}, 2
s_branch H_qp
H_fx3:
v_mov_b32 v3, {L_SC}""")
lds_wait(3, SC_QFIX, 2, 4, 1)
a(f"""H_fx2:""")
a(f"s_lshl_b32 s98, s{sH}, 14")
wkv_dma(1, 98)
a("s_waitcnt vmcnt(0)")
wkv_tr(8, 1, 2, 98)
lds_wait(3, SC_XSF, 2, 1, 2)
TSA(14)
a(f"""v_lshrrev_b32 v2, 4, v0
s_lshl_b32 s41, s{sH}, 8
s_add_u32 s41, s41, {L_XS}
v_lshl_add_u32 v1, v2, 4, s41""")
for s in range(4): a(f"ds_read_b128 {V(40+4*s,4)}, v1 offset:{64*s}")
a(f"""s_lshl_b32 s41, s{sH}, 7
s_add_u32 s41, s41, {L_KVP}
v_lshl_add_u32 v2, v2, 4, s41
s_waitcnt lgkmcnt(0)""")
for s in range(4):
    a(f"v_mfma_f32_16x16x32_bf16 v[56:59], {V(8+8*s,4)}, {V(40+4*s,4)}, {'0' if s==0 else 'v[56:59]'}")
    a(f"v_mfma_f32_16x16x32_bf16 v[60:63], {V(8+8*s+4,4)}, {V(40+4*s,4)}, {'0' if s==0 else 'v[60:63]'}")
a(f"""s_mov_b32 exec_lo, 0x00010001
s_mov_b32 exec_hi, 0x00010001
ds_write_b128 v2, v[56:59]
ds_write_b128 v2, v[60:63] offset:64
s_mov_b64 exec, -1""")
hsync(2, False)
a(f"""v_and_b32 v42, 7, v0
v_lshlrev_b32 v1, 3, v42
v_add_u32 v1, {L_KVP}, v1
v_lshrrev_b32 v2, 5, v0
s_and_b32 s41, s{sH}, 1
s_lshl_b32 s41, s41, 5
s_add_u32 s41, s41, {L_KVP + 64}
v_lshl_add_u32 v40, v2, 4, s41
s_lshl_b32 s41, s{sH}, 5
s_add_u32 s41, s41, {L_VS}
v_lshl_add_u32 v41, v2, 4, s41""")
for w in range(4): a(f"ds_read_b64 {V(8+2*w,2)}, v1 offset:{128*w}")
for w in range(4): a(f"ds_read_b128 {V(16+4*w,4)}, v40 offset:{128*w}")
a(f"""v_lshlrev_b32 v1, 2, v42
v_add_u32 v1, {L_KVP}, v1
s_waitcnt lgkmcnt(4)
v_pk_add_f32 v[8:9], v[8:9], v[10:11]
v_pk_add_f32 v[12:13], v[12:13], v[14:15]
v_pk_add_f32 v[8:9], v[8:9], v[12:13]
v_cvt_pk_bf16_f32 v8, v8, v9
s_waitcnt lgkmcnt(0)""")
pkadd(16, 16, 20, 4); pkadd(24, 24, 28, 4); pkadd(16, 16, 24, 4)
for i in range(8): a(f"v_readlane_b32 s{sKSL[i]}, v8, {i}")
pack(20, 16, 2); unpack(16, 20, 2)
a(f"""ds_write_b128 v41, v[16:19]
ds_write_b32 v1, v8 offset:{L_KS - L_KVP}""")
ffn_loads(64)
a(f"""s_branch H_bursts
H_toX:
s_barrier
s_barrier
H_slow:
s_waitcnt vmcnt(0) lgkmcnt(0)
s_barrier
v_mov_b64 v[28:29], -1
v_mov_b64 v[30:31], -1
s_lshl_b32 s41, s{sH}, 10
s_add_u32 s41, s41, {L_L}
v_lshl_add_u32 v1, v0, 4, s41
ds_write_b128 v1, v[28:31]
s_lshl_b32 s41, s{sH}, 8
s_add_u32 s41, s41, {L_M}
v_lshl_add_u32 v1, v0, 2, s41
v_mov_b32 v8, 0xff800000
ds_write_b32 v1, v8
s_lshl_b32 s41, s{sL}, 4
s_add_u32 s41, s41, {L_SC}
v_mov_b32 v1, s41
v_mov_b32 v2, {L_SC}
v_mov_b64 v[8:9], 0
ds_write_b64 v1, v[8:9] offset:{SC_OCNT}
ds_write_b32 v2, v8 offset:{SC_BAD}
s_mov_b32 s{sSLOW}, 1
s_waitcnt lgkmcnt(0)
s_barrier
s_barrier
s_branch H_bursts
A_slow:
s_waitcnt vmcnt(0)
s_barrier
s_cmp_eq_u32 s3, 15
s_cbranch_scc1 A_sl1
v_lshrrev_b32 v8, 5, v0
v_lshlrev_b32 v8, 4, v8
v_add_u32 v8, {L_KS}, v8
ds_read_b128 v[32:35], v8
v_and_b32 v9, 15, v0
v_lshlrev_b32 v9, 2, v9
v_add_u32 v9, {L_VS}, v9
ds_read_b32 v36, v9
v_and_b32 v9, 27, v0
v_cmp_eq_u32 vcc, 16, v9
v_mov_b32 v10, 0x3f800000
v_cndmask_b32 v10, 0, v10, vcc
v_and_b32 v9, 16, v0
v_cmp_eq_u32 vcc, 0, v9
s_waitcnt lgkmcnt(0)
v_cndmask_b32 v36, v10, v36, vcc
s_bitcmp1_b32 s{sSEL}, 0
s_cselect_b32 s41, 0, 16
v_lshrrev_b32 v36, s41, v36
s_mov_b64 exec, s[6:7]
s_lshl_b32 s41, s3, 4
s_add_u32 s41, s41, s4
s_set_gpr_idx_on s41, gpr_idx(SRC0,DST)
s_nop 1
v_or_b32 v{VV}, v{VV}, v36
s_nop 1
s_set_gpr_idx_off
s_bfe_u32 s41, s101, 0x20006
s_lshl_b32 s41, s41, 3
s_and_b32 s42, s{sSEL}, 7
s_add_u32 s41, s41, s42
s_lshl_b32 s42, 1, s41
s_mov_b32 exec_lo, s42
s_mov_b32 exec_hi, s42
s_bfe_u32 s41, s101, 0x10008
s_lshl_b32 s42, s3, 1
s_add_u32 s41, s41, s42
s_lshl_b32 s41, s41, 2
s_set_gpr_idx_on s41, gpr_idx(DST)
s_nop 1
v_mov_b32 v{KK}, v32
v_mov_b32 v{KK+1}, v33
v_mov_b32 v{KK+2}, v34
v_mov_b32 v{KK+3}, v35
s_nop 1
s_set_gpr_idx_off
s_mov_b64 exec, -1
A_sl1:
v_and_b32 v14, 31, v0
v_lshlrev_b32 v14, 2, v14
v_add_u32 v14, {L_M}, v14""")
att_addr()
a(f"""s_barrier
s_mov_b32 s44, 0
A_sm:
s_mul_i32 s41, s44, {4*QSTR}
v_add_u32 v{Q}, s41, v{vQA}
ds_read_b128 {V(Q,4)}, v{Q}
v_mov_b32 v15, 0xff800000
s_waitcnt lgkmcnt(0)""")
for kt in range(NT):
    a(f"v_mfma_f32_32x32x16_bf16 {V(S0,16)}, {V(KK+4*kt,4)}, {V(Q,4)}, 0")
    for i in range(0, 16, 2): a(f"v_max3_f32 v15, v15, v{S0+i}, v{S0+i+1}")
a(f"""v_lshl_add_u32 v13, s44, 7, v14
ds_max_f32 v13, v15
s_add_u32 s44, s44, 1
s_cmp_lt_u32 s44, 8
s_cbranch_scc1 A_sm
s_waitcnt lgkmcnt(0)
s_barrier
s_mov_b32 s44, 0
A_se:
s_mul_i32 s41, s44, {4*QSTR}
v_add_u32 v{Q}, s41, v{vQA}
ds_read_b128 {V(Q,4)}, v{Q}
v_lshl_add_u32 v13, s44, 7, v14
ds_read_b32 v15, v13
s_waitcnt lgkmcnt(0)""")
for i in range(16): a(f"v_sub_f32 v{S1+i}, 0, v15")
for i in range(0, 16, 2): a(f"v_mov_b64 {V(ACC+i,2)}, 0")
for kt in range(NT):
    a(f"v_mfma_f32_32x32x16_bf16 {V(S0,16)}, {V(KK+4*kt,4)}, {V(Q,4)}, {V(S1,16)}")
    ex(S0, 0, 16)
    smf(2*kt, S0); smf(2*kt+1, S0+8)
a("s_mov_b32 s41, s44")
flush()
a(f"""s_add_u32 s44, s44, 1
s_cmp_lt_u32 s44, 8
s_cbranch_scc1 A_se
s_branch A_X
L_end:
s_cmp_lg_u32 s{sTOK}, 7
s_cbranch_scc1 L_end2
s_add_u32 s41, s{sE}, 2
v_mov_b32 v1, 0
v_mov_b32 v2, s41
s_mov_b64 exec, 1
global_store_dword v1, v2, {P(sWS)}
s_mov_b64 exec, -1
L_end2:
""")
if TSON:
    TS(15)
    a(f"""s_getreg_b32 s75, hwreg(HW_REG_HW_ID)
    s_mul_i32 s41, s{sB}, 12
    s_add_u32 s41, s41, s{sW}
    s_lshl_b32 s41, s41, 7
    s_add_u32 s41, s41, {WS_TS}
    v_mov_b32 v1, s41
    s_mov_b64 exec, 1""")
    for i in range(32):
        a(f"v_mov_b32 v2, s{60+i}\nglobal_store_dword v1, v2, {P(sWS)} offset:{4*i}")
if os.environ.get("DLY"):
    i_, j_ = [int(x) for x in os.environ["DLY"].split(",")]
    a(f"""s_cmp_lg_u32 s{sTOK}, {int(os.environ.get("DLYW", "4"))}
    s_cbranch_scc1 L_exit
    s_sub_u32 s41, s{60+j_}, s{60+i_}
    s_mul_i32 s41, s41, 4
    s_min_u32 s41, s41, 40000
    s_add_u32 s41, s41, s91
    s_add_u32 s41, s41, 1000
    L_dly:
    s_memrealtime s[92:93]
    s_waitcnt lgkmcnt(0)
    s_sub_u32 s42, s92, s41
    s_cmp_lt_i32 s42, 0
    s_cbranch_scc1 L_dly""")
if os.environ.get("DBGT"):
    a(f"""s_mov_b64 exec, 1
    v_mov_b32 v1, 0
    s_not_b32 s41, s60
    v_mov_b32 v2, s41
    global_atomic_umax v1, v2, {P(sDBG)}""")
    for k, slot in enumerate((31, 1, 2, 3, 5, 9, 7, 21, 25, 23, 24, 27, 29, 16, 0)):
        a(f"v_mov_b32 v2, s{60+slot}\nglobal_atomic_umax v1, v2, {P(sDBG)} offset:{4+4*k}")
a("L_exit:\ns_endpgm")

ABL = os.environ.get("ABL", "")
if ABL:
    from asmlib import Ins
    out_items = []; cur = ""
    for it in a.items:
        if isinstance(it, Ins) and it.label: cur = it.label
        drop = False
        if isinstance(it, Ins) and it.text:
            idx = len(out_items)
            t = it.text
            if "ds_write_b32 v8, v9 offset:96" in t: drop = True
            inH = region[0]
            if "w" in ABL and inH == "prep" and it.op == "v_perm_b32": drop = True
            if "m" in ABL and inH == "burst" and it.op.startswith("v_mfma"): drop = True
            if "v" in ABL and inH == "burst" and it.op in ("v_pk_add_f32", "v_pk_mul_f32", "v_dot2_f32_bf16", "v_cvt_pk_bf16_f32", "v_add_f32", "v_exp_f32", "v_rcp_f32", "v_fma_f32"): drop = True
            if "f" in ABL and inH == "ffn" and (it.op.startswith("v_dot2") or it.op.startswith("v_permlane") or it.op.startswith("v_add_f32_dpp") or it.op.startswith("v_pk_") or it.op.startswith("v_mfma")): drop = True
        if isinstance(it, Ins) and it.label == "H_prep": region[0] = "prep"
        if isinstance(it, Ins) and it.label == "H_bursts": region[0] = "burst"
        if isinstance(it, Ins) and it.label == "H_nwf": region[0] = ""
        if isinstance(it, Ins) and it.label == "H_FFN": region[0] = "ffn"
        if isinstance(it, Ins) and it.label == "H_toX": region[0] = ""
        if not drop: out_items.append(it)
    a.items = out_items
n = a.hazard_pass()
hdr = open(f"cdna_kernels/{NAME}.s.ref").read().split("; Override launch")[0]
out = hdr + f"""; @launch grid=(256,1,1) block=(512,1,1) lds=163840
.amdgcn_target "amdgcn-amd-amdhsa--gfx950"
.text
.globl {NAME}_kernel
.p2align 8
.type {NAME}_kernel,@function
{NAME}_kernel:
""" + a.text() + f""".section .rodata,"a"
.p2align 6
.amdhsa_kernel {NAME}_kernel
  .amdhsa_next_free_vgpr 256
  .amdhsa_next_free_sgpr 102
  .amdhsa_accum_offset 256
  .amdhsa_group_segment_fixed_size 0
  .amdhsa_kernarg_size 104
  .amdhsa_user_sgpr_count 2
  .amdhsa_user_sgpr_kernarg_segment_ptr 1
  .amdhsa_system_sgpr_workgroup_id_x 1
  .amdhsa_float_denorm_mode_32 3
.end_amdhsa_kernel
"""
open(sys.argv[1], "w").write(out)
print("nops inserted", n, "instructions", sum(1 for i in a.items if not isinstance(i, str) and i.text))
```

```python
import sys, os
from asmlib import Asm
NAME = "interleave_layers__grouped_kv_mqa__moe_arch_mod__prompt"
TSON = bool(int(os.environ.get("TS", "0")))
a = Asm()
region = ['']
def E(n, d): return int(os.environ.get(n, str(d)))

WS_FLAG = 0x1000; WS_KEY = 0x400000; WS_HY = WS_KEY + 0x10000; WS_Y = WS_KEY + 0x20000; WS_KV = 0x30000; WS_CAND = 0x80000; KVS = 640; KVL = 256*640
WS_OPF = 0x180000
WS_XN = 0x200000; WS_OP = 0x600000; OPL = 0xc00000; WS_TS = 0x3000000; WS_FS = 0x2000000; WS_WKV = 0x2800000
L_SLOT = 65536; L_XN = 114688; L_O = 131072; L_Q = 147456; L_L = 156160; L_SC = 160768
L_ROW = L_SLOT; L_PS = L_SLOT + 16384; L_KVS = L_Q
L_WK1 = 98816
L_XS = 139776; L_X2S = L_XS + 1024; L_KVP = L_XS + 2048; L_VS = L_XS + 2560; L_KS = L_XS + 2816; L_M = L_XS + 3072
QSTR = 272
RS = 2064
SC_KVCNT = 0; SC_KEYS = 16; SC_OCNT = 64; SC_FACC = 128; SC_FCNT = 384; SC_DACC = 400; SC_DCNT = 464; SC_GK = 480
SC_XSF = 512; SC_QFIX = 516; SC_BAD = 96; SC_XNC = 528; SC_QC = 536; SC_C2 = 560; SC_XN2 = 556; SC_B1 = 552; SC_KVD = 544; SC_YC = 548; SC_ZERO = 768; SC_WR = 1024
FORCE = int(os.environ.get('FORCE', '0'))
POLLMAX = 40000
B1P0 = bool(int(os.environ.get('B1P0', '1')))
HS1 = int(os.environ.get('HS1', '14'))
KS1 = int(os.environ.get('KS1', '0'))
HLNP = int(os.environ.get('HLNP', '2'))
OUTF = ' ' + os.environ.get('OF1', '')
OUTG = ' ' + os.environ.get('OF2', '')
NPRE = int(os.environ.get('NPRE', '2'))
CODECH = int(os.environ.get('CODECH', '6'))
QSCALE = 0x3eb8aa3b

sX, sWQ, sWK, sWV, sWO, sWR, sWG, sWU, sWD, sOUT, sDBG, sWS = 8, 10, 12, 14, 16, 20, 22, 24, 26, 28, 30, 32
sE, sW, sL, sC, sTAG, sLO, sHI = 34, 35, 36, 37, 38, 39, 40
sCNT, sJ, sKEY, sTOK, sMASK, sH, sSEL, sOTAG, sF, sCAND, sMYK, sWT = 46, 47, 48, 49, 50, 51, 52, 53, 54, 55, 56, 57
sORD = 58
sKS = 0
sSLOW = 19
sPB = 100
XL = E('XL', 0)
sSLOT = 96; sQM = 97; sX4 = 97
sOPB = 50
sB = 18
sKSL = [0, 1, 2, 3, 4, 5, 6, 7]
def P(n): return f"s[{n}:{n+1}]"
def V(n, k=1): return f"v{n}" if k == 1 else f"v[{n}:{n+k-1}]"

def TS(i):
    if not TSON: return
    a(f"""s_memrealtime s[92:93]
    s_waitcnt lgkmcnt(0)
    s_cmp_eq_u32 s{sL}, 0
    s_cselect_b32 s{60+i}, s92, s{60+i}""")
    if not os.environ.get("SO"): a(f"s_cselect_b32 s{76+i}, s{76+i}, s92")
SO = bool(os.environ.get("SO"))
def TSS(slot):
    if not (TSON and SO) or os.environ.get("P0"): return
    a(f"""s_memrealtime s[92:93]
    s_waitcnt lgkmcnt(0)
    s_cmp_eq_u32 s{60+slot}, 0
    s_cselect_b32 s{60+slot}, s92, s{60+slot}""")
def TSA(slot):
    if not TSON or (SO and slot >= 16): return
    a(f"""s_memrealtime s[92:93]
    s_waitcnt lgkmcnt(0)
    s_mov_b32 s{60+slot}, s92""")
def TSF(i):
    if not TSON or SO: return
    a(f"""s_memrealtime s[92:93]
    s_waitcnt lgkmcnt(0)
    s_cmp_eq_u32 s{sF}, 0
    s_cselect_b32 s{60+i}, s92, s{60+i}
    s_cselect_b32 s{76+i}, s{76+i}, s92""")
def TC(i):
    return
    a(f"""s_memtime s[92:93]
    s_waitcnt lgkmcnt(0)
    s_mov_b32 s{94+i}, s92""")

def poll_guard(lbl_retry, cond_branch, lbl_stem, mult=1, sleep=0):
    done = a.newlabel(lbl_stem)
    a(f"{cond_branch} {done}")
    if sleep: a(f"s_sleep {sleep}")
    a(f"""s_add_u32 s{sCNT}, s{sCNT}, 1
    s_cmp_lt_u32 s{sCNT}, {POLLMAX*mult}
    s_cbranch_scc1 {lbl_retry}
    {done}:""")
def lds_wait(vaddr, off, vt, target, sleep=1):
    lb = a.newlabel("W")
    a(f"s_mov_b32 s{sCNT}, 0\n{lb}:")
    a(f"""ds_read_b32 v{vt}, v{vaddr} offset:{off}
    s_waitcnt lgkmcnt(0)
    v_cmp_gt_u32 vcc, {target}, v{vt}""")
    poll_guard(lb, "s_cbranch_vccz", "Wd", 8, sleep)
def lds_inc(vaddr, off, vt):
    a(f"""v_mov_b32 v{vt}, 1
    s_mov_b64 exec, 1
    ds_add_u32 v{vaddr}, v{vt} offset:{off}
    s_mov_b64 exec, -1""")

def dpp_reduce(regs, op="v_add_f32"):
    for m in ("row_ror:8", "row_ror:4", "row_ror:2", "row_ror:1"):
        for r in regs: a(f"{op}_dpp v{r}, v{r}, v{r} {m} row_mask:0xf bank_mask:0xf")
    for r in regs: a(f"{op}_dpp v{r}, v{r}, v{r} row_bcast:15 row_mask:0xa bank_mask:0xf")
    for r in regs: a(f"{op}_dpp v{r}, v{r}, v{r} row_bcast:31 row_mask:0xc bank_mask:0xf")
def unpack(dst, src, n=4):
    for i in range(n):
        a(f"v_lshlrev_b32 v{dst+2*i}, 16, v{src+i}")
        a(f"v_and_b32 v{dst+2*i+1}, 0xffff0000, v{src+i}")
def pack(dst, src, n=4):
    for i in range(n): a(f"v_cvt_pk_bf16_f32 v{dst+i}, v{src+2*i}, v{src+2*i+1}")
def pkadd(d, x, y, n):
    for i in range(0, n, 2): a(f"v_pk_add_f32 {V(d+i,2)}, {V(x+i,2)}, {V(y+i,2)}")
def tr_pair(e, o, t):
    a(f"""v_perm_b32 v{t}, v{o}, v{e}, s{sLO}
    v_perm_b32 v{o}, v{o}, v{e}, s{sHI}
    v_mov_b32 v{e}, v{t}""")
def ln(X, D, T, out, extra=[]):
    a(f"v_readfirstlane_b32 s42, v{X}")
    for i in range(0, 8, 2): a(f"v_pk_add_f32 {V(D+i,2)}, {V(X+i,2)}, s[42:43] op_sel_hi:[1,0] neg_lo:[0,1] neg_hi:[0,1]")
    a(f"""v_pk_add_f32 {V(T,2)}, {V(D,2)}, {V(D+2,2)}
    v_pk_mul_f32 {V(T+2,2)}, {V(D,2)}, {V(D,2)}
    v_pk_add_f32 {V(T,2)}, {V(T,2)}, {V(D+4,2)}
    v_pk_fma_f32 {V(T+2,2)}, {V(D+2,2)}, {V(D+2,2)}, {V(T+2,2)}
    v_pk_add_f32 {V(T,2)}, {V(T,2)}, {V(D+6,2)}
    v_pk_fma_f32 {V(T+2,2)}, {V(D+4,2)}, {V(D+4,2)}, {V(T+2,2)}
    v_add_f32 v{T}, v{T}, v{T+1}
    v_pk_fma_f32 {V(T+2,2)}, {V(D+6,2)}, {V(D+6,2)}, {V(T+2,2)}
    v_mul_f32 v{T}, 0x3b000000, v{T}
    v_add_f32 v{T+1}, v{T+2}, v{T+3}""")
    dpp_reduce([T, T+1] + extra)
    a(f"""v_mul_f32 v{T+1}, 0x3b000000, v{T+1}
    v_fma_f32 v{T+1}, -v{T}, v{T}, v{T+1}
    v_add_f32 v{T}, s42, v{T}
    v_max_f32 v{T+1}, 0, v{T+1}
    v_cvt_pk_bf16_f32 v{T}, v{T}, v{T+1}
    v_and_b32 v{T+1}, 0xffff0000, v{T}
    v_lshlrev_b32 v{T}, 16, v{T}
    v_add_f32 v{T+1}, 0x3727c5ac, v{T+1}
    v_readlane_b32 s42, v{T}, 63
    v_cvt_pk_bf16_f32 v{T+1}, 0, v{T+1}
    v_sqrt_f32 v{T+1}, v{T+1}""")
    for i in range(0, 4, 2): a(f"v_pk_add_f32 {V(D+i,2)}, {V(X+i,2)}, s[42:43] op_sel_hi:[1,0] neg_lo:[0,1] neg_hi:[0,1]")
    a(f"""v_cvt_pk_bf16_f32 v{T+1}, 0, v{T+1}
    v_rcp_f32 v{T+1}, v{T+1}""")
    for i in range(4, 8, 2): a(f"v_pk_add_f32 {V(D+i,2)}, {V(X+i,2)}, s[42:43] op_sel_hi:[1,0] neg_lo:[0,1] neg_hi:[0,1]")
    for i in range(4): a(f"v_cvt_pk_bf16_f32 v{D+i}, 0, v{D+i}")
    a(f"v_readlane_b32 s42, v{T+1}, 63")
    for i in range(4, 8): a(f"v_cvt_pk_bf16_f32 v{D+i}, 0, v{D+i}")
    for i in range(0, 8, 2): a(f"v_pk_mul_f32 {V(D+i,2)}, {V(D+i,2)}, s[42:43] op_sel_hi:[1,0]")
    pack(out, D)

XR = 4
X_, D_, T_, XN, X1, WR = 8, 16, 24, 28, 32, 36
XO = 36
vQA, vOA, vIDX = 1, 2, 3
Q, ZZ, ACC, S0, S1, KK, VV = 8, 12, 16, 32, 48, 64, 128
WKV = 64
WQR, WO = 64, 128
FOR = 224
GU, WDn = 40, 56

def wkv_dma(vt, sreg):
    a(f"""s_lshl_b32 s41, s{sH}, 12
    v_lshl_add_u32 v{vt}, v0, 4, s41
    s_mov_b32 m0, s{sreg}""")
    for k in range(4): a(f"global_load_lds_dwordx4 v{vt}, {P(sWK)} offset:{1024*k}")
    a(f"s_add_u32 m0, s{sreg}, 4096")
    for k in range(4): a(f"global_load_lds_dwordx4 v{vt}, {P(sWV)} offset:{1024*k}")
def wkv_tr(dst, vt, vt2, sreg):
    a(f"""v_lshrrev_b32 v{vt}, 4, v0
    v_and_b32 v{vt2}, 15, v0
    v_lshlrev_b32 v{vt2}, 3, v{vt2}
    v_lshl_add_u32 v{vt}, v{vt}, 8, v{vt2}
    v_add_u32 v{vt}, s{sreg}, v{vt}""")
    for k in range(4):
        for m in range(2):
            for hf in range(2):
                a(f"ds_read_b64_tr_b16 {V(dst+8*k+4*m+2*hf,2)}, v{vt} offset:{4096*m + 1024*k + 128*hf}")
        if k == 2: a("s_waitcnt lgkmcnt(4)")
def ffn_loads(GU=40):
    a(f"""s_lshl_b32 s41, s{sJ}, 15
    s_lshl_b32 s42, s{sH}, 13
    s_add_u32 s41, s41, s42
    s_add_u32 s41, s41, {WS_FS + 4096}
    v_lshl_add_u32 v2, v0, 4, s41""")
    for i in range(6): a(f"global_load_dwordx4 {V(GU+4*i,4)}, v2, {P(sWS)} offset:{1024*i-4096} sc1")
def gloads(v):
    for g in range(3): a(f"v_lshl_add_u32 v{v+g}, v0, 4, s{3+g}")
    for i in range(6): a(f"global_load_dwordx4 {V(40+4*i,4)}, v{v+(i>>1)}, {P(sWS)} offset:{4096*(i&1)-2048} sc1")
def pos2tok(dst, src):
    a(f"""s_lshl_b32 s{dst}, s{sC}, 3
    s_add_u32 s{dst}, s{dst}, s{src}
    s_add_u32 s{dst}, s{dst}, 8
    s_and_b32 s{dst}, s{dst}, 31
    s_andn2_b32 s43, s{sTOK}, 31
    s_add_u32 s{dst}, s{dst}, s43""")

a(f"""
s_cmp_ge_u32 s2, 256
s_cbranch_scc1 L_exit
s_load_dwordx16 s[8:23], s[0:1], 0
s_load_dwordx8 s[24:31], s[0:1], 64
s_load_dwordx2 s[32:33], s[0:1], 96
v_lshrrev_b32 v1, 6, v0
v_and_b32 v0, 63, v0
s_mov_b32 s{sL}, 0
v_readfirstlane_b32 s{sW}, v1
s_mov_b32 s{sLO}, 0x05040100
s_mov_b32 s{sHI}, 0x07060302
s_mov_b32 s{sF}, 0
s_and_b32 s41, s2, 7
s_lshl_b32 s41, s41, 3
s_bfe_u32 s42, s2, 0x30003
s_or_b32 s41, s41, s42
s_andn2_b32 s42, s2, 63
s_or_b32 s{sSLOT}, s41, s42
s_mov_b32 s{sSEL}, -1
s_and_b32 s{sJ}, s2, 7
s_lshl_b32 s{sJ}, s{sJ}, 5
s_lshr_b32 s41, s2, 3
s_add_u32 s{sJ}, s{sJ}, s41
s_and_b32 s{sH}, s{sW}, 3
s_mov_b32 s{sPB}, s2
{"s_mov_b32 s2, s%d" % sJ if XL else "s_nop 0"}
s_and_b32 s{sC}, s2, 3
s_lshl_b32 s{sTOK}, s2, 3
s_add_u32 s{sTOK}, s{sTOK}, s{sW}
s_lshl_b32 s41, s{sTOK}, 10
v_lshl_add_u32 v1, v0, 4, s41
v_mov_b64 v[12:13], -1
v_mov_b64 v[14:15], -1
s_cmp_lg_u32 s{sW}, 7
s_cbranch_scc1 S_z
v_lshlrev_b32 v2, 4, v0
v_add_u32 v2, {L_L}, v2
ds_write_b128 v2, v[12:15]
ds_write_b128 v2, v[12:15] offset:1024
ds_write_b128 v2, v[12:15] offset:2048
ds_write_b128 v2, v[12:15] offset:3072
v_mov_b64 v[8:9], 0
v_mov_b64 v[10:11], 0
ds_write_b128 v2, v[8:11] offset:{L_SC - L_L}
S_z:
""")
if TSON:
    for i in range(32): a(f"s_mov_b32 s{60+i}, 0")
TS(0)
a(f"""
s_waitcnt lgkmcnt(0)
s_mov_b32 s{sB}, s2
s_mov_b32 s{sSLOW}, 0
global_load_dwordx4 {V(XR,4)}, v1, {P(sX)}
s_load_dword s{sE}, {P(sWS)}, 0
s_barrier
s_cmp_ge_u32 s{sW}, 4
s_cbranch_scc1 S_noA
s_setprio 2
v_add_u32 v16, 4096, v1
global_load_dwordx4 {V(FOR,4)}, v16, {P(sX)}""")
for g in range(2):
    a(f"s_add_u32 s44, s{sH}, {8*g}")
    pos2tok(41, 44)
    a(f"""s_lshl_b32 s41, s41, 10
    s_add_u32 s41, s41, 2048
    v_lshl_add_u32 v{16+g}, v0, 4, s41""")
a(f"""s_lshl_b32 s98, s{sH}, 13
s_add_u32 s98, s98, {L_XN}
s_cmp_eq_u32 s{sH}, 3
s_cselect_b32 s98, {L_Q}, s98""")
wkv_dma(8, 98)
for i in range(4): a(f"global_load_dwordx4 {V(FOR+4+4*i,4)}, v{16+(i>>1)}, {P(sX)} offset:{4096*(i&1)-2048}")
a(f"""s_cmp_lg_u32 s{sW}, 3
s_cbranch_scc1 S_n3
s_mul_i32 s41, s{sSLOT}, {KVS}
s_add_u32 s41, s41, {WS_KV}
v_lshl_add_u32 v1, v0, 4, s41
v_add_u32 v3, {KVL}, v1
v_mov_b32 v16, 0x3f803f80
v_cmp_eq_u32 vcc, 32, v0
v_cndmask_b32 v16, 0, v16, vcc
v_cmp_gt_u32 vcc, 32, v0
v_cndmask_b32 v16, v16, v12, vcc
v_mov_b32 v17, v16
v_mov_b64 v[18:19], v[16:17]
s_mov_b32 exec_hi, 0xff
global_store_dwordx4 v1, v[16:19], {P(sWS)} sc1
global_store_dwordx4 v3, v[16:19], {P(sWS)} sc1
s_mov_b32 exec_hi, -1
s_lshl_b32 s41, s2, 7
s_add_u32 s41, s41, {WS_KEY}
s_lshl_b32 s42, s{sJ}, 7
s_add_u32 s42, s42, {WS_KEY}
v_mov_b32 v1, s41
v_mov_b32 v3, s42
v_cmp_gt_u32 vcc, 2, v0
v_cndmask_b32 v1, v3, v1, vcc
v_lshl_add_u32 v1, v0, 15, v1
s_mov_b64 exec, 0x1f
global_store_dwordx4 v1, v[12:15], {P(sWS)} sc1
s_mov_b64 exec, -1
s_waitcnt vmcnt(15)
s_branch R_P1
S_n3:""")
TSS(16)
a(f"""s_waitcnt vmcnt(12)
s_branch R_P1
S_noA:
s_cmp_lg_u32 s{sW}, 6
s_cbranch_scc1 H_stage
v_lshlrev_b32 v1, 4, v0
global_load_dwordx4 v[44:47], v1, {P(sWR)}
s_branch H_stage""")
def key_make():
    a(f"""v_cvt_pk_bf16_f32 v1, 0, v1
    v_ashrrev_i32 v2, 31, v1
    v_or_b32 v2, 0x80000000, v2
    v_xor_b32 v1, v1, v2
    v_and_b32 v1, 0xffff0000, v1
    s_sub_u32 s41, 2047, s{sTOK}
    v_or_b32 v1, s41, v1
    s_lshl_b32 s41, s{sF}, 3
    s_add_u32 s41, s41, {L_SC + SC_KEYS}
    v_mov_b32 v3, s41
    v_readlane_b32 s{sMYK}, v1, 63
    v_mov_b32 v2, 1
    s_mov_b32 exec_lo, 0
    s_mov_b32 exec_hi, 0x80000000
    ds_max_u32 v3, v1
    ds_add_rtn_u32 v2, v3, v2 offset:4
    ds_read_b32 v1, v3
    s_mov_b64 exec, -1""")
def key_pub():
    lb = a.newlabel("K_np")
    a(f"""s_lshl_b32 s41, s{sB}, 7
    s_lshl_b32 s42, s{sF}, 15
    s_add_u32 s41, s41, s42
    s_add_u32 s41, s41, {WS_KEY}
    v_mov_b32 v3, s41
    s_waitcnt lgkmcnt(0)
    v_readlane_b32 s6, v2, 63
    s_cmp_lg_u32 s6, 7
    s_cbranch_scc1 {lb}
    s_mov_b32 exec_lo, 0
    s_mov_b32 exec_hi, 0x80000000
    global_store_dword v3, v1, {P(sWS)} sc1
    s_mov_b64 exec, -1
    {lb}:
    v_mov_b32 v3, {L_SC}""")
a("R_P1:")
TS(1)
unpack(X_, XR)
ln(X_, D_, T_, XO)
a(f"""s_add_u32 s41, s{sW}, 8
v_xor_b32 v2, s41, v0
s_add_u32 s41, s{sW}, 24
s_lshl_b32 s41, s41, 10
s_add_u32 s41, s41, {L_XN}
v_lshl_add_u32 v2, v2, 4, s41
ds_write_b128 v2, {V(XO,4)}
s_cmp_eq_u32 s{sL}, 0
s_cbranch_scc1 S_l0
s_lshl_b32 s41, s{sTOK}, 10
s_add_u32 s41, s41, {WS_XN}
v_lshl_add_u32 v2, v0, 4, s41
s_cmp_ge_u32 s{sW}, 4
s_cbranch_scc1 R_nw
s_waitcnt vmcnt(1)
s_cmp_eq_u32 s6, 7
s_cbranch_scc1 R_nw
s_waitcnt vmcnt(0)
R_nw:
global_store_dwordx4 v2, {V(XO,4)}, {P(sWS)} sc1
s_cmp_ge_u32 s{sW}, 4
s_cbranch_scc1 H_B1
s_setprio 3""")
wkv_tr(WKV, 8, 9, 98)
a(f"""A_kvp:
v_and_b32 v8, 7, v0
v_add_u32 v8, 8, v8
v_lshrrev_b32 v9, 4, v0
v_xor_b32 v9, v9, v8
v_lshlrev_b32 v8, 10, v8
s_lshl_b32 s41, s{sH}, 8
s_add_u32 s41, s41, {L_XN + 16*1024}
v_add_u32 v8, s41, v8
v_xor_b32 v10, 4, v9
v_xor_b32 v11, 8, v9
v_xor_b32 v12, 12, v9
v_lshl_add_u32 v9, v9, 4, v8
v_lshl_add_u32 v10, v10, 4, v8
v_lshl_add_u32 v11, v11, 4, v8
v_lshl_add_u32 v12, v12, 4, v8
s_cmp_eq_u32 s{sL}, 0
s_cbranch_scc1 A_kv2
s_waitcnt lgkmcnt(0)
s_barrier
A_kv2:
ds_read_b128 v[40:43], v9
ds_read_b128 v[44:47], v10
ds_read_b128 v[48:51], v11
ds_read_b128 v[52:55], v12
s_lshl_b32 s41, s{sH}, 11
s_add_u32 s41, s41, {L_KVS}
v_lshl_add_u32 v8, v0, 4, s41
s_lshl_b32 s42, s{sL}, 2
v_add_u32 v9, s42, v3
v_mov_b32 v10, 1""")
for s in range(4):
    a(f"s_waitcnt lgkmcnt({3-s})")
    a(f"v_mfma_f32_16x16x32_bf16 v[56:59], {V(WKV+8*s,4)}, {V(40+4*s,4)}, {'0' if s==0 else 'v[56:59]'}")
    a(f"v_mfma_f32_16x16x32_bf16 v[60:63], {V(40+4*s,4)}, {V(WKV+8*s+4,4)}, {'0' if s==0 else 'v[60:63]'}")
a(f"""v_and_b32 v12, 3, v0
v_lshrrev_b32 v13, 2, v0
v_lshl_add_u32 v12, v12, 4, v13
v_and_b32 v13, 1, v0
v_lshrrev_b32 v14, 1, v0
v_lshl_add_u32 v13, v13, 4, v14
v_add_u32 v13, 48, v13
v_cmp_gt_u32 vcc, 32, v0
ds_write_b128 v8, v[56:59]
v_cndmask_b32 v12, v13, v12, vcc
ds_write_b128 v8, v[60:63] offset:1024
v_lshlrev_b32 v12, 4, v12
v_add_u32 v12, {L_KVS}, v12
s_mov_b64 exec, 1
ds_add_u32 v9, v10 offset:{SC_KVCNT}
s_mov_b64 exec, -1
s_cmp_lg_u32 s{sW}, 3
s_cbranch_scc1 A_nokv
s_mul_i32 s41, s{sL}, {KVL}
s_mul_i32 s42, s{sSLOT}, {KVS}
s_add_u32 s41, s41, s42
s_add_u32 s41, s41, {WS_KV}
v_lshl_add_u32 v8, v0, 3, s41
s_mov_b32 s{sCNT}, 0
A_fin:
ds_read_b32 v11, v9 offset:{SC_KVCNT}""")
for w in range(4): a(f"ds_read_b128 {V(40+4*w,4)}, v12 offset:{2048*w}")
a(f"""s_waitcnt lgkmcnt(0)
v_cmp_gt_u32 vcc, 4, v11""")
poll_guard("A_fin", "s_cbranch_vccz", "A_find", 8)
pkadd(40, 40, 44, 4); pkadd(48, 48, 52, 4); pkadd(40, 40, 48, 4)
pack(40, 40, 2)
a(f"""v_mov_b32_dpp v42, v40 quad_perm:[1,1,3,3] row_mask:0xf bank_mask:0xf
v_mov_b32_dpp v43, v41 quad_perm:[1,1,3,3] row_mask:0xf bank_mask:0xf
s_lshl_b32 s41, s{sPB}, 7
s_add_u32 s41, s41, {WS_FLAG}
v_mov_b32 v44, s41
v_mov_b32 v45, s{sTAG}
s_mov_b32 exec_lo, 0x55555555
s_mov_b32 exec_hi, 0x55555555
s_cmp_lg_u32 s{sL}, 0
s_cbranch_scc1 A_st1
s_waitcnt vmcnt(0)
global_store_dwordx4 v8, v[40:43], {P(sWS)} sc1
s_mov_b64 exec, 1
global_store_dword v44, v45, {P(sWS)} sc1
s_branch A_st2
A_st1:
global_store_dwordx4 v8, v[40:43], {P(sWS)} sc1
A_st2:
s_mov_b64 exec, -1
A_nokv:
s_setprio 0""")
if not os.environ.get("PP"): TS(2)
def stage(src, off, temps):
    for f in range(8):
        t = temps[f % len(temps)]
        for i in range(4):
            a(f"v_perm_b32 v{t+i}, v{src+4*(2*i+1)+(f>>1)}, v{src+4*(2*i)+(f>>1)}, s{sHI if f&1 else sLO}")
        a(f"ds_write_b128 v1, {V(t,4)} offset:{off+1024*f}")
a(f"""s_cmp_lg_u32 s{sL}, 0
s_cbranch_scc1 R_cand
s_setprio 2
s_mov_b32 s45, 5
s_mov_b32 s3, s{sH}
s_branch S_fl
S_l0:""")
TSS(17)
a(f"""v_mov_b32 v3, {L_SC}
s_waitcnt lgkmcnt(0)
s_mul_i32 s{sTAG}, s{sE}, 0x9e3779b1
s_add_u32 s{sTAG}, s{sTAG}, 0x7f4a7c15
s_mov_b32 s44, 0
s_mov_b32 s45, 1
s_add_u32 s3, s{sH}, 28
S_fl:
s_lshl_b32 s41, s44, 2
s_set_gpr_idx_on s41, gpr_idx(SRC0)
s_nop 1
v_mov_b32 v28, v{FOR}
v_mov_b32 v29, v{FOR+1}
v_mov_b32 v30, v{FOR+2}
v_mov_b32 v31, v{FOR+3}
s_nop 1
s_set_gpr_idx_off""")
unpack(40, 28)
ln(40, D_, T_, XO)
a(f"""s_and_b32 s42, s3, 15
v_xor_b32 v28, s42, v0
s_lshl_b32 s41, s3, 10
s_add_u32 s41, s41, {L_XN}
v_lshl_add_u32 v28, v28, 4, s41
ds_write_b128 v28, {V(XO,4)}
s_add_u32 s3, s3, 4
s_add_u32 s44, s44, 1
s_cmp_lt_u32 s44, s45
s_cbranch_scc1 S_fl
s_cmp_eq_u32 s45, 5
s_cbranch_scc1 A_P2
s_cmp_eq_u32 s45, 2
s_cbranch_scc1 H_ret""")
TSS(18)
a(f"""s_waitcnt vmcnt(3)
s_cmp_eq_u32 s{sW}, 3
s_cbranch_scc1 S_w3
s_waitcnt vmcnt(0)
S_w3:""")
TSS(19)
wkv_tr(WKV, 8, 9, 98)
lds_inc(3, SC_B1, 8)
TSS(20)
lds_wait(3, SC_B1, 8, 4, 0)
TSS(21)
a(f"""s_setprio 3
s_branch A_kvp
H_B1:
s_waitcnt lgkmcnt(0)
s_barrier
s_setprio 2""")
a(f"""R_cand:
s_lshl_b32 s41, s{sF}, 3
v_add_u32 v8, s41, v3
ds_read_b32 v8, v8 offset:{SC_KEYS}
s_lshl_b32 s41, s{sF}, 19
s_lshl_b32 s42, s{sB}, 11
s_add_u32 s41, s41, s42
s_add_u32 s41, s41, {WS_CAND}
v_lshl_add_u32 v2, v0, 4, s41
s_waitcnt lgkmcnt(0)
v_readfirstlane_b32 s41, v8
s_mov_b32 s{sCAND}, 0
s_cmp_lg_u32 s41, s{sMYK}
s_cbranch_scc1 R_nocand
s_mov_b32 s{sCAND}, 1
global_store_dwordx4 v2, {V(XN,4)}, {P(sWS)} sc1
global_store_dwordx4 v2, {V(X1,4)}, {P(sWS)} offset:1024 sc1
R_nocand:""")
TSF(8)
a(f"""s_cmp_lg_u32 s{sF}, 0
s_cbranch_scc1 R_tail
s_cmp_ge_u32 s{sW}, 4
s_cbranch_scc1 H_gather""")
def key_reduce():
    dpp_reduce([8], "v_max_u32")
    a(f"""s_lshl_b32 s41, s{sF}, 4
    s_lshl_b32 s42, s{sH}, 2
    s_add_u32 s41, s41, s42
    v_add_u32 v9, s41, v3
    v_add_u32 v8, 1, v8
    s_mov_b32 exec_lo, 0
    s_mov_b32 exec_hi, 0x80000000
    ds_write_b32 v9, v8 offset:{SC_GK}
    s_mov_b64 exec, -1""")
def key_poll():
    l1 = a.newlabel("K_p")
    a(f"""s_lshl_b32 s42, s{sF}, 15
    s_lshl_b32 s41, s{sH}, 13
    s_add_u32 s42, s42, s41
    s_add_u32 s42, s42, {WS_KEY}
    v_lshl_add_u32 v9, v0, 7, s42
    s_mov_b32 s{sCNT}, 0
    s_mov_b32 s44, 0
    s_mov_b64 vcc, -1
    {l1}:
    s_mov_b64 exec, {"vcc" if E("MSK", 1) else "-1"}
    global_load_dword v8, v9, {P(sWS)} sc1
    s_mov_b64 exec, -1
    s_waitcnt vmcnt(0)
    v_cmp_eq_u32 vcc, -1, v8""")
    if E("SPEC", 1):
        a(f"""s_cbranch_vccz K_sd
        v_add_u32 v12, 1, v8""")
        dpp_reduce([12], "v_max_u32")
        a(f"""v_readlane_b32 s41, v12, 63
        s_cmp_eq_u32 s41, s44
        s_cbranch_scc1 K_sn
        s_mov_b32 s44, s41
        s_sub_u32 s41, s41, 1
        s_andn2_b32 s41, 0x7f8, s41
        s_lshl_b32 s41, s41, 8
        s_add_u32 s41, s41, {WS_CAND + 0x80000}
        v_lshl_add_u32 v10, v0, 5, s41
        global_load_dword v11, v10, {P(sWS)} sc1
        K_sn:
        s_add_u32 s{sCNT}, s{sCNT}, 1
        s_cmp_lt_u32 s{sCNT}, {POLLMAX}
        s_cbranch_scc1 {l1}
        K_sd:""")
    else:
        poll_guard(l1, "s_cbranch_vccz", "K_pd", 1, E("KR1", 2))
    key_reduce()
def key_get(sleep):
    l2 = a.newlabel("K_g")
    a(f"""s_lshl_b32 s41, s{sF}, 4
    v_add_u32 v10, s41, v3
    s_mov_b32 s{sCNT}, 0
    {l2}:""")
    a(f"""ds_read_b128 v[16:19], v10 offset:{SC_GK}
    s_waitcnt lgkmcnt(0)
    v_min3_u32 v8, v16, v17, v18
    v_min_u32 v8, v8, v19
    v_cmp_eq_u32 vcc, 0, v8""")
    poll_guard(l2, "s_cbranch_vccz", "K_gd", 8, sleep)
    a(f"""v_max3_u32 v8, v16, v17, v18
    v_max_u32 v8, v8, v19
    v_readfirstlane_b32 s{sKEY}, v8
    s_sub_u32 s{sKEY}, s{sKEY}, 1
    s_and_b32 s41, s{sKEY}, 0x7ff
    s_sub_u32 s{sSEL}, 2047, s41""")
a("A_P2:")
TSS(22)
a(f"""s_lshl_b32 s42, s{sL}, 2
v_add_u32 v9, s42, v3""")
lds_inc(9, SC_XNC, 8)
a(f"""s_mul_i32 s41, s{sL}, {KVL}
s_mul_i32 s42, s{sH}, {64*KVS}
s_add_u32 s41, s41, s42
s_add_u32 s41, s41, {WS_KV + 4*KVS}
v_bfe_u32 v14, v0, 3, 2
v_mul_u32_u24 v14, {KVS}, v14
v_and_b32 v15, 7, v0
v_lshl_add_u32 v14, v15, 5, v14
v_lshrrev_b32 v11, 5, v0
v_lshl_add_u32 v14, v11, 4, v14
v_add_u32 v14, s41, v14
v_and_b32 v15, 31, v0
v_min_u32 v12, 17, v15
v_cmp_eq_u32 vcc, 20, v15
v_cndmask_b32 v15, v12, 16, vcc
v_mul_u32_u24 v11, {KVS}, v11
v_lshl_add_u32 v15, v15, 4, v11
s_add_u32 s41, s41, 256
v_add_u32 v15, s41, v15
s_mov_b32 s{sORD}, 0x65432108
s_mov_b32 s{sORD+1}, 0x7
s_lshl_b32 s41, s{sH}, 13
s_cmp_eq_u32 s{sL}, 0
s_cselect_b32 s{sWT}, 4, 15
s_cselect_b32 s42, {WS_FLAG}, 0
s_cselect_b32 s43, 0, {WS_KEY}
s_add_u32 s41, s41, s42
s_add_u32 s41, s41, s43
v_lshl_add_u32 v10, v0, 7, s41
""")
def kv_base(p):
    a(f"""s_xor_b32 s41, s{sX4}, {p}
    s_mul_i32 s41, s41, {8*KVS}
    s_add_u32 s0, s{sWS}, s41
    s_addc_u32 s1, s{sWS+1}, 0""")
def kv_one(p, i):
    if i % 3 == 0:
        k = i // 3
        a(f"global_load_dwordx4 {V(KK+8*p+4*k,4)}, v14, s[0:1] offset:{4*KVS*k-4*KVS} sc1")
    else:
        j = i - 1 - i // 3
        a(f"global_load_dwordx4 {V(VV+16*p+4*j,4)}, v15, s[0:1] offset:{2*KVS*j-4*KVS} sc1")
def kv_pair(p):
    kv_base(p)
    for i in range(6): kv_one(p, i)
def kv_check(p, younger):
    fr = [KK+8*p, KK+8*p+4] + [VV+16*p+4*i for i in range(4)]
    if os.environ.get("P0"):
        a(f"""s_cmp_lg_u32 s{sL}, {os.environ["P0"]}
        s_cbranch_scc1 C_d{p}
        s_memtime s[92:93]
        s_waitcnt lgkmcnt(0)
        s_mov_b32 s{76+2*p}, s92
        s_waitcnt vmcnt({younger})
        s_memtime s[92:93]
        s_waitcnt lgkmcnt(0)
        s_mov_b32 s{77+2*p}, s92
        C_d{p}:""")
    a(f"""s_waitcnt vmcnt({younger})
    C_r{p}:
    v_max3_u32 v12, v{fr[0]}, v{fr[1]}, v{fr[2]}
    v_max3_u32 v13, v{fr[3]}, v{fr[4]}, v{fr[5]}
    v_max_u32 v12, v12, v13
    v_cmp_eq_u32 vcc, -1, v12
    s_cbranch_vccnz C_x{p}
    C_o{p}:
    s_cmp_eq_u32 s3, {p}
    s_cbranch_scc1 C_m{p}
    C_b{p}:""")
def kv_tail(p):
    a(f"""C_x{p}:
    s_add_u32 s{sCNT}, s{sCNT}, 1
    s_cmp_ge_u32 s{sCNT}, {POLLMAX}
    s_cbranch_scc1 C_o{p}""")
    a("s_mov_b64 s[98:99], s[0:1]")
    kv_pair(p)
    a(f"""s_mov_b64 s[0:1], s[98:99]
    s_waitcnt vmcnt(0)
    s_branch C_r{p}
    C_m{p}:
    v_mov_b32 v12, s5
    s_mov_b64 exec, s[6:7]
    s_set_gpr_idx_on s4, gpr_idx(SRC0,DST)
    s_nop 1
    v_and_b32 v{VV+16*p}, v{VV+16*p}, v12
    s_nop 1
    s_set_gpr_idx_off
    s_mov_b64 exec, -1
    s_nop 1
    s_branch C_b{p}""")
DEP = int(os.environ.get('DEP', '3'))
a(f"""s_and_b32 s{sX4}, s{sPB}, {4 if E("ROT", 3) == 3 else 0}
s_lshr_b32 s41, s{sPB}, 3
s_and_b32 s41, s41, {E("ROT", 3)}
s_or_b32 s{sX4}, s{sX4}, s41
{"s_andn2_b32 s%d, 7, s%d" % (sX4, sB) if E("OWNL", 0) else "s_nop 0"}
s_mov_b32 s{sCNT}, 0
s_cmp_lg_u32 s{sL}, 0
s_cbranch_scc1 A_nfl
s_setprio 0
s_sleep {E("FS", 8)}
A_flg:
global_load_dword v8, v10, {P(sWS)} sc1
s_waitcnt vmcnt(0)
v_cmp_ne_u32 vcc, s{sTAG}, v8""")
poll_guard("A_flg", "s_cbranch_vccz", "A_flgd", 1, 2)
a("s_branch A_nf2\nA_nfl:")
a(f"""s_mov_b32 s{sCNT}, 0
A_xw:
ds_read_b32 v12, v9 offset:{SC_XNC}
s_waitcnt lgkmcnt(0)
v_cmp_gt_u32 vcc, 8, v12
s_cbranch_vccz A_xwd
s_sleep 1
s_add_u32 s{sCNT}, s{sCNT}, 1
s_cmp_lt_u32 s{sCNT}, {E("XT", 100000)}
s_cbranch_scc1 A_xw
A_xwd:""")
a(f"global_load_dword v8, v10, {P(sWS)} sc1\nA_nf2:")
TS(3)
for p in range(DEP): kv_pair(p)
TSS(23)
a(f"""s_mov_b32 s3, 15
s_cmp_eq_u32 s{sL}, 0
s_cbranch_scc1 A_go
s_mov_b32 s{sCNT}, 0
s_waitcnt vmcnt({6*DEP})
s_branch A_kc
A_kp:
s_mov_b64 exec, {"vcc" if E("MSK", 1) else "-1"}
global_load_dword v8, v10, {P(sWS)} sc1
s_mov_b64 exec, -1
s_waitcnt vmcnt(0)
A_kc:
v_cmp_eq_u32 vcc, -1, v8""")
poll_guard("A_kp", "s_cbranch_vccz", "A_kpd", 1, E("KR0", 1))
key_reduce()
key_get(0)
if XL:
    a(f"""s_bfe_u32 s41, s{sSEL}, 0x50003
    s_lshl_b32 s41, s41, 6
    s_lshr_b32 s42, s{sSEL}, 8
    s_lshl_b32 s42, s42, 3
    s_or_b32 s41, s41, s42
    s_and_b32 s42, s{sSEL}, 7
    s_or_b32 s101, s41, s42""")
else:
    a(f"s_mov_b32 s101, s{sSEL}")
a(f"""s_bfe_u32 s4, s101, 0x20007
s_lshl_b32 s4, s4, 2
s_bfe_u32 s42, s{sSEL}, 0x20001
s_add_u32 s4, s4, s42
s_bitcmp1_b32 s{sSEL}, 0
s_mov_b32 s5, 0xffff0000
s_cselect_b32 s5, 0xffff, s5
s_bitcmp1_b32 s101, 6
s_cselect_b32 s6, 0, -1
s_cselect_b32 s7, -1, 0
s_lshr_b32 s41, s101, 9
s_bfe_u32 s42, s101, 0x30003
s_xor_b32 s42, s42, s{sX4}
s_cmp_eq_u32 s41, s{sH}
s_cselect_b32 s3, s42, 15
s_xor_b32 s41, s{sSEL}, s{sTOK}
s_lshr_b32 s41, s41, 5
s_cbranch_scc1 A_go
s_lshl_b32 s41, s{sC}, 3
s_sub_u32 s41, s{sSEL}, s41
s_sub_u32 s41, s41, 8
s_bfe_u32 s{sWT}, s41, 0x30002
s_or_b32 s41, s{sWT}, 1
s_max_u32 s41, s41, {E('POS', 4)}
s_xor_b32 s42, s41, s{sWT}
s_mov_b32 s43, 0
s_lshl_b32 s41, s41, 2
s_add_u32 s41, s41, 4
s_lshl_b64 s[44:45], s[42:43], s41
s_xor_b64 {P(sORD)}, {P(sORD)}, s[44:45]
s_lshl_b32 s41, s{sWT}, 2
s_add_u32 s41, s41, 4
s_lshl_b64 s[44:45], s[42:43], s41
s_xor_b64 {P(sORD)}, {P(sORD)}, s[44:45]
A_go:
s_setprio 0
s_lshl_b32 s42, s{sL}, 2
v_add_u32 v9, s42, v3""")
def att_addr():
    a(f"""v_bfe_u32 v1, v0, 3, 2
    v_mul_u32_u24 v1, {QSTR}, v1
    v_and_b32 v2, 7, v0
    v_lshl_add_u32 v1, v2, 5, v1
    v_lshrrev_b32 v2, 5, v0
    v_lshl_add_u32 v1, v2, 4, v1
    v_add_u32 v{vQA}, {L_Q}, v1
    s_lshl_b32 s41, s{sH}, 11
    s_add_u32 s41, s41, {L_SLOT}
    v_lshl_add_u32 v{vOA}, v0, 4, s41
    v_mov_b32 v{vIDX}, 0xdddddddd
    v_and_b32 v0, 31, v0
    s_lshl_b32 s41, s{sH}, 7
    s_add_u32 s41, s41, {L_L}
    v_lshl_add_u32 v0, v0, 2, s41""")
att_addr()
a(f"s_mov_b32 s{sCNT}, 0")
kv_check(0, 6*(DEP-1))
TS(4)
a(f"""s_bfe_u32 s41, s{sORD}, 0x40004
s_and_b32 s43, s41, 4
s_add_u32 s43, s43, 4""")
lds_wait(9, SC_QC, 10, "s43", 0)
a(f"""s_lshl_b32 s2, s{sL}, 2
s_add_u32 s2, s2, {L_SC + SC_QC}
s_mul_i32 s41, s41, {4*QSTR}
v_add_u32 v{Q}, s41, v{vQA}
ds_read_b128 {V(Q,4)}, v{Q}
s_mov_b32 s{sCNT}, 0""")
for i in range(0, 10, 2): a(f"v_mov_b64 {V(ACC+i,2)}, 0")
TS(5)
TC(0)
def smf(vfrag, pb): a(f"v_smfmac_f32_32x32x32_bf16 {V(ACC,16)}, {V(VV+4*vfrag,4)}, {V(pb,8)}, v{vIDX}")
def ex(base, lo, hi):
    for i in range(lo, hi): a(f"v_exp_f32 v{base+i}, v{base+i}")
def flush():
    a(f"""v_lshl_add_u32 v{ACC+10}, s41, 13, v{vOA}
    v_lshl_add_u32 v{ACC+11}, s41, 9, v0
    ds_write_b128 v{ACC+10}, {V(ACC,4)}
    ds_write_b128 v{ACC+10}, {V(ACC+4,4)} offset:1024
    ds_write_b32 v{ACC+11}, v{ACC+8}""")
a(f"""s_waitcnt lgkmcnt(0)
v_mfma_f32_32x32x16_bf16 {V(S0,16)}, {V(KK,4)}, {V(Q,4)}, 0""")
NT = 16
def att_pass(first):
    for kt in range(NT):
        cur, oth = (S0, S1) if kt % 2 == 0 else (S1, S0)
        lp = kt//2 + DEP
        ld = first and lp < 8
        def L(i):
            if ld: kv_one(lp, 3*(kt & 1) + i)
        if ld and kt % 2 == 0: kv_base(lp)
        ex(cur, 0, 2)
        if not (first and kt == 0): smf((2*kt - 1) % (2*NT), oth + 8)
        L(0)
        ex(cur, 2, 5)
        if kt == NT-1: a("s_waitcnt lgkmcnt(0)")
        if first and kt % 2 == 1 and kt < NT-1:
            p = (kt+1)//2
            kv_check(p, (6*(lp - p) - 2) if ld else 6*(7 - p))
        a(f"v_mfma_f32_32x32x16_bf16 {V(oth,16)}, {V(KK+4*((kt+1)%NT),4)}, {V(Q,4)}, 0")
        if first and kt == NT-3:
            a(f"""v_mov_b32 v13, s2
            ds_read_b32 v13, v13""")
        if first and kt == NT-2:
            a(f"""s_waitcnt lgkmcnt(0)
            v_cmp_gt_u32 vcc, 8, v13
            s_cbranch_vccnz A_q8
            A_q8b:""")
        if kt == NT-2:
            a(f"s_bfe_u32 s41, s{sORD}, 0x40008")
            if not first:
                a(f"""s_cmp_eq_u32 s41, s{sWT}
                s_cbranch_scc1 A_qwait
                A_qback:""")
            a(f"""s_mul_i32 s41, s41, {4*QSTR}
            v_add_u32 v{Q}, s41, v{vQA}
            ds_read_b128 {V(Q,4)}, v{Q}""")
        if kt == 0 and not first:
            a(f"s_and_b32 s41, s{sORD}, 15")
            ex(cur, 5, 12)
            flush()
            a(f"v_mfma_f32_32x32x8_f16 {V(ACC,16)}, {V(ZZ,2)}, {V(ZZ,2)}, 0")
            ex(cur, 12, 15)
            smf(0, cur)
            ex(cur, 15, 16)
        else:
            ex(cur, 5, 8)
            L(1)
            ex(cur, 8, 10)
            smf(2*kt, cur)
            ex(cur, 10, 13)
            L(2)
            ex(cur, 13, 16)
        if ld and lp == 7 and kt % 2 == 1:
            a(f"v_mov_b32 v12, {L_SC}")
            lds_inc(12, SC_KVD, 13)
att_pass(True)
a(f"""v_mov_b64 {V(ZZ,2)}, 0
s_lshr_b64 {P(sORD)}, {P(sORD)}, 4""")
if not os.environ.get('PP'): TS(12)
if TSON:
    a(f"""s_cmp_eq_u32 s{sL}, 0
    s_cselect_b32 s73, s{sCNT}, s73
    s_nop 0""")
if os.environ.get("AL"):
    a(".p2align 6")
    for _ in range(int(os.environ["AL"])): a("s_nop 0")
a("A_pass:")
att_pass(False)
if os.environ.get("PP"):
    a(f"""s_cmp_lg_u32 s{sL}, {os.environ.get("PP")}
    s_cbranch_scc1 A_ppx""")
    for d, q in ((86, 87), (87, 88), (88, 74), (74, 70), (70, 71), (71, 62), (62, 96)): a(f"s_mov_b32 s{d}, s{q}")
    a("A_ppx:")
a(f"""s_lshr_b64 {P(sORD)}, {P(sORD)}, 4
s_cmp_gt_u32 s{sORD}, 15
s_cbranch_scc1 A_pass""")
smf(2*NT-1, S1 + 8)
a(f"s_and_b32 s41, s{sORD}, 15")
flush()
TC(1)
TS(9)
a(f"""A_X:
v_mbcnt_lo_u32_b32 v0, -1, 0
v_mbcnt_hi_u32_b32 v0, -1, v0
s_waitcnt lgkmcnt(0)
s_barrier""")
TS(6)
a(f"""v_mov_b32 v9, {L_SC}
s_barrier
ds_read_b32 v9, v9 offset:{SC_BAD}
s_lshl_b32 s98, s{sH}, 13
s_add_u32 s98, s98, {L_WK1}
s_waitcnt lgkmcnt(0)
v_cmp_ne_u32 vcc, 0, v9
s_cbranch_vccnz A_slow
s_cmp_lg_u32 s{sL}, 0
s_cbranch_scc1 R_P4
v_mov_b64 v[28:29], -1
v_mov_b64 v[30:31], -1
s_lshl_b32 s41, s{sH}, 10
s_add_u32 s41, s41, {L_L}
v_lshl_add_u32 v2, v0, 4, s41
ds_write_b128 v2, v[28:31]""")
a(f"""R_P4:
s_mul_i32 s41, s{sW}, {RS}
s_add_u32 s41, s41, {L_ROW}
v_lshl_add_u32 v3, v0, 5, s41
s_waitcnt lgkmcnt(0)
s_barrier
ds_read_b128 v[8:11], v3
ds_read_b128 v[16:19], v3 offset:{8*RS}
ds_read_b128 v[12:15], v3 offset:16
ds_read_b128 v[20:23], v3 offset:{8*RS+16}
s_mov_b32 s{sF}, s{sL}
s_mov_b32 s{sSLOW}, 0
v_lshlrev_b32 v2, 4, v0
v_add_u32 v2, {L_X2S}, v2
ds_read_b128 {V(WR,4)}, v2 offset:{L_SC + SC_WR - L_X2S}
s_cmp_lg_u32 s{sSEL}, s{sTOK}
s_cbranch_scc1 R_nx
ds_read_b128 {V(XR,4)}, v2
s_waitcnt lgkmcnt(0)
R_nx:""")
a(f"""s_lshl_b32 s41, s{sL}, 2
s_or_b32 s41, s41, s{sW}
s_cmp_ge_u32 s41, 4
s_cbranch_scc1 R_nd""")
wkv_dma(2, 98)
a("R_nd:")
unpack(24, XR)
a("s_waitcnt lgkmcnt(0)")
TS(7)
pkadd(8, 8, 16, 8)
for i in range(8): a(f"v_cvt_pk_bf16_f32 v{8+i}, 0, v{8+i}")
pkadd(8, 8, 24, 8)
pack(X1, 8)
unpack(X_, X1)
ln(X_, D_, T_, XN)
a(f"""v_dot2_f32_bf16 v1, v{XN}, v{WR}, 0
v_dot2_f32_bf16 v1, v{XN+1}, v{WR+1}, v1
v_dot2_f32_bf16 v1, v{XN+2}, v{WR+2}, v1
v_dot2_f32_bf16 v1, v{XN+3}, v{WR+3}, v1""")
dpp_reduce([1])
key_make()
a(f"""s_cmp_lg_u32 s{sL}, 0
s_cbranch_scc1 R_lastl""")
unpack(D_, XN)
pkadd(D_, D_, X_, 8)
pack(XR, D_)
a(f"""s_mov_b32 s{sL}, 1""")
key_pub()
a(f"""s_branch R_P1
R_lastl:""")
key_pub()
a(f"""s_barrier
s_branch R_cand
R_tail:""")
unpack(D_, XN)
unpack(X_, X1)
pkadd(D_, D_, X_, 8)
pack(XR, D_)
a(f"""s_lshl_b32 s41, s{sTOK}, 10
v_lshl_add_u32 v1, v0, 4, s41
s_cmp_lt_u32 s{sW}, {4 if E("ALATE", 0) else 0}
s_cbranch_scc1 R_noout
s_cmp_lg_u32 s{sCAND}, 0
s_cbranch_scc1 R_noout
global_store_dwordx4 v1, {V(XR,4)}, {P(sOUT)}{OUTF}
R_noout:
s_cmp_ge_u32 s{sW}, 4
s_cbranch_scc1 H_FF2""")
key_poll()
a(f"""s_cmp_eq_u32 s{sCAND}, 0
s_cbranch_scc1 {"R_st" if E("ALATE", 0) else "L_end"}""")
key_get(1)
a(f"""s_cmp_eq_u32 s{sSEL}, s{sTOK}
s_cbranch_scc1 L_end
R_st:
global_store_dwordx4 v1, {V(XR,4)}, {P(sOUT)}{OUTF}
s_branch L_end
A_qwait:
v_mov_b32 v14, {L_SC}
s_lshl_b32 s42, 4, s{sL}""")
lds_wait(14, SC_QFIX, 15, "s42", 1)
a(f"""s_mov_b32 s{sWT}, 15
s_branch A_qback""")
for p in range(8): kv_tail(p)
a("A_q8:\nv_mov_b32 v12, s2")
lds_wait(12, 0, 13, 8, 1)
a("s_branch A_q8b")

def qtr_addr():
    a(f"""v_lshrrev_b32 v12, 4, v0
    v_bfe_u32 v13, v0, 2, 2
    v_lshl_add_u32 v1, v12, 3, v13
    v_and_b32 v12, 1, v12
    v_lshl_add_u32 v12, v12, 2, v13
    s_lshl_b32 s41, s{sH}, 1
    v_xor_b32 v12, s41, v12
    v_and_b32 v13, 3, v0
    v_lshl_add_u32 v13, v12, 2, v13
    v_lshlrev_b32 v13, 3, v13
    v_lshl_add_u32 v1, v1, 8, v13""")
def coop(j):
    a(f"s_add_u32 m0, s4, {1024*j}")
    a(f"global_load_lds_dwordx4 v{50 + ((j>>1)&1)}, s[0:1]")
    a("s_add_u32 s0, s0, 4096\ns_addc_u32 s1, s1, 0")
a(f"""H_stage:
s_setprio 1
v_lshrrev_b32 v48, 2, v0
v_and_b32 v49, 3, v0
v_lshlrev_b32 v49, 4, v49
v_lshl_add_u32 v48, v48, 10, v49
s_lshl_b32 s41, s{sH}, 6
s_lshl_b32 s42, s{sC}, 8
s_add_u32 s41, s41, s42
v_add_u32 v48, s41, v48
s_lshl_b32 s5, s{sH}, 12
s_add_u32 s5, s5, {6*8192}""")
for q in range(4):
    a(f"""s_add_u32 s0, s{sWQ}, {32768*14 + 16384*q}
    s_addc_u32 s1, s{sWQ+1}, 0
    s_add_u32 m0, s5, {1024*q}
    global_load_lds_dwordx4 v48, s[0:1]""")
a(f"""v_lshrrev_b32 v49, 4, v0
v_lshlrev_b32 v50, 1, v49
v_xor_b32 v50, v50, v0
v_and_b32 v50, 15, v50
v_lshlrev_b32 v50, 4, v50
v_lshl_add_u32 v50, v49, 10, v50
v_add_u32 v50, s42, v50
v_xor_b32 v51, 128, v50
s_mul_i32 s41, s{sH}, 3
s_add_u32 s43, s41, 8
s_sub_u32 s41, s41, 6
s_cmp_lt_u32 s{sH}, 2
s_cselect_b32 s41, s43, s41
s_lshl_b32 s4, s41, 13
s_lshl_b32 s41, s41, 15
s_add_u32 s0, s{sWQ}, s41
s_addc_u32 s1, s{sWQ+1}, 0""")
for j in range(12): coop(j)
a(f"""v_lshrrev_b32 v12, 4, v0
v_bfe_u32 v13, v0, 2, 2
v_lshl_add_u32 v1, v12, 3, v13
v_and_b32 v13, 3, v0
v_lshlrev_b32 v13, 3, v13
v_lshl_add_u32 v1, v1, 6, v13
v_add_u32 v1, s5, v1
v_mov_b32 v3, {L_SC}
s_waitcnt lgkmcnt(0)
s_mul_i32 s{sTAG}, s{sE}, 0x9e3779b1
s_add_u32 s{sTAG}, s{sTAG}, 0x7f4a7c15""")
TSS(18)
a("s_waitcnt vmcnt(12)")
for k in range(2):
    for f in range(2):
        for hf in range(2): a(f"ds_read_b64_tr_b16 {V(WQR+48+8*k+4*f+2*hf,2)}, v1 offset:{k*2048 + 256*hf + 32*f}")
lds_inc(3, SC_C2, 8)
for j in range(12, 24): coop(j)
TSS(19)
lds_wait(3, SC_C2, 8, 4, 0)
a(f"""s_lshl_b32 s41, s{sH}, 14
s_add_u32 s41, s41, {6*32768}
s_add_u32 s0, s{sWQ}, s41
s_addc_u32 s1, s{sWQ+1}, 0
s_mov_b32 s4, s5""")
for j in range(4): coop(j)
a(f"s_add_u32 s44, s{sH}, 16")
pos2tok(41, 44)
a(f"""s_lshl_b32 s41, s41, 10
s_add_u32 s41, s41, 2048
v_lshl_add_u32 v1, v0, 4, s41
global_load_dwordx4 {V(FOR,4)}, v1, {P(sX)} offset:-2048
global_load_dwordx4 {V(FOR+4,4)}, v1, {P(sX)} offset:2048
s_cmp_lg_u32 s{sW}, 6
s_cbranch_scc1 H_st0
v_lshlrev_b32 v1, 4, v0
v_add_u32 v1, {L_SC + SC_WR}, v1
ds_write_b128 v1, v[44:47]
H_st0:
s_waitcnt vmcnt(2)""")
TSA(4)
a("s_setprio 2\ns_branch H_P2")
a(f"""H_gather:
v_xor_b32 v12, s{sH}, v0
v_xor_b32 v13, 4, v12
v_xor_b32 v14, 8, v12
v_xor_b32 v15, 12, v12
s_lshl_b32 s41, s{sH}, 10
s_add_u32 s41, s41, {L_XN}
v_lshl_add_u32 v12, v12, 4, s41
v_lshl_add_u32 v13, v13, 4, s41
v_lshl_add_u32 v14, v14, 4, s41
v_lshl_add_u32 v15, v15, 4, s41
s_mov_b32 s{sCNT}, 0
s_sleep {E('GS', 8)}
H_xg:""")
gloads(8)
a(f"""s_waitcnt vmcnt(0)
v_max3_u32 v16, v40, v44, v48
v_max3_u32 v17, v52, v56, v60
v_max_u32 v16, v16, v17
v_cmp_eq_u32 vcc, -1, v16""")
poll_guard("H_xg", "s_cbranch_vccz", "H_xgd", 1, E("GR", 0))
for i in range(6): a(f"ds_write_b128 v{12+(i&3)}, {V(40+4*i,4)} offset:{4096*i}")
a(f"""H_P2:
s_lshl_b32 s42, s{sL}, 2
s_add_u32 s42, s42, {L_SC}
v_mov_b32 v3, s42""")
lds_inc(3, SC_XNC, 12)
a(f"""v_and_b32 v1, 15, v0
v_lshrrev_b32 v2, 4, v0
v_xor_b32 v8, v2, v1
v_lshlrev_b32 v1, 10, v1
v_add_u32 v1, {L_XN}, v1
v_xor_b32 v9, 4, v8
v_xor_b32 v10, 8, v8
v_xor_b32 v11, 12, v8
v_lshl_add_u32 v8, v8, 4, v1
v_lshl_add_u32 v9, v9, 4, v1
v_lshl_add_u32 v10, v10, 4, v1
v_lshl_add_u32 v11, v11, 4, v1
v_and_b32 v2, 15, v0
v_mul_u32_u24 v2, {QSTR}, v2
v_lshrrev_b32 v12, 4, v0
v_lshl_add_u32 v2, v12, 3, v2
s_lshl_b32 s41, s{sH}, 6
s_add_u32 s41, s41, {L_Q}
v_add_u32 v2, s41, v2
s_mov_b32 s{sQM}, 0""")
qtr_addr()
lds_wait(3, SC_XNC, 12, 8, 0)
TS(3)
a(f"""s_cmp_lg_u32 s{sL}, 0
s_cbranch_scc1 H_qp
v_add_u32 v12, 0x10000, v1
v_xor_b32 v13, 32, v12""")
for k in range(6):
    for f in range(2):
        for hf in range(2): a(f"ds_read_b64_tr_b16 {V(WQR+8*k+4*f+2*hf,2)}, v{12+f} offset:{k*8192 + 1024*hf}")
    if k in (2, 4): a("s_waitcnt lgkmcnt(4)")
a("s_waitcnt lgkmcnt(4)\nH_qp:")
order = [14, 0, 15, 1, 8, 2, 9, 3, 10, 4, 11, 5, 12, 6, 13, 7]
def qbuf(idx): return (20 + 12*((idx//2) % 3)) if order[idx] < 8 else (56 + 4*((idx//2) % 2))
def qread(idx):
    s = order[idx]; b = qbuf(idx)
    a(f"ds_read_b128 {V(b,4)}, v{8+(s&3)} offset:{256*(s>>2)}")
    if s < 8:
        for hf in range(2): a(f"ds_read_b64_tr_b16 {V(b+4+2*hf,2)}, v1 offset:{8192*s + 1024*hf}")
        a(f"v_xor_b32 v{b+10}, 32, v1")
        for hf in range(2): a(f"ds_read_b64_tr_b16 {V(b+8+2*hf,2)}, v{b+10} offset:{8192*s + 1024*hf}")
qcnt = lambda i: 5 if order[i] < 8 else 1
AH = 3
for i in range(AH): qread(i)
for idx in range(16):
    if idx + AH < 16: qread(idx+AH)
    a(f"s_waitcnt lgkmcnt({sum(qcnt(j) for j in range(idx+1, min(idx+AH+1, 16)))})")
    s = order[idx]; b = qbuf(idx)
    for f in range(2):
        A_ = V(b+4+4*f,4) if s < 8 else V(WQR+8*(s-8)+4*f,4)
        d = V(12+4*f,4)
        a(f"v_mfma_f32_16x16x32_bf16 {d}, {A_}, {V(b,4)}, {'0' if idx==0 else d}")
a(f"""s_setprio 2
s_mov_b32 s42, {QSCALE}""")
for i in range(4): a(f"v_add_u32 v{8+i}, 0x4000, v{8+i}")
for i in range(0, 8, 2): a(f"v_pk_mul_f32 {V(12+i,2)}, {V(12+i,2)}, s[42:43] op_sel_hi:[1,0]")
pack(20, 12, 4)
a(f"""ds_write_b64 v2, v[20:21]
ds_write_b64 v2, v[22:23] offset:32""")
lds_inc(3, SC_QC, 12)
a(f"""s_cmp_eq_u32 s{sQM}, 2
s_cbranch_scc1 H_fx3
s_cmp_eq_u32 s{sQM}, 1
s_cbranch_scc1 H_qd""")
TS(2)
a(f"""v_add_u32 v2, {16*QSTR}, v2
s_mov_b32 s{sQM}, 1
s_cmp_lg_u32 s{sL}, 0
s_cbranch_scc1 H_q2
s_setprio {HLNP}
s_mov_b32 s44, 0
s_mov_b32 s45, 2
s_add_u32 s3, s{sH}, 16
s_waitcnt vmcnt(0)
s_branch S_fl
H_ret:""")
lds_inc(3, SC_XN2, 12)
lds_wait(3, SC_XN2, 12, 4, 1)
a(f"""H_q2:
s_setprio 0
s_branch H_qp
H_qd:""")
a(f"""s_cmp_eq_u32 s{sL}, 0
s_cbranch_scc1 H_prep
v_mov_b32 v3, {L_SC}
s_branch H_FFN
H_prep:""")
lds_wait(3, SC_KVD, 12, 4, 4)
a(f"""s_min_u32 s43, s{sB}, 223
s_lshl_b32 s43, s43, 2
s_add_u32 s43, s43, s{sH}
s_and_b32 s44, s43, 31
s_lshr_b32 s45, s43, 5
v_lshrrev_b32 v2, 3, v0
v_and_b32 v3, 7, v0
s_mul_i32 s41, s44, {8*7168}
s_lshl_b32 s42, s45, 7
s_add_u32 s41, s41, s42
v_mul_u32_u24 v1, 7168, v2
v_lshl_add_u32 v1, v3, 4, v1
v_add_u32 v1, s41, v1
global_load_dwordx4 {V(GU,4)}, v1, {P(sWG)}
global_load_dwordx4 {V(GU+4,4)}, v1, {P(sWG)} offset:3584
global_load_dwordx4 {V(GU+8,4)}, v1, {P(sWU)}
global_load_dwordx4 {V(GU+12,4)}, v1, {P(sWU)} offset:3584
s_lshl_b32 s41, s45, 16
s_lshl_b32 s42, s44, 5
s_add_u32 s41, s41, s42
s_add_u32 s41, s41, 4096
v_lshlrev_b32 v1, 13, v2
v_lshl_add_u32 v1, v3, 2, v1
v_add_u32 v1, s41, v1""")
for r in range(8): a(f"global_load_dword v{WDn + 4*(r&1) + (r>>1)}, v1, {P(sWD)} offset:{1024*r-4096}")
a(f"""v_lshrrev_b32 v9, 4, v0
v_lshlrev_b32 v8, 1, v9
v_xor_b32 v8, v8, v0
v_and_b32 v8, 15, v8
v_lshlrev_b32 v8, 4, v8
v_lshl_add_u32 v8, v9, 10, v8
v_bfe_u32 v10, v0, 2, 2
v_lshl_add_u32 v16, v9, 3, v10
v_and_b32 v9, 1, v9
v_lshl_add_u32 v9, v9, 2, v10
v_and_b32 v10, 3, v0
v_lshl_add_u32 v10, v9, 2, v10
v_lshlrev_b32 v10, 3, v10
v_lshl_add_u32 v16, v16, 8, v10
v_xor_b32 v9, 128, v8
s_lshl_b32 s4, s{sH}, 13
s_add_u32 s4, s4, {L_SLOT + 32768}
v_add_u32 v16, s4, v16
s_lshl_b32 s41, s{sC}, 17
s_lshl_b32 s42, s{sH}, 8
s_add_u32 s41, s41, s42
s_add_u32 s0, s{sWO}, s41
s_addc_u32 s1, s{sWO+1}, 0""")
for f in range(1, 8): a(f"v_xor_b32 v{16+f}, {32*f}, v16")
for s in range(4):
    for j in range(8):
        a(f"""s_add_u32 m0, s4, {1024*j}
        global_load_lds_dwordx4 v{8 + ((j>>1)&1)}, s[0:1]
        s_add_u32 s0, s0, 4096
        s_addc_u32 s1, s1, 0""")
    a("s_waitcnt vmcnt(0)")
    for f in range(8):
        for hf in range(2): a(f"ds_read_b64_tr_b16 {V(WO+32*s+4*f+2*hf,2)}, v{16+f} offset:{1024*hf}")
        if f == 5: a("s_waitcnt lgkmcnt(4)")
    a("s_waitcnt lgkmcnt(0)")
a(f"v_mov_b32 v1, {L_SC}")
lds_inc(1, SC_QFIX, 8)
a(f"""v_mov_b64 v[8:9], -1
v_mov_b64 v[10:11], -1
s_lshl_b32 s41, s{sB}, 13
s_lshl_b32 s42, s{sH}, 11
s_add_u32 s41, s41, s42
s_add_u32 s41, s41, {WS_XN}
v_lshl_add_u32 v1, v0, 4, s41
global_store_dwordx4 v1, v[8:11], {P(sWS)} sc1
global_store_dwordx4 v1, v[8:11], {P(sWS)} offset:1024 sc1
s_lshr_b32 s41, s{sH}, 1
s_lshl_b32 s41, s41, 19
s_and_b32 s42, s{sH}, 1
s_lshl_b32 s42, s42, 10
s_add_u32 s41, s41, s42
s_lshl_b32 s42, s{sB}, 11
s_add_u32 s41, s41, s42
s_add_u32 s41, s41, {WS_CAND}
v_lshl_add_u32 v1, v0, 4, s41
global_store_dwordx4 v1, v[8:11], {P(sWS)} sc1
s_cmp_ge_u32 s{sB}, 224
s_cbranch_scc1 H_bursts
s_setprio {E('FP', 0)}""")
for base in (GU, GU+8, WDn):
    for i in range(4): tr_pair(base+i, base+4+i, 12)
a(f"""s_setprio 2
v_lshlrev_b32 v2, 4, v2
v_lshl_add_u32 v2, v3, 15, v2
s_lshl_b32 s41, s45, 18
s_lshr_b32 s42, s44, 3
s_lshl_b32 s42, s42, 13
s_add_u32 s41, s41, s42
s_and_b32 s42, s44, 7
s_lshl_b32 s42, s42, 7
s_add_u32 s41, s41, s42
s_add_u32 s41, s41, {WS_FS}
v_add_u32 v1, s41, v2""")
for i in range(4): a(f"global_store_dwordx4 v1, {V(GU+4*i,4)}, {P(sWS)} offset:{1024*i} sc1")
a(f"""s_lshl_b32 s41, s44, 18
s_lshr_b32 s42, s45, 3
s_lshl_b32 s42, s42, 13
s_add_u32 s41, s41, s42
s_and_b32 s42, s45, 7
s_lshl_b32 s42, s42, 7
s_add_u32 s41, s41, s42
s_add_u32 s41, s41, {WS_FS + 4096}
v_add_u32 v1, s41, v2""")
for i in range(2): a(f"global_store_dwordx4 v1, {V(WDn+4*i,4)}, {P(sWS)} offset:{1024*i} sc1")
a("H_bursts:")
TS(5)
OF, AC = 8, 32
sSB, sLB = 44, 45
a(f"""s_lshr_b32 s41, s{sH}, 1
s_and_b32 s42, s{sH}, 1
s_lshl_b32 s{sSB}, s41, 13
s_lshl_b32 s43, s42, 10
s_add_u32 s{sSB}, s{sSB}, s43
s_add_u32 s{sSB}, s{sSB}, {L_SLOT}
s_lshl_b32 s{sLB}, s41, 9
s_add_u32 s{sLB}, s{sLB}, {L_L}
v_bfe_u32 v3, v0, 3, 2
v_mul_u32_u24 v3, {QSTR}, v3
v_and_b32 v8, 7, v0
v_lshl_add_u32 v3, v8, 5, v3
s_mul_i32 s43, s41, {4*QSTR}
s_add_u32 s43, s43, {L_O}
v_add_u32 v3, s43, v3
v_and_b32 v2, 15, v0
v_mul_u32_u24 v2, {QSTR}, v2
v_lshrrev_b32 v8, 4, v0
v_lshl_add_u32 v2, v8, 4, v2
v_add_u32 v2, {L_O}, v2
s_mul_i32 s{sOPB}, s{sL}, {OPL}
s_mov_b32 s98, 0x00ff00ff
s_mov_b32 s99, 0x00ff00ff
s_mul_i32 s41, s{sH}, 12288
s_add_u32 s{sOPB}, s{sOPB}, s41
s_add_u32 s{sOPB}, s{sOPB}, {WS_OP}
s_add_u32 s{sOTAG}, s{sTAG}, s{sL}
s_add_u32 s{sOTAG}, s{sOTAG}, 1""")
def corr(g):
    l0 = a.newlabel("H_c0"); l1 = a.newlabel("H_c1")
    a(f"""s_andn2_b32 s41, s{sL}, s{sSLOW}
    s_cbranch_scc0 {l0}
    v_lshrrev_b32 v28, 5, v0
    s_lshl_b32 s41, s{sH}, 5
    s_add_u32 s41, s41, {L_VS}
    v_lshl_add_u32 v28, v28, 4, s41
    ds_read_b128 v[8:11], v3 offset:{L_Q - L_O + 8*QSTR*g}
    ds_read_b128 v[12:15], v3 offset:{L_Q - L_O + 8*QSTR*g + 16}
    ds_read_b128 v[28:31], v28
    s_waitcnt lgkmcnt(1)
    v_dot2_f32_bf16 v1, v8, s{sKSL[0]}, 0""")
    for i in range(1, 8): a(f"v_dot2_f32_bf16 v1, v{8+i}, s{sKSL[i]}, v1")
    a(f"""v_exp_f32 v1, v1
    s_waitcnt lgkmcnt(0)
    v_and_b32 v1, 0xffff0000, v1
    v_pk_mul_f32 v[28:29], v[28:29], v[0:1] op_sel:[0,1] op_sel_hi:[1,1]
    v_pk_mul_f32 v[30:31], v[30:31], v[0:1] op_sel:[0,1] op_sel_hi:[1,1]
    s_branch {l1}
    {l0}:
    v_mov_b32 v1, 0
    v_mov_b64 v[28:29], 0
    v_mov_b64 v[30:31], 0
    {l1}:""")
def norm_pre(g):
    a(f"""v_and_b32 v10, 31, v0
    s_add_u32 s41, s{sLB}, {1024*g}
    v_lshl_add_u32 v10, v10, 2, s41
    v_lshl_add_u32 v24, v0, 4, s{sSB}""")
def normalize(g, sleep):
    if sleep:
        lb = a.newlabel("H_lw")
        a(f"""v_lshl_add_u32 v13, v0, 3, s{sLB}
        s_mov_b32 s{sCNT}, 0
        {lb}:
        ds_read_b32 v8, v13 offset:{1024*g}
        s_waitcnt lgkmcnt(0)
        v_cmp_eq_u32 vcc, -1, v8""")
        poll_guard(lb, "s_cbranch_vccz", "H_lwd", 4, sleep)
    a(f"""ds_read2_b32 v[8:9], v10 offset0:0 offset1:32
    ds_read2_b32 v[10:11], v10 offset0:64 offset1:96""")
    for w in range(4): a(f"ds_read_b128 {V(12+4*w,4)}, v24 offset:{16384*g + 2048*w}")
    a(f"""s_waitcnt lgkmcnt(4)
    v_pk_add_f32 v[8:9], v[8:9], v[10:11]
    v_add_f32 v8, v8, v9
    v_add_f32 v8, v8, v1
    v_rcp_f32 v9, v8
    s_waitcnt lgkmcnt(2)""")
    pkadd(12, 12, 16, 4)
    pkadd(12, 12, 28, 4)
    a(f"""v_lshrrev_b32 v11, 5, v0
    s_and_b32 s41, s{sH}, 1
    s_lshl_b32 s41, s41, 4
    v_lshl_add_u32 v11, v11, 3, v3
    s_waitcnt lgkmcnt(0)""")
    pkadd(20, 20, 24, 4)
    a("v_add_u32 v11, s41, v11")
    pkadd(12, 12, 20, 4)
    lb = a.newlabel("H_nb")
    a(f"""v_pk_mul_f32 v[12:13], v[12:13], v[8:9] op_sel:[0,1] op_sel_hi:[1,1]
    v_pk_mul_f32 v[14:15], v[14:15], v[8:9] op_sel:[0,1] op_sel_hi:[1,1]
    v_cvt_pk_bf16_f32 v16, v12, v13
    v_cvt_pk_bf16_f32 v17, v14, v15
    ds_write_b64 v11, v[16:17] offset:{8*QSTR*g}
    v_pk_add_f32 v[12:13], v[12:13], v[14:15]
    v_add_f32 v12, v12, v13
    v_fma_f32 v8, v12, 0, v8
    v_subrev_u32 v8, {(127-80)<<23}, v8
    v_cmp_lt_u32 vcc, {(0 if (FORCE>>g)&1 else (180<<23))}, v8
    s_cbranch_vccz {lb}
    s_cmp_lg_u32 s{sSLOW}, 0
    s_cbranch_scc1 {lb}
    v_mov_b32 v8, {L_SC}
    v_mov_b32 v9, 1
    ds_write_b32 v8, v9 offset:{SC_BAD}
    {lb}:""")
def hsync(idx, bad=True):
    lb = a.newlabel("H_hs")
    a(f"""s_lshl_b32 s41, s{sL}, 4
    s_add_u32 s41, s41, {L_SC}
    v_mov_b32 v8, s41
    v_mov_b32 v11, {L_SC}""")
    lds_inc(8, SC_OCNT + 4*idx, 9)
    lds_wait(8, SC_OCNT + 4*idx, 9, 4, 3)
    if bad:
        a(f"""ds_read_b32 v9, v11 offset:{SC_BAD}
        s_waitcnt lgkmcnt(0)
        v_cmp_ne_u32 vcc, 0, v9
        s_cbranch_vccnz H_toX""")
def oproj(first):
    if first: a("s_setprio 0")
    for s in range(4):
        a(f"s_waitcnt lgkmcnt({3-s})")
        for f in range(8):
            a(f"v_mfma_f32_16x16x32_bf16 {V(AC+4*f,4)}, {V(OF+4*s,4)}, {V(WO+32*s+4*f,4)}, {'0' if (s==0 and first) else V(AC+4*f,4)}")
def osend(bi):
    if bi == 0 or B1P0: a("s_setprio 0")
    a("s_waitcnt lgkmcnt(0)")
    def st(f):
        if bi == 1: a("s_mov_b64 exec, s[98:99]")
        a(f"global_store_dwordx4 v24, {V(AC+4*f,4)}, {P(sWS)} offset:{(1024*f - 4096) if bi == 0 else (1024*(f&3) + 128*(f>>2))} sc1")
        if bi == 1: a("s_mov_b64 exec, -1")
    for f in range(8):
        for s in range(4):
            a(f"v_mfma_f32_16x16x32_bf16 {V(AC+4*f,4)}, {V(WO+32*s+4*f,4)}, {V(OF+4*s,4)}, {'0' if s==0 else V(AC+4*f,4)}")
        if f >= 2: st(f-2)
    st(6); st(7)
    if bi == 0 or B1P0: a("s_setprio 2")
def flag_poll(vaddr, sleep):
    lp = a.newlabel("H_fp")
    a(f"""s_mov_b32 s{sCNT}, 0
    {lp}:""")
    a(f"""global_load_dword v8, v{vaddr}, {P(sWS)} sc1
    s_waitcnt vmcnt(0)
    v_cmp_ne_u32 vcc, s{sOTAG}, v8""")
    poll_guard(lp, "s_cbranch_vccz", "H_fpd", 1, sleep)
def dstbase(sd, g, off):
    a(f"""s_add_u32 s{sd}, s{sC}, {1 + g}
    s_and_b32 s{sd}, s{sd}, 3
    s_andn2_b32 s43, s{sB}, 3
    s_add_u32 s{sd}, s{sd}, s43
    s_mul_i32 s{sd}, s{sd}, 49152
    s_add_u32 s{sd}, s{sd}, s{sOPB}
    s_add_u32 s{sd}, s{sd}, {off}""")
def send_addr(bi):
    if bi == 0:
        dstbase(41, 0, 4096); dstbase(42, 1, 4096)
        a(f"""v_lshl_add_u32 v24, v0, 4, s42
        s_mov_b64 exec, s[98:99]
        v_lshl_add_u32 v24, v0, 4, s41
        s_mov_b64 exec, -1""")
    else:
        dstbase(41, 2, 8192)
        a("v_lshl_add_u32 v24, v0, 4, s41")
send_addr(1)
a(f"""v_mov_b64 v[8:9], -1
v_mov_b64 v[10:11], -1""")
for f in range(4): a(f"global_store_dwordx4 v24, v[8:11], {P(sWS)} offset:{1024*f} sc1")
if E("NP", 0): a("s_setprio 0")
corr(0); norm_pre(0); normalize(0, 16); corr(1); norm_pre(1)
if E("NP", 0): a("s_setprio 2")
normalize(1, 8)
hsync(0)
for s_ in range(4): a(f"ds_read_b128 {V(OF+4*s_,4)}, v2 offset:{64*s_}")
send_addr(0)
a(f"""s_add_u32 s41, s{sC}, 1
v_add_u32 v25, s41, v0
v_and_b32 v25, 3, v25
v_lshlrev_b32 v25, 11, v25
v_lshl_add_u32 v25, v0, 9, v25
s_lshl_b32 s41, s43, 11
s_lshl_b32 s42, s{sH}, 7
s_add_u32 s41, s41, s42
s_add_u32 s41, s41, {WS_OPF}
v_add_u32 v25, s41, v25
v_mov_b32 v27, s{sOTAG}""")
osend(0)
a(f"""s_waitcnt vmcnt(0)
s_mov_b64 exec, 7
global_store_dword v25, v27, {P(sWS)} sc1
s_mov_b64 exec, -1""")
TS(6)
def recv01(nonblock=False):
    a(f"""s_mul_i32 s41, s{sB}, 49152
    s_add_u32 s41, s41, s{sOPB}
    v_lshl_add_u32 v24, v0, 4, s41
    v_add_u32 v26, 4096, v24
    s_lshl_b32 s41, s{sB}, 11
    s_lshl_b32 s42, s{sH}, 7
    s_add_u32 s41, s41, s42
    s_add_u32 s41, s41, {WS_OPF}
    v_min_u32 v25, 2, v0
    v_lshl_add_u32 v25, v25, 9, s41""")
    if nonblock:
        a(f"""v_lshlrev_b32 v13, 4, v0
        v_add_u32 v13, {L_L + 2048}, v13
        s_mov_b32 s{sCNT}, 0
        H_nbp:
        ds_read_b32 v8, v13
        s_waitcnt lgkmcnt(0)
        v_cmp_eq_u32 vcc, -1, v8
        s_cbranch_vccz H_b1
        s_add_u32 s{sCNT}, s{sCNT}, 1
        s_cmp_ge_u32 s{sCNT}, {POLLMAX}
        s_cbranch_scc1 H_b1
        s_sleep 4
        global_load_dword v8, v25, {P(sWS)} sc1
        s_waitcnt vmcnt(0)
        v_cmp_ne_u32 vcc, s{sOTAG}, v8
        s_cbranch_vccnz H_nbp""")
    else:
        flag_poll(25, 2)
    if nonblock:
        a(f"""s_lshl_b32 s41, s{sH}, 13
        s_add_u32 s41, s41, {L_SLOT}""")
        for f in range(8):
            if f % 4 == 0: a(f"s_add_u32 m0, s41, {1024*f}")
            a(f"global_load_lds_dwordx4 v{24 + 2*(f>>2)}, {P(sWS)} offset:{1024*(f&3)} sc1")
    else:
        for f in range(8): a(f"global_load_dwordx4 {V(AC+4*f,4)}, v26, {P(sWS)} offset:{1024*f - 4096} sc1")
a(f"s_mov_b32 s{sCAND}, 0")
recv01(True)
a(f"s_mov_b32 s{sCAND}, 1\nH_b1:")
corr(2); norm_pre(2); normalize(2, 4)
hsync(1)
for s_ in range(4): a(f"ds_read_b128 {V(OF+4*s_,4)}, v2 offset:{64*s_ + 16*QSTR}")
send_addr(1)
osend(1)
TS(9)
a(f"""s_cmp_lg_u32 s{sCAND}, 0
s_cbranch_scc1 H_r2""")
recv01()
a(f"""H_r2:
s_mul_i32 s41, s{sB}, 49152
s_add_u32 s41, s41, s{sOPB}
s_add_u32 s41, s41, 8192
v_lshl_add_u32 v26, v0, 4, s41
s_cmp_lg_u32 s{sL}, 0
s_cbranch_scc1 H_npf
s_lshl_b32 s41, s{sH}, 12
v_lshl_add_u32 v8, v0, 6, s41
global_load_dword v28, v8, {P(sWK)}
global_load_dword v29, v8, {P(sWV)}
H_npf:
s_mov_b32 s{sCNT}, 0
s_sleep {E("PS", 24)}
H_p2:""")
for f in range(4): a(f"global_load_dwordx4 {V(8+4*f,4)}, v26, {P(sWS)} offset:{1024*f} sc1")
a(f"""s_waitcnt vmcnt(0)
v_max3_u32 v24, v8, v12, v16
v_max_u32 v24, v24, v20
v_cmp_eq_u32 vcc, -1, v24""")
poll_guard("H_p2", "s_cbranch_vccz", "H_p2d", 1, 4)
a(f"""s_cmp_eq_u32 s{sCAND}, 0
s_cbranch_scc1 H_r3
s_lshl_b32 s41, s{sH}, 13
s_add_u32 s41, s41, {L_SLOT}
v_lshl_add_u32 v24, v0, 4, s41""")
for f in range(8): a(f"ds_read_b128 {V(AC+4*f,4)}, v24 offset:{1024*f}")
a("s_waitcnt lgkmcnt(0)\nH_r3:\ns_mov_b64 exec, s[98:99]")
pkadd(AC, AC, 8, 16)
a("s_not_b64 exec, s[98:99]")
pkadd(AC+16, AC+16, 8, 16)
a("s_mov_b64 exec, -1")
a(f"""s_cmp_lg_u32 s{sL}, 0
s_cbranch_scc1 H_nwf
""")
for g in range(3):
    a(f"s_add_u32 s6, s{sH}, {8*g}")
    pos2tok(41, 6)
    a(f"""s_lshl_b32 s41, s41, 10
    s_add_u32 s{3+g}, s41, {WS_XN + 2048}""")
a("H_nwf:")
TS(10)
a(f"""v_and_b32 v8, 8, v0
v_cmp_eq_u32 vcc, 0, v8
v_lshrrev_b32 v8, 4, v0
v_lshlrev_b32 v8, 4, v8
v_add_u32 v8, {L_SC + SC_ZERO - 24*QSTR}, v8
v_cndmask_b32 v2, v8, v2, vcc""")
corr(3)
norm_pre(3)
a("s_barrier")
normalize(3, 0)
a(f"""v_mov_b32 v24, {L_SC}
s_waitcnt lgkmcnt(0)
s_barrier
ds_read_b32 v24, v24 offset:{SC_BAD}""")
for s_ in range(4): a(f"ds_read_b128 {V(OF+4*s_,4)}, v2 offset:{64*s_ + 24*QSTR}")
a(f"""v_lshrrev_b32 v26, 4, v0
v_and_b32 v25, 15, v0
v_mul_u32_u24 v25, {RS}, v25
v_lshl_add_u32 v25, v26, 4, v25
s_lshl_b32 s41, s{sH}, 9
s_add_u32 s41, s41, {L_ROW}
v_add_u32 v1, s41, v25
s_waitcnt lgkmcnt(4)
v_cmp_ne_u32 vcc, 0, v24
s_cbranch_vccnz H_slow""")
def fm(f, s_): a(f"v_mfma_f32_16x16x32_bf16 {V(AC+4*f,4)}, {V(WO+32*s_+4*f,4)}, {V(OF+4*s_,4)}, {V(AC+4*f,4)}")
for s_ in range(4):
    a(f"s_waitcnt lgkmcnt({3-s_})")
    fm(0, s_); fm(1, s_)
for f in range(2, 8):
    for s_ in range(4): fm(f, s_)
    if f >= 3: a(f"ds_write_b128 v1, {V(AC+4*(f-3),4)} offset:{64*(f-3)}")
for f in (5, 6, 7): a(f"ds_write_b128 v1, {V(AC+4*f,4)} offset:{64*f}")
a("s_setprio 0\ns_branch R_P4")
a("H_FF2:")
for i in range(0, 24, 2): a(f"v_mov_b64 {V(GU+i,2)}, {V(64+i,2)}")
a("H_FFN:")
key_get(1)
a(f"""s_cmp_lg_u32 s{sF}, 0
s_cbranch_scc1 H_nl""")
ffn_loads()
a("H_nl:")
a(f"""s_lshr_b32 s41, s{sSEL}, 3
s_lshl_b32 s41, s41, 11
s_lshl_b32 s42, s{sF}, 19
s_add_u32 s41, s41, s42
s_add_u32 s41, s41, {WS_CAND}
s_lshl_b32 s42, s{sH}, 8
s_add_u32 s42, s42, s41
v_lshl_add_u32 v2, v0, 2, s42
s_lshl_b32 s42, s{sJ}, 2
s_add_u32 s42, s42, s41
v_mov_b32 v9, s42
s_lshl_b32 s42, s{sF}, 2
v_add_u32 v37, s42, v3
s_mov_b32 s{sCNT}, 0""")
TSF(11)
a(f"""H_xs:
global_load_dword v8, v2, {P(sWS)} sc1
global_load_dword v38, v9, {P(sWS)} sc1
global_load_dword v39, v9, {P(sWS)} offset:1024 sc1
s_waitcnt vmcnt(0)
v_max3_u32 v10, v8, v38, v39
v_cmp_eq_u32 vcc, -1, v10""")
poll_guard("H_xs", "s_cbranch_vccz", "H_xsd")
a(f"""s_cmp_ge_u32 s{sJ}, 224
s_cbranch_scc1 H_down""")
for i in range(16): a(f"v_dot2_f32_bf16 v{GU+i}, v{GU+i}, v8, 0")
for c in range(8): a(f"v_permlane32_swap_b32 v{GU+c}, v{GU+8+c}")
pkadd(GU, GU, GU+8, 8)
for c in range(4): a(f"v_permlane16_swap_b32 v{GU+c}, v{GU+4+c}")
pkadd(GU, GU, GU+4, 4)
for m in ("row_ror:8", "row_ror:4", "row_ror:2", "row_ror:1"):
    for c in range(4): a(f"v_add_f32_dpp v{GU+c}, v{GU+c}, v{GU+c} {m} row_mask:0xf bank_mask:0xf")
a(f"""v_lshrrev_b32 v2, 4, v0
s_lshl_b32 s41, s{sH}, 6
s_add_u32 s41, s41, {L_SC + SC_FACC}
v_lshl_add_u32 v2, v2, 4, s41
v_mov_b32 v9, 1
s_mov_b32 exec_lo, 0x00010001
s_mov_b32 exec_hi, 0x00010001
ds_write_b128 v2, {V(GU,4)}
s_mov_b64 exec, 1
ds_add_rtn_u32 v10, v37, v9 offset:{SC_FCNT}
s_mov_b64 exec, -1
v_and_b32 v2, 1, v0
v_bfe_u32 v9, v0, 1, 2
v_lshlrev_b32 v9, 2, v9
v_lshl_add_u32 v9, v2, 4, v9
v_add_u32 v9, {L_SC + SC_FACC}, v9
s_waitcnt lgkmcnt(0)
v_readfirstlane_b32 s42, v10
s_cmp_lg_u32 s42, 3
s_cbranch_scc1 H_down""")
for w in range(4): a(f"ds_read2_b32 {V(12+2*w,2)}, v9 offset0:{16*w} offset1:{16*w+8}")
a(f"""s_lshl_b32 s41, s{sJ}, 7
s_lshl_b32 s42, s{sF}, 15
s_add_u32 s41, s41, s42
s_add_u32 s41, s41, {WS_HY}
v_lshl_add_u32 v2, v0, 1, s41
s_waitcnt lgkmcnt(0)
v_pk_add_f32 v[12:13], v[12:13], v[14:15]
v_pk_add_f32 v[16:17], v[16:17], v[18:19]
v_pk_add_f32 v[12:13], v[12:13], v[16:17]
v_cvt_pk_bf16_f32 v12, v12, v13
v_and_b32 v13, 0xffff0000, v12
v_lshlrev_b32 v12, 16, v12
v_mul_f32 v14, 0xbfb8aa3b, v12
v_exp_f32 v14, v14
v_add_f32 v14, 1.0, v14
v_rcp_f32 v14, v14
v_mul_f32 v12, v12, v14
v_cvt_pk_bf16_f32 v12, v12, v12
v_lshlrev_b32 v12, 16, v12
v_mul_f32 v12, v12, v13
v_mov_b32_dpp v13, v12 quad_perm:[1,1,3,3] row_mask:0xf bank_mask:0xf
v_cvt_pk_bf16_f32 v12, v12, v13
s_mov_b64 exec, 0x55
global_store_dword v2, v12, {P(sWS)} sc1
s_mov_b64 exec, -1
H_down:
s_lshl_b32 s41, s{sH}, 6
v_add_u32 v1, s41, v0
v_min_u32 v2, 223, v1
s_lshl_b32 s42, s{sF}, 15
s_add_u32 s42, s42, {WS_HY}
v_lshl_add_u32 v2, v2, 7, s42
s_mov_b32 s{sCNT}, 0""")
TSF(12)
a(f"""s_cmp_lg_u32 s{sF}, 0
s_cbranch_scc1 H_nkw""")
a(f"s_sleep {E('HS0', 20)}\nH_nkw:")
a(f"""s_and_b32 s41, s{sF}, s{sCAND}
s_cbranch_scc0 H_ncs
s_cmp_eq_u32 s{sSEL}, s{sTOK}
s_cbranch_scc1 H_ncs
s_lshl_b32 s41, s{sTOK}, 10
v_lshl_add_u32 v9, v0, 4, s41
global_store_dwordx4 v9, {V(XR,4)}, {P(sOUT)}
H_ncs:""")
if HS1: a(f"s_sleep {HS1}")
a(f"""s_mov_b32 s{sCNT}, 0
s_mov_b64 vcc, -1
H_hp:
s_mov_b64 exec, {"vcc" if E("MSK", 1) else "-1"}
global_load_dwordx4 v[12:15], v2, {P(sWS)} sc1
s_mov_b64 exec, -1
s_waitcnt vmcnt(0)
v_max3_u32 v9, v12, v13, v14
v_max_u32 v9, v9, v15
v_cmp_eq_u32 vcc, -1, v9""")
poll_guard("H_hp", "s_cbranch_vccz", "H_hpd", 1, E("HR", 3))
TSF(13)
a(f"""v_dot2_f32_bf16 v8, v{WDn}, v12, 0
v_dot2_f32_bf16 v9, v{WDn+4}, v12, 0""")
for i in range(1, 4):
    a(f"v_dot2_f32_bf16 v8, v{WDn+i}, v{12+i}, v8")
    a(f"v_dot2_f32_bf16 v9, v{WDn+4+i}, v{12+i}, v9")
a(f"""v_cmp_gt_u32 vcc, 224, v1
v_cndmask_b32 v8, 0, v8, vcc
v_cndmask_b32 v9, 0, v9, vcc
v_permlane32_swap_b32 v8, v9
v_add_f32 v8, v8, v9""")
for m in ("row_ror:8", "row_ror:4", "row_ror:2", "row_ror:1"):
    a(f"v_add_f32_dpp v8, v8, v8 {m} row_mask:0xf bank_mask:0xf")
a(f"""v_add_f32_dpp v8, v8, v8 row_bcast:15 row_mask:0xa bank_mask:0xf
v_lshrrev_b32 v2, 5, v0
s_lshl_b32 s41, s{sH}, 3
s_add_u32 s41, s41, {L_SC + SC_DACC}
v_lshl_add_u32 v2, v2, 2, s41
v_mov_b32 v9, 1
s_mov_b32 exec_lo, 0x80000000
s_mov_b32 exec_hi, 0x80000000
ds_write_b32 v2, v8
s_mov_b64 exec, 1
ds_add_rtn_u32 v12, v37, v9 offset:{SC_DCNT}
s_mov_b64 exec, -1
s_lshr_b32 s41, s{sKEY}, 16
s_and_b32 s42, s41, 0x7fff
s_xor_b32 s43, s41, 0xffff
s_bitcmp1_b32 s41, 15
s_cselect_b32 s41, s42, s43
s_lshl_b32 s41, s41, 16
v_mov_b32 v11, s41
v_mul_f32 v11, 0xbfb8aa3b, v11
v_exp_f32 v11, v11
v_add_f32 v11, 1.0, v11
v_rcp_f32 v11, v11
v_cvt_pk_bf16_f32 v11, v11, v11
v_lshlrev_b32 v11, 16, v11
s_waitcnt lgkmcnt(0)
v_readfirstlane_b32 s42, v12
s_cmp_lg_u32 s42, 3
s_cbranch_scc1 H_ffd
ds_read_b128 v[12:15], v3 offset:{SC_DACC}
ds_read_b128 v[16:19], v3 offset:{SC_DACC+16}
s_waitcnt lgkmcnt(0)
v_pk_add_f32 v[12:13], v[12:13], v[14:15]
v_pk_add_f32 v[16:17], v[16:17], v[18:19]
v_pk_add_f32 v[8:9], v[12:13], v[16:17]""")
pack(12, 8, 1); unpack(8, 12, 1)
a("v_mul_f32 v8, v8, v11\nv_mul_f32 v9, v9, v11")
pack(12, 8, 1); unpack(8, 12, 1); unpack(14, 38, 1)
a("v_add_f32 v8, v8, v14\nv_add_f32 v9, v9, v15")
pack(12, 8, 1); unpack(8, 12, 1); unpack(14, 39, 1)
a("v_add_f32 v8, v8, v14\nv_add_f32 v9, v9, v15")
pack(12, 8, 1)
a(f"""s_mov_b64 exec, 1
s_cmp_lg_u32 s{sF}, 0
s_cbranch_scc1 H_fo
s_lshl_b32 s41, s{sJ}, 7
s_add_u32 s41, s41, {WS_Y}
v_mov_b32 v2, s41
global_store_dword v2, v12, {P(sWS)} sc1
s_branch H_fo2
H_fo:
s_lshl_b32 s41, s{sSEL}, 10
s_lshl_b32 s42, s{sJ}, 2
s_add_u32 s41, s41, s42
v_mov_b32 v2, s41
global_store_dword v2, v12, {P(sOUT)}{OUTG}
H_fo2:
s_mov_b64 exec, -1
H_ffd:
s_cmp_lg_u32 s{sF}, 0
s_cbranch_scc1 L_end""")
a(f"""s_lshl_b32 s41, s{sH}, 13
s_add_u32 s41, s41, {WS_Y}
v_lshl_add_u32 v1, v0, 7, s41
s_lshl_b32 s41, s{sH}, 8
s_add_u32 s41, s41, {L_X2S}
v_lshl_add_u32 v2, v0, 2, s41
s_mov_b32 s{sCNT}, 0
s_sleep {E('YS', 20)}
s_mov_b64 vcc, -1
H_yw:
s_mov_b64 exec, {"vcc" if E("MSK", 1) else "-1"}
global_load_dword v40, v1, {P(sWS)} sc1
s_mov_b64 exec, -1
s_waitcnt vmcnt(0)
v_cmp_eq_u32 vcc, -1, v40""")
poll_guard("H_yw", "s_cbranch_vccz", "H_yd", 1, 3)
a(f"""ds_write_b32 v2, v40
v_mov_b32 v2, 1
s_mov_b64 exec, 1
ds_add_rtn_u32 v41, v3, v2 offset:{SC_YC}
s_mov_b64 exec, -1
v_lshlrev_b32 v1, 4, v0
v_add_u32 v1, {L_XS}, v1
s_waitcnt lgkmcnt(0)
v_readfirstlane_b32 s41, v41
s_cmp_lg_u32 s41, 3
s_cbranch_scc1 H_fx1
ds_read_b128 v[40:43], v1 offset:1024
s_waitcnt lgkmcnt(0)""")
unpack(X_, 40)
ln(X_, D_, T_, XN)
a(f"ds_write_b128 v1, {V(XN,4)}")
lds_inc(3, SC_XSF, 2)
a(f"""H_fx1:
s_xor_b32 s41, s{sSEL}, s{sTOK}
s_lshr_b32 s41, s41, 5
s_cbranch_scc1 H_fx2""")
lds_wait(3, SC_XSF, 2, 1, 2)
qtr_addr()
a(f"""v_lshrrev_b32 v12, 4, v0
v_lshlrev_b32 v8, 4, v12
v_add_u32 v8, {L_XS}, v8
v_add_u32 v9, 64, v8
v_add_u32 v10, 128, v8
v_add_u32 v11, 192, v8
s_lshl_b32 s41, s{sC}, 3
s_sub_u32 s41, s{sSEL}, s41
s_sub_u32 s41, s41, 8
s_and_b32 s41, s41, 31
s_mul_i32 s41, s41, {QSTR}
s_lshl_b32 s42, s{sH}, 6
s_add_u32 s41, s41, s42
s_add_u32 s41, s41, {L_Q}
v_lshl_add_u32 v2, v12, 3, s41
v_mov_b32 v3, {L_SC + SC_QFIX - SC_QC}
s_mov_b32 s{sQM}, 2
s_branch H_qp
H_fx3:
v_mov_b32 v3, {L_SC}""")
lds_wait(3, SC_QFIX, 2, 8, 1)
a(f"""H_fx2:""")
a(f"s_lshl_b32 s98, s{sH}, 14")
wkv_dma(1, 98)
a("s_waitcnt vmcnt(0)")
wkv_tr(8, 1, 2, 98)
lds_wait(3, SC_XSF, 2, 1, 2)
TSA(14)
a(f"""v_lshrrev_b32 v2, 4, v0
s_lshl_b32 s41, s{sH}, 8
s_add_u32 s41, s41, {L_XS}
v_lshl_add_u32 v1, v2, 4, s41""")
for s in range(4): a(f"ds_read_b128 {V(40+4*s,4)}, v1 offset:{64*s}")
a(f"""s_lshl_b32 s41, s{sH}, 7
s_add_u32 s41, s41, {L_KVP}
v_lshl_add_u32 v2, v2, 4, s41
s_waitcnt lgkmcnt(0)""")
for s in range(4):
    a(f"v_mfma_f32_16x16x32_bf16 v[56:59], {V(8+8*s,4)}, {V(40+4*s,4)}, {'0' if s==0 else 'v[56:59]'}")
    a(f"v_mfma_f32_16x16x32_bf16 v[60:63], {V(8+8*s+4,4)}, {V(40+4*s,4)}, {'0' if s==0 else 'v[60:63]'}")
a(f"""s_mov_b32 exec_lo, 0x00010001
s_mov_b32 exec_hi, 0x00010001
ds_write_b128 v2, v[56:59]
ds_write_b128 v2, v[60:63] offset:64
s_mov_b64 exec, -1""")
hsync(2, False)
a(f"""v_and_b32 v42, 7, v0
v_lshlrev_b32 v1, 3, v42
v_add_u32 v1, {L_KVP}, v1
v_lshrrev_b32 v2, 5, v0
s_and_b32 s41, s{sH}, 1
s_lshl_b32 s41, s41, 5
s_add_u32 s41, s41, {L_KVP + 64}
v_lshl_add_u32 v40, v2, 4, s41
s_lshl_b32 s41, s{sH}, 5
s_add_u32 s41, s41, {L_VS}
v_lshl_add_u32 v41, v2, 4, s41""")
for w in range(4): a(f"ds_read_b64 {V(8+2*w,2)}, v1 offset:{128*w}")
for w in range(4): a(f"ds_read_b128 {V(16+4*w,4)}, v40 offset:{128*w}")
a(f"""v_lshlrev_b32 v1, 2, v42
v_add_u32 v1, {L_KVP}, v1
s_waitcnt lgkmcnt(4)
v_pk_add_f32 v[8:9], v[8:9], v[10:11]
v_pk_add_f32 v[12:13], v[12:13], v[14:15]
v_pk_add_f32 v[8:9], v[8:9], v[12:13]
v_cvt_pk_bf16_f32 v8, v8, v9
s_waitcnt lgkmcnt(0)""")
pkadd(16, 16, 20, 4); pkadd(24, 24, 28, 4); pkadd(16, 16, 24, 4)
for i in range(8): a(f"v_readlane_b32 s{sKSL[i]}, v8, {i}")
pack(20, 16, 2); unpack(16, 20, 2)
a(f"""ds_write_b128 v41, v[16:19]
ds_write_b32 v1, v8 offset:{L_KS - L_KVP}""")
a(f"""s_cmp_lg_u32 s{sTOK}, 7
s_cbranch_scc1 H_nE
s_add_u32 s41, s{sE}, 2
v_mov_b32 v1, 0
v_mov_b32 v2, s41
s_mov_b64 exec, 1
global_store_dword v1, v2, {P(sWS)} sc1
s_mov_b64 exec, -1
H_nE:""")
ffn_loads(64)
a(f"""s_branch H_bursts
H_toX:
s_barrier
s_barrier
H_slow:
s_waitcnt vmcnt(0) lgkmcnt(0)
s_barrier
v_mov_b64 v[28:29], -1
v_mov_b64 v[30:31], -1
s_lshl_b32 s41, s{sH}, 10
s_add_u32 s41, s41, {L_L}
v_lshl_add_u32 v1, v0, 4, s41
ds_write_b128 v1, v[28:31]
s_lshl_b32 s41, s{sH}, 8
s_add_u32 s41, s41, {L_M}
v_lshl_add_u32 v1, v0, 2, s41
v_mov_b32 v8, 0xff800000
ds_write_b32 v1, v8
s_lshl_b32 s41, s{sL}, 4
s_add_u32 s41, s41, {L_SC}
v_mov_b32 v1, s41
v_mov_b32 v2, {L_SC}
v_mov_b64 v[8:9], 0
ds_write_b64 v1, v[8:9] offset:{SC_OCNT}
ds_write_b32 v2, v8 offset:{SC_BAD}
s_mov_b32 s{sSLOW}, 1
s_waitcnt lgkmcnt(0)
s_barrier
s_barrier
s_branch H_bursts
A_slow:
s_waitcnt vmcnt(0)
s_barrier
s_cmp_eq_u32 s3, 15
s_cbranch_scc1 A_sl1
v_lshrrev_b32 v8, 5, v0
v_lshlrev_b32 v8, 4, v8
v_add_u32 v8, {L_KS}, v8
ds_read_b128 v[32:35], v8
v_and_b32 v9, 15, v0
v_lshlrev_b32 v9, 2, v9
v_add_u32 v9, {L_VS}, v9
ds_read_b32 v36, v9
v_and_b32 v9, 27, v0
v_cmp_eq_u32 vcc, 16, v9
v_mov_b32 v10, 0x3f800000
v_cndmask_b32 v10, 0, v10, vcc
v_and_b32 v9, 16, v0
v_cmp_eq_u32 vcc, 0, v9
s_waitcnt lgkmcnt(0)
v_cndmask_b32 v36, v10, v36, vcc
s_bitcmp1_b32 s{sSEL}, 0
s_cselect_b32 s41, 0, 16
v_lshrrev_b32 v36, s41, v36
s_mov_b64 exec, s[6:7]
s_lshl_b32 s41, s3, 4
s_add_u32 s41, s41, s4
s_set_gpr_idx_on s41, gpr_idx(SRC0,DST)
s_nop 1
v_or_b32 v{VV}, v{VV}, v36
s_nop 1
s_set_gpr_idx_off
s_bfe_u32 s41, s101, 0x20006
s_lshl_b32 s41, s41, 3
s_and_b32 s42, s{sSEL}, 7
s_add_u32 s41, s41, s42
s_lshl_b32 s42, 1, s41
s_mov_b32 exec_lo, s42
s_mov_b32 exec_hi, s42
s_bfe_u32 s41, s101, 0x10008
s_lshl_b32 s42, s3, 1
s_add_u32 s41, s41, s42
s_lshl_b32 s41, s41, 2
s_set_gpr_idx_on s41, gpr_idx(DST)
s_nop 1
v_mov_b32 v{KK}, v32
v_mov_b32 v{KK+1}, v33
v_mov_b32 v{KK+2}, v34
v_mov_b32 v{KK+3}, v35
s_nop 1
s_set_gpr_idx_off
s_mov_b64 exec, -1
A_sl1:
v_and_b32 v14, 31, v0
v_lshlrev_b32 v14, 2, v14
v_add_u32 v14, {L_M}, v14""")
att_addr()
a(f"""s_barrier
s_mov_b32 s44, 0
A_sm:
s_mul_i32 s41, s44, {4*QSTR}
v_add_u32 v{Q}, s41, v{vQA}
ds_read_b128 {V(Q,4)}, v{Q}
v_mov_b32 v15, 0xff800000
s_waitcnt lgkmcnt(0)""")
for kt in range(NT):
    a(f"v_mfma_f32_32x32x16_bf16 {V(S0,16)}, {V(KK+4*kt,4)}, {V(Q,4)}, 0")
    for i in range(0, 16, 2): a(f"v_max3_f32 v15, v15, v{S0+i}, v{S0+i+1}")
a(f"""v_lshl_add_u32 v13, s44, 7, v14
ds_max_f32 v13, v15
s_add_u32 s44, s44, 1
s_cmp_lt_u32 s44, 8
s_cbranch_scc1 A_sm
s_waitcnt lgkmcnt(0)
s_barrier
s_mov_b32 s44, 0
A_se:
s_mul_i32 s41, s44, {4*QSTR}
v_add_u32 v{Q}, s41, v{vQA}
ds_read_b128 {V(Q,4)}, v{Q}
v_lshl_add_u32 v13, s44, 7, v14
ds_read_b32 v15, v13
s_waitcnt lgkmcnt(0)""")
for i in range(16): a(f"v_sub_f32 v{S1+i}, 0, v15")
for i in range(0, 16, 2): a(f"v_mov_b64 {V(ACC+i,2)}, 0")
for kt in range(NT):
    a(f"v_mfma_f32_32x32x16_bf16 {V(S0,16)}, {V(KK+4*kt,4)}, {V(Q,4)}, {V(S1,16)}")
    ex(S0, 0, 16)
    smf(2*kt, S0); smf(2*kt+1, S0+8)
a("s_mov_b32 s41, s44")
flush()
a(f"""s_add_u32 s44, s44, 1
s_cmp_lt_u32 s44, 8
s_cbranch_scc1 A_se
s_branch A_X
L_end:
""")
if TSON:
    TS(15)
    a(f"""s_getreg_b32 s75, hwreg(HW_REG_HW_ID)
    s_mul_i32 s41, s{sB}, 12
    s_add_u32 s41, s41, s{sW}
    s_lshl_b32 s41, s41, 7
    s_add_u32 s41, s41, {WS_TS}
    v_mov_b32 v1, s41
    s_mov_b64 exec, 1""")
    for i in range(32):
        a(f"v_mov_b32 v2, s{60+i}\nglobal_store_dword v1, v2, {P(sWS)} offset:{4*i}")
if os.environ.get("DLY"):
    i_, j_ = [int(x) for x in os.environ["DLY"].split(",")]
    a(f"""s_cmp_lg_u32 s{sTOK}, {int(os.environ.get("DLYW", "4"))}
    s_cbranch_scc1 L_exit
    s_sub_u32 s41, s{60+j_}, s{60+i_}
    s_mul_i32 s41, s41, 4
    s_min_u32 s41, s41, 40000
    s_add_u32 s41, s41, s91
    s_add_u32 s41, s41, 1000
    L_dly:
    s_memrealtime s[92:93]
    s_waitcnt lgkmcnt(0)
    s_sub_u32 s42, s92, s41
    s_cmp_lt_i32 s42, 0
    s_cbranch_scc1 L_dly""")
if os.environ.get("DBGT"):
    a(f"""s_mov_b64 exec, 1
    v_mov_b32 v1, 0
    s_not_b32 s41, s60
    v_mov_b32 v2, s41
    global_atomic_umax v1, v2, {P(sDBG)}""")
    for k, slot in enumerate((31, 1, 2, 3, 5, 9, 7, 21, 25, 23, 24, 27, 29, 16, 0)):
        a(f"v_mov_b32 v2, s{60+slot}\nglobal_atomic_umax v1, v2, {P(sDBG)} offset:{4+4*k}")
a("L_exit:\ns_endpgm")

ABL = os.environ.get("ABL", "")
if ABL:
    from asmlib import Ins
    out_items = []; cur = ""
    for it in a.items:
        if isinstance(it, Ins) and it.label: cur = it.label
        drop = False
        if isinstance(it, Ins) and it.text:
            idx = len(out_items)
            t = it.text
            if "ds_write_b32 v8, v9 offset:96" in t: drop = True
            inH = region[0]
            if "w" in ABL and inH == "prep" and it.op == "v_perm_b32": drop = True
            if "m" in ABL and inH == "burst" and it.op.startswith("v_mfma"): drop = True
            if "v" in ABL and inH == "burst" and it.op in ("v_pk_add_f32", "v_pk_mul_f32", "v_dot2_f32_bf16", "v_cvt_pk_bf16_f32", "v_add_f32", "v_exp_f32", "v_rcp_f32", "v_fma_f32"): drop = True
            if "f" in ABL and inH == "ffn" and (it.op.startswith("v_dot2") or it.op.startswith("v_permlane") or it.op.startswith("v_add_f32_dpp") or it.op.startswith("v_pk_") or it.op.startswith("v_mfma")): drop = True
        if isinstance(it, Ins) and it.label == "H_prep": region[0] = "prep"
        if isinstance(it, Ins) and it.label == "H_bursts": region[0] = "burst"
        if isinstance(it, Ins) and it.label == "H_nwf": region[0] = ""
        if isinstance(it, Ins) and it.label == "H_FFN": region[0] = "ffn"
        if isinstance(it, Ins) and it.label == "H_toX": region[0] = ""
        if not drop: out_items.append(it)
    a.items = out_items
n = a.hazard_pass()
hdr = open(f"cdna_kernels/{NAME}.s.ref").read().split("; Override launch")[0]
out = hdr + f"""; @launch grid=(256,1,1) block=(512,1,1) lds=163840
.amdgcn_target "amdgcn-amd-amdhsa--gfx950"
.text
.globl {NAME}_kernel
.p2align 8
.type {NAME}_kernel,@function
{NAME}_kernel:
""" + a.text() + f""".section .rodata,"a"
.p2align 6
.amdhsa_kernel {NAME}_kernel
  .amdhsa_next_free_vgpr 256
  .amdhsa_next_free_sgpr 102
  .amdhsa_accum_offset 256
  .amdhsa_group_segment_fixed_size 0
  .amdhsa_kernarg_size 104
  .amdhsa_user_sgpr_count 2
  .amdhsa_user_sgpr_kernarg_segment_ptr 1
  .amdhsa_system_sgpr_workgroup_id_x 1
  .amdhsa_float_denorm_mode_32 3
.end_amdhsa_kernel
"""
open(sys.argv[1], "w").write(out)
print("nops inserted", n, "instructions", sum(1 for i in a.items if not isinstance(i, str) and i.text))
```

```python
import sys, os
from asmlib import Asm
NAME = "interleave_layers__grouped_kv_mqa__moe_arch_mod__prompt"
TSON = bool(int(os.environ.get("TS", "0")))
a = Asm()
region = ['']
def E(n, d): return int(os.environ.get(n, str(d)))

WS_FLAG = 0x1000; WS_KEY = 0x400000; WS_HY = WS_KEY + 0x10000; WS_Y = WS_KEY + 0x20000; WS_KV = 0x30000; WS_CAND = 0x80000; KVS = 640; KVL = 256*640
WS_OPF = 0x180000
WS_XN = 0x200000; WS_OP = 0x600000; OPL = 0xc00000; WS_TS = 0x3000000; WS_FS = 0x2000000; WS_WKV = 0x2800000
L_SLOT = 65536; L_XN = 114688; L_O = 131072; L_Q = 147456; L_L = 156160; L_SC = 160768
L_ROW = L_SLOT; L_PS = L_SLOT + 16384; L_KVS = L_Q
L_WK1 = 98816
L_XS = 139776; L_X2S = L_XS + 1024; L_KVP = L_XS + 2048; L_VS = L_XS + 2560; L_KS = L_XS + 2816; L_M = L_XS + 3072
QSTR = 272
RS = 2064
SC_KVCNT = 0; SC_KEYS = 16; SC_OCNT = 64; SC_FACC = 128; SC_FCNT = 384; SC_DACC = 400; SC_DCNT = 464; SC_GK = 480
SC_XSF = 512; SC_QFIX = 516; SC_BAD = 96; SC_XNC = 528; SC_QC = 536; SC_CLR = 564; SC_C2 = 560; SC_XN2 = 556; SC_B1 = 552; SC_KVD = 544; SC_YC = 548; SC_ZERO = 768; SC_WR = 1024
FORCE = int(os.environ.get('FORCE', '0'))
POLLMAX = 40000
B1P0 = bool(int(os.environ.get('B1P0', '1')))
HS1 = int(os.environ.get('HS1', '14'))
KS1 = int(os.environ.get('KS1', '0'))
HLNP = int(os.environ.get('HLNP', '2'))
OUTF = ' ' + os.environ.get('OF1', '')
OUTG = ' ' + os.environ.get('OF2', '')
NPRE = int(os.environ.get('NPRE', '2'))
CODECH = int(os.environ.get('CODECH', '6'))
QSCALE = 0x3eb8aa3b

sX, sWQ, sWK, sWV, sWO, sWR, sWG, sWU, sWD, sOUT, sDBG, sWS = 8, 10, 12, 14, 16, 20, 22, 24, 26, 28, 30, 32
sE, sW, sL, sC, sTAG, sLO, sHI = 34, 35, 36, 37, 38, 39, 40
sCNT, sJ, sKEY, sTOK, sMASK, sH, sSEL, sOTAG, sF, sCAND, sMYK, sWT = 46, 47, 48, 49, 50, 51, 52, 53, 54, 55, 56, 57
sORD = 58
sKS = 0
sSLOW = 19
sPB = 100
XL = E('XL', 0)
sSLOT = 96; sQM = 97; sX4 = 97
sOPB = 50
sB = 18
sKSL = [0, 1, 2, 3, 4, 5, 6, 7]
def P(n): return f"s[{n}:{n+1}]"
def V(n, k=1): return f"v{n}" if k == 1 else f"v[{n}:{n+k-1}]"

def TS(i):
    if not TSON: return
    a(f"""s_memrealtime s[92:93]
    s_waitcnt lgkmcnt(0)
    s_cmp_eq_u32 s{sL}, 0
    s_cselect_b32 s{60+i}, s92, s{60+i}""")
    if not os.environ.get("SO"): a(f"s_cselect_b32 s{76+i}, s{76+i}, s92")
SO = bool(os.environ.get("SO"))
def TSS(slot):
    if not (TSON and SO) or os.environ.get("P0"): return
    a(f"""s_memrealtime s[92:93]
    s_waitcnt lgkmcnt(0)
    s_cmp_eq_u32 s{60+slot}, 0
    s_cselect_b32 s{60+slot}, s92, s{60+slot}""")
def TSA(slot):
    if not TSON or (SO and slot >= 16): return
    a(f"""s_memrealtime s[92:93]
    s_waitcnt lgkmcnt(0)
    s_mov_b32 s{60+slot}, s92""")
def TSF(i):
    if not TSON or SO: return
    a(f"""s_memrealtime s[92:93]
    s_waitcnt lgkmcnt(0)
    s_cmp_eq_u32 s{sF}, 0
    s_cselect_b32 s{60+i}, s92, s{60+i}
    s_cselect_b32 s{76+i}, s{76+i}, s92""")
def TC(i):
    return
    a(f"""s_memtime s[92:93]
    s_waitcnt lgkmcnt(0)
    s_mov_b32 s{94+i}, s92""")

def poll_guard(lbl_retry, cond_branch, lbl_stem, mult=1, sleep=0):
    done = a.newlabel(lbl_stem)
    a(f"{cond_branch} {done}")
    if sleep: a(f"s_sleep {sleep}")
    a(f"""s_add_u32 s{sCNT}, s{sCNT}, 1
    s_cmp_lt_u32 s{sCNT}, {POLLMAX*mult}
    s_cbranch_scc1 {lbl_retry}
    {done}:""")
def lds_wait(vaddr, off, vt, target, sleep=1):
    lb = a.newlabel("W")
    a(f"s_mov_b32 s{sCNT}, 0\n{lb}:")
    a(f"""ds_read_b32 v{vt}, v{vaddr} offset:{off}
    s_waitcnt lgkmcnt(0)
    v_cmp_gt_u32 vcc, {target}, v{vt}""")
    poll_guard(lb, "s_cbranch_vccz", "Wd", 8, sleep)
def lds_inc(vaddr, off, vt):
    a(f"""v_mov_b32 v{vt}, 1
    s_mov_b64 exec, 1
    ds_add_u32 v{vaddr}, v{vt} offset:{off}
    s_mov_b64 exec, -1""")

def dpp_reduce(regs, op="v_add_f32"):
    for m in ("row_ror:8", "row_ror:4", "row_ror:2", "row_ror:1"):
        for r in regs: a(f"{op}_dpp v{r}, v{r}, v{r} {m} row_mask:0xf bank_mask:0xf")
    for r in regs: a(f"{op}_dpp v{r}, v{r}, v{r} row_bcast:15 row_mask:0xa bank_mask:0xf")
    for r in regs: a(f"{op}_dpp v{r}, v{r}, v{r} row_bcast:31 row_mask:0xc bank_mask:0xf")
def unpack(dst, src, n=4):
    for i in range(n):
        a(f"v_lshlrev_b32 v{dst+2*i}, 16, v{src+i}")
        a(f"v_and_b32 v{dst+2*i+1}, 0xffff0000, v{src+i}")
def pack(dst, src, n=4):
    for i in range(n): a(f"v_cvt_pk_bf16_f32 v{dst+i}, v{src+2*i}, v{src+2*i+1}")
def pkadd(d, x, y, n):
    for i in range(0, n, 2): a(f"v_pk_add_f32 {V(d+i,2)}, {V(x+i,2)}, {V(y+i,2)}")
def tr_pair(e, o, t):
    a(f"""v_perm_b32 v{t}, v{o}, v{e}, s{sLO}
    v_perm_b32 v{o}, v{o}, v{e}, s{sHI}
    v_mov_b32 v{e}, v{t}""")
def ln(X, D, T, out, extra=[]):
    a(f"v_readfirstlane_b32 s42, v{X}")
    for i in range(0, 8, 2): a(f"v_pk_add_f32 {V(D+i,2)}, {V(X+i,2)}, s[42:43] op_sel_hi:[1,0] neg_lo:[0,1] neg_hi:[0,1]")
    a(f"""v_pk_add_f32 {V(T,2)}, {V(D,2)}, {V(D+2,2)}
    v_pk_mul_f32 {V(T+2,2)}, {V(D,2)}, {V(D,2)}
    v_pk_add_f32 {V(T,2)}, {V(T,2)}, {V(D+4,2)}
    v_pk_fma_f32 {V(T+2,2)}, {V(D+2,2)}, {V(D+2,2)}, {V(T+2,2)}
    v_pk_add_f32 {V(T,2)}, {V(T,2)}, {V(D+6,2)}
    v_pk_fma_f32 {V(T+2,2)}, {V(D+4,2)}, {V(D+4,2)}, {V(T+2,2)}
    v_add_f32 v{T}, v{T}, v{T+1}
    v_pk_fma_f32 {V(T+2,2)}, {V(D+6,2)}, {V(D+6,2)}, {V(T+2,2)}
    v_mul_f32 v{T}, 0x3b000000, v{T}
    v_add_f32 v{T+1}, v{T+2}, v{T+3}""")
    dpp_reduce([T, T+1] + extra)
    a(f"""v_mul_f32 v{T+1}, 0x3b000000, v{T+1}
    v_fma_f32 v{T+1}, -v{T}, v{T}, v{T+1}
    v_add_f32 v{T}, s42, v{T}
    v_max_f32 v{T+1}, 0, v{T+1}
    v_cvt_pk_bf16_f32 v{T}, v{T}, v{T+1}
    v_and_b32 v{T+1}, 0xffff0000, v{T}
    v_lshlrev_b32 v{T}, 16, v{T}
    v_add_f32 v{T+1}, 0x3727c5ac, v{T+1}
    v_readlane_b32 s42, v{T}, 63
    v_cvt_pk_bf16_f32 v{T+1}, 0, v{T+1}
    v_sqrt_f32 v{T+1}, v{T+1}""")
    for i in range(0, 4, 2): a(f"v_pk_add_f32 {V(D+i,2)}, {V(X+i,2)}, s[42:43] op_sel_hi:[1,0] neg_lo:[0,1] neg_hi:[0,1]")
    a(f"""v_cvt_pk_bf16_f32 v{T+1}, 0, v{T+1}
    v_rcp_f32 v{T+1}, v{T+1}""")
    for i in range(4, 8, 2): a(f"v_pk_add_f32 {V(D+i,2)}, {V(X+i,2)}, s[42:43] op_sel_hi:[1,0] neg_lo:[0,1] neg_hi:[0,1]")
    for i in range(4): a(f"v_cvt_pk_bf16_f32 v{D+i}, 0, v{D+i}")
    a(f"v_readlane_b32 s42, v{T+1}, 63")
    for i in range(4, 8): a(f"v_cvt_pk_bf16_f32 v{D+i}, 0, v{D+i}")
    for i in range(0, 8, 2): a(f"v_pk_mul_f32 {V(D+i,2)}, {V(D+i,2)}, s[42:43] op_sel_hi:[1,0]")
    pack(out, D)

XR = 4
X_, D_, T_, XN, X1, WR = 8, 16, 24, 28, 32, 36
XO = 36
vQA, vOA, vIDX = 1, 2, 3
Q, ZZ, ACC, S0, S1, KK, VV = 8, 12, 16, 32, 48, 64, 128
WKV = 64
WQR, WO = 64, 128
FOR = 224
GU, WDn = 40, 56

def wkv_dma(vt, sreg):
    a(f"""s_lshl_b32 s41, s{sH}, 12
    v_lshl_add_u32 v{vt}, v0, 4, s41
    s_mov_b32 m0, s{sreg}""")
    for k in range(4): a(f"global_load_lds_dwordx4 v{vt}, {P(sWK)} offset:{1024*k}")
    a(f"s_add_u32 m0, s{sreg}, 4096")
    for k in range(4): a(f"global_load_lds_dwordx4 v{vt}, {P(sWV)} offset:{1024*k}")
def wkv_tr(dst, vt, vt2, sreg):
    a(f"""v_lshrrev_b32 v{vt}, 4, v0
    v_and_b32 v{vt2}, 15, v0
    v_lshlrev_b32 v{vt2}, 3, v{vt2}
    v_lshl_add_u32 v{vt}, v{vt}, 8, v{vt2}
    v_add_u32 v{vt}, s{sreg}, v{vt}""")
    for k in range(4):
        for m in range(2):
            for hf in range(2):
                a(f"ds_read_b64_tr_b16 {V(dst+8*k+4*m+2*hf,2)}, v{vt} offset:{4096*m + 1024*k + 128*hf}")
        if k == 2: a("s_waitcnt lgkmcnt(4)")
def ffn_loads(GU=40):
    a(f"""s_lshl_b32 s41, s{sJ}, 15
    s_lshl_b32 s42, s{sH}, 13
    s_add_u32 s41, s41, s42
    s_add_u32 s41, s41, {WS_FS + 4096}
    v_lshl_add_u32 v2, v0, 4, s41""")
    for i in range(6): a(f"global_load_dwordx4 {V(GU+4*i,4)}, v2, {P(sWS)} offset:{1024*i-4096} sc1")
def gloads(v):
    for g in range(3): a(f"v_lshl_add_u32 v{v+g}, v0, 4, s{3+g}")
    for i in range(6): a(f"global_load_dwordx4 {V(40+4*i,4)}, v{v+(i>>1)}, {P(sWS)} offset:{4096*(i&1)-2048} sc1")
def pos2tok(dst, src):
    a(f"""s_lshl_b32 s{dst}, s{sC}, 3
    s_add_u32 s{dst}, s{dst}, s{src}
    s_add_u32 s{dst}, s{dst}, 8
    s_and_b32 s{dst}, s{dst}, 31
    s_andn2_b32 s43, s{sTOK}, 31
    s_add_u32 s{dst}, s{dst}, s43""")

a(f"""
s_cmp_ge_u32 s2, 256
s_cbranch_scc1 L_exit
s_load_dwordx16 s[8:23], s[0:1], 0
s_load_dwordx8 s[24:31], s[0:1], 64
s_load_dwordx2 s[32:33], s[0:1], 96
v_lshrrev_b32 v1, 6, v0
v_and_b32 v0, 63, v0
s_mov_b32 s{sL}, 0
v_readfirstlane_b32 s{sW}, v1
s_mov_b32 s{sLO}, 0x05040100
s_mov_b32 s{sHI}, 0x07060302
s_mov_b32 s{sF}, 0
s_and_b32 s41, s2, 7
s_lshl_b32 s41, s41, 3
s_bfe_u32 s42, s2, 0x30003
s_or_b32 s41, s41, s42
s_andn2_b32 s42, s2, 63
s_or_b32 s{sSLOT}, s41, s42
s_mov_b32 s{sSEL}, -1
s_and_b32 s{sJ}, s2, 7
s_lshl_b32 s{sJ}, s{sJ}, 5
s_lshr_b32 s41, s2, 3
s_add_u32 s{sJ}, s{sJ}, s41
s_and_b32 s{sH}, s{sW}, 3
s_mov_b32 s{sPB}, s2
{"s_mov_b32 s2, s%d" % sJ if XL else "s_nop 0"}
s_and_b32 s{sC}, s2, 3
s_lshl_b32 s{sTOK}, s2, 3
s_add_u32 s{sTOK}, s{sTOK}, s{sW}
s_lshl_b32 s41, s{sTOK}, 10
v_lshl_add_u32 v1, v0, 4, s41
v_mov_b64 v[12:13], -1
v_mov_b64 v[14:15], -1
s_cmp_lg_u32 s{sW}, 7
s_cbranch_scc1 S_z
v_lshlrev_b32 v2, 4, v0
v_add_u32 v2, {L_L}, v2
ds_write_b128 v2, v[12:15]
ds_write_b128 v2, v[12:15] offset:1024
ds_write_b128 v2, v[12:15] offset:2048
ds_write_b128 v2, v[12:15] offset:3072
v_mov_b64 v[8:9], 0
v_mov_b64 v[10:11], 0
ds_write_b128 v2, v[8:11] offset:{L_SC - L_L}
S_z:
""")
if TSON:
    for i in range(32): a(f"s_mov_b32 s{60+i}, 0")
TS(0)
a(f"""
s_waitcnt lgkmcnt(0)
s_mov_b32 s{sB}, s2
s_mov_b32 s{sSLOW}, 0
global_load_dwordx4 {V(XR,4)}, v1, {P(sX)}
s_barrier
s_cmp_ge_u32 s{sW}, 4
s_cbranch_scc1 S_noA
s_setprio 2
v_add_u32 v16, 4096, v1
global_load_dwordx4 {V(FOR,4)}, v16, {P(sX)}""")
for g in range(2):
    a(f"s_add_u32 s44, s{sH}, {8*g}")
    pos2tok(41, 44)
    a(f"""s_lshl_b32 s41, s41, 10
    s_add_u32 s41, s41, 2048
    v_lshl_add_u32 v{16+g}, v0, 4, s41""")
a(f"""s_lshl_b32 s98, s{sH}, 13
s_add_u32 s98, s98, {L_XN}
s_cmp_eq_u32 s{sH}, 3
s_cselect_b32 s98, {L_Q}, s98""")
wkv_dma(8, 98)
for i in range(4): a(f"global_load_dwordx4 {V(FOR+4+4*i,4)}, v{16+(i>>1)}, {P(sX)} offset:{4096*(i&1)-2048}")
TSS(16)
a(f"""s_waitcnt vmcnt(12)
s_branch R_P1
S_noA:
s_load_dword s{sE}, {P(sWS)}, 0
s_cmp_lg_u32 s{sW}, 7
s_cbranch_scc1 S_n7
s_setprio {E("W7P", 3)}
s_mul_i32 s41, s{sSLOT}, {KVS}
s_add_u32 s41, s41, {WS_KV}
v_lshl_add_u32 v1, v0, 4, s41
v_add_u32 v3, {KVL}, v1
v_mov_b32 v16, 0x3f803f80
v_cmp_eq_u32 vcc, 32, v0
v_cndmask_b32 v16, 0, v16, vcc
v_cmp_gt_u32 vcc, 32, v0
v_cndmask_b32 v16, v16, v12, vcc
v_mov_b32 v17, v16
v_mov_b64 v[18:19], v[16:17]
s_mov_b32 exec_hi, 0xff
global_store_dwordx4 v1, v[16:19], {P(sWS)} sc1
global_store_dwordx4 v3, v[16:19], {P(sWS)} sc1
s_mov_b32 exec_hi, -1
s_lshl_b32 s41, s2, 7
s_add_u32 s41, s41, {WS_KEY}
s_lshl_b32 s42, s{sJ}, 7
s_add_u32 s42, s42, {WS_KEY}
v_mov_b32 v1, s41
v_mov_b32 v3, s42
v_cmp_gt_u32 vcc, 2, v0
v_cndmask_b32 v1, v3, v1, vcc
v_lshl_add_u32 v1, v0, 15, v1
s_mov_b64 exec, 0x1f
global_store_dwordx4 v1, v[12:15], {P(sWS)} sc1
s_mov_b64 exec, -1
""")
a(f"""S_n7:
s_setprio 1
s_cmp_lg_u32 s{sW}, 6
s_cbranch_scc1 H_stage
v_lshlrev_b32 v1, 4, v0
global_load_dwordx4 v[44:47], v1, {P(sWR)}
s_branch H_stage""")
def key_make():
    a(f"""v_cvt_pk_bf16_f32 v1, 0, v1
    v_ashrrev_i32 v2, 31, v1
    v_or_b32 v2, 0x80000000, v2
    v_xor_b32 v1, v1, v2
    v_and_b32 v1, 0xffff0000, v1
    s_sub_u32 s41, 2047, s{sTOK}
    v_or_b32 v1, s41, v1
    s_lshl_b32 s41, s{sF}, 3
    s_add_u32 s41, s41, {L_SC + SC_KEYS}
    v_mov_b32 v3, s41
    v_readlane_b32 s{sMYK}, v1, 63
    v_mov_b32 v2, 1
    s_mov_b32 exec_lo, 0
    s_mov_b32 exec_hi, 0x80000000
    ds_max_u32 v3, v1
    ds_add_rtn_u32 v2, v3, v2 offset:4
    ds_read_b32 v1, v3
    s_mov_b64 exec, -1""")
def key_pub():
    lb = a.newlabel("K_np")
    a(f"""s_lshl_b32 s41, s{sB}, 7
    s_lshl_b32 s42, s{sF}, 15
    s_add_u32 s41, s41, s42
    s_add_u32 s41, s41, {WS_KEY}
    v_mov_b32 v3, s41
    s_waitcnt lgkmcnt(0)
    v_readlane_b32 s6, v2, 63
    s_cmp_lg_u32 s6, 7
    s_cbranch_scc1 {lb}
    s_mov_b32 exec_lo, 0
    s_mov_b32 exec_hi, 0x80000000
    global_store_dword v3, v1, {P(sWS)} sc1
    s_mov_b64 exec, -1
    {lb}:
    v_mov_b32 v3, {L_SC}""")
a("R_P1:")
TS(1)
unpack(X_, XR)
ln(X_, D_, T_, XO)
a(f"""s_add_u32 s41, s{sW}, 8
v_xor_b32 v2, s41, v0
s_add_u32 s41, s{sW}, 24
s_lshl_b32 s41, s41, 10
s_add_u32 s41, s41, {L_XN}
v_lshl_add_u32 v2, v2, 4, s41
ds_write_b128 v2, {V(XO,4)}
s_cmp_eq_u32 s{sL}, 0
s_cbranch_scc1 S_l0
s_lshl_b32 s41, s{sTOK}, 10
s_add_u32 s41, s41, {WS_XN}
v_lshl_add_u32 v2, v0, 4, s41
s_cmp_ge_u32 s{sW}, 4
s_cbranch_scc1 R_nw
s_waitcnt vmcnt(1)
s_cmp_eq_u32 s6, 7
s_cbranch_scc1 R_nw
s_waitcnt vmcnt(0)
R_nw:
global_store_dwordx4 v2, {V(XO,4)}, {P(sWS)} sc1
s_cmp_ge_u32 s{sW}, 4
s_cbranch_scc1 H_B1
s_setprio 3""")
wkv_tr(WKV, 8, 9, 98)
a(f"""A_kvp:
v_and_b32 v8, 7, v0
v_add_u32 v8, 8, v8
v_lshrrev_b32 v9, 4, v0
v_xor_b32 v9, v9, v8
v_lshlrev_b32 v8, 10, v8
s_lshl_b32 s41, s{sH}, 8
s_add_u32 s41, s41, {L_XN + 16*1024}
v_add_u32 v8, s41, v8
v_xor_b32 v10, 4, v9
v_xor_b32 v11, 8, v9
v_xor_b32 v12, 12, v9
v_lshl_add_u32 v9, v9, 4, v8
v_lshl_add_u32 v10, v10, 4, v8
v_lshl_add_u32 v11, v11, 4, v8
v_lshl_add_u32 v12, v12, 4, v8
s_cmp_eq_u32 s{sL}, 0
s_cbranch_scc1 A_kv2
s_waitcnt lgkmcnt(0)
s_barrier
A_kv2:
ds_read_b128 v[40:43], v9
ds_read_b128 v[44:47], v10
ds_read_b128 v[48:51], v11
ds_read_b128 v[52:55], v12
s_lshl_b32 s41, s{sH}, 11
s_add_u32 s41, s41, {L_KVS}
v_lshl_add_u32 v8, v0, 4, s41
s_lshl_b32 s42, s{sL}, 2
v_add_u32 v9, s42, v3
v_mov_b32 v10, 1""")
for s in range(4):
    a(f"s_waitcnt lgkmcnt({3-s})")
    a(f"v_mfma_f32_16x16x32_bf16 v[56:59], {V(WKV+8*s,4)}, {V(40+4*s,4)}, {'0' if s==0 else 'v[56:59]'}")
    a(f"v_mfma_f32_16x16x32_bf16 v[60:63], {V(40+4*s,4)}, {V(WKV+8*s+4,4)}, {'0' if s==0 else 'v[60:63]'}")
a(f"""ds_write_b128 v8, v[56:59]
ds_write_b128 v8, v[60:63] offset:1024
s_mov_b64 exec, 1
ds_add_u32 v9, v10 offset:{SC_KVCNT}
s_mov_b64 exec, -1
A_nokv:
s_setprio 0""")
if not os.environ.get("PP"): TS(2)
def stage(src, off, temps):
    for f in range(8):
        t = temps[f % len(temps)]
        for i in range(4):
            a(f"v_perm_b32 v{t+i}, v{src+4*(2*i+1)+(f>>1)}, v{src+4*(2*i)+(f>>1)}, s{sHI if f&1 else sLO}")
        a(f"ds_write_b128 v1, {V(t,4)} offset:{off+1024*f}")
a(f"""s_cmp_lg_u32 s{sL}, 0
s_cbranch_scc1 R_cand
s_setprio 2
s_load_dword s{sE}, {P(sWS)}, 0
s_mov_b32 s45, 5
s_mov_b32 s3, s{sH}
s_branch S_fl
S_l0:""")
TSS(17)
a(f"""v_mov_b32 v3, {L_SC}
s_mov_b32 s44, 0
s_mov_b32 s45, 1
s_add_u32 s3, s{sH}, 28
S_fl:
s_lshl_b32 s41, s44, 2
s_set_gpr_idx_on s41, gpr_idx(SRC0)
s_nop 1
v_mov_b32 v28, v{FOR}
v_mov_b32 v29, v{FOR+1}
v_mov_b32 v30, v{FOR+2}
v_mov_b32 v31, v{FOR+3}
s_nop 1
s_set_gpr_idx_off""")
unpack(40, 28)
ln(40, D_, T_, XO)
a(f"""s_and_b32 s42, s3, 15
v_xor_b32 v28, s42, v0
s_lshl_b32 s41, s3, 10
s_add_u32 s41, s41, {L_XN}
v_lshl_add_u32 v28, v28, 4, s41
ds_write_b128 v28, {V(XO,4)}
s_add_u32 s3, s3, 4
s_add_u32 s44, s44, 1
s_cmp_lg_u32 s44, {E("FLD", 4)}
s_cbranch_scc1 S_nf
s_lshl_b32 s41, s{sH}, 13
s_add_u32 s41, s41, {WS_FLAG}
v_lshl_add_u32 v13, v0, 7, s41
global_load_dword v13, v13, {P(sWS)} sc1
S_nf:
s_cmp_lt_u32 s44, s45
s_cbranch_scc1 S_fl
s_cmp_eq_u32 s45, 5
s_cbranch_scc1 A_P2
s_cmp_eq_u32 s45, 2
s_cbranch_scc1 H_ret""")
TSS(18)
a("s_waitcnt vmcnt(0)")
TSS(19)
wkv_tr(WKV, 8, 9, 98)
lds_inc(3, SC_B1, 8)
TSS(20)
lds_wait(3, SC_B1, 8, 4, 0)
TSS(21)
a(f"""s_setprio 3
s_branch A_kvp
H_B1:
s_waitcnt lgkmcnt(0)
s_barrier
s_setprio 2
s_cmp_lg_u32 s{sW}, 7
s_cbranch_scc1 R_cand
H_fin:
v_and_b32 v12, 3, v0
v_lshrrev_b32 v13, 2, v0
v_lshl_add_u32 v12, v12, 4, v13
v_and_b32 v13, 1, v0
v_lshrrev_b32 v14, 1, v0
v_lshl_add_u32 v13, v13, 4, v14
v_add_u32 v13, 48, v13
v_cmp_gt_u32 vcc, 32, v0
s_lshl_b32 s42, s{sL}, 2
v_add_u32 v9, s42, v3
v_cndmask_b32 v12, v13, v12, vcc
v_lshlrev_b32 v12, 4, v12
v_add_u32 v12, {L_KVS}, v12
s_mul_i32 s41, s{sL}, {KVL}
s_mul_i32 s42, s{sSLOT}, {KVS}
s_add_u32 s41, s41, s42
s_add_u32 s41, s41, {WS_KV}
v_lshl_add_u32 v8, v0, 3, s41""")
lds_wait(9, SC_KVCNT, 11, 4, 0)
for w in range(4): a(f"ds_read_b128 {V(40+4*w,4)}, v12 offset:{2048*w}")
a("s_setprio 3\ns_waitcnt lgkmcnt(2)")
pkadd(40, 40, 44, 4)
a("s_waitcnt lgkmcnt(0)")
pkadd(48, 48, 52, 4); pkadd(40, 40, 48, 4)
pack(40, 40, 2)
a(f"""v_mov_b32_dpp v42, v40 quad_perm:[1,1,3,3] row_mask:0xf bank_mask:0xf
v_mov_b32_dpp v43, v41 quad_perm:[1,1,3,3] row_mask:0xf bank_mask:0xf
s_mov_b32 exec_lo, 0x55555555
s_mov_b32 exec_hi, 0x55555555
global_store_dwordx4 v8, v[40:43], {P(sWS)} sc1
s_mov_b64 exec, -1
s_setprio 2
s_cmp_lg_u32 s{sL}, 0
s_cbranch_scc1 R_cand
s_waitcnt vmcnt(3)
s_branch H_P2""")
a(f"""R_cand:
s_lshl_b32 s41, s{sF}, 3
v_add_u32 v8, s41, v3
ds_read_b32 v8, v8 offset:{SC_KEYS}
s_lshl_b32 s41, s{sF}, 19
s_lshl_b32 s42, s{sB}, 11
s_add_u32 s41, s41, s42
s_add_u32 s41, s41, {WS_CAND}
v_lshl_add_u32 v2, v0, 4, s41
s_waitcnt lgkmcnt(0)
v_readfirstlane_b32 s41, v8
s_mov_b32 s{sCAND}, 0
s_cmp_lg_u32 s41, s{sMYK}
s_cbranch_scc1 R_nocand
s_mov_b32 s{sCAND}, 1
global_store_dwordx4 v2, {V(XN,4)}, {P(sWS)} sc1
global_store_dwordx4 v2, {V(X1,4)}, {P(sWS)} offset:1024 sc1
R_nocand:""")
TSF(8)
a(f"""s_cmp_lg_u32 s{sF}, 0
s_cbranch_scc1 R_tail
s_cmp_ge_u32 s{sW}, 4
s_cbranch_scc1 H_gather""")
def key_reduce():
    dpp_reduce([8], "v_max_u32")
    a(f"""s_lshl_b32 s41, s{sF}, 4
    s_lshl_b32 s42, s{sH}, 2
    s_add_u32 s41, s41, s42
    v_add_u32 v9, s41, v3
    v_add_u32 v8, 1, v8
    s_mov_b32 exec_lo, 0
    s_mov_b32 exec_hi, 0x80000000
    ds_write_b32 v9, v8 offset:{SC_GK}
    s_mov_b64 exec, -1""")
def key_poll():
    l1 = a.newlabel("K_p")
    a(f"""s_lshl_b32 s42, s{sF}, 15
    s_lshl_b32 s41, s{sH}, 13
    s_add_u32 s42, s42, s41
    s_add_u32 s42, s42, {WS_KEY}
    v_lshl_add_u32 v9, v0, 7, s42
    s_mov_b32 s{sCNT}, 0
    s_mov_b32 s44, 0
    s_mov_b64 vcc, -1
    {l1}:
    s_mov_b64 exec, {"vcc" if E("MSK", 1) else "-1"}
    global_load_dword v8, v9, {P(sWS)} sc1
    s_mov_b64 exec, -1
    s_waitcnt vmcnt(0)
    v_cmp_eq_u32 vcc, -1, v8""")
    if E("SPEC", 1):
        a(f"""s_cbranch_vccz K_sd
        v_add_u32 v12, 1, v8""")
        dpp_reduce([12], "v_max_u32")
        a(f"""v_readlane_b32 s41, v12, 63
        s_cmp_eq_u32 s41, s44
        s_cbranch_scc1 K_sn
        s_mov_b32 s44, s41
        s_sub_u32 s41, s41, 1
        s_andn2_b32 s41, 0x7f8, s41
        s_lshl_b32 s41, s41, 8
        s_add_u32 s41, s41, {WS_CAND + 0x80000}
        v_lshl_add_u32 v10, v0, 5, s41
        global_load_dword v11, v10, {P(sWS)} sc1
        K_sn:
        s_add_u32 s{sCNT}, s{sCNT}, 1
        s_cmp_lt_u32 s{sCNT}, {POLLMAX}
        s_cbranch_scc1 {l1}
        K_sd:""")
    else:
        poll_guard(l1, "s_cbranch_vccz", "K_pd", 1, E("KR1", 2))
    key_reduce()
def key_get(sleep):
    l2 = a.newlabel("K_g")
    a(f"""s_lshl_b32 s41, s{sF}, 4
    v_add_u32 v10, s41, v3
    s_mov_b32 s{sCNT}, 0
    {l2}:""")
    a(f"""ds_read_b128 v[16:19], v10 offset:{SC_GK}
    s_waitcnt lgkmcnt(0)
    v_min3_u32 v8, v16, v17, v18
    v_min_u32 v8, v8, v19
    v_cmp_eq_u32 vcc, 0, v8""")
    poll_guard(l2, "s_cbranch_vccz", "K_gd", 8, sleep)
    a(f"""v_max3_u32 v8, v16, v17, v18
    v_max_u32 v8, v8, v19
    v_readfirstlane_b32 s{sKEY}, v8
    s_sub_u32 s{sKEY}, s{sKEY}, 1
    s_and_b32 s41, s{sKEY}, 0x7ff
    s_sub_u32 s{sSEL}, 2047, s41""")
a("A_P2:")
TSS(22)
a(f"""s_lshl_b32 s42, s{sL}, 2
v_add_u32 v9, s42, v3""")
lds_inc(9, SC_XNC, 8)
a(f"""s_mul_i32 s41, s{sL}, {KVL}
s_mul_i32 s42, s{sH}, {64*KVS}
s_add_u32 s41, s41, s42
s_add_u32 s41, s41, {WS_KV + 4*KVS}
v_bfe_u32 v14, v0, 3, 2
v_mul_u32_u24 v14, {KVS}, v14
v_and_b32 v15, 7, v0
v_lshl_add_u32 v14, v15, 5, v14
v_lshrrev_b32 v11, 5, v0
v_lshl_add_u32 v14, v11, 4, v14
v_add_u32 v14, s41, v14
v_and_b32 v15, 31, v0
v_min_u32 v12, 17, v15
v_cmp_eq_u32 vcc, 20, v15
v_cndmask_b32 v15, v12, 16, vcc
v_mul_u32_u24 v11, {KVS}, v11
v_lshl_add_u32 v15, v15, 4, v11
s_add_u32 s41, s41, 256
v_add_u32 v15, s41, v15
s_mov_b32 s{sORD}, 0x65432108
s_mov_b32 s{sORD+1}, 0x7
s_lshl_b32 s41, s{sH}, 13
s_cmp_eq_u32 s{sL}, 0
s_cselect_b32 s{sWT}, 4, 15
s_cselect_b32 s42, {WS_FLAG}, 0
s_cselect_b32 s43, 0, {WS_KEY}
s_add_u32 s41, s41, s42
s_add_u32 s41, s41, s43
v_lshl_add_u32 v10, v0, 7, s41
""")
def kv_base(p):
    a(f"""s_xor_b32 s41, s{sX4}, {p}
    s_mul_i32 s41, s41, {8*KVS}
    s_add_u32 s0, s{sWS}, s41
    s_addc_u32 s1, s{sWS+1}, 0""")
def kv_one(p, i):
    if i % 3 == 0:
        k = i // 3
        a(f"global_load_dwordx4 {V(KK+8*p+4*k,4)}, v14, s[0:1] offset:{4*KVS*k-4*KVS} sc1")
    else:
        j = i - 1 - i // 3
        a(f"global_load_dwordx4 {V(VV+16*p+4*j,4)}, v15, s[0:1] offset:{2*KVS*j-4*KVS} sc1")
def kv_pair(p):
    kv_base(p)
    for i in range(6): kv_one(p, i)
def kv_check(p, younger):
    fr = [KK+8*p, KK+8*p+4] + [VV+16*p+4*i for i in range(4)]
    if os.environ.get("P0"):
        a(f"""s_cmp_lg_u32 s{sL}, {os.environ["P0"]}
        s_cbranch_scc1 C_d{p}
        s_memtime s[92:93]
        s_waitcnt lgkmcnt(0)
        s_mov_b32 s{76+2*p}, s92
        s_waitcnt vmcnt({younger})
        s_memtime s[92:93]
        s_waitcnt lgkmcnt(0)
        s_mov_b32 s{77+2*p}, s92
        C_d{p}:""")
    a(f"""s_waitcnt vmcnt({younger})
    C_r{p}:
    v_max3_u32 v12, v{fr[0]}, v{fr[1]}, v{fr[2]}
    v_max3_u32 v13, v{fr[3]}, v{fr[4]}, v{fr[5]}
    v_max_u32 v12, v12, v13
    v_cmp_eq_u32 vcc, -1, v12
    s_cbranch_vccnz C_x{p}
    C_o{p}:
    s_cmp_eq_u32 s3, {p}
    s_cbranch_scc1 C_m{p}
    C_b{p}:""")
def kv_tail(p):
    a(f"""C_x{p}:
    s_add_u32 s{sCNT}, s{sCNT}, 1
    s_cmp_ge_u32 s{sCNT}, {POLLMAX}
    s_cbranch_scc1 C_o{p}""")
    a("s_mov_b64 s[98:99], s[0:1]")
    kv_pair(p)
    a(f"""s_mov_b64 s[0:1], s[98:99]
    s_waitcnt vmcnt(0)
    s_branch C_r{p}
    C_m{p}:
    v_mov_b32 v12, s5
    s_mov_b64 exec, s[6:7]
    s_set_gpr_idx_on s4, gpr_idx(SRC0,DST)
    s_nop 1
    v_and_b32 v{VV+16*p}, v{VV+16*p}, v12
    s_nop 1
    s_set_gpr_idx_off
    s_mov_b64 exec, -1
    s_nop 1
    s_branch C_b{p}""")
DEP = int(os.environ.get('DEP', '3'))
a(f"""s_and_b32 s{sX4}, s{sPB}, {4 if E("ROT", 3) == 3 else 0}
s_lshr_b32 s41, s{sPB}, 3
s_and_b32 s41, s41, {E("ROT", 3)}
s_or_b32 s{sX4}, s{sX4}, s41
{"s_andn2_b32 s%d, 7, s%d" % (sX4, sB) if E("OWNL", 0) else "s_nop 0"}
s_mov_b32 s{sCNT}, 0
s_cmp_lg_u32 s{sL}, 0
s_cbranch_scc1 A_nfl
s_setprio 0
s_waitcnt vmcnt(0) lgkmcnt(0)
s_mul_i32 s{sTAG}, s{sE}, 0x9e3779b1
s_add_u32 s{sTAG}, s{sTAG}, 0x7f4a7c15
s_sleep {E("FS", 0)}
v_cmp_ne_u32 vcc, s{sTAG}, v13
s_cbranch_vccz A_nf2
A_flg:
global_load_dword v8, v10, {P(sWS)} sc1
s_waitcnt vmcnt(0)
v_cmp_ne_u32 vcc, s{sTAG}, v8""")
poll_guard("A_flg", "s_cbranch_vccz", "A_flgd", 1, 2)
a("s_branch A_nf2\nA_nfl:")
a(f"""s_mov_b32 s{sCNT}, 0
A_xw:
ds_read_b32 v12, v9 offset:{SC_XNC}
s_waitcnt lgkmcnt(0)
v_cmp_gt_u32 vcc, 8, v12
s_cbranch_vccz A_xwd
s_sleep 1
s_add_u32 s{sCNT}, s{sCNT}, 1
s_cmp_lt_u32 s{sCNT}, {E("XT", 100000)}
s_cbranch_scc1 A_xw
A_xwd:""")
a(f"global_load_dword v8, v10, {P(sWS)} sc1\nA_nf2:")
TS(3)
for p in range(DEP): kv_pair(p)
TSS(23)
a(f"""s_mov_b32 s3, 15
s_cmp_eq_u32 s{sL}, 0
s_cbranch_scc1 A_go
s_mov_b32 s{sCNT}, 0
s_waitcnt vmcnt({6*DEP})
s_branch A_kc
A_kp:
s_mov_b64 exec, {"vcc" if E("MSK", 1) else "-1"}
global_load_dword v8, v10, {P(sWS)} sc1
s_mov_b64 exec, -1
s_waitcnt vmcnt(0)
A_kc:
v_cmp_eq_u32 vcc, -1, v8""")
poll_guard("A_kp", "s_cbranch_vccz", "A_kpd", 1, E("KR0", 1))
key_reduce()
key_get(0)
if XL:
    a(f"""s_bfe_u32 s41, s{sSEL}, 0x50003
    s_lshl_b32 s41, s41, 6
    s_lshr_b32 s42, s{sSEL}, 8
    s_lshl_b32 s42, s42, 3
    s_or_b32 s41, s41, s42
    s_and_b32 s42, s{sSEL}, 7
    s_or_b32 s101, s41, s42""")
else:
    a(f"s_mov_b32 s101, s{sSEL}")
a(f"""s_bfe_u32 s4, s101, 0x20007
s_lshl_b32 s4, s4, 2
s_bfe_u32 s42, s{sSEL}, 0x20001
s_add_u32 s4, s4, s42
s_bitcmp1_b32 s{sSEL}, 0
s_mov_b32 s5, 0xffff0000
s_cselect_b32 s5, 0xffff, s5
s_bitcmp1_b32 s101, 6
s_cselect_b32 s6, 0, -1
s_cselect_b32 s7, -1, 0
s_lshr_b32 s41, s101, 9
s_bfe_u32 s42, s101, 0x30003
s_xor_b32 s42, s42, s{sX4}
s_cmp_eq_u32 s41, s{sH}
s_cselect_b32 s3, s42, 15
s_xor_b32 s41, s{sSEL}, s{sTOK}
s_lshr_b32 s41, s41, 5
s_cbranch_scc1 A_go
s_lshl_b32 s41, s{sC}, 3
s_sub_u32 s41, s{sSEL}, s41
s_sub_u32 s41, s41, 8
s_bfe_u32 s{sWT}, s41, 0x30002
s_or_b32 s41, s{sWT}, 1
s_max_u32 s41, s41, {E('POS', 4)}
s_xor_b32 s42, s41, s{sWT}
s_mov_b32 s43, 0
s_lshl_b32 s41, s41, 2
s_add_u32 s41, s41, 4
s_lshl_b64 s[44:45], s[42:43], s41
s_xor_b64 {P(sORD)}, {P(sORD)}, s[44:45]
s_lshl_b32 s41, s{sWT}, 2
s_add_u32 s41, s41, 4
s_lshl_b64 s[44:45], s[42:43], s41
s_xor_b64 {P(sORD)}, {P(sORD)}, s[44:45]
A_go:
s_setprio 0
s_lshl_b32 s42, s{sL}, 2
v_add_u32 v9, s42, v3""")
def att_addr():
    a(f"""v_bfe_u32 v1, v0, 3, 2
    v_mul_u32_u24 v1, {QSTR}, v1
    v_and_b32 v2, 7, v0
    v_lshl_add_u32 v1, v2, 5, v1
    v_lshrrev_b32 v2, 5, v0
    v_lshl_add_u32 v1, v2, 4, v1
    v_add_u32 v{vQA}, {L_Q}, v1
    s_lshl_b32 s41, s{sH}, 11
    s_add_u32 s41, s41, {L_SLOT}
    v_lshl_add_u32 v{vOA}, v0, 4, s41
    v_mov_b32 v{vIDX}, 0xdddddddd
    v_and_b32 v0, 31, v0
    s_lshl_b32 s41, s{sH}, 7
    s_add_u32 s41, s41, {L_L}
    v_lshl_add_u32 v0, v0, 2, s41""")
att_addr()
a(f"s_mov_b32 s{sCNT}, 0")
kv_check(0, 6*(DEP-1))
TS(4)
a(f"""s_bfe_u32 s41, s{sORD}, 0x40004
s_and_b32 s43, s41, 4
s_add_u32 s43, s43, 4""")
lds_wait(9, SC_QC, 10, "s43", 0)
a(f"""s_lshl_b32 s2, s{sL}, 2
s_add_u32 s2, s2, {L_SC + SC_QC}
s_mul_i32 s41, s41, {4*QSTR}
v_add_u32 v{Q}, s41, v{vQA}
ds_read_b128 {V(Q,4)}, v{Q}
s_mov_b32 s{sCNT}, 0""")
for i in range(0, 10, 2): a(f"v_mov_b64 {V(ACC+i,2)}, 0")
TS(5)
TC(0)
def smf(vfrag, pb): a(f"v_smfmac_f32_32x32x32_bf16 {V(ACC,16)}, {V(VV+4*vfrag,4)}, {V(pb,8)}, v{vIDX}")
def ex(base, lo, hi):
    for i in range(lo, hi): a(f"v_exp_f32 v{base+i}, v{base+i}")
def flush():
    a(f"""v_lshl_add_u32 v{ACC+10}, s41, 13, v{vOA}
    v_lshl_add_u32 v{ACC+11}, s41, 9, v0
    ds_write_b128 v{ACC+10}, {V(ACC,4)}
    ds_write_b128 v{ACC+10}, {V(ACC+4,4)} offset:1024
    ds_write_b32 v{ACC+11}, v{ACC+8}""")
a(f"""s_waitcnt lgkmcnt(0)
v_mfma_f32_32x32x16_bf16 {V(S0,16)}, {V(KK,4)}, {V(Q,4)}, 0""")
NT = 16
def att_pass(first):
    for kt in range(NT):
        cur, oth = (S0, S1) if kt % 2 == 0 else (S1, S0)
        lp = kt//2 + DEP
        ld = first and lp < 8
        def L(i):
            if ld: kv_one(lp, 3*(kt & 1) + i)
        if ld and kt % 2 == 0: kv_base(lp)
        ex(cur, 0, 2)
        if not (first and kt == 0): smf((2*kt - 1) % (2*NT), oth + 8)
        L(0)
        ex(cur, 2, 5)
        if kt == NT-1: a("s_waitcnt lgkmcnt(0)")
        if first and kt % 2 == 1 and kt < NT-1:
            p = (kt+1)//2
            kv_check(p, (6*(lp - p) - 2) if ld else 6*(7 - p))
        a(f"v_mfma_f32_32x32x16_bf16 {V(oth,16)}, {V(KK+4*((kt+1)%NT),4)}, {V(Q,4)}, 0")
        if first and kt == NT-3:
            a(f"""v_mov_b32 v13, s2
            ds_read_b32 v13, v13""")
        if first and kt == NT-2:
            a(f"""s_waitcnt lgkmcnt(0)
            v_cmp_gt_u32 vcc, 8, v13
            s_cbranch_vccnz A_q8
            A_q8b:""")
        if kt == NT-2:
            a(f"s_bfe_u32 s41, s{sORD}, 0x40008")
            if not first:
                a(f"""s_cmp_eq_u32 s41, s{sWT}
                s_cbranch_scc1 A_qwait
                A_qback:""")
            a(f"""s_mul_i32 s41, s41, {4*QSTR}
            v_add_u32 v{Q}, s41, v{vQA}
            ds_read_b128 {V(Q,4)}, v{Q}""")
        if kt == 0 and not first:
            a(f"s_and_b32 s41, s{sORD}, 15")
            ex(cur, 5, 12)
            flush()
            a(f"v_mfma_f32_32x32x8_f16 {V(ACC,16)}, {V(ZZ,2)}, {V(ZZ,2)}, 0")
            ex(cur, 12, 15)
            smf(0, cur)
            ex(cur, 15, 16)
        else:
            ex(cur, 5, 8)
            L(1)
            ex(cur, 8, 10)
            smf(2*kt, cur)
            ex(cur, 10, 13)
            L(2)
            ex(cur, 13, 16)
        if ld and lp == 7 and kt % 2 == 1:
            a(f"v_mov_b32 v12, {L_SC}")
            lds_inc(12, SC_KVD, 13)
att_pass(True)
a(f"""v_mov_b64 {V(ZZ,2)}, 0
s_lshr_b64 {P(sORD)}, {P(sORD)}, 4""")
if not os.environ.get('PP'): TS(12)
if TSON:
    a(f"""s_cmp_eq_u32 s{sL}, 0
    s_cselect_b32 s73, s{sCNT}, s73
    s_nop 0""")
if os.environ.get("AL"):
    a(".p2align 6")
    for _ in range(int(os.environ["AL"])): a("s_nop 0")
a("A_pass:")
att_pass(False)
if os.environ.get("PP"):
    a(f"""s_cmp_lg_u32 s{sL}, {os.environ.get("PP")}
    s_cbranch_scc1 A_ppx""")
    for d, q in ((86, 87), (87, 88), (88, 74), (74, 70), (70, 71), (71, 62), (62, 96)): a(f"s_mov_b32 s{d}, s{q}")
    a("A_ppx:")
a(f"""s_lshr_b64 {P(sORD)}, {P(sORD)}, 4
s_cmp_gt_u32 s{sORD}, 15
s_cbranch_scc1 A_pass""")
smf(2*NT-1, S1 + 8)
a(f"s_and_b32 s41, s{sORD}, 15")
flush()
TC(1)
TS(9)
a(f"""A_X:
v_mbcnt_lo_u32_b32 v0, -1, 0
v_mbcnt_hi_u32_b32 v0, -1, v0
s_waitcnt lgkmcnt(0)
s_barrier""")
TS(6)
a(f"""v_mov_b32 v9, {L_SC}
s_barrier
ds_read_b32 v9, v9 offset:{SC_BAD}
s_lshl_b32 s98, s{sH}, 13
s_add_u32 s98, s98, {L_WK1}
s_waitcnt lgkmcnt(0)
v_cmp_ne_u32 vcc, 0, v9
s_cbranch_vccnz A_slow
s_cmp_lg_u32 s{sL}, 0
s_cbranch_scc1 R_P4
v_mov_b64 v[28:29], -1
v_mov_b64 v[30:31], -1
s_lshl_b32 s41, s{sH}, 10
s_add_u32 s41, s41, {L_L}
v_lshl_add_u32 v2, v0, 4, s41
ds_write_b128 v2, v[28:31]""")
a(f"""R_P4:
s_mul_i32 s41, s{sW}, {RS}
s_add_u32 s41, s41, {L_ROW}
v_lshl_add_u32 v3, v0, 5, s41
s_waitcnt lgkmcnt(0)
s_barrier
ds_read_b128 v[8:11], v3
ds_read_b128 v[16:19], v3 offset:{8*RS}
ds_read_b128 v[12:15], v3 offset:16
ds_read_b128 v[20:23], v3 offset:{8*RS+16}
s_mov_b32 s{sF}, s{sL}
s_mov_b32 s{sSLOW}, 0
v_lshlrev_b32 v2, 4, v0
v_add_u32 v2, {L_X2S}, v2
ds_read_b128 {V(WR,4)}, v2 offset:{L_SC + SC_WR - L_X2S}
s_cmp_lg_u32 s{sSEL}, s{sTOK}
s_cbranch_scc1 R_nx
ds_read_b128 {V(XR,4)}, v2
s_waitcnt lgkmcnt(0)
R_nx:""")
a(f"""s_lshl_b32 s41, s{sL}, 2
s_or_b32 s41, s41, s{sW}
s_cmp_ge_u32 s41, 4
s_cbranch_scc1 R_nd""")
wkv_dma(2, 98)
a("R_nd:")
unpack(24, XR)
a("s_waitcnt lgkmcnt(0)")
TS(7)
pkadd(8, 8, 16, 8)
for i in range(8): a(f"v_cvt_pk_bf16_f32 v{8+i}, 0, v{8+i}")
pkadd(8, 8, 24, 8)
pack(X1, 8)
unpack(X_, X1)
ln(X_, D_, T_, XN)
a(f"""v_dot2_f32_bf16 v1, v{XN}, v{WR}, 0
v_dot2_f32_bf16 v1, v{XN+1}, v{WR+1}, v1
v_dot2_f32_bf16 v1, v{XN+2}, v{WR+2}, v1
v_dot2_f32_bf16 v1, v{XN+3}, v{WR+3}, v1""")
dpp_reduce([1])
key_make()
a(f"""s_cmp_lg_u32 s{sL}, 0
s_cbranch_scc1 R_lastl""")
unpack(D_, XN)
pkadd(D_, D_, X_, 8)
pack(XR, D_)
a(f"""s_mov_b32 s{sL}, 1""")
key_pub()
a(f"""s_branch R_P1
R_lastl:""")
key_pub()
a(f"""s_barrier
s_branch R_cand
R_tail:""")
unpack(D_, XN)
unpack(X_, X1)
pkadd(D_, D_, X_, 8)
pack(XR, D_)
a(f"""s_lshl_b32 s41, s{sTOK}, 10
v_lshl_add_u32 v1, v0, 4, s41
s_cmp_lt_u32 s{sW}, {4 if E("ALATE", 0) else 0}
s_cbranch_scc1 R_noout
s_cmp_lg_u32 s{sCAND}, 0
s_cbranch_scc1 R_noout
global_store_dwordx4 v1, {V(XR,4)}, {P(sOUT)}{OUTF}
R_noout:
s_cmp_ge_u32 s{sW}, 4
s_cbranch_scc1 H_FF2""")
key_poll()
a(f"""s_cmp_eq_u32 s{sCAND}, 0
s_cbranch_scc1 {"R_st" if E("ALATE", 0) else "L_end"}""")
key_get(1)
a(f"""s_cmp_eq_u32 s{sSEL}, s{sTOK}
s_cbranch_scc1 L_end
R_st:
global_store_dwordx4 v1, {V(XR,4)}, {P(sOUT)}{OUTF}
s_branch L_end
A_qwait:
v_mov_b32 v14, {L_SC}
s_lshl_b32 s42, 4, s{sL}""")
lds_wait(14, SC_QFIX, 15, "s42", 1)
a(f"""s_mov_b32 s{sWT}, 15
s_branch A_qback""")
for p in range(8): kv_tail(p)
a("A_q8:\nv_mov_b32 v12, s2")
lds_wait(12, 0, 13, 8, 1)
a("s_branch A_q8b")

def qtr_addr():
    a(f"""v_lshrrev_b32 v12, 4, v0
    v_bfe_u32 v13, v0, 2, 2
    v_lshl_add_u32 v1, v12, 3, v13
    v_and_b32 v12, 1, v12
    v_lshl_add_u32 v12, v12, 2, v13
    s_lshl_b32 s41, s{sH}, 1
    v_xor_b32 v12, s41, v12
    v_and_b32 v13, 3, v0
    v_lshl_add_u32 v13, v12, 2, v13
    v_lshlrev_b32 v13, 3, v13
    v_lshl_add_u32 v1, v1, 8, v13""")
def coop(j):
    a(f"s_add_u32 m0, s4, {1024*j}")
    a(f"global_load_lds_dwordx4 v{50 + ((j>>1)&1)}, s[0:1]")
    a("s_add_u32 s0, s0, 4096\ns_addc_u32 s1, s1, 0")
a(f"""H_stage:
v_lshrrev_b32 v48, 2, v0
v_and_b32 v49, 3, v0
v_lshlrev_b32 v49, 4, v49
v_lshl_add_u32 v48, v48, 10, v49
s_lshl_b32 s41, s{sH}, 6
s_lshl_b32 s42, s{sC}, 8
s_add_u32 s41, s41, s42
v_add_u32 v48, s41, v48
s_lshl_b32 s5, s{sH}, 12
s_add_u32 s5, s5, {6*8192}""")
for q in range(4):
    a(f"""s_add_u32 s0, s{sWQ}, {32768*14 + 16384*q}
    s_addc_u32 s1, s{sWQ+1}, 0
    s_add_u32 m0, s5, {1024*q}
    global_load_lds_dwordx4 v48, s[0:1]""")
a(f"""v_lshrrev_b32 v49, 4, v0
v_lshlrev_b32 v50, 1, v49
v_xor_b32 v50, v50, v0
v_and_b32 v50, 15, v50
v_lshlrev_b32 v50, 4, v50
v_lshl_add_u32 v50, v49, 10, v50
v_add_u32 v50, s42, v50
v_xor_b32 v51, 128, v50
s_lshl_b32 s41, s{sH}, 1
s_add_u32 s41, s41, 8
s_lshl_b32 s4, s41, 13
s_lshl_b32 s41, s41, 15
s_add_u32 s0, s{sWQ}, s41
s_addc_u32 s1, s{sWQ+1}, 0
s_cmp_eq_u32 s{sH}, 3
s_cbranch_scc1 H_c3""")
for j in range(16): coop(j)
a(f"""s_branch H_c4
H_c3:
s_setprio 3
s_lshl_b32 s41, s{sPB}, 7
s_add_u32 s41, s41, {WS_FLAG}
v_mov_b32 v1, s41
v_mov_b32 v3, {L_SC}
s_waitcnt lgkmcnt(0)
s_mul_i32 s{sTAG}, s{sE}, 0x9e3779b1
s_add_u32 s{sTAG}, s{sTAG}, 0x7f4a7c15
v_mov_b32 v2, s{sTAG}
s_waitcnt vmcnt(0)
s_mov_b64 exec, 1
global_store_dword v1, v2, {P(sWS)} sc1
s_mov_b64 exec, -1""")
a("s_setprio 1\nH_c4:")
a(f"""v_lshrrev_b32 v12, 4, v0
v_bfe_u32 v13, v0, 2, 2
v_lshl_add_u32 v1, v12, 3, v13
v_and_b32 v13, 3, v0
v_lshlrev_b32 v13, 3, v13
v_lshl_add_u32 v1, v1, 6, v13
v_add_u32 v1, s5, v1
v_mov_b32 v3, {L_SC}
s_waitcnt lgkmcnt(0)
s_mul_i32 s{sTAG}, s{sE}, 0x9e3779b1
s_add_u32 s{sTAG}, s{sTAG}, 0x7f4a7c15""")
TSS(18)
a("s_waitcnt vmcnt(16)")
for k in range(2):
    for f in range(2):
        for hf in range(2): a(f"ds_read_b64_tr_b16 {V(WQR+48+8*k+4*f+2*hf,2)}, v1 offset:{k*2048 + 256*hf + 32*f}")
lds_inc(3, SC_C2, 8)
a(f"""s_cmp_eq_u32 s{sH}, 3
s_cbranch_scc1 H_c5
s_lshl_b32 s4, s{sH}, 14
s_lshl_b32 s41, s{sH}, 16
s_add_u32 s0, s{sWQ}, s41
s_addc_u32 s1, s{sWQ+1}, 0""")
for j in range(16): coop(j)
a("H_c5:")
TSS(19)
lds_wait(3, SC_C2, 8, 4, 0)
a(f"""s_lshl_b32 s41, s{sH}, 14
s_add_u32 s41, s41, {6*32768}
s_add_u32 s0, s{sWQ}, s41
s_addc_u32 s1, s{sWQ+1}, 0
s_mov_b32 s4, s5""")
for j in range(4): coop(j)
a(f"s_add_u32 s44, s{sH}, 16")
pos2tok(41, 44)
a(f"""s_lshl_b32 s41, s41, 10
s_add_u32 s41, s41, 2048
v_lshl_add_u32 v1, v0, 4, s41
global_load_dwordx4 {V(FOR,4)}, v1, {P(sX)} offset:-2048
global_load_dwordx4 {V(FOR+4,4)}, v1, {P(sX)} offset:2048
s_cmp_lg_u32 s{sW}, 6
s_cbranch_scc1 H_st0
v_lshlrev_b32 v1, 4, v0
v_add_u32 v1, {L_SC + SC_WR}, v1
ds_write_b128 v1, v[44:47]
H_st0:
s_cmp_eq_u32 s{sW}, 7
s_cbranch_scc1 H_fin
s_waitcnt vmcnt(2)""")
TSA(4)
a("s_setprio 2\ns_branch H_P2")
a(f"""H_gather:
v_xor_b32 v12, s{sH}, v0
v_xor_b32 v13, 4, v12
v_xor_b32 v14, 8, v12
v_xor_b32 v15, 12, v12
s_lshl_b32 s41, s{sH}, 10
s_add_u32 s41, s41, {L_XN}
v_lshl_add_u32 v12, v12, 4, s41
v_lshl_add_u32 v13, v13, 4, s41
v_lshl_add_u32 v14, v14, 4, s41
v_lshl_add_u32 v15, v15, 4, s41
s_mov_b32 s{sCNT}, 0
s_sleep {E('GS', 8)}
H_xg:""")
gloads(8)
a(f"""s_waitcnt vmcnt(0)
v_max3_u32 v16, v40, v44, v48
v_max3_u32 v17, v52, v56, v60
v_max_u32 v16, v16, v17
v_cmp_eq_u32 vcc, -1, v16""")
poll_guard("H_xg", "s_cbranch_vccz", "H_xgd", 1, E("GR", 0))
for i in range(6): a(f"ds_write_b128 v{12+(i&3)}, {V(40+4*i,4)} offset:{4096*i}")
a(f"""H_P2:
s_lshl_b32 s42, s{sL}, 2
s_add_u32 s42, s42, {L_SC}
v_mov_b32 v3, s42""")
lds_inc(3, SC_XNC, 12)
a(f"""v_and_b32 v1, 15, v0
v_lshrrev_b32 v2, 4, v0
v_xor_b32 v8, v2, v1
v_lshlrev_b32 v1, 10, v1
v_add_u32 v1, {L_XN}, v1
v_xor_b32 v9, 4, v8
v_xor_b32 v10, 8, v8
v_xor_b32 v11, 12, v8
v_lshl_add_u32 v8, v8, 4, v1
v_lshl_add_u32 v9, v9, 4, v1
v_lshl_add_u32 v10, v10, 4, v1
v_lshl_add_u32 v11, v11, 4, v1
v_and_b32 v2, 15, v0
v_mul_u32_u24 v2, {QSTR}, v2
v_lshrrev_b32 v12, 4, v0
v_lshl_add_u32 v2, v12, 3, v2
s_lshl_b32 s41, s{sH}, 6
s_add_u32 s41, s41, {L_Q}
v_add_u32 v2, s41, v2
s_mov_b32 s{sQM}, 0""")
qtr_addr()
lds_wait(3, SC_XNC, 12, 8, 0)
TS(3)
a(f"""s_cmp_lg_u32 s{sL}, 0
s_cbranch_scc1 H_qp
v_add_u32 v12, 0x10000, v1
v_xor_b32 v13, 32, v12""")
for k in range(6):
    for f in range(2):
        for hf in range(2): a(f"ds_read_b64_tr_b16 {V(WQR+8*k+4*f+2*hf,2)}, v{12+f} offset:{k*8192 + 1024*hf}")
    if k in (2, 4): a("s_waitcnt lgkmcnt(4)")
a("s_waitcnt lgkmcnt(4)\nH_qp:")
order = [14, 0, 15, 1, 8, 2, 9, 3, 10, 4, 11, 5, 12, 6, 13, 7]
def qbuf(idx): return (20 + 12*((idx//2) % 3)) if order[idx] < 8 else (56 + 4*((idx//2) % 2))
def qread(idx):
    s = order[idx]; b = qbuf(idx)
    a(f"ds_read_b128 {V(b,4)}, v{8+(s&3)} offset:{256*(s>>2)}")
    if s < 8:
        for hf in range(2): a(f"ds_read_b64_tr_b16 {V(b+4+2*hf,2)}, v1 offset:{8192*s + 1024*hf}")
        a(f"v_xor_b32 v{b+10}, 32, v1")
        for hf in range(2): a(f"ds_read_b64_tr_b16 {V(b+8+2*hf,2)}, v{b+10} offset:{8192*s + 1024*hf}")
qcnt = lambda i: 5 if order[i] < 8 else 1
AH = 3
for i in range(AH): qread(i)
for idx in range(16):
    if idx + AH < 16: qread(idx+AH)
    a(f"s_waitcnt lgkmcnt({sum(qcnt(j) for j in range(idx+1, min(idx+AH+1, 16)))})")
    s = order[idx]; b = qbuf(idx)
    for f in range(2):
        A_ = V(b+4+4*f,4) if s < 8 else V(WQR+8*(s-8)+4*f,4)
        d = V(12+4*f,4)
        a(f"v_mfma_f32_16x16x32_bf16 {d}, {A_}, {V(b,4)}, {'0' if idx==0 else d}")
a(f"""s_setprio 2
s_mov_b32 s42, {QSCALE}""")
for i in range(4): a(f"v_add_u32 v{8+i}, 0x4000, v{8+i}")
for i in range(0, 8, 2): a(f"v_pk_mul_f32 {V(12+i,2)}, {V(12+i,2)}, s[42:43] op_sel_hi:[1,0]")
pack(20, 12, 4)
a(f"""ds_write_b64 v2, v[20:21]
ds_write_b64 v2, v[22:23] offset:32""")
lds_inc(3, SC_QC, 12)
a(f"""s_cmp_eq_u32 s{sQM}, 2
s_cbranch_scc1 H_fx3
s_cmp_eq_u32 s{sQM}, 1
s_cbranch_scc1 H_qd""")
TS(2)
a(f"""v_add_u32 v2, {16*QSTR}, v2
s_mov_b32 s{sQM}, 1
s_cmp_lg_u32 s{sL}, 0
s_cbranch_scc1 H_q2
s_setprio {HLNP}
s_mov_b32 s44, 0
s_mov_b32 s45, 2
s_add_u32 s3, s{sH}, 16
s_waitcnt vmcnt(0)
s_branch S_fl
H_ret:""")
lds_inc(3, SC_XN2, 12)
lds_wait(3, SC_XN2, 12, 4, 1)
a(f"""H_q2:
s_setprio 0
s_branch H_qp
H_qd:""")
a(f"""s_cmp_eq_u32 s{sL}, 0
s_cbranch_scc1 H_prep
v_mov_b32 v3, {L_SC}
s_branch H_FFN
H_prep:""")
lds_wait(3, SC_KVD, 12, 4, 4)
a(f"""s_min_u32 s43, s{sB}, 223
s_lshl_b32 s43, s43, 2
s_add_u32 s43, s43, s{sH}
s_and_b32 s44, s43, 31
s_lshr_b32 s45, s43, 5
v_lshrrev_b32 v2, 3, v0
v_and_b32 v3, 7, v0
s_mul_i32 s41, s44, {8*7168}
s_lshl_b32 s42, s45, 7
s_add_u32 s41, s41, s42
v_mul_u32_u24 v1, 7168, v2
v_lshl_add_u32 v1, v3, 4, v1
v_add_u32 v1, s41, v1
global_load_dwordx4 {V(GU,4)}, v1, {P(sWG)}
global_load_dwordx4 {V(GU+4,4)}, v1, {P(sWG)} offset:3584
global_load_dwordx4 {V(GU+8,4)}, v1, {P(sWU)}
global_load_dwordx4 {V(GU+12,4)}, v1, {P(sWU)} offset:3584
s_lshl_b32 s41, s45, 16
s_lshl_b32 s42, s44, 5
s_add_u32 s41, s41, s42
s_add_u32 s41, s41, 4096
v_lshlrev_b32 v1, 13, v2
v_lshl_add_u32 v1, v3, 2, v1
v_add_u32 v1, s41, v1""")
for r in range(8): a(f"global_load_dword v{WDn + 4*(r&1) + (r>>1)}, v1, {P(sWD)} offset:{1024*r-4096}")
a(f"""v_lshrrev_b32 v9, 4, v0
v_lshlrev_b32 v8, 1, v9
v_xor_b32 v8, v8, v0
v_and_b32 v8, 15, v8
v_lshlrev_b32 v8, 4, v8
v_lshl_add_u32 v8, v9, 10, v8
v_bfe_u32 v10, v0, 2, 2
v_lshl_add_u32 v16, v9, 3, v10
v_and_b32 v9, 1, v9
v_lshl_add_u32 v9, v9, 2, v10
v_and_b32 v10, 3, v0
v_lshl_add_u32 v10, v9, 2, v10
v_lshlrev_b32 v10, 3, v10
v_lshl_add_u32 v16, v16, 8, v10
v_xor_b32 v9, 128, v8
s_lshl_b32 s4, s{sH}, 13
s_add_u32 s4, s4, {L_SLOT + 32768}
v_add_u32 v16, s4, v16
s_lshl_b32 s41, s{sC}, 17
s_lshl_b32 s42, s{sH}, 8
s_add_u32 s41, s41, s42
s_add_u32 s0, s{sWO}, s41
s_addc_u32 s1, s{sWO+1}, 0""")
for f in range(1, 8): a(f"v_xor_b32 v{16+f}, {32*f}, v16")
for s in range(4):
    for j in range(8):
        a(f"""s_add_u32 m0, s4, {1024*j}
        global_load_lds_dwordx4 v{8 + ((j>>1)&1)}, s[0:1]
        s_add_u32 s0, s0, 4096
        s_addc_u32 s1, s1, 0""")
    a("s_waitcnt vmcnt(0)")
    for f in range(8):
        for hf in range(2): a(f"ds_read_b64_tr_b16 {V(WO+32*s+4*f+2*hf,2)}, v{16+f} offset:{1024*hf}")
        if f == 5: a("s_waitcnt lgkmcnt(4)")
    a("s_waitcnt lgkmcnt(0)")
a(f"v_mov_b32 v1, {L_SC}")
lds_inc(1, SC_QFIX, 8)
a(f"""v_mov_b64 v[8:9], -1
v_mov_b64 v[10:11], -1
s_lshl_b32 s41, s{sB}, 13
s_lshl_b32 s42, s{sH}, 11
s_add_u32 s41, s41, s42
s_add_u32 s41, s41, {WS_XN}
v_lshl_add_u32 v1, v0, 4, s41
global_store_dwordx4 v1, v[8:11], {P(sWS)} sc1
global_store_dwordx4 v1, v[8:11], {P(sWS)} offset:1024 sc1
s_lshr_b32 s41, s{sH}, 1
s_lshl_b32 s41, s41, 19
s_and_b32 s42, s{sH}, 1
s_lshl_b32 s42, s42, 10
s_add_u32 s41, s41, s42
s_lshl_b32 s42, s{sB}, 11
s_add_u32 s41, s41, s42
s_add_u32 s41, s41, {WS_CAND}
v_lshl_add_u32 v1, v0, 4, s41
global_store_dwordx4 v1, v[8:11], {P(sWS)} sc1
s_cmp_ge_u32 s{sB}, 224
s_cbranch_scc1 H_bursts
s_setprio {E('FP', 0)}""")
for base in (GU, GU+8, WDn):
    for i in range(4): tr_pair(base+i, base+4+i, 12)
a(f"""s_setprio 2
v_lshlrev_b32 v2, 4, v2
v_lshl_add_u32 v2, v3, 15, v2
s_lshl_b32 s41, s45, 18
s_lshr_b32 s42, s44, 3
s_lshl_b32 s42, s42, 13
s_add_u32 s41, s41, s42
s_and_b32 s42, s44, 7
s_lshl_b32 s42, s42, 7
s_add_u32 s41, s41, s42
s_add_u32 s41, s41, {WS_FS}
v_add_u32 v1, s41, v2""")
for i in range(4): a(f"global_store_dwordx4 v1, {V(GU+4*i,4)}, {P(sWS)} offset:{1024*i} sc1")
a(f"""s_lshl_b32 s41, s44, 18
s_lshr_b32 s42, s45, 3
s_lshl_b32 s42, s42, 13
s_add_u32 s41, s41, s42
s_and_b32 s42, s45, 7
s_lshl_b32 s42, s42, 7
s_add_u32 s41, s41, s42
s_add_u32 s41, s41, {WS_FS + 4096}
v_add_u32 v1, s41, v2""")
for i in range(2): a(f"global_store_dwordx4 v1, {V(WDn+4*i,4)}, {P(sWS)} offset:{1024*i} sc1")
a("H_bursts:")
TS(5)
OF, AC = 8, 32
sSB, sLB = 44, 45
a(f"""s_lshr_b32 s41, s{sH}, 1
s_and_b32 s42, s{sH}, 1
s_lshl_b32 s{sSB}, s41, 13
s_lshl_b32 s43, s42, 10
s_add_u32 s{sSB}, s{sSB}, s43
s_add_u32 s{sSB}, s{sSB}, {L_SLOT}
s_lshl_b32 s{sLB}, s41, 9
s_add_u32 s{sLB}, s{sLB}, {L_L}
v_bfe_u32 v3, v0, 3, 2
v_mul_u32_u24 v3, {QSTR}, v3
v_and_b32 v8, 7, v0
v_lshl_add_u32 v3, v8, 5, v3
s_mul_i32 s43, s41, {4*QSTR}
s_add_u32 s43, s43, {L_O}
v_add_u32 v3, s43, v3
v_and_b32 v2, 15, v0
v_mul_u32_u24 v2, {QSTR}, v2
v_lshrrev_b32 v8, 4, v0
v_lshl_add_u32 v2, v8, 4, v2
v_add_u32 v2, {L_O}, v2
s_mul_i32 s{sOPB}, s{sL}, {OPL}
s_mov_b32 s98, 0x00ff00ff
s_mov_b32 s99, 0x00ff00ff
s_mul_i32 s41, s{sH}, 12288
s_add_u32 s{sOPB}, s{sOPB}, s41
s_add_u32 s{sOPB}, s{sOPB}, {WS_OP}
s_add_u32 s{sOTAG}, s{sTAG}, s{sL}
s_add_u32 s{sOTAG}, s{sOTAG}, 1""")
def corr(g):
    l0 = a.newlabel("H_c0"); l1 = a.newlabel("H_c1")
    a(f"""s_andn2_b32 s41, s{sL}, s{sSLOW}
    s_cbranch_scc0 {l0}
    v_lshrrev_b32 v28, 5, v0
    s_lshl_b32 s41, s{sH}, 5
    s_add_u32 s41, s41, {L_VS}
    v_lshl_add_u32 v28, v28, 4, s41
    ds_read_b128 v[8:11], v3 offset:{L_Q - L_O + 8*QSTR*g}
    ds_read_b128 v[12:15], v3 offset:{L_Q - L_O + 8*QSTR*g + 16}
    ds_read_b128 v[28:31], v28
    s_waitcnt lgkmcnt(1)
    v_dot2_f32_bf16 v1, v8, s{sKSL[0]}, 0""")
    for i in range(1, 8): a(f"v_dot2_f32_bf16 v1, v{8+i}, s{sKSL[i]}, v1")
    a(f"""v_exp_f32 v1, v1
    s_waitcnt lgkmcnt(0)
    v_and_b32 v1, 0xffff0000, v1
    v_pk_mul_f32 v[28:29], v[28:29], v[0:1] op_sel:[0,1] op_sel_hi:[1,1]
    v_pk_mul_f32 v[30:31], v[30:31], v[0:1] op_sel:[0,1] op_sel_hi:[1,1]
    s_branch {l1}
    {l0}:
    v_mov_b32 v1, 0
    v_mov_b64 v[28:29], 0
    v_mov_b64 v[30:31], 0
    {l1}:""")
def norm_pre(g):
    a(f"""v_and_b32 v10, 31, v0
    s_add_u32 s41, s{sLB}, {1024*g}
    v_lshl_add_u32 v10, v10, 2, s41
    v_lshl_add_u32 v24, v0, 4, s{sSB}""")
def normalize(g, sleep):
    if sleep:
        lb = a.newlabel("H_lw")
        a(f"""v_lshl_add_u32 v13, v0, 3, s{sLB}
        s_mov_b32 s{sCNT}, 0
        {lb}:
        ds_read_b32 v8, v13 offset:{1024*g}
        s_waitcnt lgkmcnt(0)
        v_cmp_eq_u32 vcc, -1, v8""")
        poll_guard(lb, "s_cbranch_vccz", "H_lwd", 4, sleep)
    a(f"""ds_read2_b32 v[8:9], v10 offset0:0 offset1:32
    ds_read2_b32 v[10:11], v10 offset0:64 offset1:96""")
    for w in range(4): a(f"ds_read_b128 {V(12+4*w,4)}, v24 offset:{16384*g + 2048*w}")
    a(f"""s_waitcnt lgkmcnt(4)
    v_pk_add_f32 v[8:9], v[8:9], v[10:11]
    v_add_f32 v8, v8, v9
    v_add_f32 v8, v8, v1
    v_rcp_f32 v9, v8
    s_waitcnt lgkmcnt(2)""")
    pkadd(12, 12, 16, 4)
    pkadd(12, 12, 28, 4)
    a(f"""v_lshrrev_b32 v11, 5, v0
    s_and_b32 s41, s{sH}, 1
    s_lshl_b32 s41, s41, 4
    v_lshl_add_u32 v11, v11, 3, v3
    s_waitcnt lgkmcnt(0)""")
    pkadd(20, 20, 24, 4)
    a("v_add_u32 v11, s41, v11")
    pkadd(12, 12, 20, 4)
    lb = a.newlabel("H_nb")
    a(f"""v_pk_mul_f32 v[12:13], v[12:13], v[8:9] op_sel:[0,1] op_sel_hi:[1,1]
    v_pk_mul_f32 v[14:15], v[14:15], v[8:9] op_sel:[0,1] op_sel_hi:[1,1]
    v_cvt_pk_bf16_f32 v16, v12, v13
    v_cvt_pk_bf16_f32 v17, v14, v15
    ds_write_b64 v11, v[16:17] offset:{8*QSTR*g}
    v_pk_add_f32 v[12:13], v[12:13], v[14:15]
    v_add_f32 v12, v12, v13
    v_fma_f32 v8, v12, 0, v8
    v_subrev_u32 v8, {(127-80)<<23}, v8
    v_cmp_lt_u32 vcc, {(0 if (FORCE>>g)&1 else (180<<23))}, v8
    s_cbranch_vccz {lb}
    s_cmp_lg_u32 s{sSLOW}, 0
    s_cbranch_scc1 {lb}
    v_mov_b32 v8, {L_SC}
    v_mov_b32 v9, 1
    ds_write_b32 v8, v9 offset:{SC_BAD}
    {lb}:""")
def hsync(idx, bad=True):
    lb = a.newlabel("H_hs")
    a(f"""s_lshl_b32 s41, s{sL}, 4
    s_add_u32 s41, s41, {L_SC}
    v_mov_b32 v8, s41
    v_mov_b32 v11, {L_SC}""")
    lds_inc(8, SC_OCNT + 4*idx, 9)
    lds_wait(8, SC_OCNT + 4*idx, 9, 4, 3)
    if bad:
        a(f"""ds_read_b32 v9, v11 offset:{SC_BAD}
        s_waitcnt lgkmcnt(0)
        v_cmp_ne_u32 vcc, 0, v9
        s_cbranch_vccnz H_toX""")
def oproj(first):
    if first: a("s_setprio 0")
    for s in range(4):
        a(f"s_waitcnt lgkmcnt({3-s})")
        for f in range(8):
            a(f"v_mfma_f32_16x16x32_bf16 {V(AC+4*f,4)}, {V(OF+4*s,4)}, {V(WO+32*s+4*f,4)}, {'0' if (s==0 and first) else V(AC+4*f,4)}")
def osend(bi):
    if bi == 0 or B1P0: a("s_setprio 0")
    a("s_waitcnt lgkmcnt(0)")
    def st(f):
        if bi == 1: a("s_mov_b64 exec, s[98:99]")
        a(f"global_store_dwordx4 v24, {V(AC+4*f,4)}, {P(sWS)} offset:{(1024*f - 4096) if bi == 0 else (1024*(f&3) + 128*(f>>2))} sc1")
        if bi == 1: a("s_mov_b64 exec, -1")
    for f in range(8):
        for s in range(4):
            a(f"v_mfma_f32_16x16x32_bf16 {V(AC+4*f,4)}, {V(WO+32*s+4*f,4)}, {V(OF+4*s,4)}, {'0' if s==0 else V(AC+4*f,4)}")
        if f >= 2: st(f-2)
    st(6); st(7)
    if bi == 0 or B1P0: a("s_setprio 2")
def flag_poll(vaddr, sleep):
    lp = a.newlabel("H_fp")
    a(f"""s_mov_b32 s{sCNT}, 0
    {lp}:""")
    a(f"""global_load_dword v8, v{vaddr}, {P(sWS)} sc1
    s_waitcnt vmcnt(0)
    v_cmp_ne_u32 vcc, s{sOTAG}, v8""")
    poll_guard(lp, "s_cbranch_vccz", "H_fpd", 1, sleep)
def dstbase(sd, g, off):
    a(f"""s_add_u32 s{sd}, s{sC}, {1 + g}
    s_and_b32 s{sd}, s{sd}, 3
    s_andn2_b32 s43, s{sB}, 3
    s_add_u32 s{sd}, s{sd}, s43
    s_mul_i32 s{sd}, s{sd}, 49152
    s_add_u32 s{sd}, s{sd}, s{sOPB}
    s_add_u32 s{sd}, s{sd}, {off}""")
def send_addr(bi):
    if bi == 0:
        dstbase(41, 0, 4096); dstbase(42, 1, 4096)
        a(f"""v_lshl_add_u32 v24, v0, 4, s42
        s_mov_b64 exec, s[98:99]
        v_lshl_add_u32 v24, v0, 4, s41
        s_mov_b64 exec, -1""")
    else:
        dstbase(41, 2, 8192)
        a("v_lshl_add_u32 v24, v0, 4, s41")
send_addr(1)
a(f"""v_mov_b64 v[8:9], -1
v_mov_b64 v[10:11], -1""")
for f in range(4): a(f"global_store_dwordx4 v24, v[8:11], {P(sWS)} offset:{1024*f} sc1")
if E("NP", 0): a("s_setprio 0")
corr(0); norm_pre(0); normalize(0, 16); corr(1); norm_pre(1)
if E("NP", 0): a("s_setprio 2")
normalize(1, 8)
hsync(0)
for s_ in range(4): a(f"ds_read_b128 {V(OF+4*s_,4)}, v2 offset:{64*s_}")
send_addr(0)
a(f"""s_add_u32 s41, s{sC}, 1
v_add_u32 v25, s41, v0
v_and_b32 v25, 3, v25
v_lshlrev_b32 v25, 11, v25
v_lshl_add_u32 v25, v0, 9, v25
s_lshl_b32 s41, s43, 11
s_lshl_b32 s42, s{sH}, 7
s_add_u32 s41, s41, s42
s_add_u32 s41, s41, {WS_OPF}
v_add_u32 v25, s41, v25
v_mov_b32 v27, s{sOTAG}""")
osend(0)
a(f"""s_waitcnt vmcnt(0)
s_mov_b64 exec, 7
global_store_dword v25, v27, {P(sWS)} sc1
s_mov_b64 exec, -1""")
TS(6)
def recv01(nonblock=False):
    a(f"""s_mul_i32 s41, s{sB}, 49152
    s_add_u32 s41, s41, s{sOPB}
    v_lshl_add_u32 v24, v0, 4, s41
    v_add_u32 v26, 4096, v24
    s_lshl_b32 s41, s{sB}, 11
    s_lshl_b32 s42, s{sH}, 7
    s_add_u32 s41, s41, s42
    s_add_u32 s41, s41, {WS_OPF}
    v_min_u32 v25, 2, v0
    v_lshl_add_u32 v25, v25, 9, s41""")
    if nonblock:
        a(f"""v_lshlrev_b32 v13, 4, v0
        v_add_u32 v13, {L_L + 2048}, v13
        s_mov_b32 s{sCNT}, 0
        H_nbp:
        ds_read_b32 v8, v13
        s_waitcnt lgkmcnt(0)
        v_cmp_eq_u32 vcc, -1, v8
        s_cbranch_vccz H_b1
        s_add_u32 s{sCNT}, s{sCNT}, 1
        s_cmp_ge_u32 s{sCNT}, {POLLMAX}
        s_cbranch_scc1 H_b1
        s_sleep 4
        global_load_dword v8, v25, {P(sWS)} sc1
        s_waitcnt vmcnt(0)
        v_cmp_ne_u32 vcc, s{sOTAG}, v8
        s_cbranch_vccnz H_nbp""")
    else:
        flag_poll(25, 2)
    if nonblock:
        a(f"""s_lshl_b32 s41, s{sH}, 13
        s_add_u32 s41, s41, {L_SLOT}""")
        for f in range(8):
            if f % 4 == 0: a(f"s_add_u32 m0, s41, {1024*f}")
            a(f"global_load_lds_dwordx4 v{24 + 2*(f>>2)}, {P(sWS)} offset:{1024*(f&3)} sc1")
    else:
        for f in range(8): a(f"global_load_dwordx4 {V(AC+4*f,4)}, v26, {P(sWS)} offset:{1024*f - 4096} sc1")
a(f"s_mov_b32 s{sCAND}, 0")
recv01(True)
a(f"s_mov_b32 s{sCAND}, 1\nH_b1:")
corr(2); norm_pre(2); normalize(2, 4)
hsync(1)
for s_ in range(4): a(f"ds_read_b128 {V(OF+4*s_,4)}, v2 offset:{64*s_ + 16*QSTR}")
send_addr(1)
osend(1)
TS(9)
a(f"""s_cmp_lg_u32 s{sCAND}, 0
s_cbranch_scc1 H_r2""")
recv01()
a(f"""H_r2:
s_mul_i32 s41, s{sB}, 49152
s_add_u32 s41, s41, s{sOPB}
s_add_u32 s41, s41, 8192
v_lshl_add_u32 v26, v0, 4, s41
s_cmp_lg_u32 s{sL}, 0
s_cbranch_scc1 H_npf
s_lshl_b32 s41, s{sH}, 12
v_lshl_add_u32 v8, v0, 6, s41
global_load_dword v28, v8, {P(sWK)}
global_load_dword v29, v8, {P(sWV)}
H_npf:
s_mov_b32 s{sCNT}, 0
s_sleep {E("PS", 24)}
H_p2:""")
for f in range(4): a(f"global_load_dwordx4 {V(8+4*f,4)}, v26, {P(sWS)} offset:{1024*f} sc1")
a(f"""s_waitcnt vmcnt(0)
v_max3_u32 v24, v8, v12, v16
v_max_u32 v24, v24, v20
v_cmp_eq_u32 vcc, -1, v24""")
poll_guard("H_p2", "s_cbranch_vccz", "H_p2d", 1, 4)
a(f"""s_cmp_eq_u32 s{sCAND}, 0
s_cbranch_scc1 H_r3
s_lshl_b32 s41, s{sH}, 13
s_add_u32 s41, s41, {L_SLOT}
v_lshl_add_u32 v24, v0, 4, s41""")
for f in range(8): a(f"ds_read_b128 {V(AC+4*f,4)}, v24 offset:{1024*f}")
a("s_waitcnt lgkmcnt(0)\nH_r3:\ns_mov_b64 exec, s[98:99]")
pkadd(AC, AC, 8, 16)
a("s_not_b64 exec, s[98:99]")
pkadd(AC+16, AC+16, 8, 16)
a("s_mov_b64 exec, -1")
a(f"""s_cmp_lg_u32 s{sL}, 0
s_cbranch_scc1 H_nwf
""")
for g in range(3):
    a(f"s_add_u32 s6, s{sH}, {8*g}")
    pos2tok(41, 6)
    a(f"""s_lshl_b32 s41, s41, 10
    s_add_u32 s{3+g}, s41, {WS_XN + 2048}""")
a("H_nwf:")
TS(10)
a(f"""v_and_b32 v8, 8, v0
v_cmp_eq_u32 vcc, 0, v8
v_lshrrev_b32 v8, 4, v0
v_lshlrev_b32 v8, 4, v8
v_add_u32 v8, {L_SC + SC_ZERO - 24*QSTR}, v8
v_cndmask_b32 v2, v8, v2, vcc""")
corr(3)
norm_pre(3)
a("s_barrier")
normalize(3, 0)
a(f"""v_mov_b32 v24, {L_SC}
s_waitcnt lgkmcnt(0)
s_barrier
ds_read_b32 v24, v24 offset:{SC_BAD}""")
for s_ in range(4): a(f"ds_read_b128 {V(OF+4*s_,4)}, v2 offset:{64*s_ + 24*QSTR}")
a(f"""v_lshrrev_b32 v26, 4, v0
v_and_b32 v25, 15, v0
v_mul_u32_u24 v25, {RS}, v25
v_lshl_add_u32 v25, v26, 4, v25
s_lshl_b32 s41, s{sH}, 9
s_add_u32 s41, s41, {L_ROW}
v_add_u32 v1, s41, v25
s_waitcnt lgkmcnt(4)
v_cmp_ne_u32 vcc, 0, v24
s_cbranch_vccnz H_slow""")
def fm(f, s_): a(f"v_mfma_f32_16x16x32_bf16 {V(AC+4*f,4)}, {V(WO+32*s_+4*f,4)}, {V(OF+4*s_,4)}, {V(AC+4*f,4)}")
for s_ in range(4):
    a(f"s_waitcnt lgkmcnt({3-s_})")
    fm(0, s_); fm(1, s_)
for f in range(2, 8):
    for s_ in range(4): fm(f, s_)
    if f >= 3: a(f"ds_write_b128 v1, {V(AC+4*(f-3),4)} offset:{64*(f-3)}")
for f in (5, 6, 7): a(f"ds_write_b128 v1, {V(AC+4*f,4)} offset:{64*f}")
a("s_setprio 0\ns_branch R_P4")
a("H_FF2:")
for i in range(0, 24, 2): a(f"v_mov_b64 {V(GU+i,2)}, {V(64+i,2)}")
a("H_FFN:")
key_get(1)
a(f"""s_cmp_lg_u32 s{sF}, 0
s_cbranch_scc1 H_nl""")
ffn_loads()
a("H_nl:")
a(f"""s_lshr_b32 s41, s{sSEL}, 3
s_lshl_b32 s41, s41, 11
s_lshl_b32 s42, s{sF}, 19
s_add_u32 s41, s41, s42
s_add_u32 s41, s41, {WS_CAND}
s_lshl_b32 s42, s{sH}, 8
s_add_u32 s42, s42, s41
v_lshl_add_u32 v2, v0, 2, s42
s_lshl_b32 s42, s{sJ}, 2
s_add_u32 s42, s42, s41
v_mov_b32 v9, s42
s_lshl_b32 s42, s{sF}, 2
v_add_u32 v37, s42, v3
s_mov_b32 s{sCNT}, 0""")
TSF(11)
a(f"""H_xs:
global_load_dword v8, v2, {P(sWS)} sc1
global_load_dword v38, v9, {P(sWS)} sc1
global_load_dword v39, v9, {P(sWS)} offset:1024 sc1
s_waitcnt vmcnt(0)
v_max3_u32 v10, v8, v38, v39
v_cmp_eq_u32 vcc, -1, v10""")
poll_guard("H_xs", "s_cbranch_vccz", "H_xsd")
a(f"""s_cmp_ge_u32 s{sJ}, 224
s_cbranch_scc1 H_down""")
for i in range(16): a(f"v_dot2_f32_bf16 v{GU+i}, v{GU+i}, v8, 0")
for c in range(8): a(f"v_permlane32_swap_b32 v{GU+c}, v{GU+8+c}")
pkadd(GU, GU, GU+8, 8)
for c in range(4): a(f"v_permlane16_swap_b32 v{GU+c}, v{GU+4+c}")
pkadd(GU, GU, GU+4, 4)
for m in ("row_ror:8", "row_ror:4", "row_ror:2", "row_ror:1"):
    for c in range(4): a(f"v_add_f32_dpp v{GU+c}, v{GU+c}, v{GU+c} {m} row_mask:0xf bank_mask:0xf")
a(f"""v_lshrrev_b32 v2, 4, v0
s_lshl_b32 s41, s{sH}, 6
s_add_u32 s41, s41, {L_SC + SC_FACC}
v_lshl_add_u32 v2, v2, 4, s41
v_mov_b32 v9, 1
s_mov_b32 exec_lo, 0x00010001
s_mov_b32 exec_hi, 0x00010001
ds_write_b128 v2, {V(GU,4)}
s_mov_b64 exec, 1
ds_add_rtn_u32 v10, v37, v9 offset:{SC_FCNT}
s_mov_b64 exec, -1
v_and_b32 v2, 1, v0
v_bfe_u32 v9, v0, 1, 2
v_lshlrev_b32 v9, 2, v9
v_lshl_add_u32 v9, v2, 4, v9
v_add_u32 v9, {L_SC + SC_FACC}, v9
s_waitcnt lgkmcnt(0)
v_readfirstlane_b32 s42, v10
s_cmp_lg_u32 s42, 3
s_cbranch_scc1 H_down""")
for w in range(4): a(f"ds_read2_b32 {V(12+2*w,2)}, v9 offset0:{16*w} offset1:{16*w+8}")
a(f"""s_lshl_b32 s41, s{sJ}, 7
s_lshl_b32 s42, s{sF}, 15
s_add_u32 s41, s41, s42
s_add_u32 s41, s41, {WS_HY}
v_lshl_add_u32 v2, v0, 1, s41
s_waitcnt lgkmcnt(0)
v_pk_add_f32 v[12:13], v[12:13], v[14:15]
v_pk_add_f32 v[16:17], v[16:17], v[18:19]
v_pk_add_f32 v[12:13], v[12:13], v[16:17]
v_cvt_pk_bf16_f32 v12, v12, v13
v_and_b32 v13, 0xffff0000, v12
v_lshlrev_b32 v12, 16, v12
v_mul_f32 v14, 0xbfb8aa3b, v12
v_exp_f32 v14, v14
v_add_f32 v14, 1.0, v14
v_rcp_f32 v14, v14
v_mul_f32 v12, v12, v14
v_cvt_pk_bf16_f32 v12, v12, v12
v_lshlrev_b32 v12, 16, v12
v_mul_f32 v12, v12, v13
v_mov_b32_dpp v13, v12 quad_perm:[1,1,3,3] row_mask:0xf bank_mask:0xf
v_cvt_pk_bf16_f32 v12, v12, v13
s_mov_b64 exec, 0x55
global_store_dword v2, v12, {P(sWS)} sc1
s_mov_b64 exec, -1
H_down:
s_lshl_b32 s41, s{sH}, 6
v_add_u32 v1, s41, v0
v_min_u32 v2, 223, v1
s_lshl_b32 s42, s{sF}, 15
s_add_u32 s42, s42, {WS_HY}
v_lshl_add_u32 v2, v2, 7, s42
s_mov_b32 s{sCNT}, 0""")
TSF(12)
a(f"""s_cmp_lg_u32 s{sF}, 0
s_cbranch_scc1 H_nkw""")
a(f"s_sleep {E('HS0', 20)}\nH_nkw:")
a(f"""s_and_b32 s41, s{sF}, s{sCAND}
s_cbranch_scc0 H_ncs
s_cmp_eq_u32 s{sSEL}, s{sTOK}
s_cbranch_scc1 H_ncs
s_lshl_b32 s41, s{sTOK}, 10
v_lshl_add_u32 v9, v0, 4, s41
global_store_dwordx4 v9, {V(XR,4)}, {P(sOUT)}
H_ncs:""")
if HS1: a(f"s_sleep {HS1}")
a(f"""s_mov_b32 s{sCNT}, 0
s_mov_b64 vcc, -1
H_hp:
s_mov_b64 exec, {"vcc" if E("MSK", 1) else "-1"}
global_load_dwordx4 v[12:15], v2, {P(sWS)} sc1
s_mov_b64 exec, -1
s_waitcnt vmcnt(0)
v_max3_u32 v9, v12, v13, v14
v_max_u32 v9, v9, v15
v_cmp_eq_u32 vcc, -1, v9""")
poll_guard("H_hp", "s_cbranch_vccz", "H_hpd", 1, E("HR", 3))
TSF(13)
a(f"""v_dot2_f32_bf16 v8, v{WDn}, v12, 0
v_dot2_f32_bf16 v9, v{WDn+4}, v12, 0""")
for i in range(1, 4):
    a(f"v_dot2_f32_bf16 v8, v{WDn+i}, v{12+i}, v8")
    a(f"v_dot2_f32_bf16 v9, v{WDn+4+i}, v{12+i}, v9")
a(f"""v_cmp_gt_u32 vcc, 224, v1
v_cndmask_b32 v8, 0, v8, vcc
v_cndmask_b32 v9, 0, v9, vcc
v_permlane32_swap_b32 v8, v9
v_add_f32 v8, v8, v9""")
for m in ("row_ror:8", "row_ror:4", "row_ror:2", "row_ror:1"):
    a(f"v_add_f32_dpp v8, v8, v8 {m} row_mask:0xf bank_mask:0xf")
a(f"""v_add_f32_dpp v8, v8, v8 row_bcast:15 row_mask:0xa bank_mask:0xf
v_lshrrev_b32 v2, 5, v0
s_lshl_b32 s41, s{sH}, 3
s_add_u32 s41, s41, {L_SC + SC_DACC}
v_lshl_add_u32 v2, v2, 2, s41
v_mov_b32 v9, 1
s_mov_b32 exec_lo, 0x80000000
s_mov_b32 exec_hi, 0x80000000
ds_write_b32 v2, v8
s_mov_b64 exec, 1
ds_add_rtn_u32 v12, v37, v9 offset:{SC_DCNT}
s_mov_b64 exec, -1
s_lshr_b32 s41, s{sKEY}, 16
s_and_b32 s42, s41, 0x7fff
s_xor_b32 s43, s41, 0xffff
s_bitcmp1_b32 s41, 15
s_cselect_b32 s41, s42, s43
s_lshl_b32 s41, s41, 16
v_mov_b32 v11, s41
v_mul_f32 v11, 0xbfb8aa3b, v11
v_exp_f32 v11, v11
v_add_f32 v11, 1.0, v11
v_rcp_f32 v11, v11
v_cvt_pk_bf16_f32 v11, v11, v11
v_lshlrev_b32 v11, 16, v11
s_waitcnt lgkmcnt(0)
v_readfirstlane_b32 s42, v12
s_cmp_lg_u32 s42, 3
s_cbranch_scc1 H_ffd
ds_read_b128 v[12:15], v3 offset:{SC_DACC}
ds_read_b128 v[16:19], v3 offset:{SC_DACC+16}
s_waitcnt lgkmcnt(0)
v_pk_add_f32 v[12:13], v[12:13], v[14:15]
v_pk_add_f32 v[16:17], v[16:17], v[18:19]
v_pk_add_f32 v[8:9], v[12:13], v[16:17]""")
pack(12, 8, 1); unpack(8, 12, 1)
a("v_mul_f32 v8, v8, v11\nv_mul_f32 v9, v9, v11")
pack(12, 8, 1); unpack(8, 12, 1); unpack(14, 38, 1)
a("v_add_f32 v8, v8, v14\nv_add_f32 v9, v9, v15")
pack(12, 8, 1); unpack(8, 12, 1); unpack(14, 39, 1)
a("v_add_f32 v8, v8, v14\nv_add_f32 v9, v9, v15")
pack(12, 8, 1)
a(f"""s_mov_b64 exec, 1
s_cmp_lg_u32 s{sF}, 0
s_cbranch_scc1 H_fo
s_lshl_b32 s41, s{sJ}, 7
s_add_u32 s41, s41, {WS_Y}
v_mov_b32 v2, s41
global_store_dword v2, v12, {P(sWS)} sc1
s_branch H_fo2
H_fo:
s_lshl_b32 s41, s{sSEL}, 10
s_lshl_b32 s42, s{sJ}, 2
s_add_u32 s41, s41, s42
v_mov_b32 v2, s41
global_store_dword v2, v12, {P(sOUT)}{OUTG}
H_fo2:
s_mov_b64 exec, -1
H_ffd:
s_cmp_lg_u32 s{sF}, 0
s_cbranch_scc1 L_end""")
a(f"""s_lshl_b32 s41, s{sH}, 13
s_add_u32 s41, s41, {WS_Y}
v_lshl_add_u32 v1, v0, 7, s41
s_lshl_b32 s41, s{sH}, 8
s_add_u32 s41, s41, {L_X2S}
v_lshl_add_u32 v2, v0, 2, s41
s_mov_b32 s{sCNT}, 0
s_sleep {E('YS', 20)}
s_mov_b64 vcc, -1
H_yw:
s_mov_b64 exec, {"vcc" if E("MSK", 1) else "-1"}
global_load_dword v40, v1, {P(sWS)} sc1
s_mov_b64 exec, -1
s_waitcnt vmcnt(0)
v_cmp_eq_u32 vcc, -1, v40""")
poll_guard("H_yw", "s_cbranch_vccz", "H_yd", 1, 3)
a(f"""ds_write_b32 v2, v40
v_mov_b32 v2, 1
s_mov_b64 exec, 1
ds_add_rtn_u32 v41, v3, v2 offset:{SC_YC}
s_mov_b64 exec, -1
v_lshlrev_b32 v1, 4, v0
v_add_u32 v1, {L_XS}, v1
s_waitcnt lgkmcnt(0)
v_readfirstlane_b32 s41, v41
s_cmp_lg_u32 s41, 3
s_cbranch_scc1 H_fx1
ds_read_b128 v[40:43], v1 offset:1024
s_waitcnt lgkmcnt(0)""")
unpack(X_, 40)
ln(X_, D_, T_, XN)
a(f"ds_write_b128 v1, {V(XN,4)}")
lds_inc(3, SC_XSF, 2)
a(f"""H_fx1:
s_xor_b32 s41, s{sSEL}, s{sTOK}
s_lshr_b32 s41, s41, 5
s_cbranch_scc1 H_fx2""")
lds_wait(3, SC_XSF, 2, 1, 2)
qtr_addr()
a(f"""v_lshrrev_b32 v12, 4, v0
v_lshlrev_b32 v8, 4, v12
v_add_u32 v8, {L_XS}, v8
v_add_u32 v9, 64, v8
v_add_u32 v10, 128, v8
v_add_u32 v11, 192, v8
s_lshl_b32 s41, s{sC}, 3
s_sub_u32 s41, s{sSEL}, s41
s_sub_u32 s41, s41, 8
s_and_b32 s41, s41, 31
s_mul_i32 s41, s41, {QSTR}
s_lshl_b32 s42, s{sH}, 6
s_add_u32 s41, s41, s42
s_add_u32 s41, s41, {L_Q}
v_lshl_add_u32 v2, v12, 3, s41
v_mov_b32 v3, {L_SC + SC_QFIX - SC_QC}
s_mov_b32 s{sQM}, 2
s_branch H_qp
H_fx3:
v_mov_b32 v3, {L_SC}""")
lds_wait(3, SC_QFIX, 2, 8, 1)
a(f"""H_fx2:""")
a(f"s_lshl_b32 s98, s{sH}, 14")
wkv_dma(1, 98)
a("s_waitcnt vmcnt(0)")
wkv_tr(8, 1, 2, 98)
lds_wait(3, SC_XSF, 2, 1, 2)
TSA(14)
a(f"""v_lshrrev_b32 v2, 4, v0
s_lshl_b32 s41, s{sH}, 8
s_add_u32 s41, s41, {L_XS}
v_lshl_add_u32 v1, v2, 4, s41""")
for s in range(4): a(f"ds_read_b128 {V(40+4*s,4)}, v1 offset:{64*s}")
a(f"""s_lshl_b32 s41, s{sH}, 7
s_add_u32 s41, s41, {L_KVP}
v_lshl_add_u32 v2, v2, 4, s41
s_waitcnt lgkmcnt(0)""")
for s in range(4):
    a(f"v_mfma_f32_16x16x32_bf16 v[56:59], {V(8+8*s,4)}, {V(40+4*s,4)}, {'0' if s==0 else 'v[56:59]'}")
    a(f"v_mfma_f32_16x16x32_bf16 v[60:63], {V(8+8*s+4,4)}, {V(40+4*s,4)}, {'0' if s==0 else 'v[60:63]'}")
a(f"""s_mov_b32 exec_lo, 0x00010001
s_mov_b32 exec_hi, 0x00010001
ds_write_b128 v2, v[56:59]
ds_write_b128 v2, v[60:63] offset:64
s_mov_b64 exec, -1""")
hsync(2, False)
a(f"""v_and_b32 v42, 7, v0
v_lshlrev_b32 v1, 3, v42
v_add_u32 v1, {L_KVP}, v1
v_lshrrev_b32 v2, 5, v0
s_and_b32 s41, s{sH}, 1
s_lshl_b32 s41, s41, 5
s_add_u32 s41, s41, {L_KVP + 64}
v_lshl_add_u32 v40, v2, 4, s41
s_lshl_b32 s41, s{sH}, 5
s_add_u32 s41, s41, {L_VS}
v_lshl_add_u32 v41, v2, 4, s41""")
for w in range(4): a(f"ds_read_b64 {V(8+2*w,2)}, v1 offset:{128*w}")
for w in range(4): a(f"ds_read_b128 {V(16+4*w,4)}, v40 offset:{128*w}")
a(f"""v_lshlrev_b32 v1, 2, v42
v_add_u32 v1, {L_KVP}, v1
s_waitcnt lgkmcnt(4)
v_pk_add_f32 v[8:9], v[8:9], v[10:11]
v_pk_add_f32 v[12:13], v[12:13], v[14:15]
v_pk_add_f32 v[8:9], v[8:9], v[12:13]
v_cvt_pk_bf16_f32 v8, v8, v9
s_waitcnt lgkmcnt(0)""")
pkadd(16, 16, 20, 4); pkadd(24, 24, 28, 4); pkadd(16, 16, 24, 4)
for i in range(8): a(f"v_readlane_b32 s{sKSL[i]}, v8, {i}")
pack(20, 16, 2); unpack(16, 20, 2)
a(f"""ds_write_b128 v41, v[16:19]
ds_write_b32 v1, v8 offset:{L_KS - L_KVP}""")
a(f"""s_cmp_lg_u32 s{sTOK}, 7
s_cbranch_scc1 H_nE
s_add_u32 s41, s{sE}, 2
v_mov_b32 v1, 0
v_mov_b32 v2, s41
s_mov_b64 exec, 1
global_store_dword v1, v2, {P(sWS)} sc1
s_mov_b64 exec, -1
H_nE:""")
ffn_loads(64)
a(f"""s_branch H_bursts
H_toX:
s_barrier
s_barrier
H_slow:
s_waitcnt vmcnt(0) lgkmcnt(0)
s_barrier
v_mov_b64 v[28:29], -1
v_mov_b64 v[30:31], -1
s_lshl_b32 s41, s{sH}, 10
s_add_u32 s41, s41, {L_L}
v_lshl_add_u32 v1, v0, 4, s41
ds_write_b128 v1, v[28:31]
s_lshl_b32 s41, s{sH}, 8
s_add_u32 s41, s41, {L_M}
v_lshl_add_u32 v1, v0, 2, s41
v_mov_b32 v8, 0xff800000
ds_write_b32 v1, v8
s_lshl_b32 s41, s{sL}, 4
s_add_u32 s41, s41, {L_SC}
v_mov_b32 v1, s41
v_mov_b32 v2, {L_SC}
v_mov_b64 v[8:9], 0
ds_write_b64 v1, v[8:9] offset:{SC_OCNT}
ds_write_b32 v2, v8 offset:{SC_BAD}
s_mov_b32 s{sSLOW}, 1
s_waitcnt lgkmcnt(0)
s_barrier
s_barrier
s_branch H_bursts
A_slow:
s_waitcnt vmcnt(0)
s_barrier
s_cmp_eq_u32 s3, 15
s_cbranch_scc1 A_sl1
v_lshrrev_b32 v8, 5, v0
v_lshlrev_b32 v8, 4, v8
v_add_u32 v8, {L_KS}, v8
ds_read_b128 v[32:35], v8
v_and_b32 v9, 15, v0
v_lshlrev_b32 v9, 2, v9
v_add_u32 v9, {L_VS}, v9
ds_read_b32 v36, v9
v_and_b32 v9, 27, v0
v_cmp_eq_u32 vcc, 16, v9
v_mov_b32 v10, 0x3f800000
v_cndmask_b32 v10, 0, v10, vcc
v_and_b32 v9, 16, v0
v_cmp_eq_u32 vcc, 0, v9
s_waitcnt lgkmcnt(0)
v_cndmask_b32 v36, v10, v36, vcc
s_bitcmp1_b32 s{sSEL}, 0
s_cselect_b32 s41, 0, 16
v_lshrrev_b32 v36, s41, v36
s_mov_b64 exec, s[6:7]
s_lshl_b32 s41, s3, 4
s_add_u32 s41, s41, s4
s_set_gpr_idx_on s41, gpr_idx(SRC0,DST)
s_nop 1
v_or_b32 v{VV}, v{VV}, v36
s_nop 1
s_set_gpr_idx_off
s_bfe_u32 s41, s101, 0x20006
s_lshl_b32 s41, s41, 3
s_and_b32 s42, s{sSEL}, 7
s_add_u32 s41, s41, s42
s_lshl_b32 s42, 1, s41
s_mov_b32 exec_lo, s42
s_mov_b32 exec_hi, s42
s_bfe_u32 s41, s101, 0x10008
s_lshl_b32 s42, s3, 1
s_add_u32 s41, s41, s42
s_lshl_b32 s41, s41, 2
s_set_gpr_idx_on s41, gpr_idx(DST)
s_nop 1
v_mov_b32 v{KK}, v32
v_mov_b32 v{KK+1}, v33
v_mov_b32 v{KK+2}, v34
v_mov_b32 v{KK+3}, v35
s_nop 1
s_set_gpr_idx_off
s_mov_b64 exec, -1
A_sl1:
v_and_b32 v14, 31, v0
v_lshlrev_b32 v14, 2, v14
v_add_u32 v14, {L_M}, v14""")
att_addr()
a(f"""s_barrier
s_mov_b32 s44, 0
A_sm:
s_mul_i32 s41, s44, {4*QSTR}
v_add_u32 v{Q}, s41, v{vQA}
ds_read_b128 {V(Q,4)}, v{Q}
v_mov_b32 v15, 0xff800000
s_waitcnt lgkmcnt(0)""")
for kt in range(NT):
    a(f"v_mfma_f32_32x32x16_bf16 {V(S0,16)}, {V(KK+4*kt,4)}, {V(Q,4)}, 0")
    for i in range(0, 16, 2): a(f"v_max3_f32 v15, v15, v{S0+i}, v{S0+i+1}")
a(f"""v_lshl_add_u32 v13, s44, 7, v14
ds_max_f32 v13, v15
s_add_u32 s44, s44, 1
s_cmp_lt_u32 s44, 8
s_cbranch_scc1 A_sm
s_waitcnt lgkmcnt(0)
s_barrier
s_mov_b32 s44, 0
A_se:
s_mul_i32 s41, s44, {4*QSTR}
v_add_u32 v{Q}, s41, v{vQA}
ds_read_b128 {V(Q,4)}, v{Q}
v_lshl_add_u32 v13, s44, 7, v14
ds_read_b32 v15, v13
s_waitcnt lgkmcnt(0)""")
for i in range(16): a(f"v_sub_f32 v{S1+i}, 0, v15")
for i in range(0, 16, 2): a(f"v_mov_b64 {V(ACC+i,2)}, 0")
for kt in range(NT):
    a(f"v_mfma_f32_32x32x16_bf16 {V(S0,16)}, {V(KK+4*kt,4)}, {V(Q,4)}, {V(S1,16)}")
    ex(S0, 0, 16)
    smf(2*kt, S0); smf(2*kt+1, S0+8)
a("s_mov_b32 s41, s44")
flush()
a(f"""s_add_u32 s44, s44, 1
s_cmp_lt_u32 s44, 8
s_cbranch_scc1 A_se
s_branch A_X
L_end:
""")
if TSON:
    TS(15)
    a(f"""s_getreg_b32 s75, hwreg(HW_REG_HW_ID)
    s_mul_i32 s41, s{sB}, 12
    s_add_u32 s41, s41, s{sW}
    s_lshl_b32 s41, s41, 7
    s_add_u32 s41, s41, {WS_TS}
    v_mov_b32 v1, s41
    s_mov_b64 exec, 1""")
    for i in range(32):
        a(f"v_mov_b32 v2, s{60+i}\nglobal_store_dword v1, v2, {P(sWS)} offset:{4*i}")
if os.environ.get("DLY"):
    i_, j_ = [int(x) for x in os.environ["DLY"].split(",")]
    a(f"""s_cmp_lg_u32 s{sTOK}, {int(os.environ.get("DLYW", "4"))}
    s_cbranch_scc1 L_exit
    s_sub_u32 s41, s{60+j_}, s{60+i_}
    s_mul_i32 s41, s41, 4
    s_min_u32 s41, s41, 40000
    s_add_u32 s41, s41, s91
    s_add_u32 s41, s41, 1000
    L_dly:
    s_memrealtime s[92:93]
    s_waitcnt lgkmcnt(0)
    s_sub_u32 s42, s92, s41
    s_cmp_lt_i32 s42, 0
    s_cbranch_scc1 L_dly""")
if os.environ.get("DBGT"):
    a(f"""s_mov_b64 exec, 1
    v_mov_b32 v1, 0
    s_not_b32 s41, s60
    v_mov_b32 v2, s41
    global_atomic_umax v1, v2, {P(sDBG)}""")
    for k, slot in enumerate((31, 1, 2, 3, 5, 9, 7, 21, 25, 23, 24, 27, 29, 16, 0)):
        a(f"v_mov_b32 v2, s{60+slot}\nglobal_atomic_umax v1, v2, {P(sDBG)} offset:{4+4*k}")
a("L_exit:\ns_endpgm")

ABL = os.environ.get("ABL", "")
if ABL:
    from asmlib import Ins
    out_items = []; cur = ""
    for it in a.items:
        if isinstance(it, Ins) and it.label: cur = it.label
        drop = False
        if isinstance(it, Ins) and it.text:
            idx = len(out_items)
            t = it.text
            if "ds_write_b32 v8, v9 offset:96" in t: drop = True
            inH = region[0]
            if "w" in ABL and inH == "prep" and it.op == "v_perm_b32": drop = True
            if "m" in ABL and inH == "burst" and it.op.startswith("v_mfma"): drop = True
            if "v" in ABL and inH == "burst" and it.op in ("v_pk_add_f32", "v_pk_mul_f32", "v_dot2_f32_bf16", "v_cvt_pk_bf16_f32", "v_add_f32", "v_exp_f32", "v_rcp_f32", "v_fma_f32"): drop = True
            if "f" in ABL and inH == "ffn" and (it.op.startswith("v_dot2") or it.op.startswith("v_permlane") or it.op.startswith("v_add_f32_dpp") or it.op.startswith("v_pk_") or it.op.startswith("v_mfma")): drop = True
        if isinstance(it, Ins) and it.label == "H_prep": region[0] = "prep"
        if isinstance(it, Ins) and it.label == "H_bursts": region[0] = "burst"
        if isinstance(it, Ins) and it.label == "H_nwf": region[0] = ""
        if isinstance(it, Ins) and it.label == "H_FFN": region[0] = "ffn"
        if isinstance(it, Ins) and it.label == "H_toX": region[0] = ""
        if not drop: out_items.append(it)
    a.items = out_items
n = a.hazard_pass()
hdr = open(f"cdna_kernels/{NAME}.s.ref").read().split("; Override launch")[0]
out = hdr + f"""; @launch grid=(256,1,1) block=(512,1,1) lds=163840
.amdgcn_target "amdgcn-amd-amdhsa--gfx950"
.text
.globl {NAME}_kernel
.p2align 8
.type {NAME}_kernel,@function
{NAME}_kernel:
""" + a.text() + f""".section .rodata,"a"
.p2align 6
.amdhsa_kernel {NAME}_kernel
  .amdhsa_next_free_vgpr 256
  .amdhsa_next_free_sgpr 102
  .amdhsa_accum_offset 256
  .amdhsa_group_segment_fixed_size 0
  .amdhsa_kernarg_size 104
  .amdhsa_user_sgpr_count 2
  .amdhsa_user_sgpr_kernarg_segment_ptr 1
  .amdhsa_system_sgpr_workgroup_id_x 1
  .amdhsa_float_denorm_mode_32 3
.end_amdhsa_kernel
"""
open(sys.argv[1], "w").write(out)
print("nops inserted", n, "instructions", sum(1 for i in a.items if not isinstance(i, str) and i.text))
```

```python
import sys, os
from asmlib import Asm
NAME = "interleave_layers__grouped_kv_mqa__moe_arch_mod__prompt"
TSON = bool(int(os.environ.get("TS", "0")))
a = Asm()
region = ['']
def E(n, d): return int(os.environ.get(n, str(d)))

WS_FLAG = 0x1000; WS_KEY = 0x400000; WS_HY = WS_KEY + 0x10000; WS_Y = WS_KEY + 0x20000; WS_KV = 0x30000; WS_CAND = 0x80000; KVS = 640; KVL = 256*640
WS_OPF = 0x180000
WS_XN = 0x200000; WS_OP = 0x600000; OPL = 0xc00000; WS_TS = 0x3000000; WS_FS = 0x2000000; WS_WKV = 0x2800000
L_SLOT = 65536; L_XN = 114688; L_O = 131072; L_Q = 147456; L_L = 156160; L_SC = 160768
L_ROW = L_SLOT; L_PS = L_SLOT + 16384; L_KVS = L_Q
L_WK1 = 98816
L_XS = 139776; L_X2S = L_XS + 1024; L_KVP = L_XS + 2048; L_VS = L_XS + 2560; L_KS = L_XS + 2816; L_M = L_XS + 3072
QSTR = 272
RS = 2064
SC_KVCNT = 0; SC_KEYS = 16; SC_OCNT = 64; SC_FACC = 128; SC_FCNT = 384; SC_DACC = 400; SC_DCNT = 464; SC_GK = 480
SC_XSF = 512; SC_QFIX = 516; SC_BAD = 96; SC_XNC = 528; SC_QC = 536; SC_CLR = 564; SC_C2 = 560; SC_XN2 = 556; SC_B1 = 552; SC_KVD = 544; SC_YC = 548; SC_ZERO = 768; SC_WR = 1024
FORCE = int(os.environ.get('FORCE', '0'))
POLLMAX = 40000
B1P0 = bool(int(os.environ.get('B1P0', '1')))
HS1 = int(os.environ.get('HS1', '14'))
KS1 = int(os.environ.get('KS1', '0'))
HLNP = int(os.environ.get('HLNP', '2'))
OUTF = ' ' + os.environ.get('OF1', '')
OUTG = ' ' + os.environ.get('OF2', '')
NPRE = int(os.environ.get('NPRE', '2'))
CODECH = int(os.environ.get('CODECH', '6'))
QSCALE = 0x3eb8aa3b

sX, sWQ, sWK, sWV, sWO, sWR, sWG, sWU, sWD, sOUT, sDBG, sWS = 8, 10, 12, 14, 16, 20, 22, 24, 26, 28, 30, 32
sE, sW, sL, sC, sTAG, sLO, sHI = 34, 35, 36, 37, 38, 39, 40
sCNT, sJ, sKEY, sTOK, sMASK, sH, sSEL, sOTAG, sF, sCAND, sMYK, sWT = 46, 47, 48, 49, 50, 51, 52, 53, 54, 55, 56, 57
sORD = 58
sKS = 0
sSLOW = 19
sPB = 100
XL = E('XL', 0)
sSLOT = 96; sQM = 97; sX4 = 97
sOPB = 50
sB = 18
sKSL = [0, 1, 2, 3, 4, 5, 6, 7]
def P(n): return f"s[{n}:{n+1}]"
def V(n, k=1): return f"v{n}" if k == 1 else f"v[{n}:{n+k-1}]"

def TS(i):
    if not TSON: return
    a(f"""s_memrealtime s[92:93]
    s_waitcnt lgkmcnt(0)
    s_cmp_eq_u32 s{sL}, 0
    s_cselect_b32 s{60+i}, s92, s{60+i}""")
    if not os.environ.get("SO"): a(f"s_cselect_b32 s{76+i}, s{76+i}, s92")
SO = bool(os.environ.get("SO"))
def TSS(slot):
    if not (TSON and SO) or os.environ.get("P0"): return
    a(f"""s_memrealtime s[92:93]
    s_waitcnt lgkmcnt(0)
    s_cmp_eq_u32 s{60+slot}, 0
    s_cselect_b32 s{60+slot}, s92, s{60+slot}""")
def TSA(slot):
    if not TSON or (SO and slot >= 16): return
    a(f"""s_memrealtime s[92:93]
    s_waitcnt lgkmcnt(0)
    s_mov_b32 s{60+slot}, s92""")
def TSF(i):
    if not TSON or SO: return
    a(f"""s_memrealtime s[92:93]
    s_waitcnt lgkmcnt(0)
    s_cmp_eq_u32 s{sF}, 0
    s_cselect_b32 s{60+i}, s92, s{60+i}
    s_cselect_b32 s{76+i}, s{76+i}, s92""")
def TC(i):
    return
    a(f"""s_memtime s[92:93]
    s_waitcnt lgkmcnt(0)
    s_mov_b32 s{94+i}, s92""")

def poll_guard(lbl_retry, cond_branch, lbl_stem, mult=1, sleep=0):
    done = a.newlabel(lbl_stem)
    a(f"{cond_branch} {done}")
    if sleep: a(f"s_sleep {sleep}")
    a(f"""s_add_u32 s{sCNT}, s{sCNT}, 1
    s_cmp_lt_u32 s{sCNT}, {POLLMAX*mult}
    s_cbranch_scc1 {lbl_retry}
    {done}:""")
def lds_wait(vaddr, off, vt, target, sleep=1):
    lb = a.newlabel("W")
    a(f"s_mov_b32 s{sCNT}, 0\n{lb}:")
    a(f"""ds_read_b32 v{vt}, v{vaddr} offset:{off}
    s_waitcnt lgkmcnt(0)
    v_cmp_gt_u32 vcc, {target}, v{vt}""")
    poll_guard(lb, "s_cbranch_vccz", "Wd", 8, sleep)
def lds_inc(vaddr, off, vt):
    a(f"""v_mov_b32 v{vt}, 1
    s_mov_b64 exec, 1
    ds_add_u32 v{vaddr}, v{vt} offset:{off}
    s_mov_b64 exec, -1""")

def dpp_reduce(regs, op="v_add_f32"):
    for m in ("row_ror:8", "row_ror:4", "row_ror:2", "row_ror:1"):
        for r in regs: a(f"{op}_dpp v{r}, v{r}, v{r} {m} row_mask:0xf bank_mask:0xf")
    for r in regs: a(f"{op}_dpp v{r}, v{r}, v{r} row_bcast:15 row_mask:0xa bank_mask:0xf")
    for r in regs: a(f"{op}_dpp v{r}, v{r}, v{r} row_bcast:31 row_mask:0xc bank_mask:0xf")
def unpack(dst, src, n=4):
    for i in range(n):
        a(f"v_lshlrev_b32 v{dst+2*i}, 16, v{src+i}")
        a(f"v_and_b32 v{dst+2*i+1}, 0xffff0000, v{src+i}")
def pack(dst, src, n=4):
    for i in range(n): a(f"v_cvt_pk_bf16_f32 v{dst+i}, v{src+2*i}, v{src+2*i+1}")
def pkadd(d, x, y, n):
    for i in range(0, n, 2): a(f"v_pk_add_f32 {V(d+i,2)}, {V(x+i,2)}, {V(y+i,2)}")
def tr_pair(e, o, t):
    a(f"""v_perm_b32 v{t}, v{o}, v{e}, s{sLO}
    v_perm_b32 v{o}, v{o}, v{e}, s{sHI}
    v_mov_b32 v{e}, v{t}""")
def ln(X, D, T, out, extra=[]):
    a(f"v_readfirstlane_b32 s42, v{X}")
    for i in range(0, 8, 2): a(f"v_pk_add_f32 {V(D+i,2)}, {V(X+i,2)}, s[42:43] op_sel_hi:[1,0] neg_lo:[0,1] neg_hi:[0,1]")
    a(f"""v_pk_add_f32 {V(T,2)}, {V(D,2)}, {V(D+2,2)}
    v_pk_mul_f32 {V(T+2,2)}, {V(D,2)}, {V(D,2)}
    v_pk_add_f32 {V(T,2)}, {V(T,2)}, {V(D+4,2)}
    v_pk_fma_f32 {V(T+2,2)}, {V(D+2,2)}, {V(D+2,2)}, {V(T+2,2)}
    v_pk_add_f32 {V(T,2)}, {V(T,2)}, {V(D+6,2)}
    v_pk_fma_f32 {V(T+2,2)}, {V(D+4,2)}, {V(D+4,2)}, {V(T+2,2)}
    v_add_f32 v{T}, v{T}, v{T+1}
    v_pk_fma_f32 {V(T+2,2)}, {V(D+6,2)}, {V(D+6,2)}, {V(T+2,2)}
    v_mul_f32 v{T}, 0x3b000000, v{T}
    v_add_f32 v{T+1}, v{T+2}, v{T+3}""")
    dpp_reduce([T, T+1] + extra)
    a(f"""v_mul_f32 v{T+1}, 0x3b000000, v{T+1}
    v_fma_f32 v{T+1}, -v{T}, v{T}, v{T+1}
    v_add_f32 v{T}, s42, v{T}
    v_max_f32 v{T+1}, 0, v{T+1}
    v_cvt_pk_bf16_f32 v{T}, v{T}, v{T+1}
    v_and_b32 v{T+1}, 0xffff0000, v{T}
    v_lshlrev_b32 v{T}, 16, v{T}
    v_add_f32 v{T+1}, 0x3727c5ac, v{T+1}
    v_readlane_b32 s42, v{T}, 63
    v_cvt_pk_bf16_f32 v{T+1}, 0, v{T+1}
    v_sqrt_f32 v{T+1}, v{T+1}""")
    for i in range(0, 4, 2): a(f"v_pk_add_f32 {V(D+i,2)}, {V(X+i,2)}, s[42:43] op_sel_hi:[1,0] neg_lo:[0,1] neg_hi:[0,1]")
    a(f"""v_cvt_pk_bf16_f32 v{T+1}, 0, v{T+1}
    v_rcp_f32 v{T+1}, v{T+1}""")
    for i in range(4, 8, 2): a(f"v_pk_add_f32 {V(D+i,2)}, {V(X+i,2)}, s[42:43] op_sel_hi:[1,0] neg_lo:[0,1] neg_hi:[0,1]")
    for i in range(4): a(f"v_cvt_pk_bf16_f32 v{D+i}, 0, v{D+i}")
    a(f"v_readlane_b32 s42, v{T+1}, 63")
    for i in range(4, 8): a(f"v_cvt_pk_bf16_f32 v{D+i}, 0, v{D+i}")
    for i in range(0, 8, 2): a(f"v_pk_mul_f32 {V(D+i,2)}, {V(D+i,2)}, s[42:43] op_sel_hi:[1,0]")
    pack(out, D)

XR = 4
X_, D_, T_, XN, X1, WR = 8, 16, 24, 28, 32, 36
XO = 36
vQA, vOA, vIDX = 1, 2, 3
Q, ZZ, ACC, S0, S1, KK, VV = 8, 12, 16, 32, 48, 64, 128
WKV = 64
WQR, WO = 64, 128
FOR = 224
GU, WDn = 40, 56

def wkv_dma(vt, sreg):
    a(f"""s_lshl_b32 s41, s{sH}, 12
    v_lshl_add_u32 v{vt}, v0, 4, s41
    s_mov_b32 m0, s{sreg}""")
    for k in range(4): a(f"global_load_lds_dwordx4 v{vt}, {P(sWK)} offset:{1024*k}")
    a(f"s_add_u32 m0, s{sreg}, 4096")
    for k in range(4): a(f"global_load_lds_dwordx4 v{vt}, {P(sWV)} offset:{1024*k}")
def wkv_tr(dst, vt, vt2, sreg):
    a(f"""v_lshrrev_b32 v{vt}, 4, v0
    v_and_b32 v{vt2}, 15, v0
    v_lshlrev_b32 v{vt2}, 3, v{vt2}
    v_lshl_add_u32 v{vt}, v{vt}, 8, v{vt2}
    v_add_u32 v{vt}, s{sreg}, v{vt}""")
    for k in range(4):
        for m in range(2):
            for hf in range(2):
                a(f"ds_read_b64_tr_b16 {V(dst+8*k+4*m+2*hf,2)}, v{vt} offset:{4096*m + 1024*k + 128*hf}")
        if k == 2: a("s_waitcnt lgkmcnt(4)")
def ffn_loads(GU=40):
    a(f"""s_lshl_b32 s41, s{sJ}, 15
    s_lshl_b32 s42, s{sH}, 13
    s_add_u32 s41, s41, s42
    s_add_u32 s41, s41, {WS_FS + 4096}
    v_lshl_add_u32 v2, v0, 4, s41""")
    for i in range(6): a(f"global_load_dwordx4 {V(GU+4*i,4)}, v2, {P(sWS)} offset:{1024*i-4096} sc1")
def gloads(v):
    for g in range(3): a(f"v_lshl_add_u32 v{v+g}, v0, 4, s{3+g}")
    for i in range(6): a(f"global_load_dwordx4 {V(40+4*i,4)}, v{v+(i>>1)}, {P(sWS)} offset:{4096*(i&1)-2048} sc1")
def pos2tok(dst, src):
    a(f"""s_lshl_b32 s{dst}, s{sC}, 3
    s_add_u32 s{dst}, s{dst}, s{src}
    s_add_u32 s{dst}, s{dst}, 8
    s_and_b32 s{dst}, s{dst}, 31
    s_andn2_b32 s43, s{sTOK}, 31
    s_add_u32 s{dst}, s{dst}, s43""")

a(f"""
s_cmp_ge_u32 s2, 256
s_cbranch_scc1 L_exit
s_load_dwordx16 s[8:23], s[0:1], 0
s_load_dwordx8 s[24:31], s[0:1], 64
s_load_dwordx2 s[32:33], s[0:1], 96
v_lshrrev_b32 v1, 6, v0
v_and_b32 v0, 63, v0
s_mov_b32 s{sL}, 0
v_readfirstlane_b32 s{sW}, v1
s_mov_b32 s{sLO}, 0x05040100
s_mov_b32 s{sHI}, 0x07060302
s_mov_b32 s{sF}, 0
s_and_b32 s41, s2, 7
s_lshl_b32 s41, s41, 3
s_bfe_u32 s42, s2, 0x30003
s_or_b32 s41, s41, s42
s_andn2_b32 s42, s2, 63
s_or_b32 s{sSLOT}, s41, s42
s_mov_b32 s{sSEL}, -1
s_and_b32 s{sJ}, s2, 7
s_lshl_b32 s{sJ}, s{sJ}, 5
s_lshr_b32 s41, s2, 3
s_add_u32 s{sJ}, s{sJ}, s41
s_and_b32 s{sH}, s{sW}, 3
s_mov_b32 s{sPB}, s2
{"s_mov_b32 s2, s%d" % sJ if XL else "s_nop 0"}
s_and_b32 s{sC}, s2, 3
s_lshl_b32 s{sTOK}, s2, 3
s_add_u32 s{sTOK}, s{sTOK}, s{sW}
s_lshl_b32 s41, s{sTOK}, 10
v_lshl_add_u32 v1, v0, 4, s41
v_mov_b64 v[12:13], -1
v_mov_b64 v[14:15], -1
s_cmp_lg_u32 s{sW}, 7
s_cbranch_scc1 S_z
v_lshlrev_b32 v2, 4, v0
v_add_u32 v2, {L_L}, v2
ds_write_b128 v2, v[12:15]
ds_write_b128 v2, v[12:15] offset:1024
ds_write_b128 v2, v[12:15] offset:2048
ds_write_b128 v2, v[12:15] offset:3072
v_mov_b64 v[8:9], 0
v_mov_b64 v[10:11], 0
ds_write_b128 v2, v[8:11] offset:{L_SC - L_L}
S_z:
""")
if TSON:
    for i in range(32): a(f"s_mov_b32 s{60+i}, 0")
TS(0)
a(f"""
s_waitcnt lgkmcnt(0)
s_mov_b32 s{sB}, s2
s_mov_b32 s{sSLOW}, 0
global_load_dwordx4 {V(XR,4)}, v1, {P(sX)}
s_barrier
s_cmp_ge_u32 s{sW}, 4
s_cbranch_scc1 S_noA
s_setprio 2
v_add_u32 v16, 4096, v1
global_load_dwordx4 {V(FOR,4)}, v16, {P(sX)}""")
for g in range(2):
    a(f"s_add_u32 s44, s{sH}, {8*g}")
    pos2tok(41, 44)
    a(f"""s_lshl_b32 s41, s41, 10
    s_add_u32 s41, s41, 2048
    v_lshl_add_u32 v{16+g}, v0, 4, s41""")
a(f"""s_lshl_b32 s98, s{sH}, 13
s_add_u32 s98, s98, {L_XN}
s_cmp_eq_u32 s{sH}, 3
s_cselect_b32 s98, {L_Q}, s98""")
wkv_dma(8, 98)
for i in range(4): a(f"global_load_dwordx4 {V(FOR+4+4*i,4)}, v{16+(i>>1)}, {P(sX)} offset:{4096*(i&1)-2048}")
TSS(16)
a(f"""s_waitcnt vmcnt(12)
s_branch R_P1
S_noA:
s_load_dword s{sE}, {P(sWS)}, 0
s_cmp_lg_u32 s{sW}, 7
s_cbranch_scc1 S_n7
s_setprio {E("W7P", 3)}
s_mul_i32 s41, s{sSLOT}, {KVS}
s_add_u32 s41, s41, {WS_KV}
v_lshl_add_u32 v1, v0, 4, s41
v_add_u32 v3, {KVL}, v1
v_mov_b32 v16, 0x3f803f80
v_cmp_eq_u32 vcc, 32, v0
v_cndmask_b32 v16, 0, v16, vcc
v_cmp_gt_u32 vcc, 32, v0
v_cndmask_b32 v16, v16, v12, vcc
v_mov_b32 v17, v16
v_mov_b64 v[18:19], v[16:17]
s_mov_b32 exec_hi, 0xff
global_store_dwordx4 v1, v[16:19], {P(sWS)} sc1
global_store_dwordx4 v3, v[16:19], {P(sWS)} sc1
s_mov_b32 exec_hi, -1
s_lshl_b32 s41, s2, 7
s_add_u32 s41, s41, {WS_KEY}
s_lshl_b32 s42, s{sJ}, 7
s_add_u32 s42, s42, {WS_KEY}
v_mov_b32 v1, s41
v_mov_b32 v3, s42
v_cmp_gt_u32 vcc, 2, v0
v_cndmask_b32 v1, v3, v1, vcc
v_lshl_add_u32 v1, v0, 15, v1
s_mov_b64 exec, 0x1f
global_store_dwordx4 v1, v[12:15], {P(sWS)} sc1
s_mov_b64 exec, -1
""")
a(f"""S_n7:
s_setprio 1
s_cmp_lg_u32 s{sW}, 6
s_cbranch_scc1 H_stage
v_lshlrev_b32 v1, 4, v0
global_load_dwordx4 v[44:47], v1, {P(sWR)}
s_branch H_stage""")
def key_make():
    a(f"""v_cvt_pk_bf16_f32 v1, 0, v1
    v_ashrrev_i32 v2, 31, v1
    v_or_b32 v2, 0x80000000, v2
    v_xor_b32 v1, v1, v2
    v_and_b32 v1, 0xffff0000, v1
    s_sub_u32 s41, 2047, s{sTOK}
    v_or_b32 v1, s41, v1
    s_lshl_b32 s41, s{sF}, 3
    s_add_u32 s41, s41, {L_SC + SC_KEYS}
    v_mov_b32 v3, s41
    v_readlane_b32 s{sMYK}, v1, 63
    v_mov_b32 v2, 1
    s_mov_b32 exec_lo, 0
    s_mov_b32 exec_hi, 0x80000000
    ds_max_u32 v3, v1
    ds_add_rtn_u32 v2, v3, v2 offset:4
    ds_read_b32 v1, v3
    s_mov_b64 exec, -1""")
def key_pub():
    lb = a.newlabel("K_np")
    a(f"""s_lshl_b32 s41, s{sB}, 7
    s_lshl_b32 s42, s{sF}, 15
    s_add_u32 s41, s41, s42
    s_add_u32 s41, s41, {WS_KEY}
    v_mov_b32 v3, s41
    s_waitcnt lgkmcnt(0)
    v_readlane_b32 s6, v2, 63
    s_cmp_lg_u32 s6, 7
    s_cbranch_scc1 {lb}
    s_mov_b32 exec_lo, 0
    s_mov_b32 exec_hi, 0x80000000
    global_store_dword v3, v1, {P(sWS)} sc1
    s_mov_b64 exec, -1
    {lb}:
    v_mov_b32 v3, {L_SC}""")
a("R_P1:")
TS(1)
unpack(X_, XR)
ln(X_, D_, T_, XO)
a(f"""s_add_u32 s41, s{sW}, 8
v_xor_b32 v2, s41, v0
s_add_u32 s41, s{sW}, 24
s_lshl_b32 s41, s41, 10
s_add_u32 s41, s41, {L_XN}
v_lshl_add_u32 v2, v2, 4, s41
ds_write_b128 v2, {V(XO,4)}
s_cmp_eq_u32 s{sL}, 0
s_cbranch_scc1 S_l0
s_lshl_b32 s41, s{sTOK}, 10
s_add_u32 s41, s41, {WS_XN}
v_lshl_add_u32 v2, v0, 4, s41
s_cmp_ge_u32 s{sW}, 4
s_cbranch_scc1 R_nw
s_waitcnt vmcnt(1)
s_cmp_eq_u32 s6, 7
s_cbranch_scc1 R_nw
s_waitcnt vmcnt(0)
R_nw:
global_store_dwordx4 v2, {V(XO,4)}, {P(sWS)} sc1
s_cmp_ge_u32 s{sW}, 4
s_cbranch_scc1 H_B1
s_setprio 3""")
wkv_tr(WKV, 8, 9, 98)
a(f"""A_kvp:
v_and_b32 v8, 7, v0
v_add_u32 v8, 8, v8
v_lshrrev_b32 v9, 4, v0
v_xor_b32 v9, v9, v8
v_lshlrev_b32 v8, 10, v8
s_lshl_b32 s41, s{sH}, 8
s_add_u32 s41, s41, {L_XN + 16*1024}
v_add_u32 v8, s41, v8
v_xor_b32 v10, 4, v9
v_xor_b32 v11, 8, v9
v_xor_b32 v12, 12, v9
v_lshl_add_u32 v9, v9, 4, v8
v_lshl_add_u32 v10, v10, 4, v8
v_lshl_add_u32 v11, v11, 4, v8
v_lshl_add_u32 v12, v12, 4, v8
s_cmp_eq_u32 s{sL}, 0
s_cbranch_scc1 A_kv2
s_waitcnt lgkmcnt(0)
s_barrier
A_kv2:
ds_read_b128 v[40:43], v9
ds_read_b128 v[44:47], v10
ds_read_b128 v[48:51], v11
ds_read_b128 v[52:55], v12
s_lshl_b32 s41, s{sH}, 11
s_add_u32 s41, s41, {L_KVS}
v_lshl_add_u32 v8, v0, 4, s41
s_lshl_b32 s42, s{sL}, 2
v_add_u32 v9, s42, v3
v_mov_b32 v10, 1""")
for s in range(4):
    a(f"s_waitcnt lgkmcnt({3-s})")
    a(f"v_mfma_f32_16x16x32_bf16 v[56:59], {V(WKV+8*s,4)}, {V(40+4*s,4)}, {'0' if s==0 else 'v[56:59]'}")
    a(f"v_mfma_f32_16x16x32_bf16 v[60:63], {V(40+4*s,4)}, {V(WKV+8*s+4,4)}, {'0' if s==0 else 'v[60:63]'}")
a(f"""ds_write_b128 v8, v[56:59]
ds_write_b128 v8, v[60:63] offset:1024
s_mov_b64 exec, 1
ds_add_u32 v9, v10 offset:{SC_KVCNT}
s_mov_b64 exec, -1
A_nokv:
s_setprio 0""")
if not os.environ.get("PP"): TS(2)
def stage(src, off, temps):
    for f in range(8):
        t = temps[f % len(temps)]
        for i in range(4):
            a(f"v_perm_b32 v{t+i}, v{src+4*(2*i+1)+(f>>1)}, v{src+4*(2*i)+(f>>1)}, s{sHI if f&1 else sLO}")
        a(f"ds_write_b128 v1, {V(t,4)} offset:{off+1024*f}")
a(f"""s_cmp_lg_u32 s{sL}, 0
s_cbranch_scc1 R_cand
s_setprio 2
s_load_dword s{sE}, {P(sWS)}, 0
s_mov_b32 s45, 5
s_mov_b32 s3, s{sH}
s_branch S_fl
S_l0:""")
TSS(17)
a(f"""v_mov_b32 v3, {L_SC}
s_mov_b32 s44, 0
s_mov_b32 s45, 1
s_add_u32 s3, s{sH}, 28
S_fl:
s_lshl_b32 s41, s44, 2
s_set_gpr_idx_on s41, gpr_idx(SRC0)
s_nop 1
v_mov_b32 v28, v{FOR}
v_mov_b32 v29, v{FOR+1}
v_mov_b32 v30, v{FOR+2}
v_mov_b32 v31, v{FOR+3}
s_nop 1
s_set_gpr_idx_off""")
unpack(40, 28)
ln(40, D_, T_, XO)
a(f"""s_and_b32 s42, s3, 15
v_xor_b32 v28, s42, v0
s_lshl_b32 s41, s3, 10
s_add_u32 s41, s41, {L_XN}
v_lshl_add_u32 v28, v28, 4, s41
ds_write_b128 v28, {V(XO,4)}
s_add_u32 s3, s3, 4
s_add_u32 s44, s44, 1
s_cmp_lg_u32 s44, {E("FLD", 4)}
s_cbranch_scc1 S_nf
s_lshl_b32 s41, s{sH}, 13
s_add_u32 s41, s41, {WS_FLAG}
v_lshl_add_u32 v13, v0, 7, s41
global_load_dword v13, v13, {P(sWS)} sc1
S_nf:
s_cmp_lt_u32 s44, s45
s_cbranch_scc1 S_fl
s_cmp_eq_u32 s45, 5
s_cbranch_scc1 A_P2
s_cmp_eq_u32 s45, 2
s_cbranch_scc1 H_ret""")
TSS(18)
a("s_waitcnt vmcnt(0)")
TSS(19)
wkv_tr(WKV, 8, 9, 98)
lds_inc(3, SC_B1, 8)
TSS(20)
lds_wait(3, SC_B1, 8, 4, 0)
TSS(21)
a(f"""s_setprio 3
s_branch A_kvp
H_B1:
s_waitcnt lgkmcnt(0)
s_barrier
s_setprio 2
s_cmp_lg_u32 s{sW}, 7
s_cbranch_scc1 R_cand
H_fin:
v_and_b32 v12, 3, v0
v_lshrrev_b32 v13, 2, v0
v_lshl_add_u32 v12, v12, 4, v13
v_and_b32 v13, 1, v0
v_lshrrev_b32 v14, 1, v0
v_lshl_add_u32 v13, v13, 4, v14
v_add_u32 v13, 48, v13
v_cmp_gt_u32 vcc, 32, v0
s_lshl_b32 s42, s{sL}, 2
v_add_u32 v9, s42, v3
v_cndmask_b32 v12, v13, v12, vcc
v_lshlrev_b32 v12, 4, v12
v_add_u32 v12, {L_KVS}, v12
s_mul_i32 s41, s{sL}, {KVL}
s_mul_i32 s42, s{sSLOT}, {KVS}
s_add_u32 s41, s41, s42
s_add_u32 s41, s41, {WS_KV}
v_lshl_add_u32 v8, v0, 3, s41""")
lds_wait(9, SC_KVCNT, 11, 4, 0)
for w in range(4): a(f"ds_read_b128 {V(40+4*w,4)}, v12 offset:{2048*w}")
a("s_setprio 3\ns_waitcnt lgkmcnt(2)")
pkadd(40, 40, 44, 4)
a("s_waitcnt lgkmcnt(0)")
pkadd(48, 48, 52, 4); pkadd(40, 40, 48, 4)
pack(40, 40, 2)
a(f"""v_mov_b32_dpp v42, v40 quad_perm:[1,1,3,3] row_mask:0xf bank_mask:0xf
v_mov_b32_dpp v43, v41 quad_perm:[1,1,3,3] row_mask:0xf bank_mask:0xf
s_mov_b32 exec_lo, 0x55555555
s_mov_b32 exec_hi, 0x55555555
global_store_dwordx4 v8, v[40:43], {P(sWS)} sc1
s_mov_b64 exec, -1
s_setprio 2
s_cmp_lg_u32 s{sL}, 0
s_cbranch_scc1 R_cand
s_waitcnt vmcnt(3)
s_branch H_P2""")
a(f"""R_cand:
s_lshl_b32 s41, s{sF}, 3
v_add_u32 v8, s41, v3
ds_read_b32 v8, v8 offset:{SC_KEYS}
s_lshl_b32 s41, s{sF}, 19
s_lshl_b32 s42, s{sB}, 11
s_add_u32 s41, s41, s42
s_add_u32 s41, s41, {WS_CAND}
v_lshl_add_u32 v2, v0, 4, s41
s_waitcnt lgkmcnt(0)
v_readfirstlane_b32 s41, v8
s_mov_b32 s{sCAND}, 0
s_cmp_lg_u32 s41, s{sMYK}
s_cbranch_scc1 R_nocand
s_mov_b32 s{sCAND}, 1
global_store_dwordx4 v2, {V(XN,4)}, {P(sWS)} sc1
global_store_dwordx4 v2, {V(X1,4)}, {P(sWS)} offset:1024 sc1
R_nocand:""")
TSF(8)
a(f"""s_cmp_lg_u32 s{sF}, 0
s_cbranch_scc1 R_tail
s_cmp_ge_u32 s{sW}, 4
s_cbranch_scc1 H_gather""")
def key_reduce():
    dpp_reduce([8], "v_max_u32")
    a(f"""s_lshl_b32 s41, s{sF}, 4
    s_lshl_b32 s42, s{sH}, 2
    s_add_u32 s41, s41, s42
    v_add_u32 v9, s41, v3
    v_add_u32 v8, 1, v8
    s_mov_b32 exec_lo, 0
    s_mov_b32 exec_hi, 0x80000000
    ds_write_b32 v9, v8 offset:{SC_GK}
    s_mov_b64 exec, -1""")
def key_poll():
    l1 = a.newlabel("K_p")
    a(f"""s_lshl_b32 s42, s{sF}, 15
    s_lshl_b32 s41, s{sH}, 13
    s_add_u32 s42, s42, s41
    s_add_u32 s42, s42, {WS_KEY}
    v_lshl_add_u32 v9, v0, 7, s42
    s_mov_b32 s{sCNT}, 0
    s_mov_b32 s44, 0
    s_mov_b64 vcc, -1
    {l1}:
    s_mov_b64 exec, {"vcc" if E("MSK", 1) else "-1"}
    global_load_dword v8, v9, {P(sWS)} sc1
    s_mov_b64 exec, -1
    s_waitcnt vmcnt(0)
    v_cmp_eq_u32 vcc, -1, v8""")
    if E("SPEC", 1):
        a(f"""s_cbranch_vccz K_sd
        v_add_u32 v12, 1, v8""")
        dpp_reduce([12], "v_max_u32")
        a(f"""v_readlane_b32 s41, v12, 63
        s_cmp_eq_u32 s41, s44
        s_cbranch_scc1 K_sn
        s_mov_b32 s44, s41
        s_sub_u32 s41, s41, 1
        s_andn2_b32 s41, 0x7f8, s41
        s_lshl_b32 s41, s41, 8
        s_add_u32 s41, s41, {WS_CAND + 0x80000}
        v_lshl_add_u32 v10, v0, 5, s41
        global_load_dword v11, v10, {P(sWS)} sc1
        K_sn:
        s_add_u32 s{sCNT}, s{sCNT}, 1
        s_cmp_lt_u32 s{sCNT}, {POLLMAX}
        s_cbranch_scc1 {l1}
        K_sd:""")
    else:
        poll_guard(l1, "s_cbranch_vccz", "K_pd", 1, E("KR1", 2))
    key_reduce()
def key_get(sleep):
    l2 = a.newlabel("K_g")
    a(f"""s_lshl_b32 s41, s{sF}, 4
    v_add_u32 v10, s41, v3
    s_mov_b32 s{sCNT}, 0
    {l2}:""")
    a(f"""ds_read_b128 v[16:19], v10 offset:{SC_GK}
    s_waitcnt lgkmcnt(0)
    v_min3_u32 v8, v16, v17, v18
    v_min_u32 v8, v8, v19
    v_cmp_eq_u32 vcc, 0, v8""")
    poll_guard(l2, "s_cbranch_vccz", "K_gd", 8, sleep)
    a(f"""v_max3_u32 v8, v16, v17, v18
    v_max_u32 v8, v8, v19
    v_readfirstlane_b32 s{sKEY}, v8
    s_sub_u32 s{sKEY}, s{sKEY}, 1
    s_and_b32 s41, s{sKEY}, 0x7ff
    s_sub_u32 s{sSEL}, 2047, s41""")
a("A_P2:")
TSS(22)
a(f"""s_lshl_b32 s42, s{sL}, 2
v_add_u32 v9, s42, v3""")
lds_inc(9, SC_XNC, 8)
a(f"""s_mul_i32 s41, s{sL}, {KVL}
s_mul_i32 s42, s{sH}, {64*KVS}
s_add_u32 s41, s41, s42
s_add_u32 s41, s41, {WS_KV + 4*KVS}
v_bfe_u32 v14, v0, 3, 2
v_mul_u32_u24 v14, {KVS}, v14
v_and_b32 v15, 7, v0
v_lshl_add_u32 v14, v15, 5, v14
v_lshrrev_b32 v11, 5, v0
v_lshl_add_u32 v14, v11, 4, v14
v_add_u32 v14, s41, v14
v_and_b32 v15, 31, v0
v_min_u32 v12, 17, v15
v_cmp_eq_u32 vcc, 20, v15
v_cndmask_b32 v15, v12, 16, vcc
v_mul_u32_u24 v11, {KVS}, v11
v_lshl_add_u32 v15, v15, 4, v11
s_add_u32 s41, s41, 256
v_add_u32 v15, s41, v15
s_mov_b32 s{sORD}, 0x65432108
s_mov_b32 s{sORD+1}, 0x7
s_lshl_b32 s41, s{sH}, 13
s_cmp_eq_u32 s{sL}, 0
s_cselect_b32 s{sWT}, 4, 15
s_cselect_b32 s42, {WS_FLAG}, 0
s_cselect_b32 s43, 0, {WS_KEY}
s_add_u32 s41, s41, s42
s_add_u32 s41, s41, s43
v_lshl_add_u32 v10, v0, 7, s41
""")
def kv_base(p):
    a(f"""s_xor_b32 s41, s{sX4}, {p}
    s_mul_i32 s41, s41, {8*KVS}
    s_add_u32 s0, s{sWS}, s41
    s_addc_u32 s1, s{sWS+1}, 0""")
def kv_one(p, i):
    if i % 3 == 0:
        k = i // 3
        a(f"global_load_dwordx4 {V(KK+8*p+4*k,4)}, v14, s[0:1] offset:{4*KVS*k-4*KVS} sc1")
    else:
        j = i - 1 - i // 3
        a(f"global_load_dwordx4 {V(VV+16*p+4*j,4)}, v15, s[0:1] offset:{2*KVS*j-4*KVS} sc1")
def kv_pair(p):
    kv_base(p)
    for i in range(6): kv_one(p, i)
def kv_check(p, younger):
    fr = [KK+8*p, KK+8*p+4] + [VV+16*p+4*i for i in range(4)]
    if os.environ.get("P0"):
        a(f"""s_cmp_lg_u32 s{sL}, {os.environ["P0"]}
        s_cbranch_scc1 C_d{p}
        s_memtime s[92:93]
        s_waitcnt lgkmcnt(0)
        s_mov_b32 s{76+2*p}, s92
        s_waitcnt vmcnt({younger})
        s_memtime s[92:93]
        s_waitcnt lgkmcnt(0)
        s_mov_b32 s{77+2*p}, s92
        C_d{p}:""")
    a(f"""s_waitcnt vmcnt({younger})
    C_r{p}:
    v_max3_u32 v12, v{fr[0]}, v{fr[1]}, v{fr[2]}
    v_max3_u32 v13, v{fr[3]}, v{fr[4]}, v{fr[5]}
    v_max_u32 v12, v12, v13
    v_cmp_eq_u32 vcc, -1, v12
    s_cbranch_vccnz C_x{p}
    C_o{p}:
    s_cmp_eq_u32 s3, {p}
    s_cbranch_scc1 C_m{p}
    C_b{p}:""")
def kv_tail(p):
    a(f"""C_x{p}:
    s_add_u32 s{sCNT}, s{sCNT}, 1
    s_cmp_ge_u32 s{sCNT}, {POLLMAX}
    s_cbranch_scc1 C_o{p}""")
    a("s_mov_b64 s[98:99], s[0:1]")
    kv_pair(p)
    a(f"""s_mov_b64 s[0:1], s[98:99]
    s_waitcnt vmcnt(0)
    s_branch C_r{p}
    C_m{p}:
    v_mov_b32 v12, s5
    s_mov_b64 exec, s[6:7]
    s_set_gpr_idx_on s4, gpr_idx(SRC0,DST)
    s_nop 1
    v_and_b32 v{VV+16*p}, v{VV+16*p}, v12
    s_nop 1
    s_set_gpr_idx_off
    s_mov_b64 exec, -1
    s_nop 1
    s_branch C_b{p}""")
DEP = int(os.environ.get('DEP', '3'))
a(f"""s_and_b32 s{sX4}, s{sPB}, {4 if E("ROT", 3) == 3 else 0}
s_lshr_b32 s41, s{sPB}, 3
s_and_b32 s41, s41, {E("ROT", 3)}
s_or_b32 s{sX4}, s{sX4}, s41
{"s_andn2_b32 s%d, 7, s%d" % (sX4, sB) if E("OWNL", 0) else "s_nop 0"}
s_mov_b32 s{sCNT}, 0
s_cmp_lg_u32 s{sL}, 0
s_cbranch_scc1 A_nfl
s_setprio 0
s_waitcnt vmcnt(0) lgkmcnt(0)
s_mul_i32 s{sTAG}, s{sE}, 0x9e3779b1
s_add_u32 s{sTAG}, s{sTAG}, 0x7f4a7c15
s_sleep {E("FS", 0)}
v_cmp_ne_u32 vcc, s{sTAG}, v13
s_cbranch_vccz A_nf2
A_flg:
global_load_dword v8, v10, {P(sWS)} sc1
s_waitcnt vmcnt(0)
v_cmp_ne_u32 vcc, s{sTAG}, v8""")
poll_guard("A_flg", "s_cbranch_vccz", "A_flgd", 1, 2)
a("s_branch A_nf2\nA_nfl:")
a(f"""s_mov_b32 s{sCNT}, 0
A_xw:
ds_read_b32 v12, v9 offset:{SC_XNC}
s_waitcnt lgkmcnt(0)
v_cmp_gt_u32 vcc, 8, v12
s_cbranch_vccz A_xwd
s_sleep 1
s_add_u32 s{sCNT}, s{sCNT}, 1
s_cmp_lt_u32 s{sCNT}, {E("XT", 100000)}
s_cbranch_scc1 A_xw
A_xwd:""")
a(f"global_load_dword v8, v10, {P(sWS)} sc1\nA_nf2:")
TS(3)
for p in range(DEP): kv_pair(p)
TSS(23)
a(f"""s_mov_b32 s3, 15
s_cmp_eq_u32 s{sL}, 0
s_cbranch_scc1 A_go
s_mov_b32 s{sCNT}, 0
s_waitcnt vmcnt({6*DEP})
s_branch A_kc
A_kp:
s_mov_b64 exec, {"vcc" if E("MSK", 1) else "-1"}
global_load_dword v8, v10, {P(sWS)} sc1
s_mov_b64 exec, -1
s_waitcnt vmcnt(0)
A_kc:
v_cmp_eq_u32 vcc, -1, v8""")
poll_guard("A_kp", "s_cbranch_vccz", "A_kpd", 1, E("KR0", 1))
key_reduce()
key_get(0)
if XL:
    a(f"""s_bfe_u32 s41, s{sSEL}, 0x50003
    s_lshl_b32 s41, s41, 6
    s_lshr_b32 s42, s{sSEL}, 8
    s_lshl_b32 s42, s42, 3
    s_or_b32 s41, s41, s42
    s_and_b32 s42, s{sSEL}, 7
    s_or_b32 s101, s41, s42""")
else:
    a(f"s_mov_b32 s101, s{sSEL}")
a(f"""s_bfe_u32 s4, s101, 0x20007
s_lshl_b32 s4, s4, 2
s_bfe_u32 s42, s{sSEL}, 0x20001
s_add_u32 s4, s4, s42
s_bitcmp1_b32 s{sSEL}, 0
s_mov_b32 s5, 0xffff0000
s_cselect_b32 s5, 0xffff, s5
s_bitcmp1_b32 s101, 6
s_cselect_b32 s6, 0, -1
s_cselect_b32 s7, -1, 0
s_lshr_b32 s41, s101, 9
s_bfe_u32 s42, s101, 0x30003
s_xor_b32 s42, s42, s{sX4}
s_cmp_eq_u32 s41, s{sH}
s_cselect_b32 s3, s42, 15
s_xor_b32 s41, s{sSEL}, s{sTOK}
s_lshr_b32 s41, s41, 5
s_cbranch_scc1 A_go
s_lshl_b32 s41, s{sC}, 3
s_sub_u32 s41, s{sSEL}, s41
s_sub_u32 s41, s41, 8
s_bfe_u32 s{sWT}, s41, 0x30002
s_or_b32 s41, s{sWT}, 1
s_max_u32 s41, s41, {E('POS', 4)}
s_xor_b32 s42, s41, s{sWT}
s_mov_b32 s43, 0
s_lshl_b32 s41, s41, 2
s_add_u32 s41, s41, 4
s_lshl_b64 s[44:45], s[42:43], s41
s_xor_b64 {P(sORD)}, {P(sORD)}, s[44:45]
s_lshl_b32 s41, s{sWT}, 2
s_add_u32 s41, s41, 4
s_lshl_b64 s[44:45], s[42:43], s41
s_xor_b64 {P(sORD)}, {P(sORD)}, s[44:45]
A_go:
s_setprio 0
s_lshl_b32 s42, s{sL}, 2
v_add_u32 v9, s42, v3""")
def att_addr():
    a(f"""v_bfe_u32 v1, v0, 3, 2
    v_mul_u32_u24 v1, {QSTR}, v1
    v_and_b32 v2, 7, v0
    v_lshl_add_u32 v1, v2, 5, v1
    v_lshrrev_b32 v2, 5, v0
    v_lshl_add_u32 v1, v2, 4, v1
    v_add_u32 v{vQA}, {L_Q}, v1
    s_lshl_b32 s41, s{sH}, 11
    s_add_u32 s41, s41, {L_SLOT}
    v_lshl_add_u32 v{vOA}, v0, 4, s41
    v_mov_b32 v{vIDX}, 0xdddddddd
    v_and_b32 v0, 31, v0
    s_lshl_b32 s41, s{sH}, 7
    s_add_u32 s41, s41, {L_L}
    v_lshl_add_u32 v0, v0, 2, s41""")
att_addr()
a(f"s_mov_b32 s{sCNT}, 0")
kv_check(0, 6*(DEP-1))
TS(4)
a(f"""s_bfe_u32 s41, s{sORD}, 0x40004
s_and_b32 s43, s41, 4
s_add_u32 s43, s43, 4""")
lds_wait(9, SC_QC, 10, "s43", 0)
a(f"""s_lshl_b32 s2, s{sL}, 2
s_add_u32 s2, s2, {L_SC + SC_QC}
s_mul_i32 s41, s41, {4*QSTR}
v_add_u32 v{Q}, s41, v{vQA}
ds_read_b128 {V(Q,4)}, v{Q}
s_mov_b32 s{sCNT}, 0""")
for i in range(0, 10, 2): a(f"v_mov_b64 {V(ACC+i,2)}, 0")
TS(5)
TC(0)
def smf(vfrag, pb): a(f"v_smfmac_f32_32x32x32_bf16 {V(ACC,16)}, {V(VV+4*vfrag,4)}, {V(pb,8)}, v{vIDX}")
def ex(base, lo, hi):
    for i in range(lo, hi): a(f"v_exp_f32 v{base+i}, v{base+i}")
def flush():
    a(f"""v_lshl_add_u32 v{ACC+10}, s41, 13, v{vOA}
    v_lshl_add_u32 v{ACC+11}, s41, 9, v0
    ds_write_b128 v{ACC+10}, {V(ACC,4)}
    ds_write_b128 v{ACC+10}, {V(ACC+4,4)} offset:1024
    ds_write_b32 v{ACC+11}, v{ACC+8}""")
a(f"""s_waitcnt lgkmcnt(0)
v_mfma_f32_32x32x16_bf16 {V(S0,16)}, {V(KK,4)}, {V(Q,4)}, 0""")
NT = 16
QIN = E("QIN", 0)
def qwait():
    a(f"""v_mov_b32 v14, {L_SC}
    s_lshl_b32 s42, 4, s{sL}""")
    lds_wait(14, SC_QFIX, 15, "s42", 1)
    a(f"s_mov_b32 s{sWT}, 15")
def att_pass(first):
    for kt in range(NT):
        cur, oth = (S0, S1) if kt % 2 == 0 else (S1, S0)
        lp = kt//2 + DEP
        ld = first and lp < 8
        def L(i):
            if ld: kv_one(lp, 3*(kt & 1) + i)
        if ld and kt % 2 == 0: kv_base(lp)
        ex(cur, 0, 2)
        if not (first and kt == 0): smf((2*kt - 1) % (2*NT), oth + 8)
        L(0)
        ex(cur, 2, 5)
        if kt == NT-1: a("s_waitcnt lgkmcnt(0)")
        if first and kt % 2 == 1 and kt < NT-1:
            p = (kt+1)//2
            kv_check(p, (6*(lp - p) - 2) if ld else 6*(7 - p))
        a(f"v_mfma_f32_32x32x16_bf16 {V(oth,16)}, {V(KK+4*((kt+1)%NT),4)}, {V(Q,4)}, 0")
        if first and kt == NT-3:
            a(f"""v_mov_b32 v13, s2
            ds_read_b32 v13, v13""")
        if first and kt == NT-2:
            a(f"""s_waitcnt lgkmcnt(0)
            v_cmp_gt_u32 vcc, 8, v13
            s_cbranch_vccnz A_q8
            A_q8b:""")
        if kt == NT-2:
            a(f"s_bfe_u32 s41, s{sORD}, 0x40008")
            if not first:
                a(f"""s_cmp_lg_u32 s41, s{sWT}
                s_cbranch_scc1 A_qback""") if QIN else a(f"""s_cmp_eq_u32 s41, s{sWT}
                s_cbranch_scc1 A_qwait""")
                if QIN: qwait()
                a("A_qback:")
            a(f"""s_mul_i32 s41, s41, {4*QSTR}
            v_add_u32 v{Q}, s41, v{vQA}
            ds_read_b128 {V(Q,4)}, v{Q}""")
        if kt == 0 and not first:
            a(f"s_and_b32 s41, s{sORD}, 15")
            ex(cur, 5, 12)
            flush()
            a(f"v_mfma_f32_32x32x8_f16 {V(ACC,16)}, {V(ZZ,2)}, {V(ZZ,2)}, 0")
            ex(cur, 12, 15)
            smf(0, cur)
            ex(cur, 15, 16)
        else:
            ex(cur, 5, 8)
            L(1)
            ex(cur, 8, 10)
            smf(2*kt, cur)
            ex(cur, 10, 13)
            L(2)
            ex(cur, 13, 16)
        if ld and lp == 7 and kt % 2 == 1:
            a(f"v_mov_b32 v12, {L_SC}")
            lds_inc(12, SC_KVD, 13)
att_pass(True)
a(f"""v_mov_b64 {V(ZZ,2)}, 0
s_lshr_b64 {P(sORD)}, {P(sORD)}, 4""")
if not os.environ.get('PP'): TS(12)
if TSON:
    a(f"""s_cmp_eq_u32 s{sL}, 0
    s_cselect_b32 s73, s{sCNT}, s73
    s_nop 0""")
if os.environ.get("AL"):
    a(".p2align 6")
    for _ in range(int(os.environ["AL"])): a("s_nop 0")
a("A_pass:")
if os.environ.get("PP"): a("s_memtime s[94:95]")
att_pass(False)
if os.environ.get("PP"):
    a(f"""s_cmp_lg_u32 s{sL}, {os.environ.get("PP")}
    s_cbranch_scc1 A_ppx""")
    for d, q in ((86, 87), (87, 88), (88, 74), (74, 70), (70, 71), (71, 62), (62, 94)): a(f"s_mov_b32 s{d}, s{q}")
    a("A_ppx:")
a(f"""s_lshr_b64 {P(sORD)}, {P(sORD)}, 4
s_cmp_gt_u32 s{sORD}, 15
s_cbranch_scc1 A_pass""")
smf(2*NT-1, S1 + 8)
if not QIN:
    a("s_branch A_fl\nA_qwait:")
    qwait()
    a("s_branch A_qback\nA_fl:")
a(f"s_and_b32 s41, s{sORD}, 15")
flush()
TC(1)
TS(9)
a(f"""A_X:
v_mbcnt_lo_u32_b32 v0, -1, 0
v_mbcnt_hi_u32_b32 v0, -1, v0
s_waitcnt lgkmcnt(0)
s_barrier""")
TS(6)
a(f"""v_mov_b32 v9, {L_SC}
s_barrier
ds_read_b32 v9, v9 offset:{SC_BAD}
s_lshl_b32 s98, s{sH}, 13
s_add_u32 s98, s98, {L_WK1}
s_waitcnt lgkmcnt(0)
v_cmp_ne_u32 vcc, 0, v9
s_cbranch_vccnz A_slow
s_cmp_lg_u32 s{sL}, 0
s_cbranch_scc1 R_P4
v_mov_b64 v[28:29], -1
v_mov_b64 v[30:31], -1
s_lshl_b32 s41, s{sH}, 10
s_add_u32 s41, s41, {L_L}
v_lshl_add_u32 v2, v0, 4, s41
ds_write_b128 v2, v[28:31]""")
a(f"""R_P4:
s_mul_i32 s41, s{sW}, {RS}
s_add_u32 s41, s41, {L_ROW}
v_lshl_add_u32 v3, v0, 5, s41
s_waitcnt lgkmcnt(0)
s_barrier
ds_read_b128 v[8:11], v3
ds_read_b128 v[16:19], v3 offset:{8*RS}
ds_read_b128 v[12:15], v3 offset:16
ds_read_b128 v[20:23], v3 offset:{8*RS+16}
s_mov_b32 s{sF}, s{sL}
s_mov_b32 s{sSLOW}, 0
v_lshlrev_b32 v2, 4, v0
v_add_u32 v2, {L_X2S}, v2
ds_read_b128 {V(WR,4)}, v2 offset:{L_SC + SC_WR - L_X2S}
s_cmp_lg_u32 s{sSEL}, s{sTOK}
s_cbranch_scc1 R_nx
ds_read_b128 {V(XR,4)}, v2
s_waitcnt lgkmcnt(0)
R_nx:""")
a(f"""s_lshl_b32 s41, s{sL}, 2
s_or_b32 s41, s41, s{sW}
s_cmp_ge_u32 s41, 4
s_cbranch_scc1 R_nd""")
wkv_dma(2, 98)
a("R_nd:")
unpack(24, XR)
a("s_waitcnt lgkmcnt(0)")
TS(7)
pkadd(8, 8, 16, 8)
for i in range(8): a(f"v_cvt_pk_bf16_f32 v{8+i}, 0, v{8+i}")
pkadd(8, 8, 24, 8)
pack(X1, 8)
unpack(X_, X1)
ln(X_, D_, T_, XN)
a(f"""v_dot2_f32_bf16 v1, v{XN}, v{WR}, 0
v_dot2_f32_bf16 v1, v{XN+1}, v{WR+1}, v1
v_dot2_f32_bf16 v1, v{XN+2}, v{WR+2}, v1
v_dot2_f32_bf16 v1, v{XN+3}, v{WR+3}, v1""")
dpp_reduce([1])
key_make()
a(f"""s_cmp_lg_u32 s{sL}, 0
s_cbranch_scc1 R_lastl""")
unpack(D_, XN)
pkadd(D_, D_, X_, 8)
pack(XR, D_)
a(f"""s_mov_b32 s{sL}, 1""")
key_pub()
a(f"""s_branch R_P1
R_lastl:""")
key_pub()
a(f"""s_barrier
s_branch R_cand
R_tail:""")
unpack(D_, XN)
unpack(X_, X1)
pkadd(D_, D_, X_, 8)
if os.environ.get("DEG"):
    import struct
    kind, val = os.environ["DEG"].split(",")
    bits = struct.unpack("<I", struct.pack("<f", float(val)))[0]
    if kind == "s":
        for i in range(8): a(f"v_mul_f32 v{D_+i}, {bits}, v{D_+i}")
    else:
        a(f"s_cmp_lg_u32 s{sTOK}, 5\ns_cbranch_scc1 DG_x\ns_mov_b64 exec, 1\nv_add_f32 v{D_}, {bits}, v{D_}\ns_mov_b64 exec, -1\nDG_x:")
pack(XR, D_)
a(f"""s_lshl_b32 s41, s{sTOK}, 10
v_lshl_add_u32 v1, v0, 4, s41
s_cmp_lt_u32 s{sW}, {4 if E("ALATE", 0) else 0}
s_cbranch_scc1 R_noout
s_cmp_lg_u32 s{sCAND}, 0
s_cbranch_scc1 R_noout
global_store_dwordx4 v1, {V(XR,4)}, {P(sOUT)}{OUTF}
R_noout:
s_cmp_ge_u32 s{sW}, 4
s_cbranch_scc1 H_FF2""")
key_poll()
a(f"""s_cmp_eq_u32 s{sCAND}, 0
s_cbranch_scc1 {"R_st" if E("ALATE", 0) else "L_end"}""")
key_get(1)
a(f"""s_cmp_eq_u32 s{sSEL}, s{sTOK}
s_cbranch_scc1 L_end
R_st:
global_store_dwordx4 v1, {V(XR,4)}, {P(sOUT)}{OUTF}
s_branch L_end
""")
for p in range(8): kv_tail(p)
a("A_q8:\nv_mov_b32 v12, s2")
lds_wait(12, 0, 13, 8, 1)
a("s_branch A_q8b")

def qtr_addr():
    a(f"""v_lshrrev_b32 v12, 4, v0
    v_bfe_u32 v13, v0, 2, 2
    v_lshl_add_u32 v1, v12, 3, v13
    v_and_b32 v12, 1, v12
    v_lshl_add_u32 v12, v12, 2, v13
    s_lshl_b32 s41, s{sH}, 1
    v_xor_b32 v12, s41, v12
    v_and_b32 v13, 3, v0
    v_lshl_add_u32 v13, v12, 2, v13
    v_lshlrev_b32 v13, 3, v13
    v_lshl_add_u32 v1, v1, 8, v13""")
def coop(j):
    a(f"s_add_u32 m0, s4, {1024*j}")
    a(f"global_load_lds_dwordx4 v{50 + ((j>>1)&1)}, s[0:1]")
    a("s_add_u32 s0, s0, 4096\ns_addc_u32 s1, s1, 0")
a(f"""H_stage:
v_lshrrev_b32 v48, 2, v0
v_and_b32 v49, 3, v0
v_lshlrev_b32 v49, 4, v49
v_lshl_add_u32 v48, v48, 10, v49
s_lshl_b32 s41, s{sH}, 6
s_lshl_b32 s42, s{sC}, 8
s_add_u32 s41, s41, s42
v_add_u32 v48, s41, v48
s_lshl_b32 s5, s{sH}, 12
s_add_u32 s5, s5, {6*8192}""")
for q in range(4):
    a(f"""s_add_u32 s0, s{sWQ}, {32768*14 + 16384*q}
    s_addc_u32 s1, s{sWQ+1}, 0
    s_add_u32 m0, s5, {1024*q}
    global_load_lds_dwordx4 v48, s[0:1]""")
a(f"""v_lshrrev_b32 v49, 4, v0
v_lshlrev_b32 v50, 1, v49
v_xor_b32 v50, v50, v0
v_and_b32 v50, 15, v50
v_lshlrev_b32 v50, 4, v50
v_lshl_add_u32 v50, v49, 10, v50
v_add_u32 v50, s42, v50
v_xor_b32 v51, 128, v50
s_lshl_b32 s41, s{sH}, 1
s_add_u32 s41, s41, 8
s_lshl_b32 s4, s41, 13
s_lshl_b32 s41, s41, 15
s_add_u32 s0, s{sWQ}, s41
s_addc_u32 s1, s{sWQ+1}, 0
s_cmp_eq_u32 s{sH}, 3
s_cbranch_scc1 H_c3""")
for j in range(16): coop(j)
a(f"""s_branch H_c4
H_c3:
s_setprio 3
s_lshl_b32 s41, s{sPB}, 7
s_add_u32 s41, s41, {WS_FLAG}
v_mov_b32 v1, s41
v_mov_b32 v3, {L_SC}
s_waitcnt lgkmcnt(0)
s_mul_i32 s{sTAG}, s{sE}, 0x9e3779b1
s_add_u32 s{sTAG}, s{sTAG}, 0x7f4a7c15
v_mov_b32 v2, s{sTAG}
s_waitcnt vmcnt(0)
s_mov_b64 exec, 1
global_store_dword v1, v2, {P(sWS)} sc1
s_mov_b64 exec, -1""")
a("s_setprio 1\nH_c4:")
a(f"""v_lshrrev_b32 v12, 4, v0
v_bfe_u32 v13, v0, 2, 2
v_lshl_add_u32 v1, v12, 3, v13
v_and_b32 v13, 3, v0
v_lshlrev_b32 v13, 3, v13
v_lshl_add_u32 v1, v1, 6, v13
v_add_u32 v1, s5, v1
v_mov_b32 v3, {L_SC}
s_waitcnt lgkmcnt(0)
s_mul_i32 s{sTAG}, s{sE}, 0x9e3779b1
s_add_u32 s{sTAG}, s{sTAG}, 0x7f4a7c15""")
TSS(18)
a("s_waitcnt vmcnt(16)")
for k in range(2):
    for f in range(2):
        for hf in range(2): a(f"ds_read_b64_tr_b16 {V(WQR+48+8*k+4*f+2*hf,2)}, v1 offset:{k*2048 + 256*hf + 32*f}")
lds_inc(3, SC_C2, 8)
a(f"""s_cmp_eq_u32 s{sH}, 3
s_cbranch_scc1 H_c5
s_lshl_b32 s4, s{sH}, 14
s_lshl_b32 s41, s{sH}, 16
s_add_u32 s0, s{sWQ}, s41
s_addc_u32 s1, s{sWQ+1}, 0""")
for j in range(16): coop(j)
a("H_c5:")
TSS(19)
lds_wait(3, SC_C2, 8, 4, 0)
a(f"""s_lshl_b32 s41, s{sH}, 14
s_add_u32 s41, s41, {6*32768}
s_add_u32 s0, s{sWQ}, s41
s_addc_u32 s1, s{sWQ+1}, 0
s_mov_b32 s4, s5""")
for j in range(4): coop(j)
a(f"s_add_u32 s44, s{sH}, 16")
pos2tok(41, 44)
a(f"""s_lshl_b32 s41, s41, 10
s_add_u32 s41, s41, 2048
v_lshl_add_u32 v1, v0, 4, s41
global_load_dwordx4 {V(FOR,4)}, v1, {P(sX)} offset:-2048
global_load_dwordx4 {V(FOR+4,4)}, v1, {P(sX)} offset:2048
s_cmp_lg_u32 s{sW}, 6
s_cbranch_scc1 H_st0
v_lshlrev_b32 v1, 4, v0
v_add_u32 v1, {L_SC + SC_WR}, v1
ds_write_b128 v1, v[44:47]
H_st0:
s_cmp_eq_u32 s{sW}, 7
s_cbranch_scc1 H_fin
s_waitcnt vmcnt(2)""")
TSA(4)
a("s_setprio 2\ns_branch H_P2")
a(f"""H_gather:
v_xor_b32 v12, s{sH}, v0
v_xor_b32 v13, 4, v12
v_xor_b32 v14, 8, v12
v_xor_b32 v15, 12, v12
s_lshl_b32 s41, s{sH}, 10
s_add_u32 s41, s41, {L_XN}
v_lshl_add_u32 v12, v12, 4, s41
v_lshl_add_u32 v13, v13, 4, s41
v_lshl_add_u32 v14, v14, 4, s41
v_lshl_add_u32 v15, v15, 4, s41
s_mov_b32 s{sCNT}, 0
s_sleep {E('GS', 8)}
H_xg:""")
gloads(8)
a(f"""s_waitcnt vmcnt(0)
v_max3_u32 v16, v40, v44, v48
v_max3_u32 v17, v52, v56, v60
v_max_u32 v16, v16, v17
v_cmp_eq_u32 vcc, -1, v16""")
poll_guard("H_xg", "s_cbranch_vccz", "H_xgd", 1, E("GR", 0))
for i in range(6): a(f"ds_write_b128 v{12+(i&3)}, {V(40+4*i,4)} offset:{4096*i}")
a(f"""H_P2:
s_lshl_b32 s42, s{sL}, 2
s_add_u32 s42, s42, {L_SC}
v_mov_b32 v3, s42""")
lds_inc(3, SC_XNC, 12)
a(f"""v_and_b32 v1, 15, v0
v_lshrrev_b32 v2, 4, v0
v_xor_b32 v8, v2, v1
v_lshlrev_b32 v1, 10, v1
v_add_u32 v1, {L_XN}, v1
v_xor_b32 v9, 4, v8
v_xor_b32 v10, 8, v8
v_xor_b32 v11, 12, v8
v_lshl_add_u32 v8, v8, 4, v1
v_lshl_add_u32 v9, v9, 4, v1
v_lshl_add_u32 v10, v10, 4, v1
v_lshl_add_u32 v11, v11, 4, v1
v_and_b32 v2, 15, v0
v_mul_u32_u24 v2, {QSTR}, v2
v_lshrrev_b32 v12, 4, v0
v_lshl_add_u32 v2, v12, 3, v2
s_lshl_b32 s41, s{sH}, 6
s_add_u32 s41, s41, {L_Q}
v_add_u32 v2, s41, v2
s_mov_b32 s{sQM}, 0""")
qtr_addr()
lds_wait(3, SC_XNC, 12, 8, 0)
TS(3)
a(f"""s_cmp_lg_u32 s{sL}, 0
s_cbranch_scc1 H_qp
v_add_u32 v12, 0x10000, v1
v_xor_b32 v13, 32, v12""")
for k in range(6):
    for f in range(2):
        for hf in range(2): a(f"ds_read_b64_tr_b16 {V(WQR+8*k+4*f+2*hf,2)}, v{12+f} offset:{k*8192 + 1024*hf}")
    if k in (2, 4): a("s_waitcnt lgkmcnt(4)")
a("s_waitcnt lgkmcnt(4)\nH_qp:")
order = [14, 0, 15, 1, 8, 2, 9, 3, 10, 4, 11, 5, 12, 6, 13, 7]
def qbuf(idx): return (20 + 12*((idx//2) % 3)) if order[idx] < 8 else (56 + 4*((idx//2) % 2))
def qread(idx):
    s = order[idx]; b = qbuf(idx)
    a(f"ds_read_b128 {V(b,4)}, v{8+(s&3)} offset:{256*(s>>2)}")
    if s < 8:
        for hf in range(2): a(f"ds_read_b64_tr_b16 {V(b+4+2*hf,2)}, v1 offset:{8192*s + 1024*hf}")
        a(f"v_xor_b32 v{b+10}, 32, v1")
        for hf in range(2): a(f"ds_read_b64_tr_b16 {V(b+8+2*hf,2)}, v{b+10} offset:{8192*s + 1024*hf}")
qcnt = lambda i: 5 if order[i] < 8 else 1
AH = 3
for i in range(AH): qread(i)
for idx in range(16):
    if idx + AH < 16: qread(idx+AH)
    a(f"s_waitcnt lgkmcnt({sum(qcnt(j) for j in range(idx+1, min(idx+AH+1, 16)))})")
    s = order[idx]; b = qbuf(idx)
    for f in range(2):
        A_ = V(b+4+4*f,4) if s < 8 else V(WQR+8*(s-8)+4*f,4)
        d = V(12+4*f,4)
        a(f"v_mfma_f32_16x16x32_bf16 {d}, {A_}, {V(b,4)}, {'0' if idx==0 else d}")
a(f"""s_setprio 2
s_mov_b32 s42, {QSCALE}""")
for i in range(4): a(f"v_add_u32 v{8+i}, 0x4000, v{8+i}")
for i in range(0, 8, 2): a(f"v_pk_mul_f32 {V(12+i,2)}, {V(12+i,2)}, s[42:43] op_sel_hi:[1,0]")
pack(20, 12, 4)
a(f"""ds_write_b64 v2, v[20:21]
ds_write_b64 v2, v[22:23] offset:32""")
lds_inc(3, SC_QC, 12)
a(f"""s_cmp_eq_u32 s{sQM}, 2
s_cbranch_scc1 H_fx3
s_cmp_eq_u32 s{sQM}, 1
s_cbranch_scc1 H_qd""")
TS(2)
a(f"""v_add_u32 v2, {16*QSTR}, v2
s_mov_b32 s{sQM}, 1
s_cmp_lg_u32 s{sL}, 0
s_cbranch_scc1 H_q2
s_setprio {HLNP}
s_mov_b32 s44, 0
s_mov_b32 s45, 2
s_add_u32 s3, s{sH}, 16
s_waitcnt vmcnt(0)
s_branch S_fl
H_ret:""")
lds_inc(3, SC_XN2, 12)
lds_wait(3, SC_XN2, 12, 4, 1)
a(f"""H_q2:
s_setprio 0
s_branch H_qp
H_qd:""")
a(f"""s_cmp_eq_u32 s{sL}, 0
s_cbranch_scc1 H_prep
v_mov_b32 v3, {L_SC}
s_branch H_FFN
H_prep:""")
lds_wait(3, SC_KVD, 12, 4, 4)
a(f"""s_min_u32 s43, s{sB}, 223
s_lshl_b32 s43, s43, 2
s_add_u32 s43, s43, s{sH}
s_and_b32 s44, s43, 31
s_lshr_b32 s45, s43, 5
v_lshrrev_b32 v2, 3, v0
v_and_b32 v3, 7, v0
s_mul_i32 s41, s44, {8*7168}
s_lshl_b32 s42, s45, 7
s_add_u32 s41, s41, s42
v_mul_u32_u24 v1, 7168, v2
v_lshl_add_u32 v1, v3, 4, v1
v_add_u32 v1, s41, v1
global_load_dwordx4 {V(GU,4)}, v1, {P(sWG)}
global_load_dwordx4 {V(GU+4,4)}, v1, {P(sWG)} offset:3584
global_load_dwordx4 {V(GU+8,4)}, v1, {P(sWU)}
global_load_dwordx4 {V(GU+12,4)}, v1, {P(sWU)} offset:3584
s_lshl_b32 s41, s45, 16
s_lshl_b32 s42, s44, 5
s_add_u32 s41, s41, s42
s_add_u32 s41, s41, 4096
v_lshlrev_b32 v1, 13, v2
v_lshl_add_u32 v1, v3, 2, v1
v_add_u32 v1, s41, v1""")
for r in range(8): a(f"global_load_dword v{WDn + 4*(r&1) + (r>>1)}, v1, {P(sWD)} offset:{1024*r-4096}")
a(f"""v_lshrrev_b32 v9, 4, v0
v_lshlrev_b32 v8, 1, v9
v_xor_b32 v8, v8, v0
v_and_b32 v8, 15, v8
v_lshlrev_b32 v8, 4, v8
v_lshl_add_u32 v8, v9, 10, v8
v_bfe_u32 v10, v0, 2, 2
v_lshl_add_u32 v16, v9, 3, v10
v_and_b32 v9, 1, v9
v_lshl_add_u32 v9, v9, 2, v10
v_and_b32 v10, 3, v0
v_lshl_add_u32 v10, v9, 2, v10
v_lshlrev_b32 v10, 3, v10
v_lshl_add_u32 v16, v16, 8, v10
v_xor_b32 v9, 128, v8
s_lshl_b32 s4, s{sH}, 13
s_add_u32 s4, s4, {L_SLOT + 32768}
v_add_u32 v16, s4, v16
s_lshl_b32 s41, s{sC}, 17
s_lshl_b32 s42, s{sH}, 8
s_add_u32 s41, s41, s42
s_add_u32 s0, s{sWO}, s41
s_addc_u32 s1, s{sWO+1}, 0""")
for f in range(1, 8): a(f"v_xor_b32 v{16+f}, {32*f}, v16")
for s in range(4):
    for j in range(8):
        a(f"""s_add_u32 m0, s4, {1024*j}
        global_load_lds_dwordx4 v{8 + ((j>>1)&1)}, s[0:1]
        s_add_u32 s0, s0, 4096
        s_addc_u32 s1, s1, 0""")
    a("s_waitcnt vmcnt(0)")
    for f in range(8):
        for hf in range(2): a(f"ds_read_b64_tr_b16 {V(WO+32*s+4*f+2*hf,2)}, v{16+f} offset:{1024*hf}")
        if f == 5: a("s_waitcnt lgkmcnt(4)")
    a("s_waitcnt lgkmcnt(0)")
a(f"v_mov_b32 v1, {L_SC}")
lds_inc(1, SC_QFIX, 8)
a(f"""v_mov_b64 v[8:9], -1
v_mov_b64 v[10:11], -1
s_lshl_b32 s41, s{sB}, 13
s_lshl_b32 s42, s{sH}, 11
s_add_u32 s41, s41, s42
s_add_u32 s41, s41, {WS_XN}
v_lshl_add_u32 v1, v0, 4, s41
global_store_dwordx4 v1, v[8:11], {P(sWS)} sc1
global_store_dwordx4 v1, v[8:11], {P(sWS)} offset:1024 sc1
s_lshr_b32 s41, s{sH}, 1
s_lshl_b32 s41, s41, 19
s_and_b32 s42, s{sH}, 1
s_lshl_b32 s42, s42, 10
s_add_u32 s41, s41, s42
s_lshl_b32 s42, s{sB}, 11
s_add_u32 s41, s41, s42
s_add_u32 s41, s41, {WS_CAND}
v_lshl_add_u32 v1, v0, 4, s41
global_store_dwordx4 v1, v[8:11], {P(sWS)} sc1
s_cmp_ge_u32 s{sB}, 224
s_cbranch_scc1 H_bursts
s_setprio {E('FP', 0)}""")
for base in (GU, GU+8, WDn):
    for i in range(4): tr_pair(base+i, base+4+i, 12)
a(f"""s_setprio 2
v_lshlrev_b32 v2, 4, v2
v_lshl_add_u32 v2, v3, 15, v2
s_lshl_b32 s41, s45, 18
s_lshr_b32 s42, s44, 3
s_lshl_b32 s42, s42, 13
s_add_u32 s41, s41, s42
s_and_b32 s42, s44, 7
s_lshl_b32 s42, s42, 7
s_add_u32 s41, s41, s42
s_add_u32 s41, s41, {WS_FS}
v_add_u32 v1, s41, v2""")
for i in range(4): a(f"global_store_dwordx4 v1, {V(GU+4*i,4)}, {P(sWS)} offset:{1024*i} sc1")
a(f"""s_lshl_b32 s41, s44, 18
s_lshr_b32 s42, s45, 3
s_lshl_b32 s42, s42, 13
s_add_u32 s41, s41, s42
s_and_b32 s42, s45, 7
s_lshl_b32 s42, s42, 7
s_add_u32 s41, s41, s42
s_add_u32 s41, s41, {WS_FS + 4096}
v_add_u32 v1, s41, v2""")
for i in range(2): a(f"global_store_dwordx4 v1, {V(WDn+4*i,4)}, {P(sWS)} offset:{1024*i} sc1")
a("H_bursts:")
TS(5)
OF, AC = 8, 32
sSB, sLB = 44, 45
a(f"""s_lshr_b32 s41, s{sH}, 1
s_and_b32 s42, s{sH}, 1
s_lshl_b32 s{sSB}, s41, 13
s_lshl_b32 s43, s42, 10
s_add_u32 s{sSB}, s{sSB}, s43
s_add_u32 s{sSB}, s{sSB}, {L_SLOT}
s_lshl_b32 s{sLB}, s41, 9
s_add_u32 s{sLB}, s{sLB}, {L_L}
v_bfe_u32 v3, v0, 3, 2
v_mul_u32_u24 v3, {QSTR}, v3
v_and_b32 v8, 7, v0
v_lshl_add_u32 v3, v8, 5, v3
s_mul_i32 s43, s41, {4*QSTR}
s_add_u32 s43, s43, {L_O}
v_add_u32 v3, s43, v3
v_and_b32 v2, 15, v0
v_mul_u32_u24 v2, {QSTR}, v2
v_lshrrev_b32 v8, 4, v0
v_lshl_add_u32 v2, v8, 4, v2
v_add_u32 v2, {L_O}, v2
s_mul_i32 s{sOPB}, s{sL}, {OPL}
s_mov_b32 s98, 0x00ff00ff
s_mov_b32 s99, 0x00ff00ff
s_mul_i32 s41, s{sH}, 12288
s_add_u32 s{sOPB}, s{sOPB}, s41
s_add_u32 s{sOPB}, s{sOPB}, {WS_OP}
s_add_u32 s{sOTAG}, s{sTAG}, s{sL}
s_add_u32 s{sOTAG}, s{sOTAG}, 1""")
def corr(g):
    l0 = a.newlabel("H_c0"); l1 = a.newlabel("H_c1")
    a(f"""s_andn2_b32 s41, s{sL}, s{sSLOW}
    s_cbranch_scc0 {l0}
    v_lshrrev_b32 v28, 5, v0
    s_lshl_b32 s41, s{sH}, 5
    s_add_u32 s41, s41, {L_VS}
    v_lshl_add_u32 v28, v28, 4, s41
    ds_read_b128 v[8:11], v3 offset:{L_Q - L_O + 8*QSTR*g}
    ds_read_b128 v[12:15], v3 offset:{L_Q - L_O + 8*QSTR*g + 16}
    ds_read_b128 v[28:31], v28
    s_waitcnt lgkmcnt(1)
    v_dot2_f32_bf16 v1, v8, s{sKSL[0]}, 0""")
    for i in range(1, 8): a(f"v_dot2_f32_bf16 v1, v{8+i}, s{sKSL[i]}, v1")
    a(f"""v_exp_f32 v1, v1
    s_waitcnt lgkmcnt(0)
    v_and_b32 v1, 0xffff0000, v1
    v_pk_mul_f32 v[28:29], v[28:29], v[0:1] op_sel:[0,1] op_sel_hi:[1,1]
    v_pk_mul_f32 v[30:31], v[30:31], v[0:1] op_sel:[0,1] op_sel_hi:[1,1]
    s_branch {l1}
    {l0}:
    v_mov_b32 v1, 0
    v_mov_b64 v[28:29], 0
    v_mov_b64 v[30:31], 0
    {l1}:""")
def norm_pre(g):
    a(f"""v_and_b32 v10, 31, v0
    s_add_u32 s41, s{sLB}, {1024*g}
    v_lshl_add_u32 v10, v10, 2, s41
    v_lshl_add_u32 v24, v0, 4, s{sSB}""")
def normalize(g, sleep):
    if sleep:
        lb = a.newlabel("H_lw")
        a(f"""v_lshl_add_u32 v13, v0, 3, s{sLB}
        s_mov_b32 s{sCNT}, 0
        {lb}:
        ds_read_b32 v8, v13 offset:{1024*g}
        s_waitcnt lgkmcnt(0)
        v_cmp_eq_u32 vcc, -1, v8""")
        poll_guard(lb, "s_cbranch_vccz", "H_lwd", 4, sleep)
    a(f"""ds_read2_b32 v[8:9], v10 offset0:0 offset1:32
    ds_read2_b32 v[10:11], v10 offset0:64 offset1:96""")
    for w in range(4): a(f"ds_read_b128 {V(12+4*w,4)}, v24 offset:{16384*g + 2048*w}")
    a(f"""s_waitcnt lgkmcnt(4)
    v_pk_add_f32 v[8:9], v[8:9], v[10:11]
    v_add_f32 v8, v8, v9
    v_add_f32 v8, v8, v1
    v_rcp_f32 v9, v8
    s_waitcnt lgkmcnt(2)""")
    pkadd(12, 12, 16, 4)
    pkadd(12, 12, 28, 4)
    a(f"""v_lshrrev_b32 v11, 5, v0
    s_and_b32 s41, s{sH}, 1
    s_lshl_b32 s41, s41, 4
    v_lshl_add_u32 v11, v11, 3, v3
    s_waitcnt lgkmcnt(0)""")
    pkadd(20, 20, 24, 4)
    a("v_add_u32 v11, s41, v11")
    pkadd(12, 12, 20, 4)
    lb = a.newlabel("H_nb")
    a(f"""v_pk_mul_f32 v[12:13], v[12:13], v[8:9] op_sel:[0,1] op_sel_hi:[1,1]
    v_pk_mul_f32 v[14:15], v[14:15], v[8:9] op_sel:[0,1] op_sel_hi:[1,1]
    v_cvt_pk_bf16_f32 v16, v12, v13
    v_cvt_pk_bf16_f32 v17, v14, v15
    ds_write_b64 v11, v[16:17] offset:{8*QSTR*g}
    v_pk_add_f32 v[12:13], v[12:13], v[14:15]
    v_add_f32 v12, v12, v13
    v_fma_f32 v8, v12, 0, v8
    v_subrev_u32 v8, {(127-80)<<23}, v8
    v_cmp_lt_u32 vcc, {(0 if (FORCE>>g)&1 else (180<<23))}, v8
    s_cbranch_vccz {lb}
    s_cmp_lg_u32 s{sSLOW}, 0
    s_cbranch_scc1 {lb}
    v_mov_b32 v8, {L_SC}
    v_mov_b32 v9, 1
    ds_write_b32 v8, v9 offset:{SC_BAD}
    {lb}:""")
def hsync(idx, bad=True):
    lb = a.newlabel("H_hs")
    a(f"""s_lshl_b32 s41, s{sL}, 4
    s_add_u32 s41, s41, {L_SC}
    v_mov_b32 v8, s41
    v_mov_b32 v11, {L_SC}""")
    lds_inc(8, SC_OCNT + 4*idx, 9)
    lds_wait(8, SC_OCNT + 4*idx, 9, 4, 3)
    if bad:
        a(f"""ds_read_b32 v9, v11 offset:{SC_BAD}
        s_waitcnt lgkmcnt(0)
        v_cmp_ne_u32 vcc, 0, v9
        s_cbranch_vccnz H_toX""")
def oproj(first):
    if first: a("s_setprio 0")
    for s in range(4):
        a(f"s_waitcnt lgkmcnt({3-s})")
        for f in range(8):
            a(f"v_mfma_f32_16x16x32_bf16 {V(AC+4*f,4)}, {V(OF+4*s,4)}, {V(WO+32*s+4*f,4)}, {'0' if (s==0 and first) else V(AC+4*f,4)}")
def osend(bi):
    if bi == 0 or B1P0: a("s_setprio 0")
    a("s_waitcnt lgkmcnt(0)")
    def st(f):
        if bi == 1: a("s_mov_b64 exec, s[98:99]")
        a(f"global_store_dwordx4 v24, {V(AC+4*f,4)}, {P(sWS)} offset:{(1024*f - 4096) if bi == 0 else (1024*(f&3) + 128*(f>>2))} sc1")
        if bi == 1: a("s_mov_b64 exec, -1")
    for f in range(8):
        for s in range(4):
            a(f"v_mfma_f32_16x16x32_bf16 {V(AC+4*f,4)}, {V(WO+32*s+4*f,4)}, {V(OF+4*s,4)}, {'0' if s==0 else V(AC+4*f,4)}")
        if f >= 2: st(f-2)
    st(6); st(7)
    if bi == 0 or B1P0: a("s_setprio 2")
def flag_poll(vaddr, sleep):
    lp = a.newlabel("H_fp")
    a(f"""s_mov_b32 s{sCNT}, 0
    {lp}:""")
    a(f"""global_load_dword v8, v{vaddr}, {P(sWS)} sc1
    s_waitcnt vmcnt(0)
    v_cmp_ne_u32 vcc, s{sOTAG}, v8""")
    poll_guard(lp, "s_cbranch_vccz", "H_fpd", 1, sleep)
def dstbase(sd, g, off):
    a(f"""s_add_u32 s{sd}, s{sC}, {1 + g}
    s_and_b32 s{sd}, s{sd}, 3
    s_andn2_b32 s43, s{sB}, 3
    s_add_u32 s{sd}, s{sd}, s43
    s_mul_i32 s{sd}, s{sd}, 49152
    s_add_u32 s{sd}, s{sd}, s{sOPB}
    s_add_u32 s{sd}, s{sd}, {off}""")
def send_addr(bi):
    if bi == 0:
        dstbase(41, 0, 4096); dstbase(42, 1, 4096)
        a(f"""v_lshl_add_u32 v24, v0, 4, s42
        s_mov_b64 exec, s[98:99]
        v_lshl_add_u32 v24, v0, 4, s41
        s_mov_b64 exec, -1""")
    else:
        dstbase(41, 2, 8192)
        a("v_lshl_add_u32 v24, v0, 4, s41")
send_addr(1)
a(f"""v_mov_b64 v[8:9], -1
v_mov_b64 v[10:11], -1""")
for f in range(4): a(f"global_store_dwordx4 v24, v[8:11], {P(sWS)} offset:{1024*f} sc1")
if E("NP", 0): a("s_setprio 0")
corr(0); norm_pre(0); normalize(0, 16); corr(1); norm_pre(1)
if E("NP", 0): a("s_setprio 2")
normalize(1, 8)
hsync(0)
for s_ in range(4): a(f"ds_read_b128 {V(OF+4*s_,4)}, v2 offset:{64*s_}")
send_addr(0)
a(f"""s_add_u32 s41, s{sC}, 1
v_add_u32 v25, s41, v0
v_and_b32 v25, 3, v25
v_lshlrev_b32 v25, 11, v25
v_lshl_add_u32 v25, v0, 9, v25
s_lshl_b32 s41, s43, 11
s_lshl_b32 s42, s{sH}, 7
s_add_u32 s41, s41, s42
s_add_u32 s41, s41, {WS_OPF}
v_add_u32 v25, s41, v25
v_mov_b32 v27, s{sOTAG}""")
osend(0)
a(f"""s_waitcnt vmcnt(0)
s_mov_b64 exec, 7
global_store_dword v25, v27, {P(sWS)} sc1
s_mov_b64 exec, -1""")
TS(6)
def recv01(nonblock=False):
    a(f"""s_mul_i32 s41, s{sB}, 49152
    s_add_u32 s41, s41, s{sOPB}
    v_lshl_add_u32 v24, v0, 4, s41
    v_add_u32 v26, 4096, v24
    s_lshl_b32 s41, s{sB}, 11
    s_lshl_b32 s42, s{sH}, 7
    s_add_u32 s41, s41, s42
    s_add_u32 s41, s41, {WS_OPF}
    v_min_u32 v25, 2, v0
    v_lshl_add_u32 v25, v25, 9, s41""")
    if nonblock:
        a(f"""v_lshlrev_b32 v13, 4, v0
        v_add_u32 v13, {L_L + 2048}, v13
        s_mov_b32 s{sCNT}, 0
        H_nbp:
        ds_read_b32 v8, v13
        s_waitcnt lgkmcnt(0)
        v_cmp_eq_u32 vcc, -1, v8
        s_cbranch_vccz H_b1
        s_add_u32 s{sCNT}, s{sCNT}, 1
        s_cmp_ge_u32 s{sCNT}, {POLLMAX}
        s_cbranch_scc1 H_b1
        s_sleep 4
        global_load_dword v8, v25, {P(sWS)} sc1
        s_waitcnt vmcnt(0)
        v_cmp_ne_u32 vcc, s{sOTAG}, v8
        s_cbranch_vccnz H_nbp""")
    else:
        flag_poll(25, 2)
    if nonblock:
        a(f"""s_lshl_b32 s41, s{sH}, 13
        s_add_u32 s41, s41, {L_SLOT}""")
        for f in range(8):
            if f % 4 == 0: a(f"s_add_u32 m0, s41, {1024*f}")
            a(f"global_load_lds_dwordx4 v{24 + 2*(f>>2)}, {P(sWS)} offset:{1024*(f&3)} sc1")
    else:
        for f in range(8): a(f"global_load_dwordx4 {V(AC+4*f,4)}, v26, {P(sWS)} offset:{1024*f - 4096} sc1")
a(f"s_mov_b32 s{sCAND}, 0")
recv01(True)
a(f"s_mov_b32 s{sCAND}, 1\nH_b1:")
corr(2); norm_pre(2); normalize(2, 4)
hsync(1)
for s_ in range(4): a(f"ds_read_b128 {V(OF+4*s_,4)}, v2 offset:{64*s_ + 16*QSTR}")
send_addr(1)
osend(1)
TS(9)
a(f"""s_cmp_lg_u32 s{sCAND}, 0
s_cbranch_scc1 H_r2""")
recv01()
a(f"""H_r2:
s_mul_i32 s41, s{sB}, 49152
s_add_u32 s41, s41, s{sOPB}
s_add_u32 s41, s41, 8192
v_lshl_add_u32 v26, v0, 4, s41
s_cmp_lg_u32 s{sL}, 0
s_cbranch_scc1 H_npf
s_lshl_b32 s41, s{sH}, 12
v_lshl_add_u32 v8, v0, 6, s41
global_load_dword v28, v8, {P(sWK)}
global_load_dword v29, v8, {P(sWV)}
H_npf:
s_mov_b32 s{sCNT}, 0
s_sleep {E("PS", 24)}
H_p2:""")
for f in range(4): a(f"global_load_dwordx4 {V(8+4*f,4)}, v26, {P(sWS)} offset:{1024*f} sc1")
a(f"""s_waitcnt vmcnt(0)
v_max3_u32 v24, v8, v12, v16
v_max_u32 v24, v24, v20
v_cmp_eq_u32 vcc, -1, v24""")
poll_guard("H_p2", "s_cbranch_vccz", "H_p2d", 1, 4)
a(f"""s_cmp_eq_u32 s{sCAND}, 0
s_cbranch_scc1 H_r3
s_lshl_b32 s41, s{sH}, 13
s_add_u32 s41, s41, {L_SLOT}
v_lshl_add_u32 v24, v0, 4, s41""")
for f in range(8): a(f"ds_read_b128 {V(AC+4*f,4)}, v24 offset:{1024*f}")
a("s_waitcnt lgkmcnt(0)\nH_r3:\ns_mov_b64 exec, s[98:99]")
pkadd(AC, AC, 8, 16)
a("s_not_b64 exec, s[98:99]")
pkadd(AC+16, AC+16, 8, 16)
a("s_mov_b64 exec, -1")
a(f"""s_cmp_lg_u32 s{sL}, 0
s_cbranch_scc1 H_nwf
""")
for g in range(3):
    a(f"s_add_u32 s6, s{sH}, {8*g}")
    pos2tok(41, 6)
    a(f"""s_lshl_b32 s41, s41, 10
    s_add_u32 s{3+g}, s41, {WS_XN + 2048}""")
a("H_nwf:")
TS(10)
a(f"""v_and_b32 v8, 8, v0
v_cmp_eq_u32 vcc, 0, v8
v_lshrrev_b32 v8, 4, v0
v_lshlrev_b32 v8, 4, v8
v_add_u32 v8, {L_SC + SC_ZERO - 24*QSTR}, v8
v_cndmask_b32 v2, v8, v2, vcc""")
corr(3)
norm_pre(3)
a("s_barrier")
normalize(3, 0)
a(f"""v_mov_b32 v24, {L_SC}
s_waitcnt lgkmcnt(0)
s_barrier
ds_read_b32 v24, v24 offset:{SC_BAD}""")
for s_ in range(4): a(f"ds_read_b128 {V(OF+4*s_,4)}, v2 offset:{64*s_ + 24*QSTR}")
a(f"""v_lshrrev_b32 v26, 4, v0
v_and_b32 v25, 15, v0
v_mul_u32_u24 v25, {RS}, v25
v_lshl_add_u32 v25, v26, 4, v25
s_lshl_b32 s41, s{sH}, 9
s_add_u32 s41, s41, {L_ROW}
v_add_u32 v1, s41, v25
s_waitcnt lgkmcnt(4)
v_cmp_ne_u32 vcc, 0, v24
s_cbranch_vccnz H_slow""")
def fm(f, s_): a(f"v_mfma_f32_16x16x32_bf16 {V(AC+4*f,4)}, {V(WO+32*s_+4*f,4)}, {V(OF+4*s_,4)}, {V(AC+4*f,4)}")
for s_ in range(4):
    a(f"s_waitcnt lgkmcnt({3-s_})")
    fm(0, s_); fm(1, s_)
for f in range(2, 8):
    for s_ in range(4): fm(f, s_)
    if f >= 3: a(f"ds_write_b128 v1, {V(AC+4*(f-3),4)} offset:{64*(f-3)}")
for f in (5, 6, 7): a(f"ds_write_b128 v1, {V(AC+4*f,4)} offset:{64*f}")
a("s_setprio 0\ns_branch R_P4")
a("H_FF2:")
for i in range(0, 24, 2): a(f"v_mov_b64 {V(GU+i,2)}, {V(64+i,2)}")
a(f"""H_FFN:
v_lshrrev_b32 v20, 4, v0
s_lshl_b32 s41, s{sH}, 6
s_add_u32 s41, s41, {L_SC + SC_FACC}
v_lshl_add_u32 v20, v20, 4, s41
v_and_b32 v22, 1, v0
v_bfe_u32 v21, v0, 1, 2
v_lshlrev_b32 v21, 2, v21
v_lshl_add_u32 v21, v22, 4, v21
v_add_u32 v21, {L_SC + SC_FACC}, v21
s_lshl_b32 s41, s{sJ}, 7
s_lshl_b32 s42, s{sF}, 15
s_add_u32 s41, s41, s42
s_add_u32 s41, s41, {WS_HY}
v_lshl_add_u32 v22, v0, 1, s41
v_mov_b32 v23, 1
v_lshrrev_b32 v24, 5, v0
s_lshl_b32 s41, s{sH}, 3
s_add_u32 s41, s41, {L_SC + SC_DACC}
v_lshl_add_u32 v24, v24, 2, s41""")
key_get(E("KG", 0))
a(f"""s_cmp_lg_u32 s{sF}, 0
s_cbranch_scc1 H_nl""")
ffn_loads()
a("H_nl:")
a(f"""s_lshr_b32 s41, s{sSEL}, 3
s_lshl_b32 s41, s41, 11
s_lshl_b32 s42, s{sF}, 19
s_add_u32 s41, s41, s42
s_add_u32 s41, s41, {WS_CAND}
s_lshl_b32 s42, s{sH}, 8
s_add_u32 s42, s42, s41
v_lshl_add_u32 v2, v0, 2, s42
s_lshl_b32 s42, s{sJ}, 2
s_add_u32 s42, s42, s41
v_mov_b32 v9, s42
s_lshl_b32 s42, s{sF}, 2
v_add_u32 v37, s42, v3
s_mov_b32 s{sCNT}, 0""")
TSF(11)
a(f"""H_xs:
global_load_dword v8, v2, {P(sWS)} sc1
global_load_dword v38, v9, {P(sWS)} sc1
global_load_dword v39, v9, {P(sWS)} offset:1024 sc1
s_waitcnt vmcnt(0)
v_max3_u32 v10, v8, v38, v39
v_cmp_eq_u32 vcc, -1, v10""")
poll_guard("H_xs", "s_cbranch_vccz", "H_xsd")
a(f"""s_cmp_ge_u32 s{sJ}, 224
s_cbranch_scc1 H_down""")
for i in range(16): a(f"v_dot2_f32_bf16 v{GU+i}, v{GU+i}, v8, 0")
for c in range(8): a(f"v_permlane32_swap_b32 v{GU+c}, v{GU+8+c}")
pkadd(GU, GU, GU+8, 8)
for c in range(4): a(f"v_permlane16_swap_b32 v{GU+c}, v{GU+4+c}")
pkadd(GU, GU, GU+4, 4)
for m in ("row_ror:8", "row_ror:4", "row_ror:2", "row_ror:1"):
    for c in range(4): a(f"v_add_f32_dpp v{GU+c}, v{GU+c}, v{GU+c} {m} row_mask:0xf bank_mask:0xf")
a(f"""s_mov_b32 exec_lo, 0x00010001
s_mov_b32 exec_hi, 0x00010001
ds_write_b128 v20, {V(GU,4)}
s_mov_b64 exec, 1
ds_add_rtn_u32 v10, v37, v23 offset:{SC_FCNT}
s_mov_b64 exec, -1""")
for w in range(4): a(f"ds_read2_b32 {V(12+2*w,2)}, v21 offset0:{16*w} offset1:{16*w+8}")
a(f"""s_waitcnt lgkmcnt(0)
v_readfirstlane_b32 s42, v10
s_cmp_lg_u32 s42, 3
s_cbranch_scc1 H_down
v_pk_add_f32 v[12:13], v[12:13], v[14:15]
v_pk_add_f32 v[16:17], v[16:17], v[18:19]
v_pk_add_f32 v[12:13], v[12:13], v[16:17]
v_cvt_pk_bf16_f32 v12, v12, v13
v_and_b32 v13, 0xffff0000, v12
v_lshlrev_b32 v12, 16, v12
v_mul_f32 v14, 0xbfb8aa3b, v12
v_exp_f32 v14, v14
v_add_f32 v14, 1.0, v14
v_rcp_f32 v14, v14
v_mul_f32 v12, v12, v14
v_cvt_pk_bf16_f32 v12, v12, v12
v_lshlrev_b32 v12, 16, v12
v_mul_f32 v12, v12, v13
v_mov_b32_dpp v13, v12 quad_perm:[1,1,3,3] row_mask:0xf bank_mask:0xf
v_cvt_pk_bf16_f32 v12, v12, v13
s_mov_b64 exec, 0x55
global_store_dword v22, v12, {P(sWS)} sc1
s_mov_b64 exec, -1
H_down:
s_lshl_b32 s41, s{sH}, 6
v_add_u32 v1, s41, v0
v_min_u32 v2, 223, v1
s_lshl_b32 s42, s{sF}, 15
s_add_u32 s42, s42, {WS_HY}
v_lshl_add_u32 v2, v2, 7, s42
s_mov_b32 s{sCNT}, 0""")
TSF(12)
a(f"""s_cmp_lg_u32 s{sF}, 0
s_cbranch_scc1 H_nkw""")
a(f"s_sleep {E('HS0', 20)}\nH_nkw:")
a(f"""s_and_b32 s41, s{sF}, s{sCAND}
s_cbranch_scc0 H_ncs
s_cmp_eq_u32 s{sSEL}, s{sTOK}
s_cbranch_scc1 H_ncs
s_lshl_b32 s41, s{sTOK}, 10
v_lshl_add_u32 v9, v0, 4, s41
global_store_dwordx4 v9, {V(XR,4)}, {P(sOUT)}
H_ncs:
s_lshr_b32 s41, s{sKEY}, 16
s_and_b32 s42, s41, 0x7fff
s_xor_b32 s43, s41, 0xffff
s_bitcmp1_b32 s41, 15
s_cselect_b32 s41, s42, s43
s_lshl_b32 s41, s41, 16
v_mov_b32 v11, s41
v_mul_f32 v11, 0xbfb8aa3b, v11
v_exp_f32 v11, v11
v_add_f32 v11, 1.0, v11
v_rcp_f32 v11, v11
v_cvt_pk_bf16_f32 v11, v11, v11
v_lshlrev_b32 v11, 16, v11
v_lshlrev_b32 v26, 16, v38
v_and_b32 v27, 0xffff0000, v38
v_lshlrev_b32 v28, 16, v39
v_and_b32 v29, 0xffff0000, v39
s_lshl_b32 s41, s{sJ}, 7
s_add_u32 s41, s41, {WS_Y}
s_lshl_b32 s42, s{sSEL}, 10
s_lshl_b32 s43, s{sJ}, 2
s_add_u32 s42, s42, s43
s_cmp_eq_u32 s{sF}, 0
s_cselect_b32 s41, s41, s42
v_mov_b32 v25, s41""")
if HS1: a(f"s_sleep {HS1}")
a(f"""s_mov_b32 s{sCNT}, 0
s_mov_b64 vcc, -1
H_hp:
s_mov_b64 exec, {"vcc" if E("MSK", 1) else "-1"}
global_load_dwordx4 v[12:15], v2, {P(sWS)} sc1
s_mov_b64 exec, -1
s_waitcnt vmcnt(0)
v_max3_u32 v9, v12, v13, v14
v_max_u32 v9, v9, v15
v_cmp_eq_u32 vcc, -1, v9""")
poll_guard("H_hp", "s_cbranch_vccz", "H_hpd", 1, E("HR", 3))
TSF(13)
a(f"""v_dot2_f32_bf16 v8, v{WDn}, v12, 0
v_dot2_f32_bf16 v9, v{WDn+4}, v12, 0""")
for i in range(1, 4):
    a(f"v_dot2_f32_bf16 v8, v{WDn+i}, v{12+i}, v8")
    a(f"v_dot2_f32_bf16 v9, v{WDn+4+i}, v{12+i}, v9")
a(f"""v_cmp_gt_u32 vcc, 224, v1
v_cndmask_b32 v8, 0, v8, vcc
v_cndmask_b32 v9, 0, v9, vcc
v_permlane32_swap_b32 v8, v9
v_add_f32 v8, v8, v9""")
for m in ("row_ror:8", "row_ror:4", "row_ror:2", "row_ror:1"):
    a(f"v_add_f32_dpp v8, v8, v8 {m} row_mask:0xf bank_mask:0xf")
a(f"""v_add_f32_dpp v8, v8, v8 row_bcast:15 row_mask:0xa bank_mask:0xf
s_mov_b32 exec_lo, 0x80000000
s_mov_b32 exec_hi, 0x80000000
ds_write_b32 v24, v8
s_mov_b64 exec, 1
ds_add_rtn_u32 v10, v37, v23 offset:{SC_DCNT}
s_mov_b64 exec, -1
ds_read_b128 v[12:15], v3 offset:{SC_DACC}
ds_read_b128 v[16:19], v3 offset:{SC_DACC+16}
s_waitcnt lgkmcnt(0)
v_readfirstlane_b32 s42, v10
s_cmp_lg_u32 s42, 3
s_cbranch_scc1 H_ffd
v_pk_add_f32 v[12:13], v[12:13], v[14:15]
v_pk_add_f32 v[16:17], v[16:17], v[18:19]
v_pk_add_f32 v[8:9], v[12:13], v[16:17]""")
a(f"""v_cvt_pk_bf16_f32 v8, 0, v8
v_cvt_pk_bf16_f32 v9, 0, v9
v_mul_f32 v8, v8, v11
v_mul_f32 v9, v9, v11
v_cvt_pk_bf16_f32 v8, 0, v8
v_cvt_pk_bf16_f32 v9, 0, v9
v_pk_add_f32 v[8:9], v[8:9], v[26:27]
v_cvt_pk_bf16_f32 v8, 0, v8
v_cvt_pk_bf16_f32 v9, 0, v9
v_pk_add_f32 v[8:9], v[8:9], v[28:29]
v_cvt_pk_bf16_f32 v12, v8, v9
s_mov_b64 exec, 1
s_cmp_lg_u32 s{sF}, 0
s_cbranch_scc1 H_fo
global_store_dword v25, v12, {P(sWS)} sc1
s_branch H_fo2
H_fo:
global_store_dword v25, v12, {P(sOUT)}
H_fo2:
s_mov_b64 exec, -1
H_ffd:
s_cmp_lg_u32 s{sF}, 0
s_cbranch_scc1 L_end""")
a(f"""s_lshl_b32 s41, s{sH}, 13
s_add_u32 s41, s41, {WS_Y}
v_lshl_add_u32 v1, v0, 7, s41
s_lshl_b32 s41, s{sH}, 8
s_add_u32 s41, s41, {L_X2S}
v_lshl_add_u32 v2, v0, 2, s41
s_mov_b32 s{sCNT}, 0
s_sleep {E('YS', 20)}
s_mov_b64 vcc, -1
H_yw:
s_mov_b64 exec, {"vcc" if E("MSK", 1) else "-1"}
global_load_dword v40, v1, {P(sWS)} sc1
s_mov_b64 exec, -1
s_waitcnt vmcnt(0)
v_cmp_eq_u32 vcc, -1, v40""")
poll_guard("H_yw", "s_cbranch_vccz", "H_yd", 1, 3)
a(f"""ds_write_b32 v2, v40
v_mov_b32 v2, 1
s_mov_b64 exec, 1
ds_add_rtn_u32 v41, v3, v2 offset:{SC_YC}
s_mov_b64 exec, -1
v_lshlrev_b32 v1, 4, v0
v_add_u32 v1, {L_XS}, v1
s_waitcnt lgkmcnt(0)
v_readfirstlane_b32 s41, v41
s_cmp_lg_u32 s41, 3
s_cbranch_scc1 H_fx1
ds_read_b128 v[40:43], v1 offset:1024
s_waitcnt lgkmcnt(0)""")
unpack(X_, 40)
ln(X_, D_, T_, XN)
a(f"ds_write_b128 v1, {V(XN,4)}")
lds_inc(3, SC_XSF, 2)
a(f"""H_fx1:
s_xor_b32 s41, s{sSEL}, s{sTOK}
s_lshr_b32 s41, s41, 5
s_cbranch_scc1 H_fx2""")
lds_wait(3, SC_XSF, 2, 1, 2)
qtr_addr()
a(f"""v_lshrrev_b32 v12, 4, v0
v_lshlrev_b32 v8, 4, v12
v_add_u32 v8, {L_XS}, v8
v_add_u32 v9, 64, v8
v_add_u32 v10, 128, v8
v_add_u32 v11, 192, v8
s_lshl_b32 s41, s{sC}, 3
s_sub_u32 s41, s{sSEL}, s41
s_sub_u32 s41, s41, 8
s_and_b32 s41, s41, 31
s_mul_i32 s41, s41, {QSTR}
s_lshl_b32 s42, s{sH}, 6
s_add_u32 s41, s41, s42
s_add_u32 s41, s41, {L_Q}
v_lshl_add_u32 v2, v12, 3, s41
v_mov_b32 v3, {L_SC + SC_QFIX - SC_QC}
s_mov_b32 s{sQM}, 2
s_branch H_qp
H_fx3:
v_mov_b32 v3, {L_SC}""")
lds_wait(3, SC_QFIX, 2, 8, 1)
a(f"""H_fx2:""")
a(f"s_lshl_b32 s98, s{sH}, 14")
wkv_dma(1, 98)
a("s_waitcnt vmcnt(0)")
wkv_tr(8, 1, 2, 98)
lds_wait(3, SC_XSF, 2, 1, 2)
TSA(14)
a(f"""v_lshrrev_b32 v2, 4, v0
s_lshl_b32 s41, s{sH}, 8
s_add_u32 s41, s41, {L_XS}
v_lshl_add_u32 v1, v2, 4, s41""")
for s in range(4): a(f"ds_read_b128 {V(40+4*s,4)}, v1 offset:{64*s}")
a(f"""s_lshl_b32 s41, s{sH}, 7
s_add_u32 s41, s41, {L_KVP}
v_lshl_add_u32 v2, v2, 4, s41
s_waitcnt lgkmcnt(0)""")
for s in range(4):
    a(f"v_mfma_f32_16x16x32_bf16 v[56:59], {V(8+8*s,4)}, {V(40+4*s,4)}, {'0' if s==0 else 'v[56:59]'}")
    a(f"v_mfma_f32_16x16x32_bf16 v[60:63], {V(8+8*s+4,4)}, {V(40+4*s,4)}, {'0' if s==0 else 'v[60:63]'}")
a(f"""s_mov_b32 exec_lo, 0x00010001
s_mov_b32 exec_hi, 0x00010001
ds_write_b128 v2, v[56:59]
ds_write_b128 v2, v[60:63] offset:64
s_mov_b64 exec, -1""")
hsync(2, False)
a(f"""v_and_b32 v42, 7, v0
v_lshlrev_b32 v1, 3, v42
v_add_u32 v1, {L_KVP}, v1
v_lshrrev_b32 v2, 5, v0
s_and_b32 s41, s{sH}, 1
s_lshl_b32 s41, s41, 5
s_add_u32 s41, s41, {L_KVP + 64}
v_lshl_add_u32 v40, v2, 4, s41
s_lshl_b32 s41, s{sH}, 5
s_add_u32 s41, s41, {L_VS}
v_lshl_add_u32 v41, v2, 4, s41""")
for w in range(4): a(f"ds_read_b64 {V(8+2*w,2)}, v1 offset:{128*w}")
for w in range(4): a(f"ds_read_b128 {V(16+4*w,4)}, v40 offset:{128*w}")
a(f"""v_lshlrev_b32 v1, 2, v42
v_add_u32 v1, {L_KVP}, v1
s_waitcnt lgkmcnt(4)
v_pk_add_f32 v[8:9], v[8:9], v[10:11]
v_pk_add_f32 v[12:13], v[12:13], v[14:15]
v_pk_add_f32 v[8:9], v[8:9], v[12:13]
v_cvt_pk_bf16_f32 v8, v8, v9
s_waitcnt lgkmcnt(0)""")
pkadd(16, 16, 20, 4); pkadd(24, 24, 28, 4); pkadd(16, 16, 24, 4)
for i in range(8): a(f"v_readlane_b32 s{sKSL[i]}, v8, {i}")
pack(20, 16, 2); unpack(16, 20, 2)
a(f"""ds_write_b128 v41, v[16:19]
ds_write_b32 v1, v8 offset:{L_KS - L_KVP}""")
a(f"""s_cmp_lg_u32 s{sTOK}, 7
s_cbranch_scc1 H_nE
s_add_u32 s41, s{sE}, 2
v_mov_b32 v1, 0
v_mov_b32 v2, s41
s_mov_b64 exec, 1
global_store_dword v1, v2, {P(sWS)} sc1
s_mov_b64 exec, -1
H_nE:""")
ffn_loads(64)
a(f"""s_branch H_bursts
H_toX:
s_barrier
s_barrier
H_slow:
s_waitcnt vmcnt(0) lgkmcnt(0)
s_barrier
v_mov_b64 v[28:29], -1
v_mov_b64 v[30:31], -1
s_lshl_b32 s41, s{sH}, 10
s_add_u32 s41, s41, {L_L}
v_lshl_add_u32 v1, v0, 4, s41
ds_write_b128 v1, v[28:31]
s_lshl_b32 s41, s{sH}, 8
s_add_u32 s41, s41, {L_M}
v_lshl_add_u32 v1, v0, 2, s41
v_mov_b32 v8, 0xff800000
ds_write_b32 v1, v8
s_lshl_b32 s41, s{sL}, 4
s_add_u32 s41, s41, {L_SC}
v_mov_b32 v1, s41
v_mov_b32 v2, {L_SC}
v_mov_b64 v[8:9], 0
ds_write_b64 v1, v[8:9] offset:{SC_OCNT}
ds_write_b32 v2, v8 offset:{SC_BAD}
s_mov_b32 s{sSLOW}, 1
s_waitcnt lgkmcnt(0)
s_barrier
s_barrier
s_branch H_bursts
A_slow:
s_waitcnt vmcnt(0)
s_barrier
s_cmp_eq_u32 s3, 15
s_cbranch_scc1 A_sl1
v_lshrrev_b32 v8, 5, v0
v_lshlrev_b32 v8, 4, v8
v_add_u32 v8, {L_KS}, v8
ds_read_b128 v[32:35], v8
v_and_b32 v9, 15, v0
v_lshlrev_b32 v9, 2, v9
v_add_u32 v9, {L_VS}, v9
ds_read_b32 v36, v9
v_and_b32 v9, 27, v0
v_cmp_eq_u32 vcc, 16, v9
v_mov_b32 v10, 0x3f800000
v_cndmask_b32 v10, 0, v10, vcc
v_and_b32 v9, 16, v0
v_cmp_eq_u32 vcc, 0, v9
s_waitcnt lgkmcnt(0)
v_cndmask_b32 v36, v10, v36, vcc
s_bitcmp1_b32 s{sSEL}, 0
s_cselect_b32 s41, 0, 16
v_lshrrev_b32 v36, s41, v36
s_mov_b64 exec, s[6:7]
s_lshl_b32 s41, s3, 4
s_add_u32 s41, s41, s4
s_set_gpr_idx_on s41, gpr_idx(SRC0,DST)
s_nop 1
v_or_b32 v{VV}, v{VV}, v36
s_nop 1
s_set_gpr_idx_off
s_bfe_u32 s41, s101, 0x20006
s_lshl_b32 s41, s41, 3
s_and_b32 s42, s{sSEL}, 7
s_add_u32 s41, s41, s42
s_lshl_b32 s42, 1, s41
s_mov_b32 exec_lo, s42
s_mov_b32 exec_hi, s42
s_bfe_u32 s41, s101, 0x10008
s_lshl_b32 s42, s3, 1
s_add_u32 s41, s41, s42
s_lshl_b32 s41, s41, 2
s_set_gpr_idx_on s41, gpr_idx(DST)
s_nop 1
v_mov_b32 v{KK}, v32
v_mov_b32 v{KK+1}, v33
v_mov_b32 v{KK+2}, v34
v_mov_b32 v{KK+3}, v35
s_nop 1
s_set_gpr_idx_off
s_mov_b64 exec, -1
A_sl1:
v_and_b32 v14, 31, v0
v_lshlrev_b32 v14, 2, v14
v_add_u32 v14, {L_M}, v14""")
att_addr()
a(f"""s_barrier
s_mov_b32 s44, 0
A_sm:
s_mul_i32 s41, s44, {4*QSTR}
v_add_u32 v{Q}, s41, v{vQA}
ds_read_b128 {V(Q,4)}, v{Q}
v_mov_b32 v15, 0xff800000
s_waitcnt lgkmcnt(0)""")
for kt in range(NT):
    a(f"v_mfma_f32_32x32x16_bf16 {V(S0,16)}, {V(KK+4*kt,4)}, {V(Q,4)}, 0")
    for i in range(0, 16, 2): a(f"v_max3_f32 v15, v15, v{S0+i}, v{S0+i+1}")
a(f"""v_lshl_add_u32 v13, s44, 7, v14
ds_max_f32 v13, v15
s_add_u32 s44, s44, 1
s_cmp_lt_u32 s44, 8
s_cbranch_scc1 A_sm
s_waitcnt lgkmcnt(0)
s_barrier
s_mov_b32 s44, 0
A_se:
s_mul_i32 s41, s44, {4*QSTR}
v_add_u32 v{Q}, s41, v{vQA}
ds_read_b128 {V(Q,4)}, v{Q}
v_lshl_add_u32 v13, s44, 7, v14
ds_read_b32 v15, v13
s_waitcnt lgkmcnt(0)""")
for i in range(16): a(f"v_sub_f32 v{S1+i}, 0, v15")
for i in range(0, 16, 2): a(f"v_mov_b64 {V(ACC+i,2)}, 0")
for kt in range(NT):
    a(f"v_mfma_f32_32x32x16_bf16 {V(S0,16)}, {V(KK+4*kt,4)}, {V(Q,4)}, {V(S1,16)}")
    ex(S0, 0, 16)
    smf(2*kt, S0); smf(2*kt+1, S0+8)
a("s_mov_b32 s41, s44")
flush()
a(f"""s_add_u32 s44, s44, 1
s_cmp_lt_u32 s44, 8
s_cbranch_scc1 A_se
s_branch A_X
L_end:
""")
if TSON:
    TS(15)
    a(f"""s_getreg_b32 s75, hwreg(HW_REG_HW_ID)
    s_mul_i32 s41, s{sB}, 12
    s_add_u32 s41, s41, s{sW}
    s_lshl_b32 s41, s41, 7
    s_add_u32 s41, s41, {WS_TS}
    v_mov_b32 v1, s41
    s_mov_b64 exec, 1""")
    for i in range(32):
        a(f"v_mov_b32 v2, s{60+i}\nglobal_store_dword v1, v2, {P(sWS)} offset:{4*i}")
if os.environ.get("DLY"):
    i_, j_ = [int(x) for x in os.environ["DLY"].split(",")]
    a(f"""s_cmp_lg_u32 s{sTOK}, {int(os.environ.get("DLYW", "4"))}
    s_cbranch_scc1 L_exit
    s_sub_u32 s41, s{60+j_}, s{60+i_}
    s_mul_i32 s41, s41, 4
    s_min_u32 s41, s41, 40000
    s_add_u32 s41, s41, s91
    s_add_u32 s41, s41, 1000
    L_dly:
    s_memrealtime s[92:93]
    s_waitcnt lgkmcnt(0)
    s_sub_u32 s42, s92, s41
    s_cmp_lt_i32 s42, 0
    s_cbranch_scc1 L_dly""")
if os.environ.get("DBGT"):
    a(f"""s_mov_b64 exec, 1
    v_mov_b32 v1, 0
    s_not_b32 s41, s60
    v_mov_b32 v2, s41
    global_atomic_umax v1, v2, {P(sDBG)}""")
    for k, slot in enumerate((31, 1, 2, 3, 5, 9, 7, 21, 25, 23, 24, 27, 29, 16, 0)):
        a(f"v_mov_b32 v2, s{60+slot}\nglobal_atomic_umax v1, v2, {P(sDBG)} offset:{4+4*k}")
a("L_exit:\ns_endpgm")

ABL = os.environ.get("ABL", "")
if ABL:
    from asmlib import Ins
    out_items = []; cur = ""
    for it in a.items:
        if isinstance(it, Ins) and it.label: cur = it.label
        drop = False
        if isinstance(it, Ins) and it.text:
            idx = len(out_items)
            t = it.text
            if "ds_write_b32 v8, v9 offset:96" in t: drop = True
            inH = region[0]
            if "w" in ABL and inH == "prep" and it.op == "v_perm_b32": drop = True
            if "m" in ABL and inH == "burst" and it.op.startswith("v_mfma"): drop = True
            if "v" in ABL and inH == "burst" and it.op in ("v_pk_add_f32", "v_pk_mul_f32", "v_dot2_f32_bf16", "v_cvt_pk_bf16_f32", "v_add_f32", "v_exp_f32", "v_rcp_f32", "v_fma_f32"): drop = True
            if "f" in ABL and inH == "ffn" and (it.op.startswith("v_dot2") or it.op.startswith("v_permlane") or it.op.startswith("v_add_f32_dpp") or it.op.startswith("v_pk_") or it.op.startswith("v_mfma")): drop = True
        if isinstance(it, Ins) and it.label == "H_prep": region[0] = "prep"
        if isinstance(it, Ins) and it.label == "H_bursts": region[0] = "burst"
        if isinstance(it, Ins) and it.label == "H_nwf": region[0] = ""
        if isinstance(it, Ins) and it.label == "H_FFN": region[0] = "ffn"
        if isinstance(it, Ins) and it.label == "H_toX": region[0] = ""
        if not drop: out_items.append(it)
    a.items = out_items
n = a.hazard_pass()
hdr = open(f"cdna_kernels/{NAME}.s.ref").read().split("; Override launch")[0]
out = hdr + f"""; @launch grid=(256,1,1) block=(512,1,1) lds=163840
.amdgcn_target "amdgcn-amd-amdhsa--gfx950"
.text
.globl {NAME}_kernel
.p2align 8
.type {NAME}_kernel,@function
{NAME}_kernel:
""" + a.text() + f""".section .rodata,"a"
.p2align 6
.amdhsa_kernel {NAME}_kernel
  .amdhsa_next_free_vgpr 256
  .amdhsa_next_free_sgpr 102
  .amdhsa_accum_offset 256
  .amdhsa_group_segment_fixed_size 0
  .amdhsa_kernarg_size 104
  .amdhsa_user_sgpr_count 2
  .amdhsa_user_sgpr_kernarg_segment_ptr 1
  .amdhsa_system_sgpr_workgroup_id_x 1
  .amdhsa_float_denorm_mode_32 3
.end_amdhsa_kernel
"""
open(sys.argv[1], "w").write(out)
print("nops inserted", n, "instructions", sum(1 for i in a.items if not isinstance(i, str) and i.text))
```

```python
import sys, os
from asmlib import Asm
NAME = "interleave_layers__grouped_kv_mqa__moe_arch_mod__prompt"
TSON = bool(int(os.environ.get("TS", "0")))
a = Asm()
region = ['']
def E(n, d): return int(os.environ.get(n, str(d)))

WS_FLAG = 0x1000; WS_KEY = 0x400000; WS_HY = WS_KEY + 0x10000; WS_Y = WS_KEY + 0x20000; WS_KV = 0x30000; WS_CAND = 0x80000; KVS = 640; KVL = 256*640
WS_OPF = 0x180000
WS_XN = 0x200000; WS_OP = 0x600000; OPL = 0xc00000; WS_TS = 0x3000000; WS_FS = 0x2000000; WS_WKV = 0x2800000
L_SLOT = 65536; L_XN = 114688; L_O = 131072; L_Q = 147456; L_L = 156160; L_SC = 160768
L_ROW = L_SLOT; L_PS = L_SLOT + 16384; L_KVS = L_Q
L_WK1 = 98816
L_XS = 139776; L_X2S = L_XS + 1024; L_KVP = L_XS + 2048; L_VS = L_XS + 2560; L_KS = L_XS + 2816; L_M = L_XS + 3072
QSTR = 272
RS = 2064
SC_KVCNT = 0; SC_KEYS = 16; SC_OCNT = 64; SC_FACC = 128; SC_FCNT = 384; SC_DACC = 400; SC_DCNT = 464; SC_GK = 480
SC_XSF = 512; SC_QFIX = 516; SC_BAD = 96; SC_XNC = 528; SC_QC = 536; SC_CLR = 564; SC_C2 = 560; SC_XN2 = 556; SC_B1 = 552; SC_KVD = 544; SC_YC = 548; SC_ZERO = 768; SC_WR = 1024
FORCE = int(os.environ.get('FORCE', '0'))
POLLMAX = 40000
B1P0 = bool(int(os.environ.get('B1P0', '1')))
HS1 = int(os.environ.get('HS1', '14'))
KS1 = int(os.environ.get('KS1', '0'))
HLNP = int(os.environ.get('HLNP', '2'))
OUTF = ' ' + os.environ.get('OF1', '')
OUTG = ' ' + os.environ.get('OF2', '')
NPRE = int(os.environ.get('NPRE', '2'))
CODECH = int(os.environ.get('CODECH', '6'))
QSCALE = 0x3eb8aa3b

sX, sWQ, sWK, sWV, sWO, sWR, sWG, sWU, sWD, sOUT, sDBG, sWS = 8, 10, 12, 14, 16, 20, 22, 24, 26, 28, 30, 32
sE, sW, sL, sC, sTAG, sLO, sHI = 34, 35, 36, 37, 38, 39, 40
sCNT, sJ, sKEY, sTOK, sMASK, sH, sSEL, sOTAG, sF, sCAND, sMYK, sWT = 46, 47, 48, 49, 50, 51, 52, 53, 54, 55, 56, 57
sORD = 58
sKS = 0
sSLOW = 19
sPB = 100
XL = E('XL', 0)
sSLOT = 96; sQM = 97; sX4 = 97
sOPB = 50
sB = 18
sKSL = [0, 1, 2, 3, 4, 5, 6, 7]
def P(n): return f"s[{n}:{n+1}]"
def V(n, k=1): return f"v{n}" if k == 1 else f"v[{n}:{n+k-1}]"

def TS(i):
    if not TSON: return
    a(f"""s_memrealtime s[92:93]
    s_waitcnt lgkmcnt(0)
    s_cmp_eq_u32 s{sL}, 0
    s_cselect_b32 s{60+i}, s92, s{60+i}""")
    if not os.environ.get("SO"): a(f"s_cselect_b32 s{76+i}, s{76+i}, s92")
SO = bool(os.environ.get("SO"))
def TSS(slot):
    if not (TSON and SO) or os.environ.get("P0"): return
    a(f"""s_memrealtime s[92:93]
    s_waitcnt lgkmcnt(0)
    s_cmp_eq_u32 s{60+slot}, 0
    s_cselect_b32 s{60+slot}, s92, s{60+slot}""")
def TSA(slot):
    if not TSON or (SO and slot >= 16): return
    a(f"""s_memrealtime s[92:93]
    s_waitcnt lgkmcnt(0)
    s_mov_b32 s{60+slot}, s92""")
def TSF(i):
    if not TSON or SO: return
    a(f"""s_memrealtime s[92:93]
    s_waitcnt lgkmcnt(0)
    s_cmp_eq_u32 s{sF}, 0
    s_cselect_b32 s{60+i}, s92, s{60+i}
    s_cselect_b32 s{76+i}, s{76+i}, s92""")
def TC(i):
    return
    a(f"""s_memtime s[92:93]
    s_waitcnt lgkmcnt(0)
    s_mov_b32 s{94+i}, s92""")

def poll_guard(lbl_retry, cond_branch, lbl_stem, mult=1, sleep=0):
    done = a.newlabel(lbl_stem)
    a(f"{cond_branch} {done}")
    if sleep: a(f"s_sleep {sleep}")
    a(f"""s_add_u32 s{sCNT}, s{sCNT}, 1
    s_cmp_lt_u32 s{sCNT}, {POLLMAX*mult}
    s_cbranch_scc1 {lbl_retry}
    {done}:""")
def lds_wait(vaddr, off, vt, target, sleep=1):
    lb = a.newlabel("W")
    a(f"s_mov_b32 s{sCNT}, 0\n{lb}:")
    a(f"""ds_read_b32 v{vt}, v{vaddr} offset:{off}
    s_waitcnt lgkmcnt(0)
    v_cmp_gt_u32 vcc, {target}, v{vt}""")
    poll_guard(lb, "s_cbranch_vccz", "Wd", 8, sleep)
def lds_inc(vaddr, off, vt):
    a(f"""v_mov_b32 v{vt}, 1
    s_mov_b64 exec, 1
    ds_add_u32 v{vaddr}, v{vt} offset:{off}
    s_mov_b64 exec, -1""")

def dpp_reduce(regs, op="v_add_f32"):
    for m in ("row_ror:8", "row_ror:4", "row_ror:2", "row_ror:1"):
        for r in regs: a(f"{op}_dpp v{r}, v{r}, v{r} {m} row_mask:0xf bank_mask:0xf")
    for r in regs: a(f"{op}_dpp v{r}, v{r}, v{r} row_bcast:15 row_mask:0xa bank_mask:0xf")
    for r in regs: a(f"{op}_dpp v{r}, v{r}, v{r} row_bcast:31 row_mask:0xc bank_mask:0xf")
def unpack(dst, src, n=4):
    for i in range(n):
        a(f"v_lshlrev_b32 v{dst+2*i}, 16, v{src+i}")
        a(f"v_and_b32 v{dst+2*i+1}, 0xffff0000, v{src+i}")
def pack(dst, src, n=4):
    for i in range(n): a(f"v_cvt_pk_bf16_f32 v{dst+i}, v{src+2*i}, v{src+2*i+1}")
def pkadd(d, x, y, n):
    for i in range(0, n, 2): a(f"v_pk_add_f32 {V(d+i,2)}, {V(x+i,2)}, {V(y+i,2)}")
def tr_pair(e, o, t):
    a(f"""v_perm_b32 v{t}, v{o}, v{e}, s{sLO}
    v_perm_b32 v{o}, v{o}, v{e}, s{sHI}
    v_mov_b32 v{e}, v{t}""")
def ln(X, D, T, out, extra=[]):
    a(f"v_readfirstlane_b32 s42, v{X}")
    for i in range(0, 8, 2): a(f"v_pk_add_f32 {V(D+i,2)}, {V(X+i,2)}, s[42:43] op_sel_hi:[1,0] neg_lo:[0,1] neg_hi:[0,1]")
    a(f"""v_pk_add_f32 {V(T,2)}, {V(D,2)}, {V(D+2,2)}
    v_pk_mul_f32 {V(T+2,2)}, {V(D,2)}, {V(D,2)}
    v_pk_add_f32 {V(T,2)}, {V(T,2)}, {V(D+4,2)}
    v_pk_fma_f32 {V(T+2,2)}, {V(D+2,2)}, {V(D+2,2)}, {V(T+2,2)}
    v_pk_add_f32 {V(T,2)}, {V(T,2)}, {V(D+6,2)}
    v_pk_fma_f32 {V(T+2,2)}, {V(D+4,2)}, {V(D+4,2)}, {V(T+2,2)}
    v_add_f32 v{T}, v{T}, v{T+1}
    v_pk_fma_f32 {V(T+2,2)}, {V(D+6,2)}, {V(D+6,2)}, {V(T+2,2)}
    v_mul_f32 v{T}, 0x3b000000, v{T}
    v_add_f32 v{T+1}, v{T+2}, v{T+3}""")
    dpp_reduce([T, T+1] + extra)
    a(f"""v_mul_f32 v{T+1}, 0x3b000000, v{T+1}
    v_fma_f32 v{T+1}, -v{T}, v{T}, v{T+1}
    v_max_f32 v{T+1}, 0, v{T+1}
    v_add_f32 v{T+1}, 0x3727c5ac, v{T+1}
    v_rsq_f32 v{T+1}, v{T+1}
    v_mul_f32 v{T}, v{T}, v{T+1}
    v_readlane_b32 s42, v{T+1}, 63
    v_readlane_b32 s43, v{T}, 63""")
    for i in range(0, 8, 2): a(f"v_pk_fma_f32 {V(D+i,2)}, {V(D+i,2)}, s[42:43], s[42:43] op_sel:[0,0,1] op_sel_hi:[1,0,1] neg_lo:[0,0,1] neg_hi:[0,0,1]")
    pack(out, D)

XR = 4
X_, D_, T_, XN, X1, WR = 8, 16, 24, 28, 32, 36
XO = 36
vQA, vOA, vIDX = 1, 2, 3
Q, ZZ, ACC, S0, S1, KK, VV = 8, 12, 16, 32, 48, 64, 128
WKV = 64
WQR, WO = 64, 128
FOR = 224
GU, WDn = 40, 56

def wkv_dma(vt, sreg):
    a(f"""s_lshl_b32 s41, s{sH}, 12
    v_lshl_add_u32 v{vt}, v0, 4, s41
    s_mov_b32 m0, s{sreg}""")
    for k in range(4): a(f"global_load_lds_dwordx4 v{vt}, {P(sWK)} offset:{1024*k}")
    a(f"s_add_u32 m0, s{sreg}, 4096")
    for k in range(4): a(f"global_load_lds_dwordx4 v{vt}, {P(sWV)} offset:{1024*k}")
def wkv_tr(dst, vt, vt2, sreg):
    a(f"""v_lshrrev_b32 v{vt}, 4, v0
    v_and_b32 v{vt2}, 15, v0
    v_lshlrev_b32 v{vt2}, 3, v{vt2}
    v_lshl_add_u32 v{vt}, v{vt}, 8, v{vt2}
    v_add_u32 v{vt}, s{sreg}, v{vt}""")
    for k in range(4):
        for m in range(2):
            for hf in range(2):
                a(f"ds_read_b64_tr_b16 {V(dst+8*k+4*m+2*hf,2)}, v{vt} offset:{4096*m + 1024*k + 128*hf}")
        if k == 2: a("s_waitcnt lgkmcnt(4)")
def ffn_loads(GU=40):
    a(f"""s_lshl_b32 s41, s{sJ}, 15
    s_lshl_b32 s42, s{sH}, 13
    s_add_u32 s41, s41, s42
    s_add_u32 s41, s41, {WS_FS + 4096}
    v_lshl_add_u32 v2, v0, 4, s41""")
    for i in range(6): a(f"global_load_dwordx4 {V(GU+4*i,4)}, v2, {P(sWS)} offset:{1024*i-4096} sc1")
def gloads(v):
    for g in range(3): a(f"v_lshl_add_u32 v{v+g}, v0, 4, s{3+g}")
    for i in range(6): a(f"global_load_dwordx4 {V(40+4*i,4)}, v{v+(i>>1)}, {P(sWS)} offset:{4096*(i&1)-2048} sc1")
def pos2tok(dst, src):
    a(f"""s_lshl_b32 s{dst}, s{sC}, 3
    s_add_u32 s{dst}, s{dst}, s{src}
    s_add_u32 s{dst}, s{dst}, 8
    s_and_b32 s{dst}, s{dst}, 31
    s_andn2_b32 s43, s{sTOK}, 31
    s_add_u32 s{dst}, s{dst}, s43""")

a(f"""
s_cmp_ge_u32 s2, 256
s_cbranch_scc1 L_exit
s_load_dwordx16 s[8:23], s[0:1], 0
s_load_dwordx8 s[24:31], s[0:1], 64
s_load_dwordx2 s[32:33], s[0:1], 96
v_lshrrev_b32 v1, 6, v0
v_and_b32 v0, 63, v0
s_mov_b32 s{sL}, 0
v_readfirstlane_b32 s{sW}, v1
s_mov_b32 s{sLO}, 0x05040100
s_mov_b32 s{sHI}, 0x07060302
s_mov_b32 s{sF}, 0
s_and_b32 s41, s2, 7
s_lshl_b32 s41, s41, 3
s_bfe_u32 s42, s2, 0x30003
s_or_b32 s41, s41, s42
s_andn2_b32 s42, s2, 63
s_or_b32 s{sSLOT}, s41, s42
s_mov_b32 s{sSEL}, -1
s_and_b32 s{sJ}, s2, 7
s_lshl_b32 s{sJ}, s{sJ}, 5
s_lshr_b32 s41, s2, 3
s_add_u32 s{sJ}, s{sJ}, s41
s_and_b32 s{sH}, s{sW}, 3
s_mov_b32 s{sPB}, s2
{"s_mov_b32 s2, s%d" % sJ if XL else "s_nop 0"}
s_and_b32 s{sC}, s2, 3
s_lshl_b32 s{sTOK}, s2, 3
s_add_u32 s{sTOK}, s{sTOK}, s{sW}
s_lshl_b32 s41, s{sTOK}, 10
v_lshl_add_u32 v1, v0, 4, s41
v_mov_b64 v[12:13], -1
v_mov_b64 v[14:15], -1
s_cmp_lg_u32 s{sW}, 7
s_cbranch_scc1 S_z
v_lshlrev_b32 v2, 4, v0
v_add_u32 v2, {L_L}, v2
ds_write_b128 v2, v[12:15]
ds_write_b128 v2, v[12:15] offset:1024
ds_write_b128 v2, v[12:15] offset:2048
ds_write_b128 v2, v[12:15] offset:3072
v_mov_b64 v[8:9], 0
v_mov_b64 v[10:11], 0
ds_write_b128 v2, v[8:11] offset:{L_SC - L_L}
S_z:
""")
if TSON:
    for i in range(32): a(f"s_mov_b32 s{60+i}, 0")
TS(0)
a(f"""
s_waitcnt lgkmcnt(0)
s_mov_b32 s{sB}, s2
s_mov_b32 s{sSLOW}, 0
global_load_dwordx4 {V(XR,4)}, v1, {P(sX)}
s_barrier
s_cmp_ge_u32 s{sW}, 4
s_cbranch_scc1 S_noA
s_setprio 2
v_add_u32 v16, 4096, v1
global_load_dwordx4 {V(FOR,4)}, v16, {P(sX)}""")
for g in range(2):
    a(f"s_add_u32 s44, s{sH}, {8*g}")
    pos2tok(41, 44)
    a(f"""s_lshl_b32 s41, s41, 10
    s_add_u32 s41, s41, 2048
    v_lshl_add_u32 v{16+g}, v0, 4, s41""")
a(f"""s_lshl_b32 s98, s{sH}, 13
s_add_u32 s98, s98, {L_XN}
s_cmp_eq_u32 s{sH}, 3
s_cselect_b32 s98, {L_Q}, s98""")
wkv_dma(8, 98)
for i in range(4): a(f"global_load_dwordx4 {V(FOR+4+4*i,4)}, v{16+(i>>1)}, {P(sX)} offset:{4096*(i&1)-2048}")
TSS(16)
a(f"""s_waitcnt vmcnt(12)
s_branch R_P1
S_noA:
s_load_dword s{sE}, {P(sWS)}, 0
s_cmp_lg_u32 s{sW}, 7
s_cbranch_scc1 S_n7
s_setprio {E("W7P", 3)}
s_mul_i32 s41, s{sSLOT}, {KVS}
s_add_u32 s41, s41, {WS_KV}
v_lshl_add_u32 v1, v0, 4, s41
v_add_u32 v3, {KVL}, v1
v_mov_b32 v16, 0x3f803f80
v_cmp_eq_u32 vcc, 32, v0
v_cndmask_b32 v16, 0, v16, vcc
v_cmp_gt_u32 vcc, 32, v0
v_cndmask_b32 v16, v16, v12, vcc
v_mov_b32 v17, v16
v_mov_b64 v[18:19], v[16:17]
s_mov_b32 exec_hi, 0xff
global_store_dwordx4 v1, v[16:19], {P(sWS)} sc1
global_store_dwordx4 v3, v[16:19], {P(sWS)} sc1
s_mov_b32 exec_hi, -1
s_lshl_b32 s41, s2, 7
s_add_u32 s41, s41, {WS_KEY}
s_lshl_b32 s42, s{sJ}, 7
s_add_u32 s42, s42, {WS_KEY}
v_mov_b32 v1, s41
v_mov_b32 v3, s42
v_cmp_gt_u32 vcc, 2, v0
v_cndmask_b32 v1, v3, v1, vcc
v_lshl_add_u32 v1, v0, 15, v1
s_mov_b64 exec, 0x1f
global_store_dwordx4 v1, v[12:15], {P(sWS)} sc1
s_mov_b64 exec, -1
""")
a(f"""S_n7:
s_setprio 1
s_cmp_lg_u32 s{sW}, 6
s_cbranch_scc1 H_stage
v_lshlrev_b32 v1, 4, v0
global_load_dwordx4 v[44:47], v1, {P(sWR)}
s_branch H_stage""")
def key_make():
    a(f"""v_cvt_pk_bf16_f32 v1, 0, v1
    v_ashrrev_i32 v2, 31, v1
    v_or_b32 v2, 0x80000000, v2
    v_xor_b32 v1, v1, v2
    v_and_b32 v1, 0xffff0000, v1
    s_sub_u32 s41, 2047, s{sTOK}
    v_or_b32 v1, s41, v1
    s_lshl_b32 s41, s{sF}, 3
    s_add_u32 s41, s41, {L_SC + SC_KEYS}
    v_mov_b32 v3, s41
    v_readlane_b32 s{sMYK}, v1, 63
    v_mov_b32 v2, 1
    s_mov_b32 exec_lo, 0
    s_mov_b32 exec_hi, 0x80000000
    ds_max_u32 v3, v1
    ds_add_rtn_u32 v2, v3, v2 offset:4
    ds_read_b32 v1, v3
    s_mov_b64 exec, -1""")
def key_pub():
    lb = a.newlabel("K_np")
    a(f"""s_lshl_b32 s41, s{sB}, 7
    s_lshl_b32 s42, s{sF}, 15
    s_add_u32 s41, s41, s42
    s_add_u32 s41, s41, {WS_KEY}
    v_mov_b32 v3, s41
    s_waitcnt lgkmcnt(0)
    v_readlane_b32 s6, v2, 63
    s_cmp_lg_u32 s6, 7
    s_cbranch_scc1 {lb}
    s_mov_b32 exec_lo, 0
    s_mov_b32 exec_hi, 0x80000000
    global_store_dword v3, v1, {P(sWS)} sc1
    s_mov_b64 exec, -1
    {lb}:
    v_mov_b32 v3, {L_SC}""")
a("R_P1:")
TS(1)
unpack(X_, XR)
a("R_P1b:")
ln(X_, D_, T_, XO)
a(f"""s_add_u32 s41, s{sW}, 8
v_xor_b32 v2, s41, v0
s_add_u32 s41, s{sW}, 24
s_lshl_b32 s41, s41, 10
s_add_u32 s41, s41, {L_XN}
v_lshl_add_u32 v2, v2, 4, s41
ds_write_b128 v2, {V(XO,4)}
s_cmp_eq_u32 s{sL}, 0
s_cbranch_scc1 S_l0
s_lshl_b32 s41, s{sTOK}, 10
s_add_u32 s41, s41, {WS_XN}
v_lshl_add_u32 v2, v0, 4, s41
s_cmp_ge_u32 s{sW}, 4
s_cbranch_scc1 R_nw
s_waitcnt vmcnt(1)
s_cmp_eq_u32 s6, 7
s_cbranch_scc1 R_nw
s_waitcnt vmcnt(0)
R_nw:
global_store_dwordx4 v2, {V(XO,4)}, {P(sWS)} sc1
s_cmp_ge_u32 s{sW}, 4
s_cbranch_scc1 H_B1
s_setprio 3""")
wkv_tr(WKV, 8, 9, 98)
a(f"""A_kvp:
v_and_b32 v8, 7, v0
v_add_u32 v8, 8, v8
v_lshrrev_b32 v9, 4, v0
v_xor_b32 v9, v9, v8
v_lshlrev_b32 v8, 10, v8
s_lshl_b32 s41, s{sH}, 8
s_add_u32 s41, s41, {L_XN + 16*1024}
v_add_u32 v8, s41, v8
v_xor_b32 v10, 4, v9
v_xor_b32 v11, 8, v9
v_xor_b32 v12, 12, v9
v_lshl_add_u32 v9, v9, 4, v8
v_lshl_add_u32 v10, v10, 4, v8
v_lshl_add_u32 v11, v11, 4, v8
v_lshl_add_u32 v12, v12, 4, v8
s_cmp_eq_u32 s{sL}, 0
s_cbranch_scc1 A_kv2
s_waitcnt lgkmcnt(0)
s_barrier
A_kv2:
ds_read_b128 v[40:43], v9
ds_read_b128 v[44:47], v10
ds_read_b128 v[48:51], v11
ds_read_b128 v[52:55], v12
s_lshl_b32 s41, s{sH}, 11
s_add_u32 s41, s41, {L_KVS}
v_lshl_add_u32 v8, v0, 4, s41
s_lshl_b32 s42, s{sL}, 2
v_add_u32 v9, s42, v3
v_mov_b32 v10, 1""")
for s in range(4):
    a(f"s_waitcnt lgkmcnt({3-s})")
    a(f"v_mfma_f32_16x16x32_bf16 v[56:59], {V(WKV+8*s,4)}, {V(40+4*s,4)}, {'0' if s==0 else 'v[56:59]'}")
    a(f"v_mfma_f32_16x16x32_bf16 v[60:63], {V(40+4*s,4)}, {V(WKV+8*s+4,4)}, {'0' if s==0 else 'v[60:63]'}")
a(f"""ds_write_b128 v8, v[56:59]
ds_write_b128 v8, v[60:63] offset:1024
s_mov_b64 exec, 1
ds_add_u32 v9, v10 offset:{SC_KVCNT}
s_mov_b64 exec, -1
A_nokv:
s_setprio 0""")
if not os.environ.get("PP"): TS(2)
def stage(src, off, temps):
    for f in range(8):
        t = temps[f % len(temps)]
        for i in range(4):
            a(f"v_perm_b32 v{t+i}, v{src+4*(2*i+1)+(f>>1)}, v{src+4*(2*i)+(f>>1)}, s{sHI if f&1 else sLO}")
        a(f"ds_write_b128 v1, {V(t,4)} offset:{off+1024*f}")
a(f"""s_cmp_lg_u32 s{sL}, 0
s_cbranch_scc1 R_cand
s_setprio 2
s_load_dword s{sE}, {P(sWS)}, 0
s_mov_b32 s45, 5
s_mov_b32 s3, s{sH}
s_branch S_fl
S_l0:""")
TSS(17)
a(f"""v_mov_b32 v3, {L_SC}
s_mov_b32 s44, 0
s_mov_b32 s45, 1
s_add_u32 s3, s{sH}, 28
S_fl:
s_lshl_b32 s41, s44, 2
s_set_gpr_idx_on s41, gpr_idx(SRC0)
s_nop 1
v_mov_b32 v28, v{FOR}
v_mov_b32 v29, v{FOR+1}
v_mov_b32 v30, v{FOR+2}
v_mov_b32 v31, v{FOR+3}
s_nop 1
s_set_gpr_idx_off""")
unpack(40, 28)
ln(40, D_, T_, XO)
a(f"""s_and_b32 s42, s3, 15
v_xor_b32 v28, s42, v0
s_lshl_b32 s41, s3, 10
s_add_u32 s41, s41, {L_XN}
v_lshl_add_u32 v28, v28, 4, s41
ds_write_b128 v28, {V(XO,4)}
s_add_u32 s3, s3, 4
s_add_u32 s44, s44, 1
s_cmp_lg_u32 s44, {E("FLD", 4)}
s_cbranch_scc1 S_nf
s_lshl_b32 s41, s{sH}, 13
s_add_u32 s41, s41, {WS_FLAG}
v_lshl_add_u32 v13, v0, 7, s41
global_load_dword v13, v13, {P(sWS)} sc1
S_nf:
s_cmp_lt_u32 s44, s45
s_cbranch_scc1 S_fl
s_cmp_eq_u32 s45, 5
s_cbranch_scc1 A_P2
s_cmp_eq_u32 s45, 2
s_cbranch_scc1 H_ret""")
TSS(18)
a("s_waitcnt vmcnt(0)")
TSS(19)
wkv_tr(WKV, 8, 9, 98)
lds_inc(3, SC_B1, 8)
TSS(20)
lds_wait(3, SC_B1, 8, 4, 0)
TSS(21)
a(f"""s_setprio 3
s_branch A_kvp
H_B1:
s_waitcnt lgkmcnt(0)
s_barrier
s_setprio 2
s_cmp_lg_u32 s{sW}, 7
s_cbranch_scc1 R_cand
H_fin:
v_and_b32 v12, 3, v0
v_lshrrev_b32 v13, 2, v0
v_lshl_add_u32 v12, v12, 4, v13
v_and_b32 v13, 1, v0
v_lshrrev_b32 v14, 1, v0
v_lshl_add_u32 v13, v13, 4, v14
v_add_u32 v13, 48, v13
v_cmp_gt_u32 vcc, 32, v0
s_lshl_b32 s42, s{sL}, 2
v_add_u32 v9, s42, v3
v_cndmask_b32 v12, v13, v12, vcc
v_lshlrev_b32 v12, 4, v12
v_add_u32 v12, {L_KVS}, v12
s_mul_i32 s41, s{sL}, {KVL}
s_mul_i32 s42, s{sSLOT}, {KVS}
s_add_u32 s41, s41, s42
s_add_u32 s41, s41, {WS_KV}
v_lshl_add_u32 v8, v0, 3, s41""")
lds_wait(9, SC_KVCNT, 11, 4, 0)
for w in range(4): a(f"ds_read_b128 {V(40+4*w,4)}, v12 offset:{2048*w}")
a("s_setprio 3\ns_waitcnt lgkmcnt(2)")
pkadd(40, 40, 44, 4)
a("s_waitcnt lgkmcnt(0)")
pkadd(48, 48, 52, 4); pkadd(40, 40, 48, 4)
pack(40, 40, 2)
a(f"""v_mov_b32_dpp v42, v40 quad_perm:[1,1,3,3] row_mask:0xf bank_mask:0xf
v_mov_b32_dpp v43, v41 quad_perm:[1,1,3,3] row_mask:0xf bank_mask:0xf
s_mov_b32 exec_lo, 0x55555555
s_mov_b32 exec_hi, 0x55555555
global_store_dwordx4 v8, v[40:43], {P(sWS)} sc1
s_mov_b64 exec, -1
s_setprio 2
s_cmp_lg_u32 s{sL}, 0
s_cbranch_scc1 R_cand
s_waitcnt vmcnt(3)
s_branch H_P2""")
a(f"""R_cand:
s_lshl_b32 s41, s{sF}, 3
v_add_u32 v8, s41, v3
ds_read_b32 v8, v8 offset:{SC_KEYS}
s_lshl_b32 s41, s{sF}, 19
s_lshl_b32 s42, s{sB}, 11
s_add_u32 s41, s41, s42
s_add_u32 s41, s41, {WS_CAND}
v_lshl_add_u32 v2, v0, 4, s41
s_waitcnt lgkmcnt(0)
v_readfirstlane_b32 s41, v8
s_mov_b32 s{sCAND}, 0
s_cmp_lg_u32 s41, s{sMYK}
s_cbranch_scc1 R_nocand
s_mov_b32 s{sCAND}, 1
global_store_dwordx4 v2, {V(XN,4)}, {P(sWS)} sc1
global_store_dwordx4 v2, {V(X1,4)}, {P(sWS)} offset:1024 sc1
R_nocand:""")
TSF(8)
a(f"""s_cmp_lg_u32 s{sF}, 0
s_cbranch_scc1 R_tail
s_cmp_ge_u32 s{sW}, 4
s_cbranch_scc1 H_gather""")
def key_reduce():
    dpp_reduce([8], "v_max_u32")
    a(f"""s_lshl_b32 s41, s{sF}, 4
    s_lshl_b32 s42, s{sH}, 2
    s_add_u32 s41, s41, s42
    v_add_u32 v9, s41, v3
    v_add_u32 v8, 1, v8
    s_mov_b32 exec_lo, 0
    s_mov_b32 exec_hi, 0x80000000
    ds_write_b32 v9, v8 offset:{SC_GK}
    s_mov_b64 exec, -1""")
def key_poll():
    l1 = a.newlabel("K_p")
    a(f"""s_lshl_b32 s42, s{sF}, 15
    s_lshl_b32 s41, s{sH}, 13
    s_add_u32 s42, s42, s41
    s_add_u32 s42, s42, {WS_KEY}
    v_lshl_add_u32 v9, v0, 7, s42
    s_mov_b32 s{sCNT}, 0
    s_mov_b32 s44, 0
    s_mov_b64 vcc, -1
    {l1}:
    s_mov_b64 exec, {"vcc" if E("MSK", 1) else "-1"}
    global_load_dword v8, v9, {P(sWS)} sc1
    s_mov_b64 exec, -1
    s_waitcnt vmcnt(0)
    v_cmp_eq_u32 vcc, -1, v8""")
    if E("SPEC", 1):
        a(f"""s_cbranch_vccz K_sd
        v_add_u32 v12, 1, v8""")
        dpp_reduce([12], "v_max_u32")
        a(f"""v_readlane_b32 s41, v12, 63
        s_cmp_eq_u32 s41, s44
        s_cbranch_scc1 K_sn
        s_mov_b32 s44, s41
        s_sub_u32 s41, s41, 1
        s_andn2_b32 s41, 0x7f8, s41
        s_lshl_b32 s41, s41, 8
        s_add_u32 s41, s41, {WS_CAND + 0x80000}
        v_lshl_add_u32 v10, v0, 5, s41
        global_load_dword v11, v10, {P(sWS)} sc1
        K_sn:
        s_add_u32 s{sCNT}, s{sCNT}, 1
        s_cmp_lt_u32 s{sCNT}, {POLLMAX}
        s_cbranch_scc1 {l1}
        K_sd:""")
    else:
        poll_guard(l1, "s_cbranch_vccz", "K_pd", 1, E("KR1", 2))
    key_reduce()
def key_get(sleep):
    l2 = a.newlabel("K_g")
    a(f"""s_lshl_b32 s41, s{sF}, 4
    v_add_u32 v10, s41, v3
    s_mov_b32 s{sCNT}, 0
    {l2}:""")
    a(f"""ds_read_b128 v[16:19], v10 offset:{SC_GK}
    s_waitcnt lgkmcnt(0)
    v_min3_u32 v8, v16, v17, v18
    v_min_u32 v8, v8, v19
    v_cmp_eq_u32 vcc, 0, v8""")
    poll_guard(l2, "s_cbranch_vccz", "K_gd", 8, sleep)
    a(f"""v_max3_u32 v8, v16, v17, v18
    v_max_u32 v8, v8, v19
    v_readfirstlane_b32 s{sKEY}, v8
    s_sub_u32 s{sKEY}, s{sKEY}, 1
    s_and_b32 s41, s{sKEY}, 0x7ff
    s_sub_u32 s{sSEL}, 2047, s41""")
a("A_P2:")
TSS(22)
a(f"""s_lshl_b32 s42, s{sL}, 2
v_add_u32 v9, s42, v3""")
lds_inc(9, SC_XNC, 8)
a(f"""s_mul_i32 s41, s{sL}, {KVL}
s_mul_i32 s42, s{sH}, {64*KVS}
s_add_u32 s41, s41, s42
s_add_u32 s41, s41, {WS_KV + 4*KVS}
v_bfe_u32 v14, v0, 3, 2
v_mul_u32_u24 v14, {KVS}, v14
v_and_b32 v15, 7, v0
v_lshl_add_u32 v14, v15, 5, v14
v_lshrrev_b32 v11, 5, v0
v_lshl_add_u32 v14, v11, 4, v14
v_add_u32 v14, s41, v14
v_and_b32 v15, 31, v0
v_min_u32 v12, 17, v15
v_cmp_eq_u32 vcc, 20, v15
v_cndmask_b32 v15, v12, 16, vcc
v_mul_u32_u24 v11, {KVS}, v11
v_lshl_add_u32 v15, v15, 4, v11
s_add_u32 s41, s41, 256
v_add_u32 v15, s41, v15
s_mov_b32 s{sORD}, 0x65432108
s_mov_b32 s{sORD+1}, 0x7
s_lshl_b32 s41, s{sH}, 13
s_cmp_eq_u32 s{sL}, 0
s_cselect_b32 s{sWT}, 4, 15
s_cselect_b32 s42, {WS_FLAG}, 0
s_cselect_b32 s43, 0, {WS_KEY}
s_add_u32 s41, s41, s42
s_add_u32 s41, s41, s43
v_lshl_add_u32 v10, v0, 7, s41
""")
def kv_base(p):
    a(f"""s_xor_b32 s41, s{sX4}, {p}
    s_mul_i32 s41, s41, {8*KVS}
    s_add_u32 s0, s{sWS}, s41
    s_addc_u32 s1, s{sWS+1}, 0""")
def kv_one(p, i):
    if i % 3 == 0:
        k = i // 3
        a(f"global_load_dwordx4 {V(KK+8*p+4*k,4)}, v14, s[0:1] offset:{4*KVS*k-4*KVS} sc1")
    else:
        j = i - 1 - i // 3
        a(f"global_load_dwordx4 {V(VV+16*p+4*j,4)}, v15, s[0:1] offset:{2*KVS*j-4*KVS} sc1")
def kv_pair(p):
    kv_base(p)
    for i in range(6): kv_one(p, i)
def kv_check(p, younger):
    fr = [KK+8*p, KK+8*p+4] + [VV+16*p+4*i for i in range(4)]
    if os.environ.get("P0"):
        a(f"""s_cmp_lg_u32 s{sL}, {os.environ["P0"]}
        s_cbranch_scc1 C_d{p}
        s_memtime s[92:93]
        s_waitcnt lgkmcnt(0)
        s_mov_b32 s{76+2*p}, s92
        s_waitcnt vmcnt({younger})
        s_memtime s[92:93]
        s_waitcnt lgkmcnt(0)
        s_mov_b32 s{77+2*p}, s92
        C_d{p}:""")
    a(f"""s_waitcnt vmcnt({younger})
    C_r{p}:
    v_max3_u32 v12, v{fr[0]}, v{fr[1]}, v{fr[2]}
    v_max3_u32 v13, v{fr[3]}, v{fr[4]}, v{fr[5]}
    v_max_u32 v12, v12, v13
    v_cmp_eq_u32 vcc, -1, v12
    s_cbranch_vccnz C_x{p}
    C_o{p}:
    s_cmp_eq_u32 s3, {p}
    s_cbranch_scc1 C_m{p}
    C_b{p}:""")
def kv_tail(p):
    a(f"""C_x{p}:
    s_add_u32 s{sCNT}, s{sCNT}, 1
    s_cmp_ge_u32 s{sCNT}, {POLLMAX}
    s_cbranch_scc1 C_o{p}""")
    a("s_mov_b64 s[98:99], s[0:1]")
    kv_pair(p)
    a(f"""s_mov_b64 s[0:1], s[98:99]
    s_waitcnt vmcnt(0)
    s_branch C_r{p}
    C_m{p}:
    v_mov_b32 v12, s5
    s_mov_b64 exec, s[6:7]
    s_set_gpr_idx_on s4, gpr_idx(SRC0,DST)
    s_nop 1
    v_and_b32 v{VV+16*p}, v{VV+16*p}, v12
    s_nop 1
    s_set_gpr_idx_off
    s_mov_b64 exec, -1
    s_nop 1
    s_branch C_b{p}""")
DEP = int(os.environ.get('DEP', '3'))
a(f"""s_and_b32 s{sX4}, s{sPB}, {4 if E("ROT", 3) == 3 else 0}
s_lshr_b32 s41, s{sPB}, 3
s_and_b32 s41, s41, {E("ROT", 3)}
s_or_b32 s{sX4}, s{sX4}, s41
{"s_andn2_b32 s%d, 7, s%d" % (sX4, sB) if E("OWNL", 0) else "s_nop 0"}
s_mov_b32 s{sCNT}, 0
s_cmp_lg_u32 s{sL}, 0
s_cbranch_scc1 A_nfl
s_setprio 0
s_waitcnt vmcnt(0) lgkmcnt(0)
s_mul_i32 s{sTAG}, s{sE}, 0x9e3779b1
s_add_u32 s{sTAG}, s{sTAG}, 0x7f4a7c15
s_sleep {E("FS", 0)}
v_cmp_ne_u32 vcc, s{sTAG}, v13
s_cbranch_vccz A_nf2
A_flg:
global_load_dword v8, v10, {P(sWS)} sc1
s_waitcnt vmcnt(0)
v_cmp_ne_u32 vcc, s{sTAG}, v8""")
poll_guard("A_flg", "s_cbranch_vccz", "A_flgd", 1, 2)
a("s_branch A_nf2\nA_nfl:")
a(f"""s_mov_b32 s{sCNT}, 0
A_xw:
ds_read_b32 v12, v9 offset:{SC_XNC}
s_waitcnt lgkmcnt(0)
v_cmp_gt_u32 vcc, 8, v12
s_cbranch_vccz A_xwd
s_sleep 1
s_add_u32 s{sCNT}, s{sCNT}, 1
s_cmp_lt_u32 s{sCNT}, {E("XT", 5)}
s_cbranch_scc1 A_xw
A_xwd:""")
a(f"global_load_dword v8, v10, {P(sWS)} sc1\nA_nf2:")
TS(3)
for p in range(DEP): kv_pair(p)
TSS(23)
a(f"""s_mov_b32 s3, 15
s_cmp_eq_u32 s{sL}, 0
s_cbranch_scc1 A_go
s_mov_b32 s{sCNT}, 0
s_waitcnt vmcnt({6*DEP})
s_branch A_kc
A_kp:
s_mov_b64 exec, {"vcc" if E("MSK", 1) else "-1"}
global_load_dword v8, v10, {P(sWS)} sc1
s_mov_b64 exec, -1
s_waitcnt vmcnt(0)
A_kc:
v_cmp_eq_u32 vcc, -1, v8""")
poll_guard("A_kp", "s_cbranch_vccz", "A_kpd", 1, E("KR0", 1))
key_reduce()
key_get(0)
if XL:
    a(f"""s_bfe_u32 s41, s{sSEL}, 0x50003
    s_lshl_b32 s41, s41, 6
    s_lshr_b32 s42, s{sSEL}, 8
    s_lshl_b32 s42, s42, 3
    s_or_b32 s41, s41, s42
    s_and_b32 s42, s{sSEL}, 7
    s_or_b32 s101, s41, s42""")
else:
    a(f"s_mov_b32 s101, s{sSEL}")
a(f"""s_bfe_u32 s4, s101, 0x20007
s_lshl_b32 s4, s4, 2
s_bfe_u32 s42, s{sSEL}, 0x20001
s_add_u32 s4, s4, s42
s_bitcmp1_b32 s{sSEL}, 0
s_mov_b32 s5, 0xffff0000
s_cselect_b32 s5, 0xffff, s5
s_bitcmp1_b32 s101, 6
s_cselect_b32 s6, 0, -1
s_cselect_b32 s7, -1, 0
s_lshr_b32 s41, s101, 9
s_bfe_u32 s42, s101, 0x30003
s_xor_b32 s42, s42, s{sX4}
s_cmp_eq_u32 s41, s{sH}
s_cselect_b32 s3, s42, 15
s_xor_b32 s41, s{sSEL}, s{sTOK}
s_lshr_b32 s41, s41, 5
s_cbranch_scc1 A_go
s_lshl_b32 s41, s{sC}, 3
s_sub_u32 s41, s{sSEL}, s41
s_sub_u32 s41, s41, 8
s_bfe_u32 s{sWT}, s41, 0x30002
s_or_b32 s41, s{sWT}, 1
s_max_u32 s41, s41, {E('POS', 4)}
s_xor_b32 s42, s41, s{sWT}
s_mov_b32 s43, 0
s_lshl_b32 s41, s41, 2
s_add_u32 s41, s41, 4
s_lshl_b64 s[44:45], s[42:43], s41
s_xor_b64 {P(sORD)}, {P(sORD)}, s[44:45]
s_lshl_b32 s41, s{sWT}, 2
s_add_u32 s41, s41, 4
s_lshl_b64 s[44:45], s[42:43], s41
s_xor_b64 {P(sORD)}, {P(sORD)}, s[44:45]
A_go:
s_setprio 0
s_lshl_b32 s42, s{sL}, 2
v_add_u32 v9, s42, v3""")
def att_addr():
    a(f"""v_bfe_u32 v1, v0, 3, 2
    v_mul_u32_u24 v1, {QSTR}, v1
    v_and_b32 v2, 7, v0
    v_lshl_add_u32 v1, v2, 5, v1
    v_lshrrev_b32 v2, 5, v0
    v_lshl_add_u32 v1, v2, 4, v1
    v_add_u32 v{vQA}, {L_Q}, v1
    s_lshl_b32 s{sOPB}, s{sH}, 11
    s_add_u32 s{sOPB}, s{sOPB}, 1796
    v_mov_b32 v{vIDX}, 0xdddddddd
    v_and_b32 v0, 31, v0
    s_lshl_b32 s41, s{sH}, 7
    s_add_u32 s41, s41, {L_L}
    v_lshl_add_u32 v0, v0, 2, s41""")
att_addr()
a(f"s_mov_b32 s{sCNT}, 0")
kv_check(0, 6*(DEP-1))
TS(4)
a(f"""s_bfe_u32 s41, s{sORD}, 0x40004
s_and_b32 s43, s41, 4
s_add_u32 s43, s43, 4""")
lds_wait(9, SC_QC, 10, "s43", 0)
a(f"""s_lshl_b32 s2, s{sL}, 2
s_add_u32 s2, s2, {L_SC + SC_QC}
s_mul_i32 s41, s41, {4*QSTR}
v_add_u32 v{Q}, s41, v{vQA}
ds_read_b128 {V(Q,4)}, v{Q}
s_mov_b32 s{sCNT}, 0""")
for i in range(0, 10, 2): a(f"v_mov_b64 {V(ACC+i,2)}, 0")
TS(5)
TC(0)
def smf(vfrag, pb): a(f"v_smfmac_f32_32x32x32_bf16 {V(ACC,16)}, {V(VV+4*vfrag,4)}, {V(pb,8)}, v{vIDX}")
def ex(base, lo, hi):
    for i in range(lo, hi): a(f"v_exp_f32 v{base+i}, v{base+i}")
def flush():
    for r in range(8): a(f"ds_write_addtid_b32 v{ACC+r} offset:{L_SLOT - 1796 + 256*r}")
    a(f"ds_write_b32 v{vOA}, v{ACC+8}")
def flush_pre():
    a(f"""s_lshl_b32 s42, s41, 13
    s_add_u32 m0, s42, s{sOPB}
    v_lshl_add_u32 v{vOA}, s41, 9, v0""")
a(f"""s_waitcnt lgkmcnt(0)
v_mfma_f32_32x32x16_bf16 {V(S0,16)}, {V(KK,4)}, {V(Q,4)}, 0""")
NT = 16
QIN = E("QIN", 0)
def qwait():
    a(f"""v_mov_b32 v14, {L_SC}
    s_lshl_b32 s42, 4, s{sL}""")
    lds_wait(14, SC_QFIX, 15, "s42", 1)
    a(f"s_mov_b32 s{sWT}, 15")
def att_pass(first):
    for kt in range(NT):
        cur, oth = (S0, S1) if kt % 2 == 0 else (S1, S0)
        lp = kt//2 + DEP
        ld = first and lp < 8
        def L(i):
            if ld: kv_one(lp, 3*(kt & 1) + i)
        if ld and kt % 2 == 0: kv_base(lp)
        ex(cur, 0, 2)
        if not (first and kt == 0): smf((2*kt - 1) % (2*NT), oth + 8)
        L(0)
        ex(cur, 2, 5)
        if kt == NT-1: a("s_waitcnt lgkmcnt(0)")
        if first and kt % 2 == 1 and kt < NT-1:
            p = (kt+1)//2
            kv_check(p, (6*(lp - p) - 2) if ld else 6*(7 - p))
        a(f"v_mfma_f32_32x32x16_bf16 {V(oth,16)}, {V(KK+4*((kt+1)%NT),4)}, {V(Q,4)}, 0")
        if first and kt == NT-3:
            a(f"""v_mov_b32 v13, s2
            ds_read_b32 v13, v13""")
        if first and kt == NT-2:
            a(f"""s_waitcnt lgkmcnt(0)
            v_cmp_gt_u32 vcc, 8, v13
            s_cbranch_vccnz A_q8
            A_q8b:""")
        if kt == NT-2:
            a(f"s_bfe_u32 s41, s{sORD}, 0x40008")
            if not first:
                a(f"""s_cmp_lg_u32 s41, s{sWT}
                s_cbranch_scc1 A_qback""") if QIN else a(f"""s_cmp_eq_u32 s41, s{sWT}
                s_cbranch_scc1 A_qwait""")
                if QIN: qwait()
                a("A_qback:")
            a(f"""s_mul_i32 s41, s41, {4*QSTR}
            v_add_u32 v{Q}, s41, v{vQA}
            ds_read_b128 {V(Q,4)}, v{Q}""")
        if kt == 0 and not first:
            a(f"s_and_b32 s41, s{sORD}, 15")
            flush_pre()
            ex(cur, 5, 9)
            flush()
            a(f"v_mfma_f32_32x32x8_f16 {V(ACC,16)}, {V(ZZ,2)}, {V(ZZ,2)}, 0")
            ex(cur, 9, 13)
            smf(0, cur)
            ex(cur, 13, 16)
        else:
            ex(cur, 5, 8)
            L(1)
            ex(cur, 8, 10)
            smf(2*kt, cur)
            ex(cur, 10, 13)
            L(2)
            ex(cur, 13, 16)
        if ld and lp == 7 and kt % 2 == 1:
            a(f"v_mov_b32 v12, {L_SC}")
            lds_inc(12, SC_KVD, 13)
att_pass(True)
a(f"""v_mov_b64 {V(ZZ,2)}, 0
s_lshr_b64 {P(sORD)}, {P(sORD)}, 4""")
if not os.environ.get('PP'): TS(12)
if TSON:
    a(f"""s_cmp_eq_u32 s{sL}, 0
    s_cselect_b32 s73, s{sCNT}, s73
    s_nop 0""")
if os.environ.get("AL"):
    a(".p2align 6")
    for _ in range(int(os.environ["AL"])): a("s_nop 0")
a("A_pass:")
if os.environ.get("PP"): a("s_memtime s[94:95]")
att_pass(False)
if os.environ.get("PP"):
    a(f"""s_cmp_lg_u32 s{sL}, {os.environ.get("PP")}
    s_cbranch_scc1 A_ppx""")
    for d, q in ((86, 87), (87, 88), (88, 74), (74, 70), (70, 71), (71, 62), (62, 94)): a(f"s_mov_b32 s{d}, s{q}")
    a("A_ppx:")
a(f"""s_lshr_b64 {P(sORD)}, {P(sORD)}, 4
s_cmp_gt_u32 s{sORD}, 15
s_cbranch_scc1 A_pass""")
smf(2*NT-1, S1 + 8)
if not QIN:
    a("s_branch A_fl\nA_qwait:")
    qwait()
    a("s_branch A_qback\nA_fl:")
a(f"s_and_b32 s41, s{sORD}, 15")
flush_pre()
flush()
TC(1)
TS(9)
a(f"""A_X:
v_mbcnt_lo_u32_b32 v0, -1, 0
v_mbcnt_hi_u32_b32 v0, -1, v0
s_waitcnt lgkmcnt(0)
s_barrier""")
TS(6)
a(f"""v_mov_b32 v9, {L_SC}
s_barrier
ds_read_b32 v9, v9 offset:{SC_BAD}
s_lshl_b32 s98, s{sH}, 13
s_add_u32 s98, s98, {L_WK1}
s_waitcnt lgkmcnt(0)
v_cmp_ne_u32 vcc, 0, v9
s_cbranch_vccnz A_slow
s_cmp_lg_u32 s{sL}, 0
s_cbranch_scc1 R_P4
v_mov_b64 v[28:29], -1
v_mov_b64 v[30:31], -1
s_lshl_b32 s41, s{sH}, 10
s_add_u32 s41, s41, {L_L}
v_lshl_add_u32 v2, v0, 4, s41
ds_write_b128 v2, v[28:31]""")
a(f"""R_P4:
s_mul_i32 s41, s{sW}, {RS}
s_add_u32 s41, s41, {L_ROW}
v_lshl_add_u32 v3, v0, 5, s41
s_waitcnt lgkmcnt(0)
s_barrier
ds_read_b128 v[8:11], v3
ds_read_b128 v[16:19], v3 offset:{8*RS}
ds_read_b128 v[12:15], v3 offset:16
ds_read_b128 v[20:23], v3 offset:{8*RS+16}
s_mov_b32 s{sF}, s{sL}
s_mov_b32 s{sSLOW}, 0
v_lshlrev_b32 v2, 4, v0
v_add_u32 v2, {L_X2S}, v2
ds_read_b128 {V(WR,4)}, v2 offset:{L_SC + SC_WR - L_X2S}
s_cmp_lg_u32 s{sSEL}, s{sTOK}
s_cbranch_scc1 R_nx
ds_read_b128 {V(XR,4)}, v2
s_waitcnt lgkmcnt(0)
R_nx:""")
a(f"""s_lshl_b32 s41, s{sL}, 2
s_or_b32 s41, s41, s{sW}
s_cmp_ge_u32 s41, 4
s_cbranch_scc1 R_nd""")
wkv_dma(2, 98)
a("R_nd:")
unpack(24, XR)
a("s_waitcnt lgkmcnt(0)")
TS(7)
pkadd(8, 8, 16, 8)
pkadd(8, 8, 24, 8)
ln(X_, D_, T_, XN)
a(f"""v_dot2_f32_bf16 v1, v{XN}, v{WR}, 0
v_dot2_f32_bf16 v1, v{XN+1}, v{WR+1}, v1
v_dot2_f32_bf16 v1, v{XN+2}, v{WR+2}, v1
v_dot2_f32_bf16 v1, v{XN+3}, v{WR+3}, v1""")
dpp_reduce([1])
key_make()
a(f"""s_cmp_lg_u32 s{sL}, 0
s_cbranch_scc1 R_lastl""")
pack(X1, X_)
pkadd(X_, D_, X_, 8)
pack(XR, X_)
a(f"""s_mov_b32 s{sL}, 1""")
key_pub()
a(f"""s_branch R_P1b
R_lastl:""")
pack(X1, X_)
key_pub()
pkadd(X_, D_, X_, 8)
pack(XR, X_)
a(f"""s_barrier
s_branch R_cand
R_tail:
s_lshl_b32 s41, s{sTOK}, 10
v_lshl_add_u32 v1, v0, 4, s41
s_cmp_lt_u32 s{sW}, {4 if E("ALATE", 0) else 0}
s_cbranch_scc1 R_noout
s_cmp_lg_u32 s{sCAND}, 0
s_cbranch_scc1 R_noout
global_store_dwordx4 v1, {V(XR,4)}, {P(sOUT)}{OUTF}
R_noout:
s_cmp_ge_u32 s{sW}, 4
s_cbranch_scc1 H_FF2""")
key_poll()
a(f"""s_cmp_eq_u32 s{sCAND}, 0
s_cbranch_scc1 {"R_st" if E("ALATE", 0) else "L_end"}""")
key_get(1)
a(f"""s_cmp_eq_u32 s{sSEL}, s{sTOK}
s_cbranch_scc1 L_end
R_st:
global_store_dwordx4 v1, {V(XR,4)}, {P(sOUT)}{OUTF}
s_branch L_end
""")
for p in range(8): kv_tail(p)
a("A_q8:\nv_mov_b32 v12, s2")
lds_wait(12, 0, 13, 8, 1)
a("s_branch A_q8b")

def qtr_addr():
    a(f"""v_lshrrev_b32 v12, 4, v0
    v_bfe_u32 v13, v0, 2, 2
    v_lshl_add_u32 v1, v12, 3, v13
    v_and_b32 v12, 1, v12
    v_lshl_add_u32 v12, v12, 2, v13
    s_lshl_b32 s41, s{sH}, 1
    v_xor_b32 v12, s41, v12
    v_and_b32 v13, 3, v0
    v_lshl_add_u32 v13, v12, 2, v13
    v_lshlrev_b32 v13, 3, v13
    v_lshl_add_u32 v1, v1, 8, v13""")
def coop(j):
    a(f"s_add_u32 m0, s4, {1024*j}")
    a(f"global_load_lds_dwordx4 v{50 + ((j>>1)&1)}, s[0:1]")
    a("s_add_u32 s0, s0, 4096\ns_addc_u32 s1, s1, 0")
a(f"""H_stage:
v_lshrrev_b32 v48, 2, v0
v_and_b32 v49, 3, v0
v_lshlrev_b32 v49, 4, v49
v_lshl_add_u32 v48, v48, 10, v49
s_lshl_b32 s41, s{sH}, 6
s_lshl_b32 s42, s{sC}, 8
s_add_u32 s41, s41, s42
v_add_u32 v48, s41, v48
s_lshl_b32 s5, s{sH}, 12
s_add_u32 s5, s5, {6*8192}""")
for q in range(4):
    a(f"""s_add_u32 s0, s{sWQ}, {32768*14 + 16384*q}
    s_addc_u32 s1, s{sWQ+1}, 0
    s_add_u32 m0, s5, {1024*q}
    global_load_lds_dwordx4 v48, s[0:1]""")
a(f"""v_lshrrev_b32 v49, 4, v0
v_lshlrev_b32 v50, 1, v49
v_xor_b32 v50, v50, v0
v_and_b32 v50, 15, v50
v_lshlrev_b32 v50, 4, v50
v_lshl_add_u32 v50, v49, 10, v50
v_add_u32 v50, s42, v50
v_xor_b32 v51, 128, v50
s_lshl_b32 s41, s{sH}, 1
s_add_u32 s41, s41, 8
s_lshl_b32 s4, s41, 13
s_lshl_b32 s41, s41, 15
s_add_u32 s0, s{sWQ}, s41
s_addc_u32 s1, s{sWQ+1}, 0
s_cmp_eq_u32 s{sH}, 3
s_cbranch_scc1 H_c3""")
for j in range(16): coop(j)
a(f"""s_branch H_c4
H_c3:
s_setprio 3
s_lshl_b32 s41, s{sPB}, 7
s_add_u32 s41, s41, {WS_FLAG}
v_mov_b32 v1, s41
v_mov_b32 v3, {L_SC}
s_waitcnt lgkmcnt(0)
s_mul_i32 s{sTAG}, s{sE}, 0x9e3779b1
s_add_u32 s{sTAG}, s{sTAG}, 0x7f4a7c15
v_mov_b32 v2, s{sTAG}
s_waitcnt vmcnt(0)
s_mov_b64 exec, 1
global_store_dword v1, v2, {P(sWS)} sc1
s_mov_b64 exec, -1""")
a("s_setprio 1\nH_c4:")
a(f"""v_lshrrev_b32 v12, 4, v0
v_bfe_u32 v13, v0, 2, 2
v_lshl_add_u32 v1, v12, 3, v13
v_and_b32 v13, 3, v0
v_lshlrev_b32 v13, 3, v13
v_lshl_add_u32 v1, v1, 6, v13
v_add_u32 v1, s5, v1
v_mov_b32 v3, {L_SC}
s_waitcnt lgkmcnt(0)
s_mul_i32 s{sTAG}, s{sE}, 0x9e3779b1
s_add_u32 s{sTAG}, s{sTAG}, 0x7f4a7c15""")
TSS(18)
a("s_waitcnt vmcnt(16)")
for k in range(2):
    for f in range(2):
        for hf in range(2): a(f"ds_read_b64_tr_b16 {V(WQR+48+8*k+4*f+2*hf,2)}, v1 offset:{k*2048 + 256*hf + 32*f}")
lds_inc(3, SC_C2, 8)
a(f"""s_cmp_eq_u32 s{sH}, 3
s_cbranch_scc1 H_c5
s_lshl_b32 s4, s{sH}, 14
s_lshl_b32 s41, s{sH}, 16
s_add_u32 s0, s{sWQ}, s41
s_addc_u32 s1, s{sWQ+1}, 0""")
for j in range(16): coop(j)
a("H_c5:")
TSS(19)
lds_wait(3, SC_C2, 8, 4, 0)
a(f"""s_lshl_b32 s41, s{sH}, 14
s_add_u32 s41, s41, {6*32768}
s_add_u32 s0, s{sWQ}, s41
s_addc_u32 s1, s{sWQ+1}, 0
s_mov_b32 s4, s5""")
for j in range(4): coop(j)
a(f"s_add_u32 s44, s{sH}, 16")
pos2tok(41, 44)
a(f"""s_lshl_b32 s41, s41, 10
s_add_u32 s41, s41, 2048
v_lshl_add_u32 v1, v0, 4, s41
global_load_dwordx4 {V(FOR,4)}, v1, {P(sX)} offset:-2048
global_load_dwordx4 {V(FOR+4,4)}, v1, {P(sX)} offset:2048
s_cmp_lg_u32 s{sW}, 6
s_cbranch_scc1 H_st0
v_lshlrev_b32 v1, 4, v0
v_add_u32 v1, {L_SC + SC_WR}, v1
ds_write_b128 v1, v[44:47]
H_st0:
s_cmp_eq_u32 s{sW}, 7
s_cbranch_scc1 H_fin
s_waitcnt vmcnt(2)""")
TSA(4)
a("s_setprio 2\ns_branch H_P2")
a(f"""H_gather:
v_xor_b32 v12, s{sH}, v0
v_xor_b32 v13, 4, v12
v_xor_b32 v14, 8, v12
v_xor_b32 v15, 12, v12
s_lshl_b32 s41, s{sH}, 10
s_add_u32 s41, s41, {L_XN}
v_lshl_add_u32 v12, v12, 4, s41
v_lshl_add_u32 v13, v13, 4, s41
v_lshl_add_u32 v14, v14, 4, s41
v_lshl_add_u32 v15, v15, 4, s41
s_mov_b32 s{sCNT}, 0
s_sleep {E('GS', 8)}
H_xg:""")
gloads(8)
a(f"""s_waitcnt vmcnt(0)
v_max3_u32 v16, v40, v44, v48
v_max3_u32 v17, v52, v56, v60
v_max_u32 v16, v16, v17
v_cmp_eq_u32 vcc, -1, v16""")
poll_guard("H_xg", "s_cbranch_vccz", "H_xgd", 1, E("GR", 0))
for i in range(6): a(f"ds_write_b128 v{12+(i&3)}, {V(40+4*i,4)} offset:{4096*i}")
a(f"""H_P2:
s_lshl_b32 s42, s{sL}, 2
s_add_u32 s42, s42, {L_SC}
v_mov_b32 v3, s42""")
lds_inc(3, SC_XNC, 12)
a(f"""v_and_b32 v1, 15, v0
v_lshrrev_b32 v2, 4, v0
v_xor_b32 v8, v2, v1
v_lshlrev_b32 v1, 10, v1
v_add_u32 v1, {L_XN}, v1
v_xor_b32 v9, 4, v8
v_xor_b32 v10, 8, v8
v_xor_b32 v11, 12, v8
v_lshl_add_u32 v8, v8, 4, v1
v_lshl_add_u32 v9, v9, 4, v1
v_lshl_add_u32 v10, v10, 4, v1
v_lshl_add_u32 v11, v11, 4, v1
v_and_b32 v2, 15, v0
v_mul_u32_u24 v2, {QSTR}, v2
v_lshrrev_b32 v12, 4, v0
v_lshl_add_u32 v2, v12, 3, v2
s_lshl_b32 s41, s{sH}, 6
s_add_u32 s41, s41, {L_Q}
v_add_u32 v2, s41, v2
s_mov_b32 s{sQM}, 0""")
qtr_addr()
a(f"""s_cmp_lg_u32 s{sL}, 0
s_cbranch_scc1 H_q0""")
lds_inc(3, SC_C2, 12)
lds_wait(3, SC_C2, 12, 8, 0)
a(f"""v_add_u32 v12, 0x10000, v1
v_xor_b32 v13, 32, v12""")
for k in range(6):
    for f in range(2):
        for hf in range(2): a(f"ds_read_b64_tr_b16 {V(WQR+8*k+4*f+2*hf,2)}, v{12+f} offset:{k*8192 + 1024*hf}")
    if k in (2, 4): a("s_waitcnt lgkmcnt(4)")
a("s_waitcnt lgkmcnt(0)\nH_q0:")
lds_wait(3, SC_XNC, 12, 8, 0)
TS(3)
a("H_qp:")
order = [14, 0, 15, 1, 8, 2, 9, 3, 10, 4, 11, 5, 12, 6, 13, 7]
def qbuf(idx): return (20 + 12*((idx//2) % 3)) if order[idx] < 8 else (56 + 4*((idx//2) % 2))
def qread(idx):
    s = order[idx]; b = qbuf(idx)
    a(f"ds_read_b128 {V(b,4)}, v{8+(s&3)} offset:{256*(s>>2)}")
    if s < 8:
        for hf in range(2): a(f"ds_read_b64_tr_b16 {V(b+4+2*hf,2)}, v1 offset:{8192*s + 1024*hf}")
        a(f"v_xor_b32 v{b+10}, 32, v1")
        for hf in range(2): a(f"ds_read_b64_tr_b16 {V(b+8+2*hf,2)}, v{b+10} offset:{8192*s + 1024*hf}")
qcnt = lambda i: 5 if order[i] < 8 else 1
AH = 3
for i in range(AH): qread(i)
for idx in range(16):
    if idx + AH < 16: qread(idx+AH)
    a(f"s_waitcnt lgkmcnt({sum(qcnt(j) for j in range(idx+1, min(idx+AH+1, 16)))})")
    s = order[idx]; b = qbuf(idx)
    for f in range(2):
        A_ = V(b+4+4*f,4) if s < 8 else V(WQR+8*(s-8)+4*f,4)
        d = V(12+4*f,4)
        a(f"v_mfma_f32_16x16x32_bf16 {d}, {A_}, {V(b,4)}, {'0' if idx==0 else d}")
a(f"""s_setprio 2
s_mov_b32 s42, {QSCALE}""")
for i in range(4): a(f"v_add_u32 v{8+i}, 0x4000, v{8+i}")
for i in range(0, 8, 2): a(f"v_pk_mul_f32 {V(12+i,2)}, {V(12+i,2)}, s[42:43] op_sel_hi:[1,0]")
pack(20, 12, 4)
a(f"""ds_write_b64 v2, v[20:21]
ds_write_b64 v2, v[22:23] offset:32""")
lds_inc(3, SC_QC, 12)
a(f"""s_cmp_eq_u32 s{sQM}, 2
s_cbranch_scc1 H_fx3
s_cmp_eq_u32 s{sQM}, 1
s_cbranch_scc1 H_qd""")
TS(2)
a(f"""v_add_u32 v2, {16*QSTR}, v2
s_mov_b32 s{sQM}, 1
s_cmp_lg_u32 s{sL}, 0
s_cbranch_scc1 H_q2
s_setprio {HLNP}
s_mov_b32 s44, 0
s_mov_b32 s45, 2
s_add_u32 s3, s{sH}, 16
s_waitcnt vmcnt(0)
s_branch S_fl
H_ret:""")
lds_inc(3, SC_XN2, 12)
lds_wait(3, SC_XN2, 12, 4, 1)
a(f"""H_q2:
s_setprio 0
s_branch H_qp
H_qd:""")
a(f"""s_cmp_eq_u32 s{sL}, 0
s_cbranch_scc1 H_prep
v_mov_b32 v3, {L_SC}
s_branch H_FFN
H_prep:""")
lds_wait(3, SC_KVD, 12, 4, 4)
a(f"""s_min_u32 s43, s{sB}, 223
s_lshl_b32 s43, s43, 2
s_add_u32 s43, s43, s{sH}
s_and_b32 s44, s43, 31
s_lshr_b32 s45, s43, 5
v_lshrrev_b32 v2, 3, v0
v_and_b32 v3, 7, v0
s_mul_i32 s41, s44, {8*7168}
s_lshl_b32 s42, s45, 7
s_add_u32 s41, s41, s42
v_mul_u32_u24 v1, 7168, v2
v_lshl_add_u32 v1, v3, 4, v1
v_add_u32 v1, s41, v1
global_load_dwordx4 {V(GU,4)}, v1, {P(sWG)}
global_load_dwordx4 {V(GU+4,4)}, v1, {P(sWG)} offset:3584
global_load_dwordx4 {V(GU+8,4)}, v1, {P(sWU)}
global_load_dwordx4 {V(GU+12,4)}, v1, {P(sWU)} offset:3584
s_lshl_b32 s41, s45, 16
s_lshl_b32 s42, s44, 5
s_add_u32 s41, s41, s42
s_add_u32 s41, s41, 4096
v_lshlrev_b32 v1, 13, v2
v_lshl_add_u32 v1, v3, 2, v1
v_add_u32 v1, s41, v1""")
for r in range(8): a(f"global_load_dword v{WDn + 4*(r&1) + (r>>1)}, v1, {P(sWD)} offset:{1024*r-4096}")
a(f"""v_lshrrev_b32 v9, 4, v0
v_lshlrev_b32 v8, 1, v9
v_xor_b32 v8, v8, v0
v_and_b32 v8, 15, v8
v_lshlrev_b32 v8, 4, v8
v_lshl_add_u32 v8, v9, 10, v8
v_bfe_u32 v10, v0, 2, 2
v_lshl_add_u32 v16, v9, 3, v10
v_and_b32 v9, 1, v9
v_lshl_add_u32 v9, v9, 2, v10
v_and_b32 v10, 3, v0
v_lshl_add_u32 v10, v9, 2, v10
v_lshlrev_b32 v10, 3, v10
v_lshl_add_u32 v16, v16, 8, v10
v_xor_b32 v9, 128, v8
s_lshl_b32 s4, s{sH}, 13
s_add_u32 s4, s4, {L_SLOT + 32768}
v_add_u32 v16, s4, v16
s_lshl_b32 s41, s{sC}, 17
s_lshl_b32 s42, s{sH}, 8
s_add_u32 s41, s41, s42
s_add_u32 s0, s{sWO}, s41
s_addc_u32 s1, s{sWO+1}, 0""")
for f in range(1, 8): a(f"v_xor_b32 v{16+f}, {32*f}, v16")
for s in range(4):
    for j in range(8):
        a(f"""s_add_u32 m0, s4, {1024*j}
        global_load_lds_dwordx4 v{8 + ((j>>1)&1)}, s[0:1]
        s_add_u32 s0, s0, 4096
        s_addc_u32 s1, s1, 0""")
    a("s_waitcnt vmcnt(0)")
    for f in range(8):
        for hf in range(2): a(f"ds_read_b64_tr_b16 {V(WO+32*s+4*f+2*hf,2)}, v{16+f} offset:{1024*hf}")
        if f == 5: a("s_waitcnt lgkmcnt(4)")
    a("s_waitcnt lgkmcnt(0)")
a(f"v_mov_b32 v1, {L_SC}")
lds_inc(1, SC_QFIX, 8)
a(f"""v_mov_b64 v[8:9], -1
v_mov_b64 v[10:11], -1
s_lshl_b32 s41, s{sB}, 13
s_lshl_b32 s42, s{sH}, 11
s_add_u32 s41, s41, s42
s_add_u32 s41, s41, {WS_XN}
v_lshl_add_u32 v1, v0, 4, s41
global_store_dwordx4 v1, v[8:11], {P(sWS)} sc1
global_store_dwordx4 v1, v[8:11], {P(sWS)} offset:1024 sc1
s_lshr_b32 s41, s{sH}, 1
s_lshl_b32 s41, s41, 19
s_and_b32 s42, s{sH}, 1
s_lshl_b32 s42, s42, 10
s_add_u32 s41, s41, s42
s_lshl_b32 s42, s{sB}, 11
s_add_u32 s41, s41, s42
s_add_u32 s41, s41, {WS_CAND}
v_lshl_add_u32 v1, v0, 4, s41
global_store_dwordx4 v1, v[8:11], {P(sWS)} sc1
s_cmp_ge_u32 s{sB}, 224
s_cbranch_scc1 H_bursts
s_setprio {E('FP', 0)}""")
for base in (GU, GU+8, WDn):
    for i in range(4): tr_pair(base+i, base+4+i, 12)
a(f"""s_setprio 2
v_lshlrev_b32 v2, 4, v2
v_lshl_add_u32 v2, v3, 15, v2
s_lshl_b32 s41, s45, 18
s_lshr_b32 s42, s44, 3
s_lshl_b32 s42, s42, 13
s_add_u32 s41, s41, s42
s_and_b32 s42, s44, 7
s_lshl_b32 s42, s42, 7
s_add_u32 s41, s41, s42
s_add_u32 s41, s41, {WS_FS}
v_add_u32 v1, s41, v2""")
for i in range(4): a(f"global_store_dwordx4 v1, {V(GU+4*i,4)}, {P(sWS)} offset:{1024*i} sc1")
a(f"""s_lshl_b32 s41, s44, 18
s_lshr_b32 s42, s45, 3
s_lshl_b32 s42, s42, 13
s_add_u32 s41, s41, s42
s_and_b32 s42, s45, 7
s_lshl_b32 s42, s42, 7
s_add_u32 s41, s41, s42
s_add_u32 s41, s41, {WS_FS + 4096}
v_add_u32 v1, s41, v2""")
for i in range(2): a(f"global_store_dwordx4 v1, {V(WDn+4*i,4)}, {P(sWS)} offset:{1024*i} sc1")
a("H_bursts:")
TS(5)
OF, AC = 8, 32
sSB, sLB = 44, 45
a(f"""s_lshr_b32 s41, s{sH}, 1
s_and_b32 s42, s{sH}, 1
s_lshl_b32 s{sSB}, s41, 13
s_lshl_b32 s43, s42, 10
s_add_u32 s{sSB}, s{sSB}, s43
s_add_u32 s{sSB}, s{sSB}, {L_SLOT}
s_lshl_b32 s{sLB}, s41, 9
s_add_u32 s{sLB}, s{sLB}, {L_L}
v_bfe_u32 v3, v0, 3, 2
v_mul_u32_u24 v3, {QSTR}, v3
v_and_b32 v8, 7, v0
v_lshl_add_u32 v3, v8, 5, v3
s_mul_i32 s43, s41, {4*QSTR}
s_add_u32 s43, s43, {L_O}
v_add_u32 v3, s43, v3
v_and_b32 v2, 15, v0
v_mul_u32_u24 v2, {QSTR}, v2
v_lshrrev_b32 v8, 4, v0
v_lshl_add_u32 v2, v8, 4, v2
v_add_u32 v2, {L_O}, v2
s_mul_i32 s{sOPB}, s{sL}, {OPL}
s_mov_b32 s98, 0x00ff00ff
s_mov_b32 s99, 0x00ff00ff
s_mul_i32 s41, s{sH}, 12288
s_add_u32 s{sOPB}, s{sOPB}, s41
s_add_u32 s{sOPB}, s{sOPB}, {WS_OP}
s_add_u32 s{sOTAG}, s{sTAG}, s{sL}
s_add_u32 s{sOTAG}, s{sOTAG}, 1""")
def corr(g):
    l0 = a.newlabel("H_c0"); l1 = a.newlabel("H_c1")
    a(f"""s_andn2_b32 s41, s{sL}, s{sSLOW}
    s_cbranch_scc0 {l0}
    v_lshrrev_b32 v28, 5, v0
    s_lshl_b32 s41, s{sH}, 5
    s_add_u32 s41, s41, {L_VS}
    v_lshl_add_u32 v28, v28, 4, s41
    ds_read_b128 v[8:11], v3 offset:{L_Q - L_O + 8*QSTR*g}
    ds_read_b128 v[12:15], v3 offset:{L_Q - L_O + 8*QSTR*g + 16}
    ds_read_b128 v[28:31], v28
    s_waitcnt lgkmcnt(1)
    v_dot2_f32_bf16 v1, v8, s{sKSL[0]}, 0""")
    for i in range(1, 8): a(f"v_dot2_f32_bf16 v1, v{8+i}, s{sKSL[i]}, v1")
    a(f"""v_exp_f32 v1, v1
    s_waitcnt lgkmcnt(0)
    v_and_b32 v1, 0xffff0000, v1
    v_pk_mul_f32 v[28:29], v[28:29], v[0:1] op_sel:[0,1] op_sel_hi:[1,1]
    v_pk_mul_f32 v[30:31], v[30:31], v[0:1] op_sel:[0,1] op_sel_hi:[1,1]
    s_branch {l1}
    {l0}:
    v_mov_b32 v1, 0
    v_mov_b64 v[28:29], 0
    v_mov_b64 v[30:31], 0
    {l1}:""")
def norm_pre(g):
    a(f"""v_and_b32 v10, 31, v0
    s_add_u32 s41, s{sLB}, {1024*g}
    v_lshl_add_u32 v10, v10, 2, s41
    v_lshl_add_u32 v26, v0, 2, s{sSB}""")
def normalize(g, sleep):
    if sleep:
        lb = a.newlabel("H_lw")
        a(f"""v_lshl_add_u32 v13, v0, 3, s{sLB}
        s_mov_b32 s{sCNT}, 0
        {lb}:
        ds_read_b32 v8, v13 offset:{1024*g}
        s_waitcnt lgkmcnt(0)
        v_cmp_eq_u32 vcc, -1, v8""")
        poll_guard(lb, "s_cbranch_vccz", "H_lwd", 4, sleep)
    a(f"""ds_read2_b32 v[8:9], v10 offset0:0 offset1:32
    ds_read2_b32 v[10:11], v10 offset0:64 offset1:96""")
    for w in range(4):
        for hf in range(2): a(f"ds_read2st64_b32 {V(12+4*w+2*hf,2)}, v26 offset0:{64*g + 8*w + 2*hf} offset1:{64*g + 8*w + 2*hf + 1}")
    a(f"""s_waitcnt lgkmcnt(8)
    v_pk_add_f32 v[8:9], v[8:9], v[10:11]
    v_add_f32 v8, v8, v9
    v_add_f32 v8, v8, v1
    v_rcp_f32 v9, v8
    s_waitcnt lgkmcnt(4)""")
    pkadd(12, 12, 16, 4)
    pkadd(12, 12, 28, 4)
    a(f"""v_lshrrev_b32 v11, 5, v0
    s_and_b32 s41, s{sH}, 1
    s_lshl_b32 s41, s41, 4
    v_lshl_add_u32 v11, v11, 3, v3
    s_waitcnt lgkmcnt(0)""")
    pkadd(20, 20, 24, 4)
    a("v_add_u32 v11, s41, v11")
    pkadd(12, 12, 20, 4)
    lb = a.newlabel("H_nb")
    a(f"""v_pk_mul_f32 v[12:13], v[12:13], v[8:9] op_sel:[0,1] op_sel_hi:[1,1]
    v_pk_mul_f32 v[14:15], v[14:15], v[8:9] op_sel:[0,1] op_sel_hi:[1,1]
    v_cvt_pk_bf16_f32 v16, v12, v13
    v_cvt_pk_bf16_f32 v17, v14, v15
    ds_write_b64 v11, v[16:17] offset:{8*QSTR*g}
    v_pk_add_f32 v[12:13], v[12:13], v[14:15]
    v_add_f32 v12, v12, v13
    v_fma_f32 v8, v12, 0, v8
    v_subrev_u32 v8, {(127-80)<<23}, v8
    v_cmp_lt_u32 vcc, {(0 if (FORCE>>g)&1 else (180<<23))}, v8
    s_cbranch_vccz {lb}
    s_cmp_lg_u32 s{sSLOW}, 0
    s_cbranch_scc1 {lb}
    v_mov_b32 v8, {L_SC}
    v_mov_b32 v9, 1
    ds_write_b32 v8, v9 offset:{SC_BAD}
    {lb}:""")
def hsync(idx, bad=True):
    lb = a.newlabel("H_hs")
    a(f"""s_lshl_b32 s41, s{sL}, 4
    s_add_u32 s41, s41, {L_SC}
    v_mov_b32 v8, s41
    v_mov_b32 v11, {L_SC}""")
    lds_inc(8, SC_OCNT + 4*idx, 9)
    lds_wait(8, SC_OCNT + 4*idx, 9, 4, 3)
    if bad:
        a(f"""ds_read_b32 v9, v11 offset:{SC_BAD}
        s_waitcnt lgkmcnt(0)
        v_cmp_ne_u32 vcc, 0, v9
        s_cbranch_vccnz H_toX""")
def oproj(first):
    if first: a("s_setprio 0")
    for s in range(4):
        a(f"s_waitcnt lgkmcnt({3-s})")
        for f in range(8):
            a(f"v_mfma_f32_16x16x32_bf16 {V(AC+4*f,4)}, {V(OF+4*s,4)}, {V(WO+32*s+4*f,4)}, {'0' if (s==0 and first) else V(AC+4*f,4)}")
def osend(bi):
    if bi == 0 or B1P0: a("s_setprio 0")
    a("s_waitcnt lgkmcnt(0)")
    def st(f):
        if bi == 1: a("s_mov_b64 exec, s[98:99]")
        a(f"global_store_dwordx4 v24, {V(AC+4*f,4)}, {P(sWS)} offset:{(1024*f - 4096) if bi == 0 else (1024*(f&3) + 128*(f>>2))} sc1")
        if bi == 1: a("s_mov_b64 exec, -1")
    for f in range(8):
        for s in range(4):
            a(f"v_mfma_f32_16x16x32_bf16 {V(AC+4*f,4)}, {V(WO+32*s+4*f,4)}, {V(OF+4*s,4)}, {'0' if s==0 else V(AC+4*f,4)}")
        if f >= 2: st(f-2)
    st(6); st(7)
    if bi == 0 or B1P0: a("s_setprio 2")
def flag_poll(vaddr, sleep):
    lp = a.newlabel("H_fp")
    a(f"""s_mov_b32 s{sCNT}, 0
    {lp}:""")
    a(f"""global_load_dword v8, v{vaddr}, {P(sWS)} sc1
    s_waitcnt vmcnt(0)
    v_cmp_ne_u32 vcc, s{sOTAG}, v8""")
    poll_guard(lp, "s_cbranch_vccz", "H_fpd", 1, sleep)
def dstbase(sd, g, off):
    a(f"""s_add_u32 s{sd}, s{sC}, {1 + g}
    s_and_b32 s{sd}, s{sd}, 3
    s_andn2_b32 s43, s{sB}, 3
    s_add_u32 s{sd}, s{sd}, s43
    s_mul_i32 s{sd}, s{sd}, 49152
    s_add_u32 s{sd}, s{sd}, s{sOPB}
    s_add_u32 s{sd}, s{sd}, {off}""")
def send_addr(bi):
    if bi == 0:
        dstbase(41, 0, 4096); dstbase(42, 1, 4096)
        a(f"""v_lshl_add_u32 v24, v0, 4, s42
        s_mov_b64 exec, s[98:99]
        v_lshl_add_u32 v24, v0, 4, s41
        s_mov_b64 exec, -1""")
    else:
        dstbase(41, 2, 8192)
        a("v_lshl_add_u32 v24, v0, 4, s41")
send_addr(1)
a(f"""v_mov_b64 v[8:9], -1
v_mov_b64 v[10:11], -1""")
for f in range(4): a(f"global_store_dwordx4 v24, v[8:11], {P(sWS)} offset:{1024*f} sc1")
if E("NP", 0): a("s_setprio 0")
corr(0); norm_pre(0); normalize(0, 16); corr(1); norm_pre(1)
if E("NP", 0): a("s_setprio 2")
normalize(1, 8)
hsync(0)
for s_ in range(4): a(f"ds_read_b128 {V(OF+4*s_,4)}, v2 offset:{64*s_}")
send_addr(0)
def send_flags():
    a(f"""s_add_u32 s41, s{sC}, 1
    v_add_u32 v25, s41, v0
    v_and_b32 v25, 3, v25
    v_lshlrev_b32 v25, 11, v25
    v_lshl_add_u32 v25, v0, 9, v25
    s_andn2_b32 s43, s{sB}, 3
    s_lshl_b32 s41, s43, 11
    s_lshl_b32 s42, s{sH}, 7
    s_add_u32 s41, s41, s42
    s_add_u32 s41, s41, {WS_OPF}
    v_add_u32 v25, s41, v25
    v_mov_b32 v27, s{sOTAG}
    s_waitcnt vmcnt(0)
    s_mov_b64 exec, 7
    global_store_dword v25, v27, {P(sWS)} sc1
    s_mov_b64 exec, -1""")
a("s_waitcnt vmcnt(0)")
osend(0)
a(f"""v_lshlrev_b32 v13, 4, v0
v_add_u32 v13, {L_L + 2048}, v13
ds_read_b32 v8, v13
s_mov_b32 s{sCAND}, 2
s_waitcnt lgkmcnt(0)
v_cmp_eq_u32 vcc, -1, v8
s_cbranch_vccz H_b1""")
send_flags()
TS(6)
def recv01(nonblock=False):
    a(f"""s_mul_i32 s41, s{sB}, 49152
    s_add_u32 s41, s41, s{sOPB}
    v_lshl_add_u32 v24, v0, 4, s41
    v_add_u32 v26, 4096, v24
    s_lshl_b32 s41, s{sB}, 11
    s_lshl_b32 s42, s{sH}, 7
    s_add_u32 s41, s41, s42
    s_add_u32 s41, s41, {WS_OPF}
    v_min_u32 v25, 2, v0
    v_lshl_add_u32 v25, v25, 9, s41""")
    if nonblock:
        a(f"""s_mov_b32 s{sCNT}, 0
        H_nbp:
        ds_read_b32 v8, v13
        s_waitcnt lgkmcnt(0)
        v_cmp_eq_u32 vcc, -1, v8
        s_cbranch_vccz H_b1
        s_add_u32 s{sCNT}, s{sCNT}, 1
        s_cmp_ge_u32 s{sCNT}, {POLLMAX}
        s_cbranch_scc1 H_b1
        s_sleep 4
        global_load_dword v8, v25, {P(sWS)} sc1
        s_waitcnt vmcnt(0)
        v_cmp_ne_u32 vcc, s{sOTAG}, v8
        s_cbranch_vccnz H_nbp""")
    else:
        flag_poll(25, 2)
    if nonblock:
        a(f"""s_lshl_b32 s41, s{sH}, 13
        s_add_u32 s41, s41, {L_SLOT}""")
        for f in range(8):
            if f % 4 == 0: a(f"s_add_u32 m0, s41, {1024*f}")
            a(f"global_load_lds_dwordx4 v{24 + 2*(f>>2)}, {P(sWS)} offset:{1024*(f&3)} sc1")
    else:
        for f in range(8): a(f"global_load_dwordx4 {V(AC+4*f,4)}, v26, {P(sWS)} offset:{1024*f - 4096} sc1")
a(f"s_mov_b32 s{sCAND}, 0")
recv01(True)
a(f"s_mov_b32 s{sCAND}, 1\nH_b1:")
corr(2); norm_pre(2); normalize(2, 4)
hsync(1)
for s_ in range(4): a(f"ds_read_b128 {V(OF+4*s_,4)}, v2 offset:{64*s_ + 16*QSTR}")
send_addr(1)
osend(1)
TS(9)
a(f"""s_cmp_eq_u32 s{sCAND}, 1
s_cbranch_scc1 H_r2
s_cmp_eq_u32 s{sCAND}, 0
s_cbranch_scc1 H_r1
s_mov_b32 s{sCAND}, 0""")
send_flags()
a("H_r1:")
recv01()
a(f"""H_r2:
s_mul_i32 s41, s{sB}, 49152
s_add_u32 s41, s41, s{sOPB}
s_add_u32 s41, s41, 8192
v_lshl_add_u32 v26, v0, 4, s41
s_cmp_lg_u32 s{sL}, 0
s_cbranch_scc1 H_npf
s_lshl_b32 s41, s{sH}, 12
v_lshl_add_u32 v8, v0, 6, s41
global_load_dword v28, v8, {P(sWK)}
global_load_dword v29, v8, {P(sWV)}
H_npf:
s_mov_b32 s{sCNT}, 0
s_cmp_eq_u32 s{sCAND}, 0
s_cbranch_scc1 H_p2
s_sleep {E("PS", 24)}
H_p2:""")
for f in range(4): a(f"global_load_dwordx4 {V(8+4*f,4)}, v26, {P(sWS)} offset:{1024*f} sc1")
a(f"""s_waitcnt vmcnt(0)
v_max3_u32 v24, v8, v12, v16
v_max_u32 v24, v24, v20
v_cmp_eq_u32 vcc, -1, v24""")
poll_guard("H_p2", "s_cbranch_vccz", "H_p2d", 1, 4)
a(f"""s_cmp_eq_u32 s{sCAND}, 0
s_cbranch_scc1 H_r3
s_lshl_b32 s41, s{sH}, 13
s_add_u32 s41, s41, {L_SLOT}
v_lshl_add_u32 v24, v0, 4, s41""")
for f in range(8): a(f"ds_read_b128 {V(AC+4*f,4)}, v24 offset:{1024*f}")
a("s_waitcnt lgkmcnt(0)\nH_r3:\ns_mov_b64 exec, s[98:99]")
pkadd(AC, AC, 8, 16)
a("s_not_b64 exec, s[98:99]")
pkadd(AC+16, AC+16, 8, 16)
a("s_mov_b64 exec, -1")
a(f"""s_cmp_lg_u32 s{sL}, 0
s_cbranch_scc1 H_nwf
""")
for g in range(3):
    a(f"s_add_u32 s6, s{sH}, {8*g}")
    pos2tok(41, 6)
    a(f"""s_lshl_b32 s41, s41, 10
    s_add_u32 s{3+g}, s41, {WS_XN + 2048}""")
a("H_nwf:")
TS(10)
a(f"""v_and_b32 v8, 8, v0
v_cmp_eq_u32 vcc, 0, v8
v_lshrrev_b32 v8, 4, v0
v_lshlrev_b32 v8, 4, v8
v_add_u32 v8, {L_SC + SC_ZERO - 24*QSTR}, v8
v_cndmask_b32 v2, v8, v2, vcc""")
corr(3)
norm_pre(3)
a("s_barrier")
normalize(3, 0)
a(f"""v_mov_b32 v24, {L_SC}
s_waitcnt lgkmcnt(0)
s_barrier
ds_read_b32 v24, v24 offset:{SC_BAD}""")
for s_ in range(4): a(f"ds_read_b128 {V(OF+4*s_,4)}, v2 offset:{64*s_ + 24*QSTR}")
a(f"""v_lshrrev_b32 v26, 4, v0
v_and_b32 v25, 15, v0
v_mul_u32_u24 v25, {RS}, v25
v_lshl_add_u32 v25, v26, 4, v25
s_lshl_b32 s41, s{sH}, 9
s_add_u32 s41, s41, {L_ROW}
v_add_u32 v1, s41, v25
s_waitcnt lgkmcnt(4)
v_cmp_ne_u32 vcc, 0, v24
s_cbranch_vccnz H_slow""")
def fm(f, s_): a(f"v_mfma_f32_16x16x32_bf16 {V(AC+4*f,4)}, {V(WO+32*s_+4*f,4)}, {V(OF+4*s_,4)}, {V(AC+4*f,4)}")
for s_ in range(4):
    a(f"s_waitcnt lgkmcnt({3-s_})")
    fm(0, s_); fm(1, s_)
for f in range(2, 8):
    for s_ in range(4): fm(f, s_)
    if f >= 3: a(f"ds_write_b128 v1, {V(AC+4*(f-3),4)} offset:{64*(f-3)}")
for f in (5, 6, 7): a(f"ds_write_b128 v1, {V(AC+4*f,4)} offset:{64*f}")
a("s_setprio 0\ns_branch R_P4")
a("H_FF2:")
for i in range(0, 24, 2): a(f"v_mov_b64 {V(GU+i,2)}, {V(64+i,2)}")
a(f"""H_FFN:
v_lshrrev_b32 v20, 4, v0
s_lshl_b32 s41, s{sH}, 6
s_add_u32 s41, s41, {L_SC + SC_FACC}
v_lshl_add_u32 v20, v20, 4, s41
v_and_b32 v22, 1, v0
v_bfe_u32 v21, v0, 1, 2
v_lshlrev_b32 v21, 2, v21
v_lshl_add_u32 v21, v22, 4, v21
v_add_u32 v21, {L_SC + SC_FACC}, v21
s_lshl_b32 s41, s{sJ}, 7
s_lshl_b32 s42, s{sF}, 15
s_add_u32 s41, s41, s42
s_add_u32 s41, s41, {WS_HY}
v_lshl_add_u32 v22, v0, 1, s41
v_mov_b32 v23, 1
v_lshrrev_b32 v24, 5, v0
s_lshl_b32 s41, s{sH}, 3
s_add_u32 s41, s41, {L_SC + SC_DACC}
v_lshl_add_u32 v24, v24, 2, s41""")
key_get(E("KG", 0))
a(f"""s_cmp_lg_u32 s{sF}, 0
s_cbranch_scc1 H_nl""")
ffn_loads()
a("H_nl:")
a(f"""s_lshr_b32 s41, s{sSEL}, 3
s_lshl_b32 s41, s41, 11
s_lshl_b32 s42, s{sF}, 19
s_add_u32 s41, s41, s42
s_add_u32 s41, s41, {WS_CAND}
s_lshl_b32 s42, s{sH}, 8
s_add_u32 s42, s42, s41
v_lshl_add_u32 v2, v0, 2, s42
s_lshl_b32 s42, s{sJ}, 2
s_add_u32 s42, s42, s41
v_mov_b32 v9, s42
s_lshl_b32 s42, s{sF}, 2
v_add_u32 v37, s42, v3
s_mov_b32 s{sCNT}, 0""")
TSF(11)
a(f"""H_xs:
global_load_dword v8, v2, {P(sWS)} sc1
global_load_dword v38, v9, {P(sWS)} sc1
global_load_dword v39, v9, {P(sWS)} offset:1024 sc1
s_waitcnt vmcnt(0)
v_max3_u32 v10, v8, v38, v39
v_cmp_eq_u32 vcc, -1, v10""")
poll_guard("H_xs", "s_cbranch_vccz", "H_xsd")
a(f"""s_cmp_ge_u32 s{sJ}, 224
s_cbranch_scc1 H_down""")
for i in range(16): a(f"v_dot2_f32_bf16 v{GU+i}, v{GU+i}, v8, 0")
for c in range(8): a(f"v_permlane32_swap_b32 v{GU+c}, v{GU+8+c}")
pkadd(GU, GU, GU+8, 8)
for c in range(4): a(f"v_permlane16_swap_b32 v{GU+c}, v{GU+4+c}")
pkadd(GU, GU, GU+4, 4)
for m in ("row_ror:8", "row_ror:4", "row_ror:2", "row_ror:1"):
    for c in range(4): a(f"v_add_f32_dpp v{GU+c}, v{GU+c}, v{GU+c} {m} row_mask:0xf bank_mask:0xf")
a(f"""s_mov_b32 exec_lo, 0x00010001
s_mov_b32 exec_hi, 0x00010001
ds_write_b128 v20, {V(GU,4)}
s_mov_b64 exec, 1
ds_add_rtn_u32 v10, v37, v23 offset:{SC_FCNT}
s_mov_b64 exec, -1""")
for w in range(4): a(f"ds_read2_b32 {V(12+2*w,2)}, v21 offset0:{16*w} offset1:{16*w+8}")
a(f"""s_waitcnt lgkmcnt(0)
v_readfirstlane_b32 s42, v10
s_cmp_lg_u32 s42, 3
s_cbranch_scc1 H_down
v_pk_add_f32 v[12:13], v[12:13], v[14:15]
v_pk_add_f32 v[16:17], v[16:17], v[18:19]
v_pk_add_f32 v[12:13], v[12:13], v[16:17]
v_cvt_pk_bf16_f32 v12, v12, v13
v_and_b32 v13, 0xffff0000, v12
v_lshlrev_b32 v12, 16, v12
v_mul_f32 v14, 0xbfb8aa3b, v12
v_exp_f32 v14, v14
v_add_f32 v14, 1.0, v14
v_rcp_f32 v14, v14
v_mul_f32 v12, v12, v14
v_cvt_pk_bf16_f32 v12, v12, v12
v_lshlrev_b32 v12, 16, v12
v_mul_f32 v12, v12, v13
v_mov_b32_dpp v13, v12 quad_perm:[1,1,3,3] row_mask:0xf bank_mask:0xf
v_cvt_pk_bf16_f32 v12, v12, v13
s_mov_b64 exec, 0x55
global_store_dword v22, v12, {P(sWS)} sc1
s_mov_b64 exec, -1
H_down:
s_lshl_b32 s41, s{sH}, 6
v_add_u32 v1, s41, v0
v_min_u32 v2, 223, v1
s_lshl_b32 s42, s{sF}, 15
s_add_u32 s42, s42, {WS_HY}
v_lshl_add_u32 v2, v2, 7, s42
s_mov_b32 s{sCNT}, 0""")
TSF(12)
a(f"""s_cmp_lg_u32 s{sF}, 0
s_cbranch_scc1 H_nkw""")
a(f"s_sleep {E('HS0', 20)}\nH_nkw:")
a(f"""s_and_b32 s41, s{sF}, s{sCAND}
s_cbranch_scc0 H_ncs
s_cmp_eq_u32 s{sSEL}, s{sTOK}
s_cbranch_scc1 H_ncs
s_lshl_b32 s41, s{sTOK}, 10
v_lshl_add_u32 v9, v0, 4, s41
global_store_dwordx4 v9, {V(XR,4)}, {P(sOUT)}
H_ncs:
s_lshr_b32 s41, s{sKEY}, 16
s_and_b32 s42, s41, 0x7fff
s_xor_b32 s43, s41, 0xffff
s_bitcmp1_b32 s41, 15
s_cselect_b32 s41, s42, s43
s_lshl_b32 s41, s41, 16
v_mov_b32 v11, s41
v_mul_f32 v11, 0xbfb8aa3b, v11
v_exp_f32 v11, v11
v_add_f32 v11, 1.0, v11
v_rcp_f32 v11, v11
v_cvt_pk_bf16_f32 v11, v11, v11
v_lshlrev_b32 v11, 16, v11
v_lshlrev_b32 v26, 16, v38
v_and_b32 v27, 0xffff0000, v38
v_lshlrev_b32 v28, 16, v39
v_and_b32 v29, 0xffff0000, v39
s_lshl_b32 s41, s{sJ}, 7
s_add_u32 s41, s41, {WS_Y}
s_lshl_b32 s42, s{sSEL}, 10
s_lshl_b32 s43, s{sJ}, 2
s_add_u32 s42, s42, s43
s_cmp_eq_u32 s{sF}, 0
s_cselect_b32 s41, s41, s42
v_mov_b32 v25, s41""")
if HS1: a(f"s_sleep {HS1}")
a(f"""s_mov_b32 s{sCNT}, 0
s_mov_b64 vcc, -1
H_hp:
s_mov_b64 exec, {"vcc" if E("MSK", 1) else "-1"}
global_load_dwordx4 v[12:15], v2, {P(sWS)} sc1
s_mov_b64 exec, -1
s_waitcnt vmcnt(0)
v_max3_u32 v9, v12, v13, v14
v_max_u32 v9, v9, v15
v_cmp_eq_u32 vcc, -1, v9""")
poll_guard("H_hp", "s_cbranch_vccz", "H_hpd", 1, E("HR", 3))
TSF(13)
a(f"""v_dot2_f32_bf16 v8, v{WDn}, v12, 0
v_dot2_f32_bf16 v9, v{WDn+4}, v12, 0""")
for i in range(1, 4):
    a(f"v_dot2_f32_bf16 v8, v{WDn+i}, v{12+i}, v8")
    a(f"v_dot2_f32_bf16 v9, v{WDn+4+i}, v{12+i}, v9")
a(f"""v_cmp_gt_u32 vcc, 224, v1
v_cndmask_b32 v8, 0, v8, vcc
v_cndmask_b32 v9, 0, v9, vcc
v_permlane32_swap_b32 v8, v9
v_add_f32 v8, v8, v9""")
for m in ("row_ror:8", "row_ror:4", "row_ror:2", "row_ror:1"):
    a(f"v_add_f32_dpp v8, v8, v8 {m} row_mask:0xf bank_mask:0xf")
a(f"""v_add_f32_dpp v8, v8, v8 row_bcast:15 row_mask:0xa bank_mask:0xf
s_mov_b32 exec_lo, 0x80000000
s_mov_b32 exec_hi, 0x80000000
ds_write_b32 v24, v8
s_mov_b64 exec, 1
ds_add_rtn_u32 v10, v37, v23 offset:{SC_DCNT}
s_mov_b64 exec, -1
ds_read_b128 v[12:15], v3 offset:{SC_DACC}
ds_read_b128 v[16:19], v3 offset:{SC_DACC+16}
s_waitcnt lgkmcnt(0)
v_readfirstlane_b32 s42, v10
s_cmp_lg_u32 s42, 3
s_cbranch_scc1 H_ffd
v_pk_add_f32 v[12:13], v[12:13], v[14:15]
v_pk_add_f32 v[16:17], v[16:17], v[18:19]
v_pk_add_f32 v[8:9], v[12:13], v[16:17]""")
a(f"""v_cvt_pk_bf16_f32 v8, 0, v8
v_cvt_pk_bf16_f32 v9, 0, v9
v_mul_f32 v8, v8, v11
v_mul_f32 v9, v9, v11
v_cvt_pk_bf16_f32 v8, 0, v8
v_cvt_pk_bf16_f32 v9, 0, v9
v_pk_add_f32 v[8:9], v[8:9], v[26:27]
v_cvt_pk_bf16_f32 v8, 0, v8
v_cvt_pk_bf16_f32 v9, 0, v9
v_pk_add_f32 v[8:9], v[8:9], v[28:29]
v_cvt_pk_bf16_f32 v12, v8, v9
s_mov_b64 exec, 1
s_cmp_lg_u32 s{sF}, 0
s_cbranch_scc1 H_fo
global_store_dword v25, v12, {P(sWS)} sc1
s_branch H_fo2
H_fo:
global_store_dword v25, v12, {P(sOUT)}
H_fo2:
s_mov_b64 exec, -1
H_ffd:
s_cmp_lg_u32 s{sF}, 0
s_cbranch_scc1 L_end""")
a(f"""s_lshl_b32 s41, s{sH}, 13
s_add_u32 s41, s41, {WS_Y}
v_lshl_add_u32 v1, v0, 7, s41
s_lshl_b32 s41, s{sH}, 8
s_add_u32 s41, s41, {L_X2S}
v_lshl_add_u32 v2, v0, 2, s41
s_mov_b32 s{sCNT}, 0
s_sleep {E('YS', 20)}
s_mov_b64 vcc, -1
H_yw:
s_mov_b64 exec, {"vcc" if E("MSK", 1) else "-1"}
global_load_dword v40, v1, {P(sWS)} sc1
s_mov_b64 exec, -1
s_waitcnt vmcnt(0)
v_cmp_eq_u32 vcc, -1, v40""")
poll_guard("H_yw", "s_cbranch_vccz", "H_yd", 1, 3)
a(f"""ds_write_b32 v2, v40
v_mov_b32 v2, 1
s_mov_b64 exec, 1
ds_add_rtn_u32 v41, v3, v2 offset:{SC_YC}
s_mov_b64 exec, -1
v_lshlrev_b32 v1, 4, v0
v_add_u32 v1, {L_XS}, v1
s_waitcnt lgkmcnt(0)
v_readfirstlane_b32 s41, v41
s_cmp_lg_u32 s41, 3
s_cbranch_scc1 H_fx1
ds_read_b128 v[40:43], v1 offset:1024
s_waitcnt lgkmcnt(0)""")
unpack(X_, 40)
ln(X_, D_, T_, XN)
a(f"ds_write_b128 v1, {V(XN,4)}")
lds_inc(3, SC_XSF, 2)
a(f"""H_fx1:
s_xor_b32 s41, s{sSEL}, s{sTOK}
s_lshr_b32 s41, s41, 5
s_cbranch_scc1 H_fx2""")
lds_wait(3, SC_XSF, 2, 1, 2)
qtr_addr()
a(f"""v_lshrrev_b32 v12, 4, v0
v_lshlrev_b32 v8, 4, v12
v_add_u32 v8, {L_XS}, v8
v_add_u32 v9, 64, v8
v_add_u32 v10, 128, v8
v_add_u32 v11, 192, v8
s_lshl_b32 s41, s{sC}, 3
s_sub_u32 s41, s{sSEL}, s41
s_sub_u32 s41, s41, 8
s_and_b32 s41, s41, 31
s_mul_i32 s41, s41, {QSTR}
s_lshl_b32 s42, s{sH}, 6
s_add_u32 s41, s41, s42
s_add_u32 s41, s41, {L_Q}
v_lshl_add_u32 v2, v12, 3, s41
v_mov_b32 v3, {L_SC + SC_QFIX - SC_QC}
s_mov_b32 s{sQM}, 2
s_branch H_qp
H_fx3:
v_mov_b32 v3, {L_SC}""")
lds_wait(3, SC_QFIX, 2, 8, 1)
a(f"""H_fx2:""")
a(f"s_lshl_b32 s98, s{sH}, 14")
wkv_dma(1, 98)
a("s_waitcnt vmcnt(0)")
wkv_tr(8, 1, 2, 98)
lds_wait(3, SC_XSF, 2, 1, 2)
TSA(14)
a(f"""v_lshrrev_b32 v2, 4, v0
s_lshl_b32 s41, s{sH}, 8
s_add_u32 s41, s41, {L_XS}
v_lshl_add_u32 v1, v2, 4, s41""")
for s in range(4): a(f"ds_read_b128 {V(40+4*s,4)}, v1 offset:{64*s}")
a(f"""s_lshl_b32 s41, s{sH}, 7
s_add_u32 s41, s41, {L_KVP}
v_lshl_add_u32 v2, v2, 4, s41
s_waitcnt lgkmcnt(0)""")
for s in range(4):
    a(f"v_mfma_f32_16x16x32_bf16 v[56:59], {V(8+8*s,4)}, {V(40+4*s,4)}, {'0' if s==0 else 'v[56:59]'}")
    a(f"v_mfma_f32_16x16x32_bf16 v[60:63], {V(8+8*s+4,4)}, {V(40+4*s,4)}, {'0' if s==0 else 'v[60:63]'}")
a(f"""s_mov_b32 exec_lo, 0x00010001
s_mov_b32 exec_hi, 0x00010001
ds_write_b128 v2, v[56:59]
ds_write_b128 v2, v[60:63] offset:64
s_mov_b64 exec, -1""")
hsync(2, False)
a(f"""v_and_b32 v42, 7, v0
v_lshlrev_b32 v1, 3, v42
v_add_u32 v1, {L_KVP}, v1
v_lshrrev_b32 v2, 5, v0
s_and_b32 s41, s{sH}, 1
s_lshl_b32 s41, s41, 5
s_add_u32 s41, s41, {L_KVP + 64}
v_lshl_add_u32 v40, v2, 4, s41
s_lshl_b32 s41, s{sH}, 5
s_add_u32 s41, s41, {L_VS}
v_lshl_add_u32 v41, v2, 4, s41""")
for w in range(4): a(f"ds_read_b64 {V(8+2*w,2)}, v1 offset:{128*w}")
for w in range(4): a(f"ds_read_b128 {V(16+4*w,4)}, v40 offset:{128*w}")
a(f"""v_lshlrev_b32 v1, 2, v42
v_add_u32 v1, {L_KVP}, v1
s_waitcnt lgkmcnt(4)
v_pk_add_f32 v[8:9], v[8:9], v[10:11]
v_pk_add_f32 v[12:13], v[12:13], v[14:15]
v_pk_add_f32 v[8:9], v[8:9], v[12:13]
v_cvt_pk_bf16_f32 v8, v8, v9
s_waitcnt lgkmcnt(0)""")
pkadd(16, 16, 20, 4); pkadd(24, 24, 28, 4); pkadd(16, 16, 24, 4)
for i in range(8): a(f"v_readlane_b32 s{sKSL[i]}, v8, {i}")
pack(20, 16, 2); unpack(16, 20, 2)
a(f"""ds_write_b128 v41, v[16:19]
ds_write_b32 v1, v8 offset:{L_KS - L_KVP}""")
a(f"""s_cmp_lg_u32 s{sTOK}, 7
s_cbranch_scc1 H_nE
s_add_u32 s41, s{sE}, 2
v_mov_b32 v1, 0
v_mov_b32 v2, s41
s_mov_b64 exec, 1
global_store_dword v1, v2, {P(sWS)} sc1
s_mov_b64 exec, -1
H_nE:""")
ffn_loads(64)
a(f"""s_branch H_bursts
H_toX:
s_barrier
s_barrier
H_slow:
s_waitcnt vmcnt(0) lgkmcnt(0)
s_barrier
v_mov_b64 v[28:29], -1
v_mov_b64 v[30:31], -1
s_lshl_b32 s41, s{sH}, 10
s_add_u32 s41, s41, {L_L}
v_lshl_add_u32 v1, v0, 4, s41
ds_write_b128 v1, v[28:31]
s_lshl_b32 s41, s{sH}, 8
s_add_u32 s41, s41, {L_M}
v_lshl_add_u32 v1, v0, 2, s41
v_mov_b32 v8, 0xff800000
ds_write_b32 v1, v8
s_lshl_b32 s41, s{sL}, 4
s_add_u32 s41, s41, {L_SC}
v_mov_b32 v1, s41
v_mov_b32 v2, {L_SC}
v_mov_b64 v[8:9], 0
ds_write_b64 v1, v[8:9] offset:{SC_OCNT}
ds_write_b32 v2, v8 offset:{SC_BAD}
s_mov_b32 s{sSLOW}, 1
s_waitcnt lgkmcnt(0)
s_barrier
s_barrier
s_branch H_bursts
A_slow:
s_waitcnt vmcnt(0)
s_barrier
s_cmp_eq_u32 s3, 15
s_cbranch_scc1 A_sl1
v_lshrrev_b32 v8, 5, v0
v_lshlrev_b32 v8, 4, v8
v_add_u32 v8, {L_KS}, v8
ds_read_b128 v[32:35], v8
v_and_b32 v9, 15, v0
v_lshlrev_b32 v9, 2, v9
v_add_u32 v9, {L_VS}, v9
ds_read_b32 v36, v9
v_and_b32 v9, 27, v0
v_cmp_eq_u32 vcc, 16, v9
v_mov_b32 v10, 0x3f800000
v_cndmask_b32 v10, 0, v10, vcc
v_and_b32 v9, 16, v0
v_cmp_eq_u32 vcc, 0, v9
s_waitcnt lgkmcnt(0)
v_cndmask_b32 v36, v10, v36, vcc
s_bitcmp1_b32 s{sSEL}, 0
s_cselect_b32 s41, 0, 16
v_lshrrev_b32 v36, s41, v36
s_mov_b64 exec, s[6:7]
s_lshl_b32 s41, s3, 4
s_add_u32 s41, s41, s4
s_set_gpr_idx_on s41, gpr_idx(SRC0,DST)
s_nop 1
v_or_b32 v{VV}, v{VV}, v36
s_nop 1
s_set_gpr_idx_off
s_bfe_u32 s41, s101, 0x20006
s_lshl_b32 s41, s41, 3
s_and_b32 s42, s{sSEL}, 7
s_add_u32 s41, s41, s42
s_lshl_b32 s42, 1, s41
s_mov_b32 exec_lo, s42
s_mov_b32 exec_hi, s42
s_bfe_u32 s41, s101, 0x10008
s_lshl_b32 s42, s3, 1
s_add_u32 s41, s41, s42
s_lshl_b32 s41, s41, 2
s_set_gpr_idx_on s41, gpr_idx(DST)
s_nop 1
v_mov_b32 v{KK}, v32
v_mov_b32 v{KK+1}, v33
v_mov_b32 v{KK+2}, v34
v_mov_b32 v{KK+3}, v35
s_nop 1
s_set_gpr_idx_off
s_mov_b64 exec, -1
A_sl1:
v_and_b32 v14, 31, v0
v_lshlrev_b32 v14, 2, v14
v_add_u32 v14, {L_M}, v14""")
att_addr()
a(f"""s_barrier
s_mov_b32 s44, 0
A_sm:
s_mul_i32 s41, s44, {4*QSTR}
v_add_u32 v{Q}, s41, v{vQA}
ds_read_b128 {V(Q,4)}, v{Q}
v_mov_b32 v15, 0xff800000
s_waitcnt lgkmcnt(0)""")
for kt in range(NT):
    a(f"v_mfma_f32_32x32x16_bf16 {V(S0,16)}, {V(KK+4*kt,4)}, {V(Q,4)}, 0")
    for i in range(0, 16, 2): a(f"v_max3_f32 v15, v15, v{S0+i}, v{S0+i+1}")
a(f"""v_lshl_add_u32 v13, s44, 7, v14
ds_max_f32 v13, v15
s_add_u32 s44, s44, 1
s_cmp_lt_u32 s44, 8
s_cbranch_scc1 A_sm
s_waitcnt lgkmcnt(0)
s_barrier
s_mov_b32 s44, 0
A_se:
s_mul_i32 s41, s44, {4*QSTR}
v_add_u32 v{Q}, s41, v{vQA}
ds_read_b128 {V(Q,4)}, v{Q}
v_lshl_add_u32 v13, s44, 7, v14
ds_read_b32 v15, v13
s_waitcnt lgkmcnt(0)""")
for i in range(16): a(f"v_sub_f32 v{S1+i}, 0, v15")
for i in range(0, 16, 2): a(f"v_mov_b64 {V(ACC+i,2)}, 0")
for kt in range(NT):
    a(f"v_mfma_f32_32x32x16_bf16 {V(S0,16)}, {V(KK+4*kt,4)}, {V(Q,4)}, {V(S1,16)}")
    ex(S0, 0, 16)
    smf(2*kt, S0); smf(2*kt+1, S0+8)
a("s_mov_b32 s41, s44")
flush_pre()
flush()
a(f"""s_add_u32 s44, s44, 1
s_cmp_lt_u32 s44, 8
s_cbranch_scc1 A_se
s_branch A_X
L_end:
""")
if TSON:
    TS(15)
    a(f"""s_getreg_b32 s75, hwreg(HW_REG_HW_ID)
    s_mul_i32 s41, s{sB}, 12
    s_add_u32 s41, s41, s{sW}
    s_lshl_b32 s41, s41, 7
    s_add_u32 s41, s41, {WS_TS}
    v_mov_b32 v1, s41
    s_mov_b64 exec, 1""")
    for i in range(32):
        a(f"v_mov_b32 v2, s{60+i}\nglobal_store_dword v1, v2, {P(sWS)} offset:{4*i}")
if os.environ.get("DLY"):
    i_, j_ = [int(x) for x in os.environ["DLY"].split(",")]
    a(f"""s_cmp_lg_u32 s{sTOK}, {int(os.environ.get("DLYW", "4"))}
    s_cbranch_scc1 L_exit
    s_sub_u32 s41, s{60+j_}, s{60+i_}
    s_mul_i32 s41, s41, 4
    s_min_u32 s41, s41, 40000
    s_add_u32 s41, s41, s91
    s_add_u32 s41, s41, 1000
    L_dly:
    s_memrealtime s[92:93]
    s_waitcnt lgkmcnt(0)
    s_sub_u32 s42, s92, s41
    s_cmp_lt_i32 s42, 0
    s_cbranch_scc1 L_dly""")
if os.environ.get("DBGT"):
    a(f"""s_mov_b64 exec, 1
    v_mov_b32 v1, 0
    s_not_b32 s41, s60
    v_mov_b32 v2, s41
    global_atomic_umax v1, v2, {P(sDBG)}""")
    for k, slot in enumerate((31, 1, 2, 3, 5, 9, 7, 21, 25, 23, 24, 27, 29, 16, 0)):
        a(f"v_mov_b32 v2, s{60+slot}\nglobal_atomic_umax v1, v2, {P(sDBG)} offset:{4+4*k}")
a("L_exit:\ns_endpgm")

ABL = os.environ.get("ABL", "")
if ABL:
    from asmlib import Ins
    out_items = []; cur = ""
    for it in a.items:
        if isinstance(it, Ins) and it.label: cur = it.label
        drop = False
        if isinstance(it, Ins) and it.text:
            idx = len(out_items)
            t = it.text
            if "ds_write_b32 v8, v9 offset:96" in t: drop = True
            inH = region[0]
            if "w" in ABL and inH == "prep" and it.op == "v_perm_b32": drop = True
            if "m" in ABL and inH == "burst" and it.op.startswith("v_mfma"): drop = True
            if "v" in ABL and inH == "burst" and it.op in ("v_pk_add_f32", "v_pk_mul_f32", "v_dot2_f32_bf16", "v_cvt_pk_bf16_f32", "v_add_f32", "v_exp_f32", "v_rcp_f32", "v_fma_f32"): drop = True
            if "f" in ABL and inH == "ffn" and (it.op.startswith("v_dot2") or it.op.startswith("v_permlane") or it.op.startswith("v_add_f32_dpp") or it.op.startswith("v_pk_") or it.op.startswith("v_mfma")): drop = True
        if isinstance(it, Ins) and it.label == "H_prep": region[0] = "prep"
        if isinstance(it, Ins) and it.label == "H_bursts": region[0] = "burst"
        if isinstance(it, Ins) and it.label == "H_nwf": region[0] = ""
        if isinstance(it, Ins) and it.label == "H_FFN": region[0] = "ffn"
        if isinstance(it, Ins) and it.label == "H_toX": region[0] = ""
        if not drop: out_items.append(it)
    a.items = out_items
n = a.hazard_pass()
hdr = open(f"cdna_kernels/{NAME}.s.ref").read().split("; Override launch")[0]
out = hdr + f"""; @launch grid=(256,1,1) block=(512,1,1) lds=163840
.amdgcn_target "amdgcn-amd-amdhsa--gfx950"
.text
.globl {NAME}_kernel
.p2align 8
.type {NAME}_kernel,@function
{NAME}_kernel:
""" + a.text() + f""".section .rodata,"a"
.p2align 6
.amdhsa_kernel {NAME}_kernel
  .amdhsa_next_free_vgpr 256
  .amdhsa_next_free_sgpr 102
  .amdhsa_accum_offset 256
  .amdhsa_group_segment_fixed_size 0
  .amdhsa_kernarg_size 104
  .amdhsa_user_sgpr_count 2
  .amdhsa_user_sgpr_kernarg_segment_ptr 1
  .amdhsa_system_sgpr_workgroup_id_x 1
  .amdhsa_float_denorm_mode_32 3
.end_amdhsa_kernel
"""
open(sys.argv[1], "w").write(out)
print("nops inserted", n, "instructions", sum(1 for i in a.items if not isinstance(i, str) and i.text))
```

```python
import sys, os
from asmlib import Asm
NAME = "interleave_layers__grouped_kv_mqa__moe_arch_mod__prompt"
TSON = bool(int(os.environ.get("TS", "0")))
a = Asm()
region = ['']
def E(n, d): return int(os.environ.get(n, str(d)))

WS_FLAG = 0x1000; WS_KEY = 0x400000; WS_HY = WS_KEY + 0x10000; WS_Y = WS_KEY + 0x20000; WS_KV = 0x30000; WS_CAND = 0x80000; KVS = 640; KVL = 256*640
WS_OPF = 0x180000
WS_XN = 0x200000; WS_OP = 0x600000; OPL = 0xc00000; WS_TS = 0x3000000; WS_FS = 0x2000000; WS_WKV = 0x2800000
L_SLOT = 65536; L_XN = 114688; L_O = 131072; L_Q = 147456; L_L = 156160; L_SC = 160768
L_ROW = L_SLOT; L_PS = L_SLOT + 16384; L_KVS = L_Q
L_WK1 = 98816
L_XS = 139776; L_X2S = L_XS + 1024; L_KVP = L_XS + 2048; L_VS = L_XS + 2560; L_KS = L_XS + 2816; L_M = L_XS + 3072
QSTR = 272
RS = 2064
SC_KVCNT = 0; SC_KEYS = 16; SC_OCNT = 64; SC_FACC = 128; SC_FCNT = 384; SC_DACC = 400; SC_DCNT = 464; SC_GK = 480
SC_XSF = 512; SC_QFIX = 516; SC_BAD = 96; SC_XNC = 528; SC_QC = 536; SC_CLR = 564; SC_C2 = 560; SC_XN2 = 556; SC_B1 = 552; SC_KVD = 544; SC_YC = 548; SC_ZERO = 768; SC_WR = 1024
FORCE = int(os.environ.get('FORCE', '0'))
POLLMAX = 40000
B1P0 = bool(int(os.environ.get('B1P0', '1')))
HS1 = int(os.environ.get('HS1', '14'))
KS1 = int(os.environ.get('KS1', '0'))
HLNP = int(os.environ.get('HLNP', '2'))
OUTF = ' ' + os.environ.get('OF1', '')
OUTG = ' ' + os.environ.get('OF2', '')
NPRE = int(os.environ.get('NPRE', '2'))
CODECH = int(os.environ.get('CODECH', '6'))
QSCALE = 0x3eb8aa3b

sX, sWQ, sWK, sWV, sWO, sWR, sWG, sWU, sWD, sOUT, sDBG, sWS = 8, 10, 12, 14, 16, 20, 22, 24, 26, 28, 30, 32
sE, sW, sL, sC, sTAG, sLO, sHI = 34, 35, 36, 37, 38, 39, 40
sCNT, sJ, sKEY, sTOK, sMASK, sH, sSEL, sOTAG, sF, sCAND, sMYK, sWT = 46, 47, 48, 49, 50, 51, 52, 53, 54, 55, 56, 57
sORD = 58
sKS = 0
sSLOW = 19
sPB = 100
XL = E('XL', 0)
sSLOT = 96; sQM = 97; sX4 = 97
sOPB = 50
sB = 18
sKSL = [0, 1, 2, 3, 4, 5, 6, 7]
def P(n): return f"s[{n}:{n+1}]"
def V(n, k=1): return f"v{n}" if k == 1 else f"v[{n}:{n+k-1}]"

def TS(i):
    if not TSON: return
    a(f"""s_memrealtime s[92:93]
    s_waitcnt lgkmcnt(0)
    s_cmp_eq_u32 s{sL}, 0
    s_cselect_b32 s{60+i}, s92, s{60+i}""")
    if not os.environ.get("SO"): a(f"s_cselect_b32 s{76+i}, s{76+i}, s92")
SO = bool(os.environ.get("SO"))
def TSS(slot):
    if not (TSON and SO) or os.environ.get("P0"): return
    a(f"""s_memrealtime s[92:93]
    s_waitcnt lgkmcnt(0)
    s_cmp_eq_u32 s{60+slot}, 0
    s_cselect_b32 s{60+slot}, s92, s{60+slot}""")
def TSA(slot):
    if not TSON or (SO and slot >= 16): return
    a(f"""s_memrealtime s[92:93]
    s_waitcnt lgkmcnt(0)
    s_mov_b32 s{60+slot}, s92""")
def TSF(i):
    if not TSON or SO: return
    a(f"""s_memrealtime s[92:93]
    s_waitcnt lgkmcnt(0)
    s_cmp_eq_u32 s{sF}, 0
    s_cselect_b32 s{60+i}, s92, s{60+i}
    s_cselect_b32 s{76+i}, s{76+i}, s92""")
def TC(i):
    return
    a(f"""s_memtime s[92:93]
    s_waitcnt lgkmcnt(0)
    s_mov_b32 s{94+i}, s92""")

def poll_guard(lbl_retry, cond_branch, lbl_stem, mult=1, sleep=0):
    done = a.newlabel(lbl_stem)
    a(f"{cond_branch} {done}")
    if sleep: a(f"s_sleep {sleep}")
    a(f"""s_add_u32 s{sCNT}, s{sCNT}, 1
    s_cmp_lt_u32 s{sCNT}, {POLLMAX*mult}
    s_cbranch_scc1 {lbl_retry}
    {done}:""")
def lds_wait(vaddr, off, vt, target, sleep=1):
    lb = a.newlabel("W")
    a(f"s_mov_b32 s{sCNT}, 0\n{lb}:")
    a(f"""ds_read_b32 v{vt}, v{vaddr} offset:{off}
    s_waitcnt lgkmcnt(0)
    v_cmp_gt_u32 vcc, {target}, v{vt}""")
    poll_guard(lb, "s_cbranch_vccz", "Wd", 8, sleep)
def lds_inc(vaddr, off, vt):
    a(f"""v_mov_b32 v{vt}, 1
    s_mov_b64 exec, 1
    ds_add_u32 v{vaddr}, v{vt} offset:{off}
    s_mov_b64 exec, -1""")

def dpp_reduce(regs, op="v_add_f32"):
    for m in ("row_ror:8", "row_ror:4", "row_ror:2", "row_ror:1"):
        for r in regs: a(f"{op}_dpp v{r}, v{r}, v{r} {m} row_mask:0xf bank_mask:0xf")
    for r in regs: a(f"{op}_dpp v{r}, v{r}, v{r} row_bcast:15 row_mask:0xa bank_mask:0xf")
    for r in regs: a(f"{op}_dpp v{r}, v{r}, v{r} row_bcast:31 row_mask:0xc bank_mask:0xf")
def unpack(dst, src, n=4):
    for i in range(n):
        a(f"v_lshlrev_b32 v{dst+2*i}, 16, v{src+i}")
        a(f"v_and_b32 v{dst+2*i+1}, 0xffff0000, v{src+i}")
def pack(dst, src, n=4):
    for i in range(n): a(f"v_cvt_pk_bf16_f32 v{dst+i}, v{src+2*i}, v{src+2*i+1}")
def pkadd(d, x, y, n):
    for i in range(0, n, 2): a(f"v_pk_add_f32 {V(d+i,2)}, {V(x+i,2)}, {V(y+i,2)}")
def tr_pair(e, o, t):
    a(f"""v_perm_b32 v{t}, v{o}, v{e}, s{sLO}
    v_perm_b32 v{o}, v{o}, v{e}, s{sHI}
    v_mov_b32 v{e}, v{t}""")
def ln(X, D, T, out, extra=[]):
    a(f"v_readfirstlane_b32 s42, v{X}")
    for i in range(0, 8, 2): a(f"v_pk_add_f32 {V(D+i,2)}, {V(X+i,2)}, s[42:43] op_sel_hi:[1,0] neg_lo:[0,1] neg_hi:[0,1]")
    a(f"""v_pk_add_f32 {V(T,2)}, {V(D,2)}, {V(D+2,2)}
    v_pk_mul_f32 {V(T+2,2)}, {V(D,2)}, {V(D,2)}
    v_pk_add_f32 {V(T,2)}, {V(T,2)}, {V(D+4,2)}
    v_pk_fma_f32 {V(T+2,2)}, {V(D+2,2)}, {V(D+2,2)}, {V(T+2,2)}
    v_pk_add_f32 {V(T,2)}, {V(T,2)}, {V(D+6,2)}
    v_pk_fma_f32 {V(T+2,2)}, {V(D+4,2)}, {V(D+4,2)}, {V(T+2,2)}
    v_add_f32 v{T}, v{T}, v{T+1}
    v_pk_fma_f32 {V(T+2,2)}, {V(D+6,2)}, {V(D+6,2)}, {V(T+2,2)}
    v_mul_f32 v{T}, 0x3b000000, v{T}
    v_add_f32 v{T+1}, v{T+2}, v{T+3}""")
    dpp_reduce([T, T+1] + extra)
    a(f"""v_mul_f32 v{T+1}, 0x3b000000, v{T+1}
    v_fma_f32 v{T+1}, -v{T}, v{T}, v{T+1}
    v_max_f32 v{T+1}, 0, v{T+1}
    v_add_f32 v{T+1}, 0x3727c5ac, v{T+1}
    v_rsq_f32 v{T+1}, v{T+1}
    v_mul_f32 v{T}, v{T}, v{T+1}
    v_readlane_b32 s42, v{T+1}, 63
    v_readlane_b32 s43, v{T}, 63""")
    for i in range(0, 8, 2): a(f"v_pk_fma_f32 {V(D+i,2)}, {V(D+i,2)}, s[42:43], s[42:43] op_sel:[0,0,1] op_sel_hi:[1,0,1] neg_lo:[0,0,1] neg_hi:[0,0,1]")
    pack(out, D)

XR = 4
X_, D_, T_, XN, X1, WR = 8, 16, 24, 28, 32, 36
XO = 36
vQA, vOA, vIDX = 1, 2, 3
Q, ZZ, ACC, S0, S1, KK, VV = 8, 12, 16, 32, 48, 64, 128
WKV = 64
WQR, WO = 64, 128
FOR = 224
GU, WDn = 40, 56

def wkv_dma(vt, sreg):
    a(f"""s_lshl_b32 s41, s{sH}, 12
    v_lshl_add_u32 v{vt}, v0, 4, s41
    s_mov_b32 m0, s{sreg}""")
    for k in range(4): a(f"global_load_lds_dwordx4 v{vt}, {P(sWK)} offset:{1024*k}")
    a(f"s_add_u32 m0, s{sreg}, 4096")
    for k in range(4): a(f"global_load_lds_dwordx4 v{vt}, {P(sWV)} offset:{1024*k}")
def wkv_tr(dst, vt, vt2, sreg):
    a(f"""v_lshrrev_b32 v{vt}, 4, v0
    v_and_b32 v{vt2}, 15, v0
    v_lshlrev_b32 v{vt2}, 3, v{vt2}
    v_lshl_add_u32 v{vt}, v{vt}, 8, v{vt2}
    v_add_u32 v{vt}, s{sreg}, v{vt}""")
    for k in range(4):
        for m in range(2):
            for hf in range(2):
                a(f"ds_read_b64_tr_b16 {V(dst+8*k+4*m+2*hf,2)}, v{vt} offset:{4096*m + 1024*k + 128*hf}")
        if k == 2: a("s_waitcnt lgkmcnt(4)")
def ffn_loads(GU=40):
    a(f"""s_lshl_b32 s41, s{sJ}, 15
    s_lshl_b32 s42, s{sH}, 13
    s_add_u32 s41, s41, s42
    s_add_u32 s41, s41, {WS_FS + 4096}
    v_lshl_add_u32 v2, v0, 4, s41""")
    for i in range(6): a(f"global_load_dwordx4 {V(GU+4*i,4)}, v2, {P(sWS)} offset:{1024*i-4096} sc1")
def gloads(v):
    for g in range(3): a(f"v_lshl_add_u32 v{v+g}, v0, 4, s{3+g}")
    for i in range(6): a(f"global_load_dwordx4 {V(40+4*i,4)}, v{v+(i>>1)}, {P(sWS)} offset:{4096*(i&1)-2048} sc1")
def pos2tok(dst, src):
    a(f"""s_lshl_b32 s{dst}, s{sC}, 3
    s_add_u32 s{dst}, s{dst}, s{src}
    s_add_u32 s{dst}, s{dst}, 8
    s_and_b32 s{dst}, s{dst}, 31
    s_andn2_b32 s43, s{sTOK}, 31
    s_add_u32 s{dst}, s{dst}, s43""")

a(f"""
s_cmp_ge_u32 s2, 256
s_cbranch_scc1 L_exit
s_load_dwordx16 s[8:23], s[0:1], 0
s_load_dwordx8 s[24:31], s[0:1], 64
s_load_dwordx2 s[32:33], s[0:1], 96
v_lshrrev_b32 v1, 6, v0
v_and_b32 v0, 63, v0
s_mov_b32 s{sL}, 0
v_readfirstlane_b32 s{sW}, v1
s_mov_b32 s{sLO}, 0x05040100
s_mov_b32 s{sHI}, 0x07060302
s_mov_b32 s{sF}, 0
s_and_b32 s41, s2, 7
s_lshl_b32 s41, s41, 3
s_bfe_u32 s42, s2, 0x30003
s_or_b32 s41, s41, s42
s_andn2_b32 s42, s2, 63
s_or_b32 s{sSLOT}, s41, s42
s_mov_b32 s{sSEL}, -1
s_and_b32 s{sJ}, s2, 7
s_lshl_b32 s{sJ}, s{sJ}, 5
s_lshr_b32 s41, s2, 3
s_add_u32 s{sJ}, s{sJ}, s41
s_and_b32 s{sH}, s{sW}, 3
s_mov_b32 s{sPB}, s2
{"s_mov_b32 s2, s%d" % sJ if XL else "s_nop 0"}
s_and_b32 s{sC}, s2, 3
s_lshl_b32 s{sTOK}, s2, 3
s_add_u32 s{sTOK}, s{sTOK}, s{sW}
s_lshl_b32 s41, s{sTOK}, 10
v_lshl_add_u32 v1, v0, 4, s41
v_mov_b64 v[12:13], -1
v_mov_b64 v[14:15], -1
s_cmp_lg_u32 s{sW}, 7
s_cbranch_scc1 S_z
v_lshlrev_b32 v2, 4, v0
v_add_u32 v2, {L_L}, v2
ds_write_b128 v2, v[12:15]
ds_write_b128 v2, v[12:15] offset:1024
ds_write_b128 v2, v[12:15] offset:2048
ds_write_b128 v2, v[12:15] offset:3072
v_mov_b64 v[8:9], 0
v_mov_b64 v[10:11], 0
ds_write_b128 v2, v[8:11] offset:{L_SC - L_L}
S_z:
""")
if TSON:
    for i in range(32): a(f"s_mov_b32 s{60+i}, 0")
TS(0)
a(f"""
s_waitcnt lgkmcnt(0)
s_mov_b32 s{sB}, s2
s_mov_b32 s{sSLOW}, 0
global_load_dwordx4 {V(XR,4)}, v1, {P(sX)}
s_barrier
s_cmp_ge_u32 s{sW}, 4
s_cbranch_scc1 S_noA
s_setprio 2
v_add_u32 v16, 4096, v1
global_load_dwordx4 {V(FOR,4)}, v16, {P(sX)}""")
for g in range(2):
    a(f"s_add_u32 s44, s{sH}, {8*g}")
    pos2tok(41, 44)
    a(f"""s_lshl_b32 s41, s41, 10
    s_add_u32 s41, s41, 2048
    v_lshl_add_u32 v{16+g}, v0, 4, s41""")
a(f"""s_lshl_b32 s98, s{sH}, 13
s_add_u32 s98, s98, {L_XN}
s_cmp_eq_u32 s{sH}, 3
s_cselect_b32 s98, {L_Q}, s98""")
wkv_dma(8, 98)
for i in range(4): a(f"global_load_dwordx4 {V(FOR+4+4*i,4)}, v{16+(i>>1)}, {P(sX)} offset:{4096*(i&1)-2048}")
TSS(16)
a(f"""s_waitcnt vmcnt(12)
s_branch R_P1
S_noA:
s_load_dword s{sE}, {P(sWS)}, 0
s_cmp_lg_u32 s{sW}, 7
s_cbranch_scc1 S_n7
s_setprio {E("W7P", 3)}
s_mul_i32 s41, s{sSLOT}, {KVS}
s_add_u32 s41, s41, {WS_KV}
v_lshl_add_u32 v1, v0, 4, s41
v_add_u32 v3, {KVL}, v1
v_mov_b32 v16, 0x3f803f80
v_cmp_eq_u32 vcc, 32, v0
v_cndmask_b32 v16, 0, v16, vcc
v_cmp_gt_u32 vcc, 32, v0
v_cndmask_b32 v16, v16, v12, vcc
v_mov_b32 v17, v16
v_mov_b64 v[18:19], v[16:17]
s_mov_b32 exec_hi, 0xff
global_store_dwordx4 v1, v[16:19], {P(sWS)} sc1
global_store_dwordx4 v3, v[16:19], {P(sWS)} sc1
s_mov_b32 exec_hi, -1
s_lshl_b32 s41, s2, 7
s_add_u32 s41, s41, {WS_KEY}
s_lshl_b32 s42, s{sJ}, 7
s_add_u32 s42, s42, {WS_KEY}
v_mov_b32 v1, s41
v_mov_b32 v3, s42
v_cmp_gt_u32 vcc, 2, v0
v_cndmask_b32 v1, v3, v1, vcc
v_lshl_add_u32 v1, v0, 15, v1
s_mov_b64 exec, 0x1f
global_store_dwordx4 v1, v[12:15], {P(sWS)} sc1
s_mov_b64 exec, -1
""")
a(f"""S_n7:
s_lshr_b32 s43, s{sPB}, 3
s_cmp_lg_u32 s{sW}, {4 if E("PFQ", 1) else 44}
s_cbranch_scc1 S_n4
s_setprio 3
v_lshrrev_b32 v1, 2, v0
v_and_b32 v3, 3, v0
v_lshlrev_b32 v3, 6, v3
v_lshl_add_u32 v1, v1, 10, v3
s_lshl_b32 s41, s43, 14
s_lshl_b32 s42, s{sC}, 8
s_add_u32 s41, s41, s42
v_add_u32 v1, s41, v1
global_load_dword v40, v1, {P(sWQ)}
S_n4:
s_cmp_lg_u32 s{sW}, {5 if E("PFO", 1) else 55}
s_cbranch_scc1 S_n5
s_lshl_b32 s41, s43, 12
s_lshl_b32 s42, s{sC}, 17
s_add_u32 s41, s41, s42
v_lshl_add_u32 v1, v0, 6, s41
global_load_dword v41, v1, {P(sWO)}""")
if E("TLBW", 0):
    a(f"""v_min_u32 v1, 43, v0
    v_lshlrev_b32 v1, 20, v1
    s_lshl_b32 s41, s2, 12
    v_add_u32 v1, s41, v1
    global_load_dword v42, v1, {P(sWS)} sc1
    v_mov_b32 v1, s41
    global_load_dword v43, v1, {P(sOUT)} sc1
    global_load_dword v53, v1, {P(sWG)}
    global_load_dword v54, v1, {P(sWU)}
    global_load_dword v55, v1, {P(sWD)}""")
a(f"""S_n5:
s_setprio 1
s_cmp_lg_u32 s{sW}, 6
s_cbranch_scc1 H_stage
v_lshlrev_b32 v1, 4, v0
global_load_dwordx4 v[44:47], v1, {P(sWR)}
s_branch H_stage""")
def key_make():
    a(f"""v_cvt_pk_bf16_f32 v1, 0, v1
    v_ashrrev_i32 v2, 31, v1
    v_or_b32 v2, 0x80000000, v2
    v_xor_b32 v1, v1, v2
    v_and_b32 v1, 0xffff0000, v1
    s_sub_u32 s41, 2047, s{sTOK}
    v_or_b32 v1, s41, v1
    s_lshl_b32 s41, s{sF}, 3
    s_add_u32 s41, s41, {L_SC + SC_KEYS}
    v_mov_b32 v3, s41
    v_readlane_b32 s{sMYK}, v1, 63
    v_mov_b32 v2, 1
    s_mov_b32 exec_lo, 0
    s_mov_b32 exec_hi, 0x80000000
    ds_max_u32 v3, v1
    ds_add_rtn_u32 v2, v3, v2 offset:4
    ds_read_b32 v1, v3
    s_mov_b64 exec, -1""")
def key_pub():
    lb = a.newlabel("K_np")
    a(f"""s_lshl_b32 s41, s{sB}, 7
    s_lshl_b32 s42, s{sF}, 15
    s_add_u32 s41, s41, s42
    s_add_u32 s41, s41, {WS_KEY}
    v_mov_b32 v3, s41
    s_waitcnt lgkmcnt(0)
    v_readlane_b32 s6, v2, 63
    s_cmp_lg_u32 s6, 7
    s_cbranch_scc1 {lb}
    s_mov_b32 exec_lo, 0
    s_mov_b32 exec_hi, 0x80000000
    global_store_dword v3, v1, {P(sWS)} sc1
    s_mov_b64 exec, -1
    {lb}:
    v_mov_b32 v3, {L_SC}""")
a("R_P1:")
TS(1)
unpack(X_, XR)
a("R_P1b:")
ln(X_, D_, T_, XO)
a(f"""s_add_u32 s41, s{sW}, 8
v_xor_b32 v2, s41, v0
s_add_u32 s41, s{sW}, 24
s_lshl_b32 s41, s41, 10
s_add_u32 s41, s41, {L_XN}
v_lshl_add_u32 v2, v2, 4, s41
ds_write_b128 v2, {V(XO,4)}
s_cmp_eq_u32 s{sL}, 0
s_cbranch_scc1 S_l0
s_lshl_b32 s41, s{sTOK}, 10
s_add_u32 s41, s41, {WS_XN}
v_lshl_add_u32 v2, v0, 4, s41
s_cmp_ge_u32 s{sW}, 4
s_cbranch_scc1 R_nw
s_waitcnt vmcnt(1)
s_cmp_eq_u32 s6, 7
s_cbranch_scc1 R_nw
s_waitcnt vmcnt(0)
R_nw:
global_store_dwordx4 v2, {V(XO,4)}, {P(sWS)} sc1
s_cmp_ge_u32 s{sW}, 4
s_cbranch_scc1 H_B1
s_setprio 3""")
wkv_tr(WKV, 8, 9, 98)
a(f"""A_kvp:
v_and_b32 v8, 7, v0
v_add_u32 v8, 8, v8
v_lshrrev_b32 v9, 4, v0
v_xor_b32 v9, v9, v8
v_lshlrev_b32 v8, 10, v8
s_lshl_b32 s41, s{sH}, 8
s_add_u32 s41, s41, {L_XN + 16*1024}
v_add_u32 v8, s41, v8
v_xor_b32 v10, 4, v9
v_xor_b32 v11, 8, v9
v_xor_b32 v12, 12, v9
v_lshl_add_u32 v9, v9, 4, v8
v_lshl_add_u32 v10, v10, 4, v8
v_lshl_add_u32 v11, v11, 4, v8
v_lshl_add_u32 v12, v12, 4, v8
s_cmp_eq_u32 s{sL}, 0
s_cbranch_scc1 A_kv2
s_waitcnt lgkmcnt(0)
s_barrier
A_kv2:
ds_read_b128 v[40:43], v9
ds_read_b128 v[44:47], v10
ds_read_b128 v[48:51], v11
ds_read_b128 v[52:55], v12
s_lshl_b32 s41, s{sH}, 11
s_add_u32 s41, s41, {L_KVS}
v_lshl_add_u32 v8, v0, 4, s41
s_lshl_b32 s42, s{sL}, 2
v_add_u32 v9, s42, v3
v_mov_b32 v10, 1""")
for s in range(4):
    a(f"s_waitcnt lgkmcnt({3-s})")
    a(f"v_mfma_f32_16x16x32_bf16 v[56:59], {V(WKV+8*s,4)}, {V(40+4*s,4)}, {'0' if s==0 else 'v[56:59]'}")
    a(f"v_mfma_f32_16x16x32_bf16 v[60:63], {V(40+4*s,4)}, {V(WKV+8*s+4,4)}, {'0' if s==0 else 'v[60:63]'}")
a(f"""ds_write_b128 v8, v[56:59]
ds_write_b128 v8, v[60:63] offset:1024
s_mov_b64 exec, 1
ds_add_u32 v9, v10 offset:{SC_KVCNT}
s_mov_b64 exec, -1
A_nokv:
s_setprio 0""")
if not os.environ.get("PP"): TS(2)
def stage(src, off, temps):
    for f in range(8):
        t = temps[f % len(temps)]
        for i in range(4):
            a(f"v_perm_b32 v{t+i}, v{src+4*(2*i+1)+(f>>1)}, v{src+4*(2*i)+(f>>1)}, s{sHI if f&1 else sLO}")
        a(f"ds_write_b128 v1, {V(t,4)} offset:{off+1024*f}")
a(f"""s_cmp_lg_u32 s{sL}, 0
s_cbranch_scc1 R_cand
s_setprio 2
s_load_dword s{sE}, {P(sWS)}, 0
s_mov_b32 s45, 5
s_mov_b32 s3, s{sH}
s_branch S_fl
S_l0:""")
TSS(17)
a(f"""v_mov_b32 v3, {L_SC}
s_mov_b32 s44, 0
s_mov_b32 s45, 1
s_add_u32 s3, s{sH}, 28
S_fl:
s_lshl_b32 s41, s44, 2
s_set_gpr_idx_on s41, gpr_idx(SRC0)
s_nop 1
v_mov_b32 v28, v{FOR}
v_mov_b32 v29, v{FOR+1}
v_mov_b32 v30, v{FOR+2}
v_mov_b32 v31, v{FOR+3}
s_nop 1
s_set_gpr_idx_off""")
unpack(40, 28)
ln(40, D_, T_, XO)
a(f"""s_and_b32 s42, s3, 15
v_xor_b32 v28, s42, v0
s_lshl_b32 s41, s3, 10
s_add_u32 s41, s41, {L_XN}
v_lshl_add_u32 v28, v28, 4, s41
ds_write_b128 v28, {V(XO,4)}
s_add_u32 s3, s3, 4
s_add_u32 s44, s44, 1
s_cmp_lg_u32 s44, {E("FLD", 4)}
s_cbranch_scc1 S_nf
s_lshl_b32 s41, s{sH}, 13
s_add_u32 s41, s41, {WS_FLAG}
v_lshl_add_u32 v13, v0, 7, s41
global_load_dword v13, v13, {P(sWS)} sc1
S_nf:
s_cmp_lt_u32 s44, s45
s_cbranch_scc1 S_fl
s_cmp_eq_u32 s45, 5
s_cbranch_scc1 A_P2
s_cmp_eq_u32 s45, 2
s_cbranch_scc1 H_ret""")
TSS(18)
a("s_waitcnt vmcnt(0)")
TSS(19)
wkv_tr(WKV, 8, 9, 98)
lds_inc(3, SC_B1, 8)
TSS(20)
lds_wait(3, SC_B1, 8, 4, 0)
TSS(21)
a(f"""s_setprio 3
s_branch A_kvp
H_B1:
s_waitcnt lgkmcnt(0)
s_barrier
s_setprio 2
s_cmp_lg_u32 s{sW}, 7
s_cbranch_scc1 R_cand
H_fin:
v_and_b32 v12, 3, v0
v_lshrrev_b32 v13, 2, v0
v_lshl_add_u32 v12, v12, 4, v13
v_and_b32 v13, 1, v0
v_lshrrev_b32 v14, 1, v0
v_lshl_add_u32 v13, v13, 4, v14
v_add_u32 v13, 48, v13
v_cmp_gt_u32 vcc, 32, v0
s_lshl_b32 s42, s{sL}, 2
v_add_u32 v9, s42, v3
v_cndmask_b32 v12, v13, v12, vcc
v_lshlrev_b32 v12, 4, v12
v_add_u32 v12, {L_KVS}, v12
s_mul_i32 s41, s{sL}, {KVL}
s_mul_i32 s42, s{sSLOT}, {KVS}
s_add_u32 s41, s41, s42
s_add_u32 s41, s41, {WS_KV}
v_lshl_add_u32 v8, v0, 3, s41""")
lds_wait(9, SC_KVCNT, 11, 4, 0)
for w in range(4): a(f"ds_read_b128 {V(40+4*w,4)}, v12 offset:{2048*w}")
a("s_setprio 3\ns_waitcnt lgkmcnt(2)")
pkadd(40, 40, 44, 4)
a("s_waitcnt lgkmcnt(0)")
pkadd(48, 48, 52, 4); pkadd(40, 40, 48, 4)
pack(40, 40, 2)
a(f"""v_mov_b32_dpp v42, v40 quad_perm:[1,1,3,3] row_mask:0xf bank_mask:0xf
v_mov_b32_dpp v43, v41 quad_perm:[1,1,3,3] row_mask:0xf bank_mask:0xf
s_mov_b32 exec_lo, 0x55555555
s_mov_b32 exec_hi, 0x55555555
global_store_dwordx4 v8, v[40:43], {P(sWS)} sc1
s_mov_b64 exec, -1
s_setprio 2
s_cmp_lg_u32 s{sL}, 0
s_cbranch_scc1 R_cand
s_waitcnt vmcnt(3)
s_branch H_P2""")
a(f"""R_cand:
s_lshl_b32 s41, s{sF}, 3
v_add_u32 v8, s41, v3
ds_read_b32 v8, v8 offset:{SC_KEYS}
s_lshl_b32 s41, s{sF}, 19
s_lshl_b32 s42, s{sB}, 11
s_add_u32 s41, s41, s42
s_add_u32 s41, s41, {WS_CAND}
v_lshl_add_u32 v2, v0, 4, s41
s_waitcnt lgkmcnt(0)
v_readfirstlane_b32 s41, v8
s_mov_b32 s{sCAND}, 0
s_cmp_lg_u32 s41, s{sMYK}
s_cbranch_scc1 R_nocand
s_mov_b32 s{sCAND}, 1
global_store_dwordx4 v2, {V(XN,4)}, {P(sWS)} sc1
global_store_dwordx4 v2, {V(X1,4)}, {P(sWS)} offset:1024 sc1
R_nocand:""")
TSF(8)
a(f"""s_cmp_lg_u32 s{sF}, 0
s_cbranch_scc1 R_tail
s_cmp_ge_u32 s{sW}, 4
s_cbranch_scc1 H_gather""")
def key_reduce():
    dpp_reduce([8], "v_max_u32")
    a(f"""s_lshl_b32 s41, s{sF}, 4
    s_lshl_b32 s42, s{sH}, 2
    s_add_u32 s41, s41, s42
    v_add_u32 v9, s41, v3
    v_add_u32 v8, 1, v8
    s_mov_b32 exec_lo, 0
    s_mov_b32 exec_hi, 0x80000000
    ds_write_b32 v9, v8 offset:{SC_GK}
    s_mov_b64 exec, -1""")
def key_poll():
    l1 = a.newlabel("K_p")
    a(f"""s_lshl_b32 s42, s{sF}, 15
    s_lshl_b32 s41, s{sH}, 13
    s_add_u32 s42, s42, s41
    s_add_u32 s42, s42, {WS_KEY}
    v_lshl_add_u32 v9, v0, 7, s42
    s_mov_b32 s{sCNT}, 0
    s_mov_b32 s44, 0
    s_mov_b64 vcc, -1
    {l1}:
    s_mov_b64 exec, {"vcc" if E("MSK", 1) else "-1"}
    global_load_dword v8, v9, {P(sWS)} sc1
    s_mov_b64 exec, -1
    s_waitcnt vmcnt(0)
    v_cmp_eq_u32 vcc, -1, v8""")
    if E("SPEC", 1):
        a(f"""s_cbranch_vccz K_sd
        v_add_u32 v12, 1, v8""")
        dpp_reduce([12], "v_max_u32")
        a(f"""v_readlane_b32 s41, v12, 63
        s_cmp_eq_u32 s41, s44
        s_cbranch_scc1 K_sn
        s_mov_b32 s44, s41
        s_sub_u32 s41, s41, 1
        s_andn2_b32 s41, 0x7f8, s41
        s_lshl_b32 s41, s41, 8
        s_add_u32 s41, s41, {WS_CAND + 0x80000}
        v_lshl_add_u32 v10, v0, 5, s41
        global_load_dword v11, v10, {P(sWS)} sc1
        K_sn:
        s_add_u32 s{sCNT}, s{sCNT}, 1
        s_cmp_lt_u32 s{sCNT}, {POLLMAX}
        s_cbranch_scc1 {l1}
        K_sd:""")
    else:
        poll_guard(l1, "s_cbranch_vccz", "K_pd", 1, E("KR1", 2))
    key_reduce()
def key_get(sleep):
    l2 = a.newlabel("K_g")
    a(f"""s_lshl_b32 s41, s{sF}, 4
    v_add_u32 v10, s41, v3
    s_mov_b32 s{sCNT}, 0
    {l2}:""")
    a(f"""ds_read_b128 v[16:19], v10 offset:{SC_GK}
    s_waitcnt lgkmcnt(0)
    v_min3_u32 v8, v16, v17, v18
    v_min_u32 v8, v8, v19
    v_cmp_eq_u32 vcc, 0, v8""")
    poll_guard(l2, "s_cbranch_vccz", "K_gd", 8, sleep)
    a(f"""v_max3_u32 v8, v16, v17, v18
    v_max_u32 v8, v8, v19
    v_readfirstlane_b32 s{sKEY}, v8
    s_sub_u32 s{sKEY}, s{sKEY}, 1
    s_and_b32 s41, s{sKEY}, 0x7ff
    s_sub_u32 s{sSEL}, 2047, s41""")
a("A_P2:")
TSS(22)
a(f"""s_lshl_b32 s42, s{sL}, 2
v_add_u32 v9, s42, v3""")
lds_inc(9, SC_XNC, 8)
a(f"""s_mul_i32 s41, s{sL}, {KVL}
s_mul_i32 s42, s{sH}, {64*KVS}
s_add_u32 s41, s41, s42
s_add_u32 s41, s41, {WS_KV + 4*KVS}
v_bfe_u32 v14, v0, 3, 2
v_mul_u32_u24 v14, {KVS}, v14
v_and_b32 v15, 7, v0
v_lshl_add_u32 v14, v15, 5, v14
v_lshrrev_b32 v11, 5, v0
v_lshl_add_u32 v14, v11, 4, v14
v_add_u32 v14, s41, v14
v_and_b32 v15, 31, v0
v_min_u32 v12, 17, v15
v_cmp_eq_u32 vcc, 20, v15
v_cndmask_b32 v15, v12, 16, vcc
v_mul_u32_u24 v11, {KVS}, v11
v_lshl_add_u32 v15, v15, 4, v11
s_add_u32 s41, s41, 256
v_add_u32 v15, s41, v15
s_mov_b32 s{sORD}, 0x65432108
s_mov_b32 s{sORD+1}, 0x7
s_lshl_b32 s41, s{sH}, 13
s_cmp_eq_u32 s{sL}, 0
s_cselect_b32 s{sWT}, 4, 15
s_cselect_b32 s42, {WS_FLAG}, 0
s_cselect_b32 s43, 0, {WS_KEY}
s_add_u32 s41, s41, s42
s_add_u32 s41, s41, s43
v_lshl_add_u32 v10, v0, 7, s41
""")
def kv_base(p):
    a(f"""s_xor_b32 s41, s{sX4}, {p}
    s_mul_i32 s41, s41, {8*KVS}
    s_add_u32 s0, s{sWS}, s41
    s_addc_u32 s1, s{sWS+1}, 0""")
def kv_one(p, i):
    if i % 3 == 0:
        k = i // 3
        a(f"global_load_dwordx4 {V(KK+8*p+4*k,4)}, v14, s[0:1] offset:{4*KVS*k-4*KVS} sc1")
    else:
        j = i - 1 - i // 3
        a(f"global_load_dwordx4 {V(VV+16*p+4*j,4)}, v15, s[0:1] offset:{2*KVS*j-4*KVS} sc1")
def kv_pair(p):
    kv_base(p)
    for i in range(6): kv_one(p, i)
def kv_check(p, younger):
    fr = [KK+8*p, KK+8*p+4] + [VV+16*p+4*i for i in range(4)]
    if os.environ.get("P0"):
        a(f"""s_cmp_lg_u32 s{sL}, {os.environ["P0"]}
        s_cbranch_scc1 C_d{p}
        s_memtime s[92:93]
        s_waitcnt lgkmcnt(0)
        s_mov_b32 s{76+2*p}, s92
        s_waitcnt vmcnt({younger})
        s_memtime s[92:93]
        s_waitcnt lgkmcnt(0)
        s_mov_b32 s{77+2*p}, s92
        C_d{p}:""")
    a(f"""s_waitcnt vmcnt({younger})
    C_r{p}:
    v_max3_u32 v12, v{fr[0]}, v{fr[1]}, v{fr[2]}
    v_max3_u32 v13, v{fr[3]}, v{fr[4]}, v{fr[5]}
    v_max_u32 v12, v12, v13
    v_cmp_eq_u32 vcc, -1, v12
    s_cbranch_vccnz C_x{p}
    C_o{p}:
    s_cmp_eq_u32 s3, {p}
    s_cbranch_scc1 C_m{p}
    C_b{p}:""")
def kv_tail(p):
    a(f"""C_x{p}:
    s_add_u32 s{sCNT}, s{sCNT}, 1
    s_cmp_ge_u32 s{sCNT}, {POLLMAX}
    s_cbranch_scc1 C_o{p}""")
    a("s_mov_b64 s[98:99], s[0:1]")
    kv_pair(p)
    a(f"""s_mov_b64 s[0:1], s[98:99]
    s_waitcnt vmcnt(0)
    s_branch C_r{p}
    C_m{p}:
    v_mov_b32 v12, s5
    s_mov_b64 exec, s[6:7]
    s_set_gpr_idx_on s4, gpr_idx(SRC0,DST)
    s_nop 1
    v_and_b32 v{VV+16*p}, v{VV+16*p}, v12
    s_nop 1
    s_set_gpr_idx_off
    s_mov_b64 exec, -1
    s_nop 1
    s_branch C_b{p}""")
DEP = int(os.environ.get('DEP', '3'))
a(f"""s_and_b32 s{sX4}, s{sPB}, {4 if E("ROT", 3) == 3 else 0}
s_lshr_b32 s41, s{sPB}, 3
s_and_b32 s41, s41, {E("ROT", 3)}
s_or_b32 s{sX4}, s{sX4}, s41
{"s_andn2_b32 s%d, 7, s%d" % (sX4, sB) if E("OWNL", 0) else "s_nop 0"}
s_mov_b32 s{sCNT}, 0
s_cmp_lg_u32 s{sL}, 0
s_cbranch_scc1 A_nfl
s_setprio 0
s_waitcnt vmcnt(0) lgkmcnt(0)
s_mul_i32 s{sTAG}, s{sE}, 0x9e3779b1
s_add_u32 s{sTAG}, s{sTAG}, 0x7f4a7c15
s_sleep {E("FS", 0)}
v_cmp_ne_u32 vcc, s{sTAG}, v13
s_cbranch_vccz A_nf2
A_flg:
global_load_dword v8, v10, {P(sWS)} sc1
s_waitcnt vmcnt(0)
v_cmp_ne_u32 vcc, s{sTAG}, v8""")
poll_guard("A_flg", "s_cbranch_vccz", "A_flgd", 1, 2)
a("s_branch A_nf2\nA_nfl:")
a(f"""s_mov_b32 s{sCNT}, 0
A_xw:
ds_read_b32 v12, v9 offset:{SC_XNC}
s_waitcnt lgkmcnt(0)
v_cmp_gt_u32 vcc, 8, v12
s_cbranch_vccz A_xwd
s_sleep 1
s_add_u32 s{sCNT}, s{sCNT}, 1
s_cmp_lt_u32 s{sCNT}, {E("XT", 5)}
s_cbranch_scc1 A_xw
A_xwd:""")
a(f"global_load_dword v8, v10, {P(sWS)} sc1\nA_nf2:")
TS(3)
for p in range(DEP): kv_pair(p)
TSS(23)
a(f"""s_mov_b32 s3, 15
s_cmp_eq_u32 s{sL}, 0
s_cbranch_scc1 A_go
s_mov_b32 s{sCNT}, 0
s_waitcnt vmcnt({6*DEP})
s_branch A_kc
A_kp:
s_mov_b64 exec, {"vcc" if E("MSK", 1) else "-1"}
global_load_dword v8, v10, {P(sWS)} sc1
s_mov_b64 exec, -1
s_waitcnt vmcnt(0)
A_kc:
v_cmp_eq_u32 vcc, -1, v8""")
poll_guard("A_kp", "s_cbranch_vccz", "A_kpd", 1, E("KR0", 1))
key_reduce()
key_get(0)
if XL:
    a(f"""s_bfe_u32 s41, s{sSEL}, 0x50003
    s_lshl_b32 s41, s41, 6
    s_lshr_b32 s42, s{sSEL}, 8
    s_lshl_b32 s42, s42, 3
    s_or_b32 s41, s41, s42
    s_and_b32 s42, s{sSEL}, 7
    s_or_b32 s101, s41, s42""")
else:
    a(f"s_mov_b32 s101, s{sSEL}")
a(f"""s_bfe_u32 s4, s101, 0x20007
s_lshl_b32 s4, s4, 2
s_bfe_u32 s42, s{sSEL}, 0x20001
s_add_u32 s4, s4, s42
s_bitcmp1_b32 s{sSEL}, 0
s_mov_b32 s5, 0xffff0000
s_cselect_b32 s5, 0xffff, s5
s_bitcmp1_b32 s101, 6
s_cselect_b32 s6, 0, -1
s_cselect_b32 s7, -1, 0
s_lshr_b32 s41, s101, 9
s_bfe_u32 s42, s101, 0x30003
s_xor_b32 s42, s42, s{sX4}
s_cmp_eq_u32 s41, s{sH}
s_cselect_b32 s3, s42, 15
s_xor_b32 s41, s{sSEL}, s{sTOK}
s_lshr_b32 s41, s41, 5
s_cbranch_scc1 A_go
s_lshl_b32 s41, s{sC}, 3
s_sub_u32 s41, s{sSEL}, s41
s_sub_u32 s41, s41, 8
s_bfe_u32 s{sWT}, s41, 0x30002
s_or_b32 s41, s{sWT}, 1
s_max_u32 s41, s41, {E('POS', 4)}
s_xor_b32 s42, s41, s{sWT}
s_mov_b32 s43, 0
s_lshl_b32 s41, s41, 2
s_add_u32 s41, s41, 4
s_lshl_b64 s[44:45], s[42:43], s41
s_xor_b64 {P(sORD)}, {P(sORD)}, s[44:45]
s_lshl_b32 s41, s{sWT}, 2
s_add_u32 s41, s41, 4
s_lshl_b64 s[44:45], s[42:43], s41
s_xor_b64 {P(sORD)}, {P(sORD)}, s[44:45]
A_go:
s_setprio 0
s_lshl_b32 s42, s{sL}, 2
v_add_u32 v9, s42, v3""")
def att_addr():
    a(f"""v_bfe_u32 v1, v0, 3, 2
    v_mul_u32_u24 v1, {QSTR}, v1
    v_and_b32 v2, 7, v0
    v_lshl_add_u32 v1, v2, 5, v1
    v_lshrrev_b32 v2, 5, v0
    v_lshl_add_u32 v1, v2, 4, v1
    v_add_u32 v{vQA}, {L_Q}, v1
    s_lshl_b32 s{sOPB}, s{sH}, 11
    s_add_u32 s{sOPB}, s{sOPB}, 1796
    v_mov_b32 v{vIDX}, 0xdddddddd
    v_and_b32 v0, 31, v0
    s_lshl_b32 s41, s{sH}, 7
    s_add_u32 s41, s41, {L_L}
    v_lshl_add_u32 v0, v0, 2, s41""")
att_addr()
a(f"s_mov_b32 s{sCNT}, 0")
kv_check(0, 6*(DEP-1))
TS(4)
a(f"""s_bfe_u32 s41, s{sORD}, 0x40004
s_and_b32 s43, s41, 4
s_add_u32 s43, s43, 4""")
lds_wait(9, SC_QC, 10, "s43", 0)
a(f"""s_lshl_b32 s2, s{sL}, 2
s_add_u32 s2, s2, {L_SC + SC_QC}
s_mul_i32 s41, s41, {4*QSTR}
v_add_u32 v{Q}, s41, v{vQA}
ds_read_b128 {V(Q,4)}, v{Q}
s_mov_b32 s{sCNT}, 0""")
for i in range(0, 10, 2): a(f"v_mov_b64 {V(ACC+i,2)}, 0")
TS(5)
TC(0)
def smf(vfrag, pb): a(f"v_smfmac_f32_32x32x32_bf16 {V(ACC,16)}, {V(VV+4*vfrag,4)}, {V(pb,8)}, v{vIDX}")
def ex(base, lo, hi):
    for i in range(lo, hi): a(f"v_exp_f32 v{base+i}, v{base+i}")
def flush():
    for r in range(8): a(f"ds_write_addtid_b32 v{ACC+r} offset:{L_SLOT - 1796 + 256*r}")
    a(f"ds_write_b32 v{vOA}, v{ACC+8}")
def flush_pre():
    a(f"""s_lshl_b32 s42, s41, 13
    s_add_u32 m0, s42, s{sOPB}
    v_lshl_add_u32 v{vOA}, s41, 9, v0""")
a(f"""s_waitcnt lgkmcnt(0)
v_mfma_f32_32x32x16_bf16 {V(S0,16)}, {V(KK,4)}, {V(Q,4)}, 0""")
NT = 16
QIN = E("QIN", 0)
def qwait():
    a(f"""v_mov_b32 v14, {L_SC}
    s_lshl_b32 s42, 4, s{sL}""")
    lds_wait(14, SC_QFIX, 15, "s42", 1)
    a(f"s_mov_b32 s{sWT}, 15")
def att_pass(first):
    for kt in range(NT):
        cur, oth = (S0, S1) if kt % 2 == 0 else (S1, S0)
        lp = kt//2 + DEP
        ld = first and lp < 8
        def L(i):
            if ld: kv_one(lp, 3*(kt & 1) + i)
        if ld and kt % 2 == 0: kv_base(lp)
        ex(cur, 0, 2)
        if not (first and kt == 0): smf((2*kt - 1) % (2*NT), oth + 8)
        L(0)
        ex(cur, 2, 5)
        if kt == NT-1: a("s_waitcnt lgkmcnt(0)")
        if first and kt % 2 == 1 and kt < NT-1:
            p = (kt+1)//2
            kv_check(p, (6*(lp - p) - 2) if ld else 6*(7 - p))
        a(f"v_mfma_f32_32x32x16_bf16 {V(oth,16)}, {V(KK+4*((kt+1)%NT),4)}, {V(Q,4)}, 0")
        if first and kt == NT-3:
            a(f"""v_mov_b32 v13, s2
            ds_read_b32 v13, v13""")
        if first and kt == NT-2:
            a(f"""s_waitcnt lgkmcnt(0)
            v_cmp_gt_u32 vcc, 8, v13
            s_cbranch_vccnz A_q8
            A_q8b:""")
        if kt == NT-2:
            a(f"s_bfe_u32 s41, s{sORD}, 0x40008")
            if not first:
                a(f"""s_cmp_lg_u32 s41, s{sWT}
                s_cbranch_scc1 A_qback""") if QIN else a(f"""s_cmp_eq_u32 s41, s{sWT}
                s_cbranch_scc1 A_qwait""")
                if QIN: qwait()
                a("A_qback:")
            a(f"""s_mul_i32 s41, s41, {4*QSTR}
            v_add_u32 v{Q}, s41, v{vQA}
            ds_read_b128 {V(Q,4)}, v{Q}""")
        if kt == 0 and not first:
            a(f"s_and_b32 s41, s{sORD}, 15")
            flush_pre()
            ex(cur, 5, 9)
            flush()
            a(f"v_mfma_f32_32x32x8_f16 {V(ACC,16)}, {V(ZZ,2)}, {V(ZZ,2)}, 0")
            ex(cur, 9, 13)
            smf(0, cur)
            ex(cur, 13, 16)
        else:
            ex(cur, 5, 8)
            L(1)
            ex(cur, 8, 10)
            smf(2*kt, cur)
            ex(cur, 10, 13)
            L(2)
            ex(cur, 13, 16)
        if ld and lp == 7 and kt % 2 == 1:
            a(f"v_mov_b32 v12, {L_SC}")
            lds_inc(12, SC_KVD, 13)
att_pass(True)
a(f"""v_mov_b64 {V(ZZ,2)}, 0
s_lshr_b64 {P(sORD)}, {P(sORD)}, 4""")
if not os.environ.get('PP'): TS(12)
if TSON:
    a(f"""s_cmp_eq_u32 s{sL}, 0
    s_cselect_b32 s73, s{sCNT}, s73
    s_nop 0""")
if os.environ.get("AL"):
    a(".p2align 6")
    for _ in range(int(os.environ["AL"])): a("s_nop 0")
a("A_pass:")
if os.environ.get("PP"): a("s_memtime s[94:95]")
att_pass(False)
if os.environ.get("PP"):
    a(f"""s_cmp_lg_u32 s{sL}, {os.environ.get("PP")}
    s_cbranch_scc1 A_ppx""")
    for d, q in ((86, 87), (87, 88), (88, 74), (74, 70), (70, 71), (71, 62), (62, 94)): a(f"s_mov_b32 s{d}, s{q}")
    a("A_ppx:")
a(f"""s_lshr_b64 {P(sORD)}, {P(sORD)}, 4
s_cmp_gt_u32 s{sORD}, 15
s_cbranch_scc1 A_pass""")
smf(2*NT-1, S1 + 8)
if not QIN:
    a("s_branch A_fl\nA_qwait:")
    qwait()
    a("s_branch A_qback\nA_fl:")
a(f"s_and_b32 s41, s{sORD}, 15")
flush_pre()
flush()
TC(1)
TS(9)
a(f"""A_X:
v_mbcnt_lo_u32_b32 v0, -1, 0
v_mbcnt_hi_u32_b32 v0, -1, v0
s_waitcnt lgkmcnt(0)
s_barrier""")
TS(6)
a(f"""v_mov_b32 v9, {L_SC}
s_barrier
ds_read_b32 v9, v9 offset:{SC_BAD}
s_lshl_b32 s98, s{sH}, 13
s_add_u32 s98, s98, {L_WK1}
s_waitcnt lgkmcnt(0)
v_cmp_ne_u32 vcc, 0, v9
s_cbranch_vccnz A_slow
s_cmp_lg_u32 s{sL}, 0
s_cbranch_scc1 R_P4
v_mov_b64 v[28:29], -1
v_mov_b64 v[30:31], -1
s_lshl_b32 s41, s{sH}, 10
s_add_u32 s41, s41, {L_L}
v_lshl_add_u32 v2, v0, 4, s41
ds_write_b128 v2, v[28:31]""")
a(f"""R_P4:
s_mul_i32 s41, s{sW}, {RS}
s_add_u32 s41, s41, {L_ROW}
v_lshl_add_u32 v3, v0, 5, s41
s_waitcnt lgkmcnt(0)
s_barrier
ds_read_b128 v[8:11], v3
ds_read_b128 v[16:19], v3 offset:{8*RS}
ds_read_b128 v[12:15], v3 offset:16
ds_read_b128 v[20:23], v3 offset:{8*RS+16}
s_mov_b32 s{sF}, s{sL}
s_mov_b32 s{sSLOW}, 0
v_lshlrev_b32 v2, 4, v0
v_add_u32 v2, {L_X2S}, v2
ds_read_b128 {V(WR,4)}, v2 offset:{L_SC + SC_WR - L_X2S}
s_cmp_lg_u32 s{sSEL}, s{sTOK}
s_cbranch_scc1 R_nx
ds_read_b128 {V(XR,4)}, v2
s_waitcnt lgkmcnt(0)
R_nx:""")
a(f"""s_lshl_b32 s41, s{sL}, 2
s_or_b32 s41, s41, s{sW}
s_cmp_ge_u32 s41, 4
s_cbranch_scc1 R_nd""")
wkv_dma(2, 98)
a("R_nd:")
unpack(24, XR)
a("s_waitcnt lgkmcnt(0)")
TS(7)
pkadd(8, 8, 16, 8)
pkadd(8, 8, 24, 8)
ln(X_, D_, T_, XN)
a(f"""v_dot2_f32_bf16 v1, v{XN}, v{WR}, 0
v_dot2_f32_bf16 v1, v{XN+1}, v{WR+1}, v1
v_dot2_f32_bf16 v1, v{XN+2}, v{WR+2}, v1
v_dot2_f32_bf16 v1, v{XN+3}, v{WR+3}, v1""")
dpp_reduce([1])
key_make()
a(f"""s_cmp_lg_u32 s{sL}, 0
s_cbranch_scc1 R_lastl""")
pack(X1, X_)
pkadd(X_, D_, X_, 8)
pack(XR, X_)
a(f"""s_mov_b32 s{sL}, 1""")
key_pub()
a(f"""s_branch R_P1b
R_lastl:""")
pack(X1, X_)
key_pub()
pkadd(X_, D_, X_, 8)
pack(XR, X_)
a(f"""s_barrier
s_branch R_cand
R_tail:
s_lshl_b32 s41, s{sTOK}, 10
v_lshl_add_u32 v1, v0, 4, s41
s_cmp_lt_u32 s{sW}, {4 if E("ALATE", 0) else 0}
s_cbranch_scc1 R_noout
s_cmp_lg_u32 s{sCAND}, 0
s_cbranch_scc1 R_noout
global_store_dwordx4 v1, {V(XR,4)}, {P(sOUT)}{OUTF}
R_noout:
s_cmp_ge_u32 s{sW}, 4
s_cbranch_scc1 H_FF2""")
key_poll()
a(f"""s_cmp_eq_u32 s{sCAND}, 0
s_cbranch_scc1 {"R_st" if E("ALATE", 0) else "L_end"}""")
key_get(1)
a(f"""s_cmp_eq_u32 s{sSEL}, s{sTOK}
s_cbranch_scc1 L_end
R_st:
global_store_dwordx4 v1, {V(XR,4)}, {P(sOUT)}{OUTF}
s_branch L_end
""")
for p in range(8): kv_tail(p)
a("A_q8:\nv_mov_b32 v12, s2")
lds_wait(12, 0, 13, 8, 1)
a("s_branch A_q8b")

def qtr_addr():
    a(f"""v_lshrrev_b32 v12, 4, v0
    v_bfe_u32 v13, v0, 2, 2
    v_lshl_add_u32 v1, v12, 3, v13
    v_and_b32 v12, 1, v12
    v_lshl_add_u32 v12, v12, 2, v13
    s_lshl_b32 s41, s{sH}, 1
    v_xor_b32 v12, s41, v12
    v_and_b32 v13, 3, v0
    v_lshl_add_u32 v13, v12, 2, v13
    v_lshlrev_b32 v13, 3, v13
    v_lshl_add_u32 v1, v1, 8, v13""")
def coop(j):
    a(f"s_add_u32 m0, s4, {1024*j}")
    a(f"global_load_lds_dwordx4 v{50 + ((j>>1)&1)}, s[0:1]")
    a("s_add_u32 s0, s0, 4096\ns_addc_u32 s1, s1, 0")
a(f"""H_stage:
v_lshrrev_b32 v48, 2, v0
v_and_b32 v49, 3, v0
v_lshlrev_b32 v49, 4, v49
v_lshl_add_u32 v48, v48, 10, v49
s_lshl_b32 s41, s{sH}, 6
s_lshl_b32 s42, s{sC}, 8
s_add_u32 s41, s41, s42
v_add_u32 v48, s41, v48
s_lshl_b32 s5, s{sH}, 12
s_add_u32 s5, s5, {6*8192}""")
for q in range(4):
    a(f"""s_add_u32 s0, s{sWQ}, {32768*14 + 16384*q}
    s_addc_u32 s1, s{sWQ+1}, 0
    s_add_u32 m0, s5, {1024*q}
    global_load_lds_dwordx4 v48, s[0:1]""")
a(f"""v_lshrrev_b32 v49, 4, v0
v_lshlrev_b32 v50, 1, v49
v_xor_b32 v50, v50, v0
v_and_b32 v50, 15, v50
v_lshlrev_b32 v50, 4, v50
v_lshl_add_u32 v50, v49, 10, v50
v_add_u32 v50, s42, v50
v_xor_b32 v51, 128, v50
s_lshl_b32 s41, s{sH}, 1
s_add_u32 s41, s41, 8
s_lshl_b32 s4, s41, 13
s_lshl_b32 s41, s41, 15
s_add_u32 s0, s{sWQ}, s41
s_addc_u32 s1, s{sWQ+1}, 0
s_cmp_eq_u32 s{sH}, 3
s_cbranch_scc1 H_c3""")
for j in range(16): coop(j)
a(f"""s_branch H_c4
H_c3:
s_setprio 3
s_lshl_b32 s41, s{sPB}, 7
s_add_u32 s41, s41, {WS_FLAG}
v_mov_b32 v1, s41
v_mov_b32 v3, {L_SC}
s_waitcnt lgkmcnt(0)
s_mul_i32 s{sTAG}, s{sE}, 0x9e3779b1
s_add_u32 s{sTAG}, s{sTAG}, 0x7f4a7c15
v_mov_b32 v2, s{sTAG}
s_waitcnt vmcnt(0)
s_mov_b64 exec, 1
global_store_dword v1, v2, {P(sWS)} sc1
s_mov_b64 exec, -1""")
a("s_setprio 1\nH_c4:")
a(f"""v_lshrrev_b32 v12, 4, v0
v_bfe_u32 v13, v0, 2, 2
v_lshl_add_u32 v1, v12, 3, v13
v_and_b32 v13, 3, v0
v_lshlrev_b32 v13, 3, v13
v_lshl_add_u32 v1, v1, 6, v13
v_add_u32 v1, s5, v1
v_mov_b32 v3, {L_SC}
s_waitcnt lgkmcnt(0)
s_mul_i32 s{sTAG}, s{sE}, 0x9e3779b1
s_add_u32 s{sTAG}, s{sTAG}, 0x7f4a7c15""")
TSS(18)
a("s_waitcnt vmcnt(16)")
for k in range(2):
    for f in range(2):
        for hf in range(2): a(f"ds_read_b64_tr_b16 {V(WQR+48+8*k+4*f+2*hf,2)}, v1 offset:{k*2048 + 256*hf + 32*f}")
lds_inc(3, SC_C2, 8)
a(f"""s_cmp_eq_u32 s{sH}, 3
s_cbranch_scc1 H_c5
s_lshl_b32 s4, s{sH}, 14
s_lshl_b32 s41, s{sH}, 16
s_add_u32 s0, s{sWQ}, s41
s_addc_u32 s1, s{sWQ+1}, 0""")
for j in range(16): coop(j)
a("H_c5:")
TSS(19)
lds_wait(3, SC_C2, 8, 4, 0)
a(f"""s_lshl_b32 s41, s{sH}, 14
s_add_u32 s41, s41, {6*32768}
s_add_u32 s0, s{sWQ}, s41
s_addc_u32 s1, s{sWQ+1}, 0
s_mov_b32 s4, s5""")
for j in range(4): coop(j)
a(f"s_add_u32 s44, s{sH}, 16")
pos2tok(41, 44)
a(f"""s_lshl_b32 s41, s41, 10
s_add_u32 s41, s41, 2048
v_lshl_add_u32 v1, v0, 4, s41
global_load_dwordx4 {V(FOR,4)}, v1, {P(sX)} offset:-2048
global_load_dwordx4 {V(FOR+4,4)}, v1, {P(sX)} offset:2048
s_cmp_lg_u32 s{sW}, 6
s_cbranch_scc1 H_st0
v_lshlrev_b32 v1, 4, v0
v_add_u32 v1, {L_SC + SC_WR}, v1
ds_write_b128 v1, v[44:47]
H_st0:
s_cmp_eq_u32 s{sW}, 7
s_cbranch_scc1 H_fin
s_waitcnt vmcnt(2)""")
TSA(4)
a("s_setprio 2\ns_branch H_P2")
a(f"""H_gather:
v_xor_b32 v12, s{sH}, v0
v_xor_b32 v13, 4, v12
v_xor_b32 v14, 8, v12
v_xor_b32 v15, 12, v12
s_lshl_b32 s41, s{sH}, 10
s_add_u32 s41, s41, {L_XN}
v_lshl_add_u32 v12, v12, 4, s41
v_lshl_add_u32 v13, v13, 4, s41
v_lshl_add_u32 v14, v14, 4, s41
v_lshl_add_u32 v15, v15, 4, s41
s_mov_b32 s{sCNT}, 0
s_sleep {E('GS', 8)}
H_xg:""")
gloads(8)
a(f"""s_waitcnt vmcnt(0)
v_max3_u32 v16, v40, v44, v48
v_max3_u32 v17, v52, v56, v60
v_max_u32 v16, v16, v17
v_cmp_eq_u32 vcc, -1, v16""")
poll_guard("H_xg", "s_cbranch_vccz", "H_xgd", 1, E("GR", 0))
for i in range(6): a(f"ds_write_b128 v{12+(i&3)}, {V(40+4*i,4)} offset:{4096*i}")
a(f"""H_P2:
s_lshl_b32 s42, s{sL}, 2
s_add_u32 s42, s42, {L_SC}
v_mov_b32 v3, s42""")
lds_inc(3, SC_XNC, 12)
a(f"""v_and_b32 v1, 15, v0
v_lshrrev_b32 v2, 4, v0
v_xor_b32 v8, v2, v1
v_lshlrev_b32 v1, 10, v1
v_add_u32 v1, {L_XN}, v1
v_xor_b32 v9, 4, v8
v_xor_b32 v10, 8, v8
v_xor_b32 v11, 12, v8
v_lshl_add_u32 v8, v8, 4, v1
v_lshl_add_u32 v9, v9, 4, v1
v_lshl_add_u32 v10, v10, 4, v1
v_lshl_add_u32 v11, v11, 4, v1
v_and_b32 v2, 15, v0
v_mul_u32_u24 v2, {QSTR}, v2
v_lshrrev_b32 v12, 4, v0
v_lshl_add_u32 v2, v12, 3, v2
s_lshl_b32 s41, s{sH}, 6
s_add_u32 s41, s41, {L_Q}
v_add_u32 v2, s41, v2
s_mov_b32 s{sQM}, 0""")
qtr_addr()
a(f"""s_cmp_lg_u32 s{sL}, 0
s_cbranch_scc1 H_q0""")
lds_inc(3, SC_C2, 12)
lds_wait(3, SC_C2, 12, 8, 0)
a(f"""v_add_u32 v12, 0x10000, v1
v_xor_b32 v13, 32, v12""")
for k in range(6):
    for f in range(2):
        for hf in range(2): a(f"ds_read_b64_tr_b16 {V(WQR+8*k+4*f+2*hf,2)}, v{12+f} offset:{k*8192 + 1024*hf}")
    if k in (2, 4): a("s_waitcnt lgkmcnt(4)")
a("s_waitcnt lgkmcnt(0)\nH_q0:")
lds_wait(3, SC_XNC, 12, 8, 0)
TS(3)
a("H_qp:")
order = [14, 0, 15, 1, 8, 2, 9, 3, 10, 4, 11, 5, 12, 6, 13, 7]
def qbuf(idx): return (20 + 12*((idx//2) % 3)) if order[idx] < 8 else (56 + 4*((idx//2) % 2))
def qread(idx):
    s = order[idx]; b = qbuf(idx)
    a(f"ds_read_b128 {V(b,4)}, v{8+(s&3)} offset:{256*(s>>2)}")
    if s < 8:
        for hf in range(2): a(f"ds_read_b64_tr_b16 {V(b+4+2*hf,2)}, v1 offset:{8192*s + 1024*hf}")
        a(f"v_xor_b32 v{b+10}, 32, v1")
        for hf in range(2): a(f"ds_read_b64_tr_b16 {V(b+8+2*hf,2)}, v{b+10} offset:{8192*s + 1024*hf}")
qcnt = lambda i: 5 if order[i] < 8 else 1
AH = 3
for i in range(AH): qread(i)
for idx in range(16):
    if idx + AH < 16: qread(idx+AH)
    a(f"s_waitcnt lgkmcnt({sum(qcnt(j) for j in range(idx+1, min(idx+AH+1, 16)))})")
    s = order[idx]; b = qbuf(idx)
    for f in range(2):
        A_ = V(b+4+4*f,4) if s < 8 else V(WQR+8*(s-8)+4*f,4)
        d = V(12+4*f,4)
        a(f"v_mfma_f32_16x16x32_bf16 {d}, {A_}, {V(b,4)}, {'0' if idx==0 else d}")
a(f"""s_setprio 2
s_mov_b32 s42, {QSCALE}""")
for i in range(4): a(f"v_add_u32 v{8+i}, 0x4000, v{8+i}")
for i in range(0, 8, 2): a(f"v_pk_mul_f32 {V(12+i,2)}, {V(12+i,2)}, s[42:43] op_sel_hi:[1,0]")
pack(20, 12, 4)
a(f"""ds_write_b64 v2, v[20:21]
ds_write_b64 v2, v[22:23] offset:32""")
lds_inc(3, SC_QC, 12)
a(f"""s_cmp_eq_u32 s{sQM}, 2
s_cbranch_scc1 H_fx3
s_cmp_eq_u32 s{sQM}, 1
s_cbranch_scc1 H_qd""")
TS(2)
a(f"""v_add_u32 v2, {16*QSTR}, v2
s_mov_b32 s{sQM}, 1
s_cmp_lg_u32 s{sL}, 0
s_cbranch_scc1 H_q2
s_setprio {HLNP}
s_mov_b32 s44, 0
s_mov_b32 s45, 2
s_add_u32 s3, s{sH}, 16
s_waitcnt vmcnt(0)
s_branch S_fl
H_ret:""")
lds_inc(3, SC_XN2, 12)
lds_wait(3, SC_XN2, 12, 4, 1)
a(f"""H_q2:
s_setprio 0
s_branch H_qp
H_qd:""")
a(f"""s_cmp_eq_u32 s{sL}, 0
s_cbranch_scc1 H_prep
v_mov_b32 v3, {L_SC}
s_branch H_FFN
H_prep:""")
lds_wait(3, SC_KVD, 12, 4, 4)
a(f"""s_min_u32 s43, s{sB}, 223
s_lshl_b32 s43, s43, 2
s_add_u32 s43, s43, s{sH}
s_and_b32 s44, s43, 31
s_lshr_b32 s45, s43, 5
v_lshrrev_b32 v2, 3, v0
v_and_b32 v3, 7, v0
s_mul_i32 s41, s44, {8*7168}
s_lshl_b32 s42, s45, 7
s_add_u32 s41, s41, s42
v_mul_u32_u24 v1, 7168, v2
v_lshl_add_u32 v1, v3, 4, v1
v_add_u32 v1, s41, v1
global_load_dwordx4 {V(GU,4)}, v1, {P(sWG)}
global_load_dwordx4 {V(GU+4,4)}, v1, {P(sWG)} offset:3584
global_load_dwordx4 {V(GU+8,4)}, v1, {P(sWU)}
global_load_dwordx4 {V(GU+12,4)}, v1, {P(sWU)} offset:3584
s_lshl_b32 s41, s45, 16
s_lshl_b32 s42, s44, 5
s_add_u32 s41, s41, s42
s_add_u32 s41, s41, 4096
v_lshlrev_b32 v1, 13, v2
v_lshl_add_u32 v1, v3, 2, v1
v_add_u32 v1, s41, v1""")
for r in range(8): a(f"global_load_dword v{WDn + 4*(r&1) + (r>>1)}, v1, {P(sWD)} offset:{1024*r-4096}")
a(f"""v_lshrrev_b32 v9, 4, v0
v_lshlrev_b32 v8, 1, v9
v_xor_b32 v8, v8, v0
v_and_b32 v8, 15, v8
v_lshlrev_b32 v8, 4, v8
v_lshl_add_u32 v8, v9, 10, v8
v_bfe_u32 v10, v0, 2, 2
v_lshl_add_u32 v16, v9, 3, v10
v_and_b32 v9, 1, v9
v_lshl_add_u32 v9, v9, 2, v10
v_and_b32 v10, 3, v0
v_lshl_add_u32 v10, v9, 2, v10
v_lshlrev_b32 v10, 3, v10
v_lshl_add_u32 v16, v16, 8, v10
v_xor_b32 v9, 128, v8
s_lshl_b32 s4, s{sH}, 13
s_add_u32 s4, s4, {L_SLOT + 32768}
v_add_u32 v16, s4, v16
s_lshl_b32 s41, s{sC}, 17
s_lshl_b32 s42, s{sH}, 8
s_add_u32 s41, s41, s42
s_add_u32 s0, s{sWO}, s41
s_addc_u32 s1, s{sWO+1}, 0""")
for f in range(1, 8): a(f"v_xor_b32 v{16+f}, {32*f}, v16")
for s in range(4):
    for j in range(8):
        a(f"""s_add_u32 m0, s4, {1024*j}
        global_load_lds_dwordx4 v{8 + ((j>>1)&1)}, s[0:1]
        s_add_u32 s0, s0, 4096
        s_addc_u32 s1, s1, 0""")
    a("s_waitcnt vmcnt(0)")
    for f in range(8):
        for hf in range(2): a(f"ds_read_b64_tr_b16 {V(WO+32*s+4*f+2*hf,2)}, v{16+f} offset:{1024*hf}")
        if f == 5: a("s_waitcnt lgkmcnt(4)")
    a("s_waitcnt lgkmcnt(0)")
a(f"v_mov_b32 v1, {L_SC}")
lds_inc(1, SC_QFIX, 8)
a(f"""v_mov_b64 v[8:9], -1
v_mov_b64 v[10:11], -1
s_lshl_b32 s41, s{sB}, 13
s_lshl_b32 s42, s{sH}, 11
s_add_u32 s41, s41, s42
s_add_u32 s41, s41, {WS_XN}
v_lshl_add_u32 v1, v0, 4, s41
global_store_dwordx4 v1, v[8:11], {P(sWS)} sc1
global_store_dwordx4 v1, v[8:11], {P(sWS)} offset:1024 sc1
s_lshr_b32 s41, s{sH}, 1
s_lshl_b32 s41, s41, 19
s_and_b32 s42, s{sH}, 1
s_lshl_b32 s42, s42, 10
s_add_u32 s41, s41, s42
s_lshl_b32 s42, s{sB}, 11
s_add_u32 s41, s41, s42
s_add_u32 s41, s41, {WS_CAND}
v_lshl_add_u32 v1, v0, 4, s41
global_store_dwordx4 v1, v[8:11], {P(sWS)} sc1
s_cmp_ge_u32 s{sB}, 224
s_cbranch_scc1 H_bursts
s_setprio {E('FP', 0)}""")
for base in (GU, GU+8, WDn):
    for i in range(4): tr_pair(base+i, base+4+i, 12)
a(f"""s_setprio 2
v_lshlrev_b32 v2, 4, v2
v_lshl_add_u32 v2, v3, 15, v2
s_lshl_b32 s41, s45, 18
s_lshr_b32 s42, s44, 3
s_lshl_b32 s42, s42, 13
s_add_u32 s41, s41, s42
s_and_b32 s42, s44, 7
s_lshl_b32 s42, s42, 7
s_add_u32 s41, s41, s42
s_add_u32 s41, s41, {WS_FS}
v_add_u32 v1, s41, v2""")
for i in range(4): a(f"global_store_dwordx4 v1, {V(GU+4*i,4)}, {P(sWS)} offset:{1024*i} sc1")
a(f"""s_lshl_b32 s41, s44, 18
s_lshr_b32 s42, s45, 3
s_lshl_b32 s42, s42, 13
s_add_u32 s41, s41, s42
s_and_b32 s42, s45, 7
s_lshl_b32 s42, s42, 7
s_add_u32 s41, s41, s42
s_add_u32 s41, s41, {WS_FS + 4096}
v_add_u32 v1, s41, v2""")
for i in range(2): a(f"global_store_dwordx4 v1, {V(WDn+4*i,4)}, {P(sWS)} offset:{1024*i} sc1")
a("H_bursts:")
TS(5)
OF, AC = 8, 32
sSB, sLB = 44, 45
a(f"""s_lshr_b32 s41, s{sH}, 1
s_and_b32 s42, s{sH}, 1
s_lshl_b32 s{sSB}, s41, 13
s_lshl_b32 s43, s42, 10
s_add_u32 s{sSB}, s{sSB}, s43
s_add_u32 s{sSB}, s{sSB}, {L_SLOT}
s_lshl_b32 s{sLB}, s41, 9
s_add_u32 s{sLB}, s{sLB}, {L_L}
v_bfe_u32 v3, v0, 3, 2
v_mul_u32_u24 v3, {QSTR}, v3
v_and_b32 v8, 7, v0
v_lshl_add_u32 v3, v8, 5, v3
s_mul_i32 s43, s41, {4*QSTR}
s_add_u32 s43, s43, {L_O}
v_add_u32 v3, s43, v3
v_and_b32 v2, 15, v0
v_mul_u32_u24 v2, {QSTR}, v2
v_lshrrev_b32 v8, 4, v0
v_lshl_add_u32 v2, v8, 4, v2
v_add_u32 v2, {L_O}, v2
s_mul_i32 s{sOPB}, s{sL}, {OPL}
s_mov_b32 s98, 0x00ff00ff
s_mov_b32 s99, 0x00ff00ff
s_mul_i32 s41, s{sH}, 12288
s_add_u32 s{sOPB}, s{sOPB}, s41
s_add_u32 s{sOPB}, s{sOPB}, {WS_OP}
s_add_u32 s{sOTAG}, s{sTAG}, s{sL}
s_add_u32 s{sOTAG}, s{sOTAG}, 1""")
def corr(g):
    l0 = a.newlabel("H_c0"); l1 = a.newlabel("H_c1")
    a(f"""s_andn2_b32 s41, s{sL}, s{sSLOW}
    s_cbranch_scc0 {l0}
    v_lshrrev_b32 v28, 5, v0
    s_lshl_b32 s41, s{sH}, 5
    s_add_u32 s41, s41, {L_VS}
    v_lshl_add_u32 v28, v28, 4, s41
    ds_read_b128 v[8:11], v3 offset:{L_Q - L_O + 8*QSTR*g}
    ds_read_b128 v[12:15], v3 offset:{L_Q - L_O + 8*QSTR*g + 16}
    ds_read_b128 v[28:31], v28
    s_waitcnt lgkmcnt(1)
    v_dot2_f32_bf16 v1, v8, s{sKSL[0]}, 0""")
    for i in range(1, 8): a(f"v_dot2_f32_bf16 v1, v{8+i}, s{sKSL[i]}, v1")
    a(f"""v_exp_f32 v1, v1
    s_waitcnt lgkmcnt(0)
    v_and_b32 v1, 0xffff0000, v1
    v_pk_mul_f32 v[28:29], v[28:29], v[0:1] op_sel:[0,1] op_sel_hi:[1,1]
    v_pk_mul_f32 v[30:31], v[30:31], v[0:1] op_sel:[0,1] op_sel_hi:[1,1]
    s_branch {l1}
    {l0}:
    v_mov_b32 v1, 0
    v_mov_b64 v[28:29], 0
    v_mov_b64 v[30:31], 0
    {l1}:""")
def norm_pre(g):
    a(f"""v_and_b32 v10, 31, v0
    s_add_u32 s41, s{sLB}, {1024*g}
    v_lshl_add_u32 v10, v10, 2, s41
    v_lshl_add_u32 v26, v0, 2, s{sSB}""")
def normalize(g, sleep):
    if sleep:
        lb = a.newlabel("H_lw")
        a(f"""v_lshl_add_u32 v13, v0, 3, s{sLB}
        s_mov_b32 s{sCNT}, 0
        {lb}:
        ds_read_b32 v8, v13 offset:{1024*g}
        s_waitcnt lgkmcnt(0)
        v_cmp_eq_u32 vcc, -1, v8""")
        poll_guard(lb, "s_cbranch_vccz", "H_lwd", 4, sleep)
    a(f"""ds_read2_b32 v[8:9], v10 offset0:0 offset1:32
    ds_read2_b32 v[10:11], v10 offset0:64 offset1:96""")
    for w in range(4):
        for hf in range(2): a(f"ds_read2st64_b32 {V(12+4*w+2*hf,2)}, v26 offset0:{64*g + 8*w + 2*hf} offset1:{64*g + 8*w + 2*hf + 1}")
    a(f"""s_waitcnt lgkmcnt(8)
    v_pk_add_f32 v[8:9], v[8:9], v[10:11]
    v_add_f32 v8, v8, v9
    v_add_f32 v8, v8, v1
    v_rcp_f32 v9, v8
    s_waitcnt lgkmcnt(4)""")
    pkadd(12, 12, 16, 4)
    pkadd(12, 12, 28, 4)
    a(f"""v_lshrrev_b32 v11, 5, v0
    s_and_b32 s41, s{sH}, 1
    s_lshl_b32 s41, s41, 4
    v_lshl_add_u32 v11, v11, 3, v3
    s_waitcnt lgkmcnt(0)""")
    pkadd(20, 20, 24, 4)
    a("v_add_u32 v11, s41, v11")
    pkadd(12, 12, 20, 4)
    lb = a.newlabel("H_nb")
    a(f"""v_pk_mul_f32 v[12:13], v[12:13], v[8:9] op_sel:[0,1] op_sel_hi:[1,1]
    v_pk_mul_f32 v[14:15], v[14:15], v[8:9] op_sel:[0,1] op_sel_hi:[1,1]
    v_cvt_pk_bf16_f32 v16, v12, v13
    v_cvt_pk_bf16_f32 v17, v14, v15
    ds_write_b64 v11, v[16:17] offset:{8*QSTR*g}
    v_pk_add_f32 v[12:13], v[12:13], v[14:15]
    v_add_f32 v12, v12, v13
    v_fma_f32 v8, v12, 0, v8
    v_subrev_u32 v8, {(127-80)<<23}, v8
    v_cmp_lt_u32 vcc, {(0 if (FORCE>>g)&1 else (180<<23))}, v8
    s_cbranch_vccz {lb}
    s_cmp_lg_u32 s{sSLOW}, 0
    s_cbranch_scc1 {lb}
    v_mov_b32 v8, {L_SC}
    v_mov_b32 v9, 1
    ds_write_b32 v8, v9 offset:{SC_BAD}
    {lb}:""")
def hsync(idx, bad=True):
    lb = a.newlabel("H_hs")
    a(f"""s_lshl_b32 s41, s{sL}, 4
    s_add_u32 s41, s41, {L_SC}
    v_mov_b32 v8, s41
    v_mov_b32 v11, {L_SC}""")
    lds_inc(8, SC_OCNT + 4*idx, 9)
    lds_wait(8, SC_OCNT + 4*idx, 9, 4, 3)
    if bad:
        a(f"""ds_read_b32 v9, v11 offset:{SC_BAD}
        s_waitcnt lgkmcnt(0)
        v_cmp_ne_u32 vcc, 0, v9
        s_cbranch_vccnz H_toX""")
def oproj(first):
    if first: a("s_setprio 0")
    for s in range(4):
        a(f"s_waitcnt lgkmcnt({3-s})")
        for f in range(8):
            a(f"v_mfma_f32_16x16x32_bf16 {V(AC+4*f,4)}, {V(OF+4*s,4)}, {V(WO+32*s+4*f,4)}, {'0' if (s==0 and first) else V(AC+4*f,4)}")
def osend(bi):
    if bi == 0 or B1P0: a("s_setprio 0")
    a("s_waitcnt lgkmcnt(0)")
    def st(f):
        if bi == 1: a("s_mov_b64 exec, s[98:99]")
        a(f"global_store_dwordx4 v24, {V(AC+4*f,4)}, {P(sWS)} offset:{(1024*f - 4096) if bi == 0 else (1024*(f&3) + 128*(f>>2))} sc1")
        if bi == 1: a("s_mov_b64 exec, -1")
    for f in range(8):
        for s in range(4):
            a(f"v_mfma_f32_16x16x32_bf16 {V(AC+4*f,4)}, {V(WO+32*s+4*f,4)}, {V(OF+4*s,4)}, {'0' if s==0 else V(AC+4*f,4)}")
        if f >= 2: st(f-2)
    st(6); st(7)
    if bi == 0 or B1P0: a("s_setprio 2")
def flag_poll(vaddr, sleep):
    lp = a.newlabel("H_fp")
    a(f"""s_mov_b32 s{sCNT}, 0
    {lp}:""")
    a(f"""global_load_dword v8, v{vaddr}, {P(sWS)} sc1
    s_waitcnt vmcnt(0)
    v_cmp_ne_u32 vcc, s{sOTAG}, v8""")
    poll_guard(lp, "s_cbranch_vccz", "H_fpd", 1, sleep)
def dstbase(sd, g, off):
    a(f"""s_add_u32 s{sd}, s{sC}, {1 + g}
    s_and_b32 s{sd}, s{sd}, 3
    s_andn2_b32 s43, s{sB}, 3
    s_add_u32 s{sd}, s{sd}, s43
    s_mul_i32 s{sd}, s{sd}, 49152
    s_add_u32 s{sd}, s{sd}, s{sOPB}
    s_add_u32 s{sd}, s{sd}, {off}""")
def send_addr(bi):
    if bi == 0:
        dstbase(41, 0, 4096); dstbase(42, 1, 4096)
        a(f"""v_lshl_add_u32 v24, v0, 4, s42
        s_mov_b64 exec, s[98:99]
        v_lshl_add_u32 v24, v0, 4, s41
        s_mov_b64 exec, -1""")
    else:
        dstbase(41, 2, 8192)
        a("v_lshl_add_u32 v24, v0, 4, s41")
send_addr(1)
a(f"""v_mov_b64 v[8:9], -1
v_mov_b64 v[10:11], -1""")
for f in range(4): a(f"global_store_dwordx4 v24, v[8:11], {P(sWS)} offset:{1024*f} sc1")
if E("NP", 0): a("s_setprio 0")
corr(0); norm_pre(0); normalize(0, 16); corr(1); norm_pre(1)
if E("NP", 0): a("s_setprio 2")
normalize(1, 8)
hsync(0)
for s_ in range(4): a(f"ds_read_b128 {V(OF+4*s_,4)}, v2 offset:{64*s_}")
send_addr(0)
def send_flags():
    a(f"""s_add_u32 s41, s{sC}, 1
    v_add_u32 v25, s41, v0
    v_and_b32 v25, 3, v25
    v_lshlrev_b32 v25, 11, v25
    v_lshl_add_u32 v25, v0, 9, v25
    s_andn2_b32 s43, s{sB}, 3
    s_lshl_b32 s41, s43, 11
    s_lshl_b32 s42, s{sH}, 7
    s_add_u32 s41, s41, s42
    s_add_u32 s41, s41, {WS_OPF}
    v_add_u32 v25, s41, v25
    v_mov_b32 v27, s{sOTAG}
    s_waitcnt vmcnt(0)
    s_mov_b64 exec, 7
    global_store_dword v25, v27, {P(sWS)} sc1
    s_mov_b64 exec, -1""")
a("s_waitcnt vmcnt(0)")
osend(0)
a(f"""v_lshlrev_b32 v13, 4, v0
v_add_u32 v13, {L_L + 2048}, v13
ds_read_b32 v8, v13
s_mov_b32 s{sCAND}, 2
s_waitcnt lgkmcnt(0)
v_cmp_eq_u32 vcc, -1, v8
s_cbranch_vccz H_b1""")
send_flags()
TS(6)
def recv01(nonblock=False):
    a(f"""s_mul_i32 s41, s{sB}, 49152
    s_add_u32 s41, s41, s{sOPB}
    v_lshl_add_u32 v24, v0, 4, s41
    v_add_u32 v26, 4096, v24
    s_lshl_b32 s41, s{sB}, 11
    s_lshl_b32 s42, s{sH}, 7
    s_add_u32 s41, s41, s42
    s_add_u32 s41, s41, {WS_OPF}
    v_min_u32 v25, 2, v0
    v_lshl_add_u32 v25, v25, 9, s41""")
    if nonblock:
        a(f"""s_mov_b32 s{sCNT}, 0
        H_nbp:
        ds_read_b32 v8, v13
        s_waitcnt lgkmcnt(0)
        v_cmp_eq_u32 vcc, -1, v8
        s_cbranch_vccz H_b1
        s_add_u32 s{sCNT}, s{sCNT}, 1
        s_cmp_ge_u32 s{sCNT}, {POLLMAX}
        s_cbranch_scc1 H_b1
        s_sleep 4
        global_load_dword v8, v25, {P(sWS)} sc1
        s_waitcnt vmcnt(0)
        v_cmp_ne_u32 vcc, s{sOTAG}, v8
        s_cbranch_vccnz H_nbp""")
    else:
        flag_poll(25, 2)
    if nonblock:
        a(f"""s_lshl_b32 s41, s{sH}, 13
        s_add_u32 s41, s41, {L_SLOT}""")
        for f in range(8):
            if f % 4 == 0: a(f"s_add_u32 m0, s41, {1024*f}")
            a(f"global_load_lds_dwordx4 v{24 + 2*(f>>2)}, {P(sWS)} offset:{1024*(f&3)} sc1")
    else:
        for f in range(8): a(f"global_load_dwordx4 {V(AC+4*f,4)}, v26, {P(sWS)} offset:{1024*f - 4096} sc1")
a(f"s_mov_b32 s{sCAND}, 0")
recv01(True)
a(f"s_mov_b32 s{sCAND}, 1\nH_b1:")
corr(2); norm_pre(2); normalize(2, 4)
hsync(1)
for s_ in range(4): a(f"ds_read_b128 {V(OF+4*s_,4)}, v2 offset:{64*s_ + 16*QSTR}")
send_addr(1)
osend(1)
TS(9)
a(f"""s_cmp_eq_u32 s{sCAND}, 1
s_cbranch_scc1 H_r2
s_cmp_eq_u32 s{sCAND}, 0
s_cbranch_scc1 H_r1
s_mov_b32 s{sCAND}, 0""")
send_flags()
a("H_r1:")
recv01()
a(f"""H_r2:
s_mul_i32 s41, s{sB}, 49152
s_add_u32 s41, s41, s{sOPB}
s_add_u32 s41, s41, 8192
v_lshl_add_u32 v26, v0, 4, s41
s_cmp_lg_u32 s{sL}, 0
s_cbranch_scc1 H_npf
s_lshl_b32 s41, s{sH}, 12
v_lshl_add_u32 v8, v0, 6, s41
global_load_dword v28, v8, {P(sWK)}
global_load_dword v29, v8, {P(sWV)}
H_npf:
s_mov_b32 s{sCNT}, 0
s_cmp_eq_u32 s{sCAND}, 0
s_cbranch_scc1 H_p2
s_sleep {E("PS", 24)}
H_p2:""")
for f in range(4): a(f"global_load_dwordx4 {V(8+4*f,4)}, v26, {P(sWS)} offset:{1024*f} sc1")
a(f"""s_waitcnt vmcnt(0)
v_max3_u32 v24, v8, v12, v16
v_max_u32 v24, v24, v20
v_cmp_eq_u32 vcc, -1, v24""")
poll_guard("H_p2", "s_cbranch_vccz", "H_p2d", 1, 4)
a(f"""s_cmp_eq_u32 s{sCAND}, 0
s_cbranch_scc1 H_r3
s_lshl_b32 s41, s{sH}, 13
s_add_u32 s41, s41, {L_SLOT}
v_lshl_add_u32 v24, v0, 4, s41""")
for f in range(8): a(f"ds_read_b128 {V(AC+4*f,4)}, v24 offset:{1024*f}")
a("s_waitcnt lgkmcnt(0)\nH_r3:\ns_mov_b64 exec, s[98:99]")
pkadd(AC, AC, 8, 16)
a("s_not_b64 exec, s[98:99]")
pkadd(AC+16, AC+16, 8, 16)
a("s_mov_b64 exec, -1")
a(f"""s_cmp_lg_u32 s{sL}, 0
s_cbranch_scc1 H_nwf
""")
for g in range(3):
    a(f"s_add_u32 s6, s{sH}, {8*g}")
    pos2tok(41, 6)
    a(f"""s_lshl_b32 s41, s41, 10
    s_add_u32 s{3+g}, s41, {WS_XN + 2048}""")
a("H_nwf:")
TS(10)
a(f"""v_and_b32 v8, 8, v0
v_cmp_eq_u32 vcc, 0, v8
v_lshrrev_b32 v8, 4, v0
v_lshlrev_b32 v8, 4, v8
v_add_u32 v8, {L_SC + SC_ZERO - 24*QSTR}, v8
v_cndmask_b32 v2, v8, v2, vcc""")
corr(3)
norm_pre(3)
a("s_barrier")
normalize(3, 0)
a(f"""v_mov_b32 v24, {L_SC}
s_waitcnt lgkmcnt(0)
s_barrier
ds_read_b32 v24, v24 offset:{SC_BAD}""")
for s_ in range(4): a(f"ds_read_b128 {V(OF+4*s_,4)}, v2 offset:{64*s_ + 24*QSTR}")
a(f"""v_lshrrev_b32 v26, 4, v0
v_and_b32 v25, 15, v0
v_mul_u32_u24 v25, {RS}, v25
v_lshl_add_u32 v25, v26, 4, v25
s_lshl_b32 s41, s{sH}, 9
s_add_u32 s41, s41, {L_ROW}
v_add_u32 v1, s41, v25
s_waitcnt lgkmcnt(4)
v_cmp_ne_u32 vcc, 0, v24
s_cbranch_vccnz H_slow""")
def fm(f, s_): a(f"v_mfma_f32_16x16x32_bf16 {V(AC+4*f,4)}, {V(WO+32*s_+4*f,4)}, {V(OF+4*s_,4)}, {V(AC+4*f,4)}")
for s_ in range(4):
    a(f"s_waitcnt lgkmcnt({3-s_})")
    fm(0, s_); fm(1, s_)
for f in range(2, 8):
    for s_ in range(4): fm(f, s_)
    if f >= 3: a(f"ds_write_b128 v1, {V(AC+4*(f-3),4)} offset:{64*(f-3)}")
for f in (5, 6, 7): a(f"ds_write_b128 v1, {V(AC+4*f,4)} offset:{64*f}")
a("s_setprio 0\ns_branch R_P4")
a("H_FF2:")
for i in range(0, 24, 2): a(f"v_mov_b64 {V(GU+i,2)}, {V(64+i,2)}")
a(f"""H_FFN:
v_lshrrev_b32 v20, 4, v0
s_lshl_b32 s41, s{sH}, 6
s_add_u32 s41, s41, {L_SC + SC_FACC}
v_lshl_add_u32 v20, v20, 4, s41
v_and_b32 v22, 1, v0
v_bfe_u32 v21, v0, 1, 2
v_lshlrev_b32 v21, 2, v21
v_lshl_add_u32 v21, v22, 4, v21
v_add_u32 v21, {L_SC + SC_FACC}, v21
s_lshl_b32 s41, s{sJ}, 7
s_lshl_b32 s42, s{sF}, 15
s_add_u32 s41, s41, s42
s_add_u32 s41, s41, {WS_HY}
v_lshl_add_u32 v22, v0, 1, s41
v_mov_b32 v23, 1
v_lshrrev_b32 v24, 5, v0
s_lshl_b32 s41, s{sH}, 3
s_add_u32 s41, s41, {L_SC + SC_DACC}
v_lshl_add_u32 v24, v24, 2, s41""")
key_get(E("KG", 0))
a(f"""s_cmp_lg_u32 s{sF}, 0
s_cbranch_scc1 H_nl""")
ffn_loads()
a("H_nl:")
a(f"""s_lshr_b32 s41, s{sSEL}, 3
s_lshl_b32 s41, s41, 11
s_lshl_b32 s42, s{sF}, 19
s_add_u32 s41, s41, s42
s_add_u32 s41, s41, {WS_CAND}
s_lshl_b32 s42, s{sH}, 8
s_add_u32 s42, s42, s41
v_lshl_add_u32 v2, v0, 2, s42
s_lshl_b32 s42, s{sJ}, 2
s_add_u32 s42, s42, s41
v_mov_b32 v9, s42
s_lshl_b32 s42, s{sF}, 2
v_add_u32 v37, s42, v3
s_mov_b32 s{sCNT}, 0""")
TSF(11)
a(f"""H_xs:
global_load_dword v8, v2, {P(sWS)} sc1
global_load_dword v38, v9, {P(sWS)} sc1
global_load_dword v39, v9, {P(sWS)} offset:1024 sc1
s_waitcnt vmcnt(0)
v_max3_u32 v10, v8, v38, v39
v_cmp_eq_u32 vcc, -1, v10""")
poll_guard("H_xs", "s_cbranch_vccz", "H_xsd")
a(f"""s_cmp_ge_u32 s{sJ}, 224
s_cbranch_scc1 H_down""")
for i in range(16): a(f"v_dot2_f32_bf16 v{GU+i}, v{GU+i}, v8, 0")
for c in range(8): a(f"v_permlane32_swap_b32 v{GU+c}, v{GU+8+c}")
pkadd(GU, GU, GU+8, 8)
for c in range(4): a(f"v_permlane16_swap_b32 v{GU+c}, v{GU+4+c}")
pkadd(GU, GU, GU+4, 4)
for m in ("row_ror:8", "row_ror:4", "row_ror:2", "row_ror:1"):
    for c in range(4): a(f"v_add_f32_dpp v{GU+c}, v{GU+c}, v{GU+c} {m} row_mask:0xf bank_mask:0xf")
a(f"""s_mov_b32 exec_lo, 0x00010001
s_mov_b32 exec_hi, 0x00010001
ds_write_b128 v20, {V(GU,4)}
s_mov_b64 exec, 1
ds_add_rtn_u32 v10, v37, v23 offset:{SC_FCNT}
s_mov_b64 exec, -1""")
for w in range(4): a(f"ds_read2_b32 {V(12+2*w,2)}, v21 offset0:{16*w} offset1:{16*w+8}")
a(f"""s_waitcnt lgkmcnt(0)
v_readfirstlane_b32 s42, v10
s_cmp_lg_u32 s42, 3
s_cbranch_scc1 H_down
v_pk_add_f32 v[12:13], v[12:13], v[14:15]
v_pk_add_f32 v[16:17], v[16:17], v[18:19]
v_pk_add_f32 v[12:13], v[12:13], v[16:17]
v_cvt_pk_bf16_f32 v12, v12, v13
v_and_b32 v13, 0xffff0000, v12
v_lshlrev_b32 v12, 16, v12
v_mul_f32 v14, 0xbfb8aa3b, v12
v_exp_f32 v14, v14
v_add_f32 v14, 1.0, v14
v_rcp_f32 v14, v14
v_mul_f32 v12, v12, v14
v_cvt_pk_bf16_f32 v12, v12, v12
v_lshlrev_b32 v12, 16, v12
v_mul_f32 v12, v12, v13
v_mov_b32_dpp v13, v12 quad_perm:[1,1,3,3] row_mask:0xf bank_mask:0xf
v_cvt_pk_bf16_f32 v12, v12, v13
s_mov_b64 exec, 0x55
global_store_dword v22, v12, {P(sWS)} sc1
s_mov_b64 exec, -1
H_down:
s_lshl_b32 s41, s{sH}, 6
v_add_u32 v1, s41, v0
v_min_u32 v2, 223, v1
s_lshl_b32 s42, s{sF}, 15
s_add_u32 s42, s42, {WS_HY}
v_lshl_add_u32 v2, v2, 7, s42
s_mov_b32 s{sCNT}, 0""")
TSF(12)
a(f"""s_cmp_lg_u32 s{sF}, 0
s_cbranch_scc1 H_nkw""")
a(f"s_sleep {E('HS0', 20)}\nH_nkw:")
a(f"""s_and_b32 s41, s{sF}, s{sCAND}
s_cbranch_scc0 H_ncs
s_cmp_eq_u32 s{sSEL}, s{sTOK}
s_cbranch_scc1 H_ncs
s_lshl_b32 s41, s{sTOK}, 10
v_lshl_add_u32 v9, v0, 4, s41
global_store_dwordx4 v9, {V(XR,4)}, {P(sOUT)}
H_ncs:
s_lshr_b32 s41, s{sKEY}, 16
s_and_b32 s42, s41, 0x7fff
s_xor_b32 s43, s41, 0xffff
s_bitcmp1_b32 s41, 15
s_cselect_b32 s41, s42, s43
s_lshl_b32 s41, s41, 16
v_mov_b32 v11, s41
v_mul_f32 v11, 0xbfb8aa3b, v11
v_exp_f32 v11, v11
v_add_f32 v11, 1.0, v11
v_rcp_f32 v11, v11
v_cvt_pk_bf16_f32 v11, v11, v11
v_lshlrev_b32 v11, 16, v11
v_lshlrev_b32 v26, 16, v38
v_and_b32 v27, 0xffff0000, v38
v_lshlrev_b32 v28, 16, v39
v_and_b32 v29, 0xffff0000, v39
s_lshl_b32 s41, s{sJ}, 7
s_add_u32 s41, s41, {WS_Y}
s_lshl_b32 s42, s{sSEL}, 10
s_lshl_b32 s43, s{sJ}, 2
s_add_u32 s42, s42, s43
s_cmp_eq_u32 s{sF}, 0
s_cselect_b32 s41, s41, s42
v_mov_b32 v25, s41""")
if HS1: a(f"s_sleep {HS1}")
a(f"""s_mov_b32 s{sCNT}, 0
s_mov_b64 vcc, -1
H_hp:
s_mov_b64 exec, {"vcc" if E("MSK", 1) else "-1"}
global_load_dwordx4 v[12:15], v2, {P(sWS)} sc1
s_mov_b64 exec, -1
s_waitcnt vmcnt(0)
v_max3_u32 v9, v12, v13, v14
v_max_u32 v9, v9, v15
v_cmp_eq_u32 vcc, -1, v9""")
poll_guard("H_hp", "s_cbranch_vccz", "H_hpd", 1, E("HR", 3))
TSF(13)
a(f"""v_dot2_f32_bf16 v8, v{WDn}, v12, 0
v_dot2_f32_bf16 v9, v{WDn+4}, v12, 0""")
for i in range(1, 4):
    a(f"v_dot2_f32_bf16 v8, v{WDn+i}, v{12+i}, v8")
    a(f"v_dot2_f32_bf16 v9, v{WDn+4+i}, v{12+i}, v9")
a(f"""v_cmp_gt_u32 vcc, 224, v1
v_cndmask_b32 v8, 0, v8, vcc
v_cndmask_b32 v9, 0, v9, vcc
v_permlane32_swap_b32 v8, v9
v_add_f32 v8, v8, v9""")
for m in ("row_ror:8", "row_ror:4", "row_ror:2", "row_ror:1"):
    a(f"v_add_f32_dpp v8, v8, v8 {m} row_mask:0xf bank_mask:0xf")
a(f"""v_add_f32_dpp v8, v8, v8 row_bcast:15 row_mask:0xa bank_mask:0xf
s_mov_b32 exec_lo, 0x80000000
s_mov_b32 exec_hi, 0x80000000
ds_write_b32 v24, v8
s_mov_b64 exec, 1
ds_add_rtn_u32 v10, v37, v23 offset:{SC_DCNT}
s_mov_b64 exec, -1
ds_read_b128 v[12:15], v3 offset:{SC_DACC}
ds_read_b128 v[16:19], v3 offset:{SC_DACC+16}
s_waitcnt lgkmcnt(0)
v_readfirstlane_b32 s42, v10
s_cmp_lg_u32 s42, 3
s_cbranch_scc1 H_ffd
v_pk_add_f32 v[12:13], v[12:13], v[14:15]
v_pk_add_f32 v[16:17], v[16:17], v[18:19]
v_pk_add_f32 v[8:9], v[12:13], v[16:17]""")
a(f"""v_cvt_pk_bf16_f32 v8, 0, v8
v_cvt_pk_bf16_f32 v9, 0, v9
v_mul_f32 v8, v8, v11
v_mul_f32 v9, v9, v11
v_cvt_pk_bf16_f32 v8, 0, v8
v_cvt_pk_bf16_f32 v9, 0, v9
v_pk_add_f32 v[8:9], v[8:9], v[26:27]
v_cvt_pk_bf16_f32 v8, 0, v8
v_cvt_pk_bf16_f32 v9, 0, v9
v_pk_add_f32 v[8:9], v[8:9], v[28:29]
v_cvt_pk_bf16_f32 v12, v8, v9
s_mov_b64 exec, 1
s_cmp_lg_u32 s{sF}, 0
s_cbranch_scc1 H_fo
global_store_dword v25, v12, {P(sWS)} sc1
s_branch H_fo2
H_fo:
global_store_dword v25, v12, {P(sOUT)}
H_fo2:
s_mov_b64 exec, -1
H_ffd:
s_cmp_lg_u32 s{sF}, 0
s_cbranch_scc1 L_end""")
a(f"""s_lshl_b32 s41, s{sH}, 13
s_add_u32 s41, s41, {WS_Y}
v_lshl_add_u32 v1, v0, 7, s41
s_lshl_b32 s41, s{sH}, 8
s_add_u32 s41, s41, {L_X2S}
v_lshl_add_u32 v2, v0, 2, s41
s_mov_b32 s{sCNT}, 0
s_sleep {E('YS', 20)}
s_mov_b64 vcc, -1
H_yw:
s_mov_b64 exec, {"vcc" if E("MSK", 1) else "-1"}
global_load_dword v40, v1, {P(sWS)} sc1
s_mov_b64 exec, -1
s_waitcnt vmcnt(0)
v_cmp_eq_u32 vcc, -1, v40""")
poll_guard("H_yw", "s_cbranch_vccz", "H_yd", 1, 3)
a(f"""ds_write_b32 v2, v40
v_mov_b32 v2, 1
s_mov_b64 exec, 1
ds_add_rtn_u32 v41, v3, v2 offset:{SC_YC}
s_mov_b64 exec, -1
v_lshlrev_b32 v1, 4, v0
v_add_u32 v1, {L_XS}, v1
s_waitcnt lgkmcnt(0)
v_readfirstlane_b32 s41, v41
s_cmp_lg_u32 s41, 3
s_cbranch_scc1 H_fx1
ds_read_b128 v[40:43], v1 offset:1024
s_waitcnt lgkmcnt(0)""")
unpack(X_, 40)
ln(X_, D_, T_, XN)
a(f"ds_write_b128 v1, {V(XN,4)}")
lds_inc(3, SC_XSF, 2)
a(f"""H_fx1:
s_xor_b32 s41, s{sSEL}, s{sTOK}
s_lshr_b32 s41, s41, 5
s_cbranch_scc1 H_fx2""")
lds_wait(3, SC_XSF, 2, 1, 2)
qtr_addr()
a(f"""v_lshrrev_b32 v12, 4, v0
v_lshlrev_b32 v8, 4, v12
v_add_u32 v8, {L_XS}, v8
v_add_u32 v9, 64, v8
v_add_u32 v10, 128, v8
v_add_u32 v11, 192, v8
s_lshl_b32 s41, s{sC}, 3
s_sub_u32 s41, s{sSEL}, s41
s_sub_u32 s41, s41, 8
s_and_b32 s41, s41, 31
s_mul_i32 s41, s41, {QSTR}
s_lshl_b32 s42, s{sH}, 6
s_add_u32 s41, s41, s42
s_add_u32 s41, s41, {L_Q}
v_lshl_add_u32 v2, v12, 3, s41
v_mov_b32 v3, {L_SC + SC_QFIX - SC_QC}
s_mov_b32 s{sQM}, 2
s_branch H_qp
H_fx3:
v_mov_b32 v3, {L_SC}""")
lds_wait(3, SC_QFIX, 2, 8, 1)
a(f"""H_fx2:""")
a(f"s_lshl_b32 s98, s{sH}, 14")
wkv_dma(1, 98)
a("s_waitcnt vmcnt(0)")
wkv_tr(8, 1, 2, 98)
lds_wait(3, SC_XSF, 2, 1, 2)
TSA(14)
a(f"""v_lshrrev_b32 v2, 4, v0
s_lshl_b32 s41, s{sH}, 8
s_add_u32 s41, s41, {L_XS}
v_lshl_add_u32 v1, v2, 4, s41""")
for s in range(4): a(f"ds_read_b128 {V(40+4*s,4)}, v1 offset:{64*s}")
a(f"""s_lshl_b32 s41, s{sH}, 7
s_add_u32 s41, s41, {L_KVP}
v_lshl_add_u32 v2, v2, 4, s41
s_waitcnt lgkmcnt(0)""")
for s in range(4):
    a(f"v_mfma_f32_16x16x32_bf16 v[56:59], {V(8+8*s,4)}, {V(40+4*s,4)}, {'0' if s==0 else 'v[56:59]'}")
    a(f"v_mfma_f32_16x16x32_bf16 v[60:63], {V(8+8*s+4,4)}, {V(40+4*s,4)}, {'0' if s==0 else 'v[60:63]'}")
a(f"""s_mov_b32 exec_lo, 0x00010001
s_mov_b32 exec_hi, 0x00010001
ds_write_b128 v2, v[56:59]
ds_write_b128 v2, v[60:63] offset:64
s_mov_b64 exec, -1""")
hsync(2, False)
a(f"""v_and_b32 v42, 7, v0
v_lshlrev_b32 v1, 3, v42
v_add_u32 v1, {L_KVP}, v1
v_lshrrev_b32 v2, 5, v0
s_and_b32 s41, s{sH}, 1
s_lshl_b32 s41, s41, 5
s_add_u32 s41, s41, {L_KVP + 64}
v_lshl_add_u32 v40, v2, 4, s41
s_lshl_b32 s41, s{sH}, 5
s_add_u32 s41, s41, {L_VS}
v_lshl_add_u32 v41, v2, 4, s41""")
for w in range(4): a(f"ds_read_b64 {V(8+2*w,2)}, v1 offset:{128*w}")
for w in range(4): a(f"ds_read_b128 {V(16+4*w,4)}, v40 offset:{128*w}")
a(f"""v_lshlrev_b32 v1, 2, v42
v_add_u32 v1, {L_KVP}, v1
s_waitcnt lgkmcnt(4)
v_pk_add_f32 v[8:9], v[8:9], v[10:11]
v_pk_add_f32 v[12:13], v[12:13], v[14:15]
v_pk_add_f32 v[8:9], v[8:9], v[12:13]
v_cvt_pk_bf16_f32 v8, v8, v9
s_waitcnt lgkmcnt(0)""")
pkadd(16, 16, 20, 4); pkadd(24, 24, 28, 4); pkadd(16, 16, 24, 4)
for i in range(8): a(f"v_readlane_b32 s{sKSL[i]}, v8, {i}")
pack(20, 16, 2); unpack(16, 20, 2)
a(f"""ds_write_b128 v41, v[16:19]
ds_write_b32 v1, v8 offset:{L_KS - L_KVP}""")
a(f"""s_cmp_lg_u32 s{sTOK}, 7
s_cbranch_scc1 H_nE
s_add_u32 s41, s{sE}, 2
v_mov_b32 v1, 0
v_mov_b32 v2, s41
s_mov_b64 exec, 1
global_store_dword v1, v2, {P(sWS)} sc1
s_mov_b64 exec, -1
H_nE:""")
ffn_loads(64)
a(f"""s_branch H_bursts
H_toX:
s_barrier
s_barrier
H_slow:
s_waitcnt vmcnt(0) lgkmcnt(0)
s_barrier
v_mov_b64 v[28:29], -1
v_mov_b64 v[30:31], -1
s_lshl_b32 s41, s{sH}, 10
s_add_u32 s41, s41, {L_L}
v_lshl_add_u32 v1, v0, 4, s41
ds_write_b128 v1, v[28:31]
s_lshl_b32 s41, s{sH}, 8
s_add_u32 s41, s41, {L_M}
v_lshl_add_u32 v1, v0, 2, s41
v_mov_b32 v8, 0xff800000
ds_write_b32 v1, v8
s_lshl_b32 s41, s{sL}, 4
s_add_u32 s41, s41, {L_SC}
v_mov_b32 v1, s41
v_mov_b32 v2, {L_SC}
v_mov_b64 v[8:9], 0
ds_write_b64 v1, v[8:9] offset:{SC_OCNT}
ds_write_b32 v2, v8 offset:{SC_BAD}
s_mov_b32 s{sSLOW}, 1
s_waitcnt lgkmcnt(0)
s_barrier
s_barrier
s_branch H_bursts
A_slow:
s_waitcnt vmcnt(0)
s_barrier
s_cmp_eq_u32 s3, 15
s_cbranch_scc1 A_sl1
v_lshrrev_b32 v8, 5, v0
v_lshlrev_b32 v8, 4, v8
v_add_u32 v8, {L_KS}, v8
ds_read_b128 v[32:35], v8
v_and_b32 v9, 15, v0
v_lshlrev_b32 v9, 2, v9
v_add_u32 v9, {L_VS}, v9
ds_read_b32 v36, v9
v_and_b32 v9, 27, v0
v_cmp_eq_u32 vcc, 16, v9
v_mov_b32 v10, 0x3f800000
v_cndmask_b32 v10, 0, v10, vcc
v_and_b32 v9, 16, v0
v_cmp_eq_u32 vcc, 0, v9
s_waitcnt lgkmcnt(0)
v_cndmask_b32 v36, v10, v36, vcc
s_bitcmp1_b32 s{sSEL}, 0
s_cselect_b32 s41, 0, 16
v_lshrrev_b32 v36, s41, v36
s_mov_b64 exec, s[6:7]
s_lshl_b32 s41, s3, 4
s_add_u32 s41, s41, s4
s_set_gpr_idx_on s41, gpr_idx(SRC0,DST)
s_nop 1
v_or_b32 v{VV}, v{VV}, v36
s_nop 1
s_set_gpr_idx_off
s_bfe_u32 s41, s101, 0x20006
s_lshl_b32 s41, s41, 3
s_and_b32 s42, s{sSEL}, 7
s_add_u32 s41, s41, s42
s_lshl_b32 s42, 1, s41
s_mov_b32 exec_lo, s42
s_mov_b32 exec_hi, s42
s_bfe_u32 s41, s101, 0x10008
s_lshl_b32 s42, s3, 1
s_add_u32 s41, s41, s42
s_lshl_b32 s41, s41, 2
s_set_gpr_idx_on s41, gpr_idx(DST)
s_nop 1
v_mov_b32 v{KK}, v32
v_mov_b32 v{KK+1}, v33
v_mov_b32 v{KK+2}, v34
v_mov_b32 v{KK+3}, v35
s_nop 1
s_set_gpr_idx_off
s_mov_b64 exec, -1
A_sl1:
v_and_b32 v14, 31, v0
v_lshlrev_b32 v14, 2, v14
v_add_u32 v14, {L_M}, v14""")
att_addr()
a(f"""s_barrier
s_mov_b32 s44, 0
A_sm:
s_mul_i32 s41, s44, {4*QSTR}
v_add_u32 v{Q}, s41, v{vQA}
ds_read_b128 {V(Q,4)}, v{Q}
v_mov_b32 v15, 0xff800000
s_waitcnt lgkmcnt(0)""")
for kt in range(NT):
    a(f"v_mfma_f32_32x32x16_bf16 {V(S0,16)}, {V(KK+4*kt,4)}, {V(Q,4)}, 0")
    for i in range(0, 16, 2): a(f"v_max3_f32 v15, v15, v{S0+i}, v{S0+i+1}")
a(f"""v_lshl_add_u32 v13, s44, 7, v14
ds_max_f32 v13, v15
s_add_u32 s44, s44, 1
s_cmp_lt_u32 s44, 8
s_cbranch_scc1 A_sm
s_waitcnt lgkmcnt(0)
s_barrier
s_mov_b32 s44, 0
A_se:
s_mul_i32 s41, s44, {4*QSTR}
v_add_u32 v{Q}, s41, v{vQA}
ds_read_b128 {V(Q,4)}, v{Q}
v_lshl_add_u32 v13, s44, 7, v14
ds_read_b32 v15, v13
s_waitcnt lgkmcnt(0)""")
for i in range(16): a(f"v_sub_f32 v{S1+i}, 0, v15")
for i in range(0, 16, 2): a(f"v_mov_b64 {V(ACC+i,2)}, 0")
for kt in range(NT):
    a(f"v_mfma_f32_32x32x16_bf16 {V(S0,16)}, {V(KK+4*kt,4)}, {V(Q,4)}, {V(S1,16)}")
    ex(S0, 0, 16)
    smf(2*kt, S0); smf(2*kt+1, S0+8)
a("s_mov_b32 s41, s44")
flush_pre()
flush()
a(f"""s_add_u32 s44, s44, 1
s_cmp_lt_u32 s44, 8
s_cbranch_scc1 A_se
s_branch A_X
L_end:
""")
if TSON:
    TS(15)
    a(f"""s_getreg_b32 s75, hwreg(HW_REG_HW_ID)
    s_mul_i32 s41, s{sB}, 12
    s_add_u32 s41, s41, s{sW}
    s_lshl_b32 s41, s41, 7
    s_add_u32 s41, s41, {WS_TS}
    v_mov_b32 v1, s41
    s_mov_b64 exec, 1""")
    for i in range(32):
        a(f"v_mov_b32 v2, s{60+i}\nglobal_store_dword v1, v2, {P(sWS)} offset:{4*i}")
if os.environ.get("DLY"):
    i_, j_ = [int(x) for x in os.environ["DLY"].split(",")]
    a(f"""s_cmp_lg_u32 s{sTOK}, {int(os.environ.get("DLYW", "4"))}
    s_cbranch_scc1 L_exit
    s_sub_u32 s41, s{60+j_}, s{60+i_}
    s_mul_i32 s41, s41, 4
    s_min_u32 s41, s41, 40000
    s_add_u32 s41, s41, s91
    s_add_u32 s41, s41, 1000
    L_dly:
    s_memrealtime s[92:93]
    s_waitcnt lgkmcnt(0)
    s_sub_u32 s42, s92, s41
    s_cmp_lt_i32 s42, 0
    s_cbranch_scc1 L_dly""")
if os.environ.get("DBGT"):
    a(f"""s_mov_b64 exec, 1
    v_mov_b32 v1, 0
    s_not_b32 s41, s60
    v_mov_b32 v2, s41
    global_atomic_umax v1, v2, {P(sDBG)}""")
    for k, slot in enumerate((31, 1, 2, 3, 5, 9, 7, 21, 25, 23, 24, 27, 29, 16, 0)):
        a(f"v_mov_b32 v2, s{60+slot}\nglobal_atomic_umax v1, v2, {P(sDBG)} offset:{4+4*k}")
a("L_exit:\ns_endpgm")

ABL = os.environ.get("ABL", "")
if ABL:
    from asmlib import Ins
    out_items = []; cur = ""
    for it in a.items:
        if isinstance(it, Ins) and it.label: cur = it.label
        drop = False
        if isinstance(it, Ins) and it.text:
            idx = len(out_items)
            t = it.text
            if "ds_write_b32 v8, v9 offset:96" in t: drop = True
            inH = region[0]
            if "w" in ABL and inH == "prep" and it.op == "v_perm_b32": drop = True
            if "m" in ABL and inH == "burst" and it.op.startswith("v_mfma"): drop = True
            if "v" in ABL and inH == "burst" and it.op in ("v_pk_add_f32", "v_pk_mul_f32", "v_dot2_f32_bf16", "v_cvt_pk_bf16_f32", "v_add_f32", "v_exp_f32", "v_rcp_f32", "v_fma_f32"): drop = True
            if "f" in ABL and inH == "ffn" and (it.op.startswith("v_dot2") or it.op.startswith("v_permlane") or it.op.startswith("v_add_f32_dpp") or it.op.startswith("v_pk_") or it.op.startswith("v_mfma")): drop = True
        if isinstance(it, Ins) and it.label == "H_prep": region[0] = "prep"
        if isinstance(it, Ins) and it.label == "H_bursts": region[0] = "burst"
        if isinstance(it, Ins) and it.label == "H_nwf": region[0] = ""
        if isinstance(it, Ins) and it.label == "H_FFN": region[0] = "ffn"
        if isinstance(it, Ins) and it.label == "H_toX": region[0] = ""
        if not drop: out_items.append(it)
    a.items = out_items
n = a.hazard_pass()
hdr = open(f"cdna_kernels/{NAME}.s.ref").read().split("; Override launch")[0]
out = hdr + f"""; @launch grid=(256,1,1) block=(512,1,1) lds=163840
.amdgcn_target "amdgcn-amd-amdhsa--gfx950"
.text
.globl {NAME}_kernel
.p2align 8
.type {NAME}_kernel,@function
{NAME}_kernel:
""" + a.text() + f""".section .rodata,"a"
.p2align 6
.amdhsa_kernel {NAME}_kernel
  .amdhsa_next_free_vgpr 256
  .amdhsa_next_free_sgpr 102
  .amdhsa_accum_offset 256
  .amdhsa_group_segment_fixed_size 0
  .amdhsa_kernarg_size 104
  .amdhsa_user_sgpr_count 2
  .amdhsa_user_sgpr_kernarg_segment_ptr 1
  .amdhsa_system_sgpr_workgroup_id_x 1
  .amdhsa_float_denorm_mode_32 3
.end_amdhsa_kernel
"""
open(sys.argv[1], "w").write(out)
print("nops inserted", n, "instructions", sum(1 for i in a.items if not isinstance(i, str) and i.text))
```

```python
import sys, os
from asmlib import Asm
NAME = "interleave_layers__grouped_kv_mqa__moe_arch_mod__prompt"
TSON = bool(int(os.environ.get("TS", "0")))
a = Asm()
region = ['']
def E(n, d): return int(os.environ.get(n, str(d)))

WS_FLAG = 0x1000; WS_KEY = 0x400000; WS_HY = WS_KEY + 0x10000; WS_Y = WS_KEY + 0x20000; WS_KV = 0x30000; WS_CAND = 0x80000; KVS = 640; KVL = 256*640
WS_OPF = 0x180000
WS_XN = 0x200000; WS_OP = 0x600000; OPL = 0xc00000; WS_TS = 0x3000000; WS_FS = 0x2000000; WS_WKV = 0x2800000
L_SLOT = 65536; L_XN = 114688; L_O = 131072; L_Q = 147456; L_L = 156160; L_SC = 160768
L_ROW = L_SLOT; L_PS = L_SLOT + 16384; L_KVS = L_Q
L_WK1 = 98816
L_XS = 139776; L_X2S = L_XS + 1024; L_KVP = L_XS + 2048; L_VS = L_XS + 2560; L_KS = L_XS + 2816; L_M = L_XS + 3072
QSTR = 272
RS = 2064
SC_KVCNT = 0; SC_KEYS = 16; SC_OCNT = 64; SC_FACC = 128; SC_FCNT = 384; SC_DACC = 400; SC_DCNT = 464; SC_GK = 480
SC_XSF = 512; SC_QFIX = 516; SC_BAD = 96; SC_XNC = 528; SC_QC = 536; SC_CLR = 564; SC_C2 = 560; SC_XN2 = 556; SC_B1 = 552; SC_KVD = 544; SC_YC = 548; SC_ZERO = 768; SC_WR = 1024
FORCE = int(os.environ.get('FORCE', '0'))
POLLMAX = 40000
B1P0 = bool(int(os.environ.get('B1P0', '1')))
HS1 = int(os.environ.get('HS1', '14'))
KS1 = int(os.environ.get('KS1', '0'))
HLNP = int(os.environ.get('HLNP', '2'))
OUTF = ' ' + os.environ.get('OF1', '')
OUTG = ' ' + os.environ.get('OF2', '')
NPRE = int(os.environ.get('NPRE', '2'))
CODECH = int(os.environ.get('CODECH', '6'))
QSCALE = 0x3eb8aa3b

sX, sWQ, sWK, sWV, sWO, sWR, sWG, sWU, sWD, sOUT, sDBG, sWS = 8, 10, 12, 14, 16, 20, 22, 24, 26, 28, 30, 32
sE, sW, sL, sC, sTAG, sLO, sHI = 34, 35, 36, 37, 38, 39, 40
sCNT, sJ, sKEY, sTOK, sMASK, sH, sSEL, sOTAG, sF, sCAND, sMYK, sWT = 46, 47, 48, 49, 50, 51, 52, 53, 54, 55, 56, 57
sORD = 58
sKS = 0
sSLOW = 19
sPB = 100
XL = E('XL', 0)
sSLOT = 96; sQM = 97; sX4 = 97
sOPB = 50
sB = 18
sKSL = [0, 1, 2, 3, 4, 5, 6, 7]
def P(n): return f"s[{n}:{n+1}]"
def V(n, k=1): return f"v{n}" if k == 1 else f"v[{n}:{n+k-1}]"

def TS(i):
    if not TSON: return
    a(f"""s_memrealtime s[92:93]
    s_waitcnt lgkmcnt(0)
    s_cmp_eq_u32 s{sL}, 0
    s_cselect_b32 s{60+i}, s92, s{60+i}""")
    if not os.environ.get("SO"): a(f"s_cselect_b32 s{76+i}, s{76+i}, s92")
SO = bool(os.environ.get("SO"))
def TSS(slot):
    if not (TSON and SO) or os.environ.get("P0"): return
    a(f"""s_memrealtime s[92:93]
    s_waitcnt lgkmcnt(0)
    s_cmp_eq_u32 s{60+slot}, 0
    s_cselect_b32 s{60+slot}, s92, s{60+slot}""")
def TSA(slot):
    if not TSON or (SO and slot >= 16): return
    a(f"""s_memrealtime s[92:93]
    s_waitcnt lgkmcnt(0)
    s_mov_b32 s{60+slot}, s92""")
def TSF(i):
    if not TSON or SO: return
    a(f"""s_memrealtime s[92:93]
    s_waitcnt lgkmcnt(0)
    s_cmp_eq_u32 s{sF}, 0
    s_cselect_b32 s{60+i}, s92, s{60+i}
    s_cselect_b32 s{76+i}, s{76+i}, s92""")
def TC(i):
    return
    a(f"""s_memtime s[92:93]
    s_waitcnt lgkmcnt(0)
    s_mov_b32 s{94+i}, s92""")

def poll_guard(lbl_retry, cond_branch, lbl_stem, mult=1, sleep=0):
    done = a.newlabel(lbl_stem)
    a(f"{cond_branch} {done}")
    if sleep: a(f"s_sleep {sleep}")
    a(f"""s_add_u32 s{sCNT}, s{sCNT}, 1
    s_cmp_lt_u32 s{sCNT}, {POLLMAX*mult}
    s_cbranch_scc1 {lbl_retry}
    {done}:""")
def lds_wait(vaddr, off, vt, target, sleep=1):
    lb = a.newlabel("W")
    a(f"s_mov_b32 s{sCNT}, 0\n{lb}:")
    a(f"""ds_read_b32 v{vt}, v{vaddr} offset:{off}
    s_waitcnt lgkmcnt(0)
    v_cmp_gt_u32 vcc, {target}, v{vt}""")
    poll_guard(lb, "s_cbranch_vccz", "Wd", 8, sleep)
def lds_inc(vaddr, off, vt):
    a(f"""v_mov_b32 v{vt}, 1
    s_mov_b64 exec, 1
    ds_add_u32 v{vaddr}, v{vt} offset:{off}
    s_mov_b64 exec, -1""")

def dpp_reduce(regs, op="v_add_f32"):
    for m in ("row_ror:8", "row_ror:4", "row_ror:2", "row_ror:1"):
        for r in regs: a(f"{op}_dpp v{r}, v{r}, v{r} {m} row_mask:0xf bank_mask:0xf")
    for r in regs: a(f"{op}_dpp v{r}, v{r}, v{r} row_bcast:15 row_mask:0xa bank_mask:0xf")
    for r in regs: a(f"{op}_dpp v{r}, v{r}, v{r} row_bcast:31 row_mask:0xc bank_mask:0xf")
def unpack(dst, src, n=4):
    for i in range(n):
        a(f"v_lshlrev_b32 v{dst+2*i}, 16, v{src+i}")
        a(f"v_and_b32 v{dst+2*i+1}, 0xffff0000, v{src+i}")
def pack(dst, src, n=4):
    for i in range(n): a(f"v_cvt_pk_bf16_f32 v{dst+i}, v{src+2*i}, v{src+2*i+1}")
def pkadd(d, x, y, n):
    for i in range(0, n, 2): a(f"v_pk_add_f32 {V(d+i,2)}, {V(x+i,2)}, {V(y+i,2)}")
def tr_pair(e, o, t):
    a(f"""v_perm_b32 v{t}, v{o}, v{e}, s{sLO}
    v_perm_b32 v{o}, v{o}, v{e}, s{sHI}
    v_mov_b32 v{e}, v{t}""")
def ln(X, D, T, out, extra=[]):
    a(f"v_readfirstlane_b32 s42, v{X}")
    for i in range(0, 8, 2): a(f"v_pk_add_f32 {V(D+i,2)}, {V(X+i,2)}, s[42:43] op_sel_hi:[1,0] neg_lo:[0,1] neg_hi:[0,1]")
    a(f"""v_pk_add_f32 {V(T,2)}, {V(D,2)}, {V(D+2,2)}
    v_pk_mul_f32 {V(T+2,2)}, {V(D,2)}, {V(D,2)}
    v_pk_add_f32 {V(T,2)}, {V(T,2)}, {V(D+4,2)}
    v_pk_fma_f32 {V(T+2,2)}, {V(D+2,2)}, {V(D+2,2)}, {V(T+2,2)}
    v_pk_add_f32 {V(T,2)}, {V(T,2)}, {V(D+6,2)}
    v_pk_fma_f32 {V(T+2,2)}, {V(D+4,2)}, {V(D+4,2)}, {V(T+2,2)}
    v_add_f32 v{T}, v{T}, v{T+1}
    v_pk_fma_f32 {V(T+2,2)}, {V(D+6,2)}, {V(D+6,2)}, {V(T+2,2)}
    v_mul_f32 v{T}, 0x3b000000, v{T}
    v_add_f32 v{T+1}, v{T+2}, v{T+3}""")
    dpp_reduce([T, T+1] + extra)
    a(f"""v_mul_f32 v{T+1}, 0x3b000000, v{T+1}
    v_fma_f32 v{T+1}, -v{T}, v{T}, v{T+1}
    v_max_f32 v{T+1}, 0, v{T+1}
    v_add_f32 v{T+1}, 0x3727c5ac, v{T+1}
    v_rsq_f32 v{T+1}, v{T+1}
    v_mul_f32 v{T}, v{T}, v{T+1}
    v_readlane_b32 s42, v{T+1}, 63
    v_readlane_b32 s43, v{T}, 63""")
    for i in range(0, 8, 2): a(f"v_pk_fma_f32 {V(D+i,2)}, {V(D+i,2)}, s[42:43], s[42:43] op_sel:[0,0,1] op_sel_hi:[1,0,1] neg_lo:[0,0,1] neg_hi:[0,0,1]")
    pack(out, D)

XR = 4
X_, D_, T_, XN, X1, WR = 8, 16, 24, 28, 32, 36
XO = 36
vQA, vOA, vIDX = 1, 2, 3
Q, ZZ, ACC, S0, S1, KK, VV = 8, 12, 16, 32, 48, 64, 128
WKV = 64
WQR, WO = 64, 128
FOR = 224
GU, WDn = 40, 56

def wkv_dma(vt, sreg):
    a(f"""s_lshl_b32 s41, s{sH}, 12
    v_lshl_add_u32 v{vt}, v0, 4, s41
    s_mov_b32 m0, s{sreg}""")
    for k in range(4): a(f"global_load_lds_dwordx4 v{vt}, {P(sWK)} offset:{1024*k}")
    a(f"s_add_u32 m0, s{sreg}, 4096")
    for k in range(4): a(f"global_load_lds_dwordx4 v{vt}, {P(sWV)} offset:{1024*k}")
def wkv_tr(dst, vt, vt2, sreg):
    a(f"""v_lshrrev_b32 v{vt}, 4, v0
    v_and_b32 v{vt2}, 15, v0
    v_lshlrev_b32 v{vt2}, 3, v{vt2}
    v_lshl_add_u32 v{vt}, v{vt}, 8, v{vt2}
    v_add_u32 v{vt}, s{sreg}, v{vt}""")
    for k in range(4):
        for m in range(2):
            for hf in range(2):
                a(f"ds_read_b64_tr_b16 {V(dst+8*k+4*m+2*hf,2)}, v{vt} offset:{4096*m + 1024*k + 128*hf}")
        if k == 2: a("s_waitcnt lgkmcnt(4)")
def ffn_loads(GU=40):
    a(f"""s_lshl_b32 s41, s{sJ}, 15
    s_lshl_b32 s42, s{sH}, 13
    s_add_u32 s41, s41, s42
    s_add_u32 s41, s41, {WS_FS + 4096}
    v_lshl_add_u32 v2, v0, 4, s41""")
    for i in range(6): a(f"global_load_dwordx4 {V(GU+4*i,4)}, v2, {P(sWS)} offset:{1024*i-4096} sc1")
def gloads(v):
    for g in range(3): a(f"v_lshl_add_u32 v{v+g}, v0, 4, s{3+g}")
    for i in range(6): a(f"global_load_dwordx4 {V(40+4*i,4)}, v{v+(i>>1)}, {P(sWS)} offset:{4096*(i&1)-2048} sc1")
def pos2tok(dst, src):
    a(f"""s_lshl_b32 s{dst}, s{sC}, 3
    s_add_u32 s{dst}, s{dst}, s{src}
    s_add_u32 s{dst}, s{dst}, 8
    s_and_b32 s{dst}, s{dst}, 31
    s_andn2_b32 s43, s{sTOK}, 31
    s_add_u32 s{dst}, s{dst}, s43""")

a(f"""
s_cmp_ge_u32 s2, 256
s_cbranch_scc1 L_exit
s_load_dwordx16 s[8:23], s[0:1], 0
s_load_dwordx8 s[24:31], s[0:1], 64
s_load_dwordx2 s[32:33], s[0:1], 96
v_lshrrev_b32 v1, 6, v0
v_and_b32 v0, 63, v0
s_mov_b32 s{sL}, 0
v_readfirstlane_b32 s{sW}, v1
s_mov_b32 s{sLO}, 0x05040100
s_mov_b32 s{sHI}, 0x07060302
s_mov_b32 s{sF}, 0
s_and_b32 s41, s2, 7
s_lshl_b32 s41, s41, 3
s_bfe_u32 s42, s2, 0x30003
s_or_b32 s41, s41, s42
s_andn2_b32 s42, s2, 63
s_or_b32 s{sSLOT}, s41, s42
s_mov_b32 s{sSEL}, -1
s_and_b32 s{sJ}, s2, 7
s_lshl_b32 s{sJ}, s{sJ}, 5
s_lshr_b32 s41, s2, 3
s_add_u32 s{sJ}, s{sJ}, s41
s_and_b32 s{sH}, s{sW}, 3
s_mov_b32 s{sPB}, s2
{"s_mov_b32 s2, s%d" % sJ if XL else "s_nop 0"}
s_and_b32 s{sC}, s2, 3
s_lshl_b32 s{sTOK}, s2, 3
s_add_u32 s{sTOK}, s{sTOK}, s{sW}
s_lshl_b32 s41, s{sTOK}, 10
v_lshl_add_u32 v1, v0, 4, s41
v_mov_b64 v[12:13], -1
v_mov_b64 v[14:15], -1
s_cmp_lg_u32 s{sW}, 7
s_cbranch_scc1 S_z
v_lshlrev_b32 v2, 4, v0
v_add_u32 v2, {L_L}, v2
ds_write_b128 v2, v[12:15]
ds_write_b128 v2, v[12:15] offset:1024
ds_write_b128 v2, v[12:15] offset:2048
ds_write_b128 v2, v[12:15] offset:3072
v_mov_b64 v[8:9], 0
v_mov_b64 v[10:11], 0
ds_write_b128 v2, v[8:11] offset:{L_SC - L_L}
S_z:
""")
if TSON:
    for i in range(32): a(f"s_mov_b32 s{60+i}, 0")
TS(0)
a(f"""
s_waitcnt lgkmcnt(0)
s_mov_b32 s{sB}, s2
s_mov_b32 s{sSLOW}, 0
global_load_dwordx4 {V(XR,4)}, v1, {P(sX)}
s_barrier
s_cmp_ge_u32 s{sW}, 4
s_cbranch_scc1 S_noA
s_setprio 2
v_add_u32 v16, 4096, v1
global_load_dwordx4 {V(FOR,4)}, v16, {P(sX)}""")
for g in range(2):
    a(f"s_add_u32 s44, s{sH}, {8*g}")
    pos2tok(41, 44)
    a(f"""s_lshl_b32 s41, s41, 10
    s_add_u32 s41, s41, 2048
    v_lshl_add_u32 v{16+g}, v0, 4, s41""")
a(f"""s_lshl_b32 s98, s{sH}, 13
s_add_u32 s98, s98, {L_XN}
s_cmp_eq_u32 s{sH}, 3
s_cselect_b32 s98, {L_Q}, s98""")
wkv_dma(8, 98)
for i in range(4): a(f"global_load_dwordx4 {V(FOR+4+4*i,4)}, v{16+(i>>1)}, {P(sX)} offset:{4096*(i&1)-2048}")
TSS(16)
a(f"""s_waitcnt vmcnt(12)
s_branch R_P1
S_noA:
s_load_dword s{sE}, {P(sWS)}, 0
s_cmp_lg_u32 s{sW}, 7
s_cbranch_scc1 S_n7
s_setprio {E("W7P", 3)}
s_mul_i32 s41, s{sSLOT}, {KVS}
s_add_u32 s41, s41, {WS_KV}
v_lshl_add_u32 v1, v0, 4, s41
v_add_u32 v3, {KVL}, v1
v_mov_b32 v16, 0x3f803f80
v_cmp_eq_u32 vcc, 32, v0
v_cndmask_b32 v16, 0, v16, vcc
v_cmp_gt_u32 vcc, 32, v0
v_cndmask_b32 v16, v16, v12, vcc
v_mov_b32 v17, v16
v_mov_b64 v[18:19], v[16:17]
s_mov_b32 exec_hi, 0xff
global_store_dwordx4 v1, v[16:19], {P(sWS)} sc1
global_store_dwordx4 v3, v[16:19], {P(sWS)} sc1
s_mov_b32 exec_hi, -1
s_lshl_b32 s41, s2, 7
s_add_u32 s41, s41, {WS_KEY}
s_lshl_b32 s42, s{sJ}, 7
s_add_u32 s42, s42, {WS_KEY}
v_mov_b32 v1, s41
v_mov_b32 v3, s42
v_cmp_gt_u32 vcc, 2, v0
v_cndmask_b32 v1, v3, v1, vcc
v_lshl_add_u32 v1, v0, 15, v1
s_mov_b64 exec, 0x1f
global_store_dwordx4 v1, v[12:15], {P(sWS)} sc1
s_mov_b64 exec, -1
""")
a(f"""S_n7:
s_lshr_b32 s43, s{sPB}, 3
s_cmp_lg_u32 s{sW}, {4 if E("PFQ", 1) else 44}
s_cbranch_scc1 S_n4
s_setprio 3
v_lshrrev_b32 v1, 2, v0
v_and_b32 v3, 3, v0
v_lshlrev_b32 v3, 6, v3
v_lshl_add_u32 v1, v1, 10, v3
s_lshl_b32 s41, s43, 14
s_lshl_b32 s42, s{sC}, 8
s_add_u32 s41, s41, s42
v_add_u32 v1, s41, v1
global_load_dword v40, v1, {P(sWQ)}
S_n4:
s_cmp_lg_u32 s{sW}, {5 if E("PFO", 1) else 55}
s_cbranch_scc1 S_n5
s_lshl_b32 s41, s43, 12
s_lshl_b32 s42, s{sC}, 17
s_add_u32 s41, s41, s42
v_lshl_add_u32 v1, v0, 6, s41
global_load_dword v41, v1, {P(sWO)}""")
if E("TLBW", 0):
    a(f"""v_min_u32 v1, 43, v0
    v_lshlrev_b32 v1, 20, v1
    s_lshl_b32 s41, s2, 12
    v_add_u32 v1, s41, v1
    global_load_dword v42, v1, {P(sWS)} sc1
    v_mov_b32 v1, s41
    global_load_dword v43, v1, {P(sOUT)} sc1
    global_load_dword v53, v1, {P(sWG)}
    global_load_dword v54, v1, {P(sWU)}
    global_load_dword v55, v1, {P(sWD)}""")
a(f"""S_n5:
s_setprio 1
s_cmp_lg_u32 s{sW}, 6
s_cbranch_scc1 H_stage
v_lshlrev_b32 v1, 4, v0
global_load_dwordx4 v[44:47], v1, {P(sWR)}""")
if E("PFC", 0):
    a(f"""s_and_b32 s41, s43, 7
    s_min_u32 s41, s41, {E("PFC", 0) - 1}
    s_lshl_b32 s41, s41, 12
    v_lshl_add_u32 v1, v0, 6, s41
    s_getpc_b64 s[42:43]
    global_load_dword v40, v1, s[42:43]""")
a("s_branch H_stage")
def key_make():
    a(f"""v_cvt_pk_bf16_f32 v1, 0, v1
    v_ashrrev_i32 v2, 31, v1
    v_or_b32 v2, 0x80000000, v2
    v_xor_b32 v1, v1, v2
    v_and_b32 v1, 0xffff0000, v1
    s_sub_u32 s41, 2047, s{sTOK}
    v_or_b32 v1, s41, v1
    s_lshl_b32 s41, s{sF}, 3
    s_add_u32 s41, s41, {L_SC + SC_KEYS}
    v_mov_b32 v3, s41
    v_readlane_b32 s{sMYK}, v1, 63
    v_mov_b32 v2, 1
    s_mov_b32 exec_lo, 0
    s_mov_b32 exec_hi, 0x80000000
    ds_max_u32 v3, v1
    ds_add_rtn_u32 v2, v3, v2 offset:4
    ds_read_b32 v1, v3
    s_mov_b64 exec, -1""")
def key_pub():
    lb = a.newlabel("K_np")
    a(f"""s_lshl_b32 s41, s{sB}, 7
    s_lshl_b32 s42, s{sF}, 15
    s_add_u32 s41, s41, s42
    s_add_u32 s41, s41, {WS_KEY}
    v_mov_b32 v3, s41
    s_waitcnt lgkmcnt(0)
    v_readlane_b32 s6, v2, 63
    s_cmp_lg_u32 s6, 7
    s_cbranch_scc1 {lb}
    s_mov_b32 exec_lo, 0
    s_mov_b32 exec_hi, 0x80000000
    global_store_dword v3, v1, {P(sWS)} sc1
    s_mov_b64 exec, -1
    {lb}:
    v_mov_b32 v3, {L_SC}""")
a("R_P1:")
TS(1)
unpack(X_, XR)
a("R_P1b:")
ln(X_, D_, T_, XO)
a(f"""s_add_u32 s41, s{sW}, 8
v_xor_b32 v2, s41, v0
s_add_u32 s41, s{sW}, 24
s_lshl_b32 s41, s41, 10
s_add_u32 s41, s41, {L_XN}
v_lshl_add_u32 v2, v2, 4, s41
ds_write_b128 v2, {V(XO,4)}
s_cmp_eq_u32 s{sL}, 0
s_cbranch_scc1 S_l0
s_lshl_b32 s41, s{sTOK}, 10
s_add_u32 s41, s41, {WS_XN}
v_lshl_add_u32 v2, v0, 4, s41
s_cmp_ge_u32 s{sW}, 4
s_cbranch_scc1 R_nw
s_waitcnt vmcnt(1)
s_cmp_eq_u32 s6, 7
s_cbranch_scc1 R_nw
s_waitcnt vmcnt(0)
R_nw:
global_store_dwordx4 v2, {V(XO,4)}, {P(sWS)} sc1
s_cmp_ge_u32 s{sW}, 4
s_cbranch_scc1 H_B1
s_setprio 3""")
wkv_tr(WKV, 8, 9, 98)
a(f"""A_kvp:
v_and_b32 v8, 7, v0
v_add_u32 v8, 8, v8
v_lshrrev_b32 v9, 4, v0
v_xor_b32 v9, v9, v8
v_lshlrev_b32 v8, 10, v8
s_lshl_b32 s41, s{sH}, 8
s_add_u32 s41, s41, {L_XN + 16*1024}
v_add_u32 v8, s41, v8
v_xor_b32 v10, 4, v9
v_xor_b32 v11, 8, v9
v_xor_b32 v12, 12, v9
v_lshl_add_u32 v9, v9, 4, v8
v_lshl_add_u32 v10, v10, 4, v8
v_lshl_add_u32 v11, v11, 4, v8
v_lshl_add_u32 v12, v12, 4, v8
s_cmp_eq_u32 s{sL}, 0
s_cbranch_scc1 A_kv2
s_waitcnt lgkmcnt(0)
s_barrier
A_kv2:
ds_read_b128 v[40:43], v9
ds_read_b128 v[44:47], v10
ds_read_b128 v[48:51], v11
ds_read_b128 v[52:55], v12
s_lshl_b32 s41, s{sH}, 11
s_add_u32 s41, s41, {L_KVS}
v_lshl_add_u32 v8, v0, 4, s41
s_lshl_b32 s42, s{sL}, 2
v_add_u32 v9, s42, v3
v_mov_b32 v10, 1""")
for s in range(4):
    a(f"s_waitcnt lgkmcnt({3-s})")
    a(f"v_mfma_f32_16x16x32_bf16 v[56:59], {V(WKV+8*s,4)}, {V(40+4*s,4)}, {'0' if s==0 else 'v[56:59]'}")
    a(f"v_mfma_f32_16x16x32_bf16 v[60:63], {V(40+4*s,4)}, {V(WKV+8*s+4,4)}, {'0' if s==0 else 'v[60:63]'}")
a(f"""ds_write_b128 v8, v[56:59]
ds_write_b128 v8, v[60:63] offset:1024
s_mov_b64 exec, 1
ds_add_u32 v9, v10 offset:{SC_KVCNT}
s_mov_b64 exec, -1
A_nokv:
s_setprio 0""")
if not os.environ.get("PP"): TS(2)
def stage(src, off, temps):
    for f in range(8):
        t = temps[f % len(temps)]
        for i in range(4):
            a(f"v_perm_b32 v{t+i}, v{src+4*(2*i+1)+(f>>1)}, v{src+4*(2*i)+(f>>1)}, s{sHI if f&1 else sLO}")
        a(f"ds_write_b128 v1, {V(t,4)} offset:{off+1024*f}")
a(f"""s_cmp_lg_u32 s{sL}, 0
s_cbranch_scc1 R_cand
s_setprio 2
s_load_dword s{sE}, {P(sWS)}, 0
s_mov_b32 s45, 5
s_mov_b32 s3, s{sH}
s_branch S_fl
S_l0:""")
TSS(17)
a(f"""v_mov_b32 v3, {L_SC}
s_mov_b32 s44, 0
s_mov_b32 s45, 1
s_add_u32 s3, s{sH}, 28
S_fl:
s_lshl_b32 s41, s44, 2
s_set_gpr_idx_on s41, gpr_idx(SRC0)
s_nop 1
v_mov_b32 v28, v{FOR}
v_mov_b32 v29, v{FOR+1}
v_mov_b32 v30, v{FOR+2}
v_mov_b32 v31, v{FOR+3}
s_nop 1
s_set_gpr_idx_off""")
unpack(40, 28)
ln(40, D_, T_, XO)
a(f"""s_and_b32 s42, s3, 15
v_xor_b32 v28, s42, v0
s_lshl_b32 s41, s3, 10
s_add_u32 s41, s41, {L_XN}
v_lshl_add_u32 v28, v28, 4, s41
ds_write_b128 v28, {V(XO,4)}
s_add_u32 s3, s3, 4
s_add_u32 s44, s44, 1
s_cmp_lg_u32 s44, {E("FLD", 4)}
s_cbranch_scc1 S_nf
s_lshl_b32 s41, s{sH}, 13
s_add_u32 s41, s41, {WS_FLAG}
v_lshl_add_u32 v13, v0, 7, s41
global_load_dword v13, v13, {P(sWS)} sc1
S_nf:
s_cmp_lt_u32 s44, s45
s_cbranch_scc1 S_fl
s_cmp_eq_u32 s45, 5
s_cbranch_scc1 A_P2
s_cmp_eq_u32 s45, 2
s_cbranch_scc1 H_ret""")
TSS(18)
a("s_waitcnt vmcnt(0)")
TSS(19)
wkv_tr(WKV, 8, 9, 98)
lds_inc(3, SC_B1, 8)
TSS(20)
lds_wait(3, SC_B1, 8, 4, 0)
TSS(21)
a(f"""s_setprio 3
s_branch A_kvp
H_B1:
s_waitcnt lgkmcnt(0)
s_barrier
s_setprio 2
s_cmp_lg_u32 s{sW}, 7
s_cbranch_scc1 R_cand
H_fin:
v_and_b32 v12, 3, v0
v_lshrrev_b32 v13, 2, v0
v_lshl_add_u32 v12, v12, 4, v13
v_and_b32 v13, 1, v0
v_lshrrev_b32 v14, 1, v0
v_lshl_add_u32 v13, v13, 4, v14
v_add_u32 v13, 48, v13
v_cmp_gt_u32 vcc, 32, v0
s_lshl_b32 s42, s{sL}, 2
v_add_u32 v9, s42, v3
v_cndmask_b32 v12, v13, v12, vcc
v_lshlrev_b32 v12, 4, v12
v_add_u32 v12, {L_KVS}, v12
s_mul_i32 s41, s{sL}, {KVL}
s_mul_i32 s42, s{sSLOT}, {KVS}
s_add_u32 s41, s41, s42
s_add_u32 s41, s41, {WS_KV}
v_lshl_add_u32 v8, v0, 3, s41""")
lds_wait(9, SC_KVCNT, 11, 4, 0)
for w in range(4): a(f"ds_read_b128 {V(40+4*w,4)}, v12 offset:{2048*w}")
a("s_setprio 3\ns_waitcnt lgkmcnt(2)")
pkadd(40, 40, 44, 4)
a("s_waitcnt lgkmcnt(0)")
pkadd(48, 48, 52, 4); pkadd(40, 40, 48, 4)
pack(40, 40, 2)
a(f"""v_mov_b32_dpp v42, v40 quad_perm:[1,1,3,3] row_mask:0xf bank_mask:0xf
v_mov_b32_dpp v43, v41 quad_perm:[1,1,3,3] row_mask:0xf bank_mask:0xf
s_mov_b32 exec_lo, 0x55555555
s_mov_b32 exec_hi, 0x55555555
global_store_dwordx4 v8, v[40:43], {P(sWS)} sc1
s_mov_b64 exec, -1
s_setprio 2
s_cmp_lg_u32 s{sL}, 0
s_cbranch_scc1 R_cand
s_waitcnt vmcnt(3)
s_branch H_P2""")
a(f"""R_cand:
s_lshl_b32 s41, s{sF}, 3
v_add_u32 v8, s41, v3
ds_read_b32 v8, v8 offset:{SC_KEYS}
s_lshl_b32 s41, s{sF}, 19
s_lshl_b32 s42, s{sB}, 11
s_add_u32 s41, s41, s42
s_add_u32 s41, s41, {WS_CAND}
v_lshl_add_u32 v2, v0, 4, s41
s_waitcnt lgkmcnt(0)
v_readfirstlane_b32 s41, v8
s_mov_b32 s{sCAND}, 0
s_cmp_lg_u32 s41, s{sMYK}
s_cbranch_scc1 R_nocand
s_mov_b32 s{sCAND}, 1
global_store_dwordx4 v2, {V(XN,4)}, {P(sWS)} sc1
global_store_dwordx4 v2, {V(X1,4)}, {P(sWS)} offset:1024 sc1
R_nocand:""")
TSF(8)
a(f"""s_cmp_lg_u32 s{sF}, 0
s_cbranch_scc1 R_tail
s_cmp_ge_u32 s{sW}, 4
s_cbranch_scc1 H_gather""")
def key_reduce():
    dpp_reduce([8], "v_max_u32")
    a(f"""s_lshl_b32 s41, s{sF}, 4
    s_lshl_b32 s42, s{sH}, 2
    s_add_u32 s41, s41, s42
    v_add_u32 v9, s41, v3
    v_add_u32 v8, 1, v8
    s_mov_b32 exec_lo, 0
    s_mov_b32 exec_hi, 0x80000000
    ds_write_b32 v9, v8 offset:{SC_GK}
    s_mov_b64 exec, -1""")
def key_poll():
    l1 = a.newlabel("K_p")
    a(f"""s_lshl_b32 s42, s{sF}, 15
    s_lshl_b32 s41, s{sH}, 13
    s_add_u32 s42, s42, s41
    s_add_u32 s42, s42, {WS_KEY}
    v_lshl_add_u32 v9, v0, 7, s42
    s_mov_b32 s{sCNT}, 0
    s_mov_b32 s44, 0
    s_mov_b64 vcc, -1
    {l1}:
    s_mov_b64 exec, {"vcc" if E("MSK", 1) else "-1"}
    global_load_dword v8, v9, {P(sWS)} sc1
    s_mov_b64 exec, -1
    s_waitcnt vmcnt(0)
    v_cmp_eq_u32 vcc, -1, v8""")
    if E("SPEC", 1):
        a(f"""s_cbranch_vccz K_sd
        v_add_u32 v12, 1, v8""")
        dpp_reduce([12], "v_max_u32")
        a(f"""v_readlane_b32 s41, v12, 63
        s_cmp_eq_u32 s41, s44
        s_cbranch_scc1 K_sn
        s_mov_b32 s44, s41
        s_sub_u32 s41, s41, 1
        s_andn2_b32 s41, 0x7f8, s41
        s_lshl_b32 s41, s41, 8
        s_add_u32 s41, s41, {WS_CAND + 0x80000}
        v_lshl_add_u32 v10, v0, 5, s41
        global_load_dword v11, v10, {P(sWS)} sc1
        K_sn:
        s_add_u32 s{sCNT}, s{sCNT}, 1
        s_cmp_lt_u32 s{sCNT}, {POLLMAX}
        s_cbranch_scc1 {l1}
        K_sd:""")
    else:
        poll_guard(l1, "s_cbranch_vccz", "K_pd", 1, E("KR1", 2))
    key_reduce()
def key_get(sleep):
    l2 = a.newlabel("K_g")
    a(f"""s_lshl_b32 s41, s{sF}, 4
    v_add_u32 v10, s41, v3
    s_mov_b32 s{sCNT}, 0
    {l2}:""")
    a(f"""ds_read_b128 v[16:19], v10 offset:{SC_GK}
    s_waitcnt lgkmcnt(0)
    v_min3_u32 v8, v16, v17, v18
    v_min_u32 v8, v8, v19
    v_cmp_eq_u32 vcc, 0, v8""")
    poll_guard(l2, "s_cbranch_vccz", "K_gd", 8, sleep)
    a(f"""v_max3_u32 v8, v16, v17, v18
    v_max_u32 v8, v8, v19
    v_readfirstlane_b32 s{sKEY}, v8
    s_sub_u32 s{sKEY}, s{sKEY}, 1
    s_and_b32 s41, s{sKEY}, 0x7ff
    s_sub_u32 s{sSEL}, 2047, s41""")
a("A_P2:")
TSS(22)
a(f"""s_lshl_b32 s42, s{sL}, 2
v_add_u32 v9, s42, v3""")
lds_inc(9, SC_XNC, 8)
a(f"""s_mul_i32 s41, s{sL}, {KVL}
s_mul_i32 s42, s{sH}, {64*KVS}
s_add_u32 s41, s41, s42
s_add_u32 s41, s41, {WS_KV + 4*KVS}
v_bfe_u32 v14, v0, 3, 2
v_mul_u32_u24 v14, {KVS}, v14
v_and_b32 v15, 7, v0
v_lshl_add_u32 v14, v15, 5, v14
v_lshrrev_b32 v11, 5, v0
v_lshl_add_u32 v14, v11, 4, v14
v_add_u32 v14, s41, v14
v_and_b32 v15, 31, v0
v_min_u32 v12, 17, v15
v_cmp_eq_u32 vcc, 20, v15
v_cndmask_b32 v15, v12, 16, vcc
v_mul_u32_u24 v11, {KVS}, v11
v_lshl_add_u32 v15, v15, 4, v11
s_add_u32 s41, s41, 256
v_add_u32 v15, s41, v15
s_mov_b32 s{sORD}, 0x65432108
s_mov_b32 s{sORD+1}, 0x7
s_lshl_b32 s41, s{sH}, 13
s_cmp_eq_u32 s{sL}, 0
s_cselect_b32 s{sWT}, 4, 15
s_cselect_b32 s42, {WS_FLAG}, 0
s_cselect_b32 s43, 0, {WS_KEY}
s_add_u32 s41, s41, s42
s_add_u32 s41, s41, s43
v_lshl_add_u32 v10, v0, 7, s41
""")
def kv_base(p):
    a(f"""s_xor_b32 s41, s{sX4}, {p}
    s_mul_i32 s41, s41, {8*KVS}
    s_add_u32 s0, s{sWS}, s41
    s_addc_u32 s1, s{sWS+1}, 0""")
def kv_one(p, i):
    if i % 3 == 0:
        k = i // 3
        a(f"global_load_dwordx4 {V(KK+8*p+4*k,4)}, v14, s[0:1] offset:{4*KVS*k-4*KVS} sc1")
    else:
        j = i - 1 - i // 3
        a(f"global_load_dwordx4 {V(VV+16*p+4*j,4)}, v15, s[0:1] offset:{2*KVS*j-4*KVS} sc1")
def kv_pair(p):
    kv_base(p)
    for i in range(6): kv_one(p, i)
def kv_check(p, younger):
    fr = [KK+8*p, KK+8*p+4] + [VV+16*p+4*i for i in range(4)]
    if os.environ.get("P0"):
        a(f"""s_cmp_lg_u32 s{sL}, {os.environ["P0"]}
        s_cbranch_scc1 C_d{p}
        s_memtime s[92:93]
        s_waitcnt lgkmcnt(0)
        s_mov_b32 s{76+2*p}, s92
        s_waitcnt vmcnt({younger})
        s_memtime s[92:93]
        s_waitcnt lgkmcnt(0)
        s_mov_b32 s{77+2*p}, s92
        C_d{p}:""")
    a(f"""s_waitcnt vmcnt({younger})
    C_r{p}:
    v_max3_u32 v12, v{fr[0]}, v{fr[1]}, v{fr[2]}
    v_max3_u32 v13, v{fr[3]}, v{fr[4]}, v{fr[5]}
    v_max_u32 v12, v12, v13
    v_cmp_eq_u32 vcc, -1, v12
    s_cbranch_vccnz C_x{p}
    C_o{p}:
    s_cmp_eq_u32 s3, {p}
    s_cbranch_scc1 C_m{p}
    C_b{p}:""")
def kv_tail(p):
    a(f"""C_x{p}:
    s_add_u32 s{sCNT}, s{sCNT}, 1
    s_cmp_ge_u32 s{sCNT}, {POLLMAX}
    s_cbranch_scc1 C_o{p}""")
    a("s_mov_b64 s[98:99], s[0:1]")
    kv_pair(p)
    a(f"""s_mov_b64 s[0:1], s[98:99]
    s_waitcnt vmcnt(0)
    s_branch C_r{p}
    C_m{p}:
    v_mov_b32 v12, s5
    s_mov_b64 exec, s[6:7]
    s_set_gpr_idx_on s4, gpr_idx(SRC0,DST)
    s_nop 1
    v_and_b32 v{VV+16*p}, v{VV+16*p}, v12
    s_nop 1
    s_set_gpr_idx_off
    s_mov_b64 exec, -1
    s_nop 1
    s_branch C_b{p}""")
DEP = int(os.environ.get('DEP', '3'))
a(f"""s_and_b32 s{sX4}, s{sPB}, {4 if E("ROT", 3) == 3 else 0}
s_lshr_b32 s41, s{sPB}, 3
s_and_b32 s41, s41, {E("ROT", 3)}
s_or_b32 s{sX4}, s{sX4}, s41
{"s_andn2_b32 s%d, 7, s%d" % (sX4, sB) if E("OWNL", 0) else "s_nop 0"}
s_mov_b32 s{sCNT}, 0
s_cmp_lg_u32 s{sL}, 0
s_cbranch_scc1 A_nfl
s_setprio 0
s_waitcnt vmcnt(0) lgkmcnt(0)
s_mul_i32 s{sTAG}, s{sE}, 0x9e3779b1
s_add_u32 s{sTAG}, s{sTAG}, 0x7f4a7c15
s_sleep {E("FS", 0)}
v_cmp_ne_u32 vcc, s{sTAG}, v13
s_cbranch_vccz A_nf2
A_flg:
global_load_dword v8, v10, {P(sWS)} sc1
s_waitcnt vmcnt(0)
v_cmp_ne_u32 vcc, s{sTAG}, v8""")
poll_guard("A_flg", "s_cbranch_vccz", "A_flgd", 1, 2)
a("s_branch A_nf2\nA_nfl:")
a(f"""s_mov_b32 s{sCNT}, 0
A_xw:
ds_read_b32 v12, v9 offset:{SC_XNC}
s_waitcnt lgkmcnt(0)
v_cmp_gt_u32 vcc, 8, v12
s_cbranch_vccz A_xwd
s_sleep 1
s_add_u32 s{sCNT}, s{sCNT}, 1
s_cmp_lt_u32 s{sCNT}, {E("XT", 5)}
s_cbranch_scc1 A_xw
A_xwd:""")
a(f"global_load_dword v8, v10, {P(sWS)} sc1\nA_nf2:")
TS(3)
for p in range(DEP): kv_pair(p)
TSS(23)
a(f"""s_mov_b32 s3, 15
s_cmp_eq_u32 s{sL}, 0
s_cbranch_scc1 A_go
s_mov_b32 s{sCNT}, 0
s_waitcnt vmcnt({6*DEP})
s_branch A_kc
A_kp:
s_mov_b64 exec, {"vcc" if E("MSK", 1) else "-1"}
global_load_dword v8, v10, {P(sWS)} sc1
s_mov_b64 exec, -1
s_waitcnt vmcnt(0)
A_kc:
v_cmp_eq_u32 vcc, -1, v8""")
poll_guard("A_kp", "s_cbranch_vccz", "A_kpd", 1, E("KR0", 1))
key_reduce()
key_get(0)
if XL:
    a(f"""s_bfe_u32 s41, s{sSEL}, 0x50003
    s_lshl_b32 s41, s41, 6
    s_lshr_b32 s42, s{sSEL}, 8
    s_lshl_b32 s42, s42, 3
    s_or_b32 s41, s41, s42
    s_and_b32 s42, s{sSEL}, 7
    s_or_b32 s101, s41, s42""")
else:
    a(f"s_mov_b32 s101, s{sSEL}")
a(f"""s_bfe_u32 s4, s101, 0x20007
s_lshl_b32 s4, s4, 2
s_bfe_u32 s42, s{sSEL}, 0x20001
s_add_u32 s4, s4, s42
s_bitcmp1_b32 s{sSEL}, 0
s_mov_b32 s5, 0xffff0000
s_cselect_b32 s5, 0xffff, s5
s_bitcmp1_b32 s101, 6
s_cselect_b32 s6, 0, -1
s_cselect_b32 s7, -1, 0
s_lshr_b32 s41, s101, 9
s_bfe_u32 s42, s101, 0x30003
s_xor_b32 s42, s42, s{sX4}
s_cmp_eq_u32 s41, s{sH}
s_cselect_b32 s3, s42, 15
s_xor_b32 s41, s{sSEL}, s{sTOK}
s_lshr_b32 s41, s41, 5
s_cbranch_scc1 A_go
s_lshl_b32 s41, s{sC}, 3
s_sub_u32 s41, s{sSEL}, s41
s_sub_u32 s41, s41, 8
s_bfe_u32 s{sWT}, s41, 0x30002
s_or_b32 s41, s{sWT}, 1
s_max_u32 s41, s41, {E('POS', 4)}
s_xor_b32 s42, s41, s{sWT}
s_mov_b32 s43, 0
s_lshl_b32 s41, s41, 2
s_add_u32 s41, s41, 4
s_lshl_b64 s[44:45], s[42:43], s41
s_xor_b64 {P(sORD)}, {P(sORD)}, s[44:45]
s_lshl_b32 s41, s{sWT}, 2
s_add_u32 s41, s41, 4
s_lshl_b64 s[44:45], s[42:43], s41
s_xor_b64 {P(sORD)}, {P(sORD)}, s[44:45]
A_go:
s_setprio 0
s_lshl_b32 s42, s{sL}, 2
v_add_u32 v9, s42, v3""")
def att_addr():
    a(f"""v_bfe_u32 v1, v0, 3, 2
    v_mul_u32_u24 v1, {QSTR}, v1
    v_and_b32 v2, 7, v0
    v_lshl_add_u32 v1, v2, 5, v1
    v_lshrrev_b32 v2, 5, v0
    v_lshl_add_u32 v1, v2, 4, v1
    v_add_u32 v{vQA}, {L_Q}, v1
    s_lshl_b32 s{sOPB}, s{sH}, 11
    s_add_u32 s{sOPB}, s{sOPB}, 1796
    v_mov_b32 v{vIDX}, 0xdddddddd
    v_and_b32 v0, 31, v0
    s_lshl_b32 s41, s{sH}, 7
    s_add_u32 s41, s41, {L_L}
    v_lshl_add_u32 v0, v0, 2, s41""")
att_addr()
a(f"s_mov_b32 s{sCNT}, 0")
kv_check(0, 6*(DEP-1))
TS(4)
a(f"""s_bfe_u32 s41, s{sORD}, 0x40004
s_and_b32 s43, s41, 4
s_add_u32 s43, s43, 4""")
lds_wait(9, SC_QC, 10, "s43", 0)
a(f"""s_lshl_b32 s2, s{sL}, 2
s_add_u32 s2, s2, {L_SC + SC_QC}
s_mul_i32 s41, s41, {4*QSTR}
v_add_u32 v{Q}, s41, v{vQA}
ds_read_b128 {V(Q,4)}, v{Q}
s_mov_b32 s{sCNT}, 0""")
for i in range(0, 10, 2): a(f"v_mov_b64 {V(ACC+i,2)}, 0")
TS(5)
TC(0)
def smf(vfrag, pb): a(f"v_smfmac_f32_32x32x32_bf16 {V(ACC,16)}, {V(VV+4*vfrag,4)}, {V(pb,8)}, v{vIDX}")
def ex(base, lo, hi):
    for i in range(lo, hi): a(f"v_exp_f32 v{base+i}, v{base+i}")
def flush():
    for r in range(8): a(f"ds_write_addtid_b32 v{ACC+r} offset:{L_SLOT - 1796 + 256*r}")
    a(f"ds_write_b32 v{vOA}, v{ACC+8}")
def flush_pre():
    a(f"""s_lshl_b32 s42, s41, 13
    s_add_u32 m0, s42, s{sOPB}
    v_lshl_add_u32 v{vOA}, s41, 9, v0""")
a(f"""s_waitcnt lgkmcnt(0)
v_mfma_f32_32x32x16_bf16 {V(S0,16)}, {V(KK,4)}, {V(Q,4)}, 0""")
NT = 16
QIN = E("QIN", 0)
def qwait():
    a(f"""v_mov_b32 v14, {L_SC}
    s_lshl_b32 s42, 4, s{sL}""")
    lds_wait(14, SC_QFIX, 15, "s42", 1)
    a(f"s_mov_b32 s{sWT}, 15")
def att_pass(first):
    for kt in range(NT):
        cur, oth = (S0, S1) if kt % 2 == 0 else (S1, S0)
        lp = kt//2 + DEP
        ld = first and lp < 8
        def L(i):
            if ld: kv_one(lp, 3*(kt & 1) + i)
        if ld and kt % 2 == 0: kv_base(lp)
        ex(cur, 0, 2)
        if not (first and kt == 0): smf((2*kt - 1) % (2*NT), oth + 8)
        L(0)
        ex(cur, 2, 5)
        if kt == NT-1: a("s_waitcnt lgkmcnt(0)")
        if first and kt % 2 == 1 and kt < NT-1:
            p = (kt+1)//2
            kv_check(p, (6*(lp - p) - 2) if ld else 6*(7 - p))
        a(f"v_mfma_f32_32x32x16_bf16 {V(oth,16)}, {V(KK+4*((kt+1)%NT),4)}, {V(Q,4)}, 0")
        if first and kt == NT-3:
            a(f"""v_mov_b32 v13, s2
            ds_read_b32 v13, v13""")
        if first and kt == NT-2:
            a(f"""s_waitcnt lgkmcnt(0)
            v_cmp_gt_u32 vcc, 8, v13
            s_cbranch_vccnz A_q8
            A_q8b:""")
        if kt == NT-2:
            a(f"s_bfe_u32 s41, s{sORD}, 0x40008")
            if not first:
                a(f"""s_cmp_lg_u32 s41, s{sWT}
                s_cbranch_scc1 A_qback""") if QIN else a(f"""s_cmp_eq_u32 s41, s{sWT}
                s_cbranch_scc1 A_qwait""")
                if QIN: qwait()
                a("A_qback:")
            a(f"""s_mul_i32 s41, s41, {4*QSTR}
            v_add_u32 v{Q}, s41, v{vQA}
            ds_read_b128 {V(Q,4)}, v{Q}""")
        if kt == 0 and not first:
            a(f"s_and_b32 s41, s{sORD}, 15")
            flush_pre()
            ex(cur, 5, 9)
            flush()
            a(f"v_mfma_f32_32x32x8_f16 {V(ACC,16)}, {V(ZZ,2)}, {V(ZZ,2)}, 0")
            ex(cur, 9, 13)
            smf(0, cur)
            ex(cur, 13, 16)
        else:
            ex(cur, 5, 8)
            L(1)
            ex(cur, 8, 10)
            smf(2*kt, cur)
            ex(cur, 10, 13)
            L(2)
            ex(cur, 13, 16)
        if ld and lp == 7 and kt % 2 == 1:
            a(f"v_mov_b32 v12, {L_SC}")
            lds_inc(12, SC_KVD, 13)
att_pass(True)
a(f"""v_mov_b64 {V(ZZ,2)}, 0
s_lshr_b64 {P(sORD)}, {P(sORD)}, 4""")
if not os.environ.get('PP'): TS(12)
if TSON:
    a(f"""s_cmp_eq_u32 s{sL}, 0
    s_cselect_b32 s73, s{sCNT}, s73
    s_nop 0""")
if os.environ.get("AL"):
    a(".p2align 6")
    for _ in range(int(os.environ["AL"])): a("s_nop 0")
a("A_pass:")
if os.environ.get("PP"): a("s_memtime s[94:95]")
att_pass(False)
if os.environ.get("PP"):
    a(f"""s_cmp_lg_u32 s{sL}, {os.environ.get("PP")}
    s_cbranch_scc1 A_ppx""")
    for d, q in ((86, 87), (87, 88), (88, 74), (74, 70), (70, 71), (71, 62), (62, 94)): a(f"s_mov_b32 s{d}, s{q}")
    a("A_ppx:")
a(f"""s_lshr_b64 {P(sORD)}, {P(sORD)}, 4
s_cmp_gt_u32 s{sORD}, 15
s_cbranch_scc1 A_pass""")
smf(2*NT-1, S1 + 8)
if not QIN:
    a("s_branch A_fl\nA_qwait:")
    qwait()
    a("s_branch A_qback\nA_fl:")
a(f"s_and_b32 s41, s{sORD}, 15")
flush_pre()
flush()
TC(1)
TS(9)
a(f"""A_X:
v_mbcnt_lo_u32_b32 v0, -1, 0
v_mbcnt_hi_u32_b32 v0, -1, v0
s_waitcnt lgkmcnt(0)
s_barrier""")
TS(6)
a(f"""v_mov_b32 v9, {L_SC}
s_barrier
ds_read_b32 v9, v9 offset:{SC_BAD}
s_lshl_b32 s98, s{sH}, 13
s_add_u32 s98, s98, {L_WK1}
s_waitcnt lgkmcnt(0)
v_cmp_ne_u32 vcc, 0, v9
s_cbranch_vccnz A_slow
s_cmp_lg_u32 s{sL}, 0
s_cbranch_scc1 R_P4
v_mov_b64 v[28:29], -1
v_mov_b64 v[30:31], -1
s_lshl_b32 s41, s{sH}, 10
s_add_u32 s41, s41, {L_L}
v_lshl_add_u32 v2, v0, 4, s41
ds_write_b128 v2, v[28:31]""")
a(f"""R_P4:
s_mul_i32 s41, s{sW}, {RS}
s_add_u32 s41, s41, {L_ROW}
v_lshl_add_u32 v3, v0, 5, s41
s_waitcnt lgkmcnt(0)
s_barrier
ds_read_b128 v[8:11], v3
ds_read_b128 v[16:19], v3 offset:{8*RS}
ds_read_b128 v[12:15], v3 offset:16
ds_read_b128 v[20:23], v3 offset:{8*RS+16}
s_mov_b32 s{sF}, s{sL}
s_mov_b32 s{sSLOW}, 0
v_lshlrev_b32 v2, 4, v0
v_add_u32 v2, {L_X2S}, v2
ds_read_b128 {V(WR,4)}, v2 offset:{L_SC + SC_WR - L_X2S}
s_cmp_lg_u32 s{sSEL}, s{sTOK}
s_cbranch_scc1 R_nx
ds_read_b128 {V(XR,4)}, v2
s_waitcnt lgkmcnt(0)
R_nx:""")
a(f"""s_lshl_b32 s41, s{sL}, 2
s_or_b32 s41, s41, s{sW}
s_cmp_ge_u32 s41, 4
s_cbranch_scc1 R_nd""")
wkv_dma(2, 98)
a("R_nd:")
unpack(24, XR)
a("s_waitcnt lgkmcnt(0)")
TS(7)
pkadd(8, 8, 16, 8)
pkadd(8, 8, 24, 8)
ln(X_, D_, T_, XN)
a(f"""v_dot2_f32_bf16 v1, v{XN}, v{WR}, 0
v_dot2_f32_bf16 v1, v{XN+1}, v{WR+1}, v1
v_dot2_f32_bf16 v1, v{XN+2}, v{WR+2}, v1
v_dot2_f32_bf16 v1, v{XN+3}, v{WR+3}, v1""")
dpp_reduce([1])
key_make()
a(f"""s_cmp_lg_u32 s{sL}, 0
s_cbranch_scc1 R_lastl""")
pack(X1, X_)
pkadd(X_, D_, X_, 8)
pack(XR, X_)
a(f"""s_mov_b32 s{sL}, 1""")
key_pub()
a(f"""s_branch R_P1b
R_lastl:""")
pack(X1, X_)
key_pub()
pkadd(X_, D_, X_, 8)
pack(XR, X_)
a(f"""s_barrier
s_branch R_cand
R_tail:
s_lshl_b32 s41, s{sTOK}, 10
v_lshl_add_u32 v1, v0, 4, s41
s_cmp_lt_u32 s{sW}, {4 if E("ALATE", 0) else 0}
s_cbranch_scc1 R_noout
s_cmp_lg_u32 s{sCAND}, 0
s_cbranch_scc1 R_noout
global_store_dwordx4 v1, {V(XR,4)}, {P(sOUT)}{OUTF}
R_noout:
s_cmp_ge_u32 s{sW}, 4
s_cbranch_scc1 H_FF2""")
key_poll()
a(f"""s_cmp_eq_u32 s{sCAND}, 0
s_cbranch_scc1 {"R_st" if E("ALATE", 0) else "L_end"}""")
key_get(1)
a(f"""s_cmp_eq_u32 s{sSEL}, s{sTOK}
s_cbranch_scc1 L_end
R_st:
global_store_dwordx4 v1, {V(XR,4)}, {P(sOUT)}{OUTF}
s_branch L_end
""")
for p in range(8): kv_tail(p)
a("A_q8:\nv_mov_b32 v12, s2")
lds_wait(12, 0, 13, 8, 1)
a("s_branch A_q8b")

def qtr_addr():
    a(f"""v_lshrrev_b32 v12, 4, v0
    v_bfe_u32 v13, v0, 2, 2
    v_lshl_add_u32 v1, v12, 3, v13
    v_and_b32 v12, 1, v12
    v_lshl_add_u32 v12, v12, 2, v13
    s_lshl_b32 s41, s{sH}, 1
    v_xor_b32 v12, s41, v12
    v_and_b32 v13, 3, v0
    v_lshl_add_u32 v13, v12, 2, v13
    v_lshlrev_b32 v13, 3, v13
    v_lshl_add_u32 v1, v1, 8, v13""")
def coop(j):
    a(f"s_add_u32 m0, s4, {1024*j}")
    a(f"global_load_lds_dwordx4 v{50 + ((j>>1)&1)}, s[0:1]")
    a("s_add_u32 s0, s0, 4096\ns_addc_u32 s1, s1, 0")
a(f"""H_stage:
v_lshrrev_b32 v48, 2, v0
v_and_b32 v49, 3, v0
v_lshlrev_b32 v49, 4, v49
v_lshl_add_u32 v48, v48, 10, v49
s_lshl_b32 s41, s{sH}, 6
s_lshl_b32 s42, s{sC}, 8
s_add_u32 s41, s41, s42
v_add_u32 v48, s41, v48
s_lshl_b32 s5, s{sH}, 12
s_add_u32 s5, s5, {6*8192}""")
for q in range(4):
    a(f"""s_add_u32 s0, s{sWQ}, {32768*14 + 16384*q}
    s_addc_u32 s1, s{sWQ+1}, 0
    s_add_u32 m0, s5, {1024*q}
    global_load_lds_dwordx4 v48, s[0:1]""")
a(f"""v_lshrrev_b32 v49, 4, v0
v_lshlrev_b32 v50, 1, v49
v_xor_b32 v50, v50, v0
v_and_b32 v50, 15, v50
v_lshlrev_b32 v50, 4, v50
v_lshl_add_u32 v50, v49, 10, v50
v_add_u32 v50, s42, v50
v_xor_b32 v51, 128, v50
s_lshl_b32 s41, s{sH}, 1
s_add_u32 s41, s41, 8
s_lshl_b32 s4, s41, 13
s_lshl_b32 s41, s41, 15
s_add_u32 s0, s{sWQ}, s41
s_addc_u32 s1, s{sWQ+1}, 0
s_cmp_eq_u32 s{sH}, 3
s_cbranch_scc1 H_c3""")
for j in range(16): coop(j)
a(f"""s_branch H_c4
H_c3:
s_setprio 3
s_lshl_b32 s41, s{sPB}, 7
s_add_u32 s41, s41, {WS_FLAG}
v_mov_b32 v1, s41
v_mov_b32 v3, {L_SC}
s_waitcnt lgkmcnt(0)
s_mul_i32 s{sTAG}, s{sE}, 0x9e3779b1
s_add_u32 s{sTAG}, s{sTAG}, 0x7f4a7c15
v_mov_b32 v2, s{sTAG}
s_waitcnt vmcnt(0)
s_mov_b64 exec, 1
global_store_dword v1, v2, {P(sWS)} sc1
s_mov_b64 exec, -1""")
a("s_setprio 1\nH_c4:")
a(f"""v_lshrrev_b32 v12, 4, v0
v_bfe_u32 v13, v0, 2, 2
v_lshl_add_u32 v1, v12, 3, v13
v_and_b32 v13, 3, v0
v_lshlrev_b32 v13, 3, v13
v_lshl_add_u32 v1, v1, 6, v13
v_add_u32 v1, s5, v1
v_mov_b32 v3, {L_SC}
s_waitcnt lgkmcnt(0)
s_mul_i32 s{sTAG}, s{sE}, 0x9e3779b1
s_add_u32 s{sTAG}, s{sTAG}, 0x7f4a7c15""")
TSS(18)
a("s_waitcnt vmcnt(16)")
for k in range(2):
    for f in range(2):
        for hf in range(2): a(f"ds_read_b64_tr_b16 {V(WQR+48+8*k+4*f+2*hf,2)}, v1 offset:{k*2048 + 256*hf + 32*f}")
lds_inc(3, SC_C2, 8)
a(f"""s_cmp_eq_u32 s{sH}, 3
s_cbranch_scc1 H_c5
s_lshl_b32 s4, s{sH}, 14
s_lshl_b32 s41, s{sH}, 16
s_add_u32 s0, s{sWQ}, s41
s_addc_u32 s1, s{sWQ+1}, 0""")
for j in range(16): coop(j)
a("H_c5:")
TSS(19)
lds_wait(3, SC_C2, 8, 4, 0)
a(f"""s_lshl_b32 s41, s{sH}, 14
s_add_u32 s41, s41, {6*32768}
s_add_u32 s0, s{sWQ}, s41
s_addc_u32 s1, s{sWQ+1}, 0
s_mov_b32 s4, s5""")
for j in range(4): coop(j)
a(f"s_add_u32 s44, s{sH}, 16")
pos2tok(41, 44)
a(f"""s_lshl_b32 s41, s41, 10
s_add_u32 s41, s41, 2048
v_lshl_add_u32 v1, v0, 4, s41
global_load_dwordx4 {V(FOR,4)}, v1, {P(sX)} offset:-2048
global_load_dwordx4 {V(FOR+4,4)}, v1, {P(sX)} offset:2048
s_cmp_lg_u32 s{sW}, 6
s_cbranch_scc1 H_st0
v_lshlrev_b32 v1, 4, v0
v_add_u32 v1, {L_SC + SC_WR}, v1
ds_write_b128 v1, v[44:47]
H_st0:
s_cmp_eq_u32 s{sW}, 7
s_cbranch_scc1 H_fin
s_waitcnt vmcnt(2)""")
TSA(4)
a("s_setprio 2\ns_branch H_P2")
a(f"""H_gather:
v_xor_b32 v12, s{sH}, v0
v_xor_b32 v13, 4, v12
v_xor_b32 v14, 8, v12
v_xor_b32 v15, 12, v12
s_lshl_b32 s41, s{sH}, 10
s_add_u32 s41, s41, {L_XN}
v_lshl_add_u32 v12, v12, 4, s41
v_lshl_add_u32 v13, v13, 4, s41
v_lshl_add_u32 v14, v14, 4, s41
v_lshl_add_u32 v15, v15, 4, s41
s_mov_b32 s{sCNT}, 0
s_sleep {E('GS', 8)}
H_xg:""")
gloads(8)
a(f"""s_waitcnt vmcnt(0)
v_max3_u32 v16, v40, v44, v48
v_max3_u32 v17, v52, v56, v60
v_max_u32 v16, v16, v17
v_cmp_eq_u32 vcc, -1, v16""")
poll_guard("H_xg", "s_cbranch_vccz", "H_xgd", 1, E("GR", 0))
for i in range(6): a(f"ds_write_b128 v{12+(i&3)}, {V(40+4*i,4)} offset:{4096*i}")
a(f"""H_P2:
s_lshl_b32 s42, s{sL}, 2
s_add_u32 s42, s42, {L_SC}
v_mov_b32 v3, s42""")
lds_inc(3, SC_XNC, 12)
a(f"""v_and_b32 v1, 15, v0
v_lshrrev_b32 v2, 4, v0
v_xor_b32 v8, v2, v1
v_lshlrev_b32 v1, 10, v1
v_add_u32 v1, {L_XN}, v1
v_xor_b32 v9, 4, v8
v_xor_b32 v10, 8, v8
v_xor_b32 v11, 12, v8
v_lshl_add_u32 v8, v8, 4, v1
v_lshl_add_u32 v9, v9, 4, v1
v_lshl_add_u32 v10, v10, 4, v1
v_lshl_add_u32 v11, v11, 4, v1
v_and_b32 v2, 15, v0
v_mul_u32_u24 v2, {QSTR}, v2
v_lshrrev_b32 v12, 4, v0
v_lshl_add_u32 v2, v12, 3, v2
s_lshl_b32 s41, s{sH}, 6
s_add_u32 s41, s41, {L_Q}
v_add_u32 v2, s41, v2
s_mov_b32 s{sQM}, 0""")
qtr_addr()
a(f"""s_cmp_lg_u32 s{sL}, 0
s_cbranch_scc1 H_q0""")
lds_inc(3, SC_C2, 12)
lds_wait(3, SC_C2, 12, 8, 0)
a(f"""v_add_u32 v12, 0x10000, v1
v_xor_b32 v13, 32, v12""")
for k in range(6):
    for f in range(2):
        for hf in range(2): a(f"ds_read_b64_tr_b16 {V(WQR+8*k+4*f+2*hf,2)}, v{12+f} offset:{k*8192 + 1024*hf}")
    if k in (2, 4): a("s_waitcnt lgkmcnt(4)")
a("s_waitcnt lgkmcnt(0)\nH_q0:")
lds_wait(3, SC_XNC, 12, 8, 0)
TS(3)
a("H_qp:")
order = [14, 0, 15, 1, 8, 2, 9, 3, 10, 4, 11, 5, 12, 6, 13, 7]
def qbuf(idx): return (20 + 12*((idx//2) % 3)) if order[idx] < 8 else (56 + 4*((idx//2) % 2))
def qread(idx):
    s = order[idx]; b = qbuf(idx)
    a(f"ds_read_b128 {V(b,4)}, v{8+(s&3)} offset:{256*(s>>2)}")
    if s < 8:
        for hf in range(2): a(f"ds_read_b64_tr_b16 {V(b+4+2*hf,2)}, v1 offset:{8192*s + 1024*hf}")
        a(f"v_xor_b32 v{b+10}, 32, v1")
        for hf in range(2): a(f"ds_read_b64_tr_b16 {V(b+8+2*hf,2)}, v{b+10} offset:{8192*s + 1024*hf}")
qcnt = lambda i: 5 if order[i] < 8 else 1
AH = 3
for i in range(AH): qread(i)
for idx in range(16):
    if idx + AH < 16: qread(idx+AH)
    a(f"s_waitcnt lgkmcnt({sum(qcnt(j) for j in range(idx+1, min(idx+AH+1, 16)))})")
    s = order[idx]; b = qbuf(idx)
    for f in range(2):
        A_ = V(b+4+4*f,4) if s < 8 else V(WQR+8*(s-8)+4*f,4)
        d = V(12+4*f,4)
        a(f"v_mfma_f32_16x16x32_bf16 {d}, {A_}, {V(b,4)}, {'0' if idx==0 else d}")
a(f"""s_setprio 2
s_mov_b32 s42, {QSCALE}""")
for i in range(4): a(f"v_add_u32 v{8+i}, 0x4000, v{8+i}")
for i in range(0, 8, 2): a(f"v_pk_mul_f32 {V(12+i,2)}, {V(12+i,2)}, s[42:43] op_sel_hi:[1,0]")
pack(20, 12, 4)
a(f"""ds_write_b64 v2, v[20:21]
ds_write_b64 v2, v[22:23] offset:32""")
lds_inc(3, SC_QC, 12)
a(f"""s_cmp_eq_u32 s{sQM}, 2
s_cbranch_scc1 H_fx3
s_cmp_eq_u32 s{sQM}, 1
s_cbranch_scc1 H_qd""")
TS(2)
a(f"""v_add_u32 v2, {16*QSTR}, v2
s_mov_b32 s{sQM}, 1
s_cmp_lg_u32 s{sL}, 0
s_cbranch_scc1 H_q2
s_setprio {HLNP}
s_mov_b32 s44, 0
s_mov_b32 s45, 2
s_add_u32 s3, s{sH}, 16
s_waitcnt vmcnt(0)
s_branch S_fl
H_ret:""")
lds_inc(3, SC_XN2, 12)
lds_wait(3, SC_XN2, 12, 4, 1)
a(f"""H_q2:
s_setprio 0
s_branch H_qp
H_qd:""")
a(f"""s_cmp_eq_u32 s{sL}, 0
s_cbranch_scc1 H_prep
v_mov_b32 v3, {L_SC}
s_branch H_FFN
H_prep:""")
lds_wait(3, SC_KVD, 12, 4, 4)
a(f"""s_min_u32 s43, s{sB}, 223
s_lshl_b32 s43, s43, 2
s_add_u32 s43, s43, s{sH}
s_and_b32 s44, s43, 31
s_lshr_b32 s45, s43, 5
v_lshrrev_b32 v2, 3, v0
v_and_b32 v3, 7, v0
s_mul_i32 s41, s44, {8*7168}
s_lshl_b32 s42, s45, 7
s_add_u32 s41, s41, s42
v_mul_u32_u24 v1, 7168, v2
v_lshl_add_u32 v1, v3, 4, v1
v_add_u32 v1, s41, v1
global_load_dwordx4 {V(GU,4)}, v1, {P(sWG)}
global_load_dwordx4 {V(GU+4,4)}, v1, {P(sWG)} offset:3584
global_load_dwordx4 {V(GU+8,4)}, v1, {P(sWU)}
global_load_dwordx4 {V(GU+12,4)}, v1, {P(sWU)} offset:3584
s_lshl_b32 s41, s45, 16
s_lshl_b32 s42, s44, 5
s_add_u32 s41, s41, s42
s_add_u32 s41, s41, 4096
v_lshlrev_b32 v1, 13, v2
v_lshl_add_u32 v1, v3, 2, v1
v_add_u32 v1, s41, v1""")
for r in range(8): a(f"global_load_dword v{WDn + 4*(r&1) + (r>>1)}, v1, {P(sWD)} offset:{1024*r-4096}")
a(f"""v_lshrrev_b32 v9, 4, v0
v_lshlrev_b32 v8, 1, v9
v_xor_b32 v8, v8, v0
v_and_b32 v8, 15, v8
v_lshlrev_b32 v8, 4, v8
v_lshl_add_u32 v8, v9, 10, v8
v_bfe_u32 v10, v0, 2, 2
v_lshl_add_u32 v16, v9, 3, v10
v_and_b32 v9, 1, v9
v_lshl_add_u32 v9, v9, 2, v10
v_and_b32 v10, 3, v0
v_lshl_add_u32 v10, v9, 2, v10
v_lshlrev_b32 v10, 3, v10
v_lshl_add_u32 v16, v16, 8, v10
v_xor_b32 v9, 128, v8
s_lshl_b32 s4, s{sH}, 13
s_add_u32 s4, s4, {L_SLOT + 32768}
v_add_u32 v16, s4, v16
s_lshl_b32 s41, s{sC}, 17
s_lshl_b32 s42, s{sH}, 8
s_add_u32 s41, s41, s42
s_add_u32 s0, s{sWO}, s41
s_addc_u32 s1, s{sWO+1}, 0""")
for f in range(1, 8): a(f"v_xor_b32 v{16+f}, {32*f}, v16")
for s in range(4):
    for j in range(8):
        a(f"""s_add_u32 m0, s4, {1024*j}
        global_load_lds_dwordx4 v{8 + ((j>>1)&1)}, s[0:1]
        s_add_u32 s0, s0, 4096
        s_addc_u32 s1, s1, 0""")
    a("s_waitcnt vmcnt(0)")
    for f in range(8):
        for hf in range(2): a(f"ds_read_b64_tr_b16 {V(WO+32*s+4*f+2*hf,2)}, v{16+f} offset:{1024*hf}")
        if f == 5: a("s_waitcnt lgkmcnt(4)")
    a("s_waitcnt lgkmcnt(0)")
a(f"v_mov_b32 v1, {L_SC}")
lds_inc(1, SC_QFIX, 8)
a(f"""v_mov_b64 v[8:9], -1
v_mov_b64 v[10:11], -1
s_lshl_b32 s41, s{sB}, 13
s_lshl_b32 s42, s{sH}, 11
s_add_u32 s41, s41, s42
s_add_u32 s41, s41, {WS_XN}
v_lshl_add_u32 v1, v0, 4, s41
global_store_dwordx4 v1, v[8:11], {P(sWS)} sc1
global_store_dwordx4 v1, v[8:11], {P(sWS)} offset:1024 sc1
s_lshr_b32 s41, s{sH}, 1
s_lshl_b32 s41, s41, 19
s_and_b32 s42, s{sH}, 1
s_lshl_b32 s42, s42, 10
s_add_u32 s41, s41, s42
s_lshl_b32 s42, s{sB}, 11
s_add_u32 s41, s41, s42
s_add_u32 s41, s41, {WS_CAND}
v_lshl_add_u32 v1, v0, 4, s41
global_store_dwordx4 v1, v[8:11], {P(sWS)} sc1
s_cmp_ge_u32 s{sB}, 224
s_cbranch_scc1 H_bursts
s_setprio {E('FP', 0)}""")
for base in (GU, GU+8, WDn):
    for i in range(4): tr_pair(base+i, base+4+i, 12)
a(f"""s_setprio 2
v_lshlrev_b32 v2, 4, v2
v_lshl_add_u32 v2, v3, 15, v2
s_lshl_b32 s41, s45, 18
s_lshr_b32 s42, s44, 3
s_lshl_b32 s42, s42, 13
s_add_u32 s41, s41, s42
s_and_b32 s42, s44, 7
s_lshl_b32 s42, s42, 7
s_add_u32 s41, s41, s42
s_add_u32 s41, s41, {WS_FS}
v_add_u32 v1, s41, v2""")
for i in range(4): a(f"global_store_dwordx4 v1, {V(GU+4*i,4)}, {P(sWS)} offset:{1024*i} sc1")
a(f"""s_lshl_b32 s41, s44, 18
s_lshr_b32 s42, s45, 3
s_lshl_b32 s42, s42, 13
s_add_u32 s41, s41, s42
s_and_b32 s42, s45, 7
s_lshl_b32 s42, s42, 7
s_add_u32 s41, s41, s42
s_add_u32 s41, s41, {WS_FS + 4096}
v_add_u32 v1, s41, v2""")
for i in range(2): a(f"global_store_dwordx4 v1, {V(WDn+4*i,4)}, {P(sWS)} offset:{1024*i} sc1")
a("H_bursts:")
TS(5)
OF, AC = 8, 32
sSB, sLB = 44, 45
a(f"""s_lshr_b32 s41, s{sH}, 1
s_and_b32 s42, s{sH}, 1
s_lshl_b32 s{sSB}, s41, 13
s_lshl_b32 s43, s42, 10
s_add_u32 s{sSB}, s{sSB}, s43
s_add_u32 s{sSB}, s{sSB}, {L_SLOT}
s_lshl_b32 s{sLB}, s41, 9
s_add_u32 s{sLB}, s{sLB}, {L_L}
v_bfe_u32 v3, v0, 3, 2
v_mul_u32_u24 v3, {QSTR}, v3
v_and_b32 v8, 7, v0
v_lshl_add_u32 v3, v8, 5, v3
s_mul_i32 s43, s41, {4*QSTR}
s_add_u32 s43, s43, {L_O}
v_add_u32 v3, s43, v3
v_and_b32 v2, 15, v0
v_mul_u32_u24 v2, {QSTR}, v2
v_lshrrev_b32 v8, 4, v0
v_lshl_add_u32 v2, v8, 4, v2
v_add_u32 v2, {L_O}, v2
s_mul_i32 s{sOPB}, s{sL}, {OPL}
s_mov_b32 s98, 0x00ff00ff
s_mov_b32 s99, 0x00ff00ff
s_mul_i32 s41, s{sH}, 12288
s_add_u32 s{sOPB}, s{sOPB}, s41
s_add_u32 s{sOPB}, s{sOPB}, {WS_OP}
s_add_u32 s{sOTAG}, s{sTAG}, s{sL}
s_add_u32 s{sOTAG}, s{sOTAG}, 1""")
def corr(g):
    l0 = a.newlabel("H_c0"); l1 = a.newlabel("H_c1")
    a(f"""s_andn2_b32 s41, s{sL}, s{sSLOW}
    s_cbranch_scc0 {l0}
    v_lshrrev_b32 v28, 5, v0
    s_lshl_b32 s41, s{sH}, 5
    s_add_u32 s41, s41, {L_VS}
    v_lshl_add_u32 v28, v28, 4, s41
    ds_read_b128 v[8:11], v3 offset:{L_Q - L_O + 8*QSTR*g}
    ds_read_b128 v[12:15], v3 offset:{L_Q - L_O + 8*QSTR*g + 16}
    ds_read_b128 v[28:31], v28
    s_waitcnt lgkmcnt(1)
    v_dot2_f32_bf16 v1, v8, s{sKSL[0]}, 0""")
    for i in range(1, 8): a(f"v_dot2_f32_bf16 v1, v{8+i}, s{sKSL[i]}, v1")
    a(f"""v_exp_f32 v1, v1
    s_waitcnt lgkmcnt(0)
    v_and_b32 v1, 0xffff0000, v1
    v_pk_mul_f32 v[28:29], v[28:29], v[0:1] op_sel:[0,1] op_sel_hi:[1,1]
    v_pk_mul_f32 v[30:31], v[30:31], v[0:1] op_sel:[0,1] op_sel_hi:[1,1]
    s_branch {l1}
    {l0}:
    v_mov_b32 v1, 0
    v_mov_b64 v[28:29], 0
    v_mov_b64 v[30:31], 0
    {l1}:""")
def norm_pre(g):
    a(f"""v_and_b32 v10, 31, v0
    s_add_u32 s41, s{sLB}, {1024*g}
    v_lshl_add_u32 v10, v10, 2, s41
    v_lshl_add_u32 v26, v0, 2, s{sSB}""")
def normalize(g, sleep):
    if sleep:
        lb = a.newlabel("H_lw")
        a(f"""v_lshl_add_u32 v13, v0, 3, s{sLB}
        s_mov_b32 s{sCNT}, 0
        {lb}:
        ds_read_b32 v8, v13 offset:{1024*g}
        s_waitcnt lgkmcnt(0)
        v_cmp_eq_u32 vcc, -1, v8""")
        poll_guard(lb, "s_cbranch_vccz", "H_lwd", 4, sleep)
    a(f"""ds_read2_b32 v[8:9], v10 offset0:0 offset1:32
    ds_read2_b32 v[10:11], v10 offset0:64 offset1:96""")
    for w in range(4):
        for hf in range(2): a(f"ds_read2st64_b32 {V(12+4*w+2*hf,2)}, v26 offset0:{64*g + 8*w + 2*hf} offset1:{64*g + 8*w + 2*hf + 1}")
    a(f"""s_waitcnt lgkmcnt(8)
    v_pk_add_f32 v[8:9], v[8:9], v[10:11]
    v_add_f32 v8, v8, v9
    v_add_f32 v8, v8, v1
    v_rcp_f32 v9, v8
    s_waitcnt lgkmcnt(4)""")
    pkadd(12, 12, 16, 4)
    pkadd(12, 12, 28, 4)
    a(f"""v_lshrrev_b32 v11, 5, v0
    s_and_b32 s41, s{sH}, 1
    s_lshl_b32 s41, s41, 4
    v_lshl_add_u32 v11, v11, 3, v3
    s_waitcnt lgkmcnt(0)""")
    pkadd(20, 20, 24, 4)
    a("v_add_u32 v11, s41, v11")
    pkadd(12, 12, 20, 4)
    lb = a.newlabel("H_nb")
    a(f"""v_pk_mul_f32 v[12:13], v[12:13], v[8:9] op_sel:[0,1] op_sel_hi:[1,1]
    v_pk_mul_f32 v[14:15], v[14:15], v[8:9] op_sel:[0,1] op_sel_hi:[1,1]
    v_cvt_pk_bf16_f32 v16, v12, v13
    v_cvt_pk_bf16_f32 v17, v14, v15
    ds_write_b64 v11, v[16:17] offset:{8*QSTR*g}
    v_pk_add_f32 v[12:13], v[12:13], v[14:15]
    v_add_f32 v12, v12, v13
    v_fma_f32 v8, v12, 0, v8
    v_subrev_u32 v8, {(127-80)<<23}, v8
    v_cmp_lt_u32 vcc, {(0 if (FORCE>>g)&1 else (180<<23))}, v8
    s_cbranch_vccz {lb}
    s_cmp_lg_u32 s{sSLOW}, 0
    s_cbranch_scc1 {lb}
    v_mov_b32 v8, {L_SC}
    v_mov_b32 v9, 1
    ds_write_b32 v8, v9 offset:{SC_BAD}
    {lb}:""")
def hsync(idx, bad=True):
    lb = a.newlabel("H_hs")
    a(f"""s_lshl_b32 s41, s{sL}, 4
    s_add_u32 s41, s41, {L_SC}
    v_mov_b32 v8, s41
    v_mov_b32 v11, {L_SC}""")
    lds_inc(8, SC_OCNT + 4*idx, 9)
    lds_wait(8, SC_OCNT + 4*idx, 9, 4, 3)
    if bad:
        a(f"""ds_read_b32 v9, v11 offset:{SC_BAD}
        s_waitcnt lgkmcnt(0)
        v_cmp_ne_u32 vcc, 0, v9
        s_cbranch_vccnz H_toX""")
def oproj(first):
    if first: a("s_setprio 0")
    for s in range(4):
        a(f"s_waitcnt lgkmcnt({3-s})")
        for f in range(8):
            a(f"v_mfma_f32_16x16x32_bf16 {V(AC+4*f,4)}, {V(OF+4*s,4)}, {V(WO+32*s+4*f,4)}, {'0' if (s==0 and first) else V(AC+4*f,4)}")
def osend(bi):
    if bi == 0 or B1P0: a("s_setprio 0")
    a("s_waitcnt lgkmcnt(0)")
    def st(f):
        if bi == 1: a("s_mov_b64 exec, s[98:99]")
        a(f"global_store_dwordx4 v24, {V(AC+4*f,4)}, {P(sWS)} offset:{(1024*f - 4096) if bi == 0 else (1024*(f&3) + 128*(f>>2))} sc1")
        if bi == 1: a("s_mov_b64 exec, -1")
    for f in range(8):
        for s in range(4):
            a(f"v_mfma_f32_16x16x32_bf16 {V(AC+4*f,4)}, {V(WO+32*s+4*f,4)}, {V(OF+4*s,4)}, {'0' if s==0 else V(AC+4*f,4)}")
        if f >= 2: st(f-2)
    st(6); st(7)
    if bi == 0 or B1P0: a("s_setprio 2")
def flag_poll(vaddr, sleep):
    lp = a.newlabel("H_fp")
    a(f"""s_mov_b32 s{sCNT}, 0
    {lp}:""")
    a(f"""global_load_dword v8, v{vaddr}, {P(sWS)} sc1
    s_waitcnt vmcnt(0)
    v_cmp_ne_u32 vcc, s{sOTAG}, v8""")
    poll_guard(lp, "s_cbranch_vccz", "H_fpd", 1, sleep)
def dstbase(sd, g, off):
    a(f"""s_add_u32 s{sd}, s{sC}, {1 + g}
    s_and_b32 s{sd}, s{sd}, 3
    s_andn2_b32 s43, s{sB}, 3
    s_add_u32 s{sd}, s{sd}, s43
    s_mul_i32 s{sd}, s{sd}, 49152
    s_add_u32 s{sd}, s{sd}, s{sOPB}
    s_add_u32 s{sd}, s{sd}, {off}""")
def send_addr(bi):
    if bi == 0:
        dstbase(41, 0, 4096); dstbase(42, 1, 4096)
        a(f"""v_lshl_add_u32 v24, v0, 4, s42
        s_mov_b64 exec, s[98:99]
        v_lshl_add_u32 v24, v0, 4, s41
        s_mov_b64 exec, -1""")
    else:
        dstbase(41, 2, 8192)
        a("v_lshl_add_u32 v24, v0, 4, s41")
send_addr(1)
a(f"""v_mov_b64 v[8:9], -1
v_mov_b64 v[10:11], -1""")
for f in range(4): a(f"global_store_dwordx4 v24, v[8:11], {P(sWS)} offset:{1024*f} sc1")
if E("NP", 0): a("s_setprio 0")
corr(0); norm_pre(0); normalize(0, 16); corr(1); norm_pre(1)
if E("NP", 0): a("s_setprio 2")
normalize(1, 8)
hsync(0)
for s_ in range(4): a(f"ds_read_b128 {V(OF+4*s_,4)}, v2 offset:{64*s_}")
send_addr(0)
def send_flags():
    a(f"""s_add_u32 s41, s{sC}, 1
    v_add_u32 v25, s41, v0
    v_and_b32 v25, 3, v25
    v_lshlrev_b32 v25, 11, v25
    v_lshl_add_u32 v25, v0, 9, v25
    s_andn2_b32 s43, s{sB}, 3
    s_lshl_b32 s41, s43, 11
    s_lshl_b32 s42, s{sH}, 7
    s_add_u32 s41, s41, s42
    s_add_u32 s41, s41, {WS_OPF}
    v_add_u32 v25, s41, v25
    v_mov_b32 v27, s{sOTAG}
    s_waitcnt vmcnt(0)
    s_mov_b64 exec, 7
    global_store_dword v25, v27, {P(sWS)} sc1
    s_mov_b64 exec, -1""")
a("s_waitcnt vmcnt(0)")
osend(0)
a(f"""v_lshlrev_b32 v13, 4, v0
v_add_u32 v13, {L_L + 2048}, v13
ds_read_b32 v8, v13
s_mov_b32 s{sCAND}, 2
s_waitcnt lgkmcnt(0)
v_cmp_eq_u32 vcc, -1, v8
s_cbranch_vccz H_b1""")
send_flags()
TS(6)
def recv01(nonblock=False):
    a(f"""s_mul_i32 s41, s{sB}, 49152
    s_add_u32 s41, s41, s{sOPB}
    v_lshl_add_u32 v24, v0, 4, s41
    v_add_u32 v26, 4096, v24
    s_lshl_b32 s41, s{sB}, 11
    s_lshl_b32 s42, s{sH}, 7
    s_add_u32 s41, s41, s42
    s_add_u32 s41, s41, {WS_OPF}
    v_min_u32 v25, 2, v0
    v_lshl_add_u32 v25, v25, 9, s41""")
    if nonblock:
        a(f"""s_mov_b32 s{sCNT}, 0
        H_nbp:
        ds_read_b32 v8, v13
        s_waitcnt lgkmcnt(0)
        v_cmp_eq_u32 vcc, -1, v8
        s_cbranch_vccz H_b1
        s_add_u32 s{sCNT}, s{sCNT}, 1
        s_cmp_ge_u32 s{sCNT}, {POLLMAX}
        s_cbranch_scc1 H_b1
        s_sleep 4
        global_load_dword v8, v25, {P(sWS)} sc1
        s_waitcnt vmcnt(0)
        v_cmp_ne_u32 vcc, s{sOTAG}, v8
        s_cbranch_vccnz H_nbp""")
    else:
        flag_poll(25, 2)
    if nonblock:
        a(f"""s_lshl_b32 s41, s{sH}, 13
        s_add_u32 s41, s41, {L_SLOT}""")
        for f in range(8):
            if f % 4 == 0: a(f"s_add_u32 m0, s41, {1024*f}")
            a(f"global_load_lds_dwordx4 v{24 + 2*(f>>2)}, {P(sWS)} offset:{1024*(f&3)} sc1")
    else:
        for f in range(8): a(f"global_load_dwordx4 {V(AC+4*f,4)}, v26, {P(sWS)} offset:{1024*f - 4096} sc1")
a(f"s_mov_b32 s{sCAND}, 0")
recv01(True)
a(f"s_mov_b32 s{sCAND}, 1\nH_b1:")
corr(2); norm_pre(2); normalize(2, 4)
hsync(1)
for s_ in range(4): a(f"ds_read_b128 {V(OF+4*s_,4)}, v2 offset:{64*s_ + 16*QSTR}")
send_addr(1)
osend(1)
TS(9)
a(f"""s_cmp_eq_u32 s{sCAND}, 1
s_cbranch_scc1 H_r2
s_cmp_eq_u32 s{sCAND}, 0
s_cbranch_scc1 H_r1
s_mov_b32 s{sCAND}, 0""")
send_flags()
a("H_r1:")
recv01()
a(f"""H_r2:
s_mul_i32 s41, s{sB}, 49152
s_add_u32 s41, s41, s{sOPB}
s_add_u32 s41, s41, 8192
v_lshl_add_u32 v26, v0, 4, s41
s_cmp_lg_u32 s{sL}, 0
s_cbranch_scc1 H_npf
s_lshl_b32 s41, s{sH}, 12
v_lshl_add_u32 v8, v0, 6, s41
global_load_dword v28, v8, {P(sWK)}
global_load_dword v29, v8, {P(sWV)}
H_npf:
s_mov_b32 s{sCNT}, 0
s_cmp_eq_u32 s{sCAND}, 0
s_cbranch_scc1 H_p2
s_sleep {E("PS", 24)}
H_p2:""")
for f in range(4): a(f"global_load_dwordx4 {V(8+4*f,4)}, v26, {P(sWS)} offset:{1024*f} sc1")
a(f"""s_waitcnt vmcnt(0)
v_max3_u32 v24, v8, v12, v16
v_max_u32 v24, v24, v20
v_cmp_eq_u32 vcc, -1, v24""")
poll_guard("H_p2", "s_cbranch_vccz", "H_p2d", 1, 4)
a(f"""s_cmp_eq_u32 s{sCAND}, 0
s_cbranch_scc1 H_r3
s_lshl_b32 s41, s{sH}, 13
s_add_u32 s41, s41, {L_SLOT}
v_lshl_add_u32 v24, v0, 4, s41""")
for f in range(8): a(f"ds_read_b128 {V(AC+4*f,4)}, v24 offset:{1024*f}")
a("s_waitcnt lgkmcnt(0)\nH_r3:\ns_mov_b64 exec, s[98:99]")
pkadd(AC, AC, 8, 16)
a("s_not_b64 exec, s[98:99]")
pkadd(AC+16, AC+16, 8, 16)
a("s_mov_b64 exec, -1")
a(f"""s_cmp_lg_u32 s{sL}, 0
s_cbranch_scc1 H_nwf
""")
for g in range(3):
    a(f"s_add_u32 s6, s{sH}, {8*g}")
    pos2tok(41, 6)
    a(f"""s_lshl_b32 s41, s41, 10
    s_add_u32 s{3+g}, s41, {WS_XN + 2048}""")
a("H_nwf:")
TS(10)
a(f"""v_and_b32 v8, 8, v0
v_cmp_eq_u32 vcc, 0, v8
v_lshrrev_b32 v8, 4, v0
v_lshlrev_b32 v8, 4, v8
v_add_u32 v8, {L_SC + SC_ZERO - 24*QSTR}, v8
v_cndmask_b32 v2, v8, v2, vcc""")
corr(3)
norm_pre(3)
a("s_barrier")
normalize(3, 0)
a(f"""v_mov_b32 v24, {L_SC}
s_waitcnt lgkmcnt(0)
s_barrier
ds_read_b32 v24, v24 offset:{SC_BAD}""")
for s_ in range(4): a(f"ds_read_b128 {V(OF+4*s_,4)}, v2 offset:{64*s_ + 24*QSTR}")
a(f"""v_lshrrev_b32 v26, 4, v0
v_and_b32 v25, 15, v0
v_mul_u32_u24 v25, {RS}, v25
v_lshl_add_u32 v25, v26, 4, v25
s_lshl_b32 s41, s{sH}, 9
s_add_u32 s41, s41, {L_ROW}
v_add_u32 v1, s41, v25
s_waitcnt lgkmcnt(4)
v_cmp_ne_u32 vcc, 0, v24
s_cbranch_vccnz H_slow""")
def fm(f, s_): a(f"v_mfma_f32_16x16x32_bf16 {V(AC+4*f,4)}, {V(WO+32*s_+4*f,4)}, {V(OF+4*s_,4)}, {V(AC+4*f,4)}")
for s_ in range(4):
    a(f"s_waitcnt lgkmcnt({3-s_})")
    fm(0, s_); fm(1, s_)
for f in range(2, 8):
    for s_ in range(4): fm(f, s_)
    if f >= 3: a(f"ds_write_b128 v1, {V(AC+4*(f-3),4)} offset:{64*(f-3)}")
for f in (5, 6, 7): a(f"ds_write_b128 v1, {V(AC+4*f,4)} offset:{64*f}")
a("s_setprio 0\ns_branch R_P4")
a("H_FF2:")
for i in range(0, 24, 2): a(f"v_mov_b64 {V(GU+i,2)}, {V(64+i,2)}")
a(f"""H_FFN:
v_lshrrev_b32 v20, 4, v0
s_lshl_b32 s41, s{sH}, 6
s_add_u32 s41, s41, {L_SC + SC_FACC}
v_lshl_add_u32 v20, v20, 4, s41
v_and_b32 v22, 1, v0
v_bfe_u32 v21, v0, 1, 2
v_lshlrev_b32 v21, 2, v21
v_lshl_add_u32 v21, v22, 4, v21
v_add_u32 v21, {L_SC + SC_FACC}, v21
s_lshl_b32 s41, s{sJ}, 7
s_lshl_b32 s42, s{sF}, 15
s_add_u32 s41, s41, s42
s_add_u32 s41, s41, {WS_HY}
v_lshl_add_u32 v22, v0, 1, s41
v_mov_b32 v23, 1
v_lshrrev_b32 v24, 5, v0
s_lshl_b32 s41, s{sH}, 3
s_add_u32 s41, s41, {L_SC + SC_DACC}
v_lshl_add_u32 v24, v24, 2, s41""")
key_get(E("KG", 0))
a(f"""s_cmp_lg_u32 s{sF}, 0
s_cbranch_scc1 H_nl""")
ffn_loads()
a("H_nl:")
a(f"""s_lshr_b32 s41, s{sSEL}, 3
s_lshl_b32 s41, s41, 11
s_lshl_b32 s42, s{sF}, 19
s_add_u32 s41, s41, s42
s_add_u32 s41, s41, {WS_CAND}
s_lshl_b32 s42, s{sH}, 8
s_add_u32 s42, s42, s41
v_lshl_add_u32 v2, v0, 2, s42
s_lshl_b32 s42, s{sJ}, 2
s_add_u32 s42, s42, s41
v_mov_b32 v9, s42
s_lshl_b32 s42, s{sF}, 2
v_add_u32 v37, s42, v3
s_mov_b32 s{sCNT}, 0""")
TSF(11)
a(f"""H_xs:
global_load_dword v8, v2, {P(sWS)} sc1
global_load_dword v38, v9, {P(sWS)} sc1
global_load_dword v39, v9, {P(sWS)} offset:1024 sc1
s_waitcnt vmcnt(0)
v_max3_u32 v10, v8, v38, v39
v_cmp_eq_u32 vcc, -1, v10""")
poll_guard("H_xs", "s_cbranch_vccz", "H_xsd")
a(f"""s_cmp_ge_u32 s{sJ}, 224
s_cbranch_scc1 H_down""")
for i in range(16): a(f"v_dot2_f32_bf16 v{GU+i}, v{GU+i}, v8, 0")
for c in range(8): a(f"v_permlane32_swap_b32 v{GU+c}, v{GU+8+c}")
pkadd(GU, GU, GU+8, 8)
for c in range(4): a(f"v_permlane16_swap_b32 v{GU+c}, v{GU+4+c}")
pkadd(GU, GU, GU+4, 4)
for m in ("row_ror:8", "row_ror:4", "row_ror:2", "row_ror:1"):
    for c in range(4): a(f"v_add_f32_dpp v{GU+c}, v{GU+c}, v{GU+c} {m} row_mask:0xf bank_mask:0xf")
a(f"""s_mov_b32 exec_lo, 0x00010001
s_mov_b32 exec_hi, 0x00010001
ds_write_b128 v20, {V(GU,4)}
s_mov_b64 exec, 1
ds_add_rtn_u32 v10, v37, v23 offset:{SC_FCNT}
s_mov_b64 exec, -1""")
for w in range(4): a(f"ds_read2_b32 {V(12+2*w,2)}, v21 offset0:{16*w} offset1:{16*w+8}")
a(f"""s_waitcnt lgkmcnt(0)
v_readfirstlane_b32 s42, v10
s_cmp_lg_u32 s42, 3
s_cbranch_scc1 H_down
v_pk_add_f32 v[12:13], v[12:13], v[14:15]
v_pk_add_f32 v[16:17], v[16:17], v[18:19]
v_pk_add_f32 v[12:13], v[12:13], v[16:17]
v_cvt_pk_bf16_f32 v12, v12, v13
v_and_b32 v13, 0xffff0000, v12
v_lshlrev_b32 v12, 16, v12
v_mul_f32 v14, 0xbfb8aa3b, v12
v_exp_f32 v14, v14
v_add_f32 v14, 1.0, v14
v_rcp_f32 v14, v14
v_mul_f32 v12, v12, v14
v_cvt_pk_bf16_f32 v12, v12, v12
v_lshlrev_b32 v12, 16, v12
v_mul_f32 v12, v12, v13
v_mov_b32_dpp v13, v12 quad_perm:[1,1,3,3] row_mask:0xf bank_mask:0xf
v_cvt_pk_bf16_f32 v12, v12, v13
s_mov_b64 exec, 0x55
global_store_dword v22, v12, {P(sWS)} sc1
s_mov_b64 exec, -1
H_down:
s_lshl_b32 s41, s{sH}, 6
v_add_u32 v1, s41, v0
v_min_u32 v2, 223, v1
s_lshl_b32 s42, s{sF}, 15
s_add_u32 s42, s42, {WS_HY}
v_lshl_add_u32 v2, v2, 7, s42
s_mov_b32 s{sCNT}, 0""")
TSF(12)
a(f"""s_cmp_lg_u32 s{sF}, 0
s_cbranch_scc1 H_nkw""")
a(f"s_sleep {E('HS0', 20)}\nH_nkw:")
a(f"""s_and_b32 s41, s{sF}, s{sCAND}
s_cbranch_scc0 H_ncs
s_cmp_eq_u32 s{sSEL}, s{sTOK}
s_cbranch_scc1 H_ncs
s_lshl_b32 s41, s{sTOK}, 10
v_lshl_add_u32 v9, v0, 4, s41
global_store_dwordx4 v9, {V(XR,4)}, {P(sOUT)}
H_ncs:
s_lshr_b32 s41, s{sKEY}, 16
s_and_b32 s42, s41, 0x7fff
s_xor_b32 s43, s41, 0xffff
s_bitcmp1_b32 s41, 15
s_cselect_b32 s41, s42, s43
s_lshl_b32 s41, s41, 16
v_mov_b32 v11, s41
v_mul_f32 v11, 0xbfb8aa3b, v11
v_exp_f32 v11, v11
v_add_f32 v11, 1.0, v11
v_rcp_f32 v11, v11
v_cvt_pk_bf16_f32 v11, v11, v11
v_lshlrev_b32 v11, 16, v11
v_lshlrev_b32 v26, 16, v38
v_and_b32 v27, 0xffff0000, v38
v_lshlrev_b32 v28, 16, v39
v_and_b32 v29, 0xffff0000, v39
s_lshl_b32 s41, s{sJ}, 7
s_add_u32 s41, s41, {WS_Y}
s_lshl_b32 s42, s{sSEL}, 10
s_lshl_b32 s43, s{sJ}, 2
s_add_u32 s42, s42, s43
s_cmp_eq_u32 s{sF}, 0
s_cselect_b32 s41, s41, s42
v_mov_b32 v25, s41""")
if HS1: a(f"s_sleep {HS1}")
a(f"""s_mov_b32 s{sCNT}, 0
s_mov_b64 vcc, -1
H_hp:
s_mov_b64 exec, {"vcc" if E("MSK", 1) else "-1"}
global_load_dwordx4 v[12:15], v2, {P(sWS)} sc1
s_mov_b64 exec, -1
s_waitcnt vmcnt(0)
v_max3_u32 v9, v12, v13, v14
v_max_u32 v9, v9, v15
v_cmp_eq_u32 vcc, -1, v9""")
poll_guard("H_hp", "s_cbranch_vccz", "H_hpd", 1, E("HR", 3))
TSF(13)
a(f"""v_dot2_f32_bf16 v8, v{WDn}, v12, 0
v_dot2_f32_bf16 v9, v{WDn+4}, v12, 0""")
for i in range(1, 4):
    a(f"v_dot2_f32_bf16 v8, v{WDn+i}, v{12+i}, v8")
    a(f"v_dot2_f32_bf16 v9, v{WDn+4+i}, v{12+i}, v9")
a(f"""v_cmp_gt_u32 vcc, 224, v1
v_cndmask_b32 v8, 0, v8, vcc
v_cndmask_b32 v9, 0, v9, vcc
v_permlane32_swap_b32 v8, v9
v_add_f32 v8, v8, v9""")
for m in ("row_ror:8", "row_ror:4", "row_ror:2", "row_ror:1"):
    a(f"v_add_f32_dpp v8, v8, v8 {m} row_mask:0xf bank_mask:0xf")
a(f"""v_add_f32_dpp v8, v8, v8 row_bcast:15 row_mask:0xa bank_mask:0xf
s_mov_b32 exec_lo, 0x80000000
s_mov_b32 exec_hi, 0x80000000
ds_write_b32 v24, v8
s_mov_b64 exec, 1
ds_add_rtn_u32 v10, v37, v23 offset:{SC_DCNT}
s_mov_b64 exec, -1
ds_read_b128 v[12:15], v3 offset:{SC_DACC}
ds_read_b128 v[16:19], v3 offset:{SC_DACC+16}
s_waitcnt lgkmcnt(0)
v_readfirstlane_b32 s42, v10
s_cmp_lg_u32 s42, 3
s_cbranch_scc1 H_ffd
v_pk_add_f32 v[12:13], v[12:13], v[14:15]
v_pk_add_f32 v[16:17], v[16:17], v[18:19]
v_pk_add_f32 v[8:9], v[12:13], v[16:17]""")
a(f"""v_cvt_pk_bf16_f32 v8, 0, v8
v_cvt_pk_bf16_f32 v9, 0, v9
v_mul_f32 v8, v8, v11
v_mul_f32 v9, v9, v11
v_cvt_pk_bf16_f32 v8, 0, v8
v_cvt_pk_bf16_f32 v9, 0, v9
v_pk_add_f32 v[8:9], v[8:9], v[26:27]
v_cvt_pk_bf16_f32 v8, 0, v8
v_cvt_pk_bf16_f32 v9, 0, v9
v_pk_add_f32 v[8:9], v[8:9], v[28:29]
v_cvt_pk_bf16_f32 v12, v8, v9
s_mov_b64 exec, 1
s_cmp_lg_u32 s{sF}, 0
s_cbranch_scc1 H_fo
global_store_dword v25, v12, {P(sWS)} sc1
s_branch H_fo2
H_fo:
global_store_dword v25, v12, {P(sOUT)}
H_fo2:
s_mov_b64 exec, -1
H_ffd:
s_cmp_lg_u32 s{sF}, 0
s_cbranch_scc1 L_end""")
a(f"""s_lshl_b32 s41, s{sH}, 13
s_add_u32 s41, s41, {WS_Y}
v_lshl_add_u32 v1, v0, 7, s41
s_lshl_b32 s41, s{sH}, 8
s_add_u32 s41, s41, {L_X2S}
v_lshl_add_u32 v2, v0, 2, s41
s_mov_b32 s{sCNT}, 0
s_sleep {E('YS', 20)}
s_mov_b64 vcc, -1
H_yw:
s_mov_b64 exec, {"vcc" if E("MSK", 1) else "-1"}
global_load_dword v40, v1, {P(sWS)} sc1
s_mov_b64 exec, -1
s_waitcnt vmcnt(0)
v_cmp_eq_u32 vcc, -1, v40""")
poll_guard("H_yw", "s_cbranch_vccz", "H_yd", 1, 3)
a(f"""ds_write_b32 v2, v40
v_mov_b32 v2, 1
s_mov_b64 exec, 1
ds_add_rtn_u32 v41, v3, v2 offset:{SC_YC}
s_mov_b64 exec, -1
v_lshlrev_b32 v1, 4, v0
v_add_u32 v1, {L_XS}, v1
s_waitcnt lgkmcnt(0)
v_readfirstlane_b32 s41, v41
s_cmp_lg_u32 s41, 3
s_cbranch_scc1 H_fx1
ds_read_b128 v[40:43], v1 offset:1024
s_waitcnt lgkmcnt(0)""")
unpack(X_, 40)
ln(X_, D_, T_, XN)
a(f"ds_write_b128 v1, {V(XN,4)}")
lds_inc(3, SC_XSF, 2)
a(f"""H_fx1:
s_xor_b32 s41, s{sSEL}, s{sTOK}
s_lshr_b32 s41, s41, 5
s_cbranch_scc1 H_fx2""")
lds_wait(3, SC_XSF, 2, 1, 2)
qtr_addr()
a(f"""v_lshrrev_b32 v12, 4, v0
v_lshlrev_b32 v8, 4, v12
v_add_u32 v8, {L_XS}, v8
v_add_u32 v9, 64, v8
v_add_u32 v10, 128, v8
v_add_u32 v11, 192, v8
s_lshl_b32 s41, s{sC}, 3
s_sub_u32 s41, s{sSEL}, s41
s_sub_u32 s41, s41, 8
s_and_b32 s41, s41, 31
s_mul_i32 s41, s41, {QSTR}
s_lshl_b32 s42, s{sH}, 6
s_add_u32 s41, s41, s42
s_add_u32 s41, s41, {L_Q}
v_lshl_add_u32 v2, v12, 3, s41
v_mov_b32 v3, {L_SC + SC_QFIX - SC_QC}
s_mov_b32 s{sQM}, 2
s_branch H_qp
H_fx3:
v_mov_b32 v3, {L_SC}""")
lds_wait(3, SC_QFIX, 2, 8, 1)
a(f"""H_fx2:""")
a(f"s_lshl_b32 s98, s{sH}, 14")
wkv_dma(1, 98)
a("s_waitcnt vmcnt(0)")
wkv_tr(8, 1, 2, 98)
lds_wait(3, SC_XSF, 2, 1, 2)
TSA(14)
a(f"""v_lshrrev_b32 v2, 4, v0
s_lshl_b32 s41, s{sH}, 8
s_add_u32 s41, s41, {L_XS}
v_lshl_add_u32 v1, v2, 4, s41""")
for s in range(4): a(f"ds_read_b128 {V(40+4*s,4)}, v1 offset:{64*s}")
a(f"""s_lshl_b32 s41, s{sH}, 7
s_add_u32 s41, s41, {L_KVP}
v_lshl_add_u32 v2, v2, 4, s41
s_waitcnt lgkmcnt(0)""")
for s in range(4):
    a(f"v_mfma_f32_16x16x32_bf16 v[56:59], {V(8+8*s,4)}, {V(40+4*s,4)}, {'0' if s==0 else 'v[56:59]'}")
    a(f"v_mfma_f32_16x16x32_bf16 v[60:63], {V(8+8*s+4,4)}, {V(40+4*s,4)}, {'0' if s==0 else 'v[60:63]'}")
a(f"""s_mov_b32 exec_lo, 0x00010001
s_mov_b32 exec_hi, 0x00010001
ds_write_b128 v2, v[56:59]
ds_write_b128 v2, v[60:63] offset:64
s_mov_b64 exec, -1""")
hsync(2, False)
a(f"""v_and_b32 v42, 7, v0
v_lshlrev_b32 v1, 3, v42
v_add_u32 v1, {L_KVP}, v1
v_lshrrev_b32 v2, 5, v0
s_and_b32 s41, s{sH}, 1
s_lshl_b32 s41, s41, 5
s_add_u32 s41, s41, {L_KVP + 64}
v_lshl_add_u32 v40, v2, 4, s41
s_lshl_b32 s41, s{sH}, 5
s_add_u32 s41, s41, {L_VS}
v_lshl_add_u32 v41, v2, 4, s41""")
for w in range(4): a(f"ds_read_b64 {V(8+2*w,2)}, v1 offset:{128*w}")
for w in range(4): a(f"ds_read_b128 {V(16+4*w,4)}, v40 offset:{128*w}")
a(f"""v_lshlrev_b32 v1, 2, v42
v_add_u32 v1, {L_KVP}, v1
s_waitcnt lgkmcnt(4)
v_pk_add_f32 v[8:9], v[8:9], v[10:11]
v_pk_add_f32 v[12:13], v[12:13], v[14:15]
v_pk_add_f32 v[8:9], v[8:9], v[12:13]
v_cvt_pk_bf16_f32 v8, v8, v9
s_waitcnt lgkmcnt(0)""")
pkadd(16, 16, 20, 4); pkadd(24, 24, 28, 4); pkadd(16, 16, 24, 4)
for i in range(8): a(f"v_readlane_b32 s{sKSL[i]}, v8, {i}")
pack(20, 16, 2); unpack(16, 20, 2)
a(f"""ds_write_b128 v41, v[16:19]
ds_write_b32 v1, v8 offset:{L_KS - L_KVP}""")
a(f"""s_cmp_lg_u32 s{sTOK}, 7
s_cbranch_scc1 H_nE
s_add_u32 s41, s{sE}, 2
v_mov_b32 v1, 0
v_mov_b32 v2, s41
s_mov_b64 exec, 1
global_store_dword v1, v2, {P(sWS)} sc1
s_mov_b64 exec, -1
H_nE:""")
ffn_loads(64)
a(f"""s_branch H_bursts
H_toX:
s_barrier
s_barrier
H_slow:
s_waitcnt vmcnt(0) lgkmcnt(0)
s_barrier
v_mov_b64 v[28:29], -1
v_mov_b64 v[30:31], -1
s_lshl_b32 s41, s{sH}, 10
s_add_u32 s41, s41, {L_L}
v_lshl_add_u32 v1, v0, 4, s41
ds_write_b128 v1, v[28:31]
s_lshl_b32 s41, s{sH}, 8
s_add_u32 s41, s41, {L_M}
v_lshl_add_u32 v1, v0, 2, s41
v_mov_b32 v8, 0xff800000
ds_write_b32 v1, v8
s_lshl_b32 s41, s{sL}, 4
s_add_u32 s41, s41, {L_SC}
v_mov_b32 v1, s41
v_mov_b32 v2, {L_SC}
v_mov_b64 v[8:9], 0
ds_write_b64 v1, v[8:9] offset:{SC_OCNT}
ds_write_b32 v2, v8 offset:{SC_BAD}
s_mov_b32 s{sSLOW}, 1
s_waitcnt lgkmcnt(0)
s_barrier
s_barrier
s_branch H_bursts
A_slow:
s_waitcnt vmcnt(0)
s_barrier
s_cmp_eq_u32 s3, 15
s_cbranch_scc1 A_sl1
v_lshrrev_b32 v8, 5, v0
v_lshlrev_b32 v8, 4, v8
v_add_u32 v8, {L_KS}, v8
ds_read_b128 v[32:35], v8
v_and_b32 v9, 15, v0
v_lshlrev_b32 v9, 2, v9
v_add_u32 v9, {L_VS}, v9
ds_read_b32 v36, v9
v_and_b32 v9, 27, v0
v_cmp_eq_u32 vcc, 16, v9
v_mov_b32 v10, 0x3f800000
v_cndmask_b32 v10, 0, v10, vcc
v_and_b32 v9, 16, v0
v_cmp_eq_u32 vcc, 0, v9
s_waitcnt lgkmcnt(0)
v_cndmask_b32 v36, v10, v36, vcc
s_bitcmp1_b32 s{sSEL}, 0
s_cselect_b32 s41, 0, 16
v_lshrrev_b32 v36, s41, v36
s_mov_b64 exec, s[6:7]
s_lshl_b32 s41, s3, 4
s_add_u32 s41, s41, s4
s_set_gpr_idx_on s41, gpr_idx(SRC0,DST)
s_nop 1
v_or_b32 v{VV}, v{VV}, v36
s_nop 1
s_set_gpr_idx_off
s_bfe_u32 s41, s101, 0x20006
s_lshl_b32 s41, s41, 3
s_and_b32 s42, s{sSEL}, 7
s_add_u32 s41, s41, s42
s_lshl_b32 s42, 1, s41
s_mov_b32 exec_lo, s42
s_mov_b32 exec_hi, s42
s_bfe_u32 s41, s101, 0x10008
s_lshl_b32 s42, s3, 1
s_add_u32 s41, s41, s42
s_lshl_b32 s41, s41, 2
s_set_gpr_idx_on s41, gpr_idx(DST)
s_nop 1
v_mov_b32 v{KK}, v32
v_mov_b32 v{KK+1}, v33
v_mov_b32 v{KK+2}, v34
v_mov_b32 v{KK+3}, v35
s_nop 1
s_set_gpr_idx_off
s_mov_b64 exec, -1
A_sl1:
v_and_b32 v14, 31, v0
v_lshlrev_b32 v14, 2, v14
v_add_u32 v14, {L_M}, v14""")
att_addr()
a(f"""s_barrier
s_mov_b32 s44, 0
A_sm:
s_mul_i32 s41, s44, {4*QSTR}
v_add_u32 v{Q}, s41, v{vQA}
ds_read_b128 {V(Q,4)}, v{Q}
v_mov_b32 v15, 0xff800000
s_waitcnt lgkmcnt(0)""")
for kt in range(NT):
    a(f"v_mfma_f32_32x32x16_bf16 {V(S0,16)}, {V(KK+4*kt,4)}, {V(Q,4)}, 0")
    for i in range(0, 16, 2): a(f"v_max3_f32 v15, v15, v{S0+i}, v{S0+i+1}")
a(f"""v_lshl_add_u32 v13, s44, 7, v14
ds_max_f32 v13, v15
s_add_u32 s44, s44, 1
s_cmp_lt_u32 s44, 8
s_cbranch_scc1 A_sm
s_waitcnt lgkmcnt(0)
s_barrier
s_mov_b32 s44, 0
A_se:
s_mul_i32 s41, s44, {4*QSTR}
v_add_u32 v{Q}, s41, v{vQA}
ds_read_b128 {V(Q,4)}, v{Q}
v_lshl_add_u32 v13, s44, 7, v14
ds_read_b32 v15, v13
s_waitcnt lgkmcnt(0)""")
for i in range(16): a(f"v_sub_f32 v{S1+i}, 0, v15")
for i in range(0, 16, 2): a(f"v_mov_b64 {V(ACC+i,2)}, 0")
for kt in range(NT):
    a(f"v_mfma_f32_32x32x16_bf16 {V(S0,16)}, {V(KK+4*kt,4)}, {V(Q,4)}, {V(S1,16)}")
    ex(S0, 0, 16)
    smf(2*kt, S0); smf(2*kt+1, S0+8)
a("s_mov_b32 s41, s44")
flush_pre()
flush()
a(f"""s_add_u32 s44, s44, 1
s_cmp_lt_u32 s44, 8
s_cbranch_scc1 A_se
s_branch A_X
L_end:
""")
if TSON:
    TS(15)
    a(f"""s_getreg_b32 s75, hwreg(HW_REG_HW_ID)
    s_mul_i32 s41, s{sB}, 12
    s_add_u32 s41, s41, s{sW}
    s_lshl_b32 s41, s41, 7
    s_add_u32 s41, s41, {WS_TS}
    v_mov_b32 v1, s41
    s_mov_b64 exec, 1""")
    for i in range(32):
        a(f"v_mov_b32 v2, s{60+i}\nglobal_store_dword v1, v2, {P(sWS)} offset:{4*i}")
if os.environ.get("DLY"):
    i_, j_ = [int(x) for x in os.environ["DLY"].split(",")]
    a(f"""s_cmp_lg_u32 s{sTOK}, {int(os.environ.get("DLYW", "4"))}
    s_cbranch_scc1 L_exit
    s_sub_u32 s41, s{60+j_}, s{60+i_}
    s_mul_i32 s41, s41, {E("DLYM", 4)}
    s_min_u32 s41, s41, 40000
    s_add_u32 s41, s41, s91
    s_add_u32 s41, s41, 1000
    L_dly:
    s_memrealtime s[92:93]
    s_waitcnt lgkmcnt(0)
    s_sub_u32 s42, s92, s41
    s_cmp_lt_i32 s42, 0
    s_cbranch_scc1 L_dly""")
if os.environ.get("DBGT"):
    a(f"""s_mov_b64 exec, 1
    v_mov_b32 v1, 0
    s_not_b32 s41, s60
    v_mov_b32 v2, s41
    global_atomic_umax v1, v2, {P(sDBG)}""")
    for k, slot in enumerate((31, 1, 2, 3, 5, 9, 7, 21, 25, 23, 24, 27, 29, 16, 0)):
        a(f"v_mov_b32 v2, s{60+slot}\nglobal_atomic_umax v1, v2, {P(sDBG)} offset:{4+4*k}")
a("L_exit:\ns_endpgm")

ABL = os.environ.get("ABL", "")
if ABL:
    from asmlib import Ins
    out_items = []; cur = ""
    for it in a.items:
        if isinstance(it, Ins) and it.label: cur = it.label
        drop = False
        if isinstance(it, Ins) and it.text:
            idx = len(out_items)
            t = it.text
            if "ds_write_b32 v8, v9 offset:96" in t: drop = True
            inH = region[0]
            if "w" in ABL and inH == "prep" and it.op == "v_perm_b32": drop = True
            if "m" in ABL and inH == "burst" and it.op.startswith("v_mfma"): drop = True
            if "v" in ABL and inH == "burst" and it.op in ("v_pk_add_f32", "v_pk_mul_f32", "v_dot2_f32_bf16", "v_cvt_pk_bf16_f32", "v_add_f32", "v_exp_f32", "v_rcp_f32", "v_fma_f32"): drop = True
            if "f" in ABL and inH == "ffn" and (it.op.startswith("v_dot2") or it.op.startswith("v_permlane") or it.op.startswith("v_add_f32_dpp") or it.op.startswith("v_pk_") or it.op.startswith("v_mfma")): drop = True
        if isinstance(it, Ins) and it.label == "H_prep": region[0] = "prep"
        if isinstance(it, Ins) and it.label == "H_bursts": region[0] = "burst"
        if isinstance(it, Ins) and it.label == "H_nwf": region[0] = ""
        if isinstance(it, Ins) and it.label == "H_FFN": region[0] = "ffn"
        if isinstance(it, Ins) and it.label == "H_toX": region[0] = ""
        if not drop: out_items.append(it)
    a.items = out_items
n = a.hazard_pass()
hdr = open(f"cdna_kernels/{NAME}.s.ref").read().split("; Override launch")[0]
out = hdr + f"""; @launch grid=(256,1,1) block=(512,1,1) lds=163840
.amdgcn_target "amdgcn-amd-amdhsa--gfx950"
.text
.globl {NAME}_kernel
.p2align 8
.type {NAME}_kernel,@function
{NAME}_kernel:
""" + a.text() + f""".section .rodata,"a"
.p2align 6
.amdhsa_kernel {NAME}_kernel
  .amdhsa_next_free_vgpr 256
  .amdhsa_next_free_sgpr 102
  .amdhsa_accum_offset 256
  .amdhsa_group_segment_fixed_size 0
  .amdhsa_kernarg_size 104
  .amdhsa_user_sgpr_count 2
  .amdhsa_user_sgpr_kernarg_segment_ptr 1
  .amdhsa_system_sgpr_workgroup_id_x 1
  .amdhsa_float_denorm_mode_32 3
.end_amdhsa_kernel
"""
open(sys.argv[1], "w").write(out)
print("nops inserted", n, "instructions", sum(1 for i in a.items if not isinstance(i, str) and i.text))
```
